```python
import torch

def _softmax(x, axis=-1):
    return torch.softmax(x, dim=axis)
def _gelu(x):
    return torch.nn.functional.gelu(x, approximate="tanh")
def _silu(x):
    return torch.nn.functional.silu(x)
def _sigmoid(x):
    return torch.sigmoid(x)
def _layernorm(x, axis=-1, eps=1e-5):
    m = x.mean(dim=axis, keepdim=True)
    v = x.var(dim=axis, keepdim=True, unbiased=False)
    return (x - m) / torch.sqrt(v + eps)
def _scatter_add(tgt, idx, src, axis=0):
    return tgt.clone().index_add_(axis, idx, src)
def _segment_sum(src, seg, n):
    out = torch.zeros((n,) + src.shape[1:], dtype=src.dtype)
    return out.index_add_(0, seg, src)
def _pad(x, pw):
    flat = tuple(v for pair in reversed(pw) for v in pair)
    return torch.nn.functional.pad(x, flat)

kernel_name = 'interleave_layers__sliding_local_dilated__mixer_token_mlp__prompt'

def setup_inputs():

    _w = (lambda a: (lambda t: t.to(torch.bfloat16) if t.is_floating_point() else t)(torch.as_tensor(a)))
    def _A_setup():
        B, S, D = 1, 2048, 1024
        return {
            "x": _w((lambda *s: torch.randn(*s, dtype=torch.bfloat16) * 0.05)(B, S, D)),
            "wqkv": _w((lambda *s: torch.randn(*s, dtype=torch.bfloat16) * 0.05)(D, 3 * D)),
            "wo": _w((lambda *s: torch.randn(*s, dtype=torch.bfloat16) * 0.05)(D, D)),
        }
    _A_in = _A_setup()

    def _B_setup():
        B, S, D, F = 1, 2048, 1024, 3584
        return {
            "x": _w((lambda *s: torch.randn(*s, dtype=torch.bfloat16) * 0.05)(B, S, D)),
            "w1": _w((lambda *s: torch.randn(*s, dtype=torch.bfloat16) * 1.6)(S, F) * (S ** -0.5)),
            "b1": _w((lambda *s: torch.randn(*s, dtype=torch.bfloat16) * 1.6)(F) * 0.02),
            "w2": _w((lambda *s: torch.randn(*s, dtype=torch.bfloat16) * 1.6)(F, S) * (F ** -0.5)),
            "b2": _w((lambda *s: torch.randn(*s, dtype=torch.bfloat16) * 1.6)(S) * 0.02),
        }
    _B_in = _B_setup()

    return {
        "A_x": _A_in["x"],
        "A_wqkv": _A_in["wqkv"],
        "A_wo": _A_in["wo"],
        "B_x": _B_in["x"],
        "B_w1": _B_in["w1"],
        "B_b1": _B_in["b1"],
        "B_w2": _B_in["w2"],
        "B_b2": _B_in["b2"],
    }

def reference(A_x, A_wqkv, A_wo, B_x, B_w1, B_b1, B_w2, B_b2):
    def _A_ref(x, wqkv, wo):
        B, S, D = x.shape
        H = 32; Dh = D // H
        W, dil = 8, 2
        qkv = (lambda x, *d: x.permute(*d))((x @ wqkv).reshape(B, S, 3, H, Dh), 2, 0, 3, 1, 4)
        q, k, v = qkv[0], qkv[1], qkv[2]
        scale = Dh ** -0.5
        pos = torch.arange(S)
        off = torch.arange(W) * dil
        idx = pos[:, None] - off[None, :]
        mask = idx >= 0
        idx_c = torch.where(mask, idx, 0).reshape(-1)
        kg = k[:, :, idx_c, :].reshape(B, H, S, W, Dh)
        vg = v[:, :, idx_c, :].reshape(B, H, S, W, Dh)
        logits = torch.einsum("bhsd,bhswd->bhsw", q, kg) * scale
        logits = torch.where(mask[None, None, :, :], logits, -1e9)
        attn = _softmax(logits, axis=-1)
        o = torch.einsum("bhsw,bhswd->bhsd", attn, vg)
        return (lambda x, *d: x.permute(*d))(o, 0, 2, 1, 3).reshape(B, S, D) @ wo

    def _B_ref(x, w1, b1, w2, b2):
        B, S, D = x.shape
        h = _layernorm(x, axis=-1)
        u = torch.einsum("bsd,sf->bdf", h, w1) + b1
        u = _gelu(u)
        y = torch.einsum("bdf,fs->bds", u, w2) + b2
        return (lambda x, *d: x.permute(*d))(y, 0, 2, 1)

    x = A_x
    x = x + _A_ref(_layernorm(x, axis=-1), A_wqkv, A_wo)
    x = x + _B_ref(_layernorm(x, axis=-1), B_w1, B_b1, B_w2, B_b2)
    x = x + _A_ref(_layernorm(x, axis=-1), A_wqkv, A_wo)
    x = x + _B_ref(_layernorm(x, axis=-1), B_w1, B_b1, B_w2, B_b2)
    return x
```

```python
class Asm:
    def __init__(self):
        self.lines = []
        self._lbl = 0
    def __call__(self, s, *a):
        if a:
            s = s % a
        self.lines.append("    " + s)
    def label(self, name):
        self.lines.append(name + ":")
    def newlabel(self, base="L"):
        self._lbl += 1
        return "%s_%d" % (base, self._lbl)
    def c(self, s):
        self.lines.append("    ; " + s)
    def raw(self, s):
        self.lines.append(s)
    def text(self):
        return "\n".join(self.lines) + "\n"

def kernel_header(a, name):
    a.raw(".text")
    a.raw(".globl %s" % name)
    a.raw(".p2align 8")
    a.raw(".type %s,@function" % name)
    a.label(name)

def kernel_desc(a, name, vgpr, sgpr=102, accum=None, agpr=0):
    if accum is None:
        accum = (vgpr + 3) // 4 * 4
    nfv = accum + agpr if agpr else vgpr
    a.raw('.section .rodata,"a"')
    a.raw(".p2align 6")
    a.raw(".amdhsa_kernel %s" % name)
    a.raw("  .amdhsa_next_free_vgpr %d" % nfv)
    a.raw("  .amdhsa_next_free_sgpr %d" % sgpr)
    a.raw("  .amdhsa_accum_offset %d" % accum)
    a.raw("  .amdhsa_group_segment_fixed_size 0")
    a.raw("  .amdhsa_kernarg_size 88")
    a.raw("  .amdhsa_user_sgpr_count 2")
    a.raw("  .amdhsa_user_sgpr_kernarg_segment_ptr 1")
    a.raw("  .amdhsa_system_sgpr_workgroup_id_x 1")
    a.raw(".end_amdhsa_kernel")
```

```python
import re, sys

def regs(tok):
    tok = tok.strip()
    tok = tok.lstrip('-')
    if tok.startswith('abs(') or tok.startswith('|'):
        tok = tok.replace('abs(', '').replace(')', '').replace('|', '')
    m = re.fullmatch(r'([vsa])(\d+)', tok)
    if m: return [(m.group(1), int(m.group(2)))]
    m = re.fullmatch(r'([vsa])\[(\d+):(\d+)\]', tok)
    if m: return [(m.group(1), i) for i in range(int(m.group(2)), int(m.group(3)) + 1)]
    if tok == 'vcc': return [('s', 'vcc')]
    if tok == 'm0': return [('s', 'm0')]
    if tok == 'exec': return [('s', 'exec')]
    return []

TRANS = ('v_exp_f32', 'v_log_f32', 'v_rcp_f32', 'v_rsq_f32', 'v_sqrt_f32', 'v_sin_f32', 'v_cos_f32')

class I:
    pass

def parse(line):
    line = line.split(';')[0].strip()
    if not line or line.endswith(':') or line.startswith('.'):
        return None
    parts = line.split(None, 1)
    op = parts[0]
    rest = parts[1] if len(parts) > 1 else ''
    ops = []
    cur = ''
    depth = 0
    for ch in rest:
        if ch == '[': depth += 1
        if ch == ']': depth -= 1
        if ch == ',' and depth == 0:
            ops.append(cur.strip()); cur = ''
        else:
            cur += ch
    if cur.strip(): ops.append(cur.strip())
    mods = ''
    if ops:
        sp = ops[-1].split(None, 1)
        ops[-1] = sp[0]
        if len(sp) > 1: mods = sp[1]
    i = I(); i.op = op; i.ops = ops; i.mods = mods; i.text = line
    i.valu = op.startswith('v_') and not op.startswith('v_mfma')
    i.mfma = op.startswith('v_mfma')
    i.salu = op.startswith('s_')
    i.vmem = op.startswith('buffer_') or op.startswith('global_')
    i.ds = op.startswith('ds_')
    i.dpp = '_dpp' in op or 'row_' in mods or 'quad_perm' in mods
    i.trans = any(op.startswith(t) for t in TRANS)
    W = []; R = []
    if i.valu or i.mfma:
        W += regs(ops[0])
        srcs = ops[1:]
        if op.startswith('v_cmp'):
            pass
        if op.startswith('v_add_co') or op.startswith('v_sub_co') or op.startswith('v_addc_co'):
            W += regs(ops[1]); srcs = ops[2:]
        for s in srcs: R += regs(s)
        if op.startswith('v_fmac') or op.startswith('v_dot2c') or 'permlane' in op and 'swap' in op or i.dpp:
            R += regs(ops[0])
        if 'permlane' in op and 'swap' in op:
            W += regs(ops[1])
        if op.startswith('v_cndmask') and len(ops) == 3:
            R += [('s', 'vcc')]
    elif i.salu:
        if op in ('s_waitcnt', 's_nop', 's_barrier', 's_endpgm', 's_setprio', 's_branch', 's_sleep') or op.startswith('s_cbranch'):
            pass
        elif op.startswith('s_cmp'):
            for s in ops: R += regs(s)
        else:
            W += regs(ops[0])
            for s in ops[1:]: R += regs(s)
    elif i.ds:
        if op.startswith('ds_read') or op.startswith('ds_bpermute') or op.startswith('ds_swizzle'):
            W += regs(ops[0])
            for s in ops[1:]: R += regs(s)
        else:
            for s in ops: R += regs(s)
    elif i.vmem:
        lds = ' lds' in (' ' + mods)
        if 'load' in op and not lds:
            W += regs(ops[0])
            for s in ops[1:]: R += regs(s)
        else:
            for s in ops: R += regs(s)
            if lds: R += [('s', 'm0')]
        i.lds = lds
    i.W = W; i.R = R
    i.ws = 1
    if op == 's_nop': i.ws = int(ops[0], 0) + 1
    return i

def check(text, verbose=True):
    ins = []
    for ln, line in enumerate(text.split('\n'), 1):
        i = parse(line)
        if i is not None:
            i.ln = ln; ins.append(i)
        elif line.strip().endswith('_kernel:'):
            b = I(); b.op = 'BOUNDARY'; b.ln = ln; ins.append(b)
    errs = []
    for k, c in enumerate(ins):
        if c.op == 'BOUNDARY': continue
        dist = 0
        for p in reversed(ins[max(0, k - 24):k]):
            if p.op == 'BOUNDARY' or p.op in ('s_endpgm', 's_branch'): break
            need = 0; why = ''
            Wp = set(p.W); Rc = set(c.R); Wc = set(c.W)
            vW = {r for r in Wp if r[0] in 'va'}
            sW = {r for r in Wp if r[0] == 's'}
            if p.valu and c.mfma and vW & Rc: need, why = 2, 'valu->mfma'
            if p.mfma:
                passes = 8 if '32x32' in p.op else 4
                d = {4: 8, 8: 12}[passes]
                if c.mfma:
                    cA = set(regs(c.ops[1]) + regs(c.ops[2])); cC = set(regs(c.ops[3]))
                    if vW & cA: need, why = d, 'mfma D->mfma AB'
                    elif vW & cC and vW != cC: need, why = d - 2, 'mfma D->C overlap'
                elif (vW & Rc) or (vW & Wc): need, why = d, 'mfma D->use'
                cC = set(regs(p.ops[3]))
                if c.valu and (cC & Wc): need, why = max(need, {4: 3, 8: 7}[passes]), why or 'mfma C WAR'
            if p.valu and 'permlane' in c.op and vW & Rc: need, why = max(need, 2), 'valu->permlane'
            if p.valu and c.dpp and vW & Rc: need, why = max(need, 2), 'valu->dpp'
            if p.trans and c.valu and not c.trans and vW & Rc: need, why = max(need, 1), 'trans->valu'
            if p.trans and (c.mfma or c.vmem or c.ds) and vW & Rc: need, why = max(need, 2), 'trans->other'
            if p.valu and c.op.startswith(('v_readfirstlane', 'v_readlane')) and vW & Rc: need, why = max(need, 1), 'valu->readlane'
            if p.valu and sW and c.valu and sW & Rc: need, why = max(need, 2), 'valu sgpr->valu'
            if p.valu and sW and c.vmem and sW & Rc: need, why = max(need, 5), 'valu sgpr->vmem'
            if p.valu and sW and c.salu and sW & Rc and 'saveexec' not in c.op: need, why = max(need, 1), 'valu sgpr->salu(pad)'
            if p.salu and ('s', 'm0') in Wp and c.vmem and getattr(c, 'lds', False): need, why = max(need, 1), 'm0->dma'
            if p.vmem and 'store' in p.op and ('x4' in p.op or 'x3' in p.op):
                data = set(regs(p.ops[0])) if p.op.startswith('buffer') else set(regs(p.ops[1]))
                if data & Wc: need, why = max(need, 2), 'store data WAR'
            if p.valu and ('s', 'exec') in Wp and (c.dpp): need, why = max(need, 5), 'exec->dpp'
            if p.valu and 'sdwa' in p.op and c.valu and vW & Rc: need, why = max(need, 1), 'sdwa->valu'
            if need > dist:
                errs.append("line %d: %s  [%s need %d have %d] after line %d: %s" % (c.ln, c.text, why, need, dist, p.ln, p.text))
            dist += p.ws
            if dist > 20: break
    if verbose:
        for e in errs: print(e)
        print("hazard check: %d problems" % len(errs))
    return errs

if __name__ == '__main__':
    check(open(sys.argv[1]).read())
```

```python
import sys, struct, math
from asmlib import *
import hazard

NAME = "interleave_layers__sliding_local_dilated__mixer_token_mlp__prompt"
MB = 1 << 20
WS = dict(XN=0, O=4 * MB, X1=8 * MB, H=12 * MB, U=16 * MB, P0=24 * MB, P1=28 * MB, X2=32 * MB)
ARG = dict(x=0, wqkv=8, wo=16, bx=24, w1=32, b1=40, w2=48, b2=56, out=64, dbg=72, ws=80)
ACT_BYTES = 2048 * 1024 * 2

def f32(x):
    return struct.unpack("<I", struct.pack("<f", x))[0]

def srd(a, d, p, off, nbytes):
    if off:
        a("s_add_u32 s%d, s%d, 0x%x", d, p, off)
        a("s_addc_u32 s%d, s%d, 0", d + 1, p + 1)
    else:
        a("s_mov_b32 s%d, s%d", d, p)
        a("s_mov_b32 s%d, s%d", d + 1, p + 1)
    a("s_mov_b32 s%d, 0x%x", d + 2, nbytes)
    a("s_mov_b32 s%d, 0x20000", d + 3)

def wave_sum(a, v, sdst):
    for m in ("quad_perm:[1,0,3,2] row_mask:0xf bank_mask:0xf", "quad_perm:[2,3,0,1] row_mask:0xf bank_mask:0xf",
              "row_half_mirror row_mask:0xf bank_mask:0xf", "row_mirror row_mask:0xf bank_mask:0xf",
              "row_bcast:15 row_mask:0xa bank_mask:0xf", "row_bcast:31 row_mask:0xc bank_mask:0xf"):
        a("s_nop 1")
        a("v_add_f32_dpp v%d, v%d, v%d %s", v, v, v, m)
    a("s_nop 1")
    a("v_readlane_b32 s%d, v%d, 63", sdst, v)
    a("s_nop 1")

def unpack16(a, src, dst):
    for i in range(8):
        a("v_lshlrev_b32 v%d, 16, v%d", dst + 2 * i, src + i)
        a("v_and_b32 v%d, 0xffff0000, v%d", dst + 2 * i + 1, src + i)

def pack16(a, src, dst):
    for i in range(8):
        a("v_cvt_pk_bf16_f32 v%d, v%d, v%d", dst + i, src + 2 * i, src + 2 * i + 1)

def round_bf16_scalar(a, v):
    a("v_cvt_pk_bf16_f32 v%d, v%d, v%d", v, v, v)
    a("v_lshlrev_b32 v%d, 16, v%d", v, v)

def emit_ln(a, X, T, P):
    s = T + 16
    for i in range(4):
        a("v_pk_add_f32 v[%d:%d], v[%d:%d], v[%d:%d]", T + 2 * i, T + 2 * i + 1, X + 4 * i, X + 4 * i + 1, X + 4 * i + 2, X + 4 * i + 3)
    a("v_pk_add_f32 v[%d:%d], v[%d:%d], v[%d:%d]", T, T + 1, T, T + 1, T + 2, T + 3)
    a("v_pk_add_f32 v[%d:%d], v[%d:%d], v[%d:%d]", T + 4, T + 5, T + 4, T + 5, T + 6, T + 7)
    a("v_pk_add_f32 v[%d:%d], v[%d:%d], v[%d:%d]", T, T + 1, T, T + 1, T + 4, T + 5)
    a("v_add_f32 v%d, v%d, v%d", s, T, T + 1)
    wave_sum(a, s, 40)
    a("v_mov_b32 v%d, 0x%x", s + 1, f32(-1.0 / 1024))
    a("v_mul_f32 v%d, s40, v%d", s, s + 1)
    a("v_mov_b32 v%d, v%d", s + 1, s)
    for i in range(8):
        a("v_pk_add_f32 v[%d:%d], v[%d:%d], v[%d:%d]", T + 2 * i, T + 2 * i + 1, X + 2 * i, X + 2 * i + 1, s, s + 1)
    a("v_pk_mul_f32 v[%d:%d], v[%d:%d], v[%d:%d]", s + 2, s + 3, T, T + 1, T, T + 1)
    for i in range(1, 8):
        a("v_pk_fma_f32 v[%d:%d], v[%d:%d], v[%d:%d], v[%d:%d]", s + 2, s + 3, T + 2 * i, T + 2 * i + 1, T + 2 * i, T + 2 * i + 1, s + 2, s + 3)
    a("v_add_f32 v%d, v%d, v%d", s + 2, s + 2, s + 3)
    round_bf16_scalar(a, s)
    a("v_mov_b32 v%d, v%d", s + 1, s)
    wave_sum(a, s + 2, 41)
    for i in range(8):
        a("v_pk_add_f32 v[%d:%d], v[%d:%d], v[%d:%d]", T + 2 * i, T + 2 * i + 1, X + 2 * i, X + 2 * i + 1, s, s + 1)
    a("v_mov_b32 v%d, 0x%x", s + 2, f32(1.0 / 1024))
    a("v_mul_f32 v%d, s41, v%d", s + 2, s + 2)
    round_bf16_scalar(a, s + 2)
    a("v_add_f32 v%d, 0x%x, v%d", s + 2, f32(1e-5), s + 2)
    round_bf16_scalar(a, s + 2)
    a("v_sqrt_f32 v%d, v%d", s + 2, s + 2)
    pack16(a, T, P)
    round_bf16_scalar(a, s + 2)
    a("v_rcp_f32 v%d, v%d", s + 2, s + 2)
    unpack16(a, P, T)
    a("v_mov_b32 v%d, v%d", s + 3, s + 2)
    for i in range(8):
        a("v_pk_mul_f32 v[%d:%d], v[%d:%d], v[%d:%d]", T + 2 * i, T + 2 * i + 1, T + 2 * i, T + 2 * i + 1, s + 2, s + 3)
    pack16(a, T, P)

def gen_ln(a, name, mode):
    kernel_header(a, name)
    a("s_cmp_ge_u32 s2, 512")
    a("s_cbranch_scc1 %s_done", name)
    a("s_load_dwordx2 s[4:5], s[0:1], %d", ARG["ws"])
    if mode == "ln0":
        a("s_load_dwordx2 s[6:7], s[0:1], %d", ARG["x"])
    if mode in ("ln6", "fin"):
        a("s_load_dwordx2 s[6:7], s[0:1], %d", ARG["b2"])
    if mode == "fin":
        a("s_load_dwordx2 s[28:29], s[0:1], %d", ARG["out"])
    a("v_lshrrev_b32 v1, 6, v0")
    a("v_and_b32 v2, 63, v0")
    a("s_lshl_b32 s3, s2, 2")
    a("v_add_u32 v1, s3, v1")
    a("v_lshlrev_b32 v3, 11, v1")
    a("v_lshl_add_u32 v3, v2, 4, v3")
    a("v_lshlrev_b32 v4, 1, v1")
    a("s_waitcnt lgkmcnt(0)")
    X, T, P = 16, 32, 8
    if mode == "ln0":
        srd(a, 8, 6, 0, ACT_BYTES)
        srd(a, 12, 4, WS["XN"], ACT_BYTES)
        a("buffer_load_dwordx4 v[8:11], v3, s[8:11], 0 offen")
        a("buffer_load_dwordx4 v[12:15], v3, s[8:11], 0 offen offset:1024")
        a("s_waitcnt vmcnt(0)")
        unpack16(a, P, X)
        emit_ln(a, X, T, P)
    elif mode == "ln3":
        srd(a, 8, 4, WS["X1"], ACT_BYTES)
        srd(a, 12, 4, WS["H"], ACT_BYTES)
        a("buffer_load_dwordx4 v[8:11], v3, s[8:11], 0 offen")
        a("buffer_load_dwordx4 v[12:15], v3, s[8:11], 0 offen offset:1024")
        a("s_waitcnt vmcnt(0)")
        unpack16(a, P, X)
        emit_ln(a, X, T, P)
        unpack16(a, P, X)
        emit_ln(a, X, T, P)
    else:
        srd(a, 8, 4, WS["X1"], ACT_BYTES)
        srd(a, 16, 4, WS["P0"], ACT_BYTES)
        srd(a, 20, 4, WS["P1"], ACT_BYTES)
        srd(a, 24, 6, 0, 4096)
        a("buffer_load_dwordx4 v[52:55], v3, s[16:19], 0 offen")
        a("buffer_load_dwordx4 v[56:59], v3, s[16:19], 0 offen offset:1024")
        a("buffer_load_dwordx4 v[60:63], v3, s[20:23], 0 offen")
        a("buffer_load_dwordx4 v[64:67], v3, s[20:23], 0 offen offset:1024")
        a("buffer_load_ushort v5, v4, s[24:27], 0 offen")
        a("buffer_load_dwordx4 v[8:11], v3, s[8:11], 0 offen")
        a("buffer_load_dwordx4 v[12:15], v3, s[8:11], 0 offen offset:1024")
        if mode == "fin":
            srd(a, 12, 28, 0, ACT_BYTES)
        else:
            srd(a, 12, 4, WS["XN"], ACT_BYTES)
            srd(a, 28, 4, WS["X2"], ACT_BYTES)
        a("s_waitcnt vmcnt(3)")
        unpack16(a, 52, X)
        unpack16(a, 60, T)
        for i in range(8):
            a("v_pk_add_f32 v[%d:%d], v[%d:%d], v[%d:%d]", X + 2 * i, X + 2 * i + 1, X + 2 * i, X + 2 * i + 1, T + 2 * i, T + 2 * i + 1)
        pack16(a, X, 52)
        a("s_waitcnt vmcnt(2)")
        a("v_lshlrev_b32 v6, 16, v5")
        a("v_lshlrev_b32 v7, 16, v5")
        unpack16(a, 52, X)
        for i in range(8):
            a("v_pk_add_f32 v[%d:%d], v[%d:%d], v[6:7]", X + 2 * i, X + 2 * i + 1, X + 2 * i, X + 2 * i + 1)
        pack16(a, X, 52)
        a("s_waitcnt vmcnt(0)")
        unpack16(a, 52, X)
        unpack16(a, P, T)
        for i in range(8):
            a("v_pk_add_f32 v[%d:%d], v[%d:%d], v[%d:%d]", X + 2 * i, X + 2 * i + 1, X + 2 * i, X + 2 * i + 1, T + 2 * i, T + 2 * i + 1)
        if mode == "fin":
            pack16(a, X, P)
        else:
            pack16(a, X, 52)
            a("buffer_store_dwordx4 v[52:55], v3, s[28:31], 0 offen")
            a("buffer_store_dwordx4 v[56:59], v3, s[28:31], 0 offen offset:1024")
            unpack16(a, 52, X)
            emit_ln(a, X, T, P)
    a("buffer_store_dwordx4 v[8:11], v3, s[12:15], 0 offen")
    a("buffer_store_dwordx4 v[12:15], v3, s[12:15], 0 offen offset:1024")
    a.label(name + "_done")
    a("s_endpgm")
    kernel_desc(a, name, 68, 48)

class Op:
    def __init__(self, kind, T, ld):
        self.kind, self.T, self.ld = kind, T, ld
        self.bytes = T * 128
        self.n = self.bytes // 1024
        self.npw = self.n // 4
        self.kadv = 128 if kind == "kc" else 64 * ld

S_TA, S_TB, S_KB, S_J, S_W = 24, 25, 26, 27, 28
S_T, S_SLOT, S_OFA, S_OFB = 32, 33, 34, 35
S_LA, S_LB, S_M0A, S_M0B = 36, 37, 38, 39
S_TMP = 40
S_CNT, S_DELTA, S_SI = 48, 49, 50
S_ST = 52
S_DP, S_DN = 60, 61

def loader_voffs(a, op, stile, vb, extra_cols=0):
    ld = op.ld
    a("s_mov_b32 s%d, %d", S_TMP, ld)
    if op.kind == "kc":
        a("v_lshrrev_b32 v3, 3, v2")
        a("v_mul_lo_u32 v3, v3, s%d", S_TMP)
        a("v_lshrrev_b32 v4, 4, v2")
        a("v_xor_b32 v4, v4, v2")
        a("v_and_b32 v4, 7, v4")
        a("v_lshl_add_u32 v3, v4, 4, v3")
        a("s_mul_i32 s%d, s%d, %d", S_TMP + 1, stile, op.T * ld)
        a("s_mul_i32 s%d, s%d, %d", S_TMP + 2, S_W, 8 * op.npw * ld)
        a("s_add_u32 s%d, s%d, s%d", S_TMP + 1, S_TMP + 1, S_TMP + 2)
        a("v_xor_b32 v4, 64, v3")
        for i in range(op.npw):
            a("s_add_u32 s%d, s%d, %d", S_TMP + 2, S_TMP + 1, i * 8 * ld)
            a("v_add_u32 v%d, s%d, v%d", vb + i, S_TMP + 2, 3 + (i & 1))
    elif op.T == 128:
        a("v_lshrrev_b32 v4, 4, v2")
        a("v_mul_lo_u32 v3, v4, s%d", S_TMP)
        a("v_lshlrev_b32 v4, 1, v4")
        a("v_xor_b32 v4, v4, v2")
        a("v_and_b32 v4, 15, v4")
        a("v_lshl_add_u32 v3, v4, 4, v3")
        a("s_mul_i32 s%d, s%d, 256", S_TMP + 1, stile)
        a("s_mul_i32 s%d, s%d, %d", S_TMP + 2, S_W, 16 * ld)
        a("s_add_u32 s%d, s%d, s%d", S_TMP + 1, S_TMP + 1, S_TMP + 2)
        a("v_xor_b32 v4, 128, v3")
        for i in range(4):
            a("s_add_u32 s%d, s%d, %d", S_TMP + 2, S_TMP + 1, i * 4 * ld)
            a("v_add_u32 v%d, s%d, v%d", vb + i, S_TMP + 2, 3 + (i >> 1))
    elif op.T == 64:
        a("v_lshrrev_b32 v3, 3, v2")
        a("v_mul_lo_u32 v3, v3, s%d", S_TMP)
        a("v_bfe_u32 v4, v2, 4, 1")
        a("v_lshlrev_b32 v4, 1, v4")
        a("v_xor_b32 v4, v4, v2")
        a("v_and_b32 v4, 7, v4")
        a("v_lshl_add_u32 v3, v4, 4, v3")
        a("s_mul_i32 s%d, s%d, 128", S_TMP + 1, stile)
        a("s_mul_i32 s%d, s%d, %d", S_TMP + 2, S_W, 16 * ld)
        a("s_add_u32 s%d, s%d, s%d", S_TMP + 1, S_TMP + 1, S_TMP + 2)
        a("v_xor_b32 v4, 64, v3")
        for i in range(2):
            a("s_add_u32 s%d, s%d, %d", S_TMP + 2, S_TMP + 1, i * 8 * ld + extra_cols * 2)
            a("v_add_u32 v%d, s%d, v%d", vb + i, S_TMP + 2, 3 + i)
    else:
        raise ValueError

def lane_parts(a):
    a("v_lshrrev_b32 v5, 4, v2")
    a("v_bfe_u32 v6, v2, 2, 2")
    a("v_and_b32 v7, 3, v2")
    a("v_and_b32 v8, 15, v2")

def read_addrs_kc(a, opbase, srow, vb):
    a("v_lshrrev_b32 v3, 1, v8")
    a("v_xor_b32 v3, v3, v5")
    a("v_lshlrev_b32 v3, 4, v3")
    a("v_lshl_add_u32 v3, v8, 7, v3")
    if srow is not None:
        a("s_lshl_b32 s%d, s%d, 7", S_TMP, srow)
        a("s_add_u32 s%d, s%d, %d", S_TMP, S_TMP, opbase)
        a("v_add_u32 v%d, s%d, v3", vb, S_TMP)
    else:
        a("v_add_u32 v%d, %d, v3", vb, opbase)
    a("v_xor_b32 v%d, 64, v%d", vb + 1, vb)

def read_addr_km(a, T, sbase, stile, i, vd):
    rowb = T * 2
    if T == 128:
        a("v_and_b32 v3, 1, v5")
        a("v_lshl_or_b32 v3, v3, 2, v6")
    else:
        a("v_and_b32 v3, 1, v5")
        a("v_lshlrev_b32 v3, 1, v3")
        a("v_lshrrev_b32 v4, 1, v6")
        a("v_or_b32 v3, v3, v4")
    a("s_add_u32 s%d, s%d, %d", S_TMP, stile, i)
    a("v_xor_b32 v3, s%d, v3", S_TMP)
    a("v_lshlrev_b32 v3, 5, v3")
    a("v_lshl_add_u32 v3, v7, 3, v3")
    a("v_lshl_add_u32 v4, v5, 3, v6")
    a("v_lshl_add_u32 v3, v4, %d, v3", rowb.bit_length() - 1)
    a("v_add_u32 v%d, s%d, v3", vd, sbase)

def frag_reads(kind, T, addr_regs, idx, ks, dst):
    if kind == "kc":
        return ["ds_read_b128 v[%d:%d], v%d offset:%d" % (dst, dst + 3, addr_regs[ks], idx * 2048)]
    rowb = T * 2
    return ["ds_read_b64_tr_b16 v[%d:%d], v%d offset:%d" % (dst + 2 * h, dst + 2 * h + 1, addr_regs[idx], h * 4 * rowb + ks * 32 * rowb)
            for h in range(2)]

def interleave(a, mfmas, reads, tail=()):
    reads = list(reads); tail = list(tail)
    for m in mfmas:
        a(m)
        budget = 2
        while reads and budget > 0:
            cost = 2 if "b128" in reads[0] else 1
            if cost > budget: break
            a(reads.pop(0)); budget -= cost
        if not reads:
            while tail and budget > 0:
                a(tail.pop(0)); budget -= 1
    for r in reads: a(r)
    for t in tail: a(t)

def loader_loop(a, name, issue, n_per_wave, N, S, stage_bytes):
    a("s_mov_b32 s%d, 0", S_T)
    a("s_mov_b32 s%d, 0", S_SLOT)
    a.label(name + "_ld_loop")
    a("s_cmp_lt_u32 s%d, %d", S_T, S - 1)
    a("s_cbranch_scc1 %s_ld_issue", name)
    a("s_waitcnt vmcnt(%d)", (S - 2) * n_per_wave)
    a("s_barrier")
    a.label(name + "_ld_issue")
    issue()
    a("s_add_u32 s%d, s%d, %d", S_SLOT, S_SLOT, stage_bytes)
    a("s_cmp_eq_u32 s%d, %d", S_SLOT, S * stage_bytes)
    a("s_cselect_b32 s%d, 0, s%d", S_SLOT, S_SLOT)
    a("s_add_u32 s%d, s%d, 1", S_T, S_T)
    a("s_cmp_lt_u32 s%d, %d", S_T, N)
    a("s_cbranch_scc1 %s_ld_loop", name)
    for t in range(N - S + 1, N):
        a("s_waitcnt vmcnt(%d)", (N - 1 - t) * n_per_wave)
        a("s_barrier")

def kidx_offsets(a, W, advA, advB):
    a("s_add_u32 s%d, s%d, s%d", S_TMP, S_T, S_J)
    a("s_and_b32 s%d, s%d, %d", S_TMP, S_TMP, W - 1)
    a("s_andn2_b32 s%d, s%d, %d", S_TMP + 1, S_T, W - 1)
    a("s_or_b32 s%d, s%d, s%d", S_TMP, S_TMP, S_TMP + 1)
    a("s_add_u32 s%d, s%d, s%d", S_TMP, S_TMP, S_KB)
    a("s_mul_i32 s%d, s%d, %d", S_OFA, S_TMP, advA)
    a("s_mul_i32 s%d, s%d, %d", S_OFB, S_TMP, advB)

def compute_loop_ctl_init(a, N, S, stage_bytes):
    a("s_mov_b32 s%d, %d", S_CNT, N)
    a("s_mov_b32 s%d, 0", S_SI)
    a("s_mov_b32 s%d, %d", S_DP, stage_bytes)
    a("s_mov_b32 s%d, 0x%x", S_DN, (-(S - 1) * stage_bytes) & 0xffffffff)

def addr_update(addr_regs, S, stage_bytes):
    L = ["s_add_u32 s%d, s%d, 1" % (S_SI, S_SI),
         "s_cmp_eq_u32 s%d, %d" % (S_SI, S),
         "s_cselect_b32 s%d, s%d, s%d" % (S_DELTA, S_DN, S_DP),
         "s_cselect_b32 s%d, 0, s%d" % (S_SI, S_SI)]
    L += ["v_add_u32 v%d, s%d, v%d" % (r, S_DELTA, r) for r in addr_regs]
    L += ["s_sub_u32 s%d, s%d, 1" % (S_CNT, S_CNT), "s_cmp_lg_u32 s%d, 0" % S_CNT]
    return L

def gelu_pairs(a, regs, tmp, cst):
    n = len(regs)
    pr = lambda r: "v[%d:%d]" % (r, r + 1)
    for k, r in enumerate(regs): a("v_pk_mul_f32 %s, %s, %s", pr(tmp + 2 * k), pr(r), pr(r))
    for k, r in enumerate(regs): a("v_pk_fma_f32 %s, %s, %s, %s", pr(tmp + 2 * k), pr(tmp + 2 * k), pr(cst), pr(cst + 2))
    for k, r in enumerate(regs): a("v_pk_mul_f32 %s, %s, %s", pr(tmp + 2 * k), pr(tmp + 2 * k), pr(r))
    for k in range(2 * n): a("v_exp_f32 v%d, v%d", tmp + k, tmp + k)
    for k, r in enumerate(regs): a("v_pk_add_f32 %s, %s, %s", pr(tmp + 2 * k), pr(tmp + 2 * k), pr(cst + 4))
    for k in range(2 * n): a("v_rcp_f32 v%d, v%d", tmp + k, tmp + k)
    for k, r in enumerate(regs): a("v_pk_mul_f32 %s, %s, %s", pr(r), pr(r), pr(tmp + 2 * k))

def gen_gemm(a, name, ntiles, A, B, WA, WB, N, S, W, ptrs, decode, init, epi, ldc, stubs=None):
    na, nb = A.T // (16 * WA), B.T // (16 * WB)
    stage = A.bytes + B.bytes
    baseA, baseB = 0, A.bytes
    names = [name] if not stubs else [s[0] for s in stubs]
    if stubs:
        for (kn, pre) in stubs:
            kernel_header(a, kn)
            pre(a)
            a("s_branch %s_body", name)
        a.label(name + "_body")
    else:
        kernel_header(a, name)
    a("s_cmp_ge_u32 s2, %d", ntiles)
    a("s_cbranch_scc1 %s_done", name)
    ptrs(a, 0)
    a("v_lshrrev_b32 v1, 6, v0")
    a("v_and_b32 v2, 63, v0")
    decode(a)
    a("v_readfirstlane_b32 s%d, v1", S_W)
    a("s_waitcnt lgkmcnt(0)")
    ptrs(a, 1)
    a("s_cmp_ge_u32 s%d, 4", S_W)
    a("s_cbranch_scc1 %s_loader", name)

    ACC = 64
    nacc = na * nb * 4
    FR = ACC + nacc
    fset = (na + nb) * 4
    fA = lambda st, i: FR + st * fset + 4 * i
    fB = lambda st, j: FR + st * fset + 4 * na + 4 * j
    acc = lambda i, j: ACC + 4 * (i * nb + j)
    VTOP = FR + 2 * fset
    lane_parts(a)
    SWA, SWB = S_TMP + 4, S_TMP + 5
    a("s_and_b32 s%d, s%d, %d", SWA, S_W, WA - 1)
    a("s_lshr_b32 s%d, s%d, %d", SWB, S_W, WA.bit_length() - 1)
    a("s_mul_i32 s%d, s%d, %d", S_TMP, S_TB, B.T)
    a("s_mul_i32 s%d, s%d, %d", S_TMP + 1, SWB, nb * 16)
    a("s_add_u32 s%d, s%d, s%d", S_TMP, S_TMP, S_TMP + 1)
    a("v_add_u32 v3, s%d, v8", S_TMP)
    a("s_mov_b32 s%d, %d", S_TMP + 1, ldc)
    a("v_mul_lo_u32 v9, v3, s%d", S_TMP + 1)
    a("s_mul_i32 s%d, s%d, %d", S_TMP, S_TA, A.T * 2)
    a("s_mul_i32 s%d, s%d, %d", S_TMP + 1, SWA, na * 32)
    a("s_add_u32 s%d, s%d, s%d", S_TMP, S_TMP, S_TMP + 1)
    a("v_and_b32 v3, 1, v5")
    a("v_lshlrev_b32 v3, 5, v3")
    a("v_lshrrev_b32 v4, 1, v5")
    a("v_lshl_add_u32 v3, v4, 4, v3")
    a("v_add3_u32 v9, v9, v3, s%d", S_TMP)
    for j in range(nb):
        a("s_mov_b32 s%d, %d", S_ST + j, j * 16 * ldc)
    if init == "resid":
        for j in range(nb):
            for p in range(na // 2):
                d = FR + 4 * (j * (na // 2) + p)
                a("buffer_load_dwordx4 v[%d:%d], v9, s[20:23], s%d offen offset:%d", d, d + 3, S_ST + j, p * 64)
    elif init == "biasA":
        a("v_lshl_add_u32 v3, v5, 3, s%d", S_TMP)
        for i in range(na):
            a("buffer_load_dwordx2 v[%d:%d], v3, s[20:23], 0 offen offset:%d", FR + 2 * i, FR + 2 * i + 1, i * 32)
    AR = 10
    def mk_addrs(op, base, swave, n, vb):
        if op.kind == "kc":
            a("s_mul_i32 s%d, s%d, %d", S_TMP + 2, swave, n * 16)
            read_addrs_kc(a, base, S_TMP + 2, vb)
            return [vb, vb + 1]
        a("s_mul_i32 s%d, s%d, %d", S_TMP + 2, swave, n)
        a("s_mov_b32 s%d, %d", S_TMP + 3, base)
        for i in range(n):
            read_addr_km(a, op.T, S_TMP + 3, S_TMP + 2, i, vb + i)
        return [vb + i for i in range(n)]
    adA = mk_addrs(A, baseA, SWA, na, AR)
    adB = mk_addrs(B, baseB, SWB, nb, AR + len(adA))
    if init == "zero":
        for r in range(nacc): a("v_mov_b32 v%d, 0", ACC + r)
    elif init == "resid":
        a("s_waitcnt vmcnt(0)")
        for j in range(nb):
            for p in range(na // 2):
                d = FR + 4 * (j * (na // 2) + p)
                a("v_permlane16_swap_b32 v%d, v%d", d, d + 2)
                a("v_permlane16_swap_b32 v%d, v%d", d + 1, d + 3)
        for j in range(nb):
            for p in range(na // 2):
                d = FR + 4 * (j * (na // 2) + p)
                for h in range(2):
                    c = acc(2 * p + h, j)
                    for q in range(2):
                        a("v_lshlrev_b32 v%d, 16, v%d", c + 2 * q, d + 2 * h + q)
                        a("v_and_b32 v%d, 0xffff0000, v%d", c + 2 * q + 1, d + 2 * h + q)
    elif init == "biasA":
        a("s_waitcnt vmcnt(0)")
        for i in range(na):
            for j in range(nb):
                c = acc(i, j)
                for q in range(2):
                    a("v_lshlrev_b32 v%d, 16, v%d", c + 2 * q, FR + 2 * i + q)
                    a("v_and_b32 v%d, 0xffff0000, v%d", c + 2 * q + 1, FR + 2 * i + q)
    for r in range(fset): a("v_mov_b32 v%d, 0", FR + fset + r)
    compute_loop_ctl_init(a, N, S, stage)
    def mf(st):
        return ["v_mfma_f32_16x16x32_bf16 v[%d:%d], v[%d:%d], v[%d:%d], v[%d:%d]" %
                (acc(i, j), acc(i, j) + 3, fA(st, i), fA(st, i) + 3, fB(st, j), fB(st, j) + 3, acc(i, j), acc(i, j) + 3)
                for i in range(na) for j in range(nb)]
    def rd(st, ks):
        L = []
        L += frag_reads(A.kind, A.T, adA, 0, ks, fA(st, 0))
        for j in range(nb): L += frag_reads(B.kind, B.T, adB, j, ks, fB(st, j))
        for i in range(1, na): L += frag_reads(A.kind, A.T, adA, i, ks, fA(st, i))
        return L
    a.raw(".p2align 3")
    a.label(name + "_cloop")
    a("s_barrier")
    interleave(a, mf(1), rd(0, 0))
    a("s_waitcnt lgkmcnt(0)")
    interleave(a, mf(0), rd(1, 1), addr_update(adA + adB, S, stage))
    a("s_waitcnt lgkmcnt(0)")
    a("s_cbranch_scc1 %s_cloop", name)
    for m in mf(1): a(m)
    TMPV = FR
    if epi == "gelu":
        c1 = -2.0 * math.log2(math.e) * math.sqrt(2.0 / math.pi) * 0.044715
        c0 = -2.0 * math.log2(math.e) * math.sqrt(2.0 / math.pi)
        for k, v in enumerate((c1, c1, c0, c0, 1.0, 1.0)):
            a("v_mov_b32 v%d, 0x%x", AR + k, f32(v))
    a("s_nop 7")
    k = 0
    for j in range(nb):
        for p in range(na // 2):
            c0_, c1_ = acc(2 * p, j), acc(2 * p + 1, j)
            if epi == "gelu":
                gelu_pairs(a, [c0_, c0_ + 2, c1_, c1_ + 2], TMPV + 16, AR)
            d = TMPV + 4 * (k & 3); k += 1
            a("v_cvt_pk_bf16_f32 v%d, v%d, v%d", d, c0_, c0_ + 1)
            a("v_cvt_pk_bf16_f32 v%d, v%d, v%d", d + 1, c0_ + 2, c0_ + 3)
            a("v_cvt_pk_bf16_f32 v%d, v%d, v%d", d + 2, c1_, c1_ + 1)
            a("v_cvt_pk_bf16_f32 v%d, v%d, v%d", d + 3, c1_ + 2, c1_ + 3)
            a("s_nop 1")
            a("v_permlane16_swap_b32 v%d, v%d", d, d + 2)
            a("v_permlane16_swap_b32 v%d, v%d", d + 1, d + 3)
            a("buffer_store_dwordx4 v[%d:%d], v9, s[16:19], s%d offen offset:%d", d, d + 3, S_ST + j, p * 64)
    a("s_endpgm")

    a.label(name + "_loader")
    a("s_sub_u32 s%d, s%d, 4", S_W, S_W)
    loader_voffs(a, A, S_TA, 10)
    loader_voffs(a, B, S_TB, 10 + A.npw)
    a("s_mul_i32 s%d, s%d, %d", S_LA, S_W, A.npw * 1024)
    a("s_mul_i32 s%d, s%d, %d", S_LB, S_W, B.npw * 1024)
    a("s_add_u32 s%d, s%d, %d", S_LB, S_LB, baseB)
    def issue():
        kidx_offsets(a, W, A.kadv, B.kadv)
        a("s_add_u32 s%d, s%d, s%d", S_M0A, S_SLOT, S_LA)
        a("s_add_u32 s%d, s%d, s%d", S_M0B, S_SLOT, S_LB)
        for (op, vb, sm, so, sr) in ((A, 10, S_M0A, S_OFA, 8), (B, 10 + A.npw, S_M0B, S_OFB, 12)):
            for i in range(op.npw):
                a("s_add_u32 m0, s%d, %d", sm, i * 1024)
                a("s_nop 0")
                a("buffer_load_dwordx4 v%d, s[%d:%d], s%d offen lds", vb + i, sr, sr + 3, so)
    loader_loop(a, name, issue, A.npw + B.npw, N, S, stage)
    a.label(name + "_done")
    a("s_endpgm")
    for kn in names:
        kernel_desc(a, kn, VTOP, 64)
    return stage * S

def gen_g1(a, name, W=4):
    N, S = 16, 3
    PW = Op("km", 64, 6144)
    XB = 3 * 8192
    stage = XB + 144 * 128
    E = stage
    REG = 144 * 128
    kernel_header(a, name)
    a("s_cmp_ge_u32 s2, 256")
    a("s_cbranch_scc1 %s_done", name)
    a("s_load_dwordx2 s[4:5], s[0:1], %d", ARG["ws"])
    a("s_load_dwordx2 s[6:7], s[0:1], %d", ARG["wqkv"])
    a("v_lshrrev_b32 v1, 6, v0")
    a("v_and_b32 v2, 63, v0")
    a("s_and_b32 s%d, s2, 1", S_TMP)
    a("s_lshl_b32 s%d, s%d, 3", S_TMP, S_TMP)
    a("s_bfe_u32 s%d, s2, 0x30003", S_TMP + 1)
    a("s_add_u32 s%d, s%d, s%d", S_TB, S_TMP, S_TMP + 1)
    a("s_bfe_u32 s%d, s2, 0x20001", S_TMP)
    a("s_lshl_b32 s%d, s%d, 2", S_TMP, S_TMP)
    a("s_lshr_b32 s%d, s2, 6", S_TMP + 2)
    a("s_add_u32 s%d, s%d, s%d", S_TA, S_TMP, S_TMP + 2)
    a("s_add_u32 s%d, s%d, s%d", S_J, S_TMP + 1, S_TMP + 2)
    a("s_mov_b32 s%d, 0", S_KB)
    a("v_readfirstlane_b32 s%d, v1", S_W)
    a("s_waitcnt lgkmcnt(0)")
    srd(a, 8, 6, 0, 1024 * 3072 * 2)
    srd(a, 12, 4, WS["XN"], ACT_BYTES)
    srd(a, 16, 4, WS["O"], ACT_BYTES)
    lane_parts(a)
    a("s_cmp_ge_u32 s%d, 4", S_W)
    a("s_cbranch_scc1 %s_loader", name)

    na, nb = 6, 5
    ACC = 24
    acc = lambda i, j: ACC + 4 * (i * 4 + j) if j < 4 else ACC + 96 + 4 * (i - 4)
    nacc = 104
    FR = ACC + nacc
    fset = (na + nb) * 4
    fA = lambda st, i: FR + st * fset + 4 * i
    fB = lambda st, j: FR + st * fset + 4 * na + 4 * j
    VTOP = FR + 2 * fset
    SHD, SSH = S_TMP + 4, S_TMP + 5
    a("s_and_b32 s%d, s%d, 1", SHD, S_W)
    a("s_lshr_b32 s%d, s%d, 1", SSH, S_W)
    AR = 10
    a("s_lshl_b32 s%d, s%d, 1", S_TMP + 2, SHD)
    for c in range(3):
        if c == 0:
            a("s_mov_b32 s%d, 0", S_TMP + 3)
        else:
            a("s_xor_b32 s%d, s%d, %d", S_TMP + 3, SSH, 1 if c == 1 else 0)
            a("s_add_u32 s%d, s%d, 1", S_TMP + 3, S_TMP + 3)
            a("s_mul_i32 s%d, s%d, %d", S_TMP + 3, S_TMP + 3, 8192)
        for i in range(2):
            read_addr_km(a, 64, S_TMP + 3, S_TMP + 2, i, AR + 2 * c + i)
    adA = [AR + i for i in range(6)]
    a("s_mul_i32 s%d, s%d, 64", S_TMP + 2, SSH)
    a("s_add_u32 s%d, s%d, 16", S_TMP + 2, S_TMP + 2)
    read_addrs_kc(a, XB, S_TMP + 2, AR + 6)
    read_addrs_kc(a, XB, None, AR + 8)
    adB, adH = [AR + 6, AR + 7], [AR + 8, AR + 9]
    for r in range(nacc): a("v_mov_b32 v%d, 0", ACC + r)
    for r in range(fset): a("v_mov_b32 v%d, 0", FR + fset + r)
    compute_loop_ctl_init(a, N, S, stage)
    def mf(st):
        L = [(i, j) for i in range(6) for j in range(4)] + [(4, 4), (5, 4)]
        return ["v_mfma_f32_16x16x32_bf16 v[%d:%d], v[%d:%d], v[%d:%d], v[%d:%d]" %
                (acc(i, j), acc(i, j) + 3, fA(st, i), fA(st, i) + 3, fB(st, j), fB(st, j) + 3, acc(i, j), acc(i, j) + 3)
                for (i, j) in L]
    def rd(st, ks):
        L = []
        L += frag_reads("km", 64, adA, 0, ks, fA(st, 0))
        for j in range(4): L += frag_reads("kc", 0, adB, j, ks, fB(st, j))
        for i in range(1, 6): L += frag_reads("km", 64, adA, i, ks, fA(st, i))
        L += frag_reads("kc", 0, adH, 0, ks, fB(st, 4))
        return L
    a.raw(".p2align 3")
    a.label(name + "_cloop")
    a("s_barrier")
    interleave(a, mf(1), rd(0, 0))
    a("s_waitcnt lgkmcnt(0)")
    interleave(a, mf(0), rd(1, 1), addr_update(adA + adB + adH, S, stage))
    a("s_waitcnt lgkmcnt(0)")
    a("s_cbranch_scc1 %s_cloop", name)
    for m in mf(1): a(m)
    a("v_and_b32 v3, 1, v5")
    a("v_lshlrev_b32 v3, 1, v3")
    a("v_lshrrev_b32 v4, 1, v5")
    a("v_add_u32 v3, v3, v4")
    a("s_lshl_b32 s%d, s%d, 2", S_TMP, SHD)
    a("v_add_u32 v3, s%d, v3", S_TMP)
    a("v_lshrrev_b32 v4, 1, v8")
    a("v_xor_b32 v3, v3, v4")
    a("v_lshlrev_b32 v3, 4, v3")
    a("v_lshl_add_u32 v3, v8, 7, v3")
    a("s_mul_i32 s%d, s%d, %d", S_TMP + 2, SSH, 64 * 128)
    a("s_add_u32 s%d, s%d, %d", S_TMP + 2, S_TMP + 2, E + 16 * 128)
    for c in range(3):
        if c == 0:
            a("s_mov_b32 s%d, 0", S_TMP + 3)
        else:
            a("s_xor_b32 s%d, s%d, %d", S_TMP + 3, SSH, 1 if c == 1 else 0)
            a("s_add_u32 s%d, s%d, 1", S_TMP + 3, S_TMP + 3)
            a("s_mul_i32 s%d, s%d, %d", S_TMP + 3, S_TMP + 3, REG)
        a("s_add_u32 s%d, s%d, s%d", S_TMP, S_TMP + 2, S_TMP + 3)
        a("v_add_u32 v%d, s%d, v3", AR + c, S_TMP)
    a("s_add_u32 s%d, s%d, %d", S_TMP, S_TMP + 3, E)
    a("v_add_u32 v%d, s%d, v3", AR + 3, S_TMP)
    k = 0
    for c in range(3):
        for j in range(5 if c == 2 else 4):
            c0_, c1_ = acc(2 * c, j), acc(2 * c + 1, j)
            d = FR + 4 * (k & 3); k += 1
            a("v_cvt_pk_bf16_f32 v%d, v%d, v%d", d, c0_, c0_ + 1)
            a("v_cvt_pk_bf16_f32 v%d, v%d, v%d", d + 1, c0_ + 2, c0_ + 3)
            a("v_cvt_pk_bf16_f32 v%d, v%d, v%d", d + 2, c1_, c1_ + 1)
            a("v_cvt_pk_bf16_f32 v%d, v%d, v%d", d + 3, c1_ + 2, c1_ + 3)
            a("s_nop 1")
            a("v_permlane16_swap_b32 v%d, v%d", d, d + 2)
            a("v_permlane16_swap_b32 v%d, v%d", d + 1, d + 3)
            if j < 4:
                a("ds_write_b128 v%d, v[%d:%d] offset:%d", AR + c, d, d + 3, j * 2048)
            else:
                a("ds_write_b128 v%d, v[%d:%d]", AR + 3, d, d + 3)
    a("s_waitcnt lgkmcnt(0)")
    a("s_branch %s_attn", name)

    a.label(name + "_loader")
    a("s_sub_u32 s%d, s%d, 4", S_W, S_W)
    for p in range(3):
        loader_voffs(a, PW, S_TA, 10 + 2 * p, extra_cols=1024 * p)
    XO = Op("kc", 128, 2048)
    loader_voffs(a, XO, S_TB, 16)
    a("v_lshrrev_b32 v3, 3, v2")
    a("s_lshl_b32 s%d, s%d, 2", S_TMP, S_W)
    a("v_add_u32 v3, s%d, v3", S_TMP)
    a("v_lshrrev_b32 v4, 1, v3")
    a("v_xor_b32 v4, v4, v2")
    a("v_and_b32 v4, 7, v4")
    a("s_lshl_b32 s%d, s%d, 7", S_TMP, S_TB)
    a("s_sub_u32 s%d, s%d, 16", S_TMP, S_TMP)
    a("v_add_u32 v3, s%d, v3", S_TMP)
    a("v_max_i32 v3, 0, v3")
    a("v_lshlrev_b32 v3, 11, v3")
    a("v_lshl_add_u32 v20, v4, 4, v3")
    a("s_mul_i32 s%d, s%d, 2048", S_LA, S_W)
    a("s_mul_i32 s%d, s%d, 4096", S_LB, S_W)
    a("s_add_u32 s%d, s%d, %d", S_LB, S_LB, XB + 2048)
    a("s_mul_i32 s%d, s%d, 512", S_TMP + 6, S_W)
    a("s_add_u32 s%d, s%d, %d", S_TMP + 6, S_TMP + 6, XB)
    def issue():
        kidx_offsets(a, W, PW.kadv, 128)
        a("s_add_u32 s%d, s%d, s%d", S_M0A, S_SLOT, S_LA)
        a("s_add_u32 s%d, s%d, s%d", S_M0B, S_SLOT, S_LB)
        for i in range(4):
            a("s_add_u32 m0, s%d, %d", S_M0B, i * 1024)
            a("s_nop 0")
            a("buffer_load_dwordx4 v%d, s[12:15], s%d offen lds", 16 + i, S_OFB)
        for p in range(3):
            for i in range(2):
                a("s_add_u32 m0, s%d, %d", S_M0A, p * 8192 + i * 1024)
                a("s_nop 0")
                a("buffer_load_dwordx4 v%d, s[8:11], s%d offen lds", 10 + 2 * p + i, S_OFA)
        a("s_add_u32 m0, s%d, s%d", S_SLOT, S_TMP + 6)
        a("s_mov_b32 exec_hi, 0")
        a("buffer_load_dwordx4 v20, s[12:15], s%d offen lds", S_OFB)
        a("s_mov_b32 exec_hi, -1")
    loader_loop(a, name, issue, 11, N, S, stage)
    a("s_add_u32 s%d, s%d, 4", S_W, S_W)

    a.label(name + "_attn")
    a("s_and_b32 s%d, s%d, 1", SHD, S_W)
    SU = S_TMP + 5
    a("s_lshr_b32 s%d, s%d, 1", SU, S_W)
    a("s_lshl_b32 s%d, s%d, 2", S_TMP, SHD)
    a("v_add_u32 v3, s%d, v5", S_TMP)
    a("v_and_b32 v4, 7, v8")
    a("v_xor_b32 v3, v3, v4")
    a("v_lshlrev_b32 v3, 4, v3")
    a("v_lshl_add_u32 v3, v8, 8, v3")
    a("s_mul_i32 s%d, s%d, %d", S_TMP + 1, SU, 32 * 128)
    a("s_add_u32 s%d, s%d, %d", S_TMP + 1, S_TMP + 1, E)
    a("v_add_u32 v10, s%d, v3", S_TMP + 1)
    a("v_lshl_add_u32 v3, v5, 2, v6")
    a("v_and_b32 v4, 7, v3")
    a("v_add_u32 v12, s%d, v7", S_TMP)
    a("v_xor_b32 v4, v4, v12")
    a("v_lshlrev_b32 v4, 4, v4")
    a("v_lshl_add_u32 v3, v3, 8, v4")
    a("s_add_u32 s%d, s%d, %d", S_TMP + 1, S_TMP + 1, 2 * REG)
    a("v_add_u32 v11, s%d, v3", S_TMP + 1)
    a("v_and_b32 v3, 7, v8")
    a("v_add_u32 v4, 1, v3")
    a("s_or_b32 s%d, s%d, s%d", S_TMP, S_TB, SU)
    a("s_cmp_eq_u32 s%d, 0", S_TMP)
    a("s_cselect_b32 s%d, 8, 0", S_TMP)
    a("v_cmp_gt_u32 vcc, 8, v8")
    a("v_mov_b32 v16, s%d", S_TMP)
    a("s_mov_b64 s[56:57], vcc")
    a("v_cndmask_b32 v16, 0, v16, vcc")
    a("v_max_u32 v4, v4, v16")
    a("v_add_u32 v3, 8, v3")
    a("v_sub_u32 v3, v3, v4")
    a("v_lshlrev_b32 v16, 2, v5")
    a("v_sub_u32 v16, v16, v4")
    a("v_mov_b32 v17, 0xf149f2ca")
    for r in range(4):
        a("v_add_u32 v18, %d, v16", r)
        a("v_cmp_ge_u32 vcc, v3, v18")
        a("s_nop 1")
        a("v_cndmask_b32 v%d, v17, 0, vcc", 12 + r)
    a("s_lshl_b32 s%d, s%d, 7", S_TMP, S_TB)
    a("s_lshl_b32 s%d, s%d, 5", S_TMP + 1, SU)
    a("s_add_u32 s%d, s%d, s%d", S_TMP, S_TMP, S_TMP + 1)
    a("s_lshl_b32 s%d, s%d, 11", S_TMP, S_TMP)
    a("s_lshl_b32 s%d, s%d, 7", S_TMP + 1, S_TA)
    a("s_add_u32 s%d, s%d, s%d", S_TMP, S_TMP, S_TMP + 1)
    a("s_lshl_b32 s%d, s%d, 6", S_TMP + 1, SHD)
    a("s_add_u32 s%d, s%d, s%d", S_TMP, S_TMP, S_TMP + 1)
    a("v_lshlrev_b32 v9, 12, v8")
    a("v_lshl_add_u32 v9, v5, 4, v9")
    a("v_add_u32 v9, s%d, v9", S_TMP)
    a("s_mov_b32 s58, 0x%x", f32(32 ** -0.5))
    a("s_mov_b32 s59, 0x%x", f32(math.log2(math.e)))
    a("s_barrier")
    def blk(p): return 24 + 48 * p
    for p in range(2):
        b = blk(p)
        a("ds_read_b128 v[%d:%d], v10 offset:%d", b, b + 3, 2048 + 128 * p)
        a("ds_read_b128 v[%d:%d], v10 offset:%d", b + 4, b + 7, REG + 128 * p)
        a("ds_read_b128 v[%d:%d], v10 offset:%d", b + 8, b + 11, REG + 2048 + 128 * p)
    for p in range(2):
        b = blk(p)
        for dt in range(2):
            for bb in range(2):
                d = b + 12 + 4 * dt + 2 * bb
                a("ds_read_b64_tr_b16 v[%d:%d], v11 offset:%d", d, d + 1, 128 * p + 2048 * bb + 8 * dt)
    a("s_waitcnt lgkmcnt(8)")
    for p in range(2):
        b = blk(p)
        a("v_mfma_f32_16x16x32_bf16 v[%d:%d], v[%d:%d], v[%d:%d], 0", b + 20, b + 23, b + 4, b + 7, b, b + 3)
        a("v_mfma_f32_16x16x32_bf16 v[%d:%d], v[%d:%d], v[%d:%d], 0", b + 24, b + 27, b + 8, b + 11, b, b + 3)
    a("s_nop 7")
    both = lambda f: [f(blk(p)) for p in range(2)]
    for p in range(2):
        b = blk(p)
        for r in range(4):
            a("v_cndmask_b32 v%d, v%d, v%d, s[56:57]", b + 20 + r, b + 24 + r, b + 20 + r)
    for p in range(2):
        b = blk(p)
        a("v_cvt_pk_bf16_f32 v%d, v%d, v%d", b + 24, b + 20, b + 21)
        a("v_cvt_pk_bf16_f32 v%d, v%d, v%d", b + 25, b + 22, b + 23)
    for p in range(2):
        b = blk(p)
        for q in range(2):
            a("v_lshlrev_b32 v%d, 16, v%d", b + 20 + 2 * q, b + 24 + q)
            a("v_and_b32 v%d, 0xffff0000, v%d", b + 21 + 2 * q, b + 24 + q)
    for p in range(2):
        b = blk(p)
        for r in range(4): a("v_mul_f32 v%d, s58, v%d", b + 20 + r, b + 20 + r)
    for p in range(2):
        b = blk(p)
        a("v_cvt_pk_bf16_f32 v%d, v%d, v%d", b + 24, b + 20, b + 21)
        a("v_cvt_pk_bf16_f32 v%d, v%d, v%d", b + 25, b + 22, b + 23)
    for p in range(2):
        b = blk(p)
        for q in range(2):
            a("v_lshlrev_b32 v%d, 16, v%d", b + 20 + 2 * q, b + 24 + q)
            a("v_and_b32 v%d, 0xffff0000, v%d", b + 21 + 2 * q, b + 24 + q)
    for p in range(2):
        b = blk(p)
        for r in range(4): a("v_fma_f32 v%d, v%d, s59, v%d", b + 20 + r, b + 20 + r, 12 + r)
    for p in range(2):
        b = blk(p)
        a("v_max3_f32 v%d, v%d, v%d, v%d", b + 24, b + 20, b + 21, b + 22)
    for p in range(2):
        b = blk(p)
        a("v_max_f32 v%d, v%d, v%d", b + 24, b + 24, b + 23)
    def xreduce(op, off):
        for sw in ("v_permlane16_swap_b32", "v_permlane32_swap_b32"):
            for p in range(2):
                b = blk(p)
                a("v_mov_b32 v%d, v%d", b + off + 1, b + off)
            a("s_nop 1")
            for p in range(2):
                b = blk(p)
                a("%s v%d, v%d", sw, b + off, b + off + 1)
            a("s_nop 0")
            for p in range(2):
                b = blk(p)
                a("%s v%d, v%d, v%d", op, b + off, b + off, b + off + 1)
    xreduce("v_max_f32", 24)
    for p in range(2):
        b = blk(p)
        for r in range(4): a("v_sub_f32 v%d, v%d, v%d", b + 20 + r, b + 20 + r, b + 24)
    for p in range(2):
        b = blk(p)
        for r in range(4): a("v_exp_f32 v%d, v%d", b + 20 + r, b + 20 + r)
    for p in range(2):
        b = blk(p)
        a("v_add_f32 v%d, v%d, v%d", b + 24, b + 20, b + 21)
        a("v_add_f32 v%d, v%d, v%d", b + 25, b + 22, b + 23)
    for p in range(2):
        b = blk(p)
        a("v_add_f32 v%d, v%d, v%d", b + 24, b + 24, b + 25)
    xreduce("v_add_f32", 24)
    for p in range(2):
        b = blk(p)
        a("v_rcp_f32 v%d, v%d", b + 24, b + 24)
    a("s_nop 0")
    for p in range(2):
        b = blk(p)
        for r in range(4): a("v_mul_f32 v%d, v%d, v%d", b + 20 + r, b + 20 + r, b + 24)
    for p in range(2):
        b = blk(p)
        a("v_cvt_pk_bf16_f32 v%d, v%d, v%d", b + 24, b + 20, b + 21)
        a("v_cvt_pk_bf16_f32 v%d, v%d, v%d", b + 25, b + 22, b + 23)
    for p in range(2):
        b = blk(p)
        a("v_cndmask_b32 v%d, 0, v%d, s[56:57]", b + 28, b + 24)
        a("v_cndmask_b32 v%d, 0, v%d, s[56:57]", b + 29, b + 25)
        a("v_cndmask_b32 v%d, v%d, 0, s[56:57]", b + 30, b + 24)
        a("v_cndmask_b32 v%d, v%d, 0, s[56:57]", b + 31, b + 25)
    a("s_waitcnt lgkmcnt(0)")
    a("s_nop 0")
    for p in range(2):
        b = blk(p)
        for dt in range(2):
            a("v_mfma_f32_16x16x32_bf16 v[%d:%d], v[%d:%d], v[%d:%d], 0", b + 32 + 4 * dt, b + 35 + 4 * dt,
              b + 12 + 4 * dt, b + 15 + 4 * dt, b + 28, b + 31)
    a("s_nop 7")
    for p in range(2):
        b = blk(p)
        for q in range(4):
            a("v_cvt_pk_bf16_f32 v%d, v%d, v%d", b + 40 + q, b + 32 + 2 * q, b + 33 + 2 * q)
        a("buffer_store_dwordx4 v[%d:%d], v9, s[16:19], 0 offen offset:%d", b + 40, b + 43, 2048 * p)
    a.label(name + "_done")
    a("s_endpgm")
    kernel_desc(a, name, VTOP, 64)
    return stage * S

def build(extra_empty=0):
    body = Asm()
    gen_ln(body, "ln0_kernel", "ln0")
    lds_g1 = gen_g1(body, "g1_kernel")

    def g2_ptrs(a, ph):
        if ph == 0:
            a("s_load_dwordx2 s[4:5], s[0:1], %d", ARG["ws"])
            a("s_load_dwordx2 s[30:31], s[0:1], %d", ARG["wo"])
        else:
            srd(a, 8, 30, 0, 1024 * 1024 * 2)
            srd(a, 12, 4, WS["O"], ACT_BYTES)
            srd(a, 16, 4, WS["X1"], ACT_BYTES)
            a("s_add_u32 s20, s6, s%d", S_TMP + 7)
            a("s_addc_u32 s21, s7, 0")
            a("s_mov_b32 s22, 0x%x", ACT_BYTES)
            a("s_mov_b32 s23, 0x20000")
    def g2_decode(a):
        a("s_and_b32 s%d, s2, 3", S_TMP)
        a("s_lshl_b32 s%d, s%d, 2", S_TMP, S_TMP)
        a("s_bfe_u32 s%d, s2, 0x20003", S_TMP + 1)
        a("s_add_u32 s%d, s%d, s%d", S_TB, S_TMP, S_TMP + 1)
        a("s_bfe_u32 s%d, s2, 0x10002", S_TMP)
        a("s_lshl_b32 s%d, s%d, 3", S_TMP, S_TMP)
        a("s_lshr_b32 s%d, s2, 5", S_TMP + 2)
        a("s_add_u32 s%d, s%d, s%d", S_TA, S_TMP, S_TMP + 2)
        a("s_add_u32 s%d, s%d, s%d", S_J, S_TMP + 1, S_TMP + 2)
        a("s_mov_b32 s%d, 0", S_KB)
    def pre_l1(a):
        a("s_load_dwordx2 s[6:7], s[0:1], %d", ARG["x"])
        a("s_mov_b32 s%d, 0", S_TMP + 7)
    def pre_l2(a):
        a("s_load_dwordx2 s[6:7], s[0:1], %d", ARG["ws"])
        a("s_mov_b32 s%d, 0x%x", S_TMP + 7, WS["X2"])
    lds_g2 = gen_gemm(body, "g2", 256, Op("km", 64, 2048), Op("kc", 128, 2048), 1, 4, 16, 4, 4, g2_ptrs, g2_decode,
                      "resid", "plain", 2048, stubs=[("g2a_kernel", pre_l1), ("g2b_kernel", pre_l2)])
    gen_ln(body, "ln3_kernel", "ln3")

    def g3_ptrs(a, ph):
        if ph == 0:
            a("s_load_dwordx2 s[4:5], s[0:1], %d", ARG["ws"])
            a("s_load_dwordx2 s[30:31], s[0:1], %d", ARG["w1"])
            a("s_load_dwordx2 s[6:7], s[0:1], %d", ARG["b1"])
        else:
            srd(a, 8, 30, 0, 2048 * 3584 * 2)
            srd(a, 12, 4, WS["H"], ACT_BYTES)
            srd(a, 16, 4, WS["U"], 1024 * 3584 * 2)
            srd(a, 20, 6, 0, 3584 * 2)
    def g3_decode(a):
        a("s_and_b32 s%d, s2, 1", S_TMP)
        a("s_lshl_b32 s%d, s%d, 2", S_TMP, S_TMP)
        a("s_bfe_u32 s%d, s2, 0x20003", S_TMP + 1)
        a("s_add_u32 s%d, s%d, s%d", S_TB, S_TMP, S_TMP + 1)
        a("s_bfe_u32 s%d, s2, 0x20001", S_TMP)
        a("s_mul_i32 s%d, s%d, 7", S_TMP, S_TMP)
        a("s_lshr_b32 s%d, s2, 5", S_TMP + 2)
        a("s_add_u32 s%d, s%d, s%d", S_TA, S_TMP, S_TMP + 2)
        a("s_add_u32 s%d, s%d, s%d", S_J, S_TMP + 1, S_TMP + 2)
        a("s_mov_b32 s%d, 0", S_KB)
    lds_g3 = gen_gemm(body, "g3_kernel", 224, Op("km", 128, 7168), Op("km", 128, 2048), 2, 2, 32, 4, 4, g3_ptrs, g3_decode,
                      "biasA", "gelu", 7168)

    def g4_ptrs(a, ph):
        if ph == 0:
            a("s_load_dwordx2 s[4:5], s[0:1], %d", ARG["ws"])
            a("s_load_dwordx2 s[30:31], s[0:1], %d", ARG["w2"])
        else:
            srd(a, 8, 4, WS["U"], 1024 * 3584 * 2)
            srd(a, 12, 30, 0, 3584 * 2048 * 2)
            a("s_and_b32 s%d, s2, 1", S_TMP)
            a("s_lshl_b32 s%d, s%d, 22", S_TMP, S_TMP)
            a("s_add_u32 s%d, s%d, 0x%x", S_TMP, S_TMP, WS["P0"])
            a("s_add_u32 s16, s4, s%d", S_TMP)
            a("s_addc_u32 s17, s5, 0")
            a("s_mov_b32 s18, 0x%x", ACT_BYTES)
            a("s_mov_b32 s19, 0x20000")
    def g4_decode(a):
        a("s_bfe_u32 s%d, s2, 0x10001", S_TMP)
        a("s_lshl_b32 s%d, s%d, 2", S_TMP, S_TMP)
        a("s_bfe_u32 s%d, s2, 0x20003", S_TMP + 1)
        a("s_add_u32 s%d, s%d, s%d", S_TA, S_TMP, S_TMP + 1)
        a("s_bfe_u32 s%d, s2, 0x10002", S_TMP)
        a("s_lshl_b32 s%d, s%d, 3", S_TMP, S_TMP)
        a("s_lshr_b32 s%d, s2, 5", S_TMP + 2)
        a("s_add_u32 s%d, s%d, s%d", S_TB, S_TMP, S_TMP + 2)
        a("s_add_u32 s%d, s%d, s%d", S_J, S_TMP + 1, S_TMP + 2)
        a("s_and_b32 s%d, s2, 1", S_KB)
        a("s_mul_i32 s%d, s%d, 28", S_KB, S_KB)
    lds_g4 = gen_gemm(body, "g4_kernel", 256, Op("kc", 128, 7168), Op("km", 128, 4096), 2, 2, 28, 4, 4, g4_ptrs, g4_decode,
                      "zero", "plain", 2048)
    gen_ln(body, "ln6_kernel", "ln6")
    gen_ln(body, "fin_kernel", "fin")
    if extra_empty:
        kernel_header(body, "empty_kernel")
        body("s_endpgm")
        kernel_desc(body, "empty_kernel", 8, 16)

    L = lambda k, g, b, l: "; @launch kernel=%s grid=(%d,1,1) block=(%d,1,1) lds=%d" % (k, g, b, l)
    launches = [L("ln0_kernel", 512, 256, 0)]
    for layer in range(2):
        launches += [L("g1_kernel", 256, 512, lds_g1), L("g2a_kernel" if layer == 0 else "g2b_kernel", 256, 512, lds_g2),
                     L("ln3_kernel", 512, 256, 0), L("g3_kernel", 224, 512, lds_g3), L("g4_kernel", 256, 512, lds_g4),
                     L("ln6_kernel" if layer == 0 else "fin_kernel", 512, 256, 0)]
    launches += [L("empty_kernel", 256, 64, 0)] * extra_empty
    head = open("/code/%s.s.ref" % NAME).read().split("; Override launch geometry")[0]
    text = head + "\n".join(launches) + "\n" + '.amdgcn_target "amdgcn-amd-amdhsa--gfx950"\n' + body.text()
    return text

if __name__ == "__main__":
    out = sys.argv[1] if len(sys.argv) > 1 else "/code/%s.s" % NAME
    extra = int(sys.argv[2]) if len(sys.argv) > 2 else 0
    text = build(extra)
    open(out, "w").write(text)
    hazard.check(text)
```

```python
import sys, struct, math
from asmlib import *
import hazard

NAME = "interleave_layers__sliding_local_dilated__mixer_token_mlp__prompt"
MB = 1 << 20
WS = dict(ST=0, CS=1 * MB, O=4 * MB, X1=8 * MB, H=12 * MB, U=16 * MB, X2=24 * MB)
ST_BYTES = 16 * 2048 * 8
CS_BYTES = 16 * 3072 * 4
ARG = dict(x=0, wqkv=8, wo=16, bx=24, w1=32, b1=40, w2=48, b2=56, out=64, dbg=72, ws=80)
ACT_BYTES = 2048 * 1024 * 2

OPT = {}

def STF():
    return {0: "", 1: " sc1", 2: " nt", 3: " sc0 sc1", 4: " sc0 sc1 nt"}[OPT.get("stf", 1)]

def f32(x):
    return struct.unpack("<I", struct.pack("<f", x))[0]

STAMP_OFF = 64 * MB
KID = {}
def stamp(a, k):
    if OPT.get("stamp"):
        a("%s s[%d:%d]", "s_memtime" if OPT["stamp"] == 2 else "s_memrealtime", 64 + 2 * k, 65 + 2 * k)

def stamp_flush(a, name, n, wsreg=4, waitvm=True):
    if not OPT.get("stamp"): return
    kid = KID.setdefault(name, len(KID))
    if waitvm: a("s_waitcnt vmcnt(0)")
    a("%s s[%d:%d]", "s_memtime" if OPT["stamp"] == 2 else "s_memrealtime", 64 + 2 * n, 65 + 2 * n)
    a("s_waitcnt lgkmcnt(0)")
    a("s_add_u32 s84, s%d, 0x%x", wsreg, STAMP_OFF + kid * 512 * 1024)
    a("s_addc_u32 s85, s%d, 0", wsreg + 1)
    a("s_mov_b32 s86, 0x80000")
    a("s_mov_b32 s87, 0x20000")
    a("v_lshrrev_b32 v1, 6, v0")
    a("v_lshlrev_b32 v1, 6, v1")
    a("s_lshl_b32 s88, s2, 9")
    a("v_add_u32 v1, s88, v1")
    for k in range(n + 1):
        a("v_mov_b32 v2, s%d", 64 + 2 * k)
        a("buffer_store_dword v2, v1, s[84:87], 0 offen offset:%d", 4 * k)
        a("s_nop 1")

def srd(a, d, p, off, nbytes):
    if off:
        a("s_add_u32 s%d, s%d, 0x%x", d, p, off)
        a("s_addc_u32 s%d, s%d, 0", d + 1, p + 1)
    else:
        a("s_mov_b32 s%d, s%d", d, p)
        a("s_mov_b32 s%d, s%d", d + 1, p + 1)
    a("s_mov_b32 s%d, 0x%x", d + 2, nbytes)
    a("s_mov_b32 s%d, 0x20000", d + 3)

def wave_sum(a, v, sdst):
    for m in ("quad_perm:[1,0,3,2] row_mask:0xf bank_mask:0xf", "quad_perm:[2,3,0,1] row_mask:0xf bank_mask:0xf",
              "row_half_mirror row_mask:0xf bank_mask:0xf", "row_mirror row_mask:0xf bank_mask:0xf",
              "row_bcast:15 row_mask:0xa bank_mask:0xf", "row_bcast:31 row_mask:0xc bank_mask:0xf"):
        a("s_nop 1")
        a("v_add_f32_dpp v%d, v%d, v%d %s", v, v, v, m)
    a("s_nop 1")
    a("v_readlane_b32 s%d, v%d, 63", sdst, v)
    a("s_nop 1")

def unpack16(a, src, dst):
    for i in range(8):
        a("v_lshlrev_b32 v%d, 16, v%d", dst + 2 * i, src + i)
        a("v_and_b32 v%d, 0xffff0000, v%d", dst + 2 * i + 1, src + i)

def pack16(a, src, dst):
    for i in range(8):
        a("v_cvt_pk_bf16_f32 v%d, v%d, v%d", dst + i, src + 2 * i, src + 2 * i + 1)

def round_bf16_scalar(a, v):
    a("v_cvt_pk_bf16_f32 v%d, v%d, v%d", v, v, v)
    a("v_lshlrev_b32 v%d, 16, v%d", v, v)

def emit_ln(a, X, T, P):
    s = T + 16
    for i in range(4):
        a("v_pk_add_f32 v[%d:%d], v[%d:%d], v[%d:%d]", T + 2 * i, T + 2 * i + 1, X + 4 * i, X + 4 * i + 1, X + 4 * i + 2, X + 4 * i + 3)
    a("v_pk_add_f32 v[%d:%d], v[%d:%d], v[%d:%d]", T, T + 1, T, T + 1, T + 2, T + 3)
    a("v_pk_add_f32 v[%d:%d], v[%d:%d], v[%d:%d]", T + 4, T + 5, T + 4, T + 5, T + 6, T + 7)
    a("v_pk_add_f32 v[%d:%d], v[%d:%d], v[%d:%d]", T, T + 1, T, T + 1, T + 4, T + 5)
    a("v_add_f32 v%d, v%d, v%d", s, T, T + 1)
    wave_sum(a, s, 40)
    a("v_mov_b32 v%d, 0x%x", s + 1, f32(-1.0 / 1024))
    a("v_mul_f32 v%d, s40, v%d", s, s + 1)
    a("v_mov_b32 v%d, v%d", s + 1, s)
    for i in range(8):
        a("v_pk_add_f32 v[%d:%d], v[%d:%d], v[%d:%d]", T + 2 * i, T + 2 * i + 1, X + 2 * i, X + 2 * i + 1, s, s + 1)
    a("v_pk_mul_f32 v[%d:%d], v[%d:%d], v[%d:%d]", s + 2, s + 3, T, T + 1, T, T + 1)
    for i in range(1, 8):
        a("v_pk_fma_f32 v[%d:%d], v[%d:%d], v[%d:%d], v[%d:%d]", s + 2, s + 3, T + 2 * i, T + 2 * i + 1, T + 2 * i, T + 2 * i + 1, s + 2, s + 3)
    a("v_add_f32 v%d, v%d, v%d", s + 2, s + 2, s + 3)
    round_bf16_scalar(a, s)
    a("v_mov_b32 v%d, v%d", s + 1, s)
    wave_sum(a, s + 2, 41)
    for i in range(8):
        a("v_pk_add_f32 v[%d:%d], v[%d:%d], v[%d:%d]", T + 2 * i, T + 2 * i + 1, X + 2 * i, X + 2 * i + 1, s, s + 1)
    a("v_mov_b32 v%d, 0x%x", s + 2, f32(1.0 / 1024))
    a("v_mul_f32 v%d, s41, v%d", s + 2, s + 2)
    round_bf16_scalar(a, s + 2)
    a("v_add_f32 v%d, 0x%x, v%d", s + 2, f32(1e-5), s + 2)
    round_bf16_scalar(a, s + 2)
    a("v_sqrt_f32 v%d, v%d", s + 2, s + 2)
    pack16(a, T, P)
    round_bf16_scalar(a, s + 2)
    a("v_rcp_f32 v%d, v%d", s + 2, s + 2)
    unpack16(a, P, T)
    a("v_mov_b32 v%d, v%d", s + 3, s + 2)
    for i in range(8):
        a("v_pk_mul_f32 v[%d:%d], v[%d:%d], v[%d:%d]", T + 2 * i, T + 2 * i + 1, T + 2 * i, T + 2 * i + 1, s + 2, s + 3)
    pack16(a, T, P)

def gen_ln3(a, name):
    kernel_header(a, name)
    a("s_cmp_ge_u32 s2, 512")
    a("s_cbranch_scc1 %s_done", name)
    stamp(a, 0)
    a("s_load_dwordx2 s[4:5], s[0:1], %d", ARG["ws"])
    a("v_lshrrev_b32 v1, 6, v0")
    a("v_and_b32 v2, 63, v0")
    a("s_lshl_b32 s3, s2, 2")
    a("v_add_u32 v1, s3, v1")
    a("v_lshlrev_b32 v3, 11, v1")
    a("v_lshl_add_u32 v3, v2, 4, v3")
    a("s_waitcnt lgkmcnt(0)")
    stamp(a, 1)
    X, T, P = 16, 32, 8
    srd(a, 8, 4, WS["X1"], ACT_BYTES)
    a("buffer_load_dwordx4 v[8:11], v3, s[8:11], 0 offen")
    a("buffer_load_dwordx4 v[12:15], v3, s[8:11], 0 offen offset:1024")
    srd(a, 12, 4, WS["H"], ACT_BYTES)
    a("s_waitcnt vmcnt(0)")
    stamp(a, 2)
    unpack16(a, P, X)
    emit_ln(a, X, T, P)
    unpack16(a, P, X)
    emit_ln(a, X, T, P)
    stamp(a, 3)
    a("buffer_store_dwordx4 v[8:11], v3, s[12:15], 0 offen" + STF())
    a("buffer_store_dwordx4 v[12:15], v3, s[12:15], 0 offen offset:1024" + STF())
    stamp_flush(a, name, 4)
    a.label(name + "_done")
    a("s_endpgm")
    kernel_desc(a, name, 52, 96 if OPT.get("stamp") else 48)

def gen_pre(a, name):
    kernel_header(a, name)
    a("s_cmp_ge_u32 s2, 256")
    a("s_cbranch_scc1 %s_done", name)
    stamp(a, 0)
    a("s_load_dwordx2 s[4:5], s[0:1], %d", ARG["ws"])
    a("s_load_dwordx2 s[6:7], s[0:1], %d", ARG["x"])
    a("s_load_dwordx2 s[28:29], s[0:1], %d", ARG["wqkv"])
    a("s_lshr_b32 s24, s2, 4")
    a("s_and_b32 s25, s2, 15")
    a("v_lshrrev_b32 v1, 3, v0")
    a("v_and_b32 v2, 7, v0")
    a("v_lshlrev_b32 v3, 13, v1")
    a("v_lshl_add_u32 v3, v2, 4, v3")
    a("s_lshl_b32 s26, s24, 18")
    a("s_lshl_b32 s27, s25, 7")
    a("s_add_u32 s26, s26, s27")
    a("v_add_u32 v3, s26, v3")
    a("v_add_u32 v4, 0x1000, v3")
    a("v_mul_u32_u24 v5, 2731, v0")
    a("v_lshrrev_b32 v5, 16, v5")
    a("v_mul_u32_u24 v6, 24, v5")
    a("v_sub_u32 v6, v0, v6")
    a("v_min_u32 v5, 7, v5")
    a("s_mov_b32 s30, %d", 8 * 6144)
    a("v_mul_lo_u32 v7, v5, s30")
    a("v_lshrrev_b32 v8, 3, v6")
    a("v_lshl_add_u32 v7, v8, 11, v7")
    a("v_and_b32 v8, 7, v6")
    a("v_lshl_add_u32 v7, v8, 4, v7")
    a("s_mul_i32 s30, s24, %d", 64 * 6144)
    a("s_add_u32 s30, s30, s27")
    a("v_add_u32 v7, s30, v7")
    a("s_waitcnt lgkmcnt(0)")
    stamp(a, 1)
    srd(a, 8, 6, 0, ACT_BYTES)
    srd(a, 12, 28, 0, 1024 * 3072 * 2)
    for q in range(4):
        a("buffer_load_dwordx4 v[%d:%d], v%d, s[8:11], 0 offen offset:%d", 16 + 4 * q, 19 + 4 * q, 3 + (q >> 1), (q & 1) * 2048)
    for i in range(8):
        a("s_mov_b32 s31, %d", i * 6144)
        a("buffer_load_dwordx4 v[%d:%d], v7, s[12:15], s31 offen", 32 + 4 * i, 35 + 4 * i)
    srd(a, 16, 4, WS["ST"], ST_BYTES)
    srd(a, 20, 4, WS["CS"], CS_BYTES)
    a("v_mov_b32 v9, 0x3f803f80")
    for k in range(8): a("v_mov_b32 v%d, 0", 64 + k)
    a("s_waitcnt vmcnt(8)")
    stamp(a, 2)
    for e in range(4):
        for q in range(4):
            a("v_dot2_f32_bf16 v%d, v%d, v9, v%d", 64 + 2 * q, 16 + 4 * q + e, 64 + 2 * q)
            a("v_dot2_f32_bf16 v%d, v%d, v%d, v%d", 65 + 2 * q, 16 + 4 * q + e, 16 + 4 * q + e, 65 + 2 * q)
    a("s_nop 2")
    for m in ("quad_perm:[1,0,3,2]", "quad_perm:[2,3,0,1]", "row_half_mirror"):
        for k in range(8):
            a("v_add_f32_dpp v%d, v%d, v%d %s row_mask:0xf bank_mask:0xf", 64 + k, 64 + k, 64 + k, m)
    a("v_lshlrev_b32 v10, 5, v1")
    a("s_lshl_b32 s30, s25, 14")
    a("s_lshl_b32 s31, s24, 10")
    a("s_add_u32 s30, s30, s31")
    a("v_add_u32 v10, s30, v10")
    a("v_cmp_eq_u32 vcc, 0, v2")
    a("s_and_saveexec_b64 s[34:35], vcc")
    a("buffer_store_dwordx4 v[64:67], v10, s[16:19], 0 offen" + STF())
    a("buffer_store_dwordx4 v[68:71], v10, s[16:19], 0 offen offset:16" + STF())
    a("s_mov_b64 exec, s[34:35]")
    for i in range(8):
        a("s_waitcnt vmcnt(%d)", 2 + 7 - i)
        dst = 72 if i == 0 else 80
        for e in range(4):
            a("v_lshlrev_b32 v%d, 16, v%d", dst + 2 * e, 32 + 4 * i + e)
            a("v_and_b32 v%d, 0xffff0000, v%d", dst + 2 * e + 1, 32 + 4 * i + e)
        if i:
            for e in range(4):
                a("v_pk_add_f32 v[%d:%d], v[%d:%d], v[%d:%d]", 72 + 2 * e, 73 + 2 * e, 72 + 2 * e, 73 + 2 * e, 80 + 2 * e, 81 + 2 * e)
    a("v_lshlrev_b32 v11, 5, v0")
    a("ds_write_b128 v11, v[72:75]")
    a("ds_write_b128 v11, v[76:79] offset:16")
    a("v_lshlrev_b32 v11, 2, v0")
    a("s_waitcnt lgkmcnt(0)")
    a("s_barrier")
    for rg in range(8):
        a("ds_read_b32 v%d, v11 offset:%d", 80 + rg, rg * 768)
    a("v_lshrrev_b32 v12, 6, v0")
    a("v_lshlrev_b32 v12, 12, v12")
    a("v_and_b32 v13, 63, v0")
    a("v_lshl_add_u32 v12, v13, 2, v12")
    a("s_mul_i32 s30, s24, %d", 3072 * 4)
    a("s_lshl_b32 s31, s25, 8")
    a("s_add_u32 s30, s30, s31")
    a("v_add_u32 v12, s30, v12")
    a("s_waitcnt lgkmcnt(0)")
    for st in (4, 2, 1):
        for k in range(st):
            a("v_add_f32 v%d, v%d, v%d", 80 + k, 80 + k, 80 + k + st)
    a("v_cmp_gt_u32 vcc, 192, v0")
    a("s_and_saveexec_b64 s[34:35], vcc")
    a("s_cbranch_execz %s_skip", name)
    a("buffer_store_dword v80, v12, s[20:23], 0 offen" + STF())
    a.label(name + "_skip")
    a("s_mov_b64 exec, s[34:35]")
    stamp(a, 3)
    stamp_flush(a, name, 4)
    a.label(name + "_done")
    a("s_endpgm")
    kernel_desc(a, name, 88, 96 if OPT.get("stamp") else 48)

class Op:
    def __init__(self, kind, T, ld):
        self.kind, self.T, self.ld = kind, T, ld
        self.bytes = T * 128
        self.n = self.bytes // 1024
        self.npw = self.n // 4
        self.kadv = 128 if kind == "kc" else 64 * ld

S_TA, S_TB, S_KB, S_J, S_W = 24, 25, 26, 27, 28
S_T, S_SLOT, S_OFA, S_OFB = 32, 33, 34, 35
S_LA, S_LB, S_M0A, S_M0B = 36, 37, 38, 39
S_TMP = 40
S_CNT, S_DELTA, S_SI = 48, 49, 50
S_ST = 52
S_DP, S_DN = 51, 29

def loader_voffs(a, op, stile, vb, extra_cols=0):
    ld = op.ld
    a("s_mov_b32 s%d, %d", S_TMP, ld)
    if op.kind == "kc":
        a("v_lshrrev_b32 v3, 3, v2")
        a("v_mul_lo_u32 v3, v3, s%d", S_TMP)
        a("v_lshrrev_b32 v4, 4, v2")
        a("v_xor_b32 v4, v4, v2")
        a("v_and_b32 v4, 7, v4")
        a("v_lshl_add_u32 v3, v4, 4, v3")
        a("s_mul_i32 s%d, s%d, %d", S_TMP + 1, stile, op.T * ld)
        a("s_mul_i32 s%d, s%d, %d", S_TMP + 2, S_W, 8 * op.npw * ld)
        a("s_add_u32 s%d, s%d, s%d", S_TMP + 1, S_TMP + 1, S_TMP + 2)
        a("v_xor_b32 v4, 64, v3")
        for i in range(op.npw):
            a("s_add_u32 s%d, s%d, %d", S_TMP + 2, S_TMP + 1, i * 8 * ld)
            a("v_add_u32 v%d, s%d, v%d", vb + i, S_TMP + 2, 3 + (i & 1))
    elif op.T == 128:
        a("v_lshrrev_b32 v4, 4, v2")
        a("v_mul_lo_u32 v3, v4, s%d", S_TMP)
        a("v_lshlrev_b32 v4, 1, v4")
        a("v_xor_b32 v4, v4, v2")
        a("v_and_b32 v4, 15, v4")
        a("v_lshl_add_u32 v3, v4, 4, v3")
        a("s_mul_i32 s%d, s%d, 256", S_TMP + 1, stile)
        a("s_mul_i32 s%d, s%d, %d", S_TMP + 2, S_W, 16 * ld)
        a("s_add_u32 s%d, s%d, s%d", S_TMP + 1, S_TMP + 1, S_TMP + 2)
        a("v_xor_b32 v4, 128, v3")
        for i in range(4):
            a("s_add_u32 s%d, s%d, %d", S_TMP + 2, S_TMP + 1, i * 4 * ld)
            a("v_add_u32 v%d, s%d, v%d", vb + i, S_TMP + 2, 3 + (i >> 1))
    elif op.T == 64:
        a("v_lshrrev_b32 v3, 3, v2")
        a("v_mul_lo_u32 v3, v3, s%d", S_TMP)
        a("v_bfe_u32 v4, v2, 4, 1")
        a("v_lshlrev_b32 v4, 1, v4")
        a("v_xor_b32 v4, v4, v2")
        a("v_and_b32 v4, 7, v4")
        a("v_lshl_add_u32 v3, v4, 4, v3")
        a("s_mul_i32 s%d, s%d, 128", S_TMP + 1, stile)
        a("s_mul_i32 s%d, s%d, %d", S_TMP + 2, S_W, 16 * ld)
        a("s_add_u32 s%d, s%d, s%d", S_TMP + 1, S_TMP + 1, S_TMP + 2)
        a("v_xor_b32 v4, 64, v3")
        for i in range(2):
            a("s_add_u32 s%d, s%d, %d", S_TMP + 2, S_TMP + 1, i * 8 * ld + extra_cols * 2)
            a("v_add_u32 v%d, s%d, v%d", vb + i, S_TMP + 2, 3 + i)
    else:
        raise ValueError

def lane_parts(a):
    a("v_lshrrev_b32 v5, 4, v2")
    a("v_bfe_u32 v6, v2, 2, 2")
    a("v_and_b32 v7, 3, v2")
    a("v_and_b32 v8, 15, v2")

def read_addrs_kc(a, opbase, srow, vb):
    a("v_lshrrev_b32 v3, 1, v8")
    a("v_xor_b32 v3, v3, v5")
    a("v_lshlrev_b32 v3, 4, v3")
    a("v_lshl_add_u32 v3, v8, 7, v3")
    if srow is not None:
        a("s_lshl_b32 s%d, s%d, 7", S_TMP, srow)
        a("s_add_u32 s%d, s%d, %d", S_TMP, S_TMP, opbase)
        a("v_add_u32 v%d, s%d, v3", vb, S_TMP)
    else:
        a("v_add_u32 v%d, %d, v3", vb, opbase)
    a("v_xor_b32 v%d, 64, v%d", vb + 1, vb)

def read_addr_km(a, T, sbase, stile, i, vd):
    rowb = T * 2
    if T == 128:
        a("v_and_b32 v3, 1, v5")
        a("v_lshl_or_b32 v3, v3, 2, v6")
    else:
        a("v_and_b32 v3, 1, v5")
        a("v_lshlrev_b32 v3, 1, v3")
        a("v_lshrrev_b32 v4, 1, v6")
        a("v_or_b32 v3, v3, v4")
    a("s_add_u32 s%d, s%d, %d", S_TMP, stile, i)
    a("v_xor_b32 v3, s%d, v3", S_TMP)
    a("v_lshlrev_b32 v3, 5, v3")
    a("v_lshl_add_u32 v3, v7, 3, v3")
    a("v_lshl_add_u32 v4, v5, 3, v6")
    a("v_lshl_add_u32 v3, v4, %d, v3", rowb.bit_length() - 1)
    a("v_add_u32 v%d, s%d, v3", vd, sbase)

def frag_reads(kind, T, addr_regs, idx, ks, dst):
    if kind == "kc":
        return ["ds_read_b128 v[%d:%d], v%d offset:%d" % (dst, dst + 3, addr_regs[ks], idx * 2048)]
    rowb = T * 2
    return ["ds_read_b64_tr_b16 v[%d:%d], v%d offset:%d" % (dst + 2 * h, dst + 2 * h + 1, addr_regs[idx], h * 4 * rowb + ks * 32 * rowb)
            for h in range(2)]

def interleave(a, mfmas, reads, tail=()):
    reads = list(reads); tail = list(tail)
    if OPT.get("noreads"): reads = []
    if OPT.get("nomfma"): mfmas = ["s_nop 0"] * 2
    for m in mfmas:
        a(m)
        budget = 2
        while reads and budget > 0:
            cost = 2 if "b128" in reads[0] else 1
            if cost > budget: break
            a(reads.pop(0)); budget -= cost
        if not reads:
            while tail and budget > 0:
                a(tail.pop(0)); budget -= 1
    for r in reads: a(r)
    for t in tail: a(t)

def loader_loop(a, name, issue, n_per_wave, N, S, stage_bytes, hooks=None):
    a("s_mov_b32 s%d, 0", S_T)
    a("s_mov_b32 s%d, 0", S_SLOT)
    a.label(name + "_ld_loop")
    a("s_cmp_lt_u32 s%d, %d", S_T, S - 1)
    a("s_cbranch_scc1 %s_ld_issue", name)
    if hooks:
        a("s_sub_u32 s%d, s%d, %d", S_TMP, S_T, hooks["at"] + 1)
        a("s_cmp_lt_u32 s%d, %d", S_TMP, S - 1)
        a("s_cbranch_scc1 %s_ld_w2", name)
    a("s_waitcnt vmcnt(%d)", (S - 2) * n_per_wave)
    a.label(name + "_ld_bar")
    a("s_barrier")
    a.label(name + "_ld_issue")
    if not OPT.get("noload"): issue()
    if hooks:
        a("s_cmp_eq_u32 s%d, %d", S_T, hooks["at"])
        a("s_cbranch_scc1 %s_ld_h1", name)
        a("s_cmp_eq_u32 s%d, %d", S_T, hooks["use_at"])
        a("s_cbranch_scc1 %s_ld_h2", name)
        a.label(name + "_ld_cont")
    a("s_add_u32 s%d, s%d, %d", S_SLOT, S_SLOT, stage_bytes)
    a("s_cmp_eq_u32 s%d, %d", S_SLOT, S * stage_bytes)
    a("s_cselect_b32 s%d, 0, s%d", S_SLOT, S_SLOT)
    a("s_add_u32 s%d, s%d, 1", S_T, S_T)
    a("s_cmp_lt_u32 s%d, %d", S_T, N)
    a("s_cbranch_scc1 %s_ld_loop", name)
    for t in range(N - S + 1, N):
        a("s_waitcnt vmcnt(%d)", (N - 1 - t) * n_per_wave)
        a("s_barrier")
    if hooks:
        a("s_branch %s_ld_end", name)
        a.label(name + "_ld_w2")
        a("s_waitcnt vmcnt(%d)", (S - 2) * n_per_wave + hooks["extra"])
        a("s_branch %s_ld_bar", name)
        a.label(name + "_ld_h1")
        hooks["loads"]()
        a("s_branch %s_ld_cont", name)
        a.label(name + "_ld_h2")
        hooks["use"]()
        a("s_branch %s_ld_cont", name)
        a.label(name + "_ld_end")

def kidx_offsets(a, W, advA, advB):
    W = OPT.get("W", W)
    a("s_add_u32 s%d, s%d, s%d", S_TMP, S_T, S_J)
    a("s_and_b32 s%d, s%d, %d", S_TMP, S_TMP, W - 1)
    a("s_andn2_b32 s%d, s%d, %d", S_TMP + 1, S_T, W - 1)
    a("s_or_b32 s%d, s%d, s%d", S_TMP, S_TMP, S_TMP + 1)
    a("s_add_u32 s%d, s%d, s%d", S_TMP, S_TMP, S_KB)
    a("s_mul_i32 s%d, s%d, %d", S_OFA, S_TMP, advA)
    a("s_mul_i32 s%d, s%d, %d", S_OFB, S_TMP, advB)

def compute_loop_ctl_init(a, N, S, stage_bytes):
    a("s_mov_b32 s%d, %d", S_CNT, N)
    a("s_mov_b32 s%d, 0", S_SI)
    a("s_mov_b32 s%d, %d", S_DP, stage_bytes)
    a("s_mov_b32 s%d, 0x%x", S_DN, (-(S - 1) * stage_bytes) & 0xffffffff)

def addr_update(addr_regs, S, stage_bytes):
    L = ["s_add_u32 s%d, s%d, 1" % (S_SI, S_SI),
         "s_cmp_eq_u32 s%d, %d" % (S_SI, S),
         "s_cselect_b32 s%d, s%d, s%d" % (S_DELTA, S_DN, S_DP),
         "s_cselect_b32 s%d, 0, s%d" % (S_SI, S_SI)]
    L += ["v_add_u32 v%d, s%d, v%d" % (r, S_DELTA, r) for r in addr_regs]
    L += ["s_sub_u32 s%d, s%d, 1" % (S_CNT, S_CNT), "s_cmp_lg_u32 s%d, 0" % S_CNT]
    return L

def gelu_pairs(a, regs, tmp, cst):
    n = len(regs)
    pr = lambda r: "v[%d:%d]" % (r, r + 1)
    for k, r in enumerate(regs): a("v_pk_mul_f32 %s, %s, %s", pr(tmp + 2 * k), pr(r), pr(r))
    for k, r in enumerate(regs): a("v_pk_fma_f32 %s, %s, %s, %s", pr(tmp + 2 * k), pr(tmp + 2 * k), pr(cst), pr(cst + 2))
    for k, r in enumerate(regs): a("v_pk_mul_f32 %s, %s, %s", pr(tmp + 2 * k), pr(tmp + 2 * k), pr(r))
    for k in range(2 * n): a("v_exp_f32 v%d, v%d", tmp + k, tmp + k)
    for k, r in enumerate(regs): a("v_pk_add_f32 %s, %s, %s", pr(tmp + 2 * k), pr(tmp + 2 * k), pr(cst + 4))
    for k in range(2 * n): a("v_rcp_f32 v%d, v%d", tmp + k, tmp + k)
    for k, r in enumerate(regs): a("v_pk_mul_f32 %s, %s, %s", pr(r), pr(r), pr(tmp + 2 * k))

def cloop(a, name, mf, rd, addrs, S, stage):
    stamp(a, 2)
    if OPT.get("stamp"):
        a("s_barrier")
        stamp(a, 3)
        a("s_waitcnt lgkmcnt(0)")
        a("s_branch %s_cloop2", name)
    a.raw(".p2align 3")
    a.label(name + "_cloop")
    a("s_barrier")
    a.label(name + "_cloop2")
    interleave(a, mf(1), rd(0, 0))
    a("s_waitcnt lgkmcnt(0)")
    interleave(a, mf(0), rd(1, 1), addr_update(addrs, S, stage))
    a("s_waitcnt lgkmcnt(0)")
    a("s_cbranch_scc1 %s_cloop", name)
    for m in mf(1): a(m)
    stamp(a, 4)

def entry(a, name, stubs, ntiles):
    if stubs:
        for (kn, pre) in stubs:
            kernel_header(a, kn)
            pre(a)
            a("s_branch %s_body", name)
        a.raw(".p2align 6")
        a.label(name + "_body")
    else:
        kernel_header(a, name)
    a("s_cmp_ge_u32 s2, %d", ntiles)
    a("s_cbranch_scc1 %s_done", name)
    stamp(a, 0)

def gen_gemm(a, name, ntiles, A, B, WA, WB, N, S, W, ptrs, decode, init, epi, ldc, stubs=None, stats=False):
    na, nb = A.T // (16 * WA), B.T // (16 * WB)
    stage = A.bytes + B.bytes
    baseA, baseB = 0, A.bytes
    names = [name] if not stubs else [s[0] for s in stubs]
    entry(a, name, stubs, ntiles)
    ptrs(a, 0)
    a("v_lshrrev_b32 v1, 6, v0")
    a("v_and_b32 v2, 63, v0")
    decode(a)
    a("v_readfirstlane_b32 s%d, v1", S_W)
    a("s_nop 0")
    a("s_cmp_lt_u32 s%d, 4", S_W)
    a("s_cbranch_scc1 %s_compute", name)

    if OPT.get("ldprio"): a("s_setprio %d", OPT["ldprio"])
    a("s_sub_u32 s%d, s%d, 4", S_W, S_W)
    loader_voffs(a, A, S_TA, 10)
    loader_voffs(a, B, S_TB, 10 + A.npw)
    a("s_mul_i32 s%d, s%d, %d", S_LA, S_W, A.npw * 1024)
    a("s_mul_i32 s%d, s%d, %d", S_LB, S_W, B.npw * 1024)
    a("s_add_u32 s%d, s%d, %d", S_LB, S_LB, baseB)
    a("s_waitcnt lgkmcnt(0)")
    ptrs(a, "L")
    def issue():
        kidx_offsets(a, W, A.kadv, B.kadv)
        a("s_add_u32 s%d, s%d, s%d", S_M0A, S_SLOT, S_LA)
        a("s_add_u32 s%d, s%d, s%d", S_M0B, S_SLOT, S_LB)
        for (op, vb, sm, so, sr) in ((A, 10, S_M0A, S_OFA, 8), (B, 10 + A.npw, S_M0B, S_OFB, 12)):
            for i in range(op.npw):
                a("s_add_u32 m0, s%d, %d", sm, i * 1024)
                a("s_nop 0")
                a("buffer_load_dwordx4 v%d, s[%d:%d], s%d offen lds", vb + i, sr, sr + 3, so)
    loader_loop(a, name, issue, A.npw + B.npw, N, S, stage)
    a.label(name + "_done")
    a("s_endpgm")

    a.label(name + "_compute")
    ACC = 24
    nacc = na * nb * 4
    FR = ACC + nacc
    fset = (na + nb) * 4
    fA = lambda st, i: FR + st * fset + 4 * i
    fB = lambda st, j: FR + st * fset + 4 * na + 4 * j
    acc = lambda i, j: ACC + 4 * (i * nb + j)
    VTOP = FR + 2 * fset
    lane_parts(a)
    SWA, SWB = S_TMP + 4, S_TMP + 5
    a("s_and_b32 s%d, s%d, %d", SWA, S_W, WA - 1)
    a("s_lshr_b32 s%d, s%d, %d", SWB, S_W, WA.bit_length() - 1)
    a("s_mul_i32 s%d, s%d, %d", S_TMP, S_TB, B.T)
    a("s_mul_i32 s%d, s%d, %d", S_TMP + 1, SWB, nb * 16)
    a("s_add_u32 s%d, s%d, s%d", S_TMP, S_TMP, S_TMP + 1)
    a("v_add_u32 v20, s%d, v8", S_TMP)
    a("s_mov_b32 s%d, %d", S_TMP + 1, ldc)
    a("v_mul_lo_u32 v9, v20, s%d", S_TMP + 1)
    a("s_mul_i32 s%d, s%d, %d", S_TMP, S_TA, A.T * 2)
    a("s_mul_i32 s%d, s%d, %d", S_TMP + 1, SWA, na * 32)
    a("s_add_u32 s%d, s%d, s%d", S_TMP + 6, S_TMP, S_TMP + 1)
    a("v_and_b32 v3, 1, v5")
    a("v_lshlrev_b32 v3, 5, v3")
    a("v_lshrrev_b32 v4, 1, v5")
    a("v_lshl_add_u32 v3, v4, 4, v3")
    a("v_add3_u32 v9, v9, v3, s%d", S_TMP + 6)
    for j in range(nb):
        a("s_mov_b32 s%d, %d", S_ST + j, j * 16 * ldc)
    a("s_waitcnt lgkmcnt(0)")
    stamp(a, 1)
    ptrs(a, "C")
    if init in ("resid", "resid+biasB"):
        for j in range(nb):
            for p in range(na // 2):
                d = FR + 4 * (j * (na // 2) + p)
                a("buffer_load_dwordx4 v[%d:%d], v9, s[20:23], s%d offen offset:%d", d, d + 3, S_ST + j, p * 64)
        if init == "resid+biasB":
            a("v_lshlrev_b32 v3, 1, v20")
            for j in range(nb):
                a("buffer_load_ushort v%d, v3, s[56:59], 0 offen offset:%d", 22 + j, j * 32)
    elif init == "biasA":
        a("v_lshl_add_u32 v3, v5, 3, s%d", S_TMP + 6)
        for i in range(na):
            a("buffer_load_dwordx2 v[%d:%d], v3, s[20:23], 0 offen offset:%d", FR + 2 * i, FR + 2 * i + 1, i * 32)
    AR = 10
    def mk_addrs(op, base, swave, n, vb):
        if op.kind == "kc":
            a("s_mul_i32 s%d, s%d, %d", S_TMP + 2, swave, n * 16)
            read_addrs_kc(a, base, S_TMP + 2, vb)
            return [vb, vb + 1]
        a("s_mul_i32 s%d, s%d, %d", S_TMP + 2, swave, n)
        a("s_mov_b32 s%d, %d", S_TMP + 3, base)
        for i in range(n):
            read_addr_km(a, op.T, S_TMP + 3, S_TMP + 2, i, vb + i)
        return [vb + i for i in range(n)]
    adA = mk_addrs(A, baseA, SWA, na, AR)
    adB = mk_addrs(B, baseB, SWB, nb, AR + len(adA))
    assert AR + len(adA) + len(adB) <= 20
    for r in range(fset): a("v_mov_b32 v%d, 0", FR + fset + r)
    compute_loop_ctl_init(a, N, S, stage)
    if init == "zero":
        for r in range(nacc): a("v_mov_b32 v%d, 0", ACC + r)
    elif init in ("resid", "resid+biasB"):
        a("s_waitcnt vmcnt(0)")
        for j in range(nb):
            for p in range(na // 2):
                d = FR + 4 * (j * (na // 2) + p)
                a("v_permlane16_swap_b32 v%d, v%d", d, d + 2)
                a("v_permlane16_swap_b32 v%d, v%d", d + 1, d + 3)
        if init == "resid+biasB":
            for j in range(nb): a("v_lshlrev_b32 v%d, 16, v%d", 22 + j, 22 + j)
        for j in range(nb):
            for p in range(na // 2):
                d = FR + 4 * (j * (na // 2) + p)
                for h in range(2):
                    c = acc(2 * p + h, j)
                    for q in range(2):
                        a("v_lshlrev_b32 v%d, 16, v%d", c + 2 * q, d + 2 * h + q)
                        a("v_and_b32 v%d, 0xffff0000, v%d", c + 2 * q + 1, d + 2 * h + q)
                    if init == "resid+biasB":
                        for r in range(4): a("v_add_f32 v%d, v%d, v%d", c + r, c + r, 22 + j)
    elif init == "biasA":
        a("s_waitcnt vmcnt(0)")
        for i in range(na):
            for j in range(nb):
                c = acc(i, j)
                for q in range(2):
                    a("v_lshlrev_b32 v%d, 16, v%d", c + 2 * q, FR + 2 * i + q)
                    a("v_and_b32 v%d, 0xffff0000, v%d", c + 2 * q + 1, FR + 2 * i + q)
    if OPT.get("cprio"): a("s_setprio %d", OPT["cprio"])
    def mf(st):
        return ["v_mfma_f32_16x16x32_bf16 v[%d:%d], v[%d:%d], v[%d:%d], v[%d:%d]" %
                (acc(i, j), acc(i, j) + 3, fA(st, i), fA(st, i) + 3, fB(st, j), fB(st, j) + 3, acc(i, j), acc(i, j) + 3)
                for i in range(na) for j in range(nb)]
    def rd(st, ks):
        L = []
        L += frag_reads(A.kind, A.T, adA, 0, ks, fA(st, 0))
        for j in range(nb): L += frag_reads(B.kind, B.T, adB, j, ks, fB(st, j))
        for i in range(1, na): L += frag_reads(A.kind, A.T, adA, i, ks, fA(st, i))
        return L
    cloop(a, name, mf, rd, adA + adB, S, stage)
    TMPV = FR
    if epi == "gelu":
        c1 = -2.0 * math.log2(math.e) * math.sqrt(2.0 / math.pi) * 0.044715
        c0 = -2.0 * math.log2(math.e) * math.sqrt(2.0 / math.pi)
        for k, v in enumerate((c1, c1, c0, c0, 1.0, 1.0)):
            a("v_mov_b32 v%d, 0x%x", AR + k, f32(v))
    a("s_nop 7")
    k = 0
    for j in range(nb):
        for p in range(na // 2):
            c0_, c1_ = acc(2 * p, j), acc(2 * p + 1, j)
            if epi == "gelu":
                gelu_pairs(a, [c0_, c0_ + 2, c1_, c1_ + 2], TMPV + 16, AR)
            d = TMPV + 4 * (k & 3); k += 1
            a("v_cvt_pk_bf16_f32 v%d, v%d, v%d", d, c0_, c0_ + 1)
            a("v_cvt_pk_bf16_f32 v%d, v%d, v%d", d + 1, c0_ + 2, c0_ + 3)
            a("v_cvt_pk_bf16_f32 v%d, v%d, v%d", d + 2, c1_, c1_ + 1)
            a("v_cvt_pk_bf16_f32 v%d, v%d, v%d", d + 3, c1_ + 2, c1_ + 3)
            a("s_nop 1")
            a("v_permlane16_swap_b32 v%d, v%d", d, d + 2)
            a("v_permlane16_swap_b32 v%d, v%d", d + 1, d + 3)
            a("buffer_store_dwordx4 v[%d:%d], v9, s[16:19], s%d offen offset:%d%s", d, d + 3, S_ST + j, p * 64, STF())
    if stats:
        assert nb == 2 and WA == 1
        pr = lambda r: "v[%d:%d]" % (r, r + 1)
        SV = AR
        for j in range(nb):
            prs = [acc(i, j) + 2 * q for i in range(na) for q in range(2)]
            a("v_pk_add_f32 %s, %s, %s", pr(SV + 4 * j), pr(prs[0]), pr(prs[1]))
            a("v_pk_mul_f32 %s, %s, %s", pr(SV + 4 * j + 2), pr(prs[0]), pr(prs[0]))
            for x in prs[1:]:
                if x != prs[1]: a("v_pk_add_f32 %s, %s, %s", pr(SV + 4 * j), pr(SV + 4 * j), pr(x))
                a("v_pk_fma_f32 %s, %s, %s, %s", pr(SV + 4 * j + 2), pr(x), pr(x), pr(SV + 4 * j + 2))
        for j in range(nb):
            a("v_add_f32 v%d, v%d, v%d", SV + 4 * j, SV + 4 * j, SV + 4 * j + 1)
            a("v_add_f32 v%d, v%d, v%d", SV + 4 * j + 1, SV + 4 * j + 2, SV + 4 * j + 3)
        a("s_nop 1")
        a("v_permlane16_swap_b32 v10, v14")
        a("v_permlane16_swap_b32 v11, v15")
        a("v_pk_add_f32 v[10:11], v[10:11], v[14:15]")
        a("v_mov_b32 v12, v10")
        a("v_mov_b32 v13, v11")
        a("s_nop 1")
        a("v_permlane32_swap_b32 v10, v12")
        a("v_permlane32_swap_b32 v11, v13")
        a("v_pk_add_f32 v[10:11], v[10:11], v[12:13]")
        a("v_and_b32 v3, 16, v2")
        a("v_add_u32 v3, v3, v20")
        a("v_lshlrev_b32 v3, 3, v3")
        a("s_lshl_b32 s%d, s%d, 14", S_TMP, S_TA)
        a("s_mov_b32 exec_hi, 0")
        a("buffer_store_dwordx2 v[10:11], v3, s[60:63], s%d offen%s", S_TMP, STF())
        a("s_mov_b32 exec_hi, -1")
    stamp(a, 5)
    stamp_flush(a, name, 6)
    a("s_endpgm")
    for kn in names:
        kernel_desc(a, kn, VTOP, 96 if OPT.get('stamp') else 72)
    return stage * S

def gen_g1(a, name, stubs, W=2):
    N, S = 16, 3
    PW = Op("km", 64, 6144)
    XB = 3 * 8192
    stage = XB + 144 * 128
    E = stage
    REG = 144 * 128
    LST = S * stage
    LCS = LST + 1280
    entry(a, name, stubs, 256)
    a("s_load_dwordx2 s[4:5], s[0:1], %d", ARG["ws"])
    a("s_load_dwordx2 s[30:31], s[0:1], %d", ARG["wqkv"])
    a("v_lshrrev_b32 v1, 6, v0")
    a("v_and_b32 v2, 63, v0")
    a("s_and_b32 s%d, s2, 1", S_TMP)
    a("s_lshl_b32 s%d, s%d, 3", S_TMP, S_TMP)
    a("s_bfe_u32 s%d, s2, 0x30003", S_TMP + 1)
    a("s_add_u32 s%d, s%d, s%d", S_TB, S_TMP, S_TMP + 1)
    a("s_bfe_u32 s%d, s2, 0x20001", S_TMP)
    a("s_lshl_b32 s%d, s%d, 2", S_TMP, S_TMP)
    a("s_lshr_b32 s%d, s2, 6", S_TMP + 2)
    a("s_add_u32 s%d, s%d, s%d", S_TA, S_TMP, S_TMP + 2)
    a("s_add_u32 s%d, s%d, s%d", S_J, S_TMP + 1, S_TMP + 2)
    a("s_mov_b32 s%d, 0", S_KB)
    a("v_readfirstlane_b32 s%d, v1", S_W)
    lane_parts(a)
    a("s_cmp_lt_u32 s%d, 4", S_W)
    a("s_cbranch_scc1 %s_compute", name)

    if OPT.get("ldprio"): a("s_setprio %d", OPT["ldprio"])
    a("s_sub_u32 s%d, s%d, 4", S_W, S_W)
    XO = Op("kc", 128, 2048)
    loader_voffs(a, XO, S_TB, 16)
    for p in range(3):
        loader_voffs(a, PW, S_TA, 10 + 2 * p, extra_cols=1024 * p)
    a("v_lshrrev_b32 v3, 3, v2")
    a("s_lshl_b32 s%d, s%d, 2", S_TMP, S_W)
    a("v_add_u32 v3, s%d, v3", S_TMP)
    a("v_lshrrev_b32 v4, 1, v3")
    a("v_xor_b32 v4, v4, v2")
    a("v_and_b32 v4, 7, v4")
    a("s_lshl_b32 s%d, s%d, 7", S_TMP, S_TB)
    a("s_sub_u32 s%d, s%d, 16", S_TMP, S_TMP)
    a("v_add_u32 v3, s%d, v3", S_TMP)
    a("v_max_i32 v3, 0, v3")
    a("v_lshlrev_b32 v3, 11, v3")
    a("v_lshl_add_u32 v20, v4, 4, v3")
    a("s_mul_i32 s%d, s%d, 2048", S_LA, S_W)
    a("s_mul_i32 s%d, s%d, 4096", S_LB, S_W)
    a("s_add_u32 s%d, s%d, %d", S_LB, S_LB, XB + 2048)
    a("s_mul_i32 s%d, s%d, 512", S_TMP + 6, S_W)
    a("s_add_u32 s%d, s%d, %d", S_TMP + 6, S_TMP + 6, XB)
    a("s_waitcnt lgkmcnt(0)")
    srd(a, 8, 30, 0, 1024 * 3072 * 2)
    a("s_add_u32 s12, s6, s%d", S_TMP + 7)
    a("s_addc_u32 s13, s7, 0")
    a("s_mov_b32 s14, 0x%x", ACT_BYTES)
    a("s_mov_b32 s15, 0x20000")
    def issue():
        kidx_offsets(a, W, PW.kadv, 128)
        a("s_add_u32 s%d, s%d, s%d", S_M0A, S_SLOT, S_LA)
        a("s_add_u32 s%d, s%d, s%d", S_M0B, S_SLOT, S_LB)
        for i in range(4):
            a("s_add_u32 m0, s%d, %d", S_M0B, i * 1024)
            a("s_nop 0")
            a("buffer_load_dwordx4 v%d, s[12:15], s%d offen lds", 16 + i, S_OFB)
        for p in range(3):
            for i in range(2):
                a("s_add_u32 m0, s%d, %d", S_M0A, p * 8192 + i * 1024)
                a("s_nop 0")
                a("buffer_load_dwordx4 v%d, s[8:11], s%d offen lds", 10 + 2 * p + i, S_OFA)
        a("s_add_u32 m0, s%d, s%d", S_SLOT, S_TMP + 6)
        a("s_mov_b32 exec_hi, 0")
        a("buffer_load_dwordx4 v20, s[12:15], s%d offen lds", S_OFB)
        a("s_mov_b32 exec_hi, -1")
    def st_loads():
        srd(a, 20, 4, WS["ST"], ST_BYTES)
        srd(a, 56, 4, WS["CS"], CS_BYTES)
        a("s_lshl_b32 s%d, s%d, 6", S_TMP, S_W)
        a("v_add_u32 v21, s%d, v2", S_TMP)
        a("s_lshl_b32 s%d, s%d, 7", S_TMP + 1, S_TB)
        a("s_sub_u32 s%d, s%d, 16", S_TMP + 1, S_TMP + 1)
        a("v_add_u32 v3, s%d, v21", S_TMP + 1)
        a("v_max_i32 v3, 0, v3")
        a("v_min_u32 v3, 2047, v3")
        a("v_lshlrev_b32 v3, 3, v3")
        a("s_min_u32 s%d, s%d, 2", S_TMP, S_W)
        a("s_lshl_b32 s%d, s%d, 12", S_TMP, S_TMP)
        a("s_lshl_b32 s%d, s%d, 8", S_TMP + 1, S_TA)
        a("s_add_u32 s%d, s%d, s%d", S_TMP, S_TMP, S_TMP + 1)
        a("v_lshl_add_u32 v4, v2, 2, s%d", S_TMP)
        for k in range(16):
            a("s_mov_b32 s%d, %d", S_TMP, k * 16384)
            a("buffer_load_dwordx2 v[%d:%d], v3, s[20:23], s%d offen", 24 + 2 * k, 25 + 2 * k, S_TMP)
            a("s_mov_b32 s%d, %d", S_TMP + 1, k * 3072 * 4)
            a("buffer_load_dword v%d, v4, s[56:59], s%d offen", 56 + k, S_TMP + 1)
    def st_use():
        for st in (8, 4, 2, 1):
            for k in range(st):
                a("v_pk_add_f32 v[%d:%d], v[%d:%d], v[%d:%d]", 24 + 2 * k, 25 + 2 * k, 24 + 2 * k, 25 + 2 * k, 24 + 2 * (k + st), 25 + 2 * (k + st))
                a("v_add_f32 v%d, v%d, v%d", 56 + k, 56 + k, 56 + k + st)
        a("v_mul_f32 v24, 0x%x, v24", f32(1.0 / 1024))
        a("v_mul_f32 v25, 0x%x, v25", f32(1.0 / 1024))
        a("v_fma_f32 v25, -v24, v24, v25")
        a("v_max_f32 v25, 0, v25")
        a("v_add_f32 v25, 0x%x, v25", f32(1e-5))
        a("v_rsq_f32 v26, v25")
        a("v_lshlrev_b32 v3, 3, v21")
        a("v_lshlrev_b32 v4, 2, v21")
        a("v_mul_f32 v27, -v24, v26")
        a("v_cmp_gt_u32 vcc, 144, v21")
        a("s_and_saveexec_b64 s[56:57], vcc")
        a("v_add_u32 v3, %d, v3", LST)
        a("ds_write_b64 v3, v[26:27]")
        a("s_mov_b64 exec, s[56:57]")
        a("v_cmp_gt_u32 vcc, 192, v21")
        a("s_and_saveexec_b64 s[56:57], vcc")
        a("v_add_u32 v4, %d, v4", LCS)
        a("ds_write_b32 v4, v56")
        a("s_mov_b64 exec, s[56:57]")
        a("s_waitcnt lgkmcnt(0)")
    loader_loop(a, name, issue, 11, N, S, stage, hooks=dict(extra=32, at=S - 1, loads=st_loads, use_at=2 * S, use=st_use))
    a("s_add_u32 s%d, s%d, 4", S_W, S_W)
    a("s_branch %s_attn", name)

    a.label(name + "_compute")
    na, nb = 6, 5
    ACC = 24
    acc = lambda i, j: ACC + 4 * (i * 4 + j) if j < 4 else ACC + 96 + 4 * (i - 4)
    nacc = 104
    FR = ACC + nacc
    fset = (na + nb) * 4
    fA = lambda st, i: FR + st * fset + 4 * i
    fB = lambda st, j: FR + st * fset + 4 * na + 4 * j
    VTOP = FR + 2 * fset
    SHD, SSH = S_TMP + 4, S_TMP + 5
    a("s_and_b32 s%d, s%d, 1", SHD, S_W)
    a("s_lshr_b32 s%d, s%d, 1", SSH, S_W)
    AR = 10
    def part_of(c, unit):
        if c == 0:
            a("s_mov_b32 s%d, 0", S_TMP + 3)
        else:
            a("s_xor_b32 s%d, s%d, %d", S_TMP + 3, SSH, 1 if c == 1 else 0)
            a("s_add_u32 s%d, s%d, 1", S_TMP + 3, S_TMP + 3)
            a("s_mul_i32 s%d, s%d, %d", S_TMP + 3, S_TMP + 3, unit)
    a("s_lshl_b32 s%d, s%d, 1", S_TMP + 2, SHD)
    for c in range(3):
        part_of(c, 8192)
        for i in range(2):
            read_addr_km(a, 64, S_TMP + 3, S_TMP + 2, i, AR + 2 * c + i)
    adA = [AR + i for i in range(6)]
    a("s_mul_i32 s%d, s%d, 64", S_TMP + 2, SSH)
    a("s_add_u32 s%d, s%d, 16", S_TMP + 2, S_TMP + 2)
    read_addrs_kc(a, XB, S_TMP + 2, AR + 6)
    read_addrs_kc(a, XB, None, AR + 8)
    adB, adH = [AR + 6, AR + 7], [AR + 8, AR + 9]
    for r in range(nacc): a("v_mov_b32 v%d, 0", ACC + r)
    for r in range(fset): a("v_mov_b32 v%d, 0", FR + fset + r)
    compute_loop_ctl_init(a, N, S, stage)
    if OPT.get("cprio"): a("s_setprio %d", OPT["cprio"])
    a("s_waitcnt lgkmcnt(0)")
    stamp(a, 1)
    def mf(st):
        L = [(i, j) for i in range(6) for j in range(4)] + [(4, 4), (5, 4)]
        return ["v_mfma_f32_16x16x32_bf16 v[%d:%d], v[%d:%d], v[%d:%d], v[%d:%d]" %
                (acc(i, j), acc(i, j) + 3, fA(st, i), fA(st, i) + 3, fB(st, j), fB(st, j) + 3, acc(i, j), acc(i, j) + 3)
                for (i, j) in L]
    def rd(st, ks):
        L = []
        L += frag_reads("km", 64, adA, 0, ks, fA(st, 0))
        for j in range(4): L += frag_reads("kc", 0, adB, j, ks, fB(st, j))
        for i in range(1, 6): L += frag_reads("km", 64, adA, i, ks, fA(st, i))
        L += frag_reads("kc", 0, adH, 0, ks, fB(st, 4))
        return L
    cloop(a, name, mf, rd, adA + adB + adH, S, stage)
    SB = FR
    a("v_lshlrev_b32 v3, 3, v8")
    a("v_add_u32 v4, %d, v3", LST)
    a("s_mul_i32 s%d, s%d, 512", S_TMP, SSH)
    a("s_add_u32 s%d, s%d, %d", S_TMP, S_TMP, LST + 128)
    a("v_add_u32 v3, s%d, v3", S_TMP)
    for j in range(4): a("ds_read_b64 v[%d:%d], v3 offset:%d", SB + 2 * j, SB + 2 * j + 1, j * 128)
    a("ds_read_b64 v[%d:%d], v4", SB + 8, SB + 9)
    a("s_lshl_b32 s%d, s%d, 7", S_TMP, SHD)
    a("s_add_u32 s%d, s%d, %d", S_TMP, S_TMP, LCS)
    a("v_lshl_add_u32 v3, v5, 4, s%d", S_TMP)
    for c in range(3):
        part_of(c, 256)
        a("v_add_u32 v4, s%d, v3", S_TMP + 3)
        for i in range(2):
            a("ds_read_b128 v[%d:%d], v4 offset:%d", SB + 12 + 4 * (2 * c + i), SB + 15 + 4 * (2 * c + i), i * 64)
    a("v_and_b32 v3, 1, v5")
    a("v_lshlrev_b32 v3, 1, v3")
    a("v_lshrrev_b32 v4, 1, v5")
    a("v_add_u32 v3, v3, v4")
    a("s_lshl_b32 s%d, s%d, 2", S_TMP, SHD)
    a("v_add_u32 v3, s%d, v3", S_TMP)
    a("v_lshrrev_b32 v4, 1, v8")
    a("v_xor_b32 v3, v3, v4")
    a("v_lshlrev_b32 v3, 4, v3")
    a("v_lshl_add_u32 v3, v8, 7, v3")
    a("s_mul_i32 s%d, s%d, %d", S_TMP + 2, SSH, 64 * 128)
    a("s_add_u32 s%d, s%d, %d", S_TMP + 2, S_TMP + 2, E + 16 * 128)
    for c in range(3):
        part_of(c, REG)
        a("s_add_u32 s%d, s%d, s%d", S_TMP, S_TMP + 2, S_TMP + 3)
        a("v_add_u32 v%d, s%d, v3", AR + c, S_TMP)
    a("s_add_u32 s%d, s%d, %d", S_TMP, S_TMP + 3, E)
    a("v_add_u32 v%d, s%d, v3", AR + 3, S_TMP)
    a("s_waitcnt lgkmcnt(0)")
    k = 0
    TV = SB + 36
    pr = lambda r: "v[%d:%d]" % (r, r + 1)
    for c in range(3):
        for j in range(5 if c == 2 else 4):
            c0_, c1_ = acc(2 * c, j), acc(2 * c + 1, j)
            d = TV + 8 + 4 * (k & 3); k += 1
            prs = [(c0_, SB + 12 + 8 * c), (c0_ + 2, SB + 14 + 8 * c), (c1_, SB + 16 + 8 * c), (c1_ + 2, SB + 18 + 8 * c)]
            for q, (x, cs) in enumerate(prs):
                a("v_pk_mul_f32 %s, %s, %s op_sel:[0,1] op_sel_hi:[1,1]", pr(TV + 2 * q), pr(cs), pr(SB + 2 * j))
            for q, (x, cs) in enumerate(prs):
                a("v_pk_fma_f32 %s, %s, %s, %s op_sel:[0,0,0] op_sel_hi:[1,0,1]", pr(x), pr(x), pr(SB + 2 * j), pr(TV + 2 * q))
            a("v_cvt_pk_bf16_f32 v%d, v%d, v%d", d, c0_, c0_ + 1)
            a("v_cvt_pk_bf16_f32 v%d, v%d, v%d", d + 1, c0_ + 2, c0_ + 3)
            a("v_cvt_pk_bf16_f32 v%d, v%d, v%d", d + 2, c1_, c1_ + 1)
            a("v_cvt_pk_bf16_f32 v%d, v%d, v%d", d + 3, c1_ + 2, c1_ + 3)
            a("s_nop 1")
            a("v_permlane16_swap_b32 v%d, v%d", d, d + 2)
            a("v_permlane16_swap_b32 v%d, v%d", d + 1, d + 3)
            if j < 4:
                a("ds_write_b128 v%d, v[%d:%d] offset:%d", AR + c, d, d + 3, j * 2048)
            else:
                a("ds_write_b128 v%d, v[%d:%d]", AR + 3, d, d + 3)
    a("s_waitcnt lgkmcnt(0)")

    a.label(name + "_attn")
    srd(a, 16, 4, WS["O"], ACT_BYTES)
    a("s_and_b32 s%d, s%d, 1", SHD, S_W)
    SU = S_TMP + 5
    a("s_lshr_b32 s%d, s%d, 1", SU, S_W)
    a("s_lshl_b32 s%d, s%d, 2", S_TMP, SHD)
    a("v_add_u32 v3, s%d, v5", S_TMP)
    a("v_and_b32 v4, 7, v8")
    a("v_xor_b32 v3, v3, v4")
    a("v_lshlrev_b32 v3, 4, v3")
    a("v_lshl_add_u32 v3, v8, 8, v3")
    a("s_mul_i32 s%d, s%d, %d", S_TMP + 1, SU, 32 * 128)
    a("s_add_u32 s%d, s%d, %d", S_TMP + 1, S_TMP + 1, E)
    a("v_add_u32 v10, s%d, v3", S_TMP + 1)
    a("v_lshl_add_u32 v3, v5, 2, v6")
    a("v_and_b32 v4, 7, v3")
    a("v_add_u32 v12, s%d, v7", S_TMP)
    a("v_xor_b32 v4, v4, v12")
    a("v_lshlrev_b32 v4, 4, v4")
    a("v_lshl_add_u32 v3, v3, 8, v4")
    a("s_add_u32 s%d, s%d, %d", S_TMP + 1, S_TMP + 1, 2 * REG)
    a("v_add_u32 v11, s%d, v3", S_TMP + 1)
    a("v_and_b32 v3, 7, v8")
    a("v_add_u32 v4, 1, v3")
    a("s_or_b32 s%d, s%d, s%d", S_TMP, S_TB, SU)
    a("s_cmp_eq_u32 s%d, 0", S_TMP)
    a("s_cselect_b32 s%d, 8, 0", S_TMP)
    a("v_cmp_gt_u32 vcc, 8, v8")
    a("v_mov_b32 v16, s%d", S_TMP)
    a("s_mov_b64 s[56:57], vcc")
    a("v_cndmask_b32 v16, 0, v16, vcc")
    a("v_max_u32 v4, v4, v16")
    a("v_add_u32 v3, 8, v3")
    a("v_sub_u32 v3, v3, v4")
    a("v_lshlrev_b32 v16, 2, v5")
    a("v_sub_u32 v16, v16, v4")
    a("v_mov_b32 v17, 0xf149f2ca")
    for r in range(4):
        a("v_add_u32 v18, %d, v16", r)
        a("v_cmp_ge_u32 vcc, v3, v18")
        a("s_nop 1")
        a("v_cndmask_b32 v%d, v17, 0, vcc", 12 + r)
    a("s_lshl_b32 s%d, s%d, 7", S_TMP, S_TB)
    a("s_lshl_b32 s%d, s%d, 5", S_TMP + 1, SU)
    a("s_add_u32 s%d, s%d, s%d", S_TMP, S_TMP, S_TMP + 1)
    a("s_lshl_b32 s%d, s%d, 11", S_TMP, S_TMP)
    a("s_lshl_b32 s%d, s%d, 7", S_TMP + 1, S_TA)
    a("s_add_u32 s%d, s%d, s%d", S_TMP, S_TMP, S_TMP + 1)
    a("s_lshl_b32 s%d, s%d, 6", S_TMP + 1, SHD)
    a("s_add_u32 s%d, s%d, s%d", S_TMP, S_TMP, S_TMP + 1)
    a("v_lshlrev_b32 v9, 12, v8")
    a("v_lshl_add_u32 v9, v5, 4, v9")
    a("v_add_u32 v9, s%d, v9", S_TMP)
    a("s_mov_b32 s58, 0x%x", f32(32 ** -0.5))
    a("s_mov_b32 s59, 0x%x", f32(math.log2(math.e)))
    a("s_barrier")
    stamp(a, 5)
    if OPT.get("stamp"): a("s_waitcnt lgkmcnt(0)")
    def blk(p): return 24 + 48 * p
    for p in range(2):
        b = blk(p)
        a("ds_read_b128 v[%d:%d], v10 offset:%d", b, b + 3, 2048 + 128 * p)
        a("ds_read_b128 v[%d:%d], v10 offset:%d", b + 4, b + 7, REG + 128 * p)
        a("ds_read_b128 v[%d:%d], v10 offset:%d", b + 8, b + 11, REG + 2048 + 128 * p)
    for p in range(2):
        b = blk(p)
        for dt in range(2):
            for bb in range(2):
                d = b + 12 + 4 * dt + 2 * bb
                a("ds_read_b64_tr_b16 v[%d:%d], v11 offset:%d", d, d + 1, 128 * p + 2048 * bb + 8 * dt)
    a("s_waitcnt lgkmcnt(8)")
    for p in range(2):
        b = blk(p)
        a("v_mfma_f32_16x16x32_bf16 v[%d:%d], v[%d:%d], v[%d:%d], 0", b + 20, b + 23, b + 4, b + 7, b, b + 3)
        a("v_mfma_f32_16x16x32_bf16 v[%d:%d], v[%d:%d], v[%d:%d], 0", b + 24, b + 27, b + 8, b + 11, b, b + 3)
    a("s_nop 7")
    both = lambda f: [f(blk(p)) for p in range(2)]
    for p in range(2):
        b = blk(p)
        for r in range(4):
            a("v_cndmask_b32 v%d, v%d, v%d, s[56:57]", b + 20 + r, b + 24 + r, b + 20 + r)
    for p in range(2):
        b = blk(p)
        a("v_cvt_pk_bf16_f32 v%d, v%d, v%d", b + 24, b + 20, b + 21)
        a("v_cvt_pk_bf16_f32 v%d, v%d, v%d", b + 25, b + 22, b + 23)
    for p in range(2):
        b = blk(p)
        for q in range(2):
            a("v_lshlrev_b32 v%d, 16, v%d", b + 20 + 2 * q, b + 24 + q)
            a("v_and_b32 v%d, 0xffff0000, v%d", b + 21 + 2 * q, b + 24 + q)
    for p in range(2):
        b = blk(p)
        for r in range(4): a("v_mul_f32 v%d, s58, v%d", b + 20 + r, b + 20 + r)
    for p in range(2):
        b = blk(p)
        a("v_cvt_pk_bf16_f32 v%d, v%d, v%d", b + 24, b + 20, b + 21)
        a("v_cvt_pk_bf16_f32 v%d, v%d, v%d", b + 25, b + 22, b + 23)
    for p in range(2):
        b = blk(p)
        for q in range(2):
            a("v_lshlrev_b32 v%d, 16, v%d", b + 20 + 2 * q, b + 24 + q)
            a("v_and_b32 v%d, 0xffff0000, v%d", b + 21 + 2 * q, b + 24 + q)
    for p in range(2):
        b = blk(p)
        for r in range(4): a("v_fma_f32 v%d, v%d, s59, v%d", b + 20 + r, b + 20 + r, 12 + r)
    for p in range(2):
        b = blk(p)
        a("v_max3_f32 v%d, v%d, v%d, v%d", b + 24, b + 20, b + 21, b + 22)
    for p in range(2):
        b = blk(p)
        a("v_max_f32 v%d, v%d, v%d", b + 24, b + 24, b + 23)
    def xreduce(op, off):
        for sw in ("v_permlane16_swap_b32", "v_permlane32_swap_b32"):
            for p in range(2):
                b = blk(p)
                a("v_mov_b32 v%d, v%d", b + off + 1, b + off)
            a("s_nop 1")
            for p in range(2):
                b = blk(p)
                a("%s v%d, v%d", sw, b + off, b + off + 1)
            a("s_nop 0")
            for p in range(2):
                b = blk(p)
                a("%s v%d, v%d, v%d", op, b + off, b + off, b + off + 1)
    xreduce("v_max_f32", 24)
    for p in range(2):
        b = blk(p)
        for r in range(4): a("v_sub_f32 v%d, v%d, v%d", b + 20 + r, b + 20 + r, b + 24)
    for p in range(2):
        b = blk(p)
        for r in range(4): a("v_exp_f32 v%d, v%d", b + 20 + r, b + 20 + r)
    for p in range(2):
        b = blk(p)
        a("v_add_f32 v%d, v%d, v%d", b + 24, b + 20, b + 21)
        a("v_add_f32 v%d, v%d, v%d", b + 25, b + 22, b + 23)
    for p in range(2):
        b = blk(p)
        a("v_add_f32 v%d, v%d, v%d", b + 24, b + 24, b + 25)
    xreduce("v_add_f32", 24)
    for p in range(2):
        b = blk(p)
        a("v_rcp_f32 v%d, v%d", b + 24, b + 24)
    a("s_nop 0")
    for p in range(2):
        b = blk(p)
        for r in range(4): a("v_mul_f32 v%d, v%d, v%d", b + 20 + r, b + 20 + r, b + 24)
    for p in range(2):
        b = blk(p)
        a("v_cvt_pk_bf16_f32 v%d, v%d, v%d", b + 24, b + 20, b + 21)
        a("v_cvt_pk_bf16_f32 v%d, v%d, v%d", b + 25, b + 22, b + 23)
    for p in range(2):
        b = blk(p)
        a("v_cndmask_b32 v%d, 0, v%d, s[56:57]", b + 28, b + 24)
        a("v_cndmask_b32 v%d, 0, v%d, s[56:57]", b + 29, b + 25)
        a("v_cndmask_b32 v%d, v%d, 0, s[56:57]", b + 30, b + 24)
        a("v_cndmask_b32 v%d, v%d, 0, s[56:57]", b + 31, b + 25)
    a("s_waitcnt lgkmcnt(0)")
    a("s_nop 0")
    for p in range(2):
        b = blk(p)
        for dt in range(2):
            a("v_mfma_f32_16x16x32_bf16 v[%d:%d], v[%d:%d], v[%d:%d], 0", b + 32 + 4 * dt, b + 35 + 4 * dt,
              b + 12 + 4 * dt, b + 15 + 4 * dt, b + 28, b + 31)
    a("s_nop 7")
    for p in range(2):
        b = blk(p)
        for q in range(4):
            a("v_cvt_pk_bf16_f32 v%d, v%d, v%d", b + 40 + q, b + 32 + 2 * q, b + 33 + 2 * q)
        a("buffer_store_dwordx4 v[%d:%d], v9, s[16:19], 0 offen offset:%d%s", b + 40, b + 43, 2048 * p, STF())
    stamp(a, 6)
    stamp_flush(a, name, 7)
    a.label(name + "_done")
    a("s_endpgm")
    for (kn, _) in stubs:
        kernel_desc(a, kn, VTOP, 96 if OPT.get("stamp") else 64)
    return LCS + 768

def build(extra_empty=0):
    body = Asm()
    gen_pre(body, "pre_kernel")
    def pre_l1(a):
        a("s_load_dwordx2 s[6:7], s[0:1], %d", ARG["x"])
        a("s_mov_b32 s%d, 0", S_TMP + 7)
    def pre_l2(a):
        a("s_load_dwordx2 s[6:7], s[0:1], %d", ARG["ws"])
        a("s_mov_b32 s%d, 0x%x", S_TMP + 7, WS["X2"])
    lds_g1 = gen_g1(body, "g1", [("g1a_kernel", pre_l1), ("g1b_kernel", pre_l2)])

    def srd_stub(a, d):
        a("s_add_u32 s%d, s6, s%d", d, S_TMP + 7)
        a("s_addc_u32 s%d, s7, 0", d + 1)
        a("s_mov_b32 s%d, 0x%x", d + 2, ACT_BYTES)
        a("s_mov_b32 s%d, 0x20000", d + 3)
    def g2_ptrs(a, ph):
        if ph == 0:
            a("s_load_dwordx2 s[4:5], s[0:1], %d", ARG["ws"])
            a("s_load_dwordx2 s[30:31], s[0:1], %d", ARG["wo"])
        elif ph == "L":
            srd(a, 8, 30, 0, 1024 * 1024 * 2)
            srd(a, 12, 4, WS["O"], ACT_BYTES)
        else:
            srd_stub(a, 20)
            srd(a, 16, 4, WS["X1"], ACT_BYTES)
    def dec_4x8(a):
        a("s_and_b32 s%d, s2, 3", S_TMP)
        a("s_lshl_b32 s%d, s%d, 2", S_TMP, S_TMP)
        a("s_bfe_u32 s%d, s2, 0x20003", S_TMP + 1)
        a("s_add_u32 s%d, s%d, s%d", S_TB, S_TMP, S_TMP + 1)
        a("s_bfe_u32 s%d, s2, 0x10002", S_TMP)
        a("s_lshl_b32 s%d, s%d, 3", S_TMP, S_TMP)
        a("s_lshr_b32 s%d, s2, 5", S_TMP + 2)
        a("s_add_u32 s%d, s%d, s%d", S_TA, S_TMP, S_TMP + 2)
        a("s_add_u32 s%d, s%d, s%d", S_J, S_TMP + 1, S_TMP + 2)
        a("s_mov_b32 s%d, 0", S_KB)
    lds_g2 = gen_gemm(body, "g2", 256, Op("km", 64, 2048), Op("kc", 128, 2048), 1, 4, 16, 4, 2, g2_ptrs, dec_4x8,
                      "resid", "plain", 2048, stubs=[("g2a_kernel", pre_l1), ("g2b_kernel", pre_l2)])
    gen_ln3(body, "ln3_kernel")

    def g3_ptrs(a, ph):
        if ph == 0:
            a("s_load_dwordx2 s[4:5], s[0:1], %d", ARG["ws"])
            a("s_load_dwordx2 s[30:31], s[0:1], %d", ARG["w1"])
            a("s_load_dwordx2 s[6:7], s[0:1], %d", ARG["b1"])
        elif ph == "L":
            srd(a, 8, 30, 0, 2048 * 3584 * 2)
            srd(a, 12, 4, WS["H"], ACT_BYTES)
        else:
            srd(a, 20, 6, 0, 3584 * 2)
            srd(a, 16, 4, WS["U"], 1024 * 3584 * 2)
    def g3_decode(a):
        a("s_and_b32 s%d, s2, 1", S_TMP)
        a("s_lshl_b32 s%d, s%d, 2", S_TMP, S_TMP)
        a("s_bfe_u32 s%d, s2, 0x20003", S_TMP + 1)
        a("s_add_u32 s%d, s%d, s%d", S_TB, S_TMP, S_TMP + 1)
        a("s_bfe_u32 s%d, s2, 0x20001", S_TMP)
        a("s_mul_i32 s%d, s%d, 7", S_TMP, S_TMP)
        a("s_lshr_b32 s%d, s2, 5", S_TMP + 2)
        a("s_add_u32 s%d, s%d, s%d", S_TA, S_TMP, S_TMP + 2)
        a("s_add_u32 s%d, s%d, s%d", S_J, S_TMP + 1, S_TMP + 2)
        a("s_mov_b32 s%d, 0", S_KB)
    lds_g3 = gen_gemm(body, "g3_kernel", 224, Op("km", 128, 7168), Op("km", 128, 2048), 2, 2, 32, 4, 2, g3_ptrs, g3_decode,
                      "biasA", "gelu", 7168)

    def g4_ptrs(a, ph):
        if ph == 0:
            a("s_load_dwordx2 s[4:5], s[0:1], %d", ARG["ws"])
            a("s_load_dwordx2 s[30:31], s[0:1], %d", ARG["w2"])
            a("s_load_dwordx2 s[34:35], s[0:1], %d", ARG["b2"])
        elif ph == "L":
            srd(a, 8, 4, WS["U"], 1024 * 3584 * 2)
            srd(a, 12, 30, 0, 3584 * 2048 * 2)
        else:
            srd(a, 20, 4, WS["X1"], ACT_BYTES)
            srd(a, 56, 34, 0, 4096)
            srd_stub(a, 16)
            srd(a, 60, 4, WS["ST"], ST_BYTES)
    def pre_out(a):
        a("s_load_dwordx2 s[6:7], s[0:1], %d", ARG["out"])
        a("s_mov_b32 s%d, 0", S_TMP + 7)
    lds_g4 = gen_gemm(body, "g4", 256, Op("kc", 64, 7168), Op("km", 128, 4096), 1, 4, 56, OPT.get("S4", 4), 2, g4_ptrs, dec_4x8,
                      "resid+biasB", "plain", 2048, stubs=[("g4a_kernel", pre_l2), ("g4b_kernel", pre_out)], stats=True)
    if extra_empty:
        kernel_header(body, "empty_kernel")
        body("s_endpgm")
        kernel_desc(body, "empty_kernel", 8, 16)

    L = lambda k, g, b, l: "; @launch kernel=%s grid=(%d,1,1) block=(%d,1,1) lds=%d" % (k, g, b, l)
    launches = [L("pre_kernel", 256, 256, 8192)]
    for ab in "ab":
        launches += [L("g1%s_kernel" % ab, 256, 512, lds_g1), L("g2%s_kernel" % ab, 256, 512, lds_g2),
                     L("ln3_kernel", 512, 256, 0), L("g3_kernel", 224, 512, lds_g3), L("g4%s_kernel" % ab, 256, 512, lds_g4)]
    launches += [L("empty_kernel", 256, 64, 0)] * extra_empty
    head = open("/code/%s.s.ref" % NAME).read().split("; Override launch geometry")[0]
    text = head + "\n".join(launches) + "\n" + '.amdgcn_target "amdgcn-amd-amdhsa--gfx950"\n' + body.text()
    return text

if __name__ == "__main__":
    out = sys.argv[1] if len(sys.argv) > 1 else "/code/%s.s" % NAME
    extra = 0
    for o in sys.argv[2:]:
        k, _, v = o.partition("=")
        OPT[k] = int(v) if v else 1
    extra = OPT.get("empty", 0)
    text = build(extra)
    open(out, "w").write(text)
    import json
    json.dump(KID, open(out + ".kid", "w"))
    hazard.check(text)
```

```python
import sys, struct, math
from asmlib import *
import hazard

NAME = "interleave_layers__sliding_local_dilated__mixer_token_mlp__prompt"
MB = 1 << 20
WS = dict(ST=0, CS=1 * MB, O=4 * MB, X1=8 * MB, H=12 * MB, U=16 * MB, X2=24 * MB)
ST_BYTES = 16 * 2048 * 8
CS_BYTES = 16 * 3072 * 4
ARG = dict(x=0, wqkv=8, wo=16, bx=24, w1=32, b1=40, w2=48, b2=56, out=64, dbg=72, ws=80)
ACT_BYTES = 2048 * 1024 * 2

OPT = {}

def STF():
    return {0: "", 1: " sc1", 2: " nt", 3: " sc0 sc1", 4: " sc0 sc1 nt"}[OPT.get("stf", 1)]

def f32(x):
    return struct.unpack("<I", struct.pack("<f", x))[0]

STAMP_OFF = 64 * MB
KID = {}
def stamp(a, k):
    if OPT.get("stamp"):
        a("%s s[%d:%d]", "s_memtime" if OPT["stamp"] == 2 else "s_memrealtime", 64 + 2 * k, 65 + 2 * k)

def stamp_flush(a, name, n, wsreg=4, waitvm=True):
    if not OPT.get("stamp"): return
    kid = KID.setdefault(name, len(KID))
    if waitvm: a("s_waitcnt vmcnt(0)")
    a("%s s[%d:%d]", "s_memtime" if OPT["stamp"] == 2 else "s_memrealtime", 64 + 2 * n, 65 + 2 * n)
    a("s_waitcnt lgkmcnt(0)")
    a("s_add_u32 s84, s%d, 0x%x", wsreg, STAMP_OFF + kid * 512 * 1024)
    a("s_addc_u32 s85, s%d, 0", wsreg + 1)
    a("s_mov_b32 s86, 0x80000")
    a("s_mov_b32 s87, 0x20000")
    a("v_lshrrev_b32 v1, 6, v0")
    a("v_lshlrev_b32 v1, 6, v1")
    a("s_lshl_b32 s88, s2, 9")
    a("v_add_u32 v1, s88, v1")
    for k in range(n + 1):
        a("v_mov_b32 v2, s%d", 64 + 2 * k)
        a("buffer_store_dword v2, v1, s[84:87], 0 offen offset:%d", 4 * k)
        a("s_nop 1")

def srd(a, d, p, off, nbytes):
    if off:
        a("s_add_u32 s%d, s%d, 0x%x", d, p, off)
        a("s_addc_u32 s%d, s%d, 0", d + 1, p + 1)
    else:
        a("s_mov_b32 s%d, s%d", d, p)
        a("s_mov_b32 s%d, s%d", d + 1, p + 1)
    a("s_mov_b32 s%d, 0x%x", d + 2, nbytes)
    a("s_mov_b32 s%d, 0x20000", d + 3)

def wave_sum(a, v, sdst):
    for m in ("quad_perm:[1,0,3,2] row_mask:0xf bank_mask:0xf", "quad_perm:[2,3,0,1] row_mask:0xf bank_mask:0xf",
              "row_half_mirror row_mask:0xf bank_mask:0xf", "row_mirror row_mask:0xf bank_mask:0xf",
              "row_bcast:15 row_mask:0xa bank_mask:0xf", "row_bcast:31 row_mask:0xc bank_mask:0xf"):
        a("s_nop 1")
        a("v_add_f32_dpp v%d, v%d, v%d %s", v, v, v, m)
    a("s_nop 1")
    a("v_readlane_b32 s%d, v%d, 63", sdst, v)
    a("s_nop 1")

def unpack16(a, src, dst):
    for i in range(8):
        a("v_lshlrev_b32 v%d, 16, v%d", dst + 2 * i, src + i)
        a("v_and_b32 v%d, 0xffff0000, v%d", dst + 2 * i + 1, src + i)

def pack16(a, src, dst):
    for i in range(8):
        a("v_cvt_pk_bf16_f32 v%d, v%d, v%d", dst + i, src + 2 * i, src + 2 * i + 1)

def round_bf16_scalar(a, v):
    a("v_cvt_pk_bf16_f32 v%d, v%d, v%d", v, v, v)
    a("v_lshlrev_b32 v%d, 16, v%d", v, v)

def emit_ln(a, X, T, P):
    s = T + 16
    for i in range(4):
        a("v_pk_add_f32 v[%d:%d], v[%d:%d], v[%d:%d]", T + 2 * i, T + 2 * i + 1, X + 4 * i, X + 4 * i + 1, X + 4 * i + 2, X + 4 * i + 3)
    a("v_pk_add_f32 v[%d:%d], v[%d:%d], v[%d:%d]", T, T + 1, T, T + 1, T + 2, T + 3)
    a("v_pk_add_f32 v[%d:%d], v[%d:%d], v[%d:%d]", T + 4, T + 5, T + 4, T + 5, T + 6, T + 7)
    a("v_pk_add_f32 v[%d:%d], v[%d:%d], v[%d:%d]", T, T + 1, T, T + 1, T + 4, T + 5)
    a("v_add_f32 v%d, v%d, v%d", s, T, T + 1)
    wave_sum(a, s, 40)
    a("v_mov_b32 v%d, 0x%x", s + 1, f32(-1.0 / 1024))
    a("v_mul_f32 v%d, s40, v%d", s, s + 1)
    a("v_mov_b32 v%d, v%d", s + 1, s)
    for i in range(8):
        a("v_pk_add_f32 v[%d:%d], v[%d:%d], v[%d:%d]", T + 2 * i, T + 2 * i + 1, X + 2 * i, X + 2 * i + 1, s, s + 1)
    a("v_pk_mul_f32 v[%d:%d], v[%d:%d], v[%d:%d]", s + 2, s + 3, T, T + 1, T, T + 1)
    for i in range(1, 8):
        a("v_pk_fma_f32 v[%d:%d], v[%d:%d], v[%d:%d], v[%d:%d]", s + 2, s + 3, T + 2 * i, T + 2 * i + 1, T + 2 * i, T + 2 * i + 1, s + 2, s + 3)
    a("v_add_f32 v%d, v%d, v%d", s + 2, s + 2, s + 3)
    round_bf16_scalar(a, s)
    a("v_mov_b32 v%d, v%d", s + 1, s)
    wave_sum(a, s + 2, 41)
    for i in range(8):
        a("v_pk_add_f32 v[%d:%d], v[%d:%d], v[%d:%d]", T + 2 * i, T + 2 * i + 1, X + 2 * i, X + 2 * i + 1, s, s + 1)
    a("v_mov_b32 v%d, 0x%x", s + 2, f32(1.0 / 1024))
    a("v_mul_f32 v%d, s41, v%d", s + 2, s + 2)
    round_bf16_scalar(a, s + 2)
    a("v_add_f32 v%d, 0x%x, v%d", s + 2, f32(1e-5), s + 2)
    round_bf16_scalar(a, s + 2)
    a("v_sqrt_f32 v%d, v%d", s + 2, s + 2)
    pack16(a, T, P)
    round_bf16_scalar(a, s + 2)
    a("v_rcp_f32 v%d, v%d", s + 2, s + 2)
    unpack16(a, P, T)
    a("v_mov_b32 v%d, v%d", s + 3, s + 2)
    for i in range(8):
        a("v_pk_mul_f32 v[%d:%d], v[%d:%d], v[%d:%d]", T + 2 * i, T + 2 * i + 1, T + 2 * i, T + 2 * i + 1, s + 2, s + 3)
    pack16(a, T, P)

def gen_ln3(a, name):
    kernel_header(a, name)
    a("s_cmp_ge_u32 s2, 512")
    a("s_cbranch_scc1 %s_done", name)
    stamp(a, 0)
    a("s_load_dwordx2 s[4:5], s[0:1], %d", ARG["ws"])
    a("v_lshrrev_b32 v1, 6, v0")
    a("v_and_b32 v2, 63, v0")
    a("s_lshl_b32 s3, s2, 2")
    a("v_add_u32 v1, s3, v1")
    a("v_lshlrev_b32 v3, 11, v1")
    a("v_lshl_add_u32 v3, v2, 4, v3")
    a("s_waitcnt lgkmcnt(0)")
    stamp(a, 1)
    X, T, P = 16, 32, 8
    srd(a, 8, 4, WS["X1"], ACT_BYTES)
    a("buffer_load_dwordx4 v[8:11], v3, s[8:11], 0 offen")
    a("buffer_load_dwordx4 v[12:15], v3, s[8:11], 0 offen offset:1024")
    srd(a, 12, 4, WS["H"], ACT_BYTES)
    a("s_waitcnt vmcnt(0)")
    stamp(a, 2)
    unpack16(a, P, X)
    emit_ln(a, X, T, P)
    unpack16(a, P, X)
    emit_ln(a, X, T, P)
    stamp(a, 3)
    a("buffer_store_dwordx4 v[8:11], v3, s[12:15], 0 offen" + STF())
    a("buffer_store_dwordx4 v[12:15], v3, s[12:15], 0 offen offset:1024" + STF())
    stamp_flush(a, name, 4)
    a.label(name + "_done")
    a("s_endpgm")
    kernel_desc(a, name, 52, 96 if OPT.get("stamp") else 48)

PRE_GRID = 256 + 64 + 448
def gen_pre(a, name):
    kernel_header(a, name)
    a("s_cmp_ge_u32 s2, 256")
    a("s_cbranch_scc1 %s_pf", name)
    stamp(a, 0)
    a("s_load_dwordx2 s[4:5], s[0:1], %d", ARG["ws"])
    a("s_load_dwordx2 s[6:7], s[0:1], %d", ARG["x"])
    a("s_load_dwordx2 s[28:29], s[0:1], %d", ARG["wqkv"])
    a("s_lshr_b32 s24, s2, 4")
    a("s_and_b32 s25, s2, 15")
    a("v_lshrrev_b32 v1, 3, v0")
    a("v_and_b32 v2, 7, v0")
    a("v_lshlrev_b32 v3, 13, v1")
    a("v_lshl_add_u32 v3, v2, 4, v3")
    a("s_lshl_b32 s26, s24, 18")
    a("s_lshl_b32 s27, s25, 7")
    a("s_add_u32 s26, s26, s27")
    a("v_add_u32 v3, s26, v3")
    a("v_add_u32 v4, 0x1000, v3")
    a("v_mul_u32_u24 v5, 2731, v0")
    a("v_lshrrev_b32 v5, 16, v5")
    a("v_mul_u32_u24 v6, 24, v5")
    a("v_sub_u32 v6, v0, v6")
    a("v_min_u32 v5, 7, v5")
    a("s_mov_b32 s30, %d", 8 * 6144)
    a("v_mul_lo_u32 v7, v5, s30")
    a("v_lshrrev_b32 v8, 3, v6")
    a("v_lshl_add_u32 v7, v8, 11, v7")
    a("v_and_b32 v8, 7, v6")
    a("v_lshl_add_u32 v7, v8, 4, v7")
    a("s_mul_i32 s30, s24, %d", 64 * 6144)
    a("s_add_u32 s30, s30, s27")
    a("v_add_u32 v7, s30, v7")
    a("s_waitcnt lgkmcnt(0)")
    stamp(a, 1)
    srd(a, 8, 6, 0, ACT_BYTES)
    srd(a, 12, 28, 0, 1024 * 3072 * 2)
    for q in range(4):
        a("buffer_load_dwordx4 v[%d:%d], v%d, s[8:11], 0 offen offset:%d", 16 + 4 * q, 19 + 4 * q, 3 + (q >> 1), (q & 1) * 2048)
    for i in range(8):
        a("s_mov_b32 s31, %d", i * 6144)
        a("buffer_load_dwordx4 v[%d:%d], v7, s[12:15], s31 offen", 32 + 4 * i, 35 + 4 * i)
    srd(a, 16, 4, WS["ST"], ST_BYTES)
    srd(a, 20, 4, WS["CS"], CS_BYTES)
    a("v_mov_b32 v9, 0x3f803f80")
    for k in range(8): a("v_mov_b32 v%d, 0", 64 + k)
    a("s_waitcnt vmcnt(8)")
    stamp(a, 2)
    for e in range(4):
        for q in range(4):
            a("v_dot2_f32_bf16 v%d, v%d, v9, v%d", 64 + 2 * q, 16 + 4 * q + e, 64 + 2 * q)
            a("v_dot2_f32_bf16 v%d, v%d, v%d, v%d", 65 + 2 * q, 16 + 4 * q + e, 16 + 4 * q + e, 65 + 2 * q)
    a("s_nop 2")
    for m in ("quad_perm:[1,0,3,2]", "quad_perm:[2,3,0,1]", "row_half_mirror"):
        for k in range(8):
            a("v_add_f32_dpp v%d, v%d, v%d %s row_mask:0xf bank_mask:0xf", 64 + k, 64 + k, 64 + k, m)
    a("v_lshlrev_b32 v10, 5, v1")
    a("s_lshl_b32 s30, s25, 14")
    a("s_lshl_b32 s31, s24, 10")
    a("s_add_u32 s30, s30, s31")
    a("v_add_u32 v10, s30, v10")
    a("v_cmp_eq_u32 vcc, 0, v2")
    a("s_and_saveexec_b64 s[34:35], vcc")
    a("buffer_store_dwordx4 v[64:67], v10, s[16:19], 0 offen" + STF())
    a("buffer_store_dwordx4 v[68:71], v10, s[16:19], 0 offen offset:16" + STF())
    a("s_mov_b64 exec, s[34:35]")
    for i in range(8):
        a("s_waitcnt vmcnt(%d)", 2 + 7 - i)
        dst = 72 if i == 0 else 80
        for e in range(4):
            a("v_lshlrev_b32 v%d, 16, v%d", dst + 2 * e, 32 + 4 * i + e)
            a("v_and_b32 v%d, 0xffff0000, v%d", dst + 2 * e + 1, 32 + 4 * i + e)
        if i:
            for e in range(4):
                a("v_pk_add_f32 v[%d:%d], v[%d:%d], v[%d:%d]", 72 + 2 * e, 73 + 2 * e, 72 + 2 * e, 73 + 2 * e, 80 + 2 * e, 81 + 2 * e)
    a("v_lshlrev_b32 v11, 5, v0")
    a("ds_write_b128 v11, v[72:75]")
    a("ds_write_b128 v11, v[76:79] offset:16")
    a("v_lshlrev_b32 v11, 2, v0")
    a("s_waitcnt lgkmcnt(0)")
    a("s_barrier")
    for rg in range(8):
        a("ds_read_b32 v%d, v11 offset:%d", 80 + rg, rg * 768)
    a("v_lshrrev_b32 v12, 6, v0")
    a("v_lshlrev_b32 v12, 12, v12")
    a("v_and_b32 v13, 63, v0")
    a("v_lshl_add_u32 v12, v13, 2, v12")
    a("s_mul_i32 s30, s24, %d", 3072 * 4)
    a("s_lshl_b32 s31, s25, 8")
    a("s_add_u32 s30, s30, s31")
    a("v_add_u32 v12, s30, v12")
    a("s_waitcnt lgkmcnt(0)")
    for st in (4, 2, 1):
        for k in range(st):
            a("v_add_f32 v%d, v%d, v%d", 80 + k, 80 + k, 80 + k + st)
    a("v_cmp_gt_u32 vcc, 192, v0")
    a("s_and_saveexec_b64 s[34:35], vcc")
    a("s_cbranch_execz %s_skip", name)
    a("buffer_store_dword v80, v12, s[20:23], 0 offen" + STF())
    a.label(name + "_skip")
    a("s_mov_b64 exec, s[34:35]")
    stamp(a, 3)
    stamp_flush(a, name, 4)
    a.label(name + "_done")
    a("s_endpgm")
    a.label(name + "_pf")
    a("s_cmp_ge_u32 s2, %d", PRE_GRID)
    a("s_cbranch_scc1 %s_done", name)
    a("s_load_dwordx2 s[4:5], s[0:1], %d", ARG["wo"])
    a("s_load_dwordx2 s[6:7], s[0:1], %d", ARG["w1"])
    a("s_sub_u32 s3, s2, 256")
    a("v_lshlrev_b32 v1, 4, v0")
    a("s_cmp_lt_u32 s3, 64")
    a("s_waitcnt lgkmcnt(0)")
    a("s_cselect_b32 s8, s4, s6")
    a("s_cselect_b32 s9, s5, s7")
    a("s_mov_b32 s12, 0x%x", 1024 * 1024 * 2)
    a("s_mov_b32 s13, 0x%x", 2048 * 3584 * 2)
    a("s_cselect_b32 s10, s12, s13")
    a("s_mov_b32 s11, 0x20000")
    a("s_cselect_b32 s12, 0, 64")
    a("s_sub_u32 s3, s3, s12")
    a("s_lshl_b32 s3, s3, 15")
    for k in range(8):
        a("buffer_load_dwordx4 v[4:7], v1, s[8:11], s3 offen")
        a("s_add_u32 s3, s3, 4096")
    if OPT.get("pfwait"): a("s_waitcnt vmcnt(0)")
    a("s_endpgm")
    kernel_desc(a, name, 88, 96 if OPT.get("stamp") else 48)

class Op:
    def __init__(self, kind, T, ld):
        self.kind, self.T, self.ld = kind, T, ld
        self.bytes = T * 128
        self.n = self.bytes // 1024
        self.npw = self.n // 4
        self.kadv = 128 if kind == "kc" else 64 * ld

S_TA, S_TB, S_KB, S_J, S_W = 24, 25, 26, 27, 28
S_T, S_SLOT, S_OFA, S_OFB = 32, 33, 34, 35
S_LA, S_LB, S_M0A, S_M0B = 36, 37, 38, 39
S_TMP = 40
S_CNT, S_DELTA, S_SI = 48, 49, 50
S_ST = 52
S_DP, S_DN = 51, 29

def loader_voffs(a, op, stile, vb, extra_cols=0):
    ld = op.ld
    a("s_mov_b32 s%d, %d", S_TMP, ld)
    if op.kind == "kc":
        a("v_lshrrev_b32 v3, 3, v2")
        a("v_mul_lo_u32 v3, v3, s%d", S_TMP)
        a("v_lshrrev_b32 v4, 4, v2")
        a("v_xor_b32 v4, v4, v2")
        a("v_and_b32 v4, 7, v4")
        a("v_lshl_add_u32 v3, v4, 4, v3")
        a("s_mul_i32 s%d, s%d, %d", S_TMP + 1, stile, op.T * ld)
        a("s_mul_i32 s%d, s%d, %d", S_TMP + 2, S_W, 8 * op.npw * ld)
        a("s_add_u32 s%d, s%d, s%d", S_TMP + 1, S_TMP + 1, S_TMP + 2)
        a("v_xor_b32 v4, 64, v3")
        for i in range(op.npw):
            a("s_add_u32 s%d, s%d, %d", S_TMP + 2, S_TMP + 1, i * 8 * ld)
            a("v_add_u32 v%d, s%d, v%d", vb + i, S_TMP + 2, 3 + (i & 1))
    elif op.T == 128:
        a("v_lshrrev_b32 v4, 4, v2")
        a("v_mul_lo_u32 v3, v4, s%d", S_TMP)
        a("v_lshlrev_b32 v4, 1, v4")
        a("v_xor_b32 v4, v4, v2")
        a("v_and_b32 v4, 15, v4")
        a("v_lshl_add_u32 v3, v4, 4, v3")
        a("s_mul_i32 s%d, s%d, 256", S_TMP + 1, stile)
        a("s_mul_i32 s%d, s%d, %d", S_TMP + 2, S_W, 16 * ld)
        a("s_add_u32 s%d, s%d, s%d", S_TMP + 1, S_TMP + 1, S_TMP + 2)
        a("v_xor_b32 v4, 128, v3")
        for i in range(4):
            a("s_add_u32 s%d, s%d, %d", S_TMP + 2, S_TMP + 1, i * 4 * ld)
            a("v_add_u32 v%d, s%d, v%d", vb + i, S_TMP + 2, 3 + (i >> 1))
    elif op.T == 64:
        a("v_lshrrev_b32 v3, 3, v2")
        a("v_mul_lo_u32 v3, v3, s%d", S_TMP)
        a("v_bfe_u32 v4, v2, 4, 1")
        a("v_lshlrev_b32 v4, 1, v4")
        a("v_xor_b32 v4, v4, v2")
        a("v_and_b32 v4, 7, v4")
        a("v_lshl_add_u32 v3, v4, 4, v3")
        a("s_mul_i32 s%d, s%d, 128", S_TMP + 1, stile)
        a("s_mul_i32 s%d, s%d, %d", S_TMP + 2, S_W, 16 * ld)
        a("s_add_u32 s%d, s%d, s%d", S_TMP + 1, S_TMP + 1, S_TMP + 2)
        a("v_xor_b32 v4, 64, v3")
        for i in range(2):
            a("s_add_u32 s%d, s%d, %d", S_TMP + 2, S_TMP + 1, i * 8 * ld + extra_cols * 2)
            a("v_add_u32 v%d, s%d, v%d", vb + i, S_TMP + 2, 3 + i)
    else:
        raise ValueError

def lane_parts(a):
    a("v_lshrrev_b32 v5, 4, v2")
    a("v_bfe_u32 v6, v2, 2, 2")
    a("v_and_b32 v7, 3, v2")
    a("v_and_b32 v8, 15, v2")

def read_addrs_kc(a, opbase, srow, vb):
    a("v_lshrrev_b32 v3, 1, v8")
    a("v_xor_b32 v3, v3, v5")
    a("v_lshlrev_b32 v3, 4, v3")
    a("v_lshl_add_u32 v3, v8, 7, v3")
    if srow is not None:
        a("s_lshl_b32 s%d, s%d, 7", S_TMP, srow)
        a("s_add_u32 s%d, s%d, %d", S_TMP, S_TMP, opbase)
        a("v_add_u32 v%d, s%d, v3", vb, S_TMP)
    else:
        a("v_add_u32 v%d, %d, v3", vb, opbase)
    a("v_xor_b32 v%d, 64, v%d", vb + 1, vb)

def read_addr_km(a, T, sbase, stile, i, vd):
    rowb = T * 2
    if T == 128:
        a("v_and_b32 v3, 1, v5")
        a("v_lshl_or_b32 v3, v3, 2, v6")
    else:
        a("v_and_b32 v3, 1, v5")
        a("v_lshlrev_b32 v3, 1, v3")
        a("v_lshrrev_b32 v4, 1, v6")
        a("v_or_b32 v3, v3, v4")
    a("s_add_u32 s%d, s%d, %d", S_TMP, stile, i)
    a("v_xor_b32 v3, s%d, v3", S_TMP)
    a("v_lshlrev_b32 v3, 5, v3")
    a("v_lshl_add_u32 v3, v7, 3, v3")
    a("v_lshl_add_u32 v4, v5, 3, v6")
    a("v_lshl_add_u32 v3, v4, %d, v3", rowb.bit_length() - 1)
    a("v_add_u32 v%d, s%d, v3", vd, sbase)

def frag_reads(kind, T, addr_regs, idx, ks, dst):
    if kind == "kc":
        return ["ds_read_b128 v[%d:%d], v%d offset:%d" % (dst, dst + 3, addr_regs[ks], idx * 2048)]
    rowb = T * 2
    return ["ds_read_b64_tr_b16 v[%d:%d], v%d offset:%d" % (dst + 2 * h, dst + 2 * h + 1, addr_regs[idx], h * 4 * rowb + ks * 32 * rowb)
            for h in range(2)]

def interleave(a, mfmas, reads, tail=()):
    reads = list(reads); tail = list(tail)
    if OPT.get("noreads"): reads = []
    if OPT.get("nomfma"): mfmas = ["s_nop 0"] * 2
    for m in mfmas:
        a(m)
        budget = 2
        while reads and budget > 0:
            cost = 2 if "b128" in reads[0] else 1
            if cost > budget: break
            a(reads.pop(0)); budget -= cost
        if not reads:
            while tail and budget > 0:
                a(tail.pop(0)); budget -= 1
    for r in reads: a(r)
    for t in tail: a(t)

def loader_loop(a, name, issue, n_per_wave, N, S, stage_bytes, events=(), tail=None):
    a("s_mov_b32 s%d, 0", S_T)
    a("s_mov_b32 s%d, 0", S_SLOT)
    a.label(name + "_ld_loop")
    a("s_cmp_lt_u32 s%d, %d", S_T, S - 1)
    a("s_cbranch_scc1 %s_ld_issue", name)
    opnd = lambda at: str(at[1]) if isinstance(at, tuple) else "s%d" % at
    for k, (at, extra, fn) in enumerate(events):
        if extra:
            a("s_sub_u32 s%d, s%d, %s", S_TMP, S_T, opnd(at))
            a("s_sub_u32 s%d, s%d, 1", S_TMP, S_TMP)
            a("s_cmp_lt_u32 s%d, %d", S_TMP, S - 1)
            a("s_cbranch_scc1 %s_ld_w%d", name, k)
    a("s_waitcnt vmcnt(%d)", (S - 2) * n_per_wave)
    a.label(name + "_ld_bar")
    a("s_barrier")
    a.label(name + "_ld_issue")
    if not OPT.get("noload"): issue()
    for k, (at, extra, fn) in enumerate(events):
        a("s_cmp_eq_u32 s%d, %s", S_T, opnd(at))
        a("s_cbranch_scc1 %s_ld_h%d", name, k)
        a.label(name + "_ld_c%d" % k)
    a("s_add_u32 s%d, s%d, %d", S_SLOT, S_SLOT, stage_bytes)
    a("s_cmp_eq_u32 s%d, %d", S_SLOT, S * stage_bytes)
    a("s_cselect_b32 s%d, 0, s%d", S_SLOT, S_SLOT)
    a("s_add_u32 s%d, s%d, 1", S_T, S_T)
    a("s_cmp_lt_u32 s%d, %d", S_T, N)
    a("s_cbranch_scc1 %s_ld_loop", name)
    if tail: tail()
    else:
        for t in range(N - S + 1, N):
            a("s_waitcnt vmcnt(%d)", (N - 1 - t) * n_per_wave)
            a("s_barrier")
    if events:
        a("s_branch %s_ld_end", name)
        for k, (at, extra, fn) in enumerate(events):
            if extra:
                a.label(name + "_ld_w%d" % k)
                a("s_waitcnt vmcnt(%d)", (S - 2) * n_per_wave + extra)
                a("s_branch %s_ld_bar", name)
            a.label(name + "_ld_h%d" % k)
            fn()
            a("s_branch %s_ld_c%d", name, k)
        a.label(name + "_ld_end")

def kidx_offsets(a, W, advA, advB, wrap=0):
    a("s_add_u32 s%d, s%d, s%d", S_TMP, S_T, S_J)
    a("s_and_b32 s%d, s%d, %d", S_TMP, S_TMP, W - 1)
    a("s_andn2_b32 s%d, s%d, %d", S_TMP + 1, S_T, W - 1)
    a("s_or_b32 s%d, s%d, s%d", S_TMP, S_TMP, S_TMP + 1)
    a("s_add_u32 s%d, s%d, s%d", S_TMP, S_TMP, S_KB)
    if wrap: a("s_and_b32 s%d, s%d, %d", S_TMP, S_TMP, wrap - 1)
    a("s_mul_i32 s%d, s%d, %d", S_OFA, S_TMP, advA)
    a("s_mul_i32 s%d, s%d, %d", S_OFB, S_TMP, advB)

def compute_loop_ctl_init(a, N, S, stage_bytes):
    a("s_mov_b32 s%d, %d", S_CNT, N)
    a("s_mov_b32 s%d, 0", S_SI)
    a("s_mov_b32 s%d, %d", S_DP, stage_bytes)
    a("s_mov_b32 s%d, 0x%x", S_DN, (-(S - 1) * stage_bytes) & 0xffffffff)

def addr_update(addr_regs, S, stage_bytes):
    L = ["s_add_u32 s%d, s%d, 1" % (S_SI, S_SI),
         "s_cmp_eq_u32 s%d, %d" % (S_SI, S),
         "s_cselect_b32 s%d, s%d, s%d" % (S_DELTA, S_DN, S_DP),
         "s_cselect_b32 s%d, 0, s%d" % (S_SI, S_SI)]
    L += ["v_add_u32 v%d, s%d, v%d" % (r, S_DELTA, r) for r in addr_regs]
    L += ["s_sub_u32 s%d, s%d, 1" % (S_CNT, S_CNT), "s_cmp_lg_u32 s%d, 0" % S_CNT]
    return L

def gelu_pairs(a, regs, tmp, cst):
    n = len(regs)
    pr = lambda r: "v[%d:%d]" % (r, r + 1)
    for k, r in enumerate(regs): a("v_pk_mul_f32 %s, %s, %s", pr(tmp + 2 * k), pr(r), pr(r))
    for k, r in enumerate(regs): a("v_pk_fma_f32 %s, %s, %s, %s", pr(tmp + 2 * k), pr(tmp + 2 * k), pr(cst), pr(cst + 2))
    for k, r in enumerate(regs): a("v_pk_mul_f32 %s, %s, %s", pr(tmp + 2 * k), pr(tmp + 2 * k), pr(r))
    for k in range(2 * n): a("v_exp_f32 v%d, v%d", tmp + k, tmp + k)
    for k, r in enumerate(regs): a("v_pk_add_f32 %s, %s, %s", pr(tmp + 2 * k), pr(tmp + 2 * k), pr(cst + 4))
    for k in range(2 * n): a("v_rcp_f32 v%d, v%d", tmp + k, tmp + k)
    for k, r in enumerate(regs): a("v_pk_mul_f32 %s, %s, %s", pr(r), pr(r), pr(tmp + 2 * k))

def cloop(a, name, mf, rd, addrs, S, stage):
    stamp(a, 2)
    if OPT.get("stamp"):
        a("s_barrier")
        stamp(a, 3)
        a("s_waitcnt lgkmcnt(0)")
        a("s_branch %s_cloop2", name)
    a.raw(".p2align 3")
    a.label(name + "_cloop")
    a("s_barrier")
    a.label(name + "_cloop2")
    interleave(a, mf(1), rd(0, 0))
    a("s_waitcnt lgkmcnt(0)")
    interleave(a, mf(0), rd(1, 1), addr_update(addrs, S, stage))
    a("s_waitcnt lgkmcnt(0)")
    a("s_cbranch_scc1 %s_cloop", name)
    for m in mf(1): a(m)
    stamp(a, 4)

def entry(a, name, stubs, ntiles, spare=False):
    if stubs:
        for (kn, pre) in stubs:
            kernel_header(a, kn)
            pre(a)
            a("s_branch %s_body", name)
        a.raw(".p2align 6")
        a.label(name + "_body")
    else:
        kernel_header(a, name)
    a("s_cmp_ge_u32 s2, %d", ntiles)
    a("s_cbranch_scc1 %s_%s", name, "spare" if spare else "done")
    stamp(a, 0)

def gen_gemm(a, name, ntiles, A, B, WA, WB, N, S, W, ptrs, decode, init, epi, ldc, stubs=None, stats=False, spare=None):
    na, nb = A.T // (16 * WA), B.T // (16 * WB)
    stage = A.bytes + B.bytes
    baseA, baseB = 0, A.bytes
    names = [name] if not stubs else [s[0] for s in stubs]
    entry(a, name, stubs, ntiles, spare is not None)
    ptrs(a, 0)
    a("v_lshrrev_b32 v1, 6, v0")
    a("v_and_b32 v2, 63, v0")
    decode(a)
    a("v_readfirstlane_b32 s%d, v1", S_W)
    a("s_nop 0")
    a("s_cmp_lt_u32 s%d, 4", S_W)
    a("s_cbranch_scc1 %s_compute", name)

    if OPT.get("ldprio"): a("s_setprio %d", OPT["ldprio"])
    a("s_sub_u32 s%d, s%d, 4", S_W, S_W)
    loader_voffs(a, A, S_TA, 10)
    loader_voffs(a, B, S_TB, 10 + A.npw)
    a("s_mul_i32 s%d, s%d, %d", S_LA, S_W, A.npw * 1024)
    a("s_mul_i32 s%d, s%d, %d", S_LB, S_W, B.npw * 1024)
    a("s_add_u32 s%d, s%d, %d", S_LB, S_LB, baseB)
    a("s_waitcnt lgkmcnt(0)")
    ptrs(a, "L")
    def issue():
        kidx_offsets(a, W, A.kadv, B.kadv)
        a("s_add_u32 s%d, s%d, s%d", S_M0A, S_SLOT, S_LA)
        a("s_add_u32 s%d, s%d, s%d", S_M0B, S_SLOT, S_LB)
        for (op, vb, sm, so, sr) in ((A, 10, S_M0A, S_OFA, 8), (B, 10 + A.npw, S_M0B, S_OFB, 12)):
            for i in range(op.npw):
                a("s_add_u32 m0, s%d, %d", sm, i * 1024)
                a("s_nop 0")
                a("buffer_load_dwordx4 v%d, s[%d:%d], s%d offen lds", vb + i, sr, sr + 3, so)
    loader_loop(a, name, issue, A.npw + B.npw, N, S, stage)
    a.label(name + "_done")
    a("s_endpgm")

    a.label(name + "_compute")
    ACC = 24
    nacc = na * nb * 4
    FR = ACC + nacc
    fset = (na + nb) * 4
    fA = lambda st, i: FR + st * fset + 4 * i
    fB = lambda st, j: FR + st * fset + 4 * na + 4 * j
    acc = lambda i, j: ACC + 4 * (i * nb + j)
    VTOP = FR + 2 * fset
    lane_parts(a)
    SWA, SWB = S_TMP + 4, S_TMP + 5
    a("s_and_b32 s%d, s%d, %d", SWA, S_W, WA - 1)
    a("s_lshr_b32 s%d, s%d, %d", SWB, S_W, WA.bit_length() - 1)
    a("s_mul_i32 s%d, s%d, %d", S_TMP, S_TB, B.T)
    a("s_mul_i32 s%d, s%d, %d", S_TMP + 1, SWB, nb * 16)
    a("s_add_u32 s%d, s%d, s%d", S_TMP, S_TMP, S_TMP + 1)
    a("v_add_u32 v20, s%d, v8", S_TMP)
    a("s_mov_b32 s%d, %d", S_TMP + 1, ldc)
    a("v_mul_lo_u32 v9, v20, s%d", S_TMP + 1)
    a("s_mul_i32 s%d, s%d, %d", S_TMP, S_TA, A.T * 2)
    a("s_mul_i32 s%d, s%d, %d", S_TMP + 1, SWA, na * 32)
    a("s_add_u32 s%d, s%d, s%d", S_TMP + 6, S_TMP, S_TMP + 1)
    a("v_and_b32 v3, 1, v5")
    a("v_lshlrev_b32 v3, 5, v3")
    a("v_lshrrev_b32 v4, 1, v5")
    a("v_lshl_add_u32 v3, v4, 4, v3")
    a("v_add3_u32 v9, v9, v3, s%d", S_TMP + 6)
    for j in range(nb):
        a("s_mov_b32 s%d, %d", S_ST + j, j * 16 * ldc)
    a("s_waitcnt lgkmcnt(0)")
    stamp(a, 1)
    ptrs(a, "C")
    if init in ("resid", "resid+biasB"):
        for j in range(nb):
            for p in range(na // 2):
                d = FR + 4 * (j * (na // 2) + p)
                a("buffer_load_dwordx4 v[%d:%d], v9, s[20:23], s%d offen offset:%d", d, d + 3, S_ST + j, p * 64)
        if init == "resid+biasB":
            a("v_lshlrev_b32 v3, 1, v20")
            for j in range(nb):
                a("buffer_load_ushort v%d, v3, s[56:59], 0 offen offset:%d", 22 + j, j * 32)
    elif init == "biasA":
        a("v_lshl_add_u32 v3, v5, 3, s%d", S_TMP + 6)
        for i in range(na):
            a("buffer_load_dwordx2 v[%d:%d], v3, s[20:23], 0 offen offset:%d", FR + 2 * i, FR + 2 * i + 1, i * 32)
    AR = 10
    def mk_addrs(op, base, swave, n, vb):
        if op.kind == "kc":
            a("s_mul_i32 s%d, s%d, %d", S_TMP + 2, swave, n * 16)
            read_addrs_kc(a, base, S_TMP + 2, vb)
            return [vb, vb + 1]
        a("s_mul_i32 s%d, s%d, %d", S_TMP + 2, swave, n)
        a("s_mov_b32 s%d, %d", S_TMP + 3, base)
        for i in range(n):
            read_addr_km(a, op.T, S_TMP + 3, S_TMP + 2, i, vb + i)
        return [vb + i for i in range(n)]
    adA = mk_addrs(A, baseA, SWA, na, AR)
    adB = mk_addrs(B, baseB, SWB, nb, AR + len(adA))
    assert AR + len(adA) + len(adB) <= 20
    for r in range(fset): a("v_mov_b32 v%d, 0", FR + fset + r)
    compute_loop_ctl_init(a, N, S, stage)
    if init == "zero":
        for r in range(nacc): a("v_mov_b32 v%d, 0", ACC + r)
    elif init in ("resid", "resid+biasB"):
        a("s_waitcnt vmcnt(0)")
        for j in range(nb):
            for p in range(na // 2):
                d = FR + 4 * (j * (na // 2) + p)
                a("v_permlane16_swap_b32 v%d, v%d", d, d + 2)
                a("v_permlane16_swap_b32 v%d, v%d", d + 1, d + 3)
        if init == "resid+biasB":
            for j in range(nb): a("v_lshlrev_b32 v%d, 16, v%d", 22 + j, 22 + j)
        for j in range(nb):
            for p in range(na // 2):
                d = FR + 4 * (j * (na // 2) + p)
                for h in range(2):
                    c = acc(2 * p + h, j)
                    for q in range(2):
                        a("v_lshlrev_b32 v%d, 16, v%d", c + 2 * q, d + 2 * h + q)
                        a("v_and_b32 v%d, 0xffff0000, v%d", c + 2 * q + 1, d + 2 * h + q)
                    if init == "resid+biasB":
                        for r in range(4): a("v_add_f32 v%d, v%d, v%d", c + r, c + r, 22 + j)
    elif init == "biasA":
        a("s_waitcnt vmcnt(0)")
        for i in range(na):
            for j in range(nb):
                c = acc(i, j)
                for q in range(2):
                    a("v_lshlrev_b32 v%d, 16, v%d", c + 2 * q, FR + 2 * i + q)
                    a("v_and_b32 v%d, 0xffff0000, v%d", c + 2 * q + 1, FR + 2 * i + q)
    if OPT.get("cprio"): a("s_setprio %d", OPT["cprio"])
    def mf(st):
        return ["v_mfma_f32_16x16x32_bf16 v[%d:%d], v[%d:%d], v[%d:%d], v[%d:%d]" %
                (acc(i, j), acc(i, j) + 3, fA(st, i), fA(st, i) + 3, fB(st, j), fB(st, j) + 3, acc(i, j), acc(i, j) + 3)
                for i in range(na) for j in range(nb)]
    def rd(st, ks):
        L = []
        L += frag_reads(A.kind, A.T, adA, 0, ks, fA(st, 0))
        for j in range(nb): L += frag_reads(B.kind, B.T, adB, j, ks, fB(st, j))
        for i in range(1, na): L += frag_reads(A.kind, A.T, adA, i, ks, fA(st, i))
        return L
    cloop(a, name, mf, rd, adA + adB, S, stage)
    TMPV = FR
    if epi == "gelu":
        c1 = -2.0 * math.log2(math.e) * math.sqrt(2.0 / math.pi) * 0.044715
        c0 = -2.0 * math.log2(math.e) * math.sqrt(2.0 / math.pi)
        for k, v in enumerate((c1, c1, c0, c0, 1.0, 1.0)):
            a("v_mov_b32 v%d, 0x%x", AR + k, f32(v))
    a("s_nop 7")
    k = 0
    for j in range(nb):
        for p in range(na // 2):
            c0_, c1_ = acc(2 * p, j), acc(2 * p + 1, j)
            if epi == "gelu":
                gelu_pairs(a, [c0_, c0_ + 2, c1_, c1_ + 2], TMPV + 16, AR)
            d = TMPV + 4 * (k & 3); k += 1
            a("v_cvt_pk_bf16_f32 v%d, v%d, v%d", d, c0_, c0_ + 1)
            a("v_cvt_pk_bf16_f32 v%d, v%d, v%d", d + 1, c0_ + 2, c0_ + 3)
            a("v_cvt_pk_bf16_f32 v%d, v%d, v%d", d + 2, c1_, c1_ + 1)
            a("v_cvt_pk_bf16_f32 v%d, v%d, v%d", d + 3, c1_ + 2, c1_ + 3)
            a("s_nop 1")
            a("v_permlane16_swap_b32 v%d, v%d", d, d + 2)
            a("v_permlane16_swap_b32 v%d, v%d", d + 1, d + 3)
            a("buffer_store_dwordx4 v[%d:%d], v9, s[16:19], s%d offen offset:%d%s", d, d + 3, S_ST + j, p * 64, STF())
    if stats:
        assert nb == 2 and WA == 1
        pr = lambda r: "v[%d:%d]" % (r, r + 1)
        SV = AR
        for j in range(nb):
            prs = [acc(i, j) + 2 * q for i in range(na) for q in range(2)]
            a("v_pk_add_f32 %s, %s, %s", pr(SV + 4 * j), pr(prs[0]), pr(prs[1]))
            a("v_pk_mul_f32 %s, %s, %s", pr(SV + 4 * j + 2), pr(prs[0]), pr(prs[0]))
            for x in prs[1:]:
                if x != prs[1]: a("v_pk_add_f32 %s, %s, %s", pr(SV + 4 * j), pr(SV + 4 * j), pr(x))
                a("v_pk_fma_f32 %s, %s, %s, %s", pr(SV + 4 * j + 2), pr(x), pr(x), pr(SV + 4 * j + 2))
        for j in range(nb):
            a("v_add_f32 v%d, v%d, v%d", SV + 4 * j, SV + 4 * j, SV + 4 * j + 1)
            a("v_add_f32 v%d, v%d, v%d", SV + 4 * j + 1, SV + 4 * j + 2, SV + 4 * j + 3)
        a("s_nop 1")
        a("v_permlane16_swap_b32 v10, v14")
        a("v_permlane16_swap_b32 v11, v15")
        a("v_pk_add_f32 v[10:11], v[10:11], v[14:15]")
        a("v_mov_b32 v12, v10")
        a("v_mov_b32 v13, v11")
        a("s_nop 1")
        a("v_permlane32_swap_b32 v10, v12")
        a("v_permlane32_swap_b32 v11, v13")
        a("v_pk_add_f32 v[10:11], v[10:11], v[12:13]")
        a("v_and_b32 v3, 16, v2")
        a("v_add_u32 v3, v3, v20")
        a("v_lshlrev_b32 v3, 3, v3")
        a("s_lshl_b32 s%d, s%d, 14", S_TMP, S_TA)
        a("s_mov_b32 exec_hi, 0")
        a("buffer_store_dwordx2 v[10:11], v3, s[60:63], s%d offen%s", S_TMP, STF())
        a("s_mov_b32 exec_hi, -1")
    stamp(a, 5)
    stamp_flush(a, name, 6)
    a("s_endpgm")
    if spare:
        a.label(name + "_spare")
        spare(a)
    for kn in names:
        kernel_desc(a, kn, VTOP, 96 if OPT.get('stamp') else 72)
    return stage * S

def gen_g1(a, name, stubs, W=2):
    N, S = 16, 3
    PW = Op("km", 64, 6144)
    XB = 3 * 8192
    stage = XB + 144 * 128
    E = stage
    REG = 144 * 128
    LST = S * stage
    LCS = LST + 1280
    S_SIG, S_DIST, S_H1, S_H2, S_H3 = 52, 53, 54, 55, 29
    KG = OPT.get("KG", 12)
    entry(a, name, stubs, 256)
    a("s_load_dwordx2 s[4:5], s[0:1], %d", ARG["ws"])
    a("s_load_dwordx2 s[30:31], s[0:1], %d", ARG["wqkv"])
    a("s_load_dwordx2 s[16:17], s[0:1], %d", ARG["dbg"])
    a("s_load_dwordx2 s[18:19], s[0:1], %d", ARG["wo"])
    a("v_lshrrev_b32 v1, 6, v0")
    a("v_and_b32 v2, 63, v0")
    a("s_and_b32 s%d, s2, 1", S_TMP)
    a("s_lshl_b32 s%d, s%d, 3", S_TMP, S_TMP)
    a("s_bfe_u32 s%d, s2, 0x30003", S_TMP + 1)
    a("s_add_u32 s%d, s%d, s%d", S_TB, S_TMP, S_TMP + 1)
    a("s_bfe_u32 s%d, s2, 0x20001", S_TMP)
    a("s_lshl_b32 s%d, s%d, 2", S_TMP, S_TMP)
    a("s_lshr_b32 s%d, s2, 6", S_TMP + 2)
    a("s_add_u32 s%d, s%d, s%d", S_TA, S_TMP, S_TMP + 2)
    a("s_add_u32 s%d, s%d, s%d", S_J, S_TMP + 1, S_TMP + 2)
    a("s_add_u32 s%d, s%d, s%d", S_SIG, S_TA, S_TB)
    a("s_and_b32 s%d, s%d, 15", S_SIG, S_SIG)
    a("s_and_b32 s%d, s%d, %d", S_KB, S_SIG, KG)
    a("s_mul_i32 s%d, s%d, s%d", S_KB, S_KB, S_DIST)
    a("v_readfirstlane_b32 s%d, v1", S_W)
    lane_parts(a)
    a("s_cmp_lt_u32 s%d, 4", S_W)
    a("s_cbranch_scc1 %s_compute", name)

    if OPT.get("ldprio"): a("s_setprio %d", OPT["ldprio"])
    a("s_sub_u32 s%d, s%d, 4", S_W, S_W)
    XO = Op("kc", 128, 2048)
    loader_voffs(a, XO, S_TB, 16)
    for p in range(3):
        loader_voffs(a, PW, S_TA, 10 + 2 * p, extra_cols=1024 * p)
    a("v_lshrrev_b32 v3, 3, v2")
    a("s_lshl_b32 s%d, s%d, 2", S_TMP, S_W)
    a("v_add_u32 v3, s%d, v3", S_TMP)
    a("v_lshrrev_b32 v4, 1, v3")
    a("v_xor_b32 v4, v4, v2")
    a("v_and_b32 v4, 7, v4")
    a("s_lshl_b32 s%d, s%d, 7", S_TMP, S_TB)
    a("s_sub_u32 s%d, s%d, 16", S_TMP, S_TMP)
    a("v_add_u32 v3, s%d, v3", S_TMP)
    a("v_max_i32 v3, 0, v3")
    a("v_lshlrev_b32 v3, 11, v3")
    a("v_lshl_add_u32 v20, v4, 4, v3")
    a("s_mul_i32 s%d, s%d, 2048", S_LA, S_W)
    a("s_mul_i32 s%d, s%d, 4096", S_LB, S_W)
    a("s_add_u32 s%d, s%d, %d", S_LB, S_LB, XB + 2048)
    a("s_mul_i32 s%d, s%d, 512", S_TMP + 6, S_W)
    a("s_add_u32 s%d, s%d, %d", S_TMP + 6, S_TMP + 6, XB)
    a("s_waitcnt lgkmcnt(0)")
    srd(a, 8, 30, 0, 1024 * 3072 * 2)
    a("s_add_u32 s12, s6, s%d", S_TMP + 7)
    a("s_addc_u32 s13, s7, 0")
    a("s_mov_b32 s14, 0x%x", ACT_BYTES)
    a("s_mov_b32 s15, 0x20000")
    def issue():
        kidx_offsets(a, W, PW.kadv, 128, wrap=16)
        a("s_add_u32 s%d, s%d, s%d", S_M0A, S_SLOT, S_LA)
        a("s_add_u32 s%d, s%d, s%d", S_M0B, S_SLOT, S_LB)
        for i in range(4):
            a("s_add_u32 m0, s%d, %d", S_M0B, i * 1024)
            a("s_nop 0")
            a("buffer_load_dwordx4 v%d, s[12:15], s%d offen lds", 16 + i, S_OFB)
        for p in range(3):
            for i in range(2):
                a("s_add_u32 m0, s%d, %d", S_M0A, p * 8192 + i * 1024)
                a("s_nop 0")
                a("buffer_load_dwordx4 v%d, s[8:11], s%d offen lds", 10 + 2 * p + i, S_OFA)
        a("s_add_u32 m0, s%d, s%d", S_SLOT, S_TMP + 6)
        a("s_mov_b32 exec_hi, 0")
        a("buffer_load_dwordx4 v20, s[12:15], s%d offen lds", S_OFB)
        a("s_mov_b32 exec_hi, -1")
    srd(a, 20, 4, WS["ST"], ST_BYTES)
    srd(a, 56, 4, WS["CS"], CS_BYTES)
    srd(a, 60, 16, 0, 256)
    a("s_sub_u32 s%d, s%d, s%d", S_TMP, S_SIG, S_J)
    a("s_and_b32 s%d, s%d, %d", S_TMP, S_TMP, W - 1)
    a("s_and_b32 s%d, s%d, %d", S_TMP + 1, S_SIG, 15 & ~KG & ~(W - 1))
    a("s_or_b32 s%d, s%d, s%d", S_TMP, S_TMP, S_TMP + 1)
    a("s_add_u32 s%d, s%d, %d", S_H1, S_TMP, S - 1)
    a("s_cmp_eq_u32 s%d, 0", S_DIST)
    a("s_cselect_b32 s%d, 0x7fff, s%d", S_H1, S_H1)
    a("s_add_u32 s%d, s%d, %d", S_H2, S_H1, S)
    a("s_cmp_lg_u32 s%d, 0", S_W)
    a("s_cselect_b32 s%d, 0x7fff, s%d", S_H2, S_H2)
    a("s_cmp_lt_u32 s%d, 0x7fff", S_H2)
    a("s_cselect_b32 s%d, %d, 0x7fff", S_H3, N - 3)
    def slice_stats():
        SL = S_TMP + 4
        a("s_add_u32 s%d, s%d, %d", SL, S_SLOT, stage)
        a("s_cmp_eq_u32 s%d, %d", SL, S * stage)
        a("s_cselect_b32 s%d, 0, s%d", SL, SL)
        for i in range(3):
            a("s_mul_i32 s%d, s%d, 3", S_TMP + 2, S_W)
            a("s_add_u32 s%d, s%d, %d", S_TMP + 2, S_TMP + 2, i)
            a("s_lshr_b32 s%d, s%d, 2", S_TMP + 3, S_TMP + 2)
            a("s_lshl_b32 s%d, s%d, 13", S_TMP + 3, S_TMP + 3)
            a("s_add_u32 s%d, s%d, s%d", S_TMP + 3, S_TMP + 3, SL)
            a("s_and_b32 s%d, s%d, 3", S_TMP + 2, S_TMP + 2)
            read_addr_km(a, 64, S_TMP + 3, S_TMP + 2, 0, 21)
            for ks in range(2):
                for r in frag_reads("km", 64, [21], 0, ks, 24 + 8 * i + 4 * ks): a(r)
        a("s_lshr_b32 s%d, s%d, 7", S_TMP + 2, SL)
        a("s_lshl_b32 s%d, s%d, 5", S_TMP + 3, S_W)
        a("s_add_u32 s%d, s%d, s%d", S_TMP + 2, S_TMP + 2, S_TMP + 3)
        a("s_add_u32 s%d, s%d, 16", S_TMP + 2, S_TMP + 2)
        read_addrs_kc(a, XB, S_TMP + 2, 22)
        for i in range(2):
            for ks in range(2):
                for r in frag_reads("kc", 0, [22, 23], i, ks, 48 + 8 * i + 4 * ks): a(r)
        for r in range(4): a("v_mov_b32 v%d, 0x3f803f80", 64 + r)
        a("s_mul_i32 s%d, s%d, 12288", S_TMP + 2, S_SIG)
        a("s_lshl_b32 s%d, s%d, 8", S_TMP + 3, S_TA)
        a("s_add_u32 s%d, s%d, s%d", S_TMP + 2, S_TMP + 2, S_TMP + 3)
        a("v_lshl_add_u32 v21, v5, 4, s%d", S_TMP + 2)
        a("s_lshl_b32 s%d, s%d, 14", S_TMP + 2, S_SIG)
        a("s_lshl_b32 s%d, s%d, 10", S_TMP + 3, S_TB)
        a("s_add_u32 s%d, s%d, s%d", S_TMP + 2, S_TMP + 2, S_TMP + 3)
        a("s_lshl_b32 s%d, s%d, 8", S_TMP + 3, S_W)
        a("s_add_u32 s%d, s%d, s%d", S_TMP + 2, S_TMP + 2, S_TMP + 3)
        a("v_lshl_add_u32 v22, v8, 3, s%d", S_TMP + 2)
        a("s_waitcnt lgkmcnt(0)")
        mm = lambda d, x, y, first: a("v_mfma_f32_16x16x32_bf16 v[%d:%d], v[%d:%d], v[%d:%d], %s", d, d + 3, x, x + 3, y, y + 3,
                                      "0" if first else "v[%d:%d]" % (d, d + 3))
        for ks in range(2):
            for i in range(3): mm(68 + 4 * i, 24 + 8 * i + 4 * ks, 64, ks == 0)
            for i in range(2):
                mm(80 + 8 * i, 64, 48 + 8 * i + 4 * ks, ks == 0)
                mm(84 + 8 * i, 48 + 8 * i + 4 * ks, 48 + 8 * i + 4 * ks, ks == 0)
        a("v_cmp_eq_u32 s[%d:%d], 1, v7", S_TMP, S_TMP + 1)
        a("v_cmp_eq_u32 s[%d:%d], 2, v7", S_TMP + 2, S_TMP + 3)
        a("v_cmp_eq_u32 vcc, 3, v7")
        a("s_nop 7")
        for i in range(2):
            a("v_cndmask_b32 v%d, v%d, v%d, s[%d:%d]", 81 + 8 * i, 84 + 8 * i, 85 + 8 * i, S_TMP, S_TMP + 1)
            a("v_cndmask_b32 v%d, v%d, v%d, s[%d:%d]", 81 + 8 * i, 81 + 8 * i, 86 + 8 * i, S_TMP + 2, S_TMP + 3)
            a("v_cndmask_b32 v%d, v%d, v%d, vcc", 81 + 8 * i, 81 + 8 * i, 87 + 8 * i)
        a("s_mov_b32 exec_lo, 0x00f0000f")
        a("s_mov_b32 exec_hi, 0xf0000f00")
        for i in range(2):
            a("buffer_store_dwordx2 v[%d:%d], v22, s[20:23], 0 offen offset:%d sc1", 80 + 8 * i, 81 + 8 * i, 128 * i)
        a("s_mov_b32 exec_lo, 0x00010001")
        a("s_mov_b32 exec_hi, 0x00010001")
        for i in range(3):
            a("s_mul_i32 s%d, s%d, 3", S_TMP + 2, S_W)
            a("s_add_u32 s%d, s%d, %d", S_TMP + 2, S_TMP + 2, i)
            a("s_lshr_b32 s%d, s%d, 2", S_TMP + 3, S_TMP + 2)
            a("s_lshl_b32 s%d, s%d, 12", S_TMP + 3, S_TMP + 3)
            a("s_and_b32 s%d, s%d, 3", S_TMP + 2, S_TMP + 2)
            a("s_lshl_b32 s%d, s%d, 6", S_TMP + 2, S_TMP + 2)
            a("s_add_u32 s%d, s%d, s%d", S_TMP + 2, S_TMP + 2, S_TMP + 3)
            a("buffer_store_dwordx4 v[%d:%d], v21, s[56:59], s%d offen sc1", 68 + 4 * i, 71 + 4 * i, S_TMP + 2)
        a("s_mov_b64 exec, -1")
    def arrive():
        a("v_mov_b32 v21, 0")
        a("v_mov_b32 v22, 1")
        a("s_mov_b64 exec, 1")
        a("buffer_atomic_add v22, v21, s[60:63], 0 offen sc1")
        a("s_mov_b64 exec, -1")
    def poll_issue():
        a("v_mov_b32 v21, 0")
        a("buffer_load_dword v23, v21, s[60:63], 0 offen sc1")
    def poll_check():
        a("s_cmp_eq_u32 s%d, 0x7fff", S_H3)
        a("s_cbranch_scc1 %s_polled", name)
        a("s_mov_b32 s%d, 0x20000", S_TMP + 1)
        a("v_mov_b32 v21, 0")
        a("s_waitcnt vmcnt(22)")
        a.label(name + "_poll")
        a("v_readfirstlane_b32 s%d, v23", S_TMP)
        a("s_sub_u32 s%d, s%d, 1", S_TMP + 1, S_TMP + 1)
        a("s_cmp_eq_u32 s%d, 0", S_TMP + 1)
        a("s_cbranch_scc1 %s_polled", name)
        a("s_cmp_ge_u32 s%d, 256", S_TMP)
        a("s_cbranch_scc1 %s_polled", name)
        a("s_sleep 8")
        a("buffer_load_dword v23, v21, s[60:63], 0 offen sc1")
        a("s_waitcnt vmcnt(0)")
        a("s_branch %s_poll", name)
        a.label(name + "_polled")
    def st_loads():
        a("s_lshl_b32 s%d, s%d, 6", S_TMP, S_W)
        a("v_add_u32 v21, s%d, v2", S_TMP)
        a("s_lshl_b32 s%d, s%d, 7", S_TMP + 1, S_TB)
        a("s_sub_u32 s%d, s%d, 16", S_TMP + 1, S_TMP + 1)
        a("v_add_u32 v3, s%d, v21", S_TMP + 1)
        a("v_max_i32 v3, 0, v3")
        a("v_min_u32 v3, 2047, v3")
        a("v_lshlrev_b32 v3, 3, v3")
        a("s_min_u32 s%d, s%d, 2", S_TMP, S_W)
        a("s_lshl_b32 s%d, s%d, 12", S_TMP, S_TMP)
        a("s_lshl_b32 s%d, s%d, 8", S_TMP + 1, S_TA)
        a("s_add_u32 s%d, s%d, s%d", S_TMP, S_TMP, S_TMP + 1)
        a("v_lshl_add_u32 v4, v2, 2, s%d", S_TMP)
        for k in range(16):
            a("s_mov_b32 s%d, %d", S_TMP, k * 16384)
            a("buffer_load_dwordx2 v[%d:%d], v3, s[20:23], s%d offen sc1", 24 + 2 * k, 25 + 2 * k, S_TMP)
            a("s_mov_b32 s%d, %d", S_TMP + 1, k * 3072 * 4)
            a("buffer_load_dword v%d, v4, s[56:59], s%d offen sc1", 56 + k, S_TMP + 1)
    def st_use():
        for st in (8, 4, 2, 1):
            for k in range(st):
                a("v_pk_add_f32 v[%d:%d], v[%d:%d], v[%d:%d]", 24 + 2 * k, 25 + 2 * k, 24 + 2 * k, 25 + 2 * k, 24 + 2 * (k + st), 25 + 2 * (k + st))
                a("v_add_f32 v%d, v%d, v%d", 56 + k, 56 + k, 56 + k + st)
        a("v_mul_f32 v24, 0x%x, v24", f32(1.0 / 1024))
        a("v_mul_f32 v25, 0x%x, v25", f32(1.0 / 1024))
        a("v_fma_f32 v25, -v24, v24, v25")
        a("v_max_f32 v25, 0, v25")
        round_bf16_scalar(a, 24)
        round_bf16_scalar(a, 25)
        a("v_add_f32 v25, 0x%x, v25", f32(1e-5))
        round_bf16_scalar(a, 25)
        a("v_sqrt_f32 v25, v25")
        a("s_nop 0")
        round_bf16_scalar(a, 25)
        a("v_rcp_f32 v26, v25")
        a("v_lshlrev_b32 v3, 3, v21")
        a("v_lshlrev_b32 v4, 2, v21")
        a("v_mul_f32 v27, -v24, v26")
        a("v_cmp_gt_u32 vcc, 144, v21")
        a("s_and_saveexec_b64 s[%d:%d], vcc", S_TMP, S_TMP + 1)
        a("v_add_u32 v3, %d, v3", LST)
        a("ds_write_b64 v3, v[26:27]")
        a("s_mov_b64 exec, s[%d:%d]", S_TMP, S_TMP + 1)
        a("v_cmp_gt_u32 vcc, 192, v21")
        a("s_and_saveexec_b64 s[%d:%d], vcc", S_TMP, S_TMP + 1)
        a("v_add_u32 v4, %d, v4", LCS)
        a("ds_write_b32 v4, v56")
        a("s_mov_b64 exec, s[%d:%d]", S_TMP, S_TMP + 1)
        a("s_waitcnt lgkmcnt(0)")
    def tail():
        poll_check()
        a("s_waitcnt vmcnt(11)")
        a("s_barrier")
        st_loads()
        a("s_waitcnt vmcnt(32)")
        a("s_barrier")
        a("s_waitcnt vmcnt(0)")
        st_use()
        a("s_barrier")
        a("s_cmp_eq_u32 s%d, 0", S_DIST)
        a("s_cbranch_scc1 %s_nopf", name)
        srd(a, 20, 18, 0, 1024 * 1024 * 2)
        a("s_lshl_b32 s%d, s2, 13", S_TMP)
        a("s_lshl_b32 s%d, s%d, 11", S_TMP + 1, S_W)
        a("s_add_u32 s%d, s%d, s%d", S_TMP, S_TMP, S_TMP + 1)
        a("v_lshlrev_b32 v3, 4, v2")
        a("buffer_load_dwordx4 v[120:123], v3, s[20:23], s%d offen", S_TMP)
        a("buffer_load_dwordx4 v[120:123], v3, s[20:23], s%d offen offset:1024", S_TMP)
        a.label(name + "_nopf")
    loader_loop(a, name, issue, 11, N, S, stage, tail=tail,
                events=[(S_H1, 5, slice_stats), (S_H2, 1, arrive), (S_H3, 1, poll_issue)])
    a("s_add_u32 s%d, s%d, 4", S_W, S_W)
    a("s_branch %s_attn", name)

    a.label(name + "_compute")
    na, nb = 6, 5
    ACC = 24
    acc = lambda i, j: ACC + 4 * (i * 4 + j) if j < 4 else ACC + 96 + 4 * (i - 4)
    nacc = 104
    FR = ACC + nacc
    fset = (na + nb) * 4
    fA = lambda st, i: FR + st * fset + 4 * i
    fB = lambda st, j: FR + st * fset + 4 * na + 4 * j
    VTOP = FR + 2 * fset
    SHD, SSH = S_TMP + 4, S_TMP + 5
    a("s_and_b32 s%d, s%d, 1", SHD, S_W)
    a("s_lshr_b32 s%d, s%d, 1", SSH, S_W)
    AR = 10
    def part_of(c, unit):
        if c == 0:
            a("s_mov_b32 s%d, 0", S_TMP + 3)
        else:
            a("s_xor_b32 s%d, s%d, %d", S_TMP + 3, SSH, 1 if c == 1 else 0)
            a("s_add_u32 s%d, s%d, 1", S_TMP + 3, S_TMP + 3)
            a("s_mul_i32 s%d, s%d, %d", S_TMP + 3, S_TMP + 3, unit)
    a("s_lshl_b32 s%d, s%d, 1", S_TMP + 2, SHD)
    for c in range(3):
        part_of(c, 8192)
        for i in range(2):
            read_addr_km(a, 64, S_TMP + 3, S_TMP + 2, i, AR + 2 * c + i)
    adA = [AR + i for i in range(6)]
    a("s_mul_i32 s%d, s%d, 64", S_TMP + 2, SSH)
    a("s_add_u32 s%d, s%d, 16", S_TMP + 2, S_TMP + 2)
    read_addrs_kc(a, XB, S_TMP + 2, AR + 6)
    read_addrs_kc(a, XB, None, AR + 8)
    adB, adH = [AR + 6, AR + 7], [AR + 8, AR + 9]
    for r in range(nacc): a("v_mov_b32 v%d, 0", ACC + r)
    for r in range(fset): a("v_mov_b32 v%d, 0", FR + fset + r)
    compute_loop_ctl_init(a, N, S, stage)
    if OPT.get("cprio"): a("s_setprio %d", OPT["cprio"])
    a("s_waitcnt lgkmcnt(0)")
    stamp(a, 1)
    def mf(st):
        L = [(i, j) for i in range(6) for j in range(4)] + [(4, 4), (5, 4)]
        return ["v_mfma_f32_16x16x32_bf16 v[%d:%d], v[%d:%d], v[%d:%d], v[%d:%d]" %
                (acc(i, j), acc(i, j) + 3, fA(st, i), fA(st, i) + 3, fB(st, j), fB(st, j) + 3, acc(i, j), acc(i, j) + 3)
                for (i, j) in L]
    def rd(st, ks):
        L = []
        L += frag_reads("km", 64, adA, 0, ks, fA(st, 0))
        for j in range(4): L += frag_reads("kc", 0, adB, j, ks, fB(st, j))
        for i in range(1, 6): L += frag_reads("km", 64, adA, i, ks, fA(st, i))
        L += frag_reads("kc", 0, adH, 0, ks, fB(st, 4))
        return L
    cloop(a, name, mf, rd, adA + adB + adH, S, stage)
    a("s_barrier")
    SB = FR
    a("v_lshlrev_b32 v3, 3, v8")
    a("v_add_u32 v4, %d, v3", LST)
    a("s_mul_i32 s%d, s%d, 512", S_TMP, SSH)
    a("s_add_u32 s%d, s%d, %d", S_TMP, S_TMP, LST + 128)
    a("v_add_u32 v3, s%d, v3", S_TMP)
    for j in range(4): a("ds_read_b64 v[%d:%d], v3 offset:%d", SB + 2 * j, SB + 2 * j + 1, j * 128)
    a("ds_read_b64 v[%d:%d], v4", SB + 8, SB + 9)
    a("s_lshl_b32 s%d, s%d, 7", S_TMP, SHD)
    a("s_add_u32 s%d, s%d, %d", S_TMP, S_TMP, LCS)
    a("v_lshl_add_u32 v3, v5, 4, s%d", S_TMP)
    for c in range(3):
        part_of(c, 256)
        a("v_add_u32 v4, s%d, v3", S_TMP + 3)
        for i in range(2):
            a("ds_read_b128 v[%d:%d], v4 offset:%d", SB + 12 + 4 * (2 * c + i), SB + 15 + 4 * (2 * c + i), i * 64)
    a("v_and_b32 v3, 1, v5")
    a("v_lshlrev_b32 v3, 1, v3")
    a("v_lshrrev_b32 v4, 1, v5")
    a("v_add_u32 v3, v3, v4")
    a("s_lshl_b32 s%d, s%d, 2", S_TMP, SHD)
    a("v_add_u32 v3, s%d, v3", S_TMP)
    a("v_lshrrev_b32 v4, 1, v8")
    a("v_xor_b32 v3, v3, v4")
    a("v_lshlrev_b32 v3, 4, v3")
    a("v_lshl_add_u32 v3, v8, 7, v3")
    a("s_mul_i32 s%d, s%d, %d", S_TMP + 2, SSH, 64 * 128)
    a("s_add_u32 s%d, s%d, %d", S_TMP + 2, S_TMP + 2, E + 16 * 128)
    for c in range(3):
        part_of(c, REG)
        a("s_add_u32 s%d, s%d, s%d", S_TMP, S_TMP + 2, S_TMP + 3)
        a("v_add_u32 v%d, s%d, v3", AR + c, S_TMP)
    a("s_add_u32 s%d, s%d, %d", S_TMP, S_TMP + 3, E)
    a("v_add_u32 v%d, s%d, v3", AR + 3, S_TMP)
    a("s_waitcnt lgkmcnt(0)")
    k = 0
    TV = SB + 36
    pr = lambda r: "v[%d:%d]" % (r, r + 1)
    for c in range(3):
        for j in range(5 if c == 2 else 4):
            c0_, c1_ = acc(2 * c, j), acc(2 * c + 1, j)
            d = TV + 8 + 4 * (k & 3); k += 1
            prs = [(c0_, SB + 12 + 8 * c), (c0_ + 2, SB + 14 + 8 * c), (c1_, SB + 16 + 8 * c), (c1_ + 2, SB + 18 + 8 * c)]
            for q, (x, cs) in enumerate(prs):
                a("v_pk_mul_f32 %s, %s, %s op_sel:[0,1] op_sel_hi:[1,1]", pr(TV + 2 * q), pr(cs), pr(SB + 2 * j))
            for q, (x, cs) in enumerate(prs):
                a("v_pk_fma_f32 %s, %s, %s, %s op_sel:[0,0,0] op_sel_hi:[1,0,1]", pr(x), pr(x), pr(SB + 2 * j), pr(TV + 2 * q))
            a("v_cvt_pk_bf16_f32 v%d, v%d, v%d", d, c0_, c0_ + 1)
            a("v_cvt_pk_bf16_f32 v%d, v%d, v%d", d + 1, c0_ + 2, c0_ + 3)
            a("v_cvt_pk_bf16_f32 v%d, v%d, v%d", d + 2, c1_, c1_ + 1)
            a("v_cvt_pk_bf16_f32 v%d, v%d, v%d", d + 3, c1_ + 2, c1_ + 3)
            a("s_nop 1")
            a("v_permlane16_swap_b32 v%d, v%d", d, d + 2)
            a("v_permlane16_swap_b32 v%d, v%d", d + 1, d + 3)
            if j < 4:
                a("ds_write_b128 v%d, v[%d:%d] offset:%d", AR + c, d, d + 3, j * 2048)
            else:
                a("ds_write_b128 v%d, v[%d:%d]", AR + 3, d, d + 3)
    a("s_waitcnt lgkmcnt(0)")

    a.label(name + "_attn")
    srd(a, 16, 4, WS["O"], ACT_BYTES)
    a("s_and_b32 s%d, s%d, 1", SHD, S_W)
    SU = S_TMP + 5
    a("s_lshr_b32 s%d, s%d, 1", SU, S_W)
    a("s_lshl_b32 s%d, s%d, 2", S_TMP, SHD)
    a("v_add_u32 v3, s%d, v5", S_TMP)
    a("v_and_b32 v4, 7, v8")
    a("v_xor_b32 v3, v3, v4")
    a("v_lshlrev_b32 v3, 4, v3")
    a("v_lshl_add_u32 v3, v8, 8, v3")
    a("s_mul_i32 s%d, s%d, %d", S_TMP + 1, SU, 32 * 128)
    a("s_add_u32 s%d, s%d, %d", S_TMP + 1, S_TMP + 1, E)
    a("v_add_u32 v10, s%d, v3", S_TMP + 1)
    a("v_lshl_add_u32 v3, v5, 2, v6")
    a("v_and_b32 v4, 7, v3")
    a("v_add_u32 v12, s%d, v7", S_TMP)
    a("v_xor_b32 v4, v4, v12")
    a("v_lshlrev_b32 v4, 4, v4")
    a("v_lshl_add_u32 v3, v3, 8, v4")
    a("s_add_u32 s%d, s%d, %d", S_TMP + 1, S_TMP + 1, 2 * REG)
    a("v_add_u32 v11, s%d, v3", S_TMP + 1)
    a("v_and_b32 v3, 7, v8")
    a("v_add_u32 v4, 1, v3")
    a("s_or_b32 s%d, s%d, s%d", S_TMP, S_TB, SU)
    a("s_cmp_eq_u32 s%d, 0", S_TMP)
    a("s_cselect_b32 s%d, 8, 0", S_TMP)
    a("v_cmp_gt_u32 vcc, 8, v8")
    a("v_mov_b32 v16, s%d", S_TMP)
    a("s_mov_b64 s[56:57], vcc")
    a("v_cndmask_b32 v16, 0, v16, vcc")
    a("v_max_u32 v4, v4, v16")
    a("v_add_u32 v3, 8, v3")
    a("v_sub_u32 v3, v3, v4")
    a("v_lshlrev_b32 v16, 2, v5")
    a("v_sub_u32 v16, v16, v4")
    a("v_mov_b32 v17, 0xf149f2ca")
    for r in range(4):
        a("v_add_u32 v18, %d, v16", r)
        a("v_cmp_ge_u32 vcc, v3, v18")
        a("s_nop 1")
        a("v_cndmask_b32 v%d, v17, 0, vcc", 12 + r)
    a("s_lshl_b32 s%d, s%d, 7", S_TMP, S_TB)
    a("s_lshl_b32 s%d, s%d, 5", S_TMP + 1, SU)
    a("s_add_u32 s%d, s%d, s%d", S_TMP, S_TMP, S_TMP + 1)
    a("s_lshl_b32 s%d, s%d, 11", S_TMP, S_TMP)
    a("s_lshl_b32 s%d, s%d, 7", S_TMP + 1, S_TA)
    a("s_add_u32 s%d, s%d, s%d", S_TMP, S_TMP, S_TMP + 1)
    a("s_lshl_b32 s%d, s%d, 6", S_TMP + 1, SHD)
    a("s_add_u32 s%d, s%d, s%d", S_TMP, S_TMP, S_TMP + 1)
    a("v_lshlrev_b32 v9, 12, v8")
    a("v_lshl_add_u32 v9, v5, 4, v9")
    a("v_add_u32 v9, s%d, v9", S_TMP)
    a("s_mov_b32 s58, 0x%x", f32(32 ** -0.5))
    a("s_mov_b32 s59, 0x%x", f32(math.log2(math.e)))
    a("s_barrier")
    stamp(a, 5)
    if OPT.get("stamp"): a("s_waitcnt lgkmcnt(0)")
    def blk(p): return 24 + 48 * p
    for p in range(2):
        b = blk(p)
        a("ds_read_b128 v[%d:%d], v10 offset:%d", b, b + 3, 2048 + 128 * p)
        a("ds_read_b128 v[%d:%d], v10 offset:%d", b + 4, b + 7, REG + 128 * p)
        a("ds_read_b128 v[%d:%d], v10 offset:%d", b + 8, b + 11, REG + 2048 + 128 * p)
    for p in range(2):
        b = blk(p)
        for dt in range(2):
            for bb in range(2):
                d = b + 12 + 4 * dt + 2 * bb
                a("ds_read_b64_tr_b16 v[%d:%d], v11 offset:%d", d, d + 1, 128 * p + 2048 * bb + 8 * dt)
    a("s_waitcnt lgkmcnt(8)")
    for p in range(2):
        b = blk(p)
        a("v_mfma_f32_16x16x32_bf16 v[%d:%d], v[%d:%d], v[%d:%d], 0", b + 20, b + 23, b + 4, b + 7, b, b + 3)
        a("v_mfma_f32_16x16x32_bf16 v[%d:%d], v[%d:%d], v[%d:%d], 0", b + 24, b + 27, b + 8, b + 11, b, b + 3)
    a("s_nop 7")
    both = lambda f: [f(blk(p)) for p in range(2)]
    for p in range(2):
        b = blk(p)
        for r in range(4):
            a("v_cndmask_b32 v%d, v%d, v%d, s[56:57]", b + 20 + r, b + 24 + r, b + 20 + r)
    for p in range(2):
        b = blk(p)
        a("v_cvt_pk_bf16_f32 v%d, v%d, v%d", b + 24, b + 20, b + 21)
        a("v_cvt_pk_bf16_f32 v%d, v%d, v%d", b + 25, b + 22, b + 23)
    for p in range(2):
        b = blk(p)
        for q in range(2):
            a("v_lshlrev_b32 v%d, 16, v%d", b + 20 + 2 * q, b + 24 + q)
            a("v_and_b32 v%d, 0xffff0000, v%d", b + 21 + 2 * q, b + 24 + q)
    for p in range(2):
        b = blk(p)
        for r in range(4): a("v_mul_f32 v%d, s58, v%d", b + 20 + r, b + 20 + r)
    for p in range(2):
        b = blk(p)
        a("v_cvt_pk_bf16_f32 v%d, v%d, v%d", b + 24, b + 20, b + 21)
        a("v_cvt_pk_bf16_f32 v%d, v%d, v%d", b + 25, b + 22, b + 23)
    for p in range(2):
        b = blk(p)
        for q in range(2):
            a("v_lshlrev_b32 v%d, 16, v%d", b + 20 + 2 * q, b + 24 + q)
            a("v_and_b32 v%d, 0xffff0000, v%d", b + 21 + 2 * q, b + 24 + q)
    for p in range(2):
        b = blk(p)
        for r in range(4): a("v_fma_f32 v%d, v%d, s59, v%d", b + 20 + r, b + 20 + r, 12 + r)
    for p in range(2):
        b = blk(p)
        a("v_max3_f32 v%d, v%d, v%d, v%d", b + 24, b + 20, b + 21, b + 22)
    for p in range(2):
        b = blk(p)
        a("v_max_f32 v%d, v%d, v%d", b + 24, b + 24, b + 23)
    def xreduce(op, off):
        for sw in ("v_permlane16_swap_b32", "v_permlane32_swap_b32"):
            for p in range(2):
                b = blk(p)
                a("v_mov_b32 v%d, v%d", b + off + 1, b + off)
            a("s_nop 1")
            for p in range(2):
                b = blk(p)
                a("%s v%d, v%d", sw, b + off, b + off + 1)
            a("s_nop 0")
            for p in range(2):
                b = blk(p)
                a("%s v%d, v%d, v%d", op, b + off, b + off, b + off + 1)
    xreduce("v_max_f32", 24)
    for p in range(2):
        b = blk(p)
        for r in range(4): a("v_sub_f32 v%d, v%d, v%d", b + 20 + r, b + 20 + r, b + 24)
    for p in range(2):
        b = blk(p)
        for r in range(4): a("v_exp_f32 v%d, v%d", b + 20 + r, b + 20 + r)
    for p in range(2):
        b = blk(p)
        a("v_add_f32 v%d, v%d, v%d", b + 24, b + 20, b + 21)
        a("v_add_f32 v%d, v%d, v%d", b + 25, b + 22, b + 23)
    for p in range(2):
        b = blk(p)
        a("v_add_f32 v%d, v%d, v%d", b + 24, b + 24, b + 25)
    xreduce("v_add_f32", 24)
    for p in range(2):
        b = blk(p)
        a("v_rcp_f32 v%d, v%d", b + 24, b + 24)
    a("s_nop 0")
    for p in range(2):
        b = blk(p)
        for r in range(4): a("v_mul_f32 v%d, v%d, v%d", b + 20 + r, b + 20 + r, b + 24)
    for p in range(2):
        b = blk(p)
        a("v_cvt_pk_bf16_f32 v%d, v%d, v%d", b + 24, b + 20, b + 21)
        a("v_cvt_pk_bf16_f32 v%d, v%d, v%d", b + 25, b + 22, b + 23)
    for p in range(2):
        b = blk(p)
        a("v_cndmask_b32 v%d, 0, v%d, s[56:57]", b + 28, b + 24)
        a("v_cndmask_b32 v%d, 0, v%d, s[56:57]", b + 29, b + 25)
        a("v_cndmask_b32 v%d, v%d, 0, s[56:57]", b + 30, b + 24)
        a("v_cndmask_b32 v%d, v%d, 0, s[56:57]", b + 31, b + 25)
    a("s_waitcnt lgkmcnt(0)")
    a("s_nop 0")
    for p in range(2):
        b = blk(p)
        for dt in range(2):
            a("v_mfma_f32_16x16x32_bf16 v[%d:%d], v[%d:%d], v[%d:%d], 0", b + 32 + 4 * dt, b + 35 + 4 * dt,
              b + 12 + 4 * dt, b + 15 + 4 * dt, b + 28, b + 31)
    a("s_nop 7")
    for p in range(2):
        b = blk(p)
        for q in range(4):
            a("v_cvt_pk_bf16_f32 v%d, v%d, v%d", b + 40 + q, b + 32 + 2 * q, b + 33 + 2 * q)
        a("buffer_store_dwordx4 v[%d:%d], v9, s[16:19], 0 offen offset:%d%s", b + 40, b + 43, 2048 * p, STF())
    stamp(a, 6)
    stamp_flush(a, name, 7)
    a.label(name + "_done")
    a("s_endpgm")
    for (kn, _) in stubs:
        kernel_desc(a, kn, VTOP, 96 if OPT.get("stamp") else 72)
    return LCS + 768

def build(extra_empty=0):
    body = Asm()
    def pre_l1(a):
        a("s_load_dwordx2 s[6:7], s[0:1], %d", ARG["x"])
        a("s_mov_b32 s%d, 0", S_TMP + 7)
    def pre_l2(a):
        a("s_load_dwordx2 s[6:7], s[0:1], %d", ARG["ws"])
        a("s_mov_b32 s%d, 0x%x", S_TMP + 7, WS["X2"])
    lds_g1 = gen_g1(body, "g1", [("g1a_kernel", lambda a: (pre_l1(a), a("s_mov_b32 s53, 1"))),
                                 ("g1b_kernel", lambda a: (pre_l2(a), a("s_mov_b32 s53, 0")))], W=OPT.get("W1", 2))

    def srd_stub(a, d):
        a("s_add_u32 s%d, s6, s%d", d, S_TMP + 7)
        a("s_addc_u32 s%d, s7, 0", d + 1)
        a("s_mov_b32 s%d, 0x%x", d + 2, ACT_BYTES)
        a("s_mov_b32 s%d, 0x20000", d + 3)
    def g2_ptrs(a, ph):
        if ph == 0:
            a("s_load_dwordx2 s[4:5], s[0:1], %d", ARG["ws"])
            a("s_load_dwordx2 s[30:31], s[0:1], %d", ARG["wo"])
        elif ph == "L":
            srd(a, 8, 30, 0, 1024 * 1024 * 2)
            srd(a, 12, 4, WS["O"], ACT_BYTES)
        else:
            srd_stub(a, 20)
            srd(a, 16, 4, WS["X1"], ACT_BYTES)
    def dec_4x8(a):
        a("s_and_b32 s%d, s2, 3", S_TMP)
        a("s_lshl_b32 s%d, s%d, 2", S_TMP, S_TMP)
        a("s_bfe_u32 s%d, s2, 0x20003", S_TMP + 1)
        a("s_add_u32 s%d, s%d, s%d", S_TB, S_TMP, S_TMP + 1)
        a("s_bfe_u32 s%d, s2, 0x10002", S_TMP)
        a("s_lshl_b32 s%d, s%d, 3", S_TMP, S_TMP)
        a("s_lshr_b32 s%d, s2, 5", S_TMP + 2)
        a("s_add_u32 s%d, s%d, s%d", S_TA, S_TMP, S_TMP + 2)
        a("s_add_u32 s%d, s%d, s%d", S_J, S_TMP + 1, S_TMP + 2)
        a("s_mov_b32 s%d, 0", S_KB)
    lds_g2 = gen_gemm(body, "g2", 256, Op("km", 64, 2048), Op("kc", 128, 2048), 1, 4, 16, 4, OPT.get("W2", 2), g2_ptrs, dec_4x8,
                      "resid", "plain", 2048, stubs=[("g2a_kernel", pre_l1), ("g2b_kernel", pre_l2)])
    gen_ln3(body, "ln3_kernel")

    def g3_ptrs(a, ph):
        if ph == 0:
            a("s_load_dwordx2 s[4:5], s[0:1], %d", ARG["ws"])
            a("s_load_dwordx2 s[30:31], s[0:1], %d", ARG["w1"])
            a("s_load_dwordx2 s[6:7], s[0:1], %d", ARG["b1"])
        elif ph == "L":
            srd(a, 8, 30, 0, 2048 * 3584 * 2)
            srd(a, 12, 4, WS["H"], ACT_BYTES)
        else:
            srd(a, 20, 6, 0, 3584 * 2)
            srd(a, 16, 4, WS["U"], 1024 * 3584 * 2)
    def g3_decode(a):
        a("s_and_b32 s%d, s2, 1", S_TMP)
        a("s_lshl_b32 s%d, s%d, 2", S_TMP, S_TMP)
        a("s_bfe_u32 s%d, s2, 0x20003", S_TMP + 1)
        a("s_add_u32 s%d, s%d, s%d", S_TB, S_TMP, S_TMP + 1)
        a("s_bfe_u32 s%d, s2, 0x20001", S_TMP)
        a("s_mul_i32 s%d, s%d, 7", S_TMP, S_TMP)
        a("s_lshr_b32 s%d, s2, 5", S_TMP + 2)
        a("s_add_u32 s%d, s%d, s%d", S_TA, S_TMP, S_TMP + 2)
        a("s_add_u32 s%d, s%d, s%d", S_J, S_TMP + 1, S_TMP + 2)
        a("s_mov_b32 s%d, 0", S_KB)
    def g3_spare(a):
        a("s_cmp_ge_u32 s2, s%d", S_TMP + 7)
        a("s_cbranch_scc1 g3_done")
        a("s_load_dwordx2 s[4:5], s[0:1], %d", ARG["w2"])
        a("s_sub_u32 s3, s2, 224")
        a("s_mul_i32 s3, s3, %d", 448 * 1024)
        a("v_lshlrev_b32 v1, 4, v0")
        a("s_mov_b32 s12, 7")
        a("s_waitcnt lgkmcnt(0)")
        srd(a, 8, 4, 0, 3584 * 2048 * 2)
        a.label("g3_spare_loop")
        for k in range(8):
            a("buffer_load_dwordx4 v[4:7], v1, s[8:11], s3 offen")
            a("s_add_u32 s3, s3, 8192")
        a("s_waitcnt vmcnt(8)")
        a("s_sub_u32 s12, s12, 1")
        a("s_cmp_lg_u32 s12, 0")
        a("s_cbranch_scc1 g3_spare_loop")
        a("s_endpgm")
    lds_g3 = gen_gemm(body, "g3", 224, Op("km", 128, 7168), Op("km", 128, 2048), 2, 2, 32, 4, OPT.get("W3", 4), g3_ptrs, g3_decode,
                      "biasA", "gelu", 7168, spare=g3_spare,
                      stubs=[("g3a_kernel", lambda a: a("s_mov_b32 s%d, %d", S_TMP + 7, 256 if OPT.get("pf", 1) else 224)),
                             ("g3b_kernel", lambda a: a("s_mov_b32 s%d, 224", S_TMP + 7))])

    def g4_ptrs(a, ph):
        if ph == 0:
            a("s_load_dwordx2 s[4:5], s[0:1], %d", ARG["ws"])
            a("s_load_dwordx2 s[30:31], s[0:1], %d", ARG["w2"])
            a("s_load_dwordx2 s[34:35], s[0:1], %d", ARG["b2"])
        elif ph == "L":
            srd(a, 8, 4, WS["U"], 1024 * 3584 * 2)
            srd(a, 12, 30, 0, 3584 * 2048 * 2)
        else:
            srd(a, 20, 4, WS["X1"], ACT_BYTES)
            srd(a, 56, 34, 0, 4096)
            srd_stub(a, 16)
            srd(a, 60, 4, WS["ST"], ST_BYTES)
    def pre_out(a):
        a("s_load_dwordx2 s[6:7], s[0:1], %d", ARG["out"])
        a("s_mov_b32 s%d, 0", S_TMP + 7)
    lds_g4 = gen_gemm(body, "g4", 256, Op("kc", 64, 7168), Op("km", 128, 4096), 1, 4, 56, OPT.get("S4", 4), OPT.get("W4", 4), g4_ptrs, dec_4x8,
                      "resid+biasB", "plain", 2048, stubs=[("g4a_kernel", pre_l2), ("g4b_kernel", pre_out)], stats=True)
    if extra_empty:
        kernel_header(body, "empty_kernel")
        body("s_endpgm")
        kernel_desc(body, "empty_kernel", 8, 16)

    L = lambda k, g, b, l: "; @launch kernel=%s grid=(%d,1,1) block=(%d,1,1) lds=%d" % (k, g, b, l)
    launches = []
    for ab in "ab":
        launches += [L("g1%s_kernel" % ab, 256, 512, lds_g1), L("g2%s_kernel" % ab, 256, 512, lds_g2),
                     L("ln3_kernel", 512, 256, 0), L("g3%s_kernel" % ab, 256 if ab == "a" else 224, 512, lds_g3), L("g4%s_kernel" % ab, 256, 512, lds_g4)]
    launches += [L("empty_kernel", 256, 64, 0)] * extra_empty
    head = open("/code/%s.s.ref" % NAME).read().split("; Override launch geometry")[0]
    text = head + "\n".join(launches) + "\n" + '.amdgcn_target "amdgcn-amd-amdhsa--gfx950"\n' + body.text()
    return text

if __name__ == "__main__":
    out = sys.argv[1] if len(sys.argv) > 1 else "/code/%s.s" % NAME
    extra = 0
    for o in sys.argv[2:]:
        k, _, v = o.partition("=")
        OPT[k] = int(v) if v else 1
    extra = OPT.get("empty", 0)
    text = build(extra)
    open(out, "w").write(text)
    import json
    json.dump(KID, open(out + ".kid", "w"))
    hazard.check(text)
```

```python
import sys, struct, math
from asmlib import *
import hazard

NAME = "interleave_layers__sliding_local_dilated__mixer_token_mlp__prompt"
MB = 1 << 20
WS = dict(ST=0, CS=1 * MB, EX=2 * MB, O=4 * MB, X1=8 * MB, H=12 * MB, U=16 * MB, X2=24 * MB, PART=28 * MB)
ST_BYTES = 16 * 2048 * 8
CS_BYTES = 16 * 3072 * 4
PART_BYTES = 256 * 16384
ARG = dict(x=0, wqkv=8, wo=16, bx=24, w1=32, b1=40, w2=48, b2=56, out=64, dbg=72, ws=80)
ACT_BYTES = 2048 * 1024 * 2

OPT = {}

def STF():
    return {0: "", 1: " sc1", 2: " nt", 3: " sc0 sc1", 4: " sc0 sc1 nt"}[OPT.get("stf", 1)]

def f32(x):
    return struct.unpack("<I", struct.pack("<f", x))[0]

STAMP_OFF = 64 * MB
KID = {}
def stamp(a, k):
    if OPT.get("stamp"):
        a("%s s[%d:%d]", "s_memtime" if OPT["stamp"] == 2 else "s_memrealtime", 64 + 2 * k, 65 + 2 * k)

def stamp_flush(a, name, n, wsreg=4, waitvm=True, extra=False):
    if not OPT.get("stamp"): return
    kid = KID.setdefault(name, len(KID))
    if waitvm: a("s_waitcnt vmcnt(0)")
    a("%s s[%d:%d]", "s_memtime" if OPT["stamp"] == 2 else "s_memrealtime", 64 + 2 * n, 65 + 2 * n)
    a("s_waitcnt lgkmcnt(0)")
    a("s_add_u32 s84, s%d, 0x%x", wsreg, STAMP_OFF + kid * 512 * 1024)
    a("s_addc_u32 s85, s%d, 0", wsreg + 1)
    a("s_mov_b32 s86, 0x80000")
    a("s_mov_b32 s87, 0x20000")
    a("v_lshrrev_b32 v1, 6, v0")
    a("v_lshlrev_b32 v1, 6, v1")
    a("s_lshl_b32 s88, s2, 9")
    a("v_add_u32 v1, s88, v1")
    for k in range(n + 1 + extra):
        a("v_mov_b32 v2, s%d", 64 + 2 * k)
        a("buffer_store_dword v2, v1, s[84:87], 0 offen offset:%d", 4 * k)
        a("s_nop 1")

def srd(a, d, p, off, nbytes):
    if off:
        a("s_add_u32 s%d, s%d, 0x%x", d, p, off)
        a("s_addc_u32 s%d, s%d, 0", d + 1, p + 1)
    else:
        a("s_mov_b32 s%d, s%d", d, p)
        a("s_mov_b32 s%d, s%d", d + 1, p + 1)
    a("s_mov_b32 s%d, 0x%x", d + 2, nbytes)
    a("s_mov_b32 s%d, 0x20000", d + 3)

def wave_sum(a, v, sdst):
    for m in ("quad_perm:[1,0,3,2] row_mask:0xf bank_mask:0xf", "quad_perm:[2,3,0,1] row_mask:0xf bank_mask:0xf",
              "row_half_mirror row_mask:0xf bank_mask:0xf", "row_mirror row_mask:0xf bank_mask:0xf",
              "row_bcast:15 row_mask:0xa bank_mask:0xf", "row_bcast:31 row_mask:0xc bank_mask:0xf"):
        a("s_nop 1")
        a("v_add_f32_dpp v%d, v%d, v%d %s", v, v, v, m)
    a("s_nop 1")
    a("v_readlane_b32 s%d, v%d, 63", sdst, v)
    a("s_nop 1")

def unpack16(a, src, dst):
    for i in range(8):
        a("v_lshlrev_b32 v%d, 16, v%d", dst + 2 * i, src + i)
        a("v_and_b32 v%d, 0xffff0000, v%d", dst + 2 * i + 1, src + i)

def pack16(a, src, dst):
    for i in range(8):
        a("v_cvt_pk_bf16_f32 v%d, v%d, v%d", dst + i, src + 2 * i, src + 2 * i + 1)

def round_bf16_scalar(a, v):
    a("v_cvt_pk_bf16_f32 v%d, v%d, v%d", v, v, v)
    a("v_lshlrev_b32 v%d, 16, v%d", v, v)

def emit_ln(a, X, T, P):
    s = T + 16
    for i in range(4):
        a("v_pk_add_f32 v[%d:%d], v[%d:%d], v[%d:%d]", T + 2 * i, T + 2 * i + 1, X + 4 * i, X + 4 * i + 1, X + 4 * i + 2, X + 4 * i + 3)
    a("v_pk_add_f32 v[%d:%d], v[%d:%d], v[%d:%d]", T, T + 1, T, T + 1, T + 2, T + 3)
    a("v_pk_add_f32 v[%d:%d], v[%d:%d], v[%d:%d]", T + 4, T + 5, T + 4, T + 5, T + 6, T + 7)
    a("v_pk_add_f32 v[%d:%d], v[%d:%d], v[%d:%d]", T, T + 1, T, T + 1, T + 4, T + 5)
    a("v_add_f32 v%d, v%d, v%d", s, T, T + 1)
    wave_sum(a, s, 40)
    a("v_mov_b32 v%d, 0x%x", s + 1, f32(-1.0 / 1024))
    a("v_mul_f32 v%d, s40, v%d", s, s + 1)
    a("v_mov_b32 v%d, v%d", s + 1, s)
    for i in range(8):
        a("v_pk_add_f32 v[%d:%d], v[%d:%d], v[%d:%d]", T + 2 * i, T + 2 * i + 1, X + 2 * i, X + 2 * i + 1, s, s + 1)
    a("v_pk_mul_f32 v[%d:%d], v[%d:%d], v[%d:%d]", s + 2, s + 3, T, T + 1, T, T + 1)
    for i in range(1, 8):
        a("v_pk_fma_f32 v[%d:%d], v[%d:%d], v[%d:%d], v[%d:%d]", s + 2, s + 3, T + 2 * i, T + 2 * i + 1, T + 2 * i, T + 2 * i + 1, s + 2, s + 3)
    a("v_add_f32 v%d, v%d, v%d", s + 2, s + 2, s + 3)
    round_bf16_scalar(a, s)
    a("v_mov_b32 v%d, v%d", s + 1, s)
    wave_sum(a, s + 2, 41)
    for i in range(8):
        a("v_pk_add_f32 v[%d:%d], v[%d:%d], v[%d:%d]", T + 2 * i, T + 2 * i + 1, X + 2 * i, X + 2 * i + 1, s, s + 1)
    a("v_mov_b32 v%d, 0x%x", s + 2, f32(1.0 / 1024))
    a("v_mul_f32 v%d, s41, v%d", s + 2, s + 2)
    round_bf16_scalar(a, s + 2)
    a("v_add_f32 v%d, 0x%x, v%d", s + 2, f32(1e-5), s + 2)
    round_bf16_scalar(a, s + 2)
    a("v_sqrt_f32 v%d, v%d", s + 2, s + 2)
    pack16(a, T, P)
    round_bf16_scalar(a, s + 2)
    a("v_rcp_f32 v%d, v%d", s + 2, s + 2)
    unpack16(a, P, T)
    a("v_mov_b32 v%d, v%d", s + 3, s + 2)
    for i in range(8):
        a("v_pk_mul_f32 v[%d:%d], v[%d:%d], v[%d:%d]", T + 2 * i, T + 2 * i + 1, T + 2 * i, T + 2 * i + 1, s + 2, s + 3)
    pack16(a, T, P)

def gen_ln3(a, name):
    kernel_header(a, name)
    a("s_cmp_ge_u32 s2, 512")
    a("s_cbranch_scc1 %s_done", name)
    stamp(a, 0)
    a("s_load_dwordx2 s[4:5], s[0:1], %d", ARG["ws"])
    a("v_lshrrev_b32 v1, 6, v0")
    a("v_and_b32 v2, 63, v0")
    a("s_lshl_b32 s3, s2, 2")
    a("v_add_u32 v1, s3, v1")
    a("v_lshlrev_b32 v3, 11, v1")
    a("v_lshl_add_u32 v3, v2, 4, v3")
    a("s_waitcnt lgkmcnt(0)")
    stamp(a, 1)
    X, T, P = 16, 32, 8
    srd(a, 8, 4, WS["X1"], ACT_BYTES)
    a("buffer_load_dwordx4 v[8:11], v3, s[8:11], 0 offen")
    a("buffer_load_dwordx4 v[12:15], v3, s[8:11], 0 offen offset:1024")
    srd(a, 12, 4, WS["H"], ACT_BYTES)
    a("s_waitcnt vmcnt(0)")
    stamp(a, 2)
    unpack16(a, P, X)
    emit_ln(a, X, T, P)
    unpack16(a, P, X)
    emit_ln(a, X, T, P)
    stamp(a, 3)
    a("buffer_store_dwordx4 v[8:11], v3, s[12:15], 0 offen" + STF())
    a("buffer_store_dwordx4 v[12:15], v3, s[12:15], 0 offen offset:1024" + STF())
    stamp_flush(a, name, 4)
    a.label(name + "_done")
    a("s_endpgm")
    kernel_desc(a, name, 52, 96 if OPT.get("stamp") else 48)

PRE_GRID = 256 + 64 + 448
def gen_pre(a, name):
    kernel_header(a, name)
    a("s_cmp_ge_u32 s2, 256")
    a("s_cbranch_scc1 %s_pf", name)
    stamp(a, 0)
    a("s_load_dwordx2 s[4:5], s[0:1], %d", ARG["ws"])
    a("s_load_dwordx2 s[6:7], s[0:1], %d", ARG["x"])
    a("s_load_dwordx2 s[28:29], s[0:1], %d", ARG["wqkv"])
    a("s_lshr_b32 s24, s2, 4")
    a("s_and_b32 s25, s2, 15")
    a("v_lshrrev_b32 v1, 3, v0")
    a("v_and_b32 v2, 7, v0")
    a("v_lshlrev_b32 v3, 13, v1")
    a("v_lshl_add_u32 v3, v2, 4, v3")
    a("s_lshl_b32 s26, s24, 18")
    a("s_lshl_b32 s27, s25, 7")
    a("s_add_u32 s26, s26, s27")
    a("v_add_u32 v3, s26, v3")
    a("v_add_u32 v4, 0x1000, v3")
    a("v_mul_u32_u24 v5, 2731, v0")
    a("v_lshrrev_b32 v5, 16, v5")
    a("v_mul_u32_u24 v6, 24, v5")
    a("v_sub_u32 v6, v0, v6")
    a("v_min_u32 v5, 7, v5")
    a("s_mov_b32 s30, %d", 8 * 6144)
    a("v_mul_lo_u32 v7, v5, s30")
    a("v_lshrrev_b32 v8, 3, v6")
    a("v_lshl_add_u32 v7, v8, 11, v7")
    a("v_and_b32 v8, 7, v6")
    a("v_lshl_add_u32 v7, v8, 4, v7")
    a("s_mul_i32 s30, s24, %d", 64 * 6144)
    a("s_add_u32 s30, s30, s27")
    a("v_add_u32 v7, s30, v7")
    a("s_waitcnt lgkmcnt(0)")
    stamp(a, 1)
    srd(a, 8, 6, 0, ACT_BYTES)
    srd(a, 12, 28, 0, 1024 * 3072 * 2)
    for q in range(4):
        a("buffer_load_dwordx4 v[%d:%d], v%d, s[8:11], 0 offen offset:%d", 16 + 4 * q, 19 + 4 * q, 3 + (q >> 1), (q & 1) * 2048)
    for i in range(8):
        a("s_mov_b32 s31, %d", i * 6144)
        a("buffer_load_dwordx4 v[%d:%d], v7, s[12:15], s31 offen", 32 + 4 * i, 35 + 4 * i)
    srd(a, 16, 4, WS["ST"], ST_BYTES)
    srd(a, 20, 4, WS["CS"], CS_BYTES)
    a("v_mov_b32 v9, 0x3f803f80")
    for k in range(8): a("v_mov_b32 v%d, 0", 64 + k)
    a("s_waitcnt vmcnt(8)")
    stamp(a, 2)
    for e in range(4):
        for q in range(4):
            a("v_dot2_f32_bf16 v%d, v%d, v9, v%d", 64 + 2 * q, 16 + 4 * q + e, 64 + 2 * q)
            a("v_dot2_f32_bf16 v%d, v%d, v%d, v%d", 65 + 2 * q, 16 + 4 * q + e, 16 + 4 * q + e, 65 + 2 * q)
    a("s_nop 2")
    for m in ("quad_perm:[1,0,3,2]", "quad_perm:[2,3,0,1]", "row_half_mirror"):
        for k in range(8):
            a("v_add_f32_dpp v%d, v%d, v%d %s row_mask:0xf bank_mask:0xf", 64 + k, 64 + k, 64 + k, m)
    a("v_lshlrev_b32 v10, 5, v1")
    a("s_lshl_b32 s30, s25, 14")
    a("s_lshl_b32 s31, s24, 10")
    a("s_add_u32 s30, s30, s31")
    a("v_add_u32 v10, s30, v10")
    a("v_cmp_eq_u32 vcc, 0, v2")
    a("s_and_saveexec_b64 s[34:35], vcc")
    a("buffer_store_dwordx4 v[64:67], v10, s[16:19], 0 offen" + STF())
    a("buffer_store_dwordx4 v[68:71], v10, s[16:19], 0 offen offset:16" + STF())
    a("s_mov_b64 exec, s[34:35]")
    for i in range(8):
        a("s_waitcnt vmcnt(%d)", 2 + 7 - i)
        dst = 72 if i == 0 else 80
        for e in range(4):
            a("v_lshlrev_b32 v%d, 16, v%d", dst + 2 * e, 32 + 4 * i + e)
            a("v_and_b32 v%d, 0xffff0000, v%d", dst + 2 * e + 1, 32 + 4 * i + e)
        if i:
            for e in range(4):
                a("v_pk_add_f32 v[%d:%d], v[%d:%d], v[%d:%d]", 72 + 2 * e, 73 + 2 * e, 72 + 2 * e, 73 + 2 * e, 80 + 2 * e, 81 + 2 * e)
    a("v_lshlrev_b32 v11, 5, v0")
    a("ds_write_b128 v11, v[72:75]")
    a("ds_write_b128 v11, v[76:79] offset:16")
    a("v_lshlrev_b32 v11, 2, v0")
    a("s_waitcnt lgkmcnt(0)")
    a("s_barrier")
    for rg in range(8):
        a("ds_read_b32 v%d, v11 offset:%d", 80 + rg, rg * 768)
    a("v_lshrrev_b32 v12, 6, v0")
    a("v_lshlrev_b32 v12, 12, v12")
    a("v_and_b32 v13, 63, v0")
    a("v_lshl_add_u32 v12, v13, 2, v12")
    a("s_mul_i32 s30, s24, %d", 3072 * 4)
    a("s_lshl_b32 s31, s25, 8")
    a("s_add_u32 s30, s30, s31")
    a("v_add_u32 v12, s30, v12")
    a("s_waitcnt lgkmcnt(0)")
    for st in (4, 2, 1):
        for k in range(st):
            a("v_add_f32 v%d, v%d, v%d", 80 + k, 80 + k, 80 + k + st)
    a("v_cmp_gt_u32 vcc, 192, v0")
    a("s_and_saveexec_b64 s[34:35], vcc")
    a("s_cbranch_execz %s_skip", name)
    a("buffer_store_dword v80, v12, s[20:23], 0 offen" + STF())
    a.label(name + "_skip")
    a("s_mov_b64 exec, s[34:35]")
    stamp(a, 3)
    stamp_flush(a, name, 4)
    a.label(name + "_done")
    a("s_endpgm")
    a.label(name + "_pf")
    a("s_cmp_ge_u32 s2, %d", PRE_GRID)
    a("s_cbranch_scc1 %s_done", name)
    a("s_load_dwordx2 s[4:5], s[0:1], %d", ARG["wo"])
    a("s_load_dwordx2 s[6:7], s[0:1], %d", ARG["w1"])
    a("s_sub_u32 s3, s2, 256")
    a("v_lshlrev_b32 v1, 4, v0")
    a("s_cmp_lt_u32 s3, 64")
    a("s_waitcnt lgkmcnt(0)")
    a("s_cselect_b32 s8, s4, s6")
    a("s_cselect_b32 s9, s5, s7")
    a("s_mov_b32 s12, 0x%x", 1024 * 1024 * 2)
    a("s_mov_b32 s13, 0x%x", 2048 * 3584 * 2)
    a("s_cselect_b32 s10, s12, s13")
    a("s_mov_b32 s11, 0x20000")
    a("s_cselect_b32 s12, 0, 64")
    a("s_sub_u32 s3, s3, s12")
    a("s_lshl_b32 s3, s3, 15")
    for k in range(8):
        a("buffer_load_dwordx4 v[4:7], v1, s[8:11], s3 offen")
        a("s_add_u32 s3, s3, 4096")
    if OPT.get("pfwait"): a("s_waitcnt vmcnt(0)")
    a("s_endpgm")
    kernel_desc(a, name, 88, 96 if OPT.get("stamp") else 48)

class Op:
    def __init__(self, kind, T, ld):
        self.kind, self.T, self.ld = kind, T, ld
        self.bytes = T * 128
        self.n = self.bytes // 1024
        self.npw = self.n // 4
        self.kadv = 128 if kind == "kc" else 64 * ld

S_TA, S_TB, S_KB, S_J, S_W = 24, 25, 26, 27, 28
S_T, S_SLOT, S_OFA, S_OFB = 32, 33, 34, 35
S_LA, S_LB, S_M0A, S_M0B = 36, 37, 38, 39
S_TMP = 40
S_CNT, S_DELTA, S_SI = 48, 49, 50
S_ST = 52
S_DP, S_DN = 51, 29
S_N, S_ROLE, S_PAIR, S_OWN, S_OTH, S_WM = 90, 91, 92, 93, 94, 95

def loader_voffs(a, op, stile, vb, extra_cols=0):
    ld = op.ld
    a("s_mov_b32 s%d, %d", S_TMP, ld)
    if op.kind == "kc":
        a("v_lshrrev_b32 v3, 3, v2")
        a("v_mul_lo_u32 v3, v3, s%d", S_TMP)
        a("v_lshrrev_b32 v4, 4, v2")
        a("v_xor_b32 v4, v4, v2")
        a("v_and_b32 v4, 7, v4")
        a("v_lshl_add_u32 v3, v4, 4, v3")
        a("s_mul_i32 s%d, s%d, %d", S_TMP + 1, stile, op.T * ld)
        a("s_mul_i32 s%d, s%d, %d", S_TMP + 2, S_W, 8 * op.npw * ld)
        a("s_add_u32 s%d, s%d, s%d", S_TMP + 1, S_TMP + 1, S_TMP + 2)
        a("v_xor_b32 v4, 64, v3")
        for i in range(op.npw):
            a("s_add_u32 s%d, s%d, %d", S_TMP + 2, S_TMP + 1, i * 8 * ld)
            a("v_add_u32 v%d, s%d, v%d", vb + i, S_TMP + 2, 3 + (i & 1))
    elif op.T == 128:
        a("v_lshrrev_b32 v4, 4, v2")
        a("v_mul_lo_u32 v3, v4, s%d", S_TMP)
        a("v_lshlrev_b32 v4, 1, v4")
        a("v_xor_b32 v4, v4, v2")
        a("v_and_b32 v4, 15, v4")
        a("v_lshl_add_u32 v3, v4, 4, v3")
        a("s_mul_i32 s%d, s%d, 256", S_TMP + 1, stile)
        a("s_mul_i32 s%d, s%d, %d", S_TMP + 2, S_W, 16 * ld)
        a("s_add_u32 s%d, s%d, s%d", S_TMP + 1, S_TMP + 1, S_TMP + 2)
        a("v_xor_b32 v4, 128, v3")
        for i in range(4):
            a("s_add_u32 s%d, s%d, %d", S_TMP + 2, S_TMP + 1, i * 4 * ld)
            a("v_add_u32 v%d, s%d, v%d", vb + i, S_TMP + 2, 3 + (i >> 1))
    elif op.T == 64:
        a("v_lshrrev_b32 v3, 3, v2")
        a("v_mul_lo_u32 v3, v3, s%d", S_TMP)
        a("v_bfe_u32 v4, v2, 4, 1")
        a("v_lshlrev_b32 v4, 1, v4")
        a("v_xor_b32 v4, v4, v2")
        a("v_and_b32 v4, 7, v4")
        a("v_lshl_add_u32 v3, v4, 4, v3")
        a("s_mul_i32 s%d, s%d, 128", S_TMP + 1, stile)
        a("s_mul_i32 s%d, s%d, %d", S_TMP + 2, S_W, 16 * ld)
        a("s_add_u32 s%d, s%d, s%d", S_TMP + 1, S_TMP + 1, S_TMP + 2)
        a("v_xor_b32 v4, 64, v3")
        for i in range(2):
            a("s_add_u32 s%d, s%d, %d", S_TMP + 2, S_TMP + 1, i * 8 * ld + extra_cols * 2)
            a("v_add_u32 v%d, s%d, v%d", vb + i, S_TMP + 2, 3 + i)
    else:
        raise ValueError

def lane_parts(a):
    a("v_lshrrev_b32 v5, 4, v2")
    a("v_bfe_u32 v6, v2, 2, 2")
    a("v_and_b32 v7, 3, v2")
    a("v_and_b32 v8, 15, v2")

def read_addrs_kc(a, opbase, srow, vb):
    a("v_lshrrev_b32 v3, 1, v8")
    a("v_xor_b32 v3, v3, v5")
    a("v_lshlrev_b32 v3, 4, v3")
    a("v_lshl_add_u32 v3, v8, 7, v3")
    if srow is not None:
        a("s_lshl_b32 s%d, s%d, 7", S_TMP, srow)
        a("s_add_u32 s%d, s%d, %d", S_TMP, S_TMP, opbase)
        a("v_add_u32 v%d, s%d, v3", vb, S_TMP)
    else:
        a("v_add_u32 v%d, %d, v3", vb, opbase)
    a("v_xor_b32 v%d, 64, v%d", vb + 1, vb)

def read_addr_km(a, T, sbase, stile, i, vd, sxor=None):
    rowb = T * 2
    if T == 128:
        a("v_and_b32 v3, 1, v5")
        a("v_lshl_or_b32 v3, v3, 2, v6")
    else:
        a("v_and_b32 v3, 1, v5")
        a("v_lshlrev_b32 v3, 1, v3")
        a("v_lshrrev_b32 v4, 1, v6")
        a("v_or_b32 v3, v3, v4")
    a("s_add_u32 s%d, s%d, %d", S_TMP, stile, i)
    if sxor is not None: a("s_xor_b32 s%d, s%d, s%d", S_TMP, S_TMP, sxor)
    a("v_xor_b32 v3, s%d, v3", S_TMP)
    a("v_lshlrev_b32 v3, 5, v3")
    a("v_lshl_add_u32 v3, v7, 3, v3")
    a("v_lshl_add_u32 v4, v5, 3, v6")
    a("v_lshl_add_u32 v3, v4, %d, v3", rowb.bit_length() - 1)
    a("v_add_u32 v%d, s%d, v3", vd, sbase)

def frag_reads(kind, T, addr_regs, idx, ks, dst):
    if kind == "kc":
        return ["ds_read_b128 v[%d:%d], v%d offset:%d" % (dst, dst + 3, addr_regs[ks], idx * 2048)]
    rowb = T * 2
    return ["ds_read_b64_tr_b16 v[%d:%d], v%d offset:%d" % (dst + 2 * h, dst + 2 * h + 1, addr_regs[idx], h * 4 * rowb + ks * 32 * rowb)
            for h in range(2)]

def interleave(a, mfmas, reads, tail=()):
    reads = list(reads); tail = list(tail)
    if OPT.get("noreads"): reads = []
    if OPT.get("nomfma"): mfmas = ["s_nop 0"] * 2
    for m in mfmas:
        a(m)
        budget = 2
        while reads and budget > 0:
            cost = 2 if "b128" in reads[0] else 1
            if cost > budget: break
            a(reads.pop(0)); budget -= cost
        if not reads:
            while tail and budget > 0:
                a(tail.pop(0)); budget -= 1
    for r in reads: a(r)
    for t in tail: a(t)

def loader_loop(a, name, issue, n_per_wave, N, S, stage_bytes, events=(), tail=None):
    a("s_mov_b32 s%d, 0", S_T)
    a("s_mov_b32 s%d, 0", S_SLOT)
    a.label(name + "_ld_loop")
    a("s_cmp_lt_u32 s%d, %d", S_T, S - 1)
    a("s_cbranch_scc1 %s_ld_issue", name)
    opnd = lambda at: str(at[1]) if isinstance(at, tuple) else "s%d" % at
    for k, (at, extra, fn) in enumerate(events):
        if extra:
            a("s_sub_u32 s%d, s%d, %s", S_TMP, S_T, opnd(at))
            a("s_sub_u32 s%d, s%d, 1", S_TMP, S_TMP)
            a("s_cmp_lt_u32 s%d, %d", S_TMP, S - 1)
            a("s_cbranch_scc1 %s_ld_w%d", name, k)
    a("s_waitcnt vmcnt(%d)", (S - 2) * n_per_wave)
    a.label(name + "_ld_bar")
    a("s_barrier")
    a.label(name + "_ld_issue")
    if not OPT.get("noload"): issue()
    for k, (at, extra, fn) in enumerate(events):
        a("s_cmp_eq_u32 s%d, %s", S_T, opnd(at))
        a("s_cbranch_scc1 %s_ld_h%d", name, k)
        a.label(name + "_ld_c%d" % k)
    a("s_add_u32 s%d, s%d, %d", S_SLOT, S_SLOT, stage_bytes)
    a("s_cmp_eq_u32 s%d, %d", S_SLOT, S * stage_bytes)
    a("s_cselect_b32 s%d, 0, s%d", S_SLOT, S_SLOT)
    a("s_add_u32 s%d, s%d, 1", S_T, S_T)
    a("s_cmp_lt_u32 s%d, %s", S_T, N)
    a("s_cbranch_scc1 %s_ld_loop", name)
    if tail: tail()
    else:
        for t in range(N - S + 1, N):
            a("s_waitcnt vmcnt(%d)", (N - 1 - t) * n_per_wave)
            a("s_barrier")
    if events:
        a("s_branch %s_ld_end", name)
        for k, (at, extra, fn) in enumerate(events):
            if extra:
                a.label(name + "_ld_w%d" % k)
                a("s_waitcnt vmcnt(%d)", (S - 2) * n_per_wave + extra)
                a("s_branch %s_ld_bar", name)
            a.label(name + "_ld_h%d" % k)
            fn()
            a("s_branch %s_ld_c%d", name, k)
        a.label(name + "_ld_end")

def kidx_offsets(a, W, advA, advB, wrap=0):
    wm = ("s%d" % S_WM) if W == "s" else str(W - 1)
    a("s_add_u32 s%d, s%d, s%d", S_TMP, S_T, S_J)
    a("s_and_b32 s%d, s%d, %s", S_TMP, S_TMP, wm)
    a("s_andn2_b32 s%d, s%d, %s", S_TMP + 1, S_T, wm)
    a("s_or_b32 s%d, s%d, s%d", S_TMP, S_TMP, S_TMP + 1)
    a("s_add_u32 s%d, s%d, s%d", S_TMP, S_TMP, S_KB)
    if wrap: a("s_and_b32 s%d, s%d, %d", S_TMP, S_TMP, wrap - 1)
    a("s_mul_i32 s%d, s%d, %d", S_OFA, S_TMP, advA)
    a("s_mul_i32 s%d, s%d, %d", S_OFB, S_TMP, advB)

def compute_loop_ctl_init(a, N, S, stage_bytes):
    a("s_mov_b32 s%d, %s", S_CNT, N)
    a("s_mov_b32 s%d, 0", S_SI)
    a("s_mov_b32 s%d, %d", S_DP, stage_bytes)
    a("s_mov_b32 s%d, 0x%x", S_DN, (-(S - 1) * stage_bytes) & 0xffffffff)

def addr_update(addr_regs, S, stage_bytes):
    L = ["s_add_u32 s%d, s%d, 1" % (S_SI, S_SI),
         "s_cmp_eq_u32 s%d, %d" % (S_SI, S),
         "s_cselect_b32 s%d, s%d, s%d" % (S_DELTA, S_DN, S_DP),
         "s_cselect_b32 s%d, 0, s%d" % (S_SI, S_SI)]
    L += ["v_add_u32 v%d, s%d, v%d" % (r, S_DELTA, r) for r in addr_regs]
    L += ["s_sub_u32 s%d, s%d, 1" % (S_CNT, S_CNT), "s_cmp_lg_u32 s%d, 0" % S_CNT]
    return L

def gelu_pairs(a, regs, tmp, cst):
    n = len(regs)
    pr = lambda r: "v[%d:%d]" % (r, r + 1)
    for k, r in enumerate(regs): a("v_pk_mul_f32 %s, %s, %s", pr(tmp + 2 * k), pr(r), pr(r))
    for k, r in enumerate(regs): a("v_pk_fma_f32 %s, %s, %s, %s", pr(tmp + 2 * k), pr(tmp + 2 * k), pr(cst), pr(cst + 2))
    for k, r in enumerate(regs): a("v_pk_mul_f32 %s, %s, %s", pr(tmp + 2 * k), pr(tmp + 2 * k), pr(r))
    for k in range(2 * n): a("v_exp_f32 v%d, v%d", tmp + k, tmp + k)
    for k, r in enumerate(regs): a("v_pk_add_f32 %s, %s, %s", pr(tmp + 2 * k), pr(tmp + 2 * k), pr(cst + 4))
    for k in range(2 * n): a("v_rcp_f32 v%d, v%d", tmp + k, tmp + k)
    for k, r in enumerate(regs): a("v_pk_mul_f32 %s, %s, %s", pr(r), pr(r), pr(tmp + 2 * k))

def cloop(a, name, mf, rd, addrs, S, stage, pre_final=None):
    stamp(a, 2)
    if OPT.get("stamp"):
        a("s_barrier")
        stamp(a, 3)
        a("s_waitcnt lgkmcnt(0)")
        a("s_branch %s_cloop2", name)
    a.raw(".p2align 3")
    a.label(name + "_cloop")
    a("s_barrier")
    a.label(name + "_cloop2")
    interleave(a, mf(1), rd(0, 0))
    a("s_waitcnt lgkmcnt(0)")
    interleave(a, mf(0), rd(1, 1), addr_update(addrs, S, stage))
    a("s_waitcnt lgkmcnt(0)")
    a("s_cbranch_scc1 %s_cloop", name)
    if pre_final: pre_final()
    for m in mf(1): a(m)
    stamp(a, 4)

def entry(a, name, stubs, ntiles, spare=False):
    if stubs:
        for (kn, pre) in stubs:
            kernel_header(a, kn)
            pre(a)
            a("s_branch %s_body", name)
        a.raw(".p2align 6")
        a.label(name + "_body")
    else:
        kernel_header(a, name)
    a("s_cmp_ge_u32 s2, %d", ntiles)
    a("s_cbranch_scc1 %s_%s", name, "spare" if spare else "done")
    stamp(a, 0)

def gen_gemm(a, name, ntiles, A, B, WA, WB, N, S, W, ptrs, decode, init, epi, ldc, stubs=None, stats=False, spare=None, split=None):
    na, nb = A.T // (16 * WA), B.T // (16 * WB)
    stage = A.bytes + B.bytes
    baseA, baseB = 0, A.bytes
    names = [name] if not stubs else [s[0] for s in stubs]
    entry(a, name, stubs, ntiles, spare is not None)
    ptrs(a, 0)
    a("v_lshrrev_b32 v1, 6, v0")
    a("v_and_b32 v2, 63, v0")
    decode(a)
    a("v_readfirstlane_b32 s%d, v1", S_W)
    a("s_nop 0")
    a("s_cmp_lt_u32 s%d, 4", S_W)
    a("s_cbranch_scc1 %s_compute", name)

    if OPT.get("ldprio"): a("s_setprio %d", OPT["ldprio"])
    a("s_sub_u32 s%d, s%d, 4", S_W, S_W)
    loader_voffs(a, A, S_TA, 10)
    loader_voffs(a, B, S_TB, 10 + A.npw)
    a("s_mul_i32 s%d, s%d, %d", S_LA, S_W, A.npw * 1024)
    a("s_mul_i32 s%d, s%d, %d", S_LB, S_W, B.npw * 1024)
    a("s_add_u32 s%d, s%d, %d", S_LB, S_LB, baseB)
    a("s_waitcnt lgkmcnt(0)")
    ptrs(a, "L")
    def issue():
        kidx_offsets(a, W, A.kadv, B.kadv)
        a("s_add_u32 s%d, s%d, s%d", S_M0A, S_SLOT, S_LA)
        a("s_add_u32 s%d, s%d, s%d", S_M0B, S_SLOT, S_LB)
        for (op, vb, sm, so, sr) in ((A, 10, S_M0A, S_OFA, 8), (B, 10 + A.npw, S_M0B, S_OFB, 12)):
            for i in range(op.npw):
                a("s_add_u32 m0, s%d, %d", sm, i * 1024)
                a("s_nop 0")
                a("buffer_load_dwordx4 v%d, s[%d:%d], s%d offen lds", vb + i, sr, sr + 3, so)
    loader_loop(a, name, issue, A.npw + B.npw, N, S, stage)
    a.label(name + "_done")
    a("s_endpgm")

    a.label(name + "_compute")
    ACC = 28
    BV = 22
    nacc = na * nb * 4
    FR = ACC + nacc
    fset = (na + nb) * 4
    fA = lambda st, i: FR + st * fset + 4 * i
    fB = lambda st, j: FR + st * fset + 4 * na + 4 * j
    acc = lambda i, j: ACC + 4 * (i * nb + j)
    VTOP = FR + 2 * fset
    if epi == "ln2":
        EXV = VTOP
        VTOP += 16
    nk = nb // 2 if split else nb
    if split:
        SND, RCV = VTOP, VTOP + 16
        VTOP += 32
    lane_parts(a)
    SWA, SWB = S_TMP + 4, S_TMP + 5
    a("s_and_b32 s%d, s%d, %d", SWA, S_W, WA - 1)
    a("s_lshr_b32 s%d, s%d, %d", SWB, S_W, WA.bit_length() - 1)
    a("s_mul_i32 s%d, s%d, %d", S_TMP, S_TB, B.T)
    a("s_mul_i32 s%d, s%d, %d", S_TMP + 1, SWB, nb * 16)
    a("s_add_u32 s%d, s%d, s%d", S_TMP, S_TMP, S_TMP + 1)
    if split:
        a("s_lshl_b32 s%d, s%d, 5", S_TMP + 1, S_ROLE)
        a("s_add_u32 s%d, s%d, s%d", S_TMP, S_TMP, S_TMP + 1)
    a("v_add_u32 v20, s%d, v8", S_TMP)
    a("s_mov_b32 s%d, %d", S_TMP + 1, ldc)
    a("v_mul_lo_u32 v9, v20, s%d", S_TMP + 1)
    a("s_mul_i32 s%d, s%d, %d", S_TMP, S_TA, A.T * 2)
    a("s_mul_i32 s%d, s%d, %d", S_TMP + 1, SWA, na * 32)
    a("s_add_u32 s%d, s%d, s%d", S_TMP + 6, S_TMP, S_TMP + 1)
    a("v_and_b32 v3, 1, v5")
    a("v_lshlrev_b32 v3, 5, v3")
    a("v_lshrrev_b32 v4, 1, v5")
    a("v_lshl_add_u32 v3, v4, 4, v3")
    a("v_add3_u32 v9, v9, v3, s%d", S_TMP + 6)
    for j in range(nb):
        a("s_mov_b32 s%d, %d", S_ST + j, j * 16 * ldc)
    a("s_waitcnt lgkmcnt(0)")
    stamp(a, 1)
    ptrs(a, "C")
    if init in ("resid", "resid+biasB"):
        for j in range(nk):
            for p in range(na // 2):
                d = FR + 4 * (j * (na // 2) + p)
                a("buffer_load_dwordx4 v[%d:%d], v9, s[20:23], s%d offen offset:%d", d, d + 3, S_ST + j, p * 64)
        if init == "resid+biasB":
            a("v_lshlrev_b32 v3, 1, v20")
            for j in range(nk):
                a("buffer_load_ushort v%d, v3, s[56:59], 0 offen offset:%d", BV + j, j * 32)
    elif init == "biasA":
        a("v_lshl_add_u32 v3, v5, 3, s%d", S_TMP + 6)
        for i in range(na):
            a("buffer_load_dwordx2 v[%d:%d], v3, s[20:23], 0 offen offset:%d", FR + 2 * i, FR + 2 * i + 1, i * 32)
    AR = 10
    def mk_addrs(op, base, swave, n, vb, sxor=None):
        if op.kind == "kc":
            a("s_mul_i32 s%d, s%d, %d", S_TMP + 2, swave, n * 16)
            read_addrs_kc(a, base, S_TMP + 2, vb)
            return [vb, vb + 1]
        a("s_mul_i32 s%d, s%d, %d", S_TMP + 2, swave, n)
        a("s_mov_b32 s%d, %d", S_TMP + 3, base)
        for i in range(n):
            read_addr_km(a, op.T, S_TMP + 3, S_TMP + 2, i, vb + i, sxor)
        return [vb + i for i in range(n)]
    adA = mk_addrs(A, baseA, SWA, na, AR)
    if split: a("s_lshl_b32 s%d, s%d, 1", S_N, S_ROLE)
    adB = mk_addrs(B, baseB, SWB, nb, AR + len(adA), S_N if split else None)
    assert AR + len(adA) + len(adB) <= 20
    for r in range(fset): a("v_mov_b32 v%d, 0", FR + fset + r)
    compute_loop_ctl_init(a, N, S, stage)
    if split:
        for i in range(na):
            for j in range(nk, nb):
                for r in range(4): a("v_mov_b32 v%d, 0", acc(i, j) + r)
        a("s_lshl_b32 s%d, s%d, 12", S_TMP, S_W)
        a("v_lshl_add_u32 v21, v2, 4, s%d", S_TMP)
        a("s_lshl_b32 s%d, s%d, 1", S_OWN, S_PAIR)
        a("s_add_u32 s%d, s%d, s%d", S_OWN, S_OWN, S_ROLE)
        a("s_lshl_b32 s%d, s%d, 14", S_OWN, S_OWN)
        a("s_xor_b32 s%d, s%d, 0x4000", S_OTH, S_OWN)
    if init == "zero":
        for r in range(nacc): a("v_mov_b32 v%d, 0", ACC + r)
    elif init in ("resid", "resid+biasB"):
        a("s_waitcnt vmcnt(0)")
        for j in range(nk):
            for p in range(na // 2):
                d = FR + 4 * (j * (na // 2) + p)
                a("v_permlane16_swap_b32 v%d, v%d", d, d + 2)
                a("v_permlane16_swap_b32 v%d, v%d", d + 1, d + 3)
        if init == "resid+biasB":
            for j in range(nk): a("v_lshlrev_b32 v%d, 16, v%d", BV + j, BV + j)
        for j in range(nk):
            for p in range(na // 2):
                d = FR + 4 * (j * (na // 2) + p)
                for h in range(2):
                    c = acc(2 * p + h, j)
                    for q in range(2):
                        a("v_lshlrev_b32 v%d, 16, v%d", c + 2 * q, d + 2 * h + q)
                        a("v_and_b32 v%d, 0xffff0000, v%d", c + 2 * q + 1, d + 2 * h + q)
                    if init == "resid+biasB":
                        for r in range(4): a("v_add_f32 v%d, v%d, v%d", c + r, c + r, BV + j)
    elif init == "biasA":
        a("s_waitcnt vmcnt(0)")
        for i in range(na):
            for j in range(nb):
                c = acc(i, j)
                for q in range(2):
                    a("v_lshlrev_b32 v%d, 16, v%d", c + 2 * q, FR + 2 * i + q)
                    a("v_and_b32 v%d, 0xffff0000, v%d", c + 2 * q + 1, FR + 2 * i + q)
    if OPT.get("cprio"): a("s_setprio %d", OPT["cprio"])
    def mf(st):
        return ["v_mfma_f32_16x16x32_bf16 v[%d:%d], v[%d:%d], v[%d:%d], v[%d:%d]" %
                (acc(i, j), acc(i, j) + 3, fA(st, i), fA(st, i) + 3, fB(st, j), fB(st, j) + 3, acc(i, j), acc(i, j) + 3)
                for i in range(na) for j in range(nb)]
    def rd(st, ks):
        L = []
        L += frag_reads(A.kind, A.T, adA, 0, ks, fA(st, 0))
        for j in range(nb): L += frag_reads(B.kind, B.T, adB, j, ks, fB(st, j))
        for i in range(1, na): L += frag_reads(A.kind, A.T, adA, i, ks, fA(st, i))
        return L
    def rcv_loads():
        for u in range(4):
            a("buffer_load_dwordx4 v[%d:%d], v21, s[84:87], s%d offen offset:%d sc1", RCV + 4 * u, RCV + 4 * u + 3, S_OTH, u * 1024)
    cloop(a, name, mf, rd, adA + adB, S, stage, pre_final=rcv_loads if split and not OPT.get("late4", 1) else None)
    TMPV = FR
    if epi == "gelu":
        c1 = -2.0 * math.log2(math.e) * math.sqrt(2.0 / math.pi) * 0.044715
        c0 = -2.0 * math.log2(math.e) * math.sqrt(2.0 / math.pi)
        for k, v in enumerate((c1, c1, c0, c0, 1.0, 1.0)):
            a("v_mov_b32 v%d, 0x%x", AR + k, f32(v))
    if split:
        tiles = lambda j0: [(i, j) for j in range(j0, j0 + nk) for i in range(na)]
        for u, (i, j) in enumerate(tiles(nk)):
            c = acc(i, j)
            if u == 7: a("s_nop 3")
            a("v_cvt_pk_bf16_f32 v%d, v%d, v%d", SND + 2 * u, c, c + 1)
            a("v_cvt_pk_bf16_f32 v%d, v%d, v%d", SND + 2 * u + 1, c + 2, c + 3)
            if u & 1:
                a("buffer_store_dwordx4 v[%d:%d], v21, s[84:87], s%d offen offset:%d sc1", SND + 2 * u - 2, SND + 2 * u + 1, S_OWN, (u >> 1) * 1024)
        a("s_mov_b32 s%d, 0x2000", S_CNT)
        stamp(a, 5)
        if OPT.get("late4", 1):
            rcv_loads()
            a("s_waitcnt vmcnt(0)")
        else:
            a("s_waitcnt vmcnt(4)")
        a.label(name + "_rcv")
        a("v_max3_u32 v4, v%d, v%d, v%d", RCV, RCV + 1, RCV + 2)
        for q in range(3, 15, 2): a("v_max3_u32 v4, v4, v%d, v%d", RCV + q, RCV + q + 1)
        a("v_max_u32 v4, v4, v%d", RCV + 15)
        a("v_cmp_eq_u32 vcc, -1, v4")
        a("s_sub_u32 s%d, s%d, 1", S_CNT, S_CNT)
        a("s_cmp_eq_u32 s%d, 0", S_CNT)
        a("s_cbranch_scc1 %s_rcvd", name)
        a("s_cbranch_vccz %s_rcvd", name)
        a("s_sleep %d", OPT.get("slp", 2))
        rcv_loads()
        a("s_waitcnt vmcnt(0)")
        a("s_branch %s_rcv", name)
        a.label(name + "_rcvd")
        stamp(a, 6)
        if OPT.get("stamp"): a("s_add_u32 s%d, s%d, 0x6000", 64 + 2 * 9, S_CNT)
        for u, (i, j) in enumerate(tiles(0)):
            c = acc(i, j); t = TMPV + 16 + 4 * (u & 3)
            for q in range(2):
                a("v_lshlrev_b32 v%d, 16, v%d", t + 2 * q, RCV + 2 * u + q)
                a("v_and_b32 v%d, 0xffff0000, v%d", t + 2 * q + 1, RCV + 2 * u + q)
            for q in range(2):
                a("v_pk_add_f32 v[%d:%d], v[%d:%d], v[%d:%d]", c + 2 * q, c + 2 * q + 1, c + 2 * q, c + 2 * q + 1, t + 2 * q, t + 2 * q + 1)
    def stats_block():
        assert nk in (2, 4) and na == 4
        pr = lambda r: "v[%d:%d]" % (r, r + 1)
        SV = TMPV + 16
        for j in range(nk):
            prs = [acc(i, j) + 2 * q for i in range(na) for q in range(2)]
            a("v_pk_add_f32 %s, %s, %s", pr(SV + 4 * j), pr(prs[0]), pr(prs[1]))
            a("v_pk_mul_f32 %s, %s, %s", pr(SV + 4 * j + 2), pr(prs[0]), pr(prs[0]))
            for x in prs[1:]:
                if x != prs[1]: a("v_pk_add_f32 %s, %s, %s", pr(SV + 4 * j), pr(SV + 4 * j), pr(x))
                a("v_pk_fma_f32 %s, %s, %s, %s", pr(SV + 4 * j + 2), pr(x), pr(x), pr(SV + 4 * j + 2))
        for j in range(nk):
            a("v_add_f32 v%d, v%d, v%d", SV + 4 * j, SV + 4 * j, SV + 4 * j + 1)
            a("v_add_f32 v%d, v%d, v%d", SV + 4 * j + 1, SV + 4 * j + 2, SV + 4 * j + 3)
        a("s_nop 1")
        for j in range(0, nk, 2):
            a("v_permlane16_swap_b32 v%d, v%d", SV + 4 * j, SV + 4 * j + 4)
            a("v_permlane16_swap_b32 v%d, v%d", SV + 4 * j + 1, SV + 4 * j + 5)
        for j in range(0, nk, 2):
            a("v_pk_add_f32 %s, %s, %s", pr(SV + 4 * j), pr(SV + 4 * j), pr(SV + 4 * j + 4))
        if nk == 2:
            a("v_mov_b32 v%d, v%d", SV + 8, SV)
            a("v_mov_b32 v%d, v%d", SV + 9, SV + 1)
        a("v_and_b32 v3, %d, v2", 16 if nk == 2 else 48)
        a("v_add_u32 v3, v3, v20")
        a("v_permlane32_swap_b32 v%d, v%d", SV, SV + 8)
        a("v_permlane32_swap_b32 v%d, v%d", SV + 1, SV + 9)
        a("v_pk_add_f32 %s, %s, %s", pr(SV), pr(SV), pr(SV + 8))
        a("v_lshlrev_b32 v3, 3, v3")
        a("s_mul_i32 s%d, s%d, %d", S_TMP, S_TA, WA)
        a("s_add_u32 s%d, s%d, s%d", S_TMP, S_TMP, SWA)
        a("s_lshl_b32 s%d, s%d, 14", S_TMP, S_TMP)
        if nk == 2: a("s_mov_b32 exec_hi, 0")
        a("buffer_store_dwordx2 %s, v3, s[60:63], s%d offen sc1", pr(SV), S_TMP)
        if nk == 2: a("s_mov_b32 exec_hi, -1")
    def ln2_start():
        if OPT.get("dbg2"): stamp(a, 1)
        stats_block()
        if OPT.get("dbg2"): stamp(a, 2)
        a("v_lshrrev_b32 v4, 5, v2")
        a("v_lshl_add_u32 v21, v4, 17, v3")
        if not OPT.get("late", 1): ex_loads()
        if OPT.get("dbg2"): stamp(a, 3)
    def ex_loads():
        for q in range(8):
            a("s_mov_b32 s%d, %d", S_TMP + (q & 1), q * 16384)
            a("buffer_load_dwordx2 v[%d:%d], v21, s[60:63], s%d offen sc1", EXV + 2 * q, EXV + 2 * q + 1, S_TMP + (q & 1))
    def ln2_finish():
        pr = lambda r: "v[%d:%d]" % (r, r + 1)
        a("s_mov_b32 s%d, 0x2000", S_CNT)
        stamp(a, 5)
        if OPT.get("late", 1):
            ex_loads()
            a("s_waitcnt vmcnt(0)")
        else:
            a("s_waitcnt vmcnt(%d)", nk * na // 2)
        a.label(name + "_ex")
        a("v_max3_u32 v4, v%d, v%d, v%d", EXV, EXV + 1, EXV + 2)
        for q in range(3, 15, 2): a("v_max3_u32 v4, v4, v%d, v%d", EXV + q, EXV + q + 1)
        a("v_max_u32 v4, v4, v%d", EXV + 15)
        a("v_cmp_eq_u32 vcc, -1, v4")
        a("s_sub_u32 s%d, s%d, 1", S_CNT, S_CNT)
        a("s_cmp_eq_u32 s%d, 0", S_CNT)
        a("s_cbranch_scc1 %s_exd", name)
        a("s_cbranch_vccz %s_exd", name)
        a("s_sleep %d", OPT.get("slp", 2))
        ex_loads()
        a("s_waitcnt vmcnt(0)")
        a("s_branch %s_ex", name)
        a.label(name + "_exd")
        stamp(a, 6)
        if OPT.get("stamp"): a("s_add_u32 s%d, s%d, 0x6000", 64 + 2 * 9, S_CNT)
        E = EXV
        for st in (4, 2, 1):
            for q in range(st): a("v_pk_add_f32 %s, %s, %s", pr(E + 2 * q), pr(E + 2 * q), pr(E + 2 * (q + st)))
        a("v_mov_b32 v%d, v%d", E + 2, E)
        a("v_mov_b32 v%d, v%d", E + 3, E + 1)
        a("s_nop 1")
        a("v_permlane32_swap_b32 v%d, v%d", E, E + 2)
        a("v_permlane32_swap_b32 v%d, v%d", E + 1, E + 3)
        a("v_pk_add_f32 %s, %s, %s", pr(E), pr(E), pr(E + 2))
        m, var, mb, r1, m2, v2 = E, E + 1, E + 2, E + 3, E + 4, E + 5
        a("v_mul_f32 v%d, 0x%x, v%d", m, f32(1.0 / 1024), m)
        a("v_mul_f32 v%d, 0x%x, v%d", var, f32(1.0 / 1024), var)
        a("v_fma_f32 v%d, -v%d, v%d, v%d", var, m, m, var)
        a("v_max_f32 v%d, 0, v%d", var, var)
        a("v_mov_b32 v%d, v%d", mb, m)
        a("v_mov_b32 v%d, v%d", r1, var)
        def rstd(x):
            round_bf16_scalar(a, x)
            a("v_add_f32 v%d, 0x%x, v%d", x, f32(1e-5), x)
            round_bf16_scalar(a, x)
            a("v_sqrt_f32 v%d, v%d", x, x)
            a("s_nop 0")
            round_bf16_scalar(a, x)
            a("v_rcp_f32 v%d, v%d", x, x)
        round_bf16_scalar(a, mb)
        rstd(r1)
        a("v_sub_f32 v%d, v%d, v%d", m2, m, mb)
        a("v_mul_f32 v%d, v%d, v%d", v2, var, r1)
        a("v_mul_f32 v%d, v%d, v%d", m2, m2, r1)
        a("v_mul_f32 v%d, v%d, v%d", v2, v2, r1)
        round_bf16_scalar(a, m2)
        rstd(v2)
        a("v_fma_f32 v%d, v%d, v%d, v%d", m2, mb, r1, m2)
        a("v_mul_f32 v%d, v%d, v%d", E + 6, r1, v2)
        a("v_mul_f32 v%d, -v%d, v%d", E + 7, m2, v2)
        a("v_mov_b32 v%d, v%d", E + 8, E + 6)
        a("v_mov_b32 v%d, v%d", E + 9, E + 7)
        a("s_nop 1")
        a("v_permlane16_swap_b32 v%d, v%d", E + 6, E + 8)
        a("v_permlane16_swap_b32 v%d, v%d", E + 7, E + 9)
        k = 0
        for j in range(nk):
            ab = pr(E + 6 + 2 * j)
            for p in range(na // 2):
                c0_, c1_ = acc(2 * p, j), acc(2 * p + 1, j)
                for x in (c0_, c0_ + 2, c1_, c1_ + 2):
                    a("v_pk_fma_f32 %s, %s, %s, %s op_sel:[0,0,1] op_sel_hi:[1,0,1]", pr(x), pr(x), ab, ab)
                d = TMPV + 4 * (k & 3); k += 1
                a("v_cvt_pk_bf16_f32 v%d, v%d, v%d", d, c0_, c0_ + 1)
                a("v_cvt_pk_bf16_f32 v%d, v%d, v%d", d + 1, c0_ + 2, c0_ + 3)
                a("v_cvt_pk_bf16_f32 v%d, v%d, v%d", d + 2, c1_, c1_ + 1)
                a("v_cvt_pk_bf16_f32 v%d, v%d, v%d", d + 3, c1_ + 2, c1_ + 3)
                a("s_nop 1")
                a("v_permlane16_swap_b32 v%d, v%d", d, d + 2)
                a("v_permlane16_swap_b32 v%d, v%d", d + 1, d + 3)
                a("buffer_store_dwordx4 v[%d:%d], v9, s[56:59], s%d offen offset:%d%s", d, d + 3, S_ST + j, p * 64, STF())
    a("s_nop 7")
    if epi == "ln2": ln2_start()
    k = 0
    for j in range(nk):
        for p in range(na // 2):
            c0_, c1_ = acc(2 * p, j), acc(2 * p + 1, j)
            if epi == "gelu":
                gelu_pairs(a, [c0_, c0_ + 2, c1_, c1_ + 2], TMPV + 16, AR)
            d = TMPV + 4 * (k & 3); k += 1
            a("v_cvt_pk_bf16_f32 v%d, v%d, v%d", d, c0_, c0_ + 1)
            a("v_cvt_pk_bf16_f32 v%d, v%d, v%d", d + 1, c0_ + 2, c0_ + 3)
            a("v_cvt_pk_bf16_f32 v%d, v%d, v%d", d + 2, c1_, c1_ + 1)
            a("v_cvt_pk_bf16_f32 v%d, v%d, v%d", d + 3, c1_ + 2, c1_ + 3)
            if epi == "ln2":
                for q, x in enumerate((c0_, c0_ + 2, c1_, c1_ + 2)):
                    a("v_lshlrev_b32 v%d, 16, v%d", x, d + q)
                    a("v_and_b32 v%d, 0xffff0000, v%d", x + 1, d + q)
            else:
                a("s_nop 1")
            a("v_permlane16_swap_b32 v%d, v%d", d, d + 2)
            a("v_permlane16_swap_b32 v%d, v%d", d + 1, d + 3)
            a("buffer_store_dwordx4 v[%d:%d], v9, s[16:19], s%d offen offset:%d%s", d, d + 3, S_ST + j, p * 64, STF())
    if stats: stats_block()
    if epi == "ln2": ln2_finish()
    xs = bool(split) or epi == "ln2"
    stamp(a, 7 if xs else 5)
    stamp_flush(a, name, 8 if xs else 6, extra=xs)
    a("s_endpgm")
    if spare:
        a.label(name + "_spare")
        spare(a)
    for kn in names:
        kernel_desc(a, kn, VTOP, 96)
    return stage * S

def gen_g1(a, name, stubs, W=2):
    N, S = 16, 3
    PW = Op("km", 64, 6144)
    XB = 3 * 8192
    stage = XB + 144 * 128
    E = stage
    REG = 144 * 128
    LST = S * stage
    LCS = LST + 1280
    S_SIG, S_DIST, S_H1, S_H2, S_H3 = 52, 53, 54, 55, 29
    KG = OPT.get("KG", 12)
    entry(a, name, stubs, 256)
    a("s_load_dwordx2 s[4:5], s[0:1], %d", ARG["ws"])
    a("s_load_dwordx2 s[30:31], s[0:1], %d", ARG["wqkv"])
    a("s_load_dwordx2 s[16:17], s[0:1], %d", ARG["dbg"])
    a("s_load_dwordx2 s[18:19], s[0:1], %d", ARG["wo"])
    a("v_lshrrev_b32 v1, 6, v0")
    a("v_and_b32 v2, 63, v0")
    a("s_and_b32 s%d, s2, 1", S_TMP)
    a("s_lshl_b32 s%d, s%d, 3", S_TMP, S_TMP)
    a("s_bfe_u32 s%d, s2, 0x30003", S_TMP + 1)
    a("s_add_u32 s%d, s%d, s%d", S_TB, S_TMP, S_TMP + 1)
    a("s_bfe_u32 s%d, s2, 0x20001", S_TMP)
    a("s_lshl_b32 s%d, s%d, 2", S_TMP, S_TMP)
    a("s_lshr_b32 s%d, s2, 6", S_TMP + 2)
    a("s_add_u32 s%d, s%d, s%d", S_TA, S_TMP, S_TMP + 2)
    a("s_add_u32 s%d, s%d, s%d", S_J, S_TMP + 1, S_TMP + 2)
    a("s_add_u32 s%d, s%d, s%d", S_SIG, S_TA, S_TB)
    a("s_and_b32 s%d, s%d, 15", S_SIG, S_SIG)
    a("s_and_b32 s%d, s%d, %d", S_KB, S_SIG, KG)
    a("s_mul_i32 s%d, s%d, s%d", S_KB, S_KB, S_DIST)
    a("v_readfirstlane_b32 s%d, v1", S_W)
    lane_parts(a)
    a("s_cmp_lt_u32 s%d, 4", S_W)
    a("s_cbranch_scc1 %s_compute", name)

    if OPT.get("ldprio"): a("s_setprio %d", OPT["ldprio"])
    a("s_sub_u32 s%d, s%d, 4", S_W, S_W)
    XO = Op("kc", 128, 2048)
    loader_voffs(a, XO, S_TB, 16)
    for p in range(3):
        loader_voffs(a, PW, S_TA, 10 + 2 * p, extra_cols=1024 * p)
    a("v_lshrrev_b32 v3, 3, v2")
    a("s_lshl_b32 s%d, s%d, 2", S_TMP, S_W)
    a("v_add_u32 v3, s%d, v3", S_TMP)
    a("v_lshrrev_b32 v4, 1, v3")
    a("v_xor_b32 v4, v4, v2")
    a("v_and_b32 v4, 7, v4")
    a("s_lshl_b32 s%d, s%d, 7", S_TMP, S_TB)
    a("s_sub_u32 s%d, s%d, 16", S_TMP, S_TMP)
    a("v_add_u32 v3, s%d, v3", S_TMP)
    a("v_max_i32 v3, 0, v3")
    a("v_lshlrev_b32 v3, 11, v3")
    a("v_lshl_add_u32 v20, v4, 4, v3")
    a("s_mul_i32 s%d, s%d, 2048", S_LA, S_W)
    a("s_mul_i32 s%d, s%d, 4096", S_LB, S_W)
    a("s_add_u32 s%d, s%d, %d", S_LB, S_LB, XB + 2048)
    a("s_mul_i32 s%d, s%d, 512", S_TMP + 6, S_W)
    a("s_add_u32 s%d, s%d, %d", S_TMP + 6, S_TMP + 6, XB)
    a("s_waitcnt lgkmcnt(0)")
    srd(a, 8, 30, 0, 1024 * 3072 * 2)
    a("s_add_u32 s12, s6, s%d", S_TMP + 7)
    a("s_addc_u32 s13, s7, 0")
    a("s_mov_b32 s14, 0x%x", ACT_BYTES)
    a("s_mov_b32 s15, 0x20000")
    def issue():
        kidx_offsets(a, W, PW.kadv, 128, wrap=16)
        a("s_add_u32 s%d, s%d, s%d", S_M0A, S_SLOT, S_LA)
        a("s_add_u32 s%d, s%d, s%d", S_M0B, S_SLOT, S_LB)
        for i in range(4):
            a("s_add_u32 m0, s%d, %d", S_M0B, i * 1024)
            a("s_nop 0")
            a("buffer_load_dwordx4 v%d, s[12:15], s%d offen lds", 16 + i, S_OFB)
        for p in range(3):
            for i in range(2):
                a("s_add_u32 m0, s%d, %d", S_M0A, p * 8192 + i * 1024)
                a("s_nop 0")
                a("buffer_load_dwordx4 v%d, s[8:11], s%d offen lds", 10 + 2 * p + i, S_OFA)
        a("s_add_u32 m0, s%d, s%d", S_SLOT, S_TMP + 6)
        a("s_mov_b32 exec_hi, 0")
        a("buffer_load_dwordx4 v20, s[12:15], s%d offen lds", S_OFB)
        a("s_mov_b32 exec_hi, -1")
    srd(a, 20, 4, WS["ST"], ST_BYTES)
    srd(a, 56, 4, WS["CS"], CS_BYTES)
    srd(a, 60, 16, 0, 256)
    a("s_sub_u32 s%d, s%d, s%d", S_TMP, S_SIG, S_J)
    a("s_and_b32 s%d, s%d, %d", S_TMP, S_TMP, W - 1)
    a("s_and_b32 s%d, s%d, %d", S_TMP + 1, S_SIG, 15 & ~KG & ~(W - 1))
    a("s_or_b32 s%d, s%d, s%d", S_TMP, S_TMP, S_TMP + 1)
    a("s_add_u32 s%d, s%d, %d", S_H1, S_TMP, S - 1)
    a("s_cmp_eq_u32 s%d, 0", S_DIST)
    a("s_cselect_b32 s%d, 0x7fff, s%d", S_H1, S_H1)
    a("s_add_u32 s%d, s%d, %d", S_H2, S_H1, S)
    a("s_cmp_lg_u32 s%d, 0", S_W)
    a("s_cselect_b32 s%d, 0x7fff, s%d", S_H2, S_H2)
    a("s_cmp_lt_u32 s%d, 0x7fff", S_H2)
    a("s_cselect_b32 s%d, %d, 0x7fff", S_H3, N - 3)
    def slice_stats():
        SL = S_TMP + 4
        a("s_add_u32 s%d, s%d, %d", SL, S_SLOT, stage)
        a("s_cmp_eq_u32 s%d, %d", SL, S * stage)
        a("s_cselect_b32 s%d, 0, s%d", SL, SL)
        for i in range(3):
            a("s_mul_i32 s%d, s%d, 3", S_TMP + 2, S_W)
            a("s_add_u32 s%d, s%d, %d", S_TMP + 2, S_TMP + 2, i)
            a("s_lshr_b32 s%d, s%d, 2", S_TMP + 3, S_TMP + 2)
            a("s_lshl_b32 s%d, s%d, 13", S_TMP + 3, S_TMP + 3)
            a("s_add_u32 s%d, s%d, s%d", S_TMP + 3, S_TMP + 3, SL)
            a("s_and_b32 s%d, s%d, 3", S_TMP + 2, S_TMP + 2)
            read_addr_km(a, 64, S_TMP + 3, S_TMP + 2, 0, 21)
            for ks in range(2):
                for r in frag_reads("km", 64, [21], 0, ks, 24 + 8 * i + 4 * ks): a(r)
        a("s_lshr_b32 s%d, s%d, 7", S_TMP + 2, SL)
        a("s_lshl_b32 s%d, s%d, 5", S_TMP + 3, S_W)
        a("s_add_u32 s%d, s%d, s%d", S_TMP + 2, S_TMP + 2, S_TMP + 3)
        a("s_add_u32 s%d, s%d, 16", S_TMP + 2, S_TMP + 2)
        read_addrs_kc(a, XB, S_TMP + 2, 22)
        for i in range(2):
            for ks in range(2):
                for r in frag_reads("kc", 0, [22, 23], i, ks, 48 + 8 * i + 4 * ks): a(r)
        for r in range(4): a("v_mov_b32 v%d, 0x3f803f80", 64 + r)
        a("s_mul_i32 s%d, s%d, 12288", S_TMP + 2, S_SIG)
        a("s_lshl_b32 s%d, s%d, 8", S_TMP + 3, S_TA)
        a("s_add_u32 s%d, s%d, s%d", S_TMP + 2, S_TMP + 2, S_TMP + 3)
        a("v_lshl_add_u32 v21, v5, 4, s%d", S_TMP + 2)
        a("s_lshl_b32 s%d, s%d, 14", S_TMP + 2, S_SIG)
        a("s_lshl_b32 s%d, s%d, 10", S_TMP + 3, S_TB)
        a("s_add_u32 s%d, s%d, s%d", S_TMP + 2, S_TMP + 2, S_TMP + 3)
        a("s_lshl_b32 s%d, s%d, 8", S_TMP + 3, S_W)
        a("s_add_u32 s%d, s%d, s%d", S_TMP + 2, S_TMP + 2, S_TMP + 3)
        a("v_lshl_add_u32 v22, v8, 3, s%d", S_TMP + 2)
        a("s_waitcnt lgkmcnt(0)")
        mm = lambda d, x, y, first: a("v_mfma_f32_16x16x32_bf16 v[%d:%d], v[%d:%d], v[%d:%d], %s", d, d + 3, x, x + 3, y, y + 3,
                                      "0" if first else "v[%d:%d]" % (d, d + 3))
        for ks in range(2):
            for i in range(3): mm(68 + 4 * i, 24 + 8 * i + 4 * ks, 64, ks == 0)
            for i in range(2):
                mm(80 + 8 * i, 64, 48 + 8 * i + 4 * ks, ks == 0)
                mm(84 + 8 * i, 48 + 8 * i + 4 * ks, 48 + 8 * i + 4 * ks, ks == 0)
        a("v_cmp_eq_u32 s[%d:%d], 1, v7", S_TMP, S_TMP + 1)
        a("v_cmp_eq_u32 s[%d:%d], 2, v7", S_TMP + 2, S_TMP + 3)
        a("v_cmp_eq_u32 vcc, 3, v7")
        a("s_nop 7")
        for i in range(2):
            a("v_cndmask_b32 v%d, v%d, v%d, s[%d:%d]", 81 + 8 * i, 84 + 8 * i, 85 + 8 * i, S_TMP, S_TMP + 1)
            a("v_cndmask_b32 v%d, v%d, v%d, s[%d:%d]", 81 + 8 * i, 81 + 8 * i, 86 + 8 * i, S_TMP + 2, S_TMP + 3)
            a("v_cndmask_b32 v%d, v%d, v%d, vcc", 81 + 8 * i, 81 + 8 * i, 87 + 8 * i)
        a("s_mov_b32 exec_lo, 0x00f0000f")
        a("s_mov_b32 exec_hi, 0xf0000f00")
        for i in range(2):
            a("buffer_store_dwordx2 v[%d:%d], v22, s[20:23], 0 offen offset:%d sc1", 80 + 8 * i, 81 + 8 * i, 128 * i)
        a("s_mov_b32 exec_lo, 0x00010001")
        a("s_mov_b32 exec_hi, 0x00010001")
        for i in range(3):
            a("s_mul_i32 s%d, s%d, 3", S_TMP + 2, S_W)
            a("s_add_u32 s%d, s%d, %d", S_TMP + 2, S_TMP + 2, i)
            a("s_lshr_b32 s%d, s%d, 2", S_TMP + 3, S_TMP + 2)
            a("s_lshl_b32 s%d, s%d, 12", S_TMP + 3, S_TMP + 3)
            a("s_and_b32 s%d, s%d, 3", S_TMP + 2, S_TMP + 2)
            a("s_lshl_b32 s%d, s%d, 6", S_TMP + 2, S_TMP + 2)
            a("s_add_u32 s%d, s%d, s%d", S_TMP + 2, S_TMP + 2, S_TMP + 3)
            a("buffer_store_dwordx4 v[%d:%d], v21, s[56:59], s%d offen sc1", 68 + 4 * i, 71 + 4 * i, S_TMP + 2)
        a("s_mov_b64 exec, -1")
    def arrive():
        a("v_mov_b32 v21, 0")
        a("v_mov_b32 v22, 1")
        a("s_mov_b64 exec, 1")
        a("buffer_atomic_add v22, v21, s[60:63], 0 offen sc1")
        a("s_mov_b64 exec, -1")
    def poll_issue():
        a("v_mov_b32 v21, 0")
        a("buffer_load_dword v23, v21, s[60:63], 0 offen sc1")
    def poll_check():
        a("s_cmp_eq_u32 s%d, 0x7fff", S_H3)
        a("s_cbranch_scc1 %s_polled", name)
        a("s_mov_b32 s%d, 0x20000", S_TMP + 1)
        a("v_mov_b32 v21, 0")
        a("s_waitcnt vmcnt(22)")
        a.label(name + "_poll")
        a("v_readfirstlane_b32 s%d, v23", S_TMP)
        a("s_sub_u32 s%d, s%d, 1", S_TMP + 1, S_TMP + 1)
        a("s_cmp_eq_u32 s%d, 0", S_TMP + 1)
        a("s_cbranch_scc1 %s_polled", name)
        a("s_cmp_ge_u32 s%d, 256", S_TMP)
        a("s_cbranch_scc1 %s_polled", name)
        a("s_sleep 8")
        a("buffer_load_dword v23, v21, s[60:63], 0 offen sc1")
        a("s_waitcnt vmcnt(0)")
        a("s_branch %s_poll", name)
        a.label(name + "_polled")
    def st_loads():
        a("s_lshl_b32 s%d, s%d, 6", S_TMP, S_W)
        a("v_add_u32 v21, s%d, v2", S_TMP)
        a("s_lshl_b32 s%d, s%d, 7", S_TMP + 1, S_TB)
        a("s_sub_u32 s%d, s%d, 16", S_TMP + 1, S_TMP + 1)
        a("v_add_u32 v3, s%d, v21", S_TMP + 1)
        a("v_max_i32 v3, 0, v3")
        a("v_min_u32 v3, 2047, v3")
        a("v_lshlrev_b32 v3, 3, v3")
        a("s_min_u32 s%d, s%d, 2", S_TMP, S_W)
        a("s_lshl_b32 s%d, s%d, 12", S_TMP, S_TMP)
        a("s_lshl_b32 s%d, s%d, 8", S_TMP + 1, S_TA)
        a("s_add_u32 s%d, s%d, s%d", S_TMP, S_TMP, S_TMP + 1)
        a("v_lshl_add_u32 v4, v2, 2, s%d", S_TMP)
        for k in range(16):
            a("s_mov_b32 s%d, %d", S_TMP, k * 16384)
            a("buffer_load_dwordx2 v[%d:%d], v3, s[20:23], s%d offen sc1", 24 + 2 * k, 25 + 2 * k, S_TMP)
            a("s_mov_b32 s%d, %d", S_TMP + 1, k * 3072 * 4)
            a("buffer_load_dword v%d, v4, s[56:59], s%d offen sc1", 56 + k, S_TMP + 1)
    def st_use():
        for st in (8, 4, 2, 1):
            for k in range(st):
                a("v_pk_add_f32 v[%d:%d], v[%d:%d], v[%d:%d]", 24 + 2 * k, 25 + 2 * k, 24 + 2 * k, 25 + 2 * k, 24 + 2 * (k + st), 25 + 2 * (k + st))
                a("v_add_f32 v%d, v%d, v%d", 56 + k, 56 + k, 56 + k + st)
        a("v_mul_f32 v24, 0x%x, v24", f32(1.0 / 1024))
        a("v_mul_f32 v25, 0x%x, v25", f32(1.0 / 1024))
        a("v_fma_f32 v25, -v24, v24, v25")
        a("v_max_f32 v25, 0, v25")
        round_bf16_scalar(a, 24)
        round_bf16_scalar(a, 25)
        a("v_add_f32 v25, 0x%x, v25", f32(1e-5))
        round_bf16_scalar(a, 25)
        a("v_sqrt_f32 v25, v25")
        a("s_nop 0")
        round_bf16_scalar(a, 25)
        a("v_rcp_f32 v26, v25")
        a("v_lshlrev_b32 v3, 3, v21")
        a("v_lshlrev_b32 v4, 2, v21")
        a("v_mul_f32 v27, -v24, v26")
        a("v_cmp_gt_u32 vcc, 144, v21")
        a("s_and_saveexec_b64 s[%d:%d], vcc", S_TMP, S_TMP + 1)
        a("v_add_u32 v3, %d, v3", LST)
        a("ds_write_b64 v3, v[26:27]")
        a("s_mov_b64 exec, s[%d:%d]", S_TMP, S_TMP + 1)
        a("v_cmp_gt_u32 vcc, 192, v21")
        a("s_and_saveexec_b64 s[%d:%d], vcc", S_TMP, S_TMP + 1)
        a("v_add_u32 v4, %d, v4", LCS)
        a("ds_write_b32 v4, v56")
        a("s_mov_b64 exec, s[%d:%d]", S_TMP, S_TMP + 1)
        a("s_waitcnt lgkmcnt(0)")
    def tail():
        poll_check()
        a("s_waitcnt vmcnt(11)")
        a("s_barrier")
        st_loads()
        a("s_waitcnt vmcnt(32)")
        a("s_barrier")
        a("s_waitcnt vmcnt(0)")
        st_use()
        a("s_barrier")
        srd(a, 20, 4, WS["EX"], ST_BYTES)
        a("s_lshl_b32 s%d, s2, 10", S_TMP)
        a("s_lshl_b32 s%d, s%d, 8", S_TMP + 1, S_W)
        a("s_add_u32 s%d, s%d, s%d", S_TMP, S_TMP, S_TMP + 1)
        a("v_lshlrev_b32 v3, 2, v2")
        a("v_mov_b32 v4, -1")
        a("buffer_store_dword v4, v3, s[20:23], s%d offen sc1", S_TMP)
        a("s_cmp_eq_u32 s%d, 0", S_DIST)
        a("s_cbranch_scc1 %s_nopf", name)
        srd(a, 20, 18, 0, 1024 * 1024 * 2)
        a("s_lshl_b32 s%d, s2, 13", S_TMP)
        a("s_lshl_b32 s%d, s%d, 11", S_TMP + 1, S_W)
        a("s_add_u32 s%d, s%d, s%d", S_TMP, S_TMP, S_TMP + 1)
        a("v_lshlrev_b32 v3, 4, v2")
        a("buffer_load_dwordx4 v[120:123], v3, s[20:23], s%d offen", S_TMP)
        a("buffer_load_dwordx4 v[120:123], v3, s[20:23], s%d offen offset:1024", S_TMP)
        a.label(name + "_nopf")
    loader_loop(a, name, issue, 11, N, S, stage, tail=tail,
                events=[(S_H1, 5, slice_stats), (S_H2, 1, arrive), (S_H3, 1, poll_issue)])
    a("s_add_u32 s%d, s%d, 4", S_W, S_W)
    a("s_branch %s_attn", name)

    a.label(name + "_compute")
    na, nb = 6, 5
    ACC = 24
    acc = lambda i, j: ACC + 4 * (i * 4 + j) if j < 4 else ACC + 96 + 4 * (i - 4)
    nacc = 104
    FR = ACC + nacc
    fset = (na + nb) * 4
    fA = lambda st, i: FR + st * fset + 4 * i
    fB = lambda st, j: FR + st * fset + 4 * na + 4 * j
    VTOP = FR + 2 * fset
    SHD, SSH = S_TMP + 4, S_TMP + 5
    a("s_and_b32 s%d, s%d, 1", SHD, S_W)
    a("s_lshr_b32 s%d, s%d, 1", SSH, S_W)
    AR = 10
    def part_of(c, unit):
        if c == 0:
            a("s_mov_b32 s%d, 0", S_TMP + 3)
        else:
            a("s_xor_b32 s%d, s%d, %d", S_TMP + 3, SSH, 1 if c == 1 else 0)
            a("s_add_u32 s%d, s%d, 1", S_TMP + 3, S_TMP + 3)
            a("s_mul_i32 s%d, s%d, %d", S_TMP + 3, S_TMP + 3, unit)
    a("s_lshl_b32 s%d, s%d, 1", S_TMP + 2, SHD)
    for c in range(3):
        part_of(c, 8192)
        for i in range(2):
            read_addr_km(a, 64, S_TMP + 3, S_TMP + 2, i, AR + 2 * c + i)
    adA = [AR + i for i in range(6)]
    a("s_mul_i32 s%d, s%d, 64", S_TMP + 2, SSH)
    a("s_add_u32 s%d, s%d, 16", S_TMP + 2, S_TMP + 2)
    read_addrs_kc(a, XB, S_TMP + 2, AR + 6)
    read_addrs_kc(a, XB, None, AR + 8)
    adB, adH = [AR + 6, AR + 7], [AR + 8, AR + 9]
    for r in range(nacc): a("v_mov_b32 v%d, 0", ACC + r)
    for r in range(fset): a("v_mov_b32 v%d, 0", FR + fset + r)
    compute_loop_ctl_init(a, N, S, stage)
    if OPT.get("cprio"): a("s_setprio %d", OPT["cprio"])
    a("s_waitcnt lgkmcnt(0)")
    stamp(a, 1)
    def mf(st):
        L = [(i, j) for i in range(6) for j in range(4)] + [(4, 4), (5, 4)]
        return ["v_mfma_f32_16x16x32_bf16 v[%d:%d], v[%d:%d], v[%d:%d], v[%d:%d]" %
                (acc(i, j), acc(i, j) + 3, fA(st, i), fA(st, i) + 3, fB(st, j), fB(st, j) + 3, acc(i, j), acc(i, j) + 3)
                for (i, j) in L]
    def rd(st, ks):
        L = []
        L += frag_reads("km", 64, adA, 0, ks, fA(st, 0))
        for j in range(4): L += frag_reads("kc", 0, adB, j, ks, fB(st, j))
        for i in range(1, 6): L += frag_reads("km", 64, adA, i, ks, fA(st, i))
        L += frag_reads("kc", 0, adH, 0, ks, fB(st, 4))
        return L
    cloop(a, name, mf, rd, adA + adB + adH, S, stage)
    a("s_barrier")
    SB = FR
    a("v_lshlrev_b32 v3, 3, v8")
    a("v_add_u32 v4, %d, v3", LST)
    a("s_mul_i32 s%d, s%d, 512", S_TMP, SSH)
    a("s_add_u32 s%d, s%d, %d", S_TMP, S_TMP, LST + 128)
    a("v_add_u32 v3, s%d, v3", S_TMP)
    for j in range(4): a("ds_read_b64 v[%d:%d], v3 offset:%d", SB + 2 * j, SB + 2 * j + 1, j * 128)
    a("ds_read_b64 v[%d:%d], v4", SB + 8, SB + 9)
    a("s_lshl_b32 s%d, s%d, 7", S_TMP, SHD)
    a("s_add_u32 s%d, s%d, %d", S_TMP, S_TMP, LCS)
    a("v_lshl_add_u32 v3, v5, 4, s%d", S_TMP)
    for c in range(3):
        part_of(c, 256)
        a("v_add_u32 v4, s%d, v3", S_TMP + 3)
        for i in range(2):
            a("ds_read_b128 v[%d:%d], v4 offset:%d", SB + 12 + 4 * (2 * c + i), SB + 15 + 4 * (2 * c + i), i * 64)
    a("v_and_b32 v3, 1, v5")
    a("v_lshlrev_b32 v3, 1, v3")
    a("v_lshrrev_b32 v4, 1, v5")
    a("v_add_u32 v3, v3, v4")
    a("s_lshl_b32 s%d, s%d, 2", S_TMP, SHD)
    a("v_add_u32 v3, s%d, v3", S_TMP)
    a("v_lshrrev_b32 v4, 1, v8")
    a("v_xor_b32 v3, v3, v4")
    a("v_lshlrev_b32 v3, 4, v3")
    a("v_lshl_add_u32 v3, v8, 7, v3")
    a("s_mul_i32 s%d, s%d, %d", S_TMP + 2, SSH, 64 * 128)
    a("s_add_u32 s%d, s%d, %d", S_TMP + 2, S_TMP + 2, E + 16 * 128)
    for c in range(3):
        part_of(c, REG)
        a("s_add_u32 s%d, s%d, s%d", S_TMP, S_TMP + 2, S_TMP + 3)
        a("v_add_u32 v%d, s%d, v3", AR + c, S_TMP)
    a("s_add_u32 s%d, s%d, %d", S_TMP, S_TMP + 3, E)
    a("v_add_u32 v%d, s%d, v3", AR + 3, S_TMP)
    a("s_waitcnt lgkmcnt(0)")
    k = 0
    TV = SB + 36
    pr = lambda r: "v[%d:%d]" % (r, r + 1)
    for c in range(3):
        for j in range(5 if c == 2 else 4):
            c0_, c1_ = acc(2 * c, j), acc(2 * c + 1, j)
            d = TV + 8 + 4 * (k & 3); k += 1
            prs = [(c0_, SB + 12 + 8 * c), (c0_ + 2, SB + 14 + 8 * c), (c1_, SB + 16 + 8 * c), (c1_ + 2, SB + 18 + 8 * c)]
            for q, (x, cs) in enumerate(prs):
                a("v_pk_mul_f32 %s, %s, %s op_sel:[0,1] op_sel_hi:[1,1]", pr(TV + 2 * q), pr(cs), pr(SB + 2 * j))
            for q, (x, cs) in enumerate(prs):
                a("v_pk_fma_f32 %s, %s, %s, %s op_sel:[0,0,0] op_sel_hi:[1,0,1]", pr(x), pr(x), pr(SB + 2 * j), pr(TV + 2 * q))
            a("v_cvt_pk_bf16_f32 v%d, v%d, v%d", d, c0_, c0_ + 1)
            a("v_cvt_pk_bf16_f32 v%d, v%d, v%d", d + 1, c0_ + 2, c0_ + 3)
            a("v_cvt_pk_bf16_f32 v%d, v%d, v%d", d + 2, c1_, c1_ + 1)
            a("v_cvt_pk_bf16_f32 v%d, v%d, v%d", d + 3, c1_ + 2, c1_ + 3)
            a("s_nop 1")
            a("v_permlane16_swap_b32 v%d, v%d", d, d + 2)
            a("v_permlane16_swap_b32 v%d, v%d", d + 1, d + 3)
            if j < 4:
                a("ds_write_b128 v%d, v[%d:%d] offset:%d", AR + c, d, d + 3, j * 2048)
            else:
                a("ds_write_b128 v%d, v[%d:%d]", AR + 3, d, d + 3)
    a("s_waitcnt lgkmcnt(0)")

    a.label(name + "_attn")
    srd(a, 16, 4, WS["O"], ACT_BYTES)
    a("s_and_b32 s%d, s%d, 1", SHD, S_W)
    SU = S_TMP + 5
    a("s_lshr_b32 s%d, s%d, 1", SU, S_W)
    a("s_lshl_b32 s%d, s%d, 2", S_TMP, SHD)
    a("v_add_u32 v3, s%d, v5", S_TMP)
    a("v_and_b32 v4, 7, v8")
    a("v_xor_b32 v3, v3, v4")
    a("v_lshlrev_b32 v3, 4, v3")
    a("v_lshl_add_u32 v3, v8, 8, v3")
    a("s_mul_i32 s%d, s%d, %d", S_TMP + 1, SU, 32 * 128)
    a("s_add_u32 s%d, s%d, %d", S_TMP + 1, S_TMP + 1, E)
    a("v_add_u32 v10, s%d, v3", S_TMP + 1)
    a("v_lshl_add_u32 v3, v5, 2, v6")
    a("v_and_b32 v4, 7, v3")
    a("v_add_u32 v12, s%d, v7", S_TMP)
    a("v_xor_b32 v4, v4, v12")
    a("v_lshlrev_b32 v4, 4, v4")
    a("v_lshl_add_u32 v3, v3, 8, v4")
    a("s_add_u32 s%d, s%d, %d", S_TMP + 1, S_TMP + 1, 2 * REG)
    a("v_add_u32 v11, s%d, v3", S_TMP + 1)
    a("v_and_b32 v3, 7, v8")
    a("v_add_u32 v4, 1, v3")
    a("s_or_b32 s%d, s%d, s%d", S_TMP, S_TB, SU)
    a("s_cmp_eq_u32 s%d, 0", S_TMP)
    a("s_cselect_b32 s%d, 8, 0", S_TMP)
    a("v_cmp_gt_u32 vcc, 8, v8")
    a("v_mov_b32 v16, s%d", S_TMP)
    a("s_mov_b64 s[56:57], vcc")
    a("v_cndmask_b32 v16, 0, v16, vcc")
    a("v_max_u32 v4, v4, v16")
    a("v_add_u32 v3, 8, v3")
    a("v_sub_u32 v3, v3, v4")
    a("v_lshlrev_b32 v16, 2, v5")
    a("v_sub_u32 v16, v16, v4")
    a("v_mov_b32 v17, 0xf149f2ca")
    for r in range(4):
        a("v_add_u32 v18, %d, v16", r)
        a("v_cmp_ge_u32 vcc, v3, v18")
        a("s_nop 1")
        a("v_cndmask_b32 v%d, v17, 0, vcc", 12 + r)
    a("s_lshl_b32 s%d, s%d, 7", S_TMP, S_TB)
    a("s_lshl_b32 s%d, s%d, 5", S_TMP + 1, SU)
    a("s_add_u32 s%d, s%d, s%d", S_TMP, S_TMP, S_TMP + 1)
    a("s_lshl_b32 s%d, s%d, 11", S_TMP, S_TMP)
    a("s_lshl_b32 s%d, s%d, 7", S_TMP + 1, S_TA)
    a("s_add_u32 s%d, s%d, s%d", S_TMP, S_TMP, S_TMP + 1)
    a("s_lshl_b32 s%d, s%d, 6", S_TMP + 1, SHD)
    a("s_add_u32 s%d, s%d, s%d", S_TMP, S_TMP, S_TMP + 1)
    a("v_lshlrev_b32 v9, 12, v8")
    a("v_lshl_add_u32 v9, v5, 4, v9")
    a("v_add_u32 v9, s%d, v9", S_TMP)
    a("s_mov_b32 s58, 0x%x", f32(32 ** -0.5))
    a("s_mov_b32 s59, 0x%x", f32(math.log2(math.e)))
    a("s_barrier")
    stamp(a, 5)
    if OPT.get("stamp"): a("s_waitcnt lgkmcnt(0)")
    def blk(p): return 24 + 48 * p
    for p in range(2):
        b = blk(p)
        a("ds_read_b128 v[%d:%d], v10 offset:%d", b, b + 3, 2048 + 128 * p)
        a("ds_read_b128 v[%d:%d], v10 offset:%d", b + 4, b + 7, REG + 128 * p)
        a("ds_read_b128 v[%d:%d], v10 offset:%d", b + 8, b + 11, REG + 2048 + 128 * p)
    for p in range(2):
        b = blk(p)
        for dt in range(2):
            for bb in range(2):
                d = b + 12 + 4 * dt + 2 * bb
                a("ds_read_b64_tr_b16 v[%d:%d], v11 offset:%d", d, d + 1, 128 * p + 2048 * bb + 8 * dt)
    a("s_waitcnt lgkmcnt(8)")
    for p in range(2):
        b = blk(p)
        a("v_mfma_f32_16x16x32_bf16 v[%d:%d], v[%d:%d], v[%d:%d], 0", b + 20, b + 23, b + 4, b + 7, b, b + 3)
        a("v_mfma_f32_16x16x32_bf16 v[%d:%d], v[%d:%d], v[%d:%d], 0", b + 24, b + 27, b + 8, b + 11, b, b + 3)
    a("s_nop 7")
    both = lambda f: [f(blk(p)) for p in range(2)]
    for p in range(2):
        b = blk(p)
        for r in range(4):
            a("v_cndmask_b32 v%d, v%d, v%d, s[56:57]", b + 20 + r, b + 24 + r, b + 20 + r)
    for p in range(2):
        b = blk(p)
        a("v_cvt_pk_bf16_f32 v%d, v%d, v%d", b + 24, b + 20, b + 21)
        a("v_cvt_pk_bf16_f32 v%d, v%d, v%d", b + 25, b + 22, b + 23)
    for p in range(2):
        b = blk(p)
        for q in range(2):
            a("v_lshlrev_b32 v%d, 16, v%d", b + 20 + 2 * q, b + 24 + q)
            a("v_and_b32 v%d, 0xffff0000, v%d", b + 21 + 2 * q, b + 24 + q)
    for p in range(2):
        b = blk(p)
        for r in range(4): a("v_mul_f32 v%d, s58, v%d", b + 20 + r, b + 20 + r)
    for p in range(2):
        b = blk(p)
        a("v_cvt_pk_bf16_f32 v%d, v%d, v%d", b + 24, b + 20, b + 21)
        a("v_cvt_pk_bf16_f32 v%d, v%d, v%d", b + 25, b + 22, b + 23)
    for p in range(2):
        b = blk(p)
        for q in range(2):
            a("v_lshlrev_b32 v%d, 16, v%d", b + 20 + 2 * q, b + 24 + q)
            a("v_and_b32 v%d, 0xffff0000, v%d", b + 21 + 2 * q, b + 24 + q)
    for p in range(2):
        b = blk(p)
        for r in range(4): a("v_fma_f32 v%d, v%d, s59, v%d", b + 20 + r, b + 20 + r, 12 + r)
    for p in range(2):
        b = blk(p)
        a("v_max3_f32 v%d, v%d, v%d, v%d", b + 24, b + 20, b + 21, b + 22)
    for p in range(2):
        b = blk(p)
        a("v_max_f32 v%d, v%d, v%d", b + 24, b + 24, b + 23)
    def xreduce(op, off):
        for sw in ("v_permlane16_swap_b32", "v_permlane32_swap_b32"):
            for p in range(2):
                b = blk(p)
                a("v_mov_b32 v%d, v%d", b + off + 1, b + off)
            a("s_nop 1")
            for p in range(2):
                b = blk(p)
                a("%s v%d, v%d", sw, b + off, b + off + 1)
            a("s_nop 0")
            for p in range(2):
                b = blk(p)
                a("%s v%d, v%d, v%d", op, b + off, b + off, b + off + 1)
    xreduce("v_max_f32", 24)
    for p in range(2):
        b = blk(p)
        for r in range(4): a("v_sub_f32 v%d, v%d, v%d", b + 20 + r, b + 20 + r, b + 24)
    for p in range(2):
        b = blk(p)
        for r in range(4): a("v_exp_f32 v%d, v%d", b + 20 + r, b + 20 + r)
    for p in range(2):
        b = blk(p)
        a("v_add_f32 v%d, v%d, v%d", b + 24, b + 20, b + 21)
        a("v_add_f32 v%d, v%d, v%d", b + 25, b + 22, b + 23)
    for p in range(2):
        b = blk(p)
        a("v_add_f32 v%d, v%d, v%d", b + 24, b + 24, b + 25)
    xreduce("v_add_f32", 24)
    for p in range(2):
        b = blk(p)
        a("v_rcp_f32 v%d, v%d", b + 24, b + 24)
    a("s_nop 0")
    for p in range(2):
        b = blk(p)
        for r in range(4): a("v_mul_f32 v%d, v%d, v%d", b + 20 + r, b + 20 + r, b + 24)
    for p in range(2):
        b = blk(p)
        a("v_cvt_pk_bf16_f32 v%d, v%d, v%d", b + 24, b + 20, b + 21)
        a("v_cvt_pk_bf16_f32 v%d, v%d, v%d", b + 25, b + 22, b + 23)
    for p in range(2):
        b = blk(p)
        a("v_cndmask_b32 v%d, 0, v%d, s[56:57]", b + 28, b + 24)
        a("v_cndmask_b32 v%d, 0, v%d, s[56:57]", b + 29, b + 25)
        a("v_cndmask_b32 v%d, v%d, 0, s[56:57]", b + 30, b + 24)
        a("v_cndmask_b32 v%d, v%d, 0, s[56:57]", b + 31, b + 25)
    a("s_waitcnt lgkmcnt(0)")
    a("s_nop 0")
    for p in range(2):
        b = blk(p)
        for dt in range(2):
            a("v_mfma_f32_16x16x32_bf16 v[%d:%d], v[%d:%d], v[%d:%d], 0", b + 32 + 4 * dt, b + 35 + 4 * dt,
              b + 12 + 4 * dt, b + 15 + 4 * dt, b + 28, b + 31)
    a("s_nop 7")
    for p in range(2):
        b = blk(p)
        for q in range(4):
            a("v_cvt_pk_bf16_f32 v%d, v%d, v%d", b + 40 + q, b + 32 + 2 * q, b + 33 + 2 * q)
        a("buffer_store_dwordx4 v[%d:%d], v9, s[16:19], 0 offen offset:%d%s", b + 40, b + 43, 2048 * p, STF())
    stamp(a, 6)
    stamp_flush(a, name, 7)
    a.label(name + "_done")
    a("s_endpgm")
    for (kn, _) in stubs:
        kernel_desc(a, kn, VTOP, 96 if OPT.get("stamp") else 72)
    return LCS + 768

def build(extra_empty=0):
    body = Asm()
    wm = lambda a, key, dflt: a("s_mov_b32 s%d, %d", S_WM, OPT.get(key, dflt) - 1)
    def pre_l1(a):
        a("s_load_dwordx2 s[6:7], s[0:1], %d", ARG["x"])
        a("s_mov_b32 s%d, 0", S_TMP + 7)
    def pre_l2(a):
        a("s_load_dwordx2 s[6:7], s[0:1], %d", ARG["ws"])
        a("s_mov_b32 s%d, 0x%x", S_TMP + 7, WS["X2"])
    lds_g1 = gen_g1(body, "g1", [("g1a_kernel", lambda a: (pre_l1(a), a("s_mov_b32 s53, 1"))),
                                 ("g1b_kernel", lambda a: (pre_l2(a), a("s_mov_b32 s53, 0")))], W=OPT.get("W1", 2))

    def srd_stub(a, d):
        a("s_add_u32 s%d, s6, s%d", d, S_TMP + 7)
        a("s_addc_u32 s%d, s7, 0", d + 1)
        a("s_mov_b32 s%d, 0x%x", d + 2, ACT_BYTES)
        a("s_mov_b32 s%d, 0x20000", d + 3)
    def g2_ptrs(a, ph):
        if ph == 0:
            a("s_load_dwordx2 s[4:5], s[0:1], %d", ARG["ws"])
            a("s_load_dwordx2 s[30:31], s[0:1], %d", ARG["wo"])
        elif ph == "L":
            srd(a, 8, 30, 0, 1024 * 1024 * 2)
            srd(a, 12, 4, WS["O"], ACT_BYTES)
        else:
            srd_stub(a, 20)
            srd(a, 16, 4, WS["X1"], ACT_BYTES)
            srd(a, 56, 4, WS["H"], ACT_BYTES)
            srd(a, 60, 4, WS["EX"], ST_BYTES)
    def dec_4x8(a):
        a("s_and_b32 s%d, s2, 3", S_TMP)
        a("s_lshl_b32 s%d, s%d, 2", S_TMP, S_TMP)
        a("s_bfe_u32 s%d, s2, 0x20003", S_TMP + 1)
        a("s_add_u32 s%d, s%d, s%d", S_TB, S_TMP, S_TMP + 1)
        a("s_bfe_u32 s%d, s2, 0x10002", S_TMP)
        a("s_lshl_b32 s%d, s%d, 3", S_TMP, S_TMP)
        a("s_lshr_b32 s%d, s2, 5", S_TMP + 2)
        a("s_add_u32 s%d, s%d, s%d", S_TA, S_TMP, S_TMP + 2)
        a("s_add_u32 s%d, s%d, s%d", S_J, S_TMP + 1, S_TMP + 2)
        a("s_mov_b32 s%d, 0", S_KB)
    lds_g2 = gen_gemm(body, "g2", 256, Op("km", 64, 2048), Op("kc", 128, 2048), 1, 4, 16, 4, OPT.get("W2", 2), g2_ptrs, dec_4x8,
                      "resid", "plain" if OPT.get("ln3") else "ln2", 2048, stubs=[("g2a_kernel", pre_l1), ("g2b_kernel", pre_l2)])
    if OPT.get("ln3"): gen_ln3(body, "ln3_kernel")

    def g3_ptrs(a, ph):
        if ph == 0:
            a("s_load_dwordx2 s[4:5], s[0:1], %d", ARG["ws"])
            a("s_load_dwordx2 s[30:31], s[0:1], %d", ARG["w1"])
            a("s_load_dwordx2 s[6:7], s[0:1], %d", ARG["b1"])
        elif ph == "L":
            srd(a, 8, 30, 0, 2048 * 3584 * 2)
            srd(a, 12, 4, WS["H"], ACT_BYTES)
        else:
            srd(a, 20, 6, 0, 3584 * 2)
            srd(a, 16, 4, WS["U"], 1024 * 3584 * 2)
    def g3_decode(a):
        a("s_and_b32 s%d, s2, 1", S_TMP)
        a("s_lshl_b32 s%d, s%d, 2", S_TMP, S_TMP)
        a("s_bfe_u32 s%d, s2, 0x20003", S_TMP + 1)
        a("s_add_u32 s%d, s%d, s%d", S_TB, S_TMP, S_TMP + 1)
        a("s_bfe_u32 s%d, s2, 0x20001", S_TMP)
        a("s_mul_i32 s%d, s%d, 7", S_TMP, S_TMP)
        a("s_lshr_b32 s%d, s2, 5", S_TMP + 2)
        a("s_add_u32 s%d, s%d, s%d", S_TA, S_TMP, S_TMP + 2)
        a("s_add_u32 s%d, s%d, s%d", S_J, S_TMP + 1, S_TMP + 2)
        a("s_mov_b32 s%d, 0", S_KB)
    def g3_spare(a):
        a("s_cmp_ge_u32 s2, 256")
        a("s_cbranch_scc1 g3_done")
        a("s_load_dwordx2 s[4:5], s[0:1], %d", ARG["w2"])
        a("s_load_dwordx2 s[6:7], s[0:1], %d", ARG["ws"])
        a("s_sub_u32 s3, s2, 224")
        a("v_lshlrev_b32 v1, 4, v0")
        for r in range(4): a("v_mov_b32 v%d, -1", 8 + r)
        a("s_lshl_b32 s13, s3, 17")
        a("s_mov_b32 s12, 2")
        a("s_waitcnt lgkmcnt(0)")
        srd(a, 8, 6, WS["PART"], PART_BYTES)
        a.label("g3_clear_loop")
        for k in range(8):
            a("buffer_store_dwordx4 v[8:11], v1, s[8:11], s13 offen sc1")
            a("s_add_u32 s13, s13, 8192")
        a("s_waitcnt vmcnt(8)")
        a("s_sub_u32 s12, s12, 1")
        a("s_cmp_lg_u32 s12, 0")
        a("s_cbranch_scc1 g3_clear_loop")
        a("s_cmp_ge_u32 s2, s%d", S_TMP + 7)
        a("s_cbranch_scc1 g3_done")
        a("s_cmp_ge_u32 s3, 16")
        a("s_cselect_b32 s12, %d, 0", (1792 - 1024) * 4096)
        a("s_lshl_b32 s3, s3, 18")
        a("s_add_u32 s3, s3, s12")
        a("s_mov_b32 s12, 4")
        srd(a, 8, 4, 0, 3584 * 2048 * 2)
        a.label("g3_spare_loop")
        for k in range(8):
            a("buffer_load_dwordx4 v[4:7], v1, s[8:11], s3 offen")
            a("s_add_u32 s3, s3, 8192")
        a("s_waitcnt vmcnt(8)")
        a("s_sub_u32 s12, s12, 1")
        a("s_cmp_lg_u32 s12, 0")
        a("s_cbranch_scc1 g3_spare_loop")
        a("s_endpgm")
    lds_g3 = gen_gemm(body, "g3", 224, Op("km", 128, 7168), Op("km", 128, 2048), 2, 2, 32, 4, "s", g3_ptrs, g3_decode,
                      "biasA", "gelu", 7168, spare=g3_spare,
                      stubs=[("g3a_kernel", lambda a: (a("s_mov_b32 s%d, %d", S_TMP + 7, 256 if OPT.get("pf", 1) else 224), wm(a, "W3a", 4))),
                             ("g3b_kernel", lambda a: (a("s_mov_b32 s%d, 224", S_TMP + 7), wm(a, "W3b", 2)))])

    split = not OPT.get("nosplit")
    def g4_ptrs(a, ph):
        if ph == 0:
            a("s_load_dwordx2 s[4:5], s[0:1], %d", ARG["ws"])
            a("s_load_dwordx2 s[30:31], s[0:1], %d", ARG["w2"])
            a("s_load_dwordx2 s[34:35], s[0:1], %d", ARG["b2"])
        elif ph == "L":
            srd(a, 8, 4, WS["U"], 1024 * 3584 * 2)
            srd(a, 12, 30, 0, 3584 * 2048 * 2)
        else:
            srd(a, 20, 4, WS["X1"], ACT_BYTES)
            srd(a, 56, 34, 0, 4096)
            srd_stub(a, 16)
            srd(a, 60, 4, WS["ST"], ST_BYTES)
            srd(a, 84, 4, WS["PART"], PART_BYTES)
    def g4_split_decode(a):
        if OPT.get("g4map", 0) == 0:
            a("s_bfe_u32 s%d, s2, 0x10001", S_TMP)
            a("s_lshl_b32 s%d, s%d, 2", S_TMP, S_TMP)
            a("s_bfe_u32 s%d, s2, 0x20003", S_TMP + 1)
            a("s_add_u32 s%d, s%d, s%d", S_TA, S_TMP, S_TMP + 1)
            a("s_bfe_u32 s%d, s2, 0x10002", S_TMP)
            a("s_lshl_b32 s%d, s%d, 3", S_TMP, S_TMP)
            a("s_lshr_b32 s%d, s2, 5", S_TMP + 2)
            a("s_add_u32 s%d, s%d, s%d", S_TB, S_TMP, S_TMP + 2)
            a("s_and_b32 s%d, s2, 1", S_ROLE)
        else:
            a("s_and_b32 s%d, s2, 1", S_TMP)
            a("s_lshl_b32 s%d, s%d, 2", S_TMP, S_TMP)
            a("s_bfe_u32 s%d, s2, 0x20004", S_TMP + 1)
            a("s_add_u32 s%d, s%d, s%d", S_TA, S_TMP, S_TMP + 1)
            a("s_bfe_u32 s%d, s2, 0x20001", S_TMP)
            a("s_lshl_b32 s%d, s%d, 2", S_TMP, S_TMP)
            a("s_lshr_b32 s%d, s2, 6", S_TMP + 2)
            a("s_add_u32 s%d, s%d, s%d", S_TB, S_TMP, S_TMP + 2)
            a("s_bfe_u32 s%d, s2, 0x10003", S_ROLE)
        a("s_add_u32 s%d, s%d, s%d", S_J, S_TMP + 1, S_TMP + 2)
        a("s_lshl_b32 s%d, s%d, 4", S_PAIR, S_TA)
        a("s_add_u32 s%d, s%d, s%d", S_PAIR, S_PAIR, S_TB)
        a("s_mul_i32 s%d, s%d, 28", S_KB, S_ROLE)
    def pre_out(a):
        a("s_load_dwordx2 s[6:7], s[0:1], %d", ARG["out"])
        a("s_mov_b32 s%d, 0", S_TMP + 7)
    g4stubs = [("g4a_kernel", lambda a: (pre_l2(a), wm(a, "W4a", 4))), ("g4b_kernel", lambda a: (pre_out(a), wm(a, "W4b", 2)))]
    g4grid = 256
    if OPT.get("g4half"):
        g4grid = 128
        def dec_half(a):
            a("s_and_b32 s%d, s2, 1", S_TMP)
            a("s_lshl_b32 s%d, s%d, 2", S_TMP, S_TMP)
            a("s_bfe_u32 s%d, s2, 0x20003", S_TMP + 1)
            a("s_add_u32 s%d, s%d, s%d", S_TA, S_TMP, S_TMP + 1)
            a("s_bfe_u32 s%d, s2, 0x20001", S_TMP)
            a("s_lshl_b32 s%d, s%d, 2", S_TMP, S_TMP)
            a("s_lshr_b32 s%d, s2, 5", S_TMP + 2)
            a("s_add_u32 s%d, s%d, s%d", S_TB, S_TMP, S_TMP + 2)
            a("s_add_u32 s%d, s%d, s%d", S_J, S_TMP + 1, S_TMP + 2)
            a("s_mov_b32 s%d, 0", S_KB)
        lds_g4 = gen_gemm(body, "g4", 128, Op("kc", 128, 7168), Op("km", 128, 4096), 2, 2, 56, 4, OPT.get("W4", 4), g4_ptrs,
                          dec_half, "resid+biasB", "plain", 2048, stubs=g4stubs, stats=True)
    elif split:
        lds_g4 = gen_gemm(body, "g4", 256, Op("kc", 128, 7168), Op("km", 128, 4096), 2, 2, 28, 4, "s", g4_ptrs,
                          g4_split_decode, "resid+biasB", "plain", 2048, stubs=g4stubs, stats=True, split=split)
    else:
        lds_g4 = gen_gemm(body, "g4", 256, Op("kc", 64, 7168), Op("km", 128, 4096), 1, 4, 56, OPT.get("S4", 4), OPT.get("W4", 4), g4_ptrs,
                          dec_4x8, "resid+biasB", "plain", 2048, stubs=g4stubs, stats=True)
    if extra_empty:
        kernel_header(body, "empty_kernel")
        body("s_endpgm")
        kernel_desc(body, "empty_kernel", 8, 16)

    L = lambda k, g, b, l: "; @launch kernel=%s grid=(%d,1,1) block=(%d,1,1) lds=%d" % (k, g, b, l)
    launches = []
    for ab in "ab":
        launches += [L("g1%s_kernel" % ab, 256, 512, lds_g1), L("g2%s_kernel" % ab, 256, 512, lds_g2),
                     *([L("ln3_kernel", 512, 256, 0)] if OPT.get("ln3") else []), L("g3%s_kernel" % ab, 256, 512, lds_g3), L("g4%s_kernel" % ab, g4grid, 512, lds_g4)]
    launches += [L("empty_kernel", 256, 64, 0)] * extra_empty
    head = open("/code/%s.s.ref" % NAME).read().split("; Override launch geometry")[0]
    text = head + "\n".join(launches) + "\n" + '.amdgcn_target "amdgcn-amd-amdhsa--gfx950"\n' + body.text()
    return text

if __name__ == "__main__":
    out = sys.argv[1] if len(sys.argv) > 1 else "/code/%s.s" % NAME
    extra = 0
    for o in sys.argv[2:]:
        k, _, v = o.partition("=")
        OPT[k] = int(v) if v else 1
    extra = OPT.get("empty", 0)
    text = build(extra)
    open(out, "w").write(text)
    import json
    json.dump(KID, open(out + ".kid", "w"))
    hazard.check(text)
```

```python
import sys, struct, math
from asmlib import *
import hazard

NAME = "interleave_layers__sliding_local_dilated__mixer_token_mlp__prompt"
MB = 1 << 20
WS = dict(ST=0, CS=1 * MB, EX=2 * MB, CNT=3 * MB, O=4 * MB, X1=8 * MB, H=12 * MB, U=17 * MB, X2=25 * MB, PART=29 * MB)
LDH = 2304
LDU = 8192
ST_BYTES = 16 * 2048 * 8
CS_BYTES = 16 * 3072 * 4
PART_BYTES = 256 * 16384
ARG = dict(x=0, wqkv=8, wo=16, bx=24, w1=32, b1=40, w2=48, b2=56, out=64, dbg=72, ws=80)
ACT_BYTES = 2048 * 1024 * 2

OPT = {}
for _o in sys.argv[2:]:
    _k, _, _v = _o.partition('=')
    if _k == 'LDH': LDH = int(_v)
    if _k == 'LDU': LDU = int(_v)

def STF():
    return {0: "", 1: " sc1", 2: " nt", 3: " sc0 sc1", 4: " sc0 sc1 nt"}[OPT.get("stf", 1)]

def f32(x):
    return struct.unpack("<I", struct.pack("<f", x))[0]

LOFF = 40 * MB
STAMP_OFF = 34 * MB
KID = {}
def stamp(a, k):
    if OPT.get("stamp"):
        a("%s s[%d:%d]", "s_memtime" if OPT["stamp"] == 2 else "s_memrealtime", 64 + 2 * k, 65 + 2 * k)

def stamp_flush(a, name, n, wsreg=4, waitvm=True, extra=False):
    if not OPT.get("stamp"): return
    kid = KID.setdefault(name, len(KID))
    if waitvm: a("s_waitcnt vmcnt(0)")
    a("%s s[%d:%d]", "s_memtime" if OPT["stamp"] == 2 else "s_memrealtime", 64 + 2 * n, 65 + 2 * n)
    a("s_waitcnt lgkmcnt(0)")
    a("s_add_u32 s84, s%d, 0x%x", wsreg, STAMP_OFF + kid * 512 * 1024)
    a("s_addc_u32 s85, s%d, 0", wsreg + 1)
    a("s_mov_b32 s86, 0x80000")
    a("s_mov_b32 s87, 0x20000")
    a("v_lshrrev_b32 v1, 6, v0")
    a("v_lshlrev_b32 v1, 6, v1")
    a("s_lshl_b32 s88, s2, 9")
    a("v_add_u32 v1, s88, v1")
    for k in range(n + 1 + extra):
        a("v_mov_b32 v2, s%d", 64 + 2 * k)
        a("buffer_store_dword v2, v1, s[84:87], 0 offen offset:%d", 4 * k)
        a("s_nop 1")

def srd(a, d, p, off, nbytes):
    if off:
        a("s_add_u32 s%d, s%d, 0x%x", d, p, off)
        a("s_addc_u32 s%d, s%d, 0", d + 1, p + 1)
    else:
        a("s_mov_b32 s%d, s%d", d, p)
        a("s_mov_b32 s%d, s%d", d + 1, p + 1)
    a("s_mov_b32 s%d, 0x%x", d + 2, nbytes)
    a("s_mov_b32 s%d, 0x20000", d + 3)

def round_bf16_scalar(a, v):
    a("v_cvt_pk_bf16_f32 v%d, v%d, v%d", v, v, v)
    a("v_lshlrev_b32 v%d, 16, v%d", v, v)

class Op:
    def __init__(self, kind, T, ld):
        self.kind, self.T, self.ld = kind, T, ld
        self.bytes = T * 128
        self.n = self.bytes // 1024
        self.npw = self.n // 4
        self.kadv = 128 if kind == "kc" else 64 * ld

S_TA, S_TB, S_KB, S_J, S_W = 24, 25, 26, 27, 28
S_T, S_SLOT, S_OFA, S_OFB = 32, 33, 34, 35
S_LA, S_LB, S_M0A, S_M0B = 36, 37, 38, 39
S_TMP = 40
S_CNT, S_DELTA, S_SI = 48, 49, 50
S_ST = 52
S_DP, S_DN = 51, 29
S_N, S_ROLE, S_PAIR, S_OWN, S_OTH, S_WM = 90, 91, 92, 93, 94, 95
S_LAYER, S_LOFF = 96, 97
NSGPR = 100
C12, C23, C34, C41, CR = 0, 16, 24, 40, 56
CUTS = set()

def loader_voffs(a, op, stile, vb, extra_cols=0):
    ld = op.ld
    a("s_mov_b32 s%d, %d", S_TMP, ld)
    if op.kind == "kc":
        a("v_lshrrev_b32 v3, 3, v2")
        a("v_mul_lo_u32 v3, v3, s%d", S_TMP)
        a("v_lshrrev_b32 v4, 4, v2")
        a("v_xor_b32 v4, v4, v2")
        a("v_and_b32 v4, 7, v4")
        a("v_lshl_add_u32 v3, v4, 4, v3")
        a("s_mul_i32 s%d, s%d, %d", S_TMP + 1, stile, op.T * ld)
        a("s_mul_i32 s%d, s%d, %d", S_TMP + 2, S_W, 8 * op.npw * ld)
        a("s_add_u32 s%d, s%d, s%d", S_TMP + 1, S_TMP + 1, S_TMP + 2)
        a("v_xor_b32 v4, 64, v3")
        for i in range(op.npw):
            a("s_add_u32 s%d, s%d, %d", S_TMP + 2, S_TMP + 1, i * 8 * ld)
            a("v_add_u32 v%d, s%d, v%d", vb + i, S_TMP + 2, 3 + (i & 1))
    elif op.T == 128:
        a("v_lshrrev_b32 v4, 4, v2")
        a("v_mul_lo_u32 v3, v4, s%d", S_TMP)
        a("v_lshlrev_b32 v4, 1, v4")
        a("v_xor_b32 v4, v4, v2")
        a("v_and_b32 v4, 15, v4")
        a("v_lshl_add_u32 v3, v4, 4, v3")
        a("s_mul_i32 s%d, s%d, 256", S_TMP + 1, stile)
        a("s_mul_i32 s%d, s%d, %d", S_TMP + 2, S_W, 16 * ld)
        a("s_add_u32 s%d, s%d, s%d", S_TMP + 1, S_TMP + 1, S_TMP + 2)
        a("v_xor_b32 v4, 128, v3")
        for i in range(4):
            a("s_add_u32 s%d, s%d, %d", S_TMP + 2, S_TMP + 1, i * 4 * ld)
            a("v_add_u32 v%d, s%d, v%d", vb + i, S_TMP + 2, 3 + (i >> 1))
    elif op.T == 64:
        a("v_lshrrev_b32 v3, 3, v2")
        a("v_mul_lo_u32 v3, v3, s%d", S_TMP)
        a("v_bfe_u32 v4, v2, 4, 1")
        a("v_lshlrev_b32 v4, 1, v4")
        a("v_xor_b32 v4, v4, v2")
        a("v_and_b32 v4, 7, v4")
        a("v_lshl_add_u32 v3, v4, 4, v3")
        a("s_mul_i32 s%d, s%d, 128", S_TMP + 1, stile)
        a("s_mul_i32 s%d, s%d, %d", S_TMP + 2, S_W, 16 * ld)
        a("s_add_u32 s%d, s%d, s%d", S_TMP + 1, S_TMP + 1, S_TMP + 2)
        a("v_xor_b32 v4, 64, v3")
        for i in range(2):
            a("s_add_u32 s%d, s%d, %d", S_TMP + 2, S_TMP + 1, i * 8 * ld + extra_cols * 2)
            a("v_add_u32 v%d, s%d, v%d", vb + i, S_TMP + 2, 3 + i)
    else:
        raise ValueError

def lane_parts(a):
    a("v_lshrrev_b32 v5, 4, v2")
    a("v_bfe_u32 v6, v2, 2, 2")
    a("v_and_b32 v7, 3, v2")
    a("v_and_b32 v8, 15, v2")

def read_addrs_kc(a, opbase, srow, vb):
    a("v_lshrrev_b32 v3, 1, v8")
    a("v_xor_b32 v3, v3, v5")
    a("v_lshlrev_b32 v3, 4, v3")
    a("v_lshl_add_u32 v3, v8, 7, v3")
    if srow is not None:
        a("s_lshl_b32 s%d, s%d, 7", S_TMP, srow)
        a("s_add_u32 s%d, s%d, %d", S_TMP, S_TMP, opbase)
        a("v_add_u32 v%d, s%d, v3", vb, S_TMP)
    else:
        a("v_add_u32 v%d, %d, v3", vb, opbase)
    a("v_xor_b32 v%d, 64, v%d", vb + 1, vb)

def read_addr_km(a, T, sbase, stile, i, vd, sxor=None):
    rowb = T * 2
    if T == 128:
        a("v_and_b32 v3, 1, v5")
        a("v_lshl_or_b32 v3, v3, 2, v6")
    else:
        a("v_and_b32 v3, 1, v5")
        a("v_lshlrev_b32 v3, 1, v3")
        a("v_lshrrev_b32 v4, 1, v6")
        a("v_or_b32 v3, v3, v4")
    a("s_add_u32 s%d, s%d, %d", S_TMP, stile, i)
    if sxor is not None: a("s_xor_b32 s%d, s%d, s%d", S_TMP, S_TMP, sxor)
    a("v_xor_b32 v3, s%d, v3", S_TMP)
    a("v_lshlrev_b32 v3, 5, v3")
    a("v_lshl_add_u32 v3, v7, 3, v3")
    a("v_lshl_add_u32 v4, v5, 3, v6")
    a("v_lshl_add_u32 v3, v4, %d, v3", rowb.bit_length() - 1)
    a("v_add_u32 v%d, s%d, v3", vd, sbase)

def frag_reads(kind, T, addr_regs, idx, ks, dst):
    if kind == "kc":
        return ["ds_read_b128 v[%d:%d], v%d offset:%d" % (dst, dst + 3, addr_regs[ks], idx * 2048)]
    rowb = T * 2
    return ["ds_read_b64_tr_b16 v[%d:%d], v%d offset:%d" % (dst + 2 * h, dst + 2 * h + 1, addr_regs[idx], h * 4 * rowb + ks * 32 * rowb)
            for h in range(2)]

def interleave(a, mfmas, reads, tail=()):
    reads = list(reads); tail = list(tail)
    if OPT.get("noreads"): reads = []
    if OPT.get("nomfma"): mfmas = ["s_nop 0"] * 2
    for m in mfmas:
        a(m)
        budget = 2
        while reads and budget > 0:
            cost = 2 if "b128" in reads[0] else 1
            if cost > budget: break
            a(reads.pop(0)); budget -= cost
        if not reads:
            while tail and budget > 0:
                a(tail.pop(0)); budget -= 1
    for r in reads: a(r)
    for t in tail: a(t)

def loader_loop(a, name, issue, n_per_wave, N, S, stage_bytes, events=(), tail=None, first_wait=None):
    a("s_mov_b32 s%d, 0", S_T)
    a("s_mov_b32 s%d, 0", S_SLOT)
    a.label(name + "_ld_loop")
    a("s_cmp_lt_u32 s%d, %d", S_T, S - 1)
    a("s_cbranch_scc1 %s_ld_issue", name)
    opnd = lambda at: str(at[1]) if isinstance(at, tuple) else "s%d" % at
    for k, (at, extra, fn) in enumerate(events):
        if extra:
            a("s_sub_u32 s%d, s%d, %s", S_TMP, S_T, opnd(at))
            a("s_sub_u32 s%d, s%d, 1", S_TMP, S_TMP)
            a("s_cmp_lt_u32 s%d, %d", S_TMP, S - 1)
            a("s_cbranch_scc1 %s_ld_w%d", name, k)
    a("s_waitcnt vmcnt(%d)", (S - 2) * n_per_wave)
    a.label(name + "_ld_bar")
    a("s_barrier")
    a.label(name + "_ld_issue")
    if not OPT.get("noload"): issue()
    if first_wait is not None:
        a("s_cmp_lg_u32 s%d, 0", S_T)
        a("s_cbranch_scc1 %s_ld_nf", name)
        a("s_waitcnt vmcnt(%d)", first_wait)
        a.label(name + "_ld_nf")
    for k, (at, extra, fn) in enumerate(events):
        a("s_cmp_eq_u32 s%d, %s", S_T, opnd(at))
        a("s_cbranch_scc1 %s_ld_h%d", name, k)
        a.label(name + "_ld_c%d" % k)
    a("s_add_u32 s%d, s%d, %d", S_SLOT, S_SLOT, stage_bytes)
    a("s_cmp_eq_u32 s%d, %d", S_SLOT, S * stage_bytes)
    a("s_cselect_b32 s%d, 0, s%d", S_SLOT, S_SLOT)
    a("s_add_u32 s%d, s%d, 1", S_T, S_T)
    a("s_cmp_lt_u32 s%d, %s", S_T, N)
    a("s_cbranch_scc1 %s_ld_loop", name)
    if tail: tail()
    else:
        for t in range(N - S + 1, N):
            a("s_waitcnt vmcnt(%d)", (N - 1 - t) * n_per_wave)
            a("s_barrier")
    if events:
        a("s_branch %s_ld_end", name)
        for k, (at, extra, fn) in enumerate(events):
            if extra:
                a.label(name + "_ld_w%d" % k)
                a("s_waitcnt vmcnt(%d)", (S - 2) * n_per_wave + extra)
                a("s_branch %s_ld_bar", name)
            a.label(name + "_ld_h%d" % k)
            fn()
            a("s_branch %s_ld_c%d", name, k)
        a.label(name + "_ld_end")

def kidx_offsets(a, W, advA, advB, wrap=0):
    wm = ("s%d" % S_WM) if W == "s" else str(W - 1)
    a("s_add_u32 s%d, s%d, s%d", S_TMP, S_T, S_J)
    a("s_and_b32 s%d, s%d, %s", S_TMP, S_TMP, wm)
    a("s_andn2_b32 s%d, s%d, %s", S_TMP + 1, S_T, wm)
    a("s_or_b32 s%d, s%d, s%d", S_TMP, S_TMP, S_TMP + 1)
    a("s_add_u32 s%d, s%d, s%d", S_TMP, S_TMP, S_KB)
    if wrap: a("s_and_b32 s%d, s%d, %d", S_TMP, S_TMP, wrap - 1)
    a("s_mul_i32 s%d, s%d, %d", S_OFA, S_TMP, advA)
    a("s_mul_i32 s%d, s%d, %d", S_OFB, S_TMP, advB)

def compute_loop_ctl_init(a, N, S, stage_bytes):
    a("s_mov_b32 s%d, %s", S_CNT, N)
    a("s_mov_b32 s%d, 0", S_SI)
    a("s_mov_b32 s%d, %d", S_DP, stage_bytes)
    a("s_mov_b32 s%d, 0x%x", S_DN, (-(S - 1) * stage_bytes) & 0xffffffff)

def addr_update(addr_regs, S, stage_bytes):
    L = ["s_add_u32 s%d, s%d, 1" % (S_SI, S_SI),
         "s_cmp_eq_u32 s%d, %d" % (S_SI, S),
         "s_cselect_b32 s%d, s%d, s%d" % (S_DELTA, S_DN, S_DP),
         "s_cselect_b32 s%d, 0, s%d" % (S_SI, S_SI)]
    L += ["v_add_u32 v%d, s%d, v%d" % (r, S_DELTA, r) for r in addr_regs]
    L += ["s_sub_u32 s%d, s%d, 1" % (S_CNT, S_CNT), "s_cmp_lg_u32 s%d, 0" % S_CNT]
    return L

def gelu_pairs(a, regs, tmp, cst):
    n = len(regs)
    pr = lambda r: "v[%d:%d]" % (r, r + 1)
    for k, r in enumerate(regs): a("v_pk_mul_f32 %s, %s, %s", pr(tmp + 2 * k), pr(r), pr(r))
    for k, r in enumerate(regs): a("v_pk_fma_f32 %s, %s, %s, %s", pr(tmp + 2 * k), pr(tmp + 2 * k), pr(cst), pr(cst + 2))
    for k, r in enumerate(regs): a("v_pk_mul_f32 %s, %s, %s", pr(tmp + 2 * k), pr(tmp + 2 * k), pr(r))
    for k in range(2 * n): a("v_exp_f32 v%d, v%d", tmp + k, tmp + k)
    for k, r in enumerate(regs): a("v_pk_add_f32 %s, %s, %s", pr(tmp + 2 * k), pr(tmp + 2 * k), pr(cst + 4))
    for k in range(2 * n): a("v_rcp_f32 v%d, v%d", tmp + k, tmp + k)
    for k, r in enumerate(regs): a("v_pk_mul_f32 %s, %s, %s", pr(r), pr(r), pr(tmp + 2 * k))

def cloop(a, name, mf, rd, addrs, S, stage, first=None, mid=None):
    stamp(a, 2)
    if OPT.get("stamp") or first:
        a("s_barrier")
        stamp(a, 3)
        if first: first()
        if OPT.get("stamp"): a("s_waitcnt lgkmcnt(0)")
        a("s_branch %s_cloop2", name)
    if mid:
        a.label(name + "_mid")
        a("s_waitcnt vmcnt(0)")
        a("s_nop 7")
        mid[1]()
        a("s_nop 1")
        a("s_branch %s_cloop2", name)
    a.raw(".p2align 3")
    a.label(name + "_cloop")
    a("s_barrier")
    if mid:
        a("s_cmp_eq_u32 s%d, %d", S_CNT, mid[0])
        a("s_cbranch_scc1 %s_mid", name)
    a.label(name + "_cloop2")
    interleave(a, mf(1), rd(0, 0))
    a("s_waitcnt lgkmcnt(0)")
    interleave(a, mf(0), rd(1, 1), addr_update(addrs, S, stage))
    a("s_waitcnt lgkmcnt(0)")
    a("s_cbranch_scc1 %s_cloop", name)
    for m in mf(1): a(m)
    stamp(a, 4)

GEMM_VTOP = {}
CNT_BYTES = 64 * 256
def count_in(a, label, area=0):
    srd(a, 84, 4, WS["CNT"] + area, CNT_BYTES)
    a("v_mov_b32 v3, s%d", S_TMP)
    a("v_mov_b32 v4, 1")
    a("s_waitcnt vmcnt(0)")
    a("s_barrier")
    a("s_cmp_lg_u32 s%d, 0", S_W)
    a("s_cbranch_scc1 %s", label)
    a("s_mov_b64 exec, 1")
    a("buffer_atomic_add v4, v3, s[84:87], 0 offen sc1")
    a("s_mov_b64 exec, -1")
    a.label(label)

def wait_counters(a, label, need0, need1):
    srd(a, 84, 4, WS["CNT"], CNT_BYTES)
    a("v_cmp_eq_u32 vcc, 1, v2")
    a("v_mov_b32 v21, s%d", S_TMP)
    a("v_mov_b32 v23, s%d", S_TMP + 2)
    a("v_cndmask_b32 v21, v21, v23, vcc")
    a("v_mov_b32 v22, %d", need0)
    a("v_mov_b32 v23, %d", need1)
    a("v_cndmask_b32 v22, v22, v23, vcc")
    a("s_mov_b32 s%d, 0x8000", S_TMP + 1)
    a.label(label)
    a("buffer_load_dword v23, v21, s[84:87], 0 offen sc1")
    a("s_sub_u32 s%d, s%d, 1", S_TMP + 1, S_TMP + 1)
    a("s_waitcnt vmcnt(0)")
    a("v_cmp_lt_u32 vcc, v23, v22")
    a("s_cmp_eq_u32 s%d, 0", S_TMP + 1)
    a("s_cbranch_scc1 %s_ok", label)
    a("s_cbranch_vccz %s_ok", label)
    a("s_sleep %d", OPT.get("dslp", 2))
    a("s_branch %s", label)
    a.label(label + "_ok")

PHASES = ["g1", "g2", "g3", "g4"]
def prev_cut(name):
    k = PHASES.index(name)
    return "%d%d" % ((k - 1) % 4 + 1, k + 1) in CUTS
def next_cut(name):
    k = PHASES.index(name)
    return "%d%d" % (k + 1, (k + 1) % 4 + 1) in CUTS

def entry(a, name, ntiles, spare=False):
    for layer, ab in enumerate("ab"):
        if prev_cut(name) or (name == "g1" and layer == 0):
            kernel_header(a, "%s%s_kernel" % (name, ab))
            a("s_mov_b32 s%d, %d", S_LAYER, layer)
            a("s_mov_b32 s%d, 0x%x", S_LOFF, layer * LOFF)
            a("s_branch %s_in", name)
            KERNELS.append("%s%s_kernel" % (name, ab))
    a.raw(".p2align 6")
    a.label(name + "_in")
    a("s_cmp_ge_u32 s2, %d", ntiles)
    a("s_cbranch_scc1 %s_%s", name, "spare" if spare else "done")
    stamp(a, 0)
KERNELS = []

def ws_adjust(a):
    a("s_add_u32 s4, s4, s%d", S_LOFF)
    a("s_addc_u32 s5, s5, 0")

def sel_ptr(a, d, which_layer, off):
    a("s_add_u32 s%d, s4, 0x%x", d, off)
    a("s_addc_u32 s%d, s5, 0", d + 1)
    a("s_cmp_eq_u32 s%d, %d", S_LAYER, which_layer)
    a("s_cselect_b32 s%d, s%d, s6", d, d)
    a("s_cselect_b32 s%d, s%d, s7", d + 1, d + 1)
    a("s_mov_b32 s%d, 0x%x", d + 2, ACT_BYTES)
    a("s_mov_b32 s%d, 0x20000", d + 3)

def go_next(a, name):
    if name == "g4":
        a("s_mov_b32 s%d, 1", S_LAYER)
        a("s_mov_b32 s%d, 0x%x", S_LOFF, LOFF)
    a("s_branch %s_in", PHASES[(PHASES.index(name) + 1) % 4])

def finish(a, name, cnt, loader=False):
    if next_cut(name):
        a("s_endpgm")
        return
    if name == "g4":
        a("s_cmp_lg_u32 s%d, 0", S_LAYER)
        a("s_cbranch_scc1 %s_done", name)
    if loader:
        a("s_barrier")
    else:
        cnt(a)
        count_in(a, name + "_cin", LOFF if name == "g4" else 0)
    go_next(a, name)

def gen_gemm(a, name, ntiles, A, B, WA, WB, N, S, W, ptrs, decode, init, epi, ldc, cnt, dep, stats=False, spare=None, split=None):
    na, nb = A.T // (16 * WA), B.T // (16 * WB)
    stage = A.bytes + B.bytes
    baseA, baseB = 0, A.bytes
    entry(a, name, ntiles, spare is not None)
    ptrs(a, 0)
    a("v_lshrrev_b32 v1, 6, v0")
    a("v_and_b32 v2, 63, v0")
    decode(a)
    a("v_readfirstlane_b32 s%d, v1", S_W)
    a("s_nop 0")
    a("s_cmp_lt_u32 s%d, 4", S_W)
    a("s_cbranch_scc1 %s_compute", name)

    if OPT.get("ldprio"): a("s_setprio %d", OPT["ldprio"])
    a("s_sub_u32 s%d, s%d, 4", S_W, S_W)
    loader_voffs(a, A, S_TA, 10)
    loader_voffs(a, B, S_TB, 10 + A.npw)
    a("s_mul_i32 s%d, s%d, %d", S_LA, S_W, A.npw * 1024)
    a("s_mul_i32 s%d, s%d, %d", S_LB, S_W, B.npw * 1024)
    a("s_add_u32 s%d, s%d, %d", S_LB, S_LB, baseB)
    a("s_waitcnt lgkmcnt(0)")
    ws_adjust(a)
    ptrs(a, "L")
    def issue():
        kidx_offsets(a, W, A.kadv, B.kadv)
        a("s_add_u32 s%d, s%d, s%d", S_M0A, S_SLOT, S_LA)
        a("s_add_u32 s%d, s%d, s%d", S_M0B, S_SLOT, S_LB)
        for (op, vb, sm, so, sr) in ((A, 10, S_M0A, S_OFA, 8), (B, 10 + A.npw, S_M0B, S_OFB, 12)):
            for i in range(op.npw):
                a("s_add_u32 m0, s%d, %d", sm, i * 1024)
                a("s_nop 0")
                a("buffer_load_dwordx4 v%d, s[%d:%d], s%d offen lds", vb + i, sr, sr + 3, so)
    if not prev_cut(name): dep(a)
    loader_loop(a, name, issue, A.npw + B.npw, N, S, stage)
    if not next_cut(name): finish(a, name, cnt, loader=True)
    a.label(name + "_done")
    a("s_endpgm")

    a.label(name + "_compute")
    ACC = 28
    BV = 22
    nacc = na * nb * 4
    FR = ACC + nacc
    fset = (na + nb) * 4
    fA = lambda st, i: FR + st * fset + 4 * i
    fB = lambda st, j: FR + st * fset + 4 * na + 4 * j
    acc = lambda i, j: ACC + 4 * (i * nb + j)
    VTOP = FR + 2 * fset
    if epi == "ln2":
        EXV = VTOP
        VTOP += 16
    nk = nb // 2 if split else nb
    if split:
        SND, RCV = VTOP, VTOP + 16
        VTOP += 32
    lane_parts(a)
    SWA, SWB = S_TMP + 4, S_TMP + 5
    a("s_and_b32 s%d, s%d, %d", SWA, S_W, WA - 1)
    a("s_lshr_b32 s%d, s%d, %d", SWB, S_W, WA.bit_length() - 1)
    a("s_mul_i32 s%d, s%d, %d", S_TMP, S_TB, B.T)
    a("s_mul_i32 s%d, s%d, %d", S_TMP + 1, SWB, nb * 16)
    a("s_add_u32 s%d, s%d, s%d", S_TMP, S_TMP, S_TMP + 1)
    if split:
        a("s_lshl_b32 s%d, s%d, 5", S_TMP + 1, S_ROLE)
        a("s_add_u32 s%d, s%d, s%d", S_TMP, S_TMP, S_TMP + 1)
    a("v_add_u32 v20, s%d, v8", S_TMP)
    a("s_mov_b32 s%d, %d", S_TMP + 1, ldc)
    a("v_mul_lo_u32 v9, v20, s%d", S_TMP + 1)
    a("s_mul_i32 s%d, s%d, %d", S_TMP, S_TA, A.T * 2)
    a("s_mul_i32 s%d, s%d, %d", S_TMP + 1, SWA, na * 32)
    a("s_add_u32 s%d, s%d, s%d", S_TMP + 6, S_TMP, S_TMP + 1)
    a("v_and_b32 v3, 1, v5")
    a("v_lshlrev_b32 v3, 5, v3")
    a("v_lshrrev_b32 v4, 1, v5")
    a("v_lshl_add_u32 v3, v4, 4, v3")
    a("v_add3_u32 v9, v9, v3, s%d", S_TMP + 6)
    for j in range(nb):
        a("s_mov_b32 s%d, %d", S_ST + j, j * 16 * ldc)
    a("s_waitcnt lgkmcnt(0)")
    stamp(a, 1)
    ws_adjust(a)
    ptrs(a, "C")
    resid = init in ("resid", "resid+biasB")
    if resid:
        RES = VTOP
        VTOP += 24
    def resid_loads():
        for j in range(nk):
            for p in range(na // 2):
                d = RES + 4 * (j * (na // 2) + p)
                a("buffer_load_dwordx4 v[%d:%d], v9, s[20:23], s%d offen offset:%d", d, d + 3, S_ST + j, p * 64)
        if init == "resid+biasB":
            a("v_lshlrev_b32 v3, 1, v20")
            for j in range(nk):
                a("buffer_load_ushort v%d, v3, s[56:59], 0 offen offset:%d", BV + j, j * 32)
    def resid_add():
        T = RES + 16
        for q in range(nk * na // 2):
            a("v_permlane16_swap_b32 v%d, v%d", RES + 4 * q, RES + 4 * q + 2)
            a("v_permlane16_swap_b32 v%d, v%d", RES + 4 * q + 1, RES + 4 * q + 3)
        if init == "resid+biasB":
            for j in range(nk): a("v_lshlrev_b32 v%d, 16, v%d", BV + j, BV + j)
        for j in range(nk):
            for p in range(na // 2):
                d = RES + 4 * (j * (na // 2) + p)
                for q in range(4):
                    a("v_lshlrev_b32 v%d, 16, v%d", T + 2 * q, d + q)
                    a("v_and_b32 v%d, 0xffff0000, v%d", T + 2 * q + 1, d + q)
                if init == "resid+biasB":
                    for q in range(8): a("v_add_f32 v%d, v%d, v%d", T + q, T + q, BV + j)
                for q in range(4):
                    c = acc(2 * p + (q >> 1), j) + 2 * (q & 1)
                    a("v_pk_add_f32 v[%d:%d], v[%d:%d], v[%d:%d]", c, c + 1, c, c + 1, T + 2 * q, T + 2 * q + 1)
    if init == "biasA":
        a("v_lshl_add_u32 v3, v5, 3, s%d", S_TMP + 6)
        for i in range(na):
            a("buffer_load_dwordx2 v[%d:%d], v3, s[20:23], 0 offen offset:%d", FR + 2 * i, FR + 2 * i + 1, i * 32)
    AR = 10
    def mk_addrs(op, base, swave, n, vb, sxor=None):
        if op.kind == "kc":
            a("s_mul_i32 s%d, s%d, %d", S_TMP + 2, swave, n * 16)
            read_addrs_kc(a, base, S_TMP + 2, vb)
            return [vb, vb + 1]
        a("s_mul_i32 s%d, s%d, %d", S_TMP + 2, swave, n)
        a("s_mov_b32 s%d, %d", S_TMP + 3, base)
        for i in range(n):
            read_addr_km(a, op.T, S_TMP + 3, S_TMP + 2, i, vb + i, sxor)
        return [vb + i for i in range(n)]
    adA = mk_addrs(A, baseA, SWA, na, AR)
    if split: a("s_lshl_b32 s%d, s%d, 1", S_N, S_ROLE)
    adB = mk_addrs(B, baseB, SWB, nb, AR + len(adA), S_N if split else None)
    assert AR + len(adA) + len(adB) <= 20
    for r in range(fset): a("v_mov_b32 v%d, 0", FR + fset + r)
    compute_loop_ctl_init(a, N, S, stage)
    if split:
        a("s_lshl_b32 s%d, s%d, 12", S_TMP, S_W)
        a("v_lshl_add_u32 v21, v2, 4, s%d", S_TMP)
        a("s_lshl_b32 s%d, s%d, 1", S_OWN, S_PAIR)
        a("s_add_u32 s%d, s%d, s%d", S_OWN, S_OWN, S_ROLE)
        a("s_lshl_b32 s%d, s%d, 14", S_OWN, S_OWN)
        a("s_xor_b32 s%d, s%d, 0x4000", S_OTH, S_OWN)
    if init != "biasA":
        for r in range(nacc): a("v_mov_b32 v%d, 0", ACC + r)
    else:
        a("s_waitcnt vmcnt(0)")
        for i in range(na):
            for j in range(nb):
                c = acc(i, j)
                for q in range(2):
                    a("v_lshlrev_b32 v%d, 16, v%d", c + 2 * q, FR + 2 * i + q)
                    a("v_and_b32 v%d, 0xffff0000, v%d", c + 2 * q + 1, FR + 2 * i + q)
    if OPT.get("cprio"): a("s_setprio %d", OPT["cprio"])
    def mf(st):
        return ["v_mfma_f32_16x16x32_bf16 v[%d:%d], v[%d:%d], v[%d:%d], v[%d:%d]" %
                (acc(i, j), acc(i, j) + 3, fA(st, i), fA(st, i) + 3, fB(st, j), fB(st, j) + 3, acc(i, j), acc(i, j) + 3)
                for i in range(na) for j in range(nb)]
    def rd(st, ks):
        L = []
        L += frag_reads(A.kind, A.T, adA, 0, ks, fA(st, 0))
        for j in range(nb): L += frag_reads(B.kind, B.T, adB, j, ks, fB(st, j))
        for i in range(1, na): L += frag_reads(A.kind, A.T, adA, i, ks, fA(st, i))
        return L
    def rcv_loads():
        for u in range(4):
            a("buffer_load_dwordx4 v[%d:%d], v21, s[84:87], s%d offen offset:%d sc1", RCV + 4 * u, RCV + 4 * u + 3, S_OTH, u * 1024)
    cloop(a, name, mf, rd, adA + adB, S, stage, first=resid_loads if resid else None,
          mid=(N // 2, resid_add) if resid and not split else None)
    TMPV = FR
    if epi == "gelu":
        c1 = -2.0 * math.log2(math.e) * math.sqrt(2.0 / math.pi) * 0.044715
        c0 = -2.0 * math.log2(math.e) * math.sqrt(2.0 / math.pi)
        for k, v in enumerate((c1, c1, c0, c0, 1.0, 1.0)):
            a("v_mov_b32 v%d, 0x%x", AR + k, f32(v))
    if split:
        tiles = lambda j0: [(i, j) for j in range(j0, j0 + nk) for i in range(na)]
        for u, (i, j) in enumerate(tiles(nk)):
            c = acc(i, j)
            if u == 7: a("s_nop 3")
            a("v_cvt_pk_bf16_f32 v%d, v%d, v%d", SND + 2 * u, c, c + 1)
            a("v_cvt_pk_bf16_f32 v%d, v%d, v%d", SND + 2 * u + 1, c + 2, c + 3)
            if u & 1:
                a("buffer_store_dwordx4 v[%d:%d], v21, s[84:87], s%d offen offset:%d sc1", SND + 2 * u - 2, SND + 2 * u + 1, S_OWN, (u >> 1) * 1024)
        a("s_mov_b32 s%d, 0x2000", S_CNT)
        stamp(a, 5)
        rcv_loads()
        a("s_waitcnt vmcnt(8)")
        resid_add()
        a("s_waitcnt vmcnt(0)")
        a.label(name + "_rcv")
        a("v_max3_u32 v4, v%d, v%d, v%d", RCV, RCV + 1, RCV + 2)
        for q in range(3, 15, 2): a("v_max3_u32 v4, v4, v%d, v%d", RCV + q, RCV + q + 1)
        a("v_max_u32 v4, v4, v%d", RCV + 15)
        a("v_cmp_eq_u32 vcc, -1, v4")
        a("s_sub_u32 s%d, s%d, 1", S_CNT, S_CNT)
        a("s_cmp_eq_u32 s%d, 0", S_CNT)
        a("s_cbranch_scc1 %s_rcvd", name)
        a("s_cbranch_vccz %s_rcvd", name)
        a("s_sleep %d", OPT.get("slp", 2))
        rcv_loads()
        a("s_waitcnt vmcnt(0)")
        a("s_branch %s_rcv", name)
        a.label(name + "_rcvd")
        stamp(a, 6)
        if OPT.get("stamp"): a("s_add_u32 s%d, s%d, 0x6000", 64 + 2 * 9, S_CNT)
        for u, (i, j) in enumerate(tiles(0)):
            c = acc(i, j); t = TMPV + 16 + 4 * (u & 3)
            for q in range(2):
                a("v_lshlrev_b32 v%d, 16, v%d", t + 2 * q, RCV + 2 * u + q)
                a("v_and_b32 v%d, 0xffff0000, v%d", t + 2 * q + 1, RCV + 2 * u + q)
            for q in range(2):
                a("v_pk_add_f32 v[%d:%d], v[%d:%d], v[%d:%d]", c + 2 * q, c + 2 * q + 1, c + 2 * q, c + 2 * q + 1, t + 2 * q, t + 2 * q + 1)
    def stats_block():
        assert nk in (2, 4) and na == 4
        pr = lambda r: "v[%d:%d]" % (r, r + 1)
        SV = TMPV + 16
        for j in range(nk):
            prs = [acc(i, j) + 2 * q for i in range(na) for q in range(2)]
            a("v_pk_add_f32 %s, %s, %s", pr(SV + 4 * j), pr(prs[0]), pr(prs[1]))
            a("v_pk_mul_f32 %s, %s, %s", pr(SV + 4 * j + 2), pr(prs[0]), pr(prs[0]))
            for x in prs[1:]:
                if x != prs[1]: a("v_pk_add_f32 %s, %s, %s", pr(SV + 4 * j), pr(SV + 4 * j), pr(x))
                a("v_pk_fma_f32 %s, %s, %s, %s", pr(SV + 4 * j + 2), pr(x), pr(x), pr(SV + 4 * j + 2))
        for j in range(nk):
            a("v_add_f32 v%d, v%d, v%d", SV + 4 * j, SV + 4 * j, SV + 4 * j + 1)
            a("v_add_f32 v%d, v%d, v%d", SV + 4 * j + 1, SV + 4 * j + 2, SV + 4 * j + 3)
        a("s_nop 1")
        for j in range(0, nk, 2):
            a("v_permlane16_swap_b32 v%d, v%d", SV + 4 * j, SV + 4 * j + 4)
            a("v_permlane16_swap_b32 v%d, v%d", SV + 4 * j + 1, SV + 4 * j + 5)
        for j in range(0, nk, 2):
            a("v_pk_add_f32 %s, %s, %s", pr(SV + 4 * j), pr(SV + 4 * j), pr(SV + 4 * j + 4))
        if nk == 2:
            a("v_mov_b32 v%d, v%d", SV + 8, SV)
            a("v_mov_b32 v%d, v%d", SV + 9, SV + 1)
        a("v_and_b32 v3, %d, v2", 16 if nk == 2 else 48)
        a("v_add_u32 v3, v3, v20")
        a("v_permlane32_swap_b32 v%d, v%d", SV, SV + 8)
        a("v_permlane32_swap_b32 v%d, v%d", SV + 1, SV + 9)
        a("v_pk_add_f32 %s, %s, %s", pr(SV), pr(SV), pr(SV + 8))
        a("v_lshlrev_b32 v3, 3, v3")
        a("s_mul_i32 s%d, s%d, %d", S_TMP, S_TA, WA)
        a("s_add_u32 s%d, s%d, s%d", S_TMP, S_TMP, SWA)
        a("s_lshl_b32 s%d, s%d, 14", S_TMP, S_TMP)
        if nk == 2: a("s_mov_b32 exec_hi, 0")
        a("buffer_store_dwordx2 %s, v3, s[60:63], s%d offen sc1", pr(SV), S_TMP)
        if nk == 2: a("s_mov_b32 exec_hi, -1")
    def ln2_start():
        stats_block()
        a("v_lshrrev_b32 v4, 5, v2")
        a("v_lshl_add_u32 v21, v4, 17, v3")
    def ex_loads():
        for q in range(8):
            a("s_mov_b32 s%d, %d", S_TMP + (q & 1), q * 16384)
            a("buffer_load_dwordx2 v[%d:%d], v21, s[60:63], s%d offen sc1", EXV + 2 * q, EXV + 2 * q + 1, S_TMP + (q & 1))
    def ln2_finish():
        pr = lambda r: "v[%d:%d]" % (r, r + 1)
        a("s_mov_b32 s%d, 0x2000", S_CNT)
        a("v_mul_u32_u24 v19, %d, v20", LDH - ldc)
        a("v_add_u32 v19, v19, v9")
        for j in range(nk): a("s_mov_b32 s%d, %d", S_ST + 2 + j, j * 16 * LDH)
        stamp(a, 5)
        ex_loads()
        a("s_waitcnt vmcnt(0)")
        a.label(name + "_ex")
        a("v_max3_u32 v4, v%d, v%d, v%d", EXV, EXV + 1, EXV + 2)
        for q in range(3, 15, 2): a("v_max3_u32 v4, v4, v%d, v%d", EXV + q, EXV + q + 1)
        a("v_max_u32 v4, v4, v%d", EXV + 15)
        a("v_cmp_eq_u32 vcc, -1, v4")
        a("s_sub_u32 s%d, s%d, 1", S_CNT, S_CNT)
        a("s_cmp_eq_u32 s%d, 0", S_CNT)
        a("s_cbranch_scc1 %s_exd", name)
        a("s_cbranch_vccz %s_exd", name)
        a("s_sleep %d", OPT.get("slp", 2))
        ex_loads()
        a("s_waitcnt vmcnt(0)")
        a("s_branch %s_ex", name)
        a.label(name + "_exd")
        stamp(a, 6)
        if OPT.get("stamp"): a("s_add_u32 s%d, s%d, 0x6000", 64 + 2 * 9, S_CNT)
        E = EXV
        for st in (4, 2, 1):
            for q in range(st): a("v_pk_add_f32 %s, %s, %s", pr(E + 2 * q), pr(E + 2 * q), pr(E + 2 * (q + st)))
        a("v_mov_b32 v%d, v%d", E + 2, E)
        a("v_mov_b32 v%d, v%d", E + 3, E + 1)
        a("s_nop 1")
        a("v_permlane32_swap_b32 v%d, v%d", E, E + 2)
        a("v_permlane32_swap_b32 v%d, v%d", E + 1, E + 3)
        a("v_pk_add_f32 %s, %s, %s", pr(E), pr(E), pr(E + 2))
        m, var, mb, r1, m2, v2 = E, E + 1, E + 2, E + 3, E + 4, E + 5
        a("v_mul_f32 v%d, 0x%x, v%d", m, f32(1.0 / 1024), m)
        a("v_mul_f32 v%d, 0x%x, v%d", var, f32(1.0 / 1024), var)
        a("v_fma_f32 v%d, -v%d, v%d, v%d", var, m, m, var)
        a("v_max_f32 v%d, 0, v%d", var, var)
        a("v_mov_b32 v%d, v%d", mb, m)
        a("v_mov_b32 v%d, v%d", r1, var)
        def rstd(x):
            round_bf16_scalar(a, x)
            a("v_add_f32 v%d, 0x%x, v%d", x, f32(1e-5), x)
            round_bf16_scalar(a, x)
            a("v_sqrt_f32 v%d, v%d", x, x)
            a("s_nop 0")
            round_bf16_scalar(a, x)
            a("v_rcp_f32 v%d, v%d", x, x)
        round_bf16_scalar(a, mb)
        rstd(r1)
        a("v_sub_f32 v%d, v%d, v%d", m2, m, mb)
        a("v_mul_f32 v%d, v%d, v%d", v2, var, r1)
        a("v_mul_f32 v%d, v%d, v%d", m2, m2, r1)
        a("v_mul_f32 v%d, v%d, v%d", v2, v2, r1)
        round_bf16_scalar(a, m2)
        rstd(v2)
        a("v_fma_f32 v%d, v%d, v%d, v%d", m2, mb, r1, m2)
        a("v_mul_f32 v%d, v%d, v%d", E + 6, r1, v2)
        a("v_mul_f32 v%d, -v%d, v%d", E + 7, m2, v2)
        a("v_mov_b32 v%d, v%d", E + 8, E + 6)
        a("v_mov_b32 v%d, v%d", E + 9, E + 7)
        a("s_nop 1")
        a("v_permlane16_swap_b32 v%d, v%d", E + 6, E + 8)
        a("v_permlane16_swap_b32 v%d, v%d", E + 7, E + 9)
        k = 0
        for j in range(nk):
            ab = pr(E + 6 + 2 * j)
            for p in range(na // 2):
                c0_, c1_ = acc(2 * p, j), acc(2 * p + 1, j)
                for x in (c0_, c0_ + 2, c1_, c1_ + 2):
                    a("v_pk_fma_f32 %s, %s, %s, %s op_sel:[0,0,1] op_sel_hi:[1,0,1]", pr(x), pr(x), ab, ab)
                d = TMPV + 4 * (k & 3); k += 1
                a("v_cvt_pk_bf16_f32 v%d, v%d, v%d", d, c0_, c0_ + 1)
                a("v_cvt_pk_bf16_f32 v%d, v%d, v%d", d + 1, c0_ + 2, c0_ + 3)
                a("v_cvt_pk_bf16_f32 v%d, v%d, v%d", d + 2, c1_, c1_ + 1)
                a("v_cvt_pk_bf16_f32 v%d, v%d, v%d", d + 3, c1_ + 2, c1_ + 3)
                a("s_nop 1")
                a("v_permlane16_swap_b32 v%d, v%d", d, d + 2)
                a("v_permlane16_swap_b32 v%d, v%d", d + 1, d + 3)
                a("buffer_store_dwordx4 v[%d:%d], v19, s[56:59], s%d offen offset:%d%s", d, d + 3, S_ST + 2 + j, p * 64, STF())
    a("s_nop 7")
    if epi == "ln2": ln2_start()
    k = 0
    for j in range(nk):
        for p in range(na // 2):
            c0_, c1_ = acc(2 * p, j), acc(2 * p + 1, j)
            if epi == "gelu":
                gelu_pairs(a, [c0_, c0_ + 2, c1_, c1_ + 2], TMPV + 16, AR)
            d = TMPV + 4 * (k & 3); k += 1
            a("v_cvt_pk_bf16_f32 v%d, v%d, v%d", d, c0_, c0_ + 1)
            a("v_cvt_pk_bf16_f32 v%d, v%d, v%d", d + 1, c0_ + 2, c0_ + 3)
            a("v_cvt_pk_bf16_f32 v%d, v%d, v%d", d + 2, c1_, c1_ + 1)
            a("v_cvt_pk_bf16_f32 v%d, v%d, v%d", d + 3, c1_ + 2, c1_ + 3)
            if epi == "ln2":
                for q, x in enumerate((c0_, c0_ + 2, c1_, c1_ + 2)):
                    a("v_lshlrev_b32 v%d, 16, v%d", x, d + q)
                    a("v_and_b32 v%d, 0xffff0000, v%d", x + 1, d + q)
            else:
                a("s_nop 1")
            a("v_permlane16_swap_b32 v%d, v%d", d, d + 2)
            a("v_permlane16_swap_b32 v%d, v%d", d + 1, d + 3)
            a("buffer_store_dwordx4 v[%d:%d], v9, s[16:19], s%d offen offset:%d%s", d, d + 3, S_ST + j, p * 64, STF())
    if stats: stats_block()
    if epi == "ln2": ln2_finish()
    xs = bool(split) or epi == "ln2"
    stamp(a, 7 if xs else 5)
    stamp_flush(a, name, 8 if xs else 6, extra=xs)
    finish(a, name, cnt)
    if spare:
        a.label(name + "_spare")
        spare(a)
    GEMM_VTOP[name] = VTOP
    return stage * S

def gen_g1(a, name, W=2):
    N, S = 16, 3
    PW = Op("km", 64, 6144)
    XB = 3 * 8192
    stage = XB + 144 * 128
    E = stage
    REG = 144 * 128
    LST = S * stage
    LCS = LST + 1280
    S_SIG, S_DIST, S_H1, S_H2, S_H3 = 52, 53, 54, 55, 29
    KG = OPT.get("KG", 12)
    entry(a, name, 256)
    a("s_load_dwordx2 s[4:5], s[0:1], %d", ARG["ws"])
    a("s_load_dwordx2 s[6:7], s[0:1], %d", ARG["x"])
    a("s_xor_b32 s%d, s%d, 1", S_DIST, S_LAYER)
    a("s_load_dwordx2 s[30:31], s[0:1], %d", ARG["wqkv"])
    a("s_load_dwordx2 s[16:17], s[0:1], %d", ARG["dbg"])
    a("s_load_dwordx2 s[18:19], s[0:1], %d", ARG["wo"])
    a("v_lshrrev_b32 v1, 6, v0")
    a("v_and_b32 v2, 63, v0")
    a("s_and_b32 s%d, s2, 1", S_TMP)
    a("s_lshl_b32 s%d, s%d, 3", S_TMP, S_TMP)
    a("s_bfe_u32 s%d, s2, 0x30003", S_TMP + 1)
    a("s_add_u32 s%d, s%d, s%d", S_TB, S_TMP, S_TMP + 1)
    a("s_bfe_u32 s%d, s2, 0x20001", S_TMP)
    a("s_lshl_b32 s%d, s%d, 2", S_TMP, S_TMP)
    a("s_lshr_b32 s%d, s2, 6", S_TMP + 2)
    a("s_add_u32 s%d, s%d, s%d", S_TA, S_TMP, S_TMP + 2)
    a("s_add_u32 s%d, s%d, s%d", S_J, S_TMP + 1, S_TMP + 2)
    a("s_add_u32 s%d, s%d, s%d", S_SIG, S_TA, S_TB)
    a("s_and_b32 s%d, s%d, 15", S_SIG, S_SIG)
    a("s_and_b32 s%d, s%d, %d", S_KB, S_SIG, KG)
    a("s_mul_i32 s%d, s%d, s%d", S_KB, S_KB, S_DIST)
    a("v_readfirstlane_b32 s%d, v1", S_W)
    lane_parts(a)
    a("s_cmp_lt_u32 s%d, 4", S_W)
    a("s_cbranch_scc1 %s_compute", name)

    if OPT.get("ldprio"): a("s_setprio %d", OPT["ldprio"])
    a("s_sub_u32 s%d, s%d, 4", S_W, S_W)
    XO = Op("kc", 128, 2048)
    loader_voffs(a, XO, S_TB, 16)
    for p in range(3):
        loader_voffs(a, PW, S_TA, 10 + 2 * p, extra_cols=1024 * p)
    a("v_lshrrev_b32 v3, 3, v2")
    a("s_lshl_b32 s%d, s%d, 2", S_TMP, S_W)
    a("v_add_u32 v3, s%d, v3", S_TMP)
    a("v_lshrrev_b32 v4, 1, v3")
    a("v_xor_b32 v4, v4, v2")
    a("v_and_b32 v4, 7, v4")
    a("s_lshl_b32 s%d, s%d, 7", S_TMP, S_TB)
    a("s_sub_u32 s%d, s%d, 16", S_TMP, S_TMP)
    a("v_add_u32 v3, s%d, v3", S_TMP)
    a("v_max_i32 v3, 0, v3")
    a("v_lshlrev_b32 v3, 11, v3")
    a("v_lshl_add_u32 v20, v4, 4, v3")
    a("s_mul_i32 s%d, s%d, 2048", S_LA, S_W)
    a("s_mul_i32 s%d, s%d, 4096", S_LB, S_W)
    a("s_add_u32 s%d, s%d, %d", S_LB, S_LB, XB + 2048)
    a("s_mul_i32 s%d, s%d, 512", S_TMP + 6, S_W)
    a("s_add_u32 s%d, s%d, %d", S_TMP + 6, S_TMP + 6, XB)
    a("s_waitcnt lgkmcnt(0)")
    srd(a, 8, 30, 0, 1024 * 3072 * 2)
    srd(a, 56, 4, WS["CS"], CS_BYTES)
    ws_adjust(a)
    sel_ptr(a, 12, 1, WS["X2"])
    def issue():
        kidx_offsets(a, W, PW.kadv, 128, wrap=16)
        a("s_add_u32 s%d, s%d, s%d", S_M0A, S_SLOT, S_LA)
        a("s_add_u32 s%d, s%d, s%d", S_M0B, S_SLOT, S_LB)
        for i in range(4):
            a("s_add_u32 m0, s%d, %d", S_M0B, i * 1024)
            a("s_nop 0")
            a("buffer_load_dwordx4 v%d, s[12:15], s%d offen lds", 16 + i, S_OFB)
        for p in range(3):
            for i in range(2):
                a("s_add_u32 m0, s%d, %d", S_M0A, p * 8192 + i * 1024)
                a("s_nop 0")
                a("buffer_load_dwordx4 v%d, s[8:11], s%d offen lds", 10 + 2 * p + i, S_OFA)
        a("s_add_u32 m0, s%d, s%d", S_SLOT, S_TMP + 6)
        a("s_mov_b32 exec_hi, 0")
        a("buffer_load_dwordx4 v20, s[12:15], s%d offen lds", S_OFB)
        a("s_mov_b32 exec_hi, -1")
    srd(a, 20, 4, WS["ST"], ST_BYTES)
    srd(a, 60, 16, 0, 256)
    a("s_sub_u32 s%d, s%d, s%d", S_TMP, S_SIG, S_J)
    a("s_and_b32 s%d, s%d, %d", S_TMP, S_TMP, W - 1)
    a("s_and_b32 s%d, s%d, %d", S_TMP + 1, S_SIG, 15 & ~KG & ~(W - 1))
    a("s_or_b32 s%d, s%d, s%d", S_TMP, S_TMP, S_TMP + 1)
    a("s_add_u32 s%d, s%d, %d", S_H1, S_TMP, S - 1)
    a("s_cmp_eq_u32 s%d, 0", S_DIST)
    a("s_cselect_b32 s%d, 0x7fff, s%d", S_H1, S_H1)
    a("s_add_u32 s%d, s%d, %d", S_H2, S_H1, S)
    a("s_cmp_lg_u32 s%d, 0", S_W)
    a("s_cselect_b32 s%d, 0x7fff, s%d", S_H2, S_H2)
    a("s_cmp_lt_u32 s%d, 0x7fff", S_H2)
    a("s_cselect_b32 s%d, %d, 0x7fff", S_H3, N - 3)
    def slice_stats():
        SL = S_TMP + 4
        a("s_add_u32 s%d, s%d, %d", SL, S_SLOT, stage)
        a("s_cmp_eq_u32 s%d, %d", SL, S * stage)
        a("s_cselect_b32 s%d, 0, s%d", SL, SL)
        for i in range(3):
            a("s_mul_i32 s%d, s%d, 3", S_TMP + 2, S_W)
            a("s_add_u32 s%d, s%d, %d", S_TMP + 2, S_TMP + 2, i)
            a("s_lshr_b32 s%d, s%d, 2", S_TMP + 3, S_TMP + 2)
            a("s_lshl_b32 s%d, s%d, 13", S_TMP + 3, S_TMP + 3)
            a("s_add_u32 s%d, s%d, s%d", S_TMP + 3, S_TMP + 3, SL)
            a("s_and_b32 s%d, s%d, 3", S_TMP + 2, S_TMP + 2)
            read_addr_km(a, 64, S_TMP + 3, S_TMP + 2, 0, 21)
            for ks in range(2):
                for r in frag_reads("km", 64, [21], 0, ks, 24 + 8 * i + 4 * ks): a(r)
        a("s_lshr_b32 s%d, s%d, 7", S_TMP + 2, SL)
        a("s_lshl_b32 s%d, s%d, 5", S_TMP + 3, S_W)
        a("s_add_u32 s%d, s%d, s%d", S_TMP + 2, S_TMP + 2, S_TMP + 3)
        a("s_add_u32 s%d, s%d, 16", S_TMP + 2, S_TMP + 2)
        read_addrs_kc(a, XB, S_TMP + 2, 22)
        for i in range(2):
            for ks in range(2):
                for r in frag_reads("kc", 0, [22, 23], i, ks, 48 + 8 * i + 4 * ks): a(r)
        for r in range(4): a("v_mov_b32 v%d, 0x3f803f80", 64 + r)
        a("s_mul_i32 s%d, s%d, 12288", S_TMP + 2, S_SIG)
        a("s_lshl_b32 s%d, s%d, 8", S_TMP + 3, S_TA)
        a("s_add_u32 s%d, s%d, s%d", S_TMP + 2, S_TMP + 2, S_TMP + 3)
        a("v_lshl_add_u32 v21, v5, 4, s%d", S_TMP + 2)
        a("s_lshl_b32 s%d, s%d, 14", S_TMP + 2, S_SIG)
        a("s_lshl_b32 s%d, s%d, 10", S_TMP + 3, S_TB)
        a("s_add_u32 s%d, s%d, s%d", S_TMP + 2, S_TMP + 2, S_TMP + 3)
        a("s_lshl_b32 s%d, s%d, 8", S_TMP + 3, S_W)
        a("s_add_u32 s%d, s%d, s%d", S_TMP + 2, S_TMP + 2, S_TMP + 3)
        a("v_lshl_add_u32 v22, v8, 3, s%d", S_TMP + 2)
        a("s_waitcnt lgkmcnt(0)")
        mm = lambda d, x, y, first: a("v_mfma_f32_16x16x32_bf16 v[%d:%d], v[%d:%d], v[%d:%d], %s", d, d + 3, x, x + 3, y, y + 3,
                                      "0" if first else "v[%d:%d]" % (d, d + 3))
        for ks in range(2):
            for i in range(3): mm(68 + 4 * i, 24 + 8 * i + 4 * ks, 64, ks == 0)
            for i in range(2):
                mm(80 + 8 * i, 64, 48 + 8 * i + 4 * ks, ks == 0)
                mm(84 + 8 * i, 48 + 8 * i + 4 * ks, 48 + 8 * i + 4 * ks, ks == 0)
        a("v_cmp_eq_u32 s[%d:%d], 1, v7", S_TMP, S_TMP + 1)
        a("v_cmp_eq_u32 s[%d:%d], 2, v7", S_TMP + 2, S_TMP + 3)
        a("v_cmp_eq_u32 vcc, 3, v7")
        a("s_nop 7")
        for i in range(2):
            a("v_cndmask_b32 v%d, v%d, v%d, s[%d:%d]", 81 + 8 * i, 84 + 8 * i, 85 + 8 * i, S_TMP, S_TMP + 1)
            a("v_cndmask_b32 v%d, v%d, v%d, s[%d:%d]", 81 + 8 * i, 81 + 8 * i, 86 + 8 * i, S_TMP + 2, S_TMP + 3)
            a("v_cndmask_b32 v%d, v%d, v%d, vcc", 81 + 8 * i, 81 + 8 * i, 87 + 8 * i)
        a("s_mov_b32 exec_lo, 0x00f0000f")
        a("s_mov_b32 exec_hi, 0xf0000f00")
        for i in range(2):
            a("buffer_store_dwordx2 v[%d:%d], v22, s[20:23], 0 offen offset:%d sc1", 80 + 8 * i, 81 + 8 * i, 128 * i)
        a("s_mov_b32 exec_lo, 0x00010001")
        a("s_mov_b32 exec_hi, 0x00010001")
        for i in range(3):
            a("s_mul_i32 s%d, s%d, 3", S_TMP + 2, S_W)
            a("s_add_u32 s%d, s%d, %d", S_TMP + 2, S_TMP + 2, i)
            a("s_lshr_b32 s%d, s%d, 2", S_TMP + 3, S_TMP + 2)
            a("s_lshl_b32 s%d, s%d, 12", S_TMP + 3, S_TMP + 3)
            a("s_and_b32 s%d, s%d, 3", S_TMP + 2, S_TMP + 2)
            a("s_lshl_b32 s%d, s%d, 6", S_TMP + 2, S_TMP + 2)
            a("s_add_u32 s%d, s%d, s%d", S_TMP + 2, S_TMP + 2, S_TMP + 3)
            a("buffer_store_dwordx4 v[%d:%d], v21, s[56:59], s%d offen sc1", 68 + 4 * i, 71 + 4 * i, S_TMP + 2)
        a("s_mov_b64 exec, -1")
        a("s_or_b32 s%d, s%d, s%d", S_TMP, S_TA, S_TB)
        a("s_or_b32 s%d, s%d, s%d", S_TMP, S_TMP, S_W)
        a("s_cmp_lg_u32 s%d, 0", S_TMP)
        a("s_cbranch_scc1 %s_nocr", name)
        a("v_lshlrev_b32 v21, 8, v2")
        a("v_mov_b32 v22, 0")
        for area in (0, LOFF):
            srd(a, 84, 4, WS["CNT"] + area, CNT_BYTES)
            a("buffer_store_dword v22, v21, s[84:87], 0 offen sc1")
        a.label(name + "_nocr")
    def arrive():
        a("v_mov_b32 v21, 0")
        a("v_mov_b32 v22, 1")
        a("s_mov_b64 exec, 1")
        a("buffer_atomic_add v22, v21, s[60:63], 0 offen sc1")
        a("s_mov_b64 exec, -1")
    def poll_issue():
        a("v_mov_b32 v21, 0")
        a("buffer_load_dword v23, v21, s[60:63], 0 offen sc1")
    def poll_check():
        a("s_cmp_eq_u32 s%d, 0x7fff", S_H3)
        a("s_cbranch_scc1 %s_polled", name)
        a("s_mov_b32 s%d, 0x20000", S_TMP + 1)
        a("v_mov_b32 v21, 0")
        a("s_waitcnt vmcnt(22)")
        a.label(name + "_poll")
        a("v_readfirstlane_b32 s%d, v23", S_TMP)
        a("s_sub_u32 s%d, s%d, 1", S_TMP + 1, S_TMP + 1)
        a("s_cmp_eq_u32 s%d, 0", S_TMP + 1)
        a("s_cbranch_scc1 %s_polled", name)
        a("s_cmp_ge_u32 s%d, 256", S_TMP)
        a("s_cbranch_scc1 %s_polled", name)
        a("s_sleep 8")
        a("buffer_load_dword v23, v21, s[60:63], 0 offen sc1")
        a("s_waitcnt vmcnt(0)")
        a("s_branch %s_poll", name)
        a.label(name + "_polled")
    def st_loads():
        a("s_lshl_b32 s%d, s%d, 6", S_TMP, S_W)
        a("v_add_u32 v21, s%d, v2", S_TMP)
        a("s_lshl_b32 s%d, s%d, 7", S_TMP + 1, S_TB)
        a("s_sub_u32 s%d, s%d, 16", S_TMP + 1, S_TMP + 1)
        a("v_add_u32 v3, s%d, v21", S_TMP + 1)
        a("v_max_i32 v3, 0, v3")
        a("v_min_u32 v3, 2047, v3")
        a("v_lshlrev_b32 v3, 3, v3")
        a("s_min_u32 s%d, s%d, 2", S_TMP, S_W)
        a("s_lshl_b32 s%d, s%d, 12", S_TMP, S_TMP)
        a("s_lshl_b32 s%d, s%d, 8", S_TMP + 1, S_TA)
        a("s_add_u32 s%d, s%d, s%d", S_TMP, S_TMP, S_TMP + 1)
        a("v_lshl_add_u32 v4, v2, 2, s%d", S_TMP)
        for k in range(16):
            a("s_mov_b32 s%d, %d", S_TMP, k * 16384)
            a("buffer_load_dwordx2 v[%d:%d], v3, s[20:23], s%d offen sc1", 24 + 2 * k, 25 + 2 * k, S_TMP)
            a("s_mov_b32 s%d, %d", S_TMP + 1, k * 3072 * 4)
            a("buffer_load_dword v%d, v4, s[56:59], s%d offen sc1", 56 + k, S_TMP + 1)
    def st_use():
        for st in (8, 4, 2, 1):
            for k in range(st):
                a("v_pk_add_f32 v[%d:%d], v[%d:%d], v[%d:%d]", 24 + 2 * k, 25 + 2 * k, 24 + 2 * k, 25 + 2 * k, 24 + 2 * (k + st), 25 + 2 * (k + st))
                a("v_add_f32 v%d, v%d, v%d", 56 + k, 56 + k, 56 + k + st)
        a("v_mul_f32 v24, 0x%x, v24", f32(1.0 / 1024))
        a("v_mul_f32 v25, 0x%x, v25", f32(1.0 / 1024))
        a("v_fma_f32 v25, -v24, v24, v25")
        a("v_max_f32 v25, 0, v25")
        round_bf16_scalar(a, 24)
        round_bf16_scalar(a, 25)
        a("v_add_f32 v25, 0x%x, v25", f32(1e-5))
        round_bf16_scalar(a, 25)
        a("v_sqrt_f32 v25, v25")
        a("s_nop 0")
        round_bf16_scalar(a, 25)
        a("v_rcp_f32 v26, v25")
        a("v_lshlrev_b32 v3, 3, v21")
        a("v_lshlrev_b32 v4, 2, v21")
        a("v_mul_f32 v27, -v24, v26")
        a("v_cmp_gt_u32 vcc, 144, v21")
        a("s_and_saveexec_b64 s[%d:%d], vcc", S_TMP, S_TMP + 1)
        a("v_add_u32 v3, %d, v3", LST)
        a("ds_write_b64 v3, v[26:27]")
        a("s_mov_b64 exec, s[%d:%d]", S_TMP, S_TMP + 1)
        a("v_cmp_gt_u32 vcc, 192, v21")
        a("s_and_saveexec_b64 s[%d:%d], vcc", S_TMP, S_TMP + 1)
        a("v_add_u32 v4, %d, v4", LCS)
        a("ds_write_b32 v4, v56")
        a("s_mov_b64 exec, s[%d:%d]", S_TMP, S_TMP + 1)
        a("s_waitcnt lgkmcnt(0)")
    def tail():
        poll_check()
        a("s_waitcnt vmcnt(11)")
        a("s_barrier")
        st_loads()
        a("s_waitcnt vmcnt(32)")
        a("s_barrier")
        a("s_waitcnt vmcnt(0)")
        st_use()
        a("s_barrier")
        srd(a, 20, 4, WS["EX"], ST_BYTES)
        a("s_lshl_b32 s%d, s%d, 4", S_TMP, S_TA)
        a("s_add_u32 s%d, s%d, s%d", S_TMP, S_TMP, S_TB)
        a("s_lshl_b32 s%d, s%d, 10", S_TMP, S_TMP)
        a("s_lshl_b32 s%d, s%d, 8", S_TMP + 1, S_W)
        a("s_add_u32 s%d, s%d, s%d", S_TMP, S_TMP, S_TMP + 1)
        a("v_lshlrev_b32 v3, 2, v2")
        a("v_mov_b32 v4, -1")
        a("buffer_store_dword v4, v3, s[20:23], s%d offen sc1", S_TMP)
        a("s_cmp_eq_u32 s%d, 0", S_DIST)
        a("s_cbranch_scc1 %s_nopf", name)
        srd(a, 20, 18, 0, 1024 * 1024 * 2)
        a("s_lshl_b32 s%d, s2, 13", S_TMP)
        a("s_lshl_b32 s%d, s%d, 11", S_TMP + 1, S_W)
        a("s_add_u32 s%d, s%d, s%d", S_TMP, S_TMP, S_TMP + 1)
        a("v_lshlrev_b32 v3, 4, v2")
        a("buffer_load_dwordx4 v[120:123], v3, s[20:23], s%d offen", S_TMP)
        a("buffer_load_dwordx4 v[120:123], v3, s[20:23], s%d offen offset:1024", S_TMP)
        a.label(name + "_nopf")
    if not prev_cut(name):
        a("s_cmp_eq_u32 s%d, 0", S_LAYER)
        a("s_cbranch_scc1 %s_dep_ok", name)
        a("s_add_u32 s%d, s%d, %d", S_TMP, S_TB, C41)
        a("s_lshl_b32 s%d, s%d, 8", S_TMP, S_TMP)
        a("s_sub_u32 s%d, s%d, 256", S_TMP + 2, S_TMP)
        a("s_max_u32 s%d, s%d, %d", S_TMP + 2, S_TMP + 2, C41 * 256)
        wait_counters(a, name + "_dep", 16, 16)
    loader_loop(a, name, issue, 11, N, S, stage, tail=tail,
                events=[(S_H1, 5, slice_stats), (S_H2, 1, arrive), (S_H3, 1, poll_issue)])
    a("s_add_u32 s%d, s%d, 4", S_W, S_W)
    a("s_branch %s_attn", name)

    a.label(name + "_compute")
    na, nb = 6, 5
    ACC = 24
    acc = lambda i, j: ACC + 4 * (i * 4 + j) if j < 4 else ACC + 96 + 4 * (i - 4)
    nacc = 104
    FR = ACC + nacc
    fset = (na + nb) * 4
    fA = lambda st, i: FR + st * fset + 4 * i
    fB = lambda st, j: FR + st * fset + 4 * na + 4 * j
    VTOP = FR + 2 * fset
    SHD, SSH = S_TMP + 4, S_TMP + 5
    a("s_and_b32 s%d, s%d, 1", SHD, S_W)
    a("s_lshr_b32 s%d, s%d, 1", SSH, S_W)
    AR = 10
    def part_of(c, unit):
        if c == 0:
            a("s_mov_b32 s%d, 0", S_TMP + 3)
        else:
            a("s_xor_b32 s%d, s%d, %d", S_TMP + 3, SSH, 1 if c == 1 else 0)
            a("s_add_u32 s%d, s%d, 1", S_TMP + 3, S_TMP + 3)
            a("s_mul_i32 s%d, s%d, %d", S_TMP + 3, S_TMP + 3, unit)
    a("s_lshl_b32 s%d, s%d, 1", S_TMP + 2, SHD)
    for c in range(3):
        part_of(c, 8192)
        for i in range(2):
            read_addr_km(a, 64, S_TMP + 3, S_TMP + 2, i, AR + 2 * c + i)
    adA = [AR + i for i in range(6)]
    a("s_mul_i32 s%d, s%d, 64", S_TMP + 2, SSH)
    a("s_add_u32 s%d, s%d, 16", S_TMP + 2, S_TMP + 2)
    read_addrs_kc(a, XB, S_TMP + 2, AR + 6)
    read_addrs_kc(a, XB, None, AR + 8)
    adB, adH = [AR + 6, AR + 7], [AR + 8, AR + 9]
    for r in range(nacc): a("v_mov_b32 v%d, 0", ACC + r)
    for r in range(fset): a("v_mov_b32 v%d, 0", FR + fset + r)
    compute_loop_ctl_init(a, N, S, stage)
    if OPT.get("cprio"): a("s_setprio %d", OPT["cprio"])
    a("s_waitcnt lgkmcnt(0)")
    stamp(a, 1)
    ws_adjust(a)
    def mf(st):
        L = [(i, j) for i in range(6) for j in range(4)] + [(4, 4), (5, 4)]
        return ["v_mfma_f32_16x16x32_bf16 v[%d:%d], v[%d:%d], v[%d:%d], v[%d:%d]" %
                (acc(i, j), acc(i, j) + 3, fA(st, i), fA(st, i) + 3, fB(st, j), fB(st, j) + 3, acc(i, j), acc(i, j) + 3)
                for (i, j) in L]
    def rd(st, ks):
        L = []
        L += frag_reads("km", 64, adA, 0, ks, fA(st, 0))
        for j in range(4): L += frag_reads("kc", 0, adB, j, ks, fB(st, j))
        for i in range(1, 6): L += frag_reads("km", 64, adA, i, ks, fA(st, i))
        L += frag_reads("kc", 0, adH, 0, ks, fB(st, 4))
        return L
    cloop(a, name, mf, rd, adA + adB + adH, S, stage)
    a("s_barrier")
    SB = FR
    a("v_lshlrev_b32 v3, 3, v8")
    a("v_add_u32 v4, %d, v3", LST)
    a("s_mul_i32 s%d, s%d, 512", S_TMP, SSH)
    a("s_add_u32 s%d, s%d, %d", S_TMP, S_TMP, LST + 128)
    a("v_add_u32 v3, s%d, v3", S_TMP)
    for j in range(4): a("ds_read_b64 v[%d:%d], v3 offset:%d", SB + 2 * j, SB + 2 * j + 1, j * 128)
    a("ds_read_b64 v[%d:%d], v4", SB + 8, SB + 9)
    a("s_lshl_b32 s%d, s%d, 7", S_TMP, SHD)
    a("s_add_u32 s%d, s%d, %d", S_TMP, S_TMP, LCS)
    a("v_lshl_add_u32 v3, v5, 4, s%d", S_TMP)
    for c in range(3):
        part_of(c, 256)
        a("v_add_u32 v4, s%d, v3", S_TMP + 3)
        for i in range(2):
            a("ds_read_b128 v[%d:%d], v4 offset:%d", SB + 12 + 4 * (2 * c + i), SB + 15 + 4 * (2 * c + i), i * 64)
    a("v_and_b32 v3, 1, v5")
    a("v_lshlrev_b32 v3, 1, v3")
    a("v_lshrrev_b32 v4, 1, v5")
    a("v_add_u32 v3, v3, v4")
    a("s_lshl_b32 s%d, s%d, 2", S_TMP, SHD)
    a("v_add_u32 v3, s%d, v3", S_TMP)
    a("v_lshrrev_b32 v4, 1, v8")
    a("v_xor_b32 v3, v3, v4")
    a("v_lshlrev_b32 v3, 4, v3")
    a("v_lshl_add_u32 v3, v8, 7, v3")
    a("s_mul_i32 s%d, s%d, %d", S_TMP + 2, SSH, 64 * 128)
    a("s_add_u32 s%d, s%d, %d", S_TMP + 2, S_TMP + 2, E + 16 * 128)
    for c in range(3):
        part_of(c, REG)
        a("s_add_u32 s%d, s%d, s%d", S_TMP, S_TMP + 2, S_TMP + 3)
        a("v_add_u32 v%d, s%d, v3", AR + c, S_TMP)
    a("s_add_u32 s%d, s%d, %d", S_TMP, S_TMP + 3, E)
    a("v_add_u32 v%d, s%d, v3", AR + 3, S_TMP)
    a("s_waitcnt lgkmcnt(0)")
    k = 0
    TV = SB + 36
    pr = lambda r: "v[%d:%d]" % (r, r + 1)
    for c in range(3):
        for j in range(5 if c == 2 else 4):
            c0_, c1_ = acc(2 * c, j), acc(2 * c + 1, j)
            d = TV + 8 + 4 * (k & 3); k += 1
            prs = [(c0_, SB + 12 + 8 * c), (c0_ + 2, SB + 14 + 8 * c), (c1_, SB + 16 + 8 * c), (c1_ + 2, SB + 18 + 8 * c)]
            for q, (x, cs) in enumerate(prs):
                a("v_pk_mul_f32 %s, %s, %s op_sel:[0,1] op_sel_hi:[1,1]", pr(TV + 2 * q), pr(cs), pr(SB + 2 * j))
            for q, (x, cs) in enumerate(prs):
                a("v_pk_fma_f32 %s, %s, %s, %s op_sel:[0,0,0] op_sel_hi:[1,0,1]", pr(x), pr(x), pr(SB + 2 * j), pr(TV + 2 * q))
            a("v_cvt_pk_bf16_f32 v%d, v%d, v%d", d, c0_, c0_ + 1)
            a("v_cvt_pk_bf16_f32 v%d, v%d, v%d", d + 1, c0_ + 2, c0_ + 3)
            a("v_cvt_pk_bf16_f32 v%d, v%d, v%d", d + 2, c1_, c1_ + 1)
            a("v_cvt_pk_bf16_f32 v%d, v%d, v%d", d + 3, c1_ + 2, c1_ + 3)
            a("s_nop 1")
            a("v_permlane16_swap_b32 v%d, v%d", d, d + 2)
            a("v_permlane16_swap_b32 v%d, v%d", d + 1, d + 3)
            if j < 4:
                a("ds_write_b128 v%d, v[%d:%d] offset:%d", AR + c, d, d + 3, j * 2048)
            else:
                a("ds_write_b128 v%d, v[%d:%d]", AR + 3, d, d + 3)
    a("s_waitcnt lgkmcnt(0)")

    a.label(name + "_attn")
    srd(a, 16, 4, WS["O"], ACT_BYTES)
    a("s_and_b32 s%d, s%d, 1", SHD, S_W)
    SU = S_TMP + 5
    a("s_lshr_b32 s%d, s%d, 1", SU, S_W)
    a("s_lshl_b32 s%d, s%d, 2", S_TMP, SHD)
    a("v_add_u32 v3, s%d, v5", S_TMP)
    a("v_and_b32 v4, 7, v8")
    a("v_xor_b32 v3, v3, v4")
    a("v_lshlrev_b32 v3, 4, v3")
    a("v_lshl_add_u32 v3, v8, 8, v3")
    a("s_mul_i32 s%d, s%d, %d", S_TMP + 1, SU, 32 * 128)
    a("s_add_u32 s%d, s%d, %d", S_TMP + 1, S_TMP + 1, E)
    a("v_add_u32 v10, s%d, v3", S_TMP + 1)
    a("v_lshl_add_u32 v3, v5, 2, v6")
    a("v_and_b32 v4, 7, v3")
    a("v_add_u32 v12, s%d, v7", S_TMP)
    a("v_xor_b32 v4, v4, v12")
    a("v_lshlrev_b32 v4, 4, v4")
    a("v_lshl_add_u32 v3, v3, 8, v4")
    a("s_add_u32 s%d, s%d, %d", S_TMP + 1, S_TMP + 1, 2 * REG)
    a("v_add_u32 v11, s%d, v3", S_TMP + 1)
    a("v_and_b32 v3, 7, v8")
    a("v_add_u32 v4, 1, v3")
    a("s_or_b32 s%d, s%d, s%d", S_TMP, S_TB, SU)
    a("s_cmp_eq_u32 s%d, 0", S_TMP)
    a("s_cselect_b32 s%d, 8, 0", S_TMP)
    a("v_cmp_gt_u32 vcc, 8, v8")
    a("v_mov_b32 v16, s%d", S_TMP)
    a("s_mov_b64 s[56:57], vcc")
    a("v_cndmask_b32 v16, 0, v16, vcc")
    a("v_max_u32 v4, v4, v16")
    a("v_add_u32 v3, 8, v3")
    a("v_sub_u32 v3, v3, v4")
    a("v_lshlrev_b32 v16, 2, v5")
    a("v_sub_u32 v16, v16, v4")
    a("v_mov_b32 v17, 0xf149f2ca")
    for r in range(4):
        a("v_add_u32 v18, %d, v16", r)
        a("v_cmp_ge_u32 vcc, v3, v18")
        a("s_nop 1")
        a("v_cndmask_b32 v%d, v17, 0, vcc", 12 + r)
    a("s_lshl_b32 s%d, s%d, 7", S_TMP, S_TB)
    a("s_lshl_b32 s%d, s%d, 5", S_TMP + 1, SU)
    a("s_add_u32 s%d, s%d, s%d", S_TMP, S_TMP, S_TMP + 1)
    a("s_lshl_b32 s%d, s%d, 11", S_TMP, S_TMP)
    a("s_lshl_b32 s%d, s%d, 7", S_TMP + 1, S_TA)
    a("s_add_u32 s%d, s%d, s%d", S_TMP, S_TMP, S_TMP + 1)
    a("s_lshl_b32 s%d, s%d, 6", S_TMP + 1, SHD)
    a("s_add_u32 s%d, s%d, s%d", S_TMP, S_TMP, S_TMP + 1)
    a("v_lshlrev_b32 v9, 12, v8")
    a("v_lshl_add_u32 v9, v5, 4, v9")
    a("v_add_u32 v9, s%d, v9", S_TMP)
    a("s_mov_b32 s58, 0x%x", f32(32 ** -0.5))
    a("s_mov_b32 s59, 0x%x", f32(math.log2(math.e)))
    a("s_barrier")
    stamp(a, 5)
    if OPT.get("stamp"): a("s_waitcnt lgkmcnt(0)")
    def blk(p): return 24 + 48 * p
    for p in range(2):
        b = blk(p)
        a("ds_read_b128 v[%d:%d], v10 offset:%d", b, b + 3, 2048 + 128 * p)
        a("ds_read_b128 v[%d:%d], v10 offset:%d", b + 4, b + 7, REG + 128 * p)
        a("ds_read_b128 v[%d:%d], v10 offset:%d", b + 8, b + 11, REG + 2048 + 128 * p)
    for p in range(2):
        b = blk(p)
        for dt in range(2):
            for bb in range(2):
                d = b + 12 + 4 * dt + 2 * bb
                a("ds_read_b64_tr_b16 v[%d:%d], v11 offset:%d", d, d + 1, 128 * p + 2048 * bb + 8 * dt)
    a("s_waitcnt lgkmcnt(8)")
    for p in range(2):
        b = blk(p)
        a("v_mfma_f32_16x16x32_bf16 v[%d:%d], v[%d:%d], v[%d:%d], 0", b + 20, b + 23, b + 4, b + 7, b, b + 3)
        a("v_mfma_f32_16x16x32_bf16 v[%d:%d], v[%d:%d], v[%d:%d], 0", b + 24, b + 27, b + 8, b + 11, b, b + 3)
    a("s_nop 7")
    both = lambda f: [f(blk(p)) for p in range(2)]
    for p in range(2):
        b = blk(p)
        for r in range(4):
            a("v_cndmask_b32 v%d, v%d, v%d, s[56:57]", b + 20 + r, b + 24 + r, b + 20 + r)
    for p in range(2):
        b = blk(p)
        a("v_cvt_pk_bf16_f32 v%d, v%d, v%d", b + 24, b + 20, b + 21)
        a("v_cvt_pk_bf16_f32 v%d, v%d, v%d", b + 25, b + 22, b + 23)
    for p in range(2):
        b = blk(p)
        for q in range(2):
            a("v_lshlrev_b32 v%d, 16, v%d", b + 20 + 2 * q, b + 24 + q)
            a("v_and_b32 v%d, 0xffff0000, v%d", b + 21 + 2 * q, b + 24 + q)
    for p in range(2):
        b = blk(p)
        for r in range(4): a("v_mul_f32 v%d, s58, v%d", b + 20 + r, b + 20 + r)
    for p in range(2):
        b = blk(p)
        a("v_cvt_pk_bf16_f32 v%d, v%d, v%d", b + 24, b + 20, b + 21)
        a("v_cvt_pk_bf16_f32 v%d, v%d, v%d", b + 25, b + 22, b + 23)
    for p in range(2):
        b = blk(p)
        for q in range(2):
            a("v_lshlrev_b32 v%d, 16, v%d", b + 20 + 2 * q, b + 24 + q)
            a("v_and_b32 v%d, 0xffff0000, v%d", b + 21 + 2 * q, b + 24 + q)
    for p in range(2):
        b = blk(p)
        for r in range(4): a("v_fma_f32 v%d, v%d, s59, v%d", b + 20 + r, b + 20 + r, 12 + r)
    for p in range(2):
        b = blk(p)
        a("v_max3_f32 v%d, v%d, v%d, v%d", b + 24, b + 20, b + 21, b + 22)
    for p in range(2):
        b = blk(p)
        a("v_max_f32 v%d, v%d, v%d", b + 24, b + 24, b + 23)
    def xreduce(op, off):
        for sw in ("v_permlane16_swap_b32", "v_permlane32_swap_b32"):
            for p in range(2):
                b = blk(p)
                a("v_mov_b32 v%d, v%d", b + off + 1, b + off)
            a("s_nop 1")
            for p in range(2):
                b = blk(p)
                a("%s v%d, v%d", sw, b + off, b + off + 1)
            a("s_nop 0")
            for p in range(2):
                b = blk(p)
                a("%s v%d, v%d, v%d", op, b + off, b + off, b + off + 1)
    xreduce("v_max_f32", 24)
    for p in range(2):
        b = blk(p)
        for r in range(4): a("v_sub_f32 v%d, v%d, v%d", b + 20 + r, b + 20 + r, b + 24)
    for p in range(2):
        b = blk(p)
        for r in range(4): a("v_exp_f32 v%d, v%d", b + 20 + r, b + 20 + r)
    for p in range(2):
        b = blk(p)
        a("v_add_f32 v%d, v%d, v%d", b + 24, b + 20, b + 21)
        a("v_add_f32 v%d, v%d, v%d", b + 25, b + 22, b + 23)
    for p in range(2):
        b = blk(p)
        a("v_add_f32 v%d, v%d, v%d", b + 24, b + 24, b + 25)
    xreduce("v_add_f32", 24)
    for p in range(2):
        b = blk(p)
        a("v_rcp_f32 v%d, v%d", b + 24, b + 24)
    a("s_nop 0")
    for p in range(2):
        b = blk(p)
        for r in range(4): a("v_mul_f32 v%d, v%d, v%d", b + 20 + r, b + 20 + r, b + 24)
    for p in range(2):
        b = blk(p)
        a("v_cvt_pk_bf16_f32 v%d, v%d, v%d", b + 24, b + 20, b + 21)
        a("v_cvt_pk_bf16_f32 v%d, v%d, v%d", b + 25, b + 22, b + 23)
    for p in range(2):
        b = blk(p)
        a("v_cndmask_b32 v%d, 0, v%d, s[56:57]", b + 28, b + 24)
        a("v_cndmask_b32 v%d, 0, v%d, s[56:57]", b + 29, b + 25)
        a("v_cndmask_b32 v%d, v%d, 0, s[56:57]", b + 30, b + 24)
        a("v_cndmask_b32 v%d, v%d, 0, s[56:57]", b + 31, b + 25)
    a("s_waitcnt lgkmcnt(0)")
    a("s_nop 0")
    for p in range(2):
        b = blk(p)
        for dt in range(2):
            a("v_mfma_f32_16x16x32_bf16 v[%d:%d], v[%d:%d], v[%d:%d], 0", b + 32 + 4 * dt, b + 35 + 4 * dt,
              b + 12 + 4 * dt, b + 15 + 4 * dt, b + 28, b + 31)
    a("s_nop 7")
    for p in range(2):
        b = blk(p)
        for q in range(4):
            a("v_cvt_pk_bf16_f32 v%d, v%d, v%d", b + 40 + q, b + 32 + 2 * q, b + 33 + 2 * q)
        a("buffer_store_dwordx4 v[%d:%d], v9, s[16:19], 0 offen offset:%d%s", b + 40, b + 43, 2048 * p, STF())
    stamp(a, 6)
    stamp_flush(a, name, 7)
    if not next_cut(name):
        finish(a, name, lambda a: (a("s_add_u32 s%d, s%d, %d", S_TMP, S_TB, C12), a("s_lshl_b32 s%d, s%d, 8", S_TMP, S_TMP)))
    a.label(name + "_done")
    a("s_endpgm")
    GEMM_VTOP[name] = VTOP
    return LCS + 768

def build():
    body = Asm()
    for c in str(OPT.get("cuts", "")).split("_"):
        if c: CUTS.add(c)
    def wm(a, ka, da, kb, db):
        a("s_cmp_eq_u32 s%d, 0", S_LAYER)
        a("s_cselect_b32 s%d, %d, %d", S_WM, OPT.get(ka, da) - 1, OPT.get(kb, db) - 1)
    def slot(a, sreg, base, shift=0):
        a("s_lshr_b32 s%d, s%d, %d", S_TMP, sreg, shift)
        a("s_add_u32 s%d, s%d, %d", S_TMP, S_TMP, base)
        a("s_lshl_b32 s%d, s%d, 8", S_TMP, S_TMP)
        a("s_mov_b32 s%d, s%d", S_TMP + 2, S_TMP)
    lds = {}
    lds["g1"] = gen_g1(body, "g1", W=OPT.get("W1", 2))

    def g2_ptrs(a, ph):
        if ph == 0:
            a("s_load_dwordx2 s[4:5], s[0:1], %d", ARG["ws"])
            a("s_load_dwordx2 s[6:7], s[0:1], %d", ARG["x"])
            a("s_load_dwordx2 s[30:31], s[0:1], %d", ARG["wo"])
        elif ph == "L":
            srd(a, 8, 30, 0, 1024 * 1024 * 2)
            srd(a, 12, 4, WS["O"], ACT_BYTES)
        else:
            sel_ptr(a, 20, 1, WS["X2"])
            srd(a, 16, 4, WS["X1"], ACT_BYTES)
            srd(a, 56, 4, WS["H"], 2048 * LDH)
            srd(a, 60, 4, WS["EX"], ST_BYTES)
    def g2_decode(a):
        a("s_and_b32 s%d, s2, 3", S_TMP)
        a("s_lshl_b32 s%d, s%d, 2", S_TMP, S_TMP)
        a("s_bfe_u32 s%d, s2, 0x20003", S_TMP + 1)
        a("s_add_u32 s%d, s%d, s%d", S_TB, S_TMP, S_TMP + 1)
        a("s_bfe_u32 s%d, s2, 0x10002", S_TMP)
        a("s_lshl_b32 s%d, s%d, 3", S_TMP, S_TMP)
        a("s_lshr_b32 s%d, s2, 5", S_TMP + 2)
        a("s_add_u32 s%d, s%d, s%d", S_TA, S_TMP, S_TMP + 2)
        a("s_add_u32 s%d, s%d, s%d", S_J, S_TMP + 1, S_TMP + 2)
        a("s_mov_b32 s%d, 0", S_KB)
    lds["g2"] = gen_gemm(body, "g2", 256, Op("km", 64, 2048), Op("kc", 128, 2048), 1, 4, 16, 4, OPT.get("W2", 2), g2_ptrs, g2_decode,
                         "resid", "ln2", 2048, cnt=lambda a: slot(a, S_TA, C23, 1),
                         dep=lambda a: (slot(a, S_TB, C12), wait_counters(a, "g2_dep", 16, 16)))

    def g3_ptrs(a, ph):
        if ph == 0:
            a("s_load_dwordx2 s[4:5], s[0:1], %d", ARG["ws"])
            a("s_load_dwordx2 s[30:31], s[0:1], %d", ARG["w1"])
            a("s_load_dwordx2 s[6:7], s[0:1], %d", ARG["b1"])
        elif ph == "L":
            srd(a, 8, 30, 0, 2048 * 3584 * 2)
            srd(a, 12, 4, WS["H"], 2048 * LDH)
        else:
            srd(a, 20, 6, 0, 3584 * 2)
            srd(a, 16, 4, WS["U"], 1024 * LDU)
    def g3_decode(a):
        a("s_and_b32 s%d, s2, 1", S_TMP)
        a("s_lshl_b32 s%d, s%d, 2", S_TMP, S_TMP)
        a("s_bfe_u32 s%d, s2, 0x20003", S_TMP + 1)
        a("s_add_u32 s%d, s%d, s%d", S_TB, S_TMP, S_TMP + 1)
        a("s_bfe_u32 s%d, s2, 0x20001", S_TMP)
        a("s_mul_i32 s%d, s%d, 7", S_TMP, S_TMP)
        a("s_lshr_b32 s%d, s2, 5", S_TMP + 2)
        a("s_add_u32 s%d, s%d, s%d", S_TA, S_TMP, S_TMP + 2)
        a("s_add_u32 s%d, s%d, s%d", S_J, S_TMP + 1, S_TMP + 2)
        a("s_mov_b32 s%d, 0", S_KB)
        wm(a, "W3a", 4, "W3b", 2)
    def g3_cnt(a):
        a("s_cmp_ge_u32 s%d, 14", S_TA)
        a("s_cselect_b32 s%d, %d, %d", S_TMP, C34 + 1, C34)
        a("s_lshl_b32 s%d, s%d, 1", S_TMP + 1, S_TB)
        a("s_add_u32 s%d, s%d, s%d", S_TMP, S_TMP, S_TMP + 1)
        a("s_lshl_b32 s%d, s%d, 8", S_TMP, S_TMP)
    def g3_spare(a):
        a("s_cmp_ge_u32 s2, 256")
        a("s_cbranch_scc1 g3_done")
        a("s_load_dwordx2 s[4:5], s[0:1], %d", ARG["ws"])
        a("s_load_dwordx2 s[6:7], s[0:1], %d", ARG["w2"])
        a("s_sub_u32 s3, s2, 224")
        a("v_lshrrev_b32 v2, 6, v0")
        a("v_lshlrev_b32 v1, 4, v0")
        for r in range(4): a("v_mov_b32 v%d, -1", 8 + r)
        a("v_readfirstlane_b32 s%d, v2", S_W)
        a("s_lshl_b32 s13, s3, 17")
        a("s_waitcnt lgkmcnt(0)")
        ws_adjust(a)
        srd(a, 8, 4, WS["PART"], PART_BYTES)
        for k in range(16):
            a("buffer_store_dwordx4 v[8:11], v1, s[8:11], s13 offen sc1")
            a("s_add_u32 s13, s13, 8192")
        if not next_cut("g3"):
            a("s_mov_b32 s%d, %d", S_TMP, CR * 256)
            count_in(a, "g3_spare_cin")
        a("s_cmp_lg_u32 s%d, 0", S_LAYER)
        a("s_cbranch_scc1 g3_spare_end")
        if OPT.get("pf", 1):
            srd(a, 8, 6, 0, 3584 * 2048 * 2)
            a("s_cmp_ge_u32 s3, 16")
            a("s_cselect_b32 s12, %d, 0", (1792 - 1024) * 4096)
            a("s_lshl_b32 s3, s3, 18")
            a("s_add_u32 s3, s3, s12")
            a("s_mov_b32 s12, 4")
            a.label("g3_spare_loop")
            for k in range(8):
                a("buffer_load_dwordx4 v[4:7], v1, s[8:11], s3 offen")
                a("s_add_u32 s3, s3, 8192")
            a("s_waitcnt vmcnt(8)")
            a("s_sub_u32 s12, s12, 1")
            a("s_cmp_lg_u32 s12, 0")
            a("s_cbranch_scc1 g3_spare_loop")
            a("s_waitcnt vmcnt(0)")
        a.label("g3_spare_end")
        if next_cut("g3"): a("s_endpgm")
        else: go_next(a, "g3")
    lds["g3"] = gen_gemm(body, "g3", 224, Op("km", 128, 7168), Op("km", 128, LDH), 2, 2, 32, 4, "s", g3_ptrs, g3_decode,
                         "biasA", "gelu", LDU, spare=g3_spare, cnt=g3_cnt,
                         dep=lambda a: (slot(a, S_TB, C23), wait_counters(a, "g3_dep", 32, 32)))

    def g4_ptrs(a, ph):
        if ph == 0:
            a("s_load_dwordx2 s[4:5], s[0:1], %d", ARG["ws"])
            a("s_load_dwordx2 s[6:7], s[0:1], %d", ARG["out"])
            a("s_load_dwordx2 s[30:31], s[0:1], %d", ARG["w2"])
            a("s_load_dwordx2 s[34:35], s[0:1], %d", ARG["b2"])
        elif ph == "L":
            srd(a, 8, 4, WS["U"], 1024 * LDU)
            srd(a, 12, 30, 0, 3584 * 2048 * 2)
        else:
            srd(a, 20, 4, WS["X1"], ACT_BYTES)
            srd(a, 56, 34, 0, 4096)
            sel_ptr(a, 16, 0, LOFF + WS["X2"])
            srd(a, 60, 4, LOFF + WS["ST"], ST_BYTES)
            srd(a, 84, 4, WS["PART"], PART_BYTES)
    def g4_decode(a):
        a("s_bfe_u32 s%d, s2, 0x10001", S_TMP)
        a("s_lshl_b32 s%d, s%d, 2", S_TMP, S_TMP)
        a("s_bfe_u32 s%d, s2, 0x20003", S_TMP + 1)
        a("s_add_u32 s%d, s%d, s%d", S_TA, S_TMP, S_TMP + 1)
        a("s_bfe_u32 s%d, s2, 0x10002", S_TMP)
        a("s_lshl_b32 s%d, s%d, 3", S_TMP, S_TMP)
        a("s_lshr_b32 s%d, s2, 5", S_TMP + 2)
        a("s_add_u32 s%d, s%d, s%d", S_TB, S_TMP, S_TMP + 2)
        a("s_and_b32 s%d, s2, 1", S_ROLE)
        a("s_add_u32 s%d, s%d, s%d", S_J, S_TMP + 1, S_TMP + 2)
        a("s_lshl_b32 s%d, s%d, 4", S_PAIR, S_TA)
        a("s_add_u32 s%d, s%d, s%d", S_PAIR, S_PAIR, S_TB)
        a("s_mul_i32 s%d, s%d, 28", S_KB, S_ROLE)
        wm(a, "W4a", 4, "W4b", 2)
    def g4_dep(a):
        a("s_lshl_b32 s%d, s%d, 1", S_TMP, S_TA)
        a("s_add_u32 s%d, s%d, s%d", S_TMP, S_TMP, S_ROLE)
        a("s_add_u32 s%d, s%d, %d", S_TMP, S_TMP, C34)
        a("s_lshl_b32 s%d, s%d, 8", S_TMP, S_TMP)
        a("s_mov_b32 s%d, %d", S_TMP + 2, CR * 256)
        wait_counters(a, "g4_dep", 14, 32)
    lds["g4"] = gen_gemm(body, "g4", 256, Op("kc", 128, LDU), Op("km", 128, 4096), 2, 2, 28, 4, "s", g4_ptrs, g4_decode,
                         "resid+biasB", "plain", 2048, stats=True, split=True, cnt=lambda a: slot(a, S_TB, C41), dep=g4_dep)

    seq = [(p, ab) for ab in "ab" for p in PHASES]
    launches = []
    for k, (p, ab) in enumerate(seq):
        if k == 0 or prev_cut(p): launches.append([p + ab + "_kernel", 0, 0])
        launches[-1][1] = max(launches[-1][1], GEMM_VTOP[p])
        launches[-1][2] = max(launches[-1][2], lds[p])
    for kn, vt, l in launches: kernel_desc(body, kn, vt, NSGPR)
    head = open("/code/%s.s.ref" % NAME).read().split("; Override launch geometry")[0]
    lines = ["; @launch kernel=%s grid=(256,1,1) block=(512,1,1) lds=%d" % (kn, l) for kn, vt, l in launches]
    return head + "\n".join(lines) + "\n" + '.amdgcn_target "amdgcn-amd-amdhsa--gfx950"\n' + body.text()

if __name__ == "__main__":
    out = sys.argv[1] if len(sys.argv) > 1 else "/code/%s.s" % NAME
    for o in sys.argv[2:]:
        k, _, v = o.partition("=")
        OPT[k] = (int(v) if v.isdigit() and k != "cuts" else v) if v else 1
    text = build()
    open(out, "w").write(text)
    import json
    json.dump(KID, open(out + ".kid", "w"))
    hazard.check(text)
```

```python
import sys, struct, math
from asmlib import *
import hazard

NAME = "interleave_layers__sliding_local_dilated__mixer_token_mlp__prompt"
MB = 1 << 20
WS = dict(ST=0, CS=1 * MB, EX=2 * MB, CNT=3 * MB, O=4 * MB, X1=8 * MB, H=12 * MB, U=17 * MB, X2=25 * MB, PART=29 * MB)
LDH = 2304
LDU = 8192
ST_BYTES = 16 * 2048 * 8
CS_BYTES = 16 * 3072 * 4
PART_BYTES = 256 * 16384
ARG = dict(x=0, wqkv=8, wo=16, bx=24, w1=32, b1=40, w2=48, b2=56, out=64, dbg=72, ws=80)
ACT_BYTES = 2048 * 1024 * 2

OPT = {}
for _o in sys.argv[2:]:
    _k, _, _v = _o.partition('=')
    if _k == 'LDH': LDH = int(_v)
    if _k == 'LDU': LDU = int(_v)

def STF():
    return {0: "", 1: " sc1", 2: " nt", 3: " sc0 sc1", 4: " sc0 sc1 nt"}[OPT.get("stf", 1)]

def f32(x):
    return struct.unpack("<I", struct.pack("<f", x))[0]

LOFF = 40 * MB
STAMP_OFF = 34 * MB
KID = {}
def stamp(a, k):
    if OPT.get("stamp"):
        a("%s s[%d:%d]", "s_memtime" if OPT["stamp"] == 2 else "s_memrealtime", 64 + 2 * k, 65 + 2 * k)

def stamp_flush(a, name, n, wsreg=4, waitvm=True, extra=False):
    if not OPT.get("stamp"): return
    kid = KID.setdefault(name, len(KID))
    if waitvm: a("s_waitcnt vmcnt(0)")
    a("%s s[%d:%d]", "s_memtime" if OPT["stamp"] == 2 else "s_memrealtime", 64 + 2 * n, 65 + 2 * n)
    a("s_waitcnt lgkmcnt(0)")
    a("s_add_u32 s84, s%d, 0x%x", wsreg, STAMP_OFF + kid * 512 * 1024)
    a("s_addc_u32 s85, s%d, 0", wsreg + 1)
    a("s_mov_b32 s86, 0x80000")
    a("s_mov_b32 s87, 0x20000")
    a("v_lshrrev_b32 v1, 6, v0")
    a("v_lshlrev_b32 v1, 6, v1")
    a("s_lshl_b32 s88, s2, 9")
    a("v_add_u32 v1, s88, v1")
    for k in range(n + 1 + extra):
        a("v_mov_b32 v2, s%d", 64 + 2 * k)
        a("buffer_store_dword v2, v1, s[84:87], 0 offen offset:%d", 4 * k)
        a("s_nop 1")

def srd(a, d, p, off, nbytes):
    if off:
        a("s_add_u32 s%d, s%d, 0x%x", d, p, off)
        a("s_addc_u32 s%d, s%d, 0", d + 1, p + 1)
    else:
        a("s_mov_b32 s%d, s%d", d, p)
        a("s_mov_b32 s%d, s%d", d + 1, p + 1)
    a("s_mov_b32 s%d, 0x%x", d + 2, nbytes)
    a("s_mov_b32 s%d, 0x20000", d + 3)

def round_bf16_scalar(a, v):
    a("v_cvt_pk_bf16_f32 v%d, v%d, v%d", v, v, v)
    a("v_lshlrev_b32 v%d, 16, v%d", v, v)

class Op:
    def __init__(self, kind, T, ld):
        self.kind, self.T, self.ld = kind, T, ld
        self.bytes = T * 128
        self.n = self.bytes // 1024
        self.npw = self.n // 4
        self.kadv = 128 if kind == "kc" else 64 * ld

S_TA, S_TB, S_KB, S_J, S_W = 24, 25, 26, 27, 28
S_T, S_SLOT, S_OFA, S_OFB = 32, 33, 34, 35
S_LA, S_LB, S_M0A, S_M0B = 36, 37, 38, 39
S_TMP = 40
S_CNT, S_DELTA, S_SI = 48, 49, 50
S_ST = 52
S_DP, S_DN = 51, 29
S_N, S_ROLE, S_PAIR, S_OWN, S_OTH, S_WM = 90, 91, 92, 93, 94, 95
S_LAYER, S_LOFF = 96, 97
NSGPR = 100
C12, C23, C34, C41, CR = 0, 16, 24, 40, 56
CUTS = set()

def loader_voffs(a, op, stile, vb, extra_cols=0):
    ld = op.ld
    a("s_mov_b32 s%d, %d", S_TMP, ld)
    if op.kind == "kc":
        a("v_lshrrev_b32 v3, 3, v2")
        a("v_mul_lo_u32 v3, v3, s%d", S_TMP)
        a("v_lshrrev_b32 v4, 4, v2")
        a("v_xor_b32 v4, v4, v2")
        a("v_and_b32 v4, 7, v4")
        a("v_lshl_add_u32 v3, v4, 4, v3")
        a("s_mul_i32 s%d, s%d, %d", S_TMP + 1, stile, op.T * ld)
        a("s_mul_i32 s%d, s%d, %d", S_TMP + 2, S_W, 8 * op.npw * ld)
        a("s_add_u32 s%d, s%d, s%d", S_TMP + 1, S_TMP + 1, S_TMP + 2)
        a("v_xor_b32 v4, 64, v3")
        for i in range(op.npw):
            a("s_add_u32 s%d, s%d, %d", S_TMP + 2, S_TMP + 1, i * 8 * ld)
            a("v_add_u32 v%d, s%d, v%d", vb + i, S_TMP + 2, 3 + (i & 1))
    elif op.T == 128:
        a("v_lshrrev_b32 v4, 4, v2")
        a("v_mul_lo_u32 v3, v4, s%d", S_TMP)
        a("v_lshlrev_b32 v4, 1, v4")
        a("v_xor_b32 v4, v4, v2")
        a("v_and_b32 v4, 15, v4")
        a("v_lshl_add_u32 v3, v4, 4, v3")
        a("s_mul_i32 s%d, s%d, 256", S_TMP + 1, stile)
        a("s_mul_i32 s%d, s%d, %d", S_TMP + 2, S_W, 16 * ld)
        a("s_add_u32 s%d, s%d, s%d", S_TMP + 1, S_TMP + 1, S_TMP + 2)
        a("v_xor_b32 v4, 128, v3")
        for i in range(4):
            a("s_add_u32 s%d, s%d, %d", S_TMP + 2, S_TMP + 1, i * 4 * ld)
            a("v_add_u32 v%d, s%d, v%d", vb + i, S_TMP + 2, 3 + (i >> 1))
    elif op.T == 64:
        a("v_lshrrev_b32 v3, 3, v2")
        a("v_mul_lo_u32 v3, v3, s%d", S_TMP)
        a("v_bfe_u32 v4, v2, 4, 1")
        a("v_lshlrev_b32 v4, 1, v4")
        a("v_xor_b32 v4, v4, v2")
        a("v_and_b32 v4, 7, v4")
        a("v_lshl_add_u32 v3, v4, 4, v3")
        a("s_mul_i32 s%d, s%d, 128", S_TMP + 1, stile)
        a("s_mul_i32 s%d, s%d, %d", S_TMP + 2, S_W, 16 * ld)
        a("s_add_u32 s%d, s%d, s%d", S_TMP + 1, S_TMP + 1, S_TMP + 2)
        a("v_xor_b32 v4, 64, v3")
        for i in range(2):
            a("s_add_u32 s%d, s%d, %d", S_TMP + 2, S_TMP + 1, i * 8 * ld + extra_cols * 2)
            a("v_add_u32 v%d, s%d, v%d", vb + i, S_TMP + 2, 3 + i)
    else:
        raise ValueError

def lane_parts(a):
    a("v_lshrrev_b32 v5, 4, v2")
    a("v_bfe_u32 v6, v2, 2, 2")
    a("v_and_b32 v7, 3, v2")
    a("v_and_b32 v8, 15, v2")

def read_addrs_kc(a, opbase, srow, vb):
    a("v_lshrrev_b32 v3, 1, v8")
    a("v_xor_b32 v3, v3, v5")
    a("v_lshlrev_b32 v3, 4, v3")
    a("v_lshl_add_u32 v3, v8, 7, v3")
    if srow is not None:
        a("s_lshl_b32 s%d, s%d, 7", S_TMP, srow)
        a("s_add_u32 s%d, s%d, %d", S_TMP, S_TMP, opbase)
        a("v_add_u32 v%d, s%d, v3", vb, S_TMP)
    else:
        a("v_add_u32 v%d, %d, v3", vb, opbase)
    a("v_xor_b32 v%d, 64, v%d", vb + 1, vb)

def read_addr_km(a, T, sbase, stile, i, vd, sxor=None):
    rowb = T * 2
    if T == 128:
        a("v_and_b32 v3, 1, v5")
        a("v_lshl_or_b32 v3, v3, 2, v6")
    else:
        a("v_and_b32 v3, 1, v5")
        a("v_lshlrev_b32 v3, 1, v3")
        a("v_lshrrev_b32 v4, 1, v6")
        a("v_or_b32 v3, v3, v4")
    a("s_add_u32 s%d, s%d, %d", S_TMP, stile, i)
    if sxor is not None: a("s_xor_b32 s%d, s%d, s%d", S_TMP, S_TMP, sxor)
    a("v_xor_b32 v3, s%d, v3", S_TMP)
    a("v_lshlrev_b32 v3, 5, v3")
    a("v_lshl_add_u32 v3, v7, 3, v3")
    a("v_lshl_add_u32 v4, v5, 3, v6")
    a("v_lshl_add_u32 v3, v4, %d, v3", rowb.bit_length() - 1)
    a("v_add_u32 v%d, s%d, v3", vd, sbase)

def frag_reads(kind, T, addr_regs, idx, ks, dst):
    if kind == "kc":
        return ["ds_read_b128 v[%d:%d], v%d offset:%d" % (dst, dst + 3, addr_regs[ks], idx * 2048)]
    rowb = T * 2
    return ["ds_read_b64_tr_b16 v[%d:%d], v%d offset:%d" % (dst + 2 * h, dst + 2 * h + 1, addr_regs[idx], h * 4 * rowb + ks * 32 * rowb)
            for h in range(2)]

def interleave(a, mfmas, reads, tail=()):
    reads = list(reads); tail = list(tail)
    if OPT.get("noreads"): reads = []
    if OPT.get("nomfma"): mfmas = ["s_nop 0"] * 2
    for m in mfmas:
        a(m)
        budget = 2
        while reads and budget > 0:
            cost = 2 if "b128" in reads[0] else 1
            if cost > budget: break
            a(reads.pop(0)); budget -= cost
        if not reads:
            while tail and budget > 0:
                a(tail.pop(0)); budget -= 1
    for r in reads: a(r)
    for t in tail: a(t)

def loader_loop(a, name, issue, n_per_wave, N, S, stage_bytes, events=(), tail=None, first_wait=None):
    a("s_mov_b32 s%d, 0", S_T)
    a("s_mov_b32 s%d, 0", S_SLOT)
    a.label(name + "_ld_loop")
    a("s_cmp_lt_u32 s%d, %d", S_T, S - 1)
    a("s_cbranch_scc1 %s_ld_issue", name)
    opnd = lambda at: str(at[1]) if isinstance(at, tuple) else "s%d" % at
    for k, (at, extra, fn) in enumerate(events):
        if extra:
            a("s_sub_u32 s%d, s%d, %s", S_TMP, S_T, opnd(at))
            a("s_sub_u32 s%d, s%d, 1", S_TMP, S_TMP)
            a("s_cmp_lt_u32 s%d, %d", S_TMP, S - 1)
            a("s_cbranch_scc1 %s_ld_w%d", name, k)
    a("s_waitcnt vmcnt(%d)", (S - 2) * n_per_wave)
    a.label(name + "_ld_bar")
    a("s_barrier")
    a.label(name + "_ld_issue")
    if not OPT.get("noload"): issue()
    if first_wait is not None:
        a("s_cmp_lg_u32 s%d, 0", S_T)
        a("s_cbranch_scc1 %s_ld_nf", name)
        a("s_waitcnt vmcnt(%d)", first_wait)
        a.label(name + "_ld_nf")
    for k, (at, extra, fn) in enumerate(events):
        a("s_cmp_eq_u32 s%d, %s", S_T, opnd(at))
        a("s_cbranch_scc1 %s_ld_h%d", name, k)
        a.label(name + "_ld_c%d" % k)
    a("s_add_u32 s%d, s%d, %d", S_SLOT, S_SLOT, stage_bytes)
    a("s_cmp_eq_u32 s%d, %d", S_SLOT, S * stage_bytes)
    a("s_cselect_b32 s%d, 0, s%d", S_SLOT, S_SLOT)
    a("s_add_u32 s%d, s%d, 1", S_T, S_T)
    a("s_cmp_lt_u32 s%d, %s", S_T, N)
    a("s_cbranch_scc1 %s_ld_loop", name)
    if tail: tail()
    else:
        for t in range(N - S + 1, N):
            a("s_waitcnt vmcnt(%d)", (N - 1 - t) * n_per_wave)
            a("s_barrier")
    if events:
        a("s_branch %s_ld_end", name)
        for k, (at, extra, fn) in enumerate(events):
            if extra:
                a.label(name + "_ld_w%d" % k)
                a("s_waitcnt vmcnt(%d)", (S - 2) * n_per_wave + extra)
                a("s_branch %s_ld_bar", name)
            a.label(name + "_ld_h%d" % k)
            fn()
            a("s_branch %s_ld_c%d", name, k)
        a.label(name + "_ld_end")

def kidx_offsets(a, W, advA, advB, wrap=0):
    wm = ("s%d" % S_WM) if W == "s" else str(W - 1)
    a("s_add_u32 s%d, s%d, s%d", S_TMP, S_T, S_J)
    a("s_and_b32 s%d, s%d, %s", S_TMP, S_TMP, wm)
    a("s_andn2_b32 s%d, s%d, %s", S_TMP + 1, S_T, wm)
    a("s_or_b32 s%d, s%d, s%d", S_TMP, S_TMP, S_TMP + 1)
    a("s_add_u32 s%d, s%d, s%d", S_TMP, S_TMP, S_KB)
    if wrap: a("s_and_b32 s%d, s%d, %d", S_TMP, S_TMP, wrap - 1)
    a("s_mul_i32 s%d, s%d, %d", S_OFA, S_TMP, advA)
    a("s_mul_i32 s%d, s%d, %d", S_OFB, S_TMP, advB)

def compute_loop_ctl_init(a, N, S, stage_bytes):
    a("s_mov_b32 s%d, %s", S_CNT, N)
    a("s_mov_b32 s%d, 0", S_SI)
    a("s_mov_b32 s%d, %d", S_DP, stage_bytes)
    a("s_mov_b32 s%d, 0x%x", S_DN, (-(S - 1) * stage_bytes) & 0xffffffff)

def addr_update(addr_regs, S, stage_bytes):
    L = ["s_add_u32 s%d, s%d, 1" % (S_SI, S_SI),
         "s_cmp_eq_u32 s%d, %d" % (S_SI, S),
         "s_cselect_b32 s%d, s%d, s%d" % (S_DELTA, S_DN, S_DP),
         "s_cselect_b32 s%d, 0, s%d" % (S_SI, S_SI)]
    L += ["v_add_u32 v%d, s%d, v%d" % (r, S_DELTA, r) for r in addr_regs]
    L += ["s_sub_u32 s%d, s%d, 1" % (S_CNT, S_CNT), "s_cmp_lg_u32 s%d, 0" % S_CNT]
    return L

def gelu_pairs(a, regs, tmp, cst):
    n = len(regs)
    pr = lambda r: "v[%d:%d]" % (r, r + 1)
    for k, r in enumerate(regs): a("v_pk_mul_f32 %s, %s, %s", pr(tmp + 2 * k), pr(r), pr(r))
    for k, r in enumerate(regs): a("v_pk_fma_f32 %s, %s, %s, %s", pr(tmp + 2 * k), pr(tmp + 2 * k), pr(cst), pr(cst + 2))
    for k, r in enumerate(regs): a("v_pk_mul_f32 %s, %s, %s", pr(tmp + 2 * k), pr(tmp + 2 * k), pr(r))
    for k in range(2 * n): a("v_exp_f32 v%d, v%d", tmp + k, tmp + k)
    for k, r in enumerate(regs): a("v_pk_add_f32 %s, %s, %s", pr(tmp + 2 * k), pr(tmp + 2 * k), pr(cst + 4))
    for k in range(2 * n): a("v_rcp_f32 v%d, v%d", tmp + k, tmp + k)
    for k, r in enumerate(regs): a("v_pk_mul_f32 %s, %s, %s", pr(r), pr(r), pr(tmp + 2 * k))

def cloop(a, name, mf, rd, addrs, S, stage, first=None, mid=None):
    stamp(a, 2)
    if OPT.get("stamp") or first:
        a("s_barrier")
        stamp(a, 3)
        if first: first()
        if OPT.get("stamp"): a("s_waitcnt lgkmcnt(0)")
        a("s_branch %s_cloop2", name)
    if mid:
        a.label(name + "_mid")
        a("s_waitcnt vmcnt(0)")
        a("s_nop 7")
        mid[1]()
        a("s_nop 1")
        a("s_branch %s_cloop2", name)
    a.raw(".p2align 3")
    a.label(name + "_cloop")
    a("s_barrier")
    if mid:
        a("s_cmp_eq_u32 s%d, %d", S_CNT, mid[0])
        a("s_cbranch_scc1 %s_mid", name)
    a.label(name + "_cloop2")
    interleave(a, mf(1), rd(0, 0))
    a("s_waitcnt lgkmcnt(0)")
    interleave(a, mf(0), rd(1, 1), addr_update(addrs, S, stage))
    a("s_waitcnt lgkmcnt(0)")
    a("s_cbranch_scc1 %s_cloop", name)
    for m in mf(1): a(m)
    stamp(a, 4)

GEMM_VTOP = {}
CNT_BYTES = 64 * 256
def count_in(a, label, area=0):
    srd(a, 84, 4, WS["CNT"] + area, CNT_BYTES)
    a("v_mov_b32 v3, s%d", S_TMP)
    a("v_mov_b32 v4, 1")
    a("s_waitcnt vmcnt(0)")
    a("s_barrier")
    a("s_cmp_lg_u32 s%d, 0", S_W)
    a("s_cbranch_scc1 %s", label)
    a("s_mov_b64 exec, 1")
    a("buffer_atomic_add v4, v3, s[84:87], 0 offen sc1")
    a("s_mov_b64 exec, -1")
    a.label(label)

def wait_counters(a, label, need0, need1):
    srd(a, 84, 4, WS["CNT"], CNT_BYTES)
    a("v_cmp_eq_u32 vcc, 1, v2")
    a("v_mov_b32 v21, s%d", S_TMP)
    a("v_mov_b32 v23, s%d", S_TMP + 2)
    a("v_cndmask_b32 v21, v21, v23, vcc")
    a("v_mov_b32 v22, %d", need0)
    a("v_mov_b32 v23, %d", need1)
    a("v_cndmask_b32 v22, v22, v23, vcc")
    a("s_mov_b32 s%d, 0x8000", S_TMP + 1)
    a.label(label)
    a("buffer_load_dword v23, v21, s[84:87], 0 offen sc1")
    a("s_sub_u32 s%d, s%d, 1", S_TMP + 1, S_TMP + 1)
    a("s_waitcnt vmcnt(0)")
    a("v_cmp_lt_u32 vcc, v23, v22")
    a("s_cmp_eq_u32 s%d, 0", S_TMP + 1)
    a("s_cbranch_scc1 %s_ok", label)
    a("s_cbranch_vccz %s_ok", label)
    a("s_sleep %d", OPT.get("dslp", 2))
    a("s_branch %s", label)
    a.label(label + "_ok")

PHASES = ["g1", "g2", "g3", "g4"]
def prev_cut(name):
    k = PHASES.index(name)
    return "%d%d" % ((k - 1) % 4 + 1, k + 1) in CUTS
def next_cut(name):
    k = PHASES.index(name)
    return "%d%d" % (k + 1, (k + 1) % 4 + 1) in CUTS

def entry(a, name, ntiles, spare=False):
    for layer, ab in enumerate("ab"):
        if prev_cut(name) or (name == "g1" and layer == 0):
            kernel_header(a, "%s%s_kernel" % (name, ab))
            a("s_mov_b32 s%d, %d", S_LAYER, layer)
            a("s_mov_b32 s%d, 0x%x", S_LOFF, layer * LOFF)
            a("s_branch %s_in", name)
            KERNELS.append("%s%s_kernel" % (name, ab))
    a.raw(".p2align 6")
    a.label(name + "_in")
    a("s_cmp_ge_u32 s2, %d", ntiles)
    a("s_cbranch_scc1 %s_%s", name, "spare" if spare else "done")
    stamp(a, 0)
KERNELS = []

def ws_adjust(a):
    a("s_add_u32 s4, s4, s%d", S_LOFF)
    a("s_addc_u32 s5, s5, 0")

def sel_ptr(a, d, which_layer, off):
    a("s_add_u32 s%d, s4, 0x%x", d, off)
    a("s_addc_u32 s%d, s5, 0", d + 1)
    a("s_cmp_eq_u32 s%d, %d", S_LAYER, which_layer)
    a("s_cselect_b32 s%d, s%d, s6", d, d)
    a("s_cselect_b32 s%d, s%d, s7", d + 1, d + 1)
    a("s_mov_b32 s%d, 0x%x", d + 2, ACT_BYTES)
    a("s_mov_b32 s%d, 0x20000", d + 3)

def go_next(a, name):
    if name == "g4":
        a("s_mov_b32 s%d, 1", S_LAYER)
        a("s_mov_b32 s%d, 0x%x", S_LOFF, LOFF)
    a("s_branch %s_in", PHASES[(PHASES.index(name) + 1) % 4])

def finish(a, name, cnt, loader=False):
    if next_cut(name):
        a("s_endpgm")
        return
    if name == "g4":
        a("s_cmp_lg_u32 s%d, 0", S_LAYER)
        a("s_cbranch_scc1 %s_done", name)
    if loader:
        a("s_barrier")
    else:
        cnt(a)
        count_in(a, name + "_cin", LOFF if name == "g4" else 0)
    go_next(a, name)

def gen_gemm(a, name, ntiles, A, B, WA, WB, N, S, W, ptrs, decode, init, epi, ldc, cnt, dep, stats=False, spare=None, split=None):
    na, nb = A.T // (16 * WA), B.T // (16 * WB)
    stage = A.bytes + B.bytes
    baseA, baseB = 0, A.bytes
    entry(a, name, ntiles, spare is not None)
    ptrs(a, 0)
    a("v_lshrrev_b32 v1, 6, v0")
    a("v_and_b32 v2, 63, v0")
    decode(a)
    a("v_readfirstlane_b32 s%d, v1", S_W)
    a("s_nop 0")
    a("s_cmp_lt_u32 s%d, 4", S_W)
    a("s_cbranch_scc1 %s_compute", name)

    if OPT.get("ldprio"): a("s_setprio %d", OPT["ldprio"])
    a("s_sub_u32 s%d, s%d, 4", S_W, S_W)
    loader_voffs(a, A, S_TA, 10)
    loader_voffs(a, B, S_TB, 10 + A.npw)
    a("s_mul_i32 s%d, s%d, %d", S_LA, S_W, A.npw * 1024)
    a("s_mul_i32 s%d, s%d, %d", S_LB, S_W, B.npw * 1024)
    a("s_add_u32 s%d, s%d, %d", S_LB, S_LB, baseB)
    a("s_waitcnt lgkmcnt(0)")
    ws_adjust(a)
    ptrs(a, "L")
    def issue():
        kidx_offsets(a, W, A.kadv, B.kadv)
        a("s_add_u32 s%d, s%d, s%d", S_M0A, S_SLOT, S_LA)
        a("s_add_u32 s%d, s%d, s%d", S_M0B, S_SLOT, S_LB)
        for (op, vb, sm, so, sr) in ((A, 10, S_M0A, S_OFA, 8), (B, 10 + A.npw, S_M0B, S_OFB, 12)):
            for i in range(op.npw):
                a("s_add_u32 m0, s%d, %d", sm, i * 1024)
                a("s_nop 0")
                a("buffer_load_dwordx4 v%d, s[%d:%d], s%d offen lds", vb + i, sr, sr + 3, so)
    if not prev_cut(name): dep(a)
    loader_loop(a, name, issue, A.npw + B.npw, N, S, stage)
    if not next_cut(name): finish(a, name, cnt, loader=True)
    a.label(name + "_done")
    a("s_endpgm")

    a.label(name + "_compute")
    ACC = 28
    BV = 22
    nacc = na * nb * 4
    FR = ACC + nacc
    fset = (na + nb) * 4
    fA = lambda st, i: FR + st * fset + 4 * i
    fB = lambda st, j: FR + st * fset + 4 * na + 4 * j
    acc = lambda i, j: ACC + 4 * (i * nb + j)
    VTOP = FR + 2 * fset
    if epi == "ln2":
        EXV = VTOP
        VTOP += 16
    nk = nb // 2 if split else nb
    if split:
        SND, RCV = VTOP, VTOP + 16
        VTOP += 32
    lane_parts(a)
    SWA, SWB = S_TMP + 4, S_TMP + 5
    a("s_and_b32 s%d, s%d, %d", SWA, S_W, WA - 1)
    a("s_lshr_b32 s%d, s%d, %d", SWB, S_W, WA.bit_length() - 1)
    a("s_mul_i32 s%d, s%d, %d", S_TMP, S_TB, B.T)
    a("s_mul_i32 s%d, s%d, %d", S_TMP + 1, SWB, nb * 16)
    a("s_add_u32 s%d, s%d, s%d", S_TMP, S_TMP, S_TMP + 1)
    if split:
        a("s_lshl_b32 s%d, s%d, 5", S_TMP + 1, S_ROLE)
        a("s_add_u32 s%d, s%d, s%d", S_TMP, S_TMP, S_TMP + 1)
    a("v_add_u32 v20, s%d, v8", S_TMP)
    a("s_mov_b32 s%d, %d", S_TMP + 1, ldc)
    a("v_mul_lo_u32 v9, v20, s%d", S_TMP + 1)
    a("s_mul_i32 s%d, s%d, %d", S_TMP, S_TA, A.T * 2)
    a("s_mul_i32 s%d, s%d, %d", S_TMP + 1, SWA, na * 32)
    a("s_add_u32 s%d, s%d, s%d", S_TMP + 6, S_TMP, S_TMP + 1)
    a("v_and_b32 v3, 1, v5")
    a("v_lshlrev_b32 v3, 5, v3")
    a("v_lshrrev_b32 v4, 1, v5")
    a("v_lshl_add_u32 v3, v4, 4, v3")
    a("v_add3_u32 v9, v9, v3, s%d", S_TMP + 6)
    for j in range(nb):
        a("s_mov_b32 s%d, %d", S_ST + j, j * 16 * ldc)
    a("s_waitcnt lgkmcnt(0)")
    stamp(a, 1)
    ws_adjust(a)
    ptrs(a, "C")
    resid = init in ("resid", "resid+biasB")
    if resid:
        RES = VTOP
        VTOP += 24
    def resid_loads():
        for j in range(nk):
            for p in range(na // 2):
                d = RES + 4 * (j * (na // 2) + p)
                a("buffer_load_dwordx4 v[%d:%d], v9, s[20:23], s%d offen offset:%d", d, d + 3, S_ST + j, p * 64)
        if init == "resid+biasB":
            a("v_lshlrev_b32 v3, 1, v20")
            for j in range(nk):
                a("buffer_load_ushort v%d, v3, s[56:59], 0 offen offset:%d", BV + j, j * 32)
    def resid_add():
        T = RES + 16
        for q in range(nk * na // 2):
            a("v_permlane16_swap_b32 v%d, v%d", RES + 4 * q, RES + 4 * q + 2)
            a("v_permlane16_swap_b32 v%d, v%d", RES + 4 * q + 1, RES + 4 * q + 3)
        if init == "resid+biasB":
            for j in range(nk): a("v_lshlrev_b32 v%d, 16, v%d", BV + j, BV + j)
        for j in range(nk):
            for p in range(na // 2):
                d = RES + 4 * (j * (na // 2) + p)
                for q in range(4):
                    a("v_lshlrev_b32 v%d, 16, v%d", T + 2 * q, d + q)
                    a("v_and_b32 v%d, 0xffff0000, v%d", T + 2 * q + 1, d + q)
                if init == "resid+biasB":
                    for q in range(8): a("v_add_f32 v%d, v%d, v%d", T + q, T + q, BV + j)
                for q in range(4):
                    c = acc(2 * p + (q >> 1), j) + 2 * (q & 1)
                    a("v_pk_add_f32 v[%d:%d], v[%d:%d], v[%d:%d]", c, c + 1, c, c + 1, T + 2 * q, T + 2 * q + 1)
    if init == "biasA":
        a("v_lshl_add_u32 v3, v5, 3, s%d", S_TMP + 6)
        for i in range(na):
            a("buffer_load_dwordx2 v[%d:%d], v3, s[20:23], 0 offen offset:%d", FR + 2 * i, FR + 2 * i + 1, i * 32)
    AR = 10
    def mk_addrs(op, base, swave, n, vb, sxor=None):
        if op.kind == "kc":
            a("s_mul_i32 s%d, s%d, %d", S_TMP + 2, swave, n * 16)
            read_addrs_kc(a, base, S_TMP + 2, vb)
            return [vb, vb + 1]
        a("s_mul_i32 s%d, s%d, %d", S_TMP + 2, swave, n)
        a("s_mov_b32 s%d, %d", S_TMP + 3, base)
        for i in range(n):
            read_addr_km(a, op.T, S_TMP + 3, S_TMP + 2, i, vb + i, sxor)
        return [vb + i for i in range(n)]
    adA = mk_addrs(A, baseA, SWA, na, AR)
    if split: a("s_lshl_b32 s%d, s%d, 1", S_N, S_ROLE)
    adB = mk_addrs(B, baseB, SWB, nb, AR + len(adA), S_N if split else None)
    assert AR + len(adA) + len(adB) <= 20
    for r in range(fset): a("v_mov_b32 v%d, 0", FR + fset + r)
    compute_loop_ctl_init(a, N, S, stage)
    if split:
        a("s_lshl_b32 s%d, s%d, 12", S_TMP, S_W)
        a("v_lshl_add_u32 v21, v2, 4, s%d", S_TMP)
        a("s_lshl_b32 s%d, s%d, 1", S_OWN, S_PAIR)
        a("s_add_u32 s%d, s%d, s%d", S_OWN, S_OWN, S_ROLE)
        a("s_lshl_b32 s%d, s%d, 14", S_OWN, S_OWN)
        a("s_xor_b32 s%d, s%d, 0x4000", S_OTH, S_OWN)
    if init != "biasA":
        for r in range(nacc): a("v_mov_b32 v%d, 0", ACC + r)
    else:
        a("s_waitcnt vmcnt(0)")
        for i in range(na):
            for j in range(nb):
                c = acc(i, j)
                for q in range(2):
                    a("v_lshlrev_b32 v%d, 16, v%d", c + 2 * q, FR + 2 * i + q)
                    a("v_and_b32 v%d, 0xffff0000, v%d", c + 2 * q + 1, FR + 2 * i + q)
    if OPT.get("cprio"): a("s_setprio %d", OPT["cprio"])
    def mf(st):
        return ["v_mfma_f32_16x16x32_bf16 v[%d:%d], v[%d:%d], v[%d:%d], v[%d:%d]" %
                (acc(i, j), acc(i, j) + 3, fA(st, i), fA(st, i) + 3, fB(st, j), fB(st, j) + 3, acc(i, j), acc(i, j) + 3)
                for i in range(na) for j in range(nb)]
    def rd(st, ks):
        L = []
        L += frag_reads(A.kind, A.T, adA, 0, ks, fA(st, 0))
        for j in range(nb): L += frag_reads(B.kind, B.T, adB, j, ks, fB(st, j))
        for i in range(1, na): L += frag_reads(A.kind, A.T, adA, i, ks, fA(st, i))
        return L
    def rcv_loads():
        for u in range(4):
            a("buffer_load_dwordx4 v[%d:%d], v21, s[84:87], s%d offen offset:%d sc1", RCV + 4 * u, RCV + 4 * u + 3, S_OTH, u * 1024)
    cloop(a, name, mf, rd, adA + adB, S, stage, first=resid_loads if resid else None,
          mid=(N // 2, resid_add) if resid and not split else None)
    TMPV = FR
    if epi == "gelu":
        c1 = -2.0 * math.log2(math.e) * math.sqrt(2.0 / math.pi) * 0.044715
        c0 = -2.0 * math.log2(math.e) * math.sqrt(2.0 / math.pi)
        for k, v in enumerate((c1, c1, c0, c0, 1.0, 1.0)):
            a("v_mov_b32 v%d, 0x%x", AR + k, f32(v))
    if split:
        tiles = lambda j0: [(i, j) for j in range(j0, j0 + nk) for i in range(na)]
        for u, (i, j) in enumerate(tiles(nk)):
            c = acc(i, j)
            if u == 7: a("s_nop 3")
            a("v_cvt_pk_bf16_f32 v%d, v%d, v%d", SND + 2 * u, c, c + 1)
            a("v_cvt_pk_bf16_f32 v%d, v%d, v%d", SND + 2 * u + 1, c + 2, c + 3)
            if u & 1:
                a("buffer_store_dwordx4 v[%d:%d], v21, s[84:87], s%d offen offset:%d sc1", SND + 2 * u - 2, SND + 2 * u + 1, S_OWN, (u >> 1) * 1024)
        a("s_mov_b32 s%d, 0x2000", S_CNT)
        stamp(a, 5)
        rcv_loads()
        a("s_waitcnt vmcnt(8)")
        resid_add()
        a("s_waitcnt vmcnt(0)")
        a.label(name + "_rcv")
        a("v_max3_u32 v4, v%d, v%d, v%d", RCV, RCV + 1, RCV + 2)
        for q in range(3, 15, 2): a("v_max3_u32 v4, v4, v%d, v%d", RCV + q, RCV + q + 1)
        a("v_max_u32 v4, v4, v%d", RCV + 15)
        a("v_cmp_eq_u32 vcc, -1, v4")
        a("s_sub_u32 s%d, s%d, 1", S_CNT, S_CNT)
        a("s_cmp_eq_u32 s%d, 0", S_CNT)
        a("s_cbranch_scc1 %s_rcvd", name)
        a("s_cbranch_vccz %s_rcvd", name)
        a("s_sleep %d", OPT.get("slp", 2))
        rcv_loads()
        a("s_waitcnt vmcnt(0)")
        a("s_branch %s_rcv", name)
        a.label(name + "_rcvd")
        stamp(a, 6)
        if OPT.get("stamp"): a("s_add_u32 s%d, s%d, 0x6000", 64 + 2 * 9, S_CNT)
        for u, (i, j) in enumerate(tiles(0)):
            c = acc(i, j); t = TMPV + 16 + 4 * (u & 3)
            for q in range(2):
                a("v_lshlrev_b32 v%d, 16, v%d", t + 2 * q, RCV + 2 * u + q)
                a("v_and_b32 v%d, 0xffff0000, v%d", t + 2 * q + 1, RCV + 2 * u + q)
            for q in range(2):
                a("v_pk_add_f32 v[%d:%d], v[%d:%d], v[%d:%d]", c + 2 * q, c + 2 * q + 1, c + 2 * q, c + 2 * q + 1, t + 2 * q, t + 2 * q + 1)
    def stats_block():
        assert nk in (2, 4) and na == 4
        pr = lambda r: "v[%d:%d]" % (r, r + 1)
        SV = TMPV + 16
        for j in range(nk):
            prs = [acc(i, j) + 2 * q for i in range(na) for q in range(2)]
            a("v_pk_add_f32 %s, %s, %s", pr(SV + 4 * j), pr(prs[0]), pr(prs[1]))
            a("v_pk_mul_f32 %s, %s, %s", pr(SV + 4 * j + 2), pr(prs[0]), pr(prs[0]))
            for x in prs[1:]:
                if x != prs[1]: a("v_pk_add_f32 %s, %s, %s", pr(SV + 4 * j), pr(SV + 4 * j), pr(x))
                a("v_pk_fma_f32 %s, %s, %s, %s", pr(SV + 4 * j + 2), pr(x), pr(x), pr(SV + 4 * j + 2))
        for j in range(nk):
            a("v_add_f32 v%d, v%d, v%d", SV + 4 * j, SV + 4 * j, SV + 4 * j + 1)
            a("v_add_f32 v%d, v%d, v%d", SV + 4 * j + 1, SV + 4 * j + 2, SV + 4 * j + 3)
        a("s_nop 1")
        for j in range(0, nk, 2):
            a("v_permlane16_swap_b32 v%d, v%d", SV + 4 * j, SV + 4 * j + 4)
            a("v_permlane16_swap_b32 v%d, v%d", SV + 4 * j + 1, SV + 4 * j + 5)
        for j in range(0, nk, 2):
            a("v_pk_add_f32 %s, %s, %s", pr(SV + 4 * j), pr(SV + 4 * j), pr(SV + 4 * j + 4))
        if nk == 2:
            a("v_mov_b32 v%d, v%d", SV + 8, SV)
            a("v_mov_b32 v%d, v%d", SV + 9, SV + 1)
        a("v_and_b32 v3, %d, v2", 16 if nk == 2 else 48)
        a("v_add_u32 v3, v3, v20")
        a("v_permlane32_swap_b32 v%d, v%d", SV, SV + 8)
        a("v_permlane32_swap_b32 v%d, v%d", SV + 1, SV + 9)
        a("v_pk_add_f32 %s, %s, %s", pr(SV), pr(SV), pr(SV + 8))
        a("v_lshlrev_b32 v3, 3, v3")
        a("s_mul_i32 s%d, s%d, %d", S_TMP, S_TA, WA)
        a("s_add_u32 s%d, s%d, s%d", S_TMP, S_TMP, SWA)
        a("s_lshl_b32 s%d, s%d, 14", S_TMP, S_TMP)
        if nk == 2: a("s_mov_b32 exec_hi, 0")
        a("buffer_store_dwordx2 %s, v3, s[60:63], s%d offen sc1", pr(SV), S_TMP)
        if nk == 2: a("s_mov_b32 exec_hi, -1")
    def ln2_start():
        stats_block()
        a("v_lshrrev_b32 v4, 5, v2")
        a("v_lshl_add_u32 v21, v4, 17, v3")
    def ex_loads():
        for q in range(8):
            a("s_mov_b32 s%d, %d", S_TMP + (q & 1), q * 16384)
            a("buffer_load_dwordx2 v[%d:%d], v21, s[60:63], s%d offen sc1", EXV + 2 * q, EXV + 2 * q + 1, S_TMP + (q & 1))
    def ln2_finish():
        pr = lambda r: "v[%d:%d]" % (r, r + 1)
        a("s_mov_b32 s%d, 0x2000", S_CNT)
        a("v_mul_u32_u24 v19, %d, v20", LDH - ldc)
        a("v_add_u32 v19, v19, v9")
        for j in range(nk): a("s_mov_b32 s%d, %d", S_ST + 2 + j, j * 16 * LDH)
        stamp(a, 5)
        ex_loads()
        a("s_waitcnt vmcnt(0)")
        a.label(name + "_ex")
        a("v_max3_u32 v4, v%d, v%d, v%d", EXV, EXV + 1, EXV + 2)
        for q in range(3, 15, 2): a("v_max3_u32 v4, v4, v%d, v%d", EXV + q, EXV + q + 1)
        a("v_max_u32 v4, v4, v%d", EXV + 15)
        a("v_cmp_eq_u32 vcc, -1, v4")
        a("s_sub_u32 s%d, s%d, 1", S_CNT, S_CNT)
        a("s_cmp_eq_u32 s%d, 0", S_CNT)
        a("s_cbranch_scc1 %s_exd", name)
        a("s_cbranch_vccz %s_exd", name)
        a("s_sleep %d", OPT.get("slp", 2))
        ex_loads()
        a("s_waitcnt vmcnt(0)")
        a("s_branch %s_ex", name)
        a.label(name + "_exd")
        stamp(a, 6)
        if OPT.get("stamp"): a("s_add_u32 s%d, s%d, 0x6000", 64 + 2 * 9, S_CNT)
        E = EXV
        for st in (4, 2, 1):
            for q in range(st): a("v_pk_add_f32 %s, %s, %s", pr(E + 2 * q), pr(E + 2 * q), pr(E + 2 * (q + st)))
        a("v_mov_b32 v%d, v%d", E + 2, E)
        a("v_mov_b32 v%d, v%d", E + 3, E + 1)
        a("s_nop 1")
        a("v_permlane32_swap_b32 v%d, v%d", E, E + 2)
        a("v_permlane32_swap_b32 v%d, v%d", E + 1, E + 3)
        a("v_pk_add_f32 %s, %s, %s", pr(E), pr(E), pr(E + 2))
        m, var, mb, r1, m2, v2 = E, E + 1, E + 2, E + 3, E + 4, E + 5
        a("v_mul_f32 v%d, 0x%x, v%d", m, f32(1.0 / 1024), m)
        a("v_mul_f32 v%d, 0x%x, v%d", var, f32(1.0 / 1024), var)
        a("v_fma_f32 v%d, -v%d, v%d, v%d", var, m, m, var)
        a("v_max_f32 v%d, 0, v%d", var, var)
        a("v_mov_b32 v%d, v%d", mb, m)
        a("v_mov_b32 v%d, v%d", r1, var)
        def rstd(x):
            round_bf16_scalar(a, x)
            a("v_add_f32 v%d, 0x%x, v%d", x, f32(1e-5), x)
            round_bf16_scalar(a, x)
            a("v_sqrt_f32 v%d, v%d", x, x)
            a("s_nop 0")
            round_bf16_scalar(a, x)
            a("v_rcp_f32 v%d, v%d", x, x)
        round_bf16_scalar(a, mb)
        rstd(r1)
        a("v_sub_f32 v%d, v%d, v%d", m2, m, mb)
        a("v_mul_f32 v%d, v%d, v%d", v2, var, r1)
        a("v_mul_f32 v%d, v%d, v%d", m2, m2, r1)
        a("v_mul_f32 v%d, v%d, v%d", v2, v2, r1)
        round_bf16_scalar(a, m2)
        rstd(v2)
        a("v_fma_f32 v%d, v%d, v%d, v%d", m2, mb, r1, m2)
        a("v_mul_f32 v%d, v%d, v%d", E + 6, r1, v2)
        a("v_mul_f32 v%d, -v%d, v%d", E + 7, m2, v2)
        a("v_mov_b32 v%d, v%d", E + 8, E + 6)
        a("v_mov_b32 v%d, v%d", E + 9, E + 7)
        a("s_nop 1")
        a("v_permlane16_swap_b32 v%d, v%d", E + 6, E + 8)
        a("v_permlane16_swap_b32 v%d, v%d", E + 7, E + 9)
        k = 0
        for j in range(nk):
            ab = pr(E + 6 + 2 * j)
            for p in range(na // 2):
                c0_, c1_ = acc(2 * p, j), acc(2 * p + 1, j)
                for x in (c0_, c0_ + 2, c1_, c1_ + 2):
                    a("v_pk_fma_f32 %s, %s, %s, %s op_sel:[0,0,1] op_sel_hi:[1,0,1]", pr(x), pr(x), ab, ab)
                d = TMPV + 4 * (k & 3); k += 1
                a("v_cvt_pk_bf16_f32 v%d, v%d, v%d", d, c0_, c0_ + 1)
                a("v_cvt_pk_bf16_f32 v%d, v%d, v%d", d + 1, c0_ + 2, c0_ + 3)
                a("v_cvt_pk_bf16_f32 v%d, v%d, v%d", d + 2, c1_, c1_ + 1)
                a("v_cvt_pk_bf16_f32 v%d, v%d, v%d", d + 3, c1_ + 2, c1_ + 3)
                a("s_nop 1")
                a("v_permlane16_swap_b32 v%d, v%d", d, d + 2)
                a("v_permlane16_swap_b32 v%d, v%d", d + 1, d + 3)
                a("buffer_store_dwordx4 v[%d:%d], v19, s[56:59], s%d offen offset:%d%s", d, d + 3, S_ST + 2 + j, p * 64, STF())
    a("s_nop 7")
    if epi == "ln2": ln2_start()
    k = 0
    for j in range(nk):
        for p in range(na // 2):
            c0_, c1_ = acc(2 * p, j), acc(2 * p + 1, j)
            if epi == "gelu":
                gelu_pairs(a, [c0_, c0_ + 2, c1_, c1_ + 2], TMPV + 16, AR)
            d = TMPV + 4 * (k & 3); k += 1
            a("v_cvt_pk_bf16_f32 v%d, v%d, v%d", d, c0_, c0_ + 1)
            a("v_cvt_pk_bf16_f32 v%d, v%d, v%d", d + 1, c0_ + 2, c0_ + 3)
            a("v_cvt_pk_bf16_f32 v%d, v%d, v%d", d + 2, c1_, c1_ + 1)
            a("v_cvt_pk_bf16_f32 v%d, v%d, v%d", d + 3, c1_ + 2, c1_ + 3)
            if epi == "ln2":
                for q, x in enumerate((c0_, c0_ + 2, c1_, c1_ + 2)):
                    a("v_lshlrev_b32 v%d, 16, v%d", x, d + q)
                    a("v_and_b32 v%d, 0xffff0000, v%d", x + 1, d + q)
            else:
                a("s_nop 1")
            a("v_permlane16_swap_b32 v%d, v%d", d, d + 2)
            a("v_permlane16_swap_b32 v%d, v%d", d + 1, d + 3)
            a("buffer_store_dwordx4 v[%d:%d], v9, s[16:19], s%d offen offset:%d%s", d, d + 3, S_ST + j, p * 64, STF())
    if stats: stats_block()
    if epi == "ln2": ln2_finish()
    xs = bool(split) or epi == "ln2"
    stamp(a, 7 if xs else 5)
    stamp_flush(a, name, 8 if xs else 6, extra=xs)
    finish(a, name, cnt)
    if spare:
        a.label(name + "_spare")
        spare(a)
    GEMM_VTOP[name] = VTOP
    return stage * S

def gen_g1(a, name, W=2):
    N, S = 16, 3
    PW = Op("km", 64, 6144)
    XB = 3 * 8192
    stage = XB + 144 * 128
    E = stage
    REG = 144 * 128
    LST = S * stage
    LCS = LST + 1280
    S_SIG, S_DIST, S_H1, S_H2, S_H3 = 52, 53, 54, 55, 29
    KG = OPT.get("KG", 12)
    entry(a, name, 256)
    a("s_load_dwordx2 s[4:5], s[0:1], %d", ARG["ws"])
    a("s_load_dwordx2 s[6:7], s[0:1], %d", ARG["x"])
    a("s_xor_b32 s%d, s%d, 1", S_DIST, S_LAYER)
    a("s_load_dwordx2 s[30:31], s[0:1], %d", ARG["wqkv"])
    a("s_load_dwordx2 s[16:17], s[0:1], %d", ARG["dbg"])
    a("s_load_dwordx2 s[18:19], s[0:1], %d", ARG["wo"])
    a("v_lshrrev_b32 v1, 6, v0")
    a("v_and_b32 v2, 63, v0")
    a("s_and_b32 s%d, s2, 1", S_TMP)
    a("s_lshl_b32 s%d, s%d, 3", S_TMP, S_TMP)
    a("s_bfe_u32 s%d, s2, 0x30003", S_TMP + 1)
    a("s_add_u32 s%d, s%d, s%d", S_TB, S_TMP, S_TMP + 1)
    a("s_bfe_u32 s%d, s2, 0x20001", S_TMP)
    a("s_lshl_b32 s%d, s%d, 2", S_TMP, S_TMP)
    a("s_lshr_b32 s%d, s2, 6", S_TMP + 2)
    a("s_add_u32 s%d, s%d, s%d", S_TA, S_TMP, S_TMP + 2)
    a("s_add_u32 s%d, s%d, s%d", S_J, S_TMP + 1, S_TMP + 2)
    a("s_add_u32 s%d, s%d, s%d", S_SIG, S_TA, S_TB)
    a("s_and_b32 s%d, s%d, 15", S_SIG, S_SIG)
    a("s_and_b32 s%d, s%d, %d", S_KB, S_SIG, KG)
    a("s_mul_i32 s%d, s%d, s%d", S_KB, S_KB, S_DIST)
    a("v_readfirstlane_b32 s%d, v1", S_W)
    lane_parts(a)
    a("s_cmp_lt_u32 s%d, 4", S_W)
    a("s_cbranch_scc1 %s_compute", name)

    if OPT.get("ldprio"): a("s_setprio %d", OPT["ldprio"])
    a("s_sub_u32 s%d, s%d, 4", S_W, S_W)
    XO = Op("kc", 128, 2048)
    loader_voffs(a, XO, S_TB, 16)
    for p in range(3):
        loader_voffs(a, PW, S_TA, 10 + 2 * p, extra_cols=1024 * p)
    a("v_lshrrev_b32 v3, 3, v2")
    a("s_lshl_b32 s%d, s%d, 2", S_TMP, S_W)
    a("v_add_u32 v3, s%d, v3", S_TMP)
    a("v_lshrrev_b32 v4, 1, v3")
    a("v_xor_b32 v4, v4, v2")
    a("v_and_b32 v4, 7, v4")
    a("s_lshl_b32 s%d, s%d, 7", S_TMP, S_TB)
    a("s_sub_u32 s%d, s%d, 16", S_TMP, S_TMP)
    a("v_add_u32 v3, s%d, v3", S_TMP)
    a("v_max_i32 v3, 0, v3")
    a("v_lshlrev_b32 v3, 11, v3")
    a("v_lshl_add_u32 v20, v4, 4, v3")
    a("s_mul_i32 s%d, s%d, 2048", S_LA, S_W)
    a("s_mul_i32 s%d, s%d, 4096", S_LB, S_W)
    a("s_add_u32 s%d, s%d, %d", S_LB, S_LB, XB + 2048)
    a("s_mul_i32 s%d, s%d, 512", S_TMP + 6, S_W)
    a("s_add_u32 s%d, s%d, %d", S_TMP + 6, S_TMP + 6, XB)
    a("s_waitcnt lgkmcnt(0)")
    srd(a, 8, 30, 0, 1024 * 3072 * 2)
    srd(a, 56, 4, WS["CS"], CS_BYTES)
    ws_adjust(a)
    sel_ptr(a, 12, 1, WS["X2"])
    def issue():
        kidx_offsets(a, W, PW.kadv, 128, wrap=16)
        a("s_add_u32 s%d, s%d, s%d", S_M0A, S_SLOT, S_LA)
        a("s_add_u32 s%d, s%d, s%d", S_M0B, S_SLOT, S_LB)
        for i in range(4):
            a("s_add_u32 m0, s%d, %d", S_M0B, i * 1024)
            a("s_nop 0")
            a("buffer_load_dwordx4 v%d, s[12:15], s%d offen lds", 16 + i, S_OFB)
        for p in range(3):
            for i in range(2):
                a("s_add_u32 m0, s%d, %d", S_M0A, p * 8192 + i * 1024)
                a("s_nop 0")
                a("buffer_load_dwordx4 v%d, s[8:11], s%d offen lds", 10 + 2 * p + i, S_OFA)
        a("s_add_u32 m0, s%d, s%d", S_SLOT, S_TMP + 6)
        a("s_mov_b32 exec_hi, 0")
        a("buffer_load_dwordx4 v20, s[12:15], s%d offen lds", S_OFB)
        a("s_mov_b32 exec_hi, -1")
    srd(a, 20, 4, WS["ST"], ST_BYTES)
    srd(a, 60, 16, 0, 256)
    a("s_sub_u32 s%d, s%d, s%d", S_TMP, S_SIG, S_J)
    a("s_and_b32 s%d, s%d, %d", S_TMP, S_TMP, W - 1)
    a("s_and_b32 s%d, s%d, %d", S_TMP + 1, S_SIG, 15 & ~KG & ~(W - 1))
    a("s_or_b32 s%d, s%d, s%d", S_TMP, S_TMP, S_TMP + 1)
    a("s_add_u32 s%d, s%d, %d", S_H1, S_TMP, S - 1)
    a("s_cmp_eq_u32 s%d, 0", S_DIST)
    a("s_cselect_b32 s%d, 0x7fff, s%d", S_H1, S_H1)
    a("s_add_u32 s%d, s%d, %d", S_H2, S_H1, S)
    a("s_cmp_lg_u32 s%d, 0", S_W)
    a("s_cselect_b32 s%d, 0x7fff, s%d", S_H2, S_H2)
    a("s_cmp_lt_u32 s%d, 0x7fff", S_H2)
    a("s_cselect_b32 s%d, %d, 0x7fff", S_H3, N - 3)
    def slice_stats():
        SL = S_TMP + 4
        a("s_add_u32 s%d, s%d, %d", SL, S_SLOT, stage)
        a("s_cmp_eq_u32 s%d, %d", SL, S * stage)
        a("s_cselect_b32 s%d, 0, s%d", SL, SL)
        for i in range(3):
            a("s_mul_i32 s%d, s%d, 3", S_TMP + 2, S_W)
            a("s_add_u32 s%d, s%d, %d", S_TMP + 2, S_TMP + 2, i)
            a("s_lshr_b32 s%d, s%d, 2", S_TMP + 3, S_TMP + 2)
            a("s_lshl_b32 s%d, s%d, 13", S_TMP + 3, S_TMP + 3)
            a("s_add_u32 s%d, s%d, s%d", S_TMP + 3, S_TMP + 3, SL)
            a("s_and_b32 s%d, s%d, 3", S_TMP + 2, S_TMP + 2)
            read_addr_km(a, 64, S_TMP + 3, S_TMP + 2, 0, 21)
            for ks in range(2):
                for r in frag_reads("km", 64, [21], 0, ks, 24 + 8 * i + 4 * ks): a(r)
        a("s_lshr_b32 s%d, s%d, 7", S_TMP + 2, SL)
        a("s_lshl_b32 s%d, s%d, 5", S_TMP + 3, S_W)
        a("s_add_u32 s%d, s%d, s%d", S_TMP + 2, S_TMP + 2, S_TMP + 3)
        a("s_add_u32 s%d, s%d, 16", S_TMP + 2, S_TMP + 2)
        read_addrs_kc(a, XB, S_TMP + 2, 22)
        for i in range(2):
            for ks in range(2):
                for r in frag_reads("kc", 0, [22, 23], i, ks, 48 + 8 * i + 4 * ks): a(r)
        for r in range(4): a("v_mov_b32 v%d, 0x3f803f80", 64 + r)
        a("s_mul_i32 s%d, s%d, 12288", S_TMP + 2, S_SIG)
        a("s_lshl_b32 s%d, s%d, 8", S_TMP + 3, S_TA)
        a("s_add_u32 s%d, s%d, s%d", S_TMP + 2, S_TMP + 2, S_TMP + 3)
        a("v_lshl_add_u32 v21, v5, 4, s%d", S_TMP + 2)
        a("s_lshl_b32 s%d, s%d, 14", S_TMP + 2, S_SIG)
        a("s_lshl_b32 s%d, s%d, 10", S_TMP + 3, S_TB)
        a("s_add_u32 s%d, s%d, s%d", S_TMP + 2, S_TMP + 2, S_TMP + 3)
        a("s_lshl_b32 s%d, s%d, 8", S_TMP + 3, S_W)
        a("s_add_u32 s%d, s%d, s%d", S_TMP + 2, S_TMP + 2, S_TMP + 3)
        a("v_lshl_add_u32 v22, v8, 3, s%d", S_TMP + 2)
        a("s_waitcnt lgkmcnt(0)")
        mm = lambda d, x, y, first: a("v_mfma_f32_16x16x32_bf16 v[%d:%d], v[%d:%d], v[%d:%d], %s", d, d + 3, x, x + 3, y, y + 3,
                                      "0" if first else "v[%d:%d]" % (d, d + 3))
        for ks in range(2):
            for i in range(3): mm(68 + 4 * i, 24 + 8 * i + 4 * ks, 64, ks == 0)
            for i in range(2):
                mm(80 + 8 * i, 64, 48 + 8 * i + 4 * ks, ks == 0)
                mm(84 + 8 * i, 48 + 8 * i + 4 * ks, 48 + 8 * i + 4 * ks, ks == 0)
        a("v_cmp_eq_u32 s[%d:%d], 1, v7", S_TMP, S_TMP + 1)
        a("v_cmp_eq_u32 s[%d:%d], 2, v7", S_TMP + 2, S_TMP + 3)
        a("v_cmp_eq_u32 vcc, 3, v7")
        a("s_nop 7")
        for i in range(2):
            a("v_cndmask_b32 v%d, v%d, v%d, s[%d:%d]", 81 + 8 * i, 84 + 8 * i, 85 + 8 * i, S_TMP, S_TMP + 1)
            a("v_cndmask_b32 v%d, v%d, v%d, s[%d:%d]", 81 + 8 * i, 81 + 8 * i, 86 + 8 * i, S_TMP + 2, S_TMP + 3)
            a("v_cndmask_b32 v%d, v%d, v%d, vcc", 81 + 8 * i, 81 + 8 * i, 87 + 8 * i)
        a("s_mov_b32 exec_lo, 0x00f0000f")
        a("s_mov_b32 exec_hi, 0xf0000f00")
        for i in range(2):
            a("buffer_store_dwordx2 v[%d:%d], v22, s[20:23], 0 offen offset:%d sc1", 80 + 8 * i, 81 + 8 * i, 128 * i)
        a("s_mov_b32 exec_lo, 0x00010001")
        a("s_mov_b32 exec_hi, 0x00010001")
        for i in range(3):
            a("s_mul_i32 s%d, s%d, 3", S_TMP + 2, S_W)
            a("s_add_u32 s%d, s%d, %d", S_TMP + 2, S_TMP + 2, i)
            a("s_lshr_b32 s%d, s%d, 2", S_TMP + 3, S_TMP + 2)
            a("s_lshl_b32 s%d, s%d, 12", S_TMP + 3, S_TMP + 3)
            a("s_and_b32 s%d, s%d, 3", S_TMP + 2, S_TMP + 2)
            a("s_lshl_b32 s%d, s%d, 6", S_TMP + 2, S_TMP + 2)
            a("s_add_u32 s%d, s%d, s%d", S_TMP + 2, S_TMP + 2, S_TMP + 3)
            a("buffer_store_dwordx4 v[%d:%d], v21, s[56:59], s%d offen sc1", 68 + 4 * i, 71 + 4 * i, S_TMP + 2)
        a("s_mov_b64 exec, -1")
        a("s_or_b32 s%d, s%d, s%d", S_TMP, S_TA, S_TB)
        a("s_or_b32 s%d, s%d, s%d", S_TMP, S_TMP, S_W)
        a("s_cmp_lg_u32 s%d, 0", S_TMP)
        a("s_cbranch_scc1 %s_nocr", name)
        a("v_lshlrev_b32 v21, 8, v2")
        a("v_mov_b32 v22, 0")
        for area in (0, LOFF):
            srd(a, 84, 4, WS["CNT"] + area, CNT_BYTES)
            a("buffer_store_dword v22, v21, s[84:87], 0 offen sc1")
        a.label(name + "_nocr")
    def arrive():
        a("v_mov_b32 v21, 0")
        a("v_mov_b32 v22, 1")
        a("s_mov_b64 exec, 1")
        a("buffer_atomic_add v22, v21, s[60:63], 0 offen sc1")
        a("s_mov_b64 exec, -1")
    def poll_issue():
        a("v_mov_b32 v21, 0")
        a("buffer_load_dword v23, v21, s[60:63], 0 offen sc1")
    def poll_check():
        a("s_cmp_eq_u32 s%d, 0x7fff", S_H3)
        a("s_cbranch_scc1 %s_polled", name)
        a("s_mov_b32 s%d, 0x20000", S_TMP + 1)
        a("v_mov_b32 v21, 0")
        a("s_waitcnt vmcnt(22)")
        a.label(name + "_poll")
        a("v_readfirstlane_b32 s%d, v23", S_TMP)
        a("s_sub_u32 s%d, s%d, 1", S_TMP + 1, S_TMP + 1)
        a("s_cmp_eq_u32 s%d, 0", S_TMP + 1)
        a("s_cbranch_scc1 %s_polled", name)
        a("s_cmp_ge_u32 s%d, 256", S_TMP)
        a("s_cbranch_scc1 %s_polled", name)
        a("s_sleep 8")
        a("buffer_load_dword v23, v21, s[60:63], 0 offen sc1")
        a("s_waitcnt vmcnt(0)")
        a("s_branch %s_poll", name)
        a.label(name + "_polled")
    def st_loads():
        a("s_lshl_b32 s%d, s%d, 6", S_TMP, S_W)
        a("v_add_u32 v21, s%d, v2", S_TMP)
        a("s_lshl_b32 s%d, s%d, 7", S_TMP + 1, S_TB)
        a("s_sub_u32 s%d, s%d, 16", S_TMP + 1, S_TMP + 1)
        a("v_add_u32 v3, s%d, v21", S_TMP + 1)
        a("v_max_i32 v3, 0, v3")
        a("v_min_u32 v3, 2047, v3")
        a("v_lshlrev_b32 v3, 3, v3")
        a("s_min_u32 s%d, s%d, 2", S_TMP, S_W)
        a("s_lshl_b32 s%d, s%d, 12", S_TMP, S_TMP)
        a("s_lshl_b32 s%d, s%d, 8", S_TMP + 1, S_TA)
        a("s_add_u32 s%d, s%d, s%d", S_TMP, S_TMP, S_TMP + 1)
        a("v_lshl_add_u32 v4, v2, 2, s%d", S_TMP)
        for k in range(16):
            a("s_mov_b32 s%d, %d", S_TMP, k * 16384)
            a("buffer_load_dwordx2 v[%d:%d], v3, s[20:23], s%d offen sc1", 24 + 2 * k, 25 + 2 * k, S_TMP)
            a("s_mov_b32 s%d, %d", S_TMP + 1, k * 3072 * 4)
            a("buffer_load_dword v%d, v4, s[56:59], s%d offen sc1", 56 + k, S_TMP + 1)
    def st_use():
        for st in (8, 4, 2, 1):
            for k in range(st):
                a("v_pk_add_f32 v[%d:%d], v[%d:%d], v[%d:%d]", 24 + 2 * k, 25 + 2 * k, 24 + 2 * k, 25 + 2 * k, 24 + 2 * (k + st), 25 + 2 * (k + st))
                a("v_add_f32 v%d, v%d, v%d", 56 + k, 56 + k, 56 + k + st)
        a("v_mul_f32 v24, 0x%x, v24", f32(1.0 / 1024))
        a("v_mul_f32 v25, 0x%x, v25", f32(1.0 / 1024))
        a("v_fma_f32 v25, -v24, v24, v25")
        a("v_max_f32 v25, 0, v25")
        round_bf16_scalar(a, 24)
        round_bf16_scalar(a, 25)
        a("v_add_f32 v25, 0x%x, v25", f32(1e-5))
        round_bf16_scalar(a, 25)
        a("v_sqrt_f32 v25, v25")
        a("s_nop 0")
        round_bf16_scalar(a, 25)
        a("v_rcp_f32 v26, v25")
        a("v_lshlrev_b32 v3, 3, v21")
        a("v_lshlrev_b32 v4, 2, v21")
        a("v_mul_f32 v27, -v24, v26")
        a("v_cmp_gt_u32 vcc, 144, v21")
        a("s_and_saveexec_b64 s[%d:%d], vcc", S_TMP, S_TMP + 1)
        a("v_add_u32 v3, %d, v3", LST)
        a("ds_write_b64 v3, v[26:27]")
        a("s_mov_b64 exec, s[%d:%d]", S_TMP, S_TMP + 1)
        a("v_cmp_gt_u32 vcc, 192, v21")
        a("s_and_saveexec_b64 s[%d:%d], vcc", S_TMP, S_TMP + 1)
        a("v_add_u32 v4, %d, v4", LCS)
        a("ds_write_b32 v4, v56")
        a("s_mov_b64 exec, s[%d:%d]", S_TMP, S_TMP + 1)
        a("s_waitcnt lgkmcnt(0)")
    def tail():
        poll_check()
        a("s_waitcnt vmcnt(11)")
        a("s_barrier")
        st_loads()
        a("s_waitcnt vmcnt(32)")
        a("s_barrier")
        a("s_waitcnt vmcnt(0)")
        st_use()
        a("s_barrier")
        srd(a, 20, 4, WS["EX"], ST_BYTES)
        a("s_lshl_b32 s%d, s%d, 4", S_TMP, S_TA)
        a("s_add_u32 s%d, s%d, s%d", S_TMP, S_TMP, S_TB)
        a("s_lshl_b32 s%d, s%d, 10", S_TMP, S_TMP)
        a("s_lshl_b32 s%d, s%d, 8", S_TMP + 1, S_W)
        a("s_add_u32 s%d, s%d, s%d", S_TMP, S_TMP, S_TMP + 1)
        a("v_lshlrev_b32 v3, 2, v2")
        a("v_mov_b32 v4, -1")
        a("buffer_store_dword v4, v3, s[20:23], s%d offen sc1", S_TMP)
        a("s_cmp_eq_u32 s%d, 0", S_DIST)
        a("s_cbranch_scc1 %s_nopf", name)
        srd(a, 20, 18, 0, 1024 * 1024 * 2)
        a("s_lshl_b32 s%d, s2, 13", S_TMP)
        a("s_lshl_b32 s%d, s%d, 11", S_TMP + 1, S_W)
        a("s_add_u32 s%d, s%d, s%d", S_TMP, S_TMP, S_TMP + 1)
        a("v_lshlrev_b32 v3, 4, v2")
        a("buffer_load_dwordx4 v[120:123], v3, s[20:23], s%d offen", S_TMP)
        a("buffer_load_dwordx4 v[120:123], v3, s[20:23], s%d offen offset:1024", S_TMP)
        a.label(name + "_nopf")
    if not prev_cut(name):
        a("s_cmp_eq_u32 s%d, 0", S_LAYER)
        a("s_cbranch_scc1 %s_dep_ok", name)
        a("s_add_u32 s%d, s%d, %d", S_TMP, S_TB, C41)
        a("s_lshl_b32 s%d, s%d, 8", S_TMP, S_TMP)
        a("s_sub_u32 s%d, s%d, 256", S_TMP + 2, S_TMP)
        a("s_max_u32 s%d, s%d, %d", S_TMP + 2, S_TMP + 2, C41 * 256)
        wait_counters(a, name + "_dep", 16, 16)
    loader_loop(a, name, issue, 11, N, S, stage, tail=tail,
                events=[(S_H1, 5, slice_stats), (S_H2, 1, arrive), (S_H3, 1, poll_issue)])
    a("s_add_u32 s%d, s%d, 4", S_W, S_W)
    a("s_branch %s_attn", name)

    a.label(name + "_compute")
    if OPT.get("cw", 1):
        a("s_lshr_b32 s%d, s2, 4", S_TMP)
        a("s_or_b32 s%d, s%d, s%d", S_TMP, S_TMP, S_LAYER)
        a("s_cmp_lg_u32 s%d, 0", S_TMP)
        a("s_cbranch_scc1 %s_nocw", name)
        a("s_getpc_b64 s[%d:%d]", S_TMP, S_TMP + 1)
        a.label("cw_pc")
        a("s_mul_i32 s%d, s%d, %d", S_TMP + 2, S_W, 5 * 1024)
        a("v_lshl_add_u32 v3, v2, 4, s%d", S_TMP + 2)
        for k in range(5):
            a("v_min_u32 v4, code_end-cw_pc-16, v3")
            a("global_load_dwordx4 v[216:219], v4, s[%d:%d]", S_TMP, S_TMP + 1)
            a("v_add_u32 v3, 0x400, v3")
        a.label(name + "_nocw")
    na, nb = 6, 5
    ACC = 24
    acc = lambda i, j: ACC + 4 * (i * 4 + j) if j < 4 else ACC + 96 + 4 * (i - 4)
    nacc = 104
    FR = ACC + nacc
    fset = (na + nb) * 4
    fA = lambda st, i: FR + st * fset + 4 * i
    fB = lambda st, j: FR + st * fset + 4 * na + 4 * j
    VTOP = FR + 2 * fset
    SHD, SSH = S_TMP + 4, S_TMP + 5
    a("s_and_b32 s%d, s%d, 1", SHD, S_W)
    a("s_lshr_b32 s%d, s%d, 1", SSH, S_W)
    AR = 10
    def part_of(c, unit):
        if c == 0:
            a("s_mov_b32 s%d, 0", S_TMP + 3)
        else:
            a("s_xor_b32 s%d, s%d, %d", S_TMP + 3, SSH, 1 if c == 1 else 0)
            a("s_add_u32 s%d, s%d, 1", S_TMP + 3, S_TMP + 3)
            a("s_mul_i32 s%d, s%d, %d", S_TMP + 3, S_TMP + 3, unit)
    a("s_lshl_b32 s%d, s%d, 1", S_TMP + 2, SHD)
    for c in range(3):
        part_of(c, 8192)
        for i in range(2):
            read_addr_km(a, 64, S_TMP + 3, S_TMP + 2, i, AR + 2 * c + i)
    adA = [AR + i for i in range(6)]
    a("s_mul_i32 s%d, s%d, 64", S_TMP + 2, SSH)
    a("s_add_u32 s%d, s%d, 16", S_TMP + 2, S_TMP + 2)
    read_addrs_kc(a, XB, S_TMP + 2, AR + 6)
    read_addrs_kc(a, XB, None, AR + 8)
    adB, adH = [AR + 6, AR + 7], [AR + 8, AR + 9]
    for r in range(nacc): a("v_mov_b32 v%d, 0", ACC + r)
    for r in range(fset): a("v_mov_b32 v%d, 0", FR + fset + r)
    compute_loop_ctl_init(a, N, S, stage)
    if OPT.get("cprio"): a("s_setprio %d", OPT["cprio"])
    a("s_waitcnt lgkmcnt(0)")
    stamp(a, 1)
    ws_adjust(a)
    def mf(st):
        L = [(i, j) for i in range(6) for j in range(4)] + [(4, 4), (5, 4)]
        return ["v_mfma_f32_16x16x32_bf16 v[%d:%d], v[%d:%d], v[%d:%d], v[%d:%d]" %
                (acc(i, j), acc(i, j) + 3, fA(st, i), fA(st, i) + 3, fB(st, j), fB(st, j) + 3, acc(i, j), acc(i, j) + 3)
                for (i, j) in L]
    def rd(st, ks):
        L = []
        L += frag_reads("km", 64, adA, 0, ks, fA(st, 0))
        for j in range(4): L += frag_reads("kc", 0, adB, j, ks, fB(st, j))
        for i in range(1, 6): L += frag_reads("km", 64, adA, i, ks, fA(st, i))
        L += frag_reads("kc", 0, adH, 0, ks, fB(st, 4))
        return L
    cloop(a, name, mf, rd, adA + adB + adH, S, stage)
    a("s_barrier")
    SB = FR
    a("v_lshlrev_b32 v3, 3, v8")
    a("v_add_u32 v4, %d, v3", LST)
    a("s_mul_i32 s%d, s%d, 512", S_TMP, SSH)
    a("s_add_u32 s%d, s%d, %d", S_TMP, S_TMP, LST + 128)
    a("v_add_u32 v3, s%d, v3", S_TMP)
    for j in range(4): a("ds_read_b64 v[%d:%d], v3 offset:%d", SB + 2 * j, SB + 2 * j + 1, j * 128)
    a("ds_read_b64 v[%d:%d], v4", SB + 8, SB + 9)
    a("s_lshl_b32 s%d, s%d, 7", S_TMP, SHD)
    a("s_add_u32 s%d, s%d, %d", S_TMP, S_TMP, LCS)
    a("v_lshl_add_u32 v3, v5, 4, s%d", S_TMP)
    for c in range(3):
        part_of(c, 256)
        a("v_add_u32 v4, s%d, v3", S_TMP + 3)
        for i in range(2):
            a("ds_read_b128 v[%d:%d], v4 offset:%d", SB + 12 + 4 * (2 * c + i), SB + 15 + 4 * (2 * c + i), i * 64)
    a("v_and_b32 v3, 1, v5")
    a("v_lshlrev_b32 v3, 1, v3")
    a("v_lshrrev_b32 v4, 1, v5")
    a("v_add_u32 v3, v3, v4")
    a("s_lshl_b32 s%d, s%d, 2", S_TMP, SHD)
    a("v_add_u32 v3, s%d, v3", S_TMP)
    a("v_lshrrev_b32 v4, 1, v8")
    a("v_xor_b32 v3, v3, v4")
    a("v_lshlrev_b32 v3, 4, v3")
    a("v_lshl_add_u32 v3, v8, 7, v3")
    a("s_mul_i32 s%d, s%d, %d", S_TMP + 2, SSH, 64 * 128)
    a("s_add_u32 s%d, s%d, %d", S_TMP + 2, S_TMP + 2, E + 16 * 128)
    for c in range(3):
        part_of(c, REG)
        a("s_add_u32 s%d, s%d, s%d", S_TMP, S_TMP + 2, S_TMP + 3)
        a("v_add_u32 v%d, s%d, v3", AR + c, S_TMP)
    a("s_add_u32 s%d, s%d, %d", S_TMP, S_TMP + 3, E)
    a("v_add_u32 v%d, s%d, v3", AR + 3, S_TMP)
    a("s_waitcnt lgkmcnt(0)")
    k = 0
    TV = SB + 36
    pr = lambda r: "v[%d:%d]" % (r, r + 1)
    for c in range(3):
        for j in range(5 if c == 2 else 4):
            c0_, c1_ = acc(2 * c, j), acc(2 * c + 1, j)
            d = TV + 8 + 4 * (k & 3); k += 1
            prs = [(c0_, SB + 12 + 8 * c), (c0_ + 2, SB + 14 + 8 * c), (c1_, SB + 16 + 8 * c), (c1_ + 2, SB + 18 + 8 * c)]
            for q, (x, cs) in enumerate(prs):
                a("v_pk_mul_f32 %s, %s, %s op_sel:[0,1] op_sel_hi:[1,1]", pr(TV + 2 * q), pr(cs), pr(SB + 2 * j))
            for q, (x, cs) in enumerate(prs):
                a("v_pk_fma_f32 %s, %s, %s, %s op_sel:[0,0,0] op_sel_hi:[1,0,1]", pr(x), pr(x), pr(SB + 2 * j), pr(TV + 2 * q))
            a("v_cvt_pk_bf16_f32 v%d, v%d, v%d", d, c0_, c0_ + 1)
            a("v_cvt_pk_bf16_f32 v%d, v%d, v%d", d + 1, c0_ + 2, c0_ + 3)
            a("v_cvt_pk_bf16_f32 v%d, v%d, v%d", d + 2, c1_, c1_ + 1)
            a("v_cvt_pk_bf16_f32 v%d, v%d, v%d", d + 3, c1_ + 2, c1_ + 3)
            a("s_nop 1")
            a("v_permlane16_swap_b32 v%d, v%d", d, d + 2)
            a("v_permlane16_swap_b32 v%d, v%d", d + 1, d + 3)
            if j < 4:
                a("ds_write_b128 v%d, v[%d:%d] offset:%d", AR + c, d, d + 3, j * 2048)
            else:
                a("ds_write_b128 v%d, v[%d:%d]", AR + 3, d, d + 3)
    a("s_waitcnt lgkmcnt(0)")

    a.label(name + "_attn")
    srd(a, 16, 4, WS["O"], ACT_BYTES)
    a("s_and_b32 s%d, s%d, 1", SHD, S_W)
    SU = S_TMP + 5
    a("s_lshr_b32 s%d, s%d, 1", SU, S_W)
    a("s_lshl_b32 s%d, s%d, 2", S_TMP, SHD)
    a("v_add_u32 v3, s%d, v5", S_TMP)
    a("v_and_b32 v4, 7, v8")
    a("v_xor_b32 v3, v3, v4")
    a("v_lshlrev_b32 v3, 4, v3")
    a("v_lshl_add_u32 v3, v8, 8, v3")
    a("s_mul_i32 s%d, s%d, %d", S_TMP + 1, SU, 32 * 128)
    a("s_add_u32 s%d, s%d, %d", S_TMP + 1, S_TMP + 1, E)
    a("v_add_u32 v10, s%d, v3", S_TMP + 1)
    a("v_lshl_add_u32 v3, v5, 2, v6")
    a("v_and_b32 v4, 7, v3")
    a("v_add_u32 v12, s%d, v7", S_TMP)
    a("v_xor_b32 v4, v4, v12")
    a("v_lshlrev_b32 v4, 4, v4")
    a("v_lshl_add_u32 v3, v3, 8, v4")
    a("s_add_u32 s%d, s%d, %d", S_TMP + 1, S_TMP + 1, 2 * REG)
    a("v_add_u32 v11, s%d, v3", S_TMP + 1)
    a("v_and_b32 v3, 7, v8")
    a("v_add_u32 v4, 1, v3")
    a("s_or_b32 s%d, s%d, s%d", S_TMP, S_TB, SU)
    a("s_cmp_eq_u32 s%d, 0", S_TMP)
    a("s_cselect_b32 s%d, 8, 0", S_TMP)
    a("v_cmp_gt_u32 vcc, 8, v8")
    a("v_mov_b32 v16, s%d", S_TMP)
    a("s_mov_b64 s[56:57], vcc")
    a("v_cndmask_b32 v16, 0, v16, vcc")
    a("v_max_u32 v4, v4, v16")
    a("v_add_u32 v3, 8, v3")
    a("v_sub_u32 v3, v3, v4")
    a("v_lshlrev_b32 v16, 2, v5")
    a("v_sub_u32 v16, v16, v4")
    a("v_mov_b32 v17, 0xf149f2ca")
    for r in range(4):
        a("v_add_u32 v18, %d, v16", r)
        a("v_cmp_ge_u32 vcc, v3, v18")
        a("s_nop 1")
        a("v_cndmask_b32 v%d, v17, 0, vcc", 12 + r)
    a("s_lshl_b32 s%d, s%d, 7", S_TMP, S_TB)
    a("s_lshl_b32 s%d, s%d, 5", S_TMP + 1, SU)
    a("s_add_u32 s%d, s%d, s%d", S_TMP, S_TMP, S_TMP + 1)
    a("s_lshl_b32 s%d, s%d, 11", S_TMP, S_TMP)
    a("s_lshl_b32 s%d, s%d, 7", S_TMP + 1, S_TA)
    a("s_add_u32 s%d, s%d, s%d", S_TMP, S_TMP, S_TMP + 1)
    a("s_lshl_b32 s%d, s%d, 6", S_TMP + 1, SHD)
    a("s_add_u32 s%d, s%d, s%d", S_TMP, S_TMP, S_TMP + 1)
    a("v_lshlrev_b32 v9, 12, v8")
    a("v_lshl_add_u32 v9, v5, 4, v9")
    a("v_add_u32 v9, s%d, v9", S_TMP)
    a("s_mov_b32 s58, 0x%x", f32(32 ** -0.5))
    a("s_mov_b32 s59, 0x%x", f32(math.log2(math.e)))
    a("s_barrier")
    stamp(a, 5)
    if OPT.get("stamp"): a("s_waitcnt lgkmcnt(0)")
    def blk(p): return 24 + 48 * p
    for p in range(2):
        b = blk(p)
        a("ds_read_b128 v[%d:%d], v10 offset:%d", b, b + 3, 2048 + 128 * p)
        a("ds_read_b128 v[%d:%d], v10 offset:%d", b + 4, b + 7, REG + 128 * p)
        a("ds_read_b128 v[%d:%d], v10 offset:%d", b + 8, b + 11, REG + 2048 + 128 * p)
    for p in range(2):
        b = blk(p)
        for dt in range(2):
            for bb in range(2):
                d = b + 12 + 4 * dt + 2 * bb
                a("ds_read_b64_tr_b16 v[%d:%d], v11 offset:%d", d, d + 1, 128 * p + 2048 * bb + 8 * dt)
    a("s_waitcnt lgkmcnt(8)")
    for p in range(2):
        b = blk(p)
        a("v_mfma_f32_16x16x32_bf16 v[%d:%d], v[%d:%d], v[%d:%d], 0", b + 20, b + 23, b + 4, b + 7, b, b + 3)
        a("v_mfma_f32_16x16x32_bf16 v[%d:%d], v[%d:%d], v[%d:%d], 0", b + 24, b + 27, b + 8, b + 11, b, b + 3)
    a("s_nop 7")
    both = lambda f: [f(blk(p)) for p in range(2)]
    for p in range(2):
        b = blk(p)
        for r in range(4):
            a("v_cndmask_b32 v%d, v%d, v%d, s[56:57]", b + 20 + r, b + 24 + r, b + 20 + r)
    for p in range(2):
        b = blk(p)
        a("v_cvt_pk_bf16_f32 v%d, v%d, v%d", b + 24, b + 20, b + 21)
        a("v_cvt_pk_bf16_f32 v%d, v%d, v%d", b + 25, b + 22, b + 23)
    for p in range(2):
        b = blk(p)
        for q in range(2):
            a("v_lshlrev_b32 v%d, 16, v%d", b + 20 + 2 * q, b + 24 + q)
            a("v_and_b32 v%d, 0xffff0000, v%d", b + 21 + 2 * q, b + 24 + q)
    for p in range(2):
        b = blk(p)
        for r in range(4): a("v_mul_f32 v%d, s58, v%d", b + 20 + r, b + 20 + r)
    for p in range(2):
        b = blk(p)
        a("v_cvt_pk_bf16_f32 v%d, v%d, v%d", b + 24, b + 20, b + 21)
        a("v_cvt_pk_bf16_f32 v%d, v%d, v%d", b + 25, b + 22, b + 23)
    for p in range(2):
        b = blk(p)
        for q in range(2):
            a("v_lshlrev_b32 v%d, 16, v%d", b + 20 + 2 * q, b + 24 + q)
            a("v_and_b32 v%d, 0xffff0000, v%d", b + 21 + 2 * q, b + 24 + q)
    for p in range(2):
        b = blk(p)
        for r in range(4): a("v_fma_f32 v%d, v%d, s59, v%d", b + 20 + r, b + 20 + r, 12 + r)
    for p in range(2):
        b = blk(p)
        a("v_max3_f32 v%d, v%d, v%d, v%d", b + 24, b + 20, b + 21, b + 22)
    for p in range(2):
        b = blk(p)
        a("v_max_f32 v%d, v%d, v%d", b + 24, b + 24, b + 23)
    def xreduce(op, off):
        for sw in ("v_permlane16_swap_b32", "v_permlane32_swap_b32"):
            for p in range(2):
                b = blk(p)
                a("v_mov_b32 v%d, v%d", b + off + 1, b + off)
            a("s_nop 1")
            for p in range(2):
                b = blk(p)
                a("%s v%d, v%d", sw, b + off, b + off + 1)
            a("s_nop 0")
            for p in range(2):
                b = blk(p)
                a("%s v%d, v%d, v%d", op, b + off, b + off, b + off + 1)
    xreduce("v_max_f32", 24)
    for p in range(2):
        b = blk(p)
        for r in range(4): a("v_sub_f32 v%d, v%d, v%d", b + 20 + r, b + 20 + r, b + 24)
    for p in range(2):
        b = blk(p)
        for r in range(4): a("v_exp_f32 v%d, v%d", b + 20 + r, b + 20 + r)
    for p in range(2):
        b = blk(p)
        a("v_add_f32 v%d, v%d, v%d", b + 24, b + 20, b + 21)
        a("v_add_f32 v%d, v%d, v%d", b + 25, b + 22, b + 23)
    for p in range(2):
        b = blk(p)
        a("v_add_f32 v%d, v%d, v%d", b + 24, b + 24, b + 25)
    xreduce("v_add_f32", 24)
    for p in range(2):
        b = blk(p)
        a("v_rcp_f32 v%d, v%d", b + 24, b + 24)
    a("s_nop 0")
    for p in range(2):
        b = blk(p)
        for r in range(4): a("v_mul_f32 v%d, v%d, v%d", b + 20 + r, b + 20 + r, b + 24)
    for p in range(2):
        b = blk(p)
        a("v_cvt_pk_bf16_f32 v%d, v%d, v%d", b + 24, b + 20, b + 21)
        a("v_cvt_pk_bf16_f32 v%d, v%d, v%d", b + 25, b + 22, b + 23)
    for p in range(2):
        b = blk(p)
        a("v_cndmask_b32 v%d, 0, v%d, s[56:57]", b + 28, b + 24)
        a("v_cndmask_b32 v%d, 0, v%d, s[56:57]", b + 29, b + 25)
        a("v_cndmask_b32 v%d, v%d, 0, s[56:57]", b + 30, b + 24)
        a("v_cndmask_b32 v%d, v%d, 0, s[56:57]", b + 31, b + 25)
    a("s_waitcnt lgkmcnt(0)")
    a("s_nop 0")
    for p in range(2):
        b = blk(p)
        for dt in range(2):
            a("v_mfma_f32_16x16x32_bf16 v[%d:%d], v[%d:%d], v[%d:%d], 0", b + 32 + 4 * dt, b + 35 + 4 * dt,
              b + 12 + 4 * dt, b + 15 + 4 * dt, b + 28, b + 31)
    a("s_nop 7")
    for p in range(2):
        b = blk(p)
        for q in range(4):
            a("v_cvt_pk_bf16_f32 v%d, v%d, v%d", b + 40 + q, b + 32 + 2 * q, b + 33 + 2 * q)
        a("buffer_store_dwordx4 v[%d:%d], v9, s[16:19], 0 offen offset:%d%s", b + 40, b + 43, 2048 * p, STF())
    stamp(a, 6)
    stamp_flush(a, name, 7)
    if not next_cut(name):
        finish(a, name, lambda a: (a("s_add_u32 s%d, s%d, %d", S_TMP, S_TB, C12), a("s_lshl_b32 s%d, s%d, 8", S_TMP, S_TMP)))
    a.label(name + "_done")
    a("s_endpgm")
    assert VTOP == 216
    GEMM_VTOP[name] = VTOP + 4
    return LCS + 768

def build():
    body = Asm()
    for c in str(OPT.get("cuts", "")).split("_"):
        if c: CUTS.add(c)
    def wm(a, ka, da, kb, db):
        a("s_cmp_eq_u32 s%d, 0", S_LAYER)
        a("s_cselect_b32 s%d, %d, %d", S_WM, OPT.get(ka, da) - 1, OPT.get(kb, db) - 1)
    def slot(a, sreg, base, shift=0):
        a("s_lshr_b32 s%d, s%d, %d", S_TMP, sreg, shift)
        a("s_add_u32 s%d, s%d, %d", S_TMP, S_TMP, base)
        a("s_lshl_b32 s%d, s%d, 8", S_TMP, S_TMP)
        a("s_mov_b32 s%d, s%d", S_TMP + 2, S_TMP)
    lds = {}
    lds["g1"] = gen_g1(body, "g1", W=OPT.get("W1", 2))

    def g2_ptrs(a, ph):
        if ph == 0:
            a("s_load_dwordx2 s[4:5], s[0:1], %d", ARG["ws"])
            a("s_load_dwordx2 s[6:7], s[0:1], %d", ARG["x"])
            a("s_load_dwordx2 s[30:31], s[0:1], %d", ARG["wo"])
        elif ph == "L":
            srd(a, 8, 30, 0, 1024 * 1024 * 2)
            srd(a, 12, 4, WS["O"], ACT_BYTES)
        else:
            sel_ptr(a, 20, 1, WS["X2"])
            srd(a, 16, 4, WS["X1"], ACT_BYTES)
            srd(a, 56, 4, WS["H"], 2048 * LDH)
            srd(a, 60, 4, WS["EX"], ST_BYTES)
    def g2_decode(a):
        a("s_and_b32 s%d, s2, 3", S_TMP)
        a("s_lshl_b32 s%d, s%d, 2", S_TMP, S_TMP)
        a("s_bfe_u32 s%d, s2, 0x20003", S_TMP + 1)
        a("s_add_u32 s%d, s%d, s%d", S_TB, S_TMP, S_TMP + 1)
        a("s_bfe_u32 s%d, s2, 0x10002", S_TMP)
        a("s_lshl_b32 s%d, s%d, 3", S_TMP, S_TMP)
        a("s_lshr_b32 s%d, s2, 5", S_TMP + 2)
        a("s_add_u32 s%d, s%d, s%d", S_TA, S_TMP, S_TMP + 2)
        a("s_add_u32 s%d, s%d, s%d", S_J, S_TMP + 1, S_TMP + 2)
        a("s_mov_b32 s%d, 0", S_KB)
    lds["g2"] = gen_gemm(body, "g2", 256, Op("km", 64, 2048), Op("kc", 128, 2048), 1, 4, 16, 4, OPT.get("W2", 2), g2_ptrs, g2_decode,
                         "resid", "ln2", 2048, cnt=lambda a: slot(a, S_TA, C23, 1),
                         dep=lambda a: (slot(a, S_TB, C12), wait_counters(a, "g2_dep", 16, 16)))

    def g3_ptrs(a, ph):
        if ph == 0:
            a("s_load_dwordx2 s[4:5], s[0:1], %d", ARG["ws"])
            a("s_load_dwordx2 s[30:31], s[0:1], %d", ARG["w1"])
            a("s_load_dwordx2 s[6:7], s[0:1], %d", ARG["b1"])
        elif ph == "L":
            srd(a, 8, 30, 0, 2048 * 3584 * 2)
            srd(a, 12, 4, WS["H"], 2048 * LDH)
        else:
            srd(a, 20, 6, 0, 3584 * 2)
            srd(a, 16, 4, WS["U"], 1024 * LDU)
    def g3_decode(a):
        a("s_and_b32 s%d, s2, 1", S_TMP)
        a("s_lshl_b32 s%d, s%d, 2", S_TMP, S_TMP)
        a("s_bfe_u32 s%d, s2, 0x20003", S_TMP + 1)
        a("s_add_u32 s%d, s%d, s%d", S_TB, S_TMP, S_TMP + 1)
        a("s_bfe_u32 s%d, s2, 0x20001", S_TMP)
        a("s_mul_i32 s%d, s%d, 7", S_TMP, S_TMP)
        a("s_lshr_b32 s%d, s2, 5", S_TMP + 2)
        a("s_add_u32 s%d, s%d, s%d", S_TA, S_TMP, S_TMP + 2)
        a("s_add_u32 s%d, s%d, s%d", S_J, S_TMP + 1, S_TMP + 2)
        a("s_mov_b32 s%d, 0", S_KB)
        wm(a, "W3a", 4, "W3b", 2)
    def g3_cnt(a):
        a("s_cmp_ge_u32 s%d, 14", S_TA)
        a("s_cselect_b32 s%d, %d, %d", S_TMP, C34 + 1, C34)
        a("s_lshl_b32 s%d, s%d, 1", S_TMP + 1, S_TB)
        a("s_add_u32 s%d, s%d, s%d", S_TMP, S_TMP, S_TMP + 1)
        a("s_lshl_b32 s%d, s%d, 8", S_TMP, S_TMP)
    def g3_spare(a):
        a("s_cmp_ge_u32 s2, 256")
        a("s_cbranch_scc1 g3_done")
        a("s_load_dwordx2 s[4:5], s[0:1], %d", ARG["ws"])
        a("s_load_dwordx2 s[6:7], s[0:1], %d", ARG["w2"])
        a("s_sub_u32 s3, s2, 224")
        a("v_lshrrev_b32 v2, 6, v0")
        a("v_lshlrev_b32 v1, 4, v0")
        for r in range(4): a("v_mov_b32 v%d, -1", 8 + r)
        a("v_readfirstlane_b32 s%d, v2", S_W)
        a("s_lshl_b32 s13, s3, 17")
        a("s_waitcnt lgkmcnt(0)")
        ws_adjust(a)
        srd(a, 8, 4, WS["PART"], PART_BYTES)
        for k in range(16):
            a("buffer_store_dwordx4 v[8:11], v1, s[8:11], s13 offen sc1")
            a("s_add_u32 s13, s13, 8192")
        if not next_cut("g3"):
            a("s_mov_b32 s%d, %d", S_TMP, CR * 256)
            count_in(a, "g3_spare_cin")
        a("s_cmp_lg_u32 s%d, 0", S_LAYER)
        a("s_cbranch_scc1 g3_spare_end")
        if OPT.get("pf", 1):
            srd(a, 8, 6, 0, 3584 * 2048 * 2)
            a("s_cmp_ge_u32 s3, 16")
            a("s_cselect_b32 s12, %d, 0", (1792 - 1024) * 4096)
            a("s_lshl_b32 s3, s3, 18")
            a("s_add_u32 s3, s3, s12")
            a("s_mov_b32 s12, 4")
            a.label("g3_spare_loop")
            for k in range(8):
                a("buffer_load_dwordx4 v[4:7], v1, s[8:11], s3 offen")
                a("s_add_u32 s3, s3, 8192")
            a("s_waitcnt vmcnt(8)")
            a("s_sub_u32 s12, s12, 1")
            a("s_cmp_lg_u32 s12, 0")
            a("s_cbranch_scc1 g3_spare_loop")
            a("s_waitcnt vmcnt(0)")
        a.label("g3_spare_end")
        if next_cut("g3"): a("s_endpgm")
        else: go_next(a, "g3")
    lds["g3"] = gen_gemm(body, "g3", 224, Op("km", 128, 7168), Op("km", 128, LDH), 2, 2, 32, 4, "s", g3_ptrs, g3_decode,
                         "biasA", "gelu", LDU, spare=g3_spare, cnt=g3_cnt,
                         dep=lambda a: (slot(a, S_TB, C23), wait_counters(a, "g3_dep", 32, 32)))

    def g4_ptrs(a, ph):
        if ph == 0:
            a("s_load_dwordx2 s[4:5], s[0:1], %d", ARG["ws"])
            a("s_load_dwordx2 s[6:7], s[0:1], %d", ARG["out"])
            a("s_load_dwordx2 s[30:31], s[0:1], %d", ARG["w2"])
            a("s_load_dwordx2 s[34:35], s[0:1], %d", ARG["b2"])
        elif ph == "L":
            srd(a, 8, 4, WS["U"], 1024 * LDU)
            srd(a, 12, 30, 0, 3584 * 2048 * 2)
        else:
            srd(a, 20, 4, WS["X1"], ACT_BYTES)
            srd(a, 56, 34, 0, 4096)
            sel_ptr(a, 16, 0, LOFF + WS["X2"])
            srd(a, 60, 4, LOFF + WS["ST"], ST_BYTES)
            srd(a, 84, 4, WS["PART"], PART_BYTES)
    def g4_decode(a):
        a("s_bfe_u32 s%d, s2, 0x10001", S_TMP)
        a("s_lshl_b32 s%d, s%d, 2", S_TMP, S_TMP)
        a("s_bfe_u32 s%d, s2, 0x20003", S_TMP + 1)
        a("s_add_u32 s%d, s%d, s%d", S_TA, S_TMP, S_TMP + 1)
        a("s_bfe_u32 s%d, s2, 0x10002", S_TMP)
        a("s_lshl_b32 s%d, s%d, 3", S_TMP, S_TMP)
        a("s_lshr_b32 s%d, s2, 5", S_TMP + 2)
        a("s_add_u32 s%d, s%d, s%d", S_TB, S_TMP, S_TMP + 2)
        a("s_and_b32 s%d, s2, 1", S_ROLE)
        a("s_add_u32 s%d, s%d, s%d", S_J, S_TMP + 1, S_TMP + 2)
        a("s_lshl_b32 s%d, s%d, 4", S_PAIR, S_TA)
        a("s_add_u32 s%d, s%d, s%d", S_PAIR, S_PAIR, S_TB)
        a("s_mul_i32 s%d, s%d, 28", S_KB, S_ROLE)
        wm(a, "W4a", 4, "W4b", 2)
    def g4_dep(a):
        a("s_lshl_b32 s%d, s%d, 1", S_TMP, S_TA)
        a("s_add_u32 s%d, s%d, s%d", S_TMP, S_TMP, S_ROLE)
        a("s_add_u32 s%d, s%d, %d", S_TMP, S_TMP, C34)
        a("s_lshl_b32 s%d, s%d, 8", S_TMP, S_TMP)
        a("s_mov_b32 s%d, %d", S_TMP + 2, CR * 256)
        wait_counters(a, "g4_dep", 14, 32)
    lds["g4"] = gen_gemm(body, "g4", 256, Op("kc", 128, LDU), Op("km", 128, 4096), 2, 2, 28, 4, "s", g4_ptrs, g4_decode,
                         "resid+biasB", "plain", 2048, stats=True, split=True, cnt=lambda a: slot(a, S_TB, C41), dep=g4_dep)

    seq = [(p, ab) for ab in "ab" for p in PHASES]
    launches = []
    for k, (p, ab) in enumerate(seq):
        if k == 0 or prev_cut(p): launches.append([p + ab + "_kernel", 0, 0])
        launches[-1][1] = max(launches[-1][1], GEMM_VTOP[p])
        launches[-1][2] = max(launches[-1][2], lds[p])
    body.label("code_end")
    for kn, vt, l in launches: kernel_desc(body, kn, vt, NSGPR)
    head = open("/code/%s.s.ref" % NAME).read().split("; Override launch geometry")[0]
    lines = ["; @launch kernel=%s grid=(256,1,1) block=(512,1,1) lds=%d" % (kn, l) for kn, vt, l in launches]
    return head + "\n".join(lines) + "\n" + '.amdgcn_target "amdgcn-amd-amdhsa--gfx950"\n' + body.text()

if __name__ == "__main__":
    out = sys.argv[1] if len(sys.argv) > 1 else "/code/%s.s" % NAME
    for o in sys.argv[2:]:
        k, _, v = o.partition("=")
        OPT[k] = (int(v) if v.isdigit() and k != "cuts" else v) if v else 1
    text = build()
    open(out, "w").write(text)
    import json
    json.dump(KID, open(out + ".kid", "w"))
    hazard.check(text)
```

```python
import sys, struct, math
from asmlib import *
import hazard

NAME = "interleave_layers__sliding_local_dilated__mixer_token_mlp__prompt"
MB = 1 << 20
WS = dict(ST=0, CS=1 * MB, EX=2 * MB, CNT=3 * MB, O=4 * MB, X1=8 * MB, H=12 * MB, U=17 * MB, X2=25 * MB, PART=29 * MB)
LDH = 2304
LDU = 8192
ST_BYTES = 16 * 2048 * 8
CS_BYTES = 16 * 3072 * 4
PART_BYTES = 256 * 16384
ARG = dict(x=0, wqkv=8, wo=16, bx=24, w1=32, b1=40, w2=48, b2=56, out=64, dbg=72, ws=80)
ACT_BYTES = 2048 * 1024 * 2

OPT = {}
for _o in sys.argv[2:]:
    _k, _, _v = _o.partition('=')
    if _k == 'LDH': LDH = int(_v)
    if _k == 'LDU': LDU = int(_v)

def STF():
    return {0: "", 1: " sc1", 2: " nt", 3: " sc0 sc1", 4: " sc0 sc1 nt"}[OPT.get("stf", 1)]

def ASC():
    return " sc1" if OPT.get("asc", 1) else ""

def f32(x):
    return struct.unpack("<I", struct.pack("<f", x))[0]

LOFF = 40 * MB
STAMP_OFF = 34 * MB
KID = {}
def stamp(a, k):
    if OPT.get("stamp"):
        a("%s s[%d:%d]", "s_memtime" if OPT["stamp"] == 2 else "s_memrealtime", 64 + 2 * k, 65 + 2 * k)

def stamp_flush(a, name, n, wsreg=4, waitvm=True, extra=False):
    if not OPT.get("stamp"): return
    kid = KID.setdefault(name, len(KID))
    if waitvm: a("s_waitcnt vmcnt(0)")
    a("%s s[%d:%d]", "s_memtime" if OPT["stamp"] == 2 else "s_memrealtime", 64 + 2 * n, 65 + 2 * n)
    a("s_waitcnt lgkmcnt(0)")
    a("s_add_u32 s84, s%d, 0x%x", wsreg, STAMP_OFF + kid * 512 * 1024)
    a("s_addc_u32 s85, s%d, 0", wsreg + 1)
    a("s_mov_b32 s86, 0x80000")
    a("s_mov_b32 s87, 0x20000")
    a("v_lshrrev_b32 v1, 6, v0")
    a("v_lshlrev_b32 v1, 6, v1")
    a("s_lshl_b32 s88, s2, 9")
    a("v_add_u32 v1, s88, v1")
    for k in range(n + 1 + extra):
        a("v_mov_b32 v2, s%d", 64 + 2 * k)
        a("buffer_store_dword v2, v1, s[84:87], 0 offen offset:%d", 4 * k)
        a("s_nop 1")

def srd(a, d, p, off, nbytes):
    if off:
        a("s_add_u32 s%d, s%d, 0x%x", d, p, off)
        a("s_addc_u32 s%d, s%d, 0", d + 1, p + 1)
    else:
        a("s_mov_b32 s%d, s%d", d, p)
        a("s_mov_b32 s%d, s%d", d + 1, p + 1)
    a("s_mov_b32 s%d, 0x%x", d + 2, nbytes)
    a("s_mov_b32 s%d, 0x20000", d + 3)

def round_bf16_scalar(a, v):
    a("v_cvt_pk_bf16_f32 v%d, v%d, v%d", v, v, v)
    a("v_lshlrev_b32 v%d, 16, v%d", v, v)

class Op:
    def __init__(self, kind, T, ld):
        self.kind, self.T, self.ld = kind, T, ld
        self.bytes = T * 128
        self.n = self.bytes // 1024
        self.npw = self.n // 4
        self.kadv = 128 if kind == "kc" else 64 * ld

S_TA, S_TB, S_KB, S_J, S_W = 24, 25, 26, 27, 28
S_T, S_SLOT, S_OFA, S_OFB = 32, 33, 34, 35
S_LA, S_LB, S_M0A, S_M0B = 36, 37, 38, 39
S_TMP = 40
S_CNT, S_DELTA, S_SI = 48, 49, 50
S_ST = 52
S_DP, S_DN = 51, 29
S_N, S_ROLE, S_PAIR, S_OWN, S_OTH, S_WM = 90, 91, 92, 93, 94, 95
S_LAYER, S_LOFF = 96, 97
NSGPR = 100
C12, C23, C34, C41, CR = 0, 16, 24, 40, 56
CUTS = set()

def loader_voffs(a, op, stile, vb, extra_cols=0):
    ld = op.ld
    a("s_mov_b32 s%d, %d", S_TMP, ld)
    if op.kind == "kc":
        a("v_lshrrev_b32 v3, 3, v2")
        a("v_mul_lo_u32 v3, v3, s%d", S_TMP)
        a("v_lshrrev_b32 v4, 4, v2")
        a("v_xor_b32 v4, v4, v2")
        a("v_and_b32 v4, 7, v4")
        a("v_lshl_add_u32 v3, v4, 4, v3")
        a("s_mul_i32 s%d, s%d, %d", S_TMP + 1, stile, op.T * ld)
        a("s_mul_i32 s%d, s%d, %d", S_TMP + 2, S_W, 8 * op.npw * ld)
        a("s_add_u32 s%d, s%d, s%d", S_TMP + 1, S_TMP + 1, S_TMP + 2)
        a("v_xor_b32 v4, 64, v3")
        for i in range(op.npw):
            a("s_add_u32 s%d, s%d, %d", S_TMP + 2, S_TMP + 1, i * 8 * ld)
            a("v_add_u32 v%d, s%d, v%d", vb + i, S_TMP + 2, 3 + (i & 1))
    elif op.T == 128:
        a("v_lshrrev_b32 v4, 4, v2")
        a("v_mul_lo_u32 v3, v4, s%d", S_TMP)
        a("v_lshlrev_b32 v4, 1, v4")
        a("v_xor_b32 v4, v4, v2")
        a("v_and_b32 v4, 15, v4")
        a("v_lshl_add_u32 v3, v4, 4, v3")
        a("s_mul_i32 s%d, s%d, 256", S_TMP + 1, stile)
        a("s_mul_i32 s%d, s%d, %d", S_TMP + 2, S_W, 16 * ld)
        a("s_add_u32 s%d, s%d, s%d", S_TMP + 1, S_TMP + 1, S_TMP + 2)
        a("v_xor_b32 v4, 128, v3")
        for i in range(4):
            a("s_add_u32 s%d, s%d, %d", S_TMP + 2, S_TMP + 1, i * 4 * ld)
            a("v_add_u32 v%d, s%d, v%d", vb + i, S_TMP + 2, 3 + (i >> 1))
    elif op.T == 64:
        a("v_lshrrev_b32 v3, 3, v2")
        a("v_mul_lo_u32 v3, v3, s%d", S_TMP)
        a("v_bfe_u32 v4, v2, 4, 1")
        a("v_lshlrev_b32 v4, 1, v4")
        a("v_xor_b32 v4, v4, v2")
        a("v_and_b32 v4, 7, v4")
        a("v_lshl_add_u32 v3, v4, 4, v3")
        a("s_mul_i32 s%d, s%d, 128", S_TMP + 1, stile)
        a("s_mul_i32 s%d, s%d, %d", S_TMP + 2, S_W, 16 * ld)
        a("s_add_u32 s%d, s%d, s%d", S_TMP + 1, S_TMP + 1, S_TMP + 2)
        a("v_xor_b32 v4, 64, v3")
        for i in range(2):
            a("s_add_u32 s%d, s%d, %d", S_TMP + 2, S_TMP + 1, i * 8 * ld + extra_cols * 2)
            a("v_add_u32 v%d, s%d, v%d", vb + i, S_TMP + 2, 3 + i)
    else:
        raise ValueError

def lane_parts(a):
    a("v_lshrrev_b32 v5, 4, v2")
    a("v_bfe_u32 v6, v2, 2, 2")
    a("v_and_b32 v7, 3, v2")
    a("v_and_b32 v8, 15, v2")

def read_addrs_kc(a, opbase, srow, vb):
    a("v_lshrrev_b32 v3, 1, v8")
    a("v_xor_b32 v3, v3, v5")
    a("v_lshlrev_b32 v3, 4, v3")
    a("v_lshl_add_u32 v3, v8, 7, v3")
    if srow is not None:
        a("s_lshl_b32 s%d, s%d, 7", S_TMP, srow)
        a("s_add_u32 s%d, s%d, %d", S_TMP, S_TMP, opbase)
        a("v_add_u32 v%d, s%d, v3", vb, S_TMP)
    else:
        a("v_add_u32 v%d, %d, v3", vb, opbase)
    a("v_xor_b32 v%d, 64, v%d", vb + 1, vb)

def read_addr_km(a, T, sbase, stile, i, vd, sxor=None):
    rowb = T * 2
    if T == 128:
        a("v_and_b32 v3, 1, v5")
        a("v_lshl_or_b32 v3, v3, 2, v6")
    else:
        a("v_and_b32 v3, 1, v5")
        a("v_lshlrev_b32 v3, 1, v3")
        a("v_lshrrev_b32 v4, 1, v6")
        a("v_or_b32 v3, v3, v4")
    a("s_add_u32 s%d, s%d, %d", S_TMP, stile, i)
    if sxor is not None: a("s_xor_b32 s%d, s%d, s%d", S_TMP, S_TMP, sxor)
    a("v_xor_b32 v3, s%d, v3", S_TMP)
    a("v_lshlrev_b32 v3, 5, v3")
    a("v_lshl_add_u32 v3, v7, 3, v3")
    a("v_lshl_add_u32 v4, v5, 3, v6")
    a("v_lshl_add_u32 v3, v4, %d, v3", rowb.bit_length() - 1)
    a("v_add_u32 v%d, s%d, v3", vd, sbase)

def frag_reads(kind, T, addr_regs, idx, ks, dst):
    if kind == "kc":
        return ["ds_read_b128 v[%d:%d], v%d offset:%d" % (dst, dst + 3, addr_regs[ks], idx * 2048)]
    rowb = T * 2
    return ["ds_read_b64_tr_b16 v[%d:%d], v%d offset:%d" % (dst + 2 * h, dst + 2 * h + 1, addr_regs[idx], h * 4 * rowb + ks * 32 * rowb)
            for h in range(2)]

def interleave(a, mfmas, reads, tail=()):
    reads = list(reads); tail = list(tail)
    if OPT.get("noreads"): reads = []
    if OPT.get("nomfma"): mfmas = ["s_nop 0"] * 2
    for m in mfmas:
        a(m)
        budget = 2
        while reads and budget > 0:
            cost = 2 if "b128" in reads[0] else 1
            if cost > budget: break
            a(reads.pop(0)); budget -= cost
        if not reads:
            while tail and budget > 0:
                a(tail.pop(0)); budget -= 1
    for r in reads: a(r)
    for t in tail: a(t)

def loader_loop(a, name, issue, nW, nA, N, S, stage_bytes, dep=None, events=(), tail=None):
    n = nW + nA
    early = OPT.get("early", 1)
    def adv():
        a("s_add_u32 s%d, s%d, %d", S_SLOT, S_SLOT, stage_bytes)
        a("s_add_u32 s%d, s%d, 1", S_T, S_T)
    for part in (("W", "A") if early else (None,)):
        if part != "W" and dep: dep()
        a("s_mov_b32 s%d, 0", S_T)
        a("s_mov_b32 s%d, 0", S_SLOT)
        a.label("%s_ld_p%s" % (name, part))
        issue(part)
        adv()
        a("s_cmp_lt_u32 s%d, %d", S_T, S - 1)
        a("s_cbranch_scc1 %s_ld_p%s", name, part)
    special = {S - 1 + k: (S - 2 - k) * nA + k * n for k in range(S - 2)} if early else {}
    a("s_waitcnt vmcnt(%d)", special.pop(S - 1, (S - 2) * n))
    a("s_branch %s_ld_bar", name)
    a.label(name + "_ld_loop")
    for T in special:
        a("s_cmp_eq_u32 s%d, %d", S_T, T)
        a("s_cbranch_scc1 %s_ld_s%d", name, T)
    for k, (at, extra, fn) in enumerate(events):
        if extra:
            a("s_sub_u32 s%d, s%d, s%d", S_TMP, S_T, at)
            a("s_sub_u32 s%d, s%d, 1", S_TMP, S_TMP)
            a("s_cmp_lt_u32 s%d, %d", S_TMP, S - 1)
            a("s_cbranch_scc1 %s_ld_w%d", name, k)
    a("s_waitcnt vmcnt(%d)", (S - 2) * n)
    a.label(name + "_ld_bar")
    a("s_barrier")
    issue(None)
    for k, (at, extra, fn) in enumerate(events):
        a("s_cmp_eq_u32 s%d, s%d", S_T, at)
        a("s_cbranch_scc1 %s_ld_h%d", name, k)
        a.label(name + "_ld_c%d" % k)
    adv()
    a("s_cmp_eq_u32 s%d, %d", S_SLOT, S * stage_bytes)
    a("s_cselect_b32 s%d, 0, s%d", S_SLOT, S_SLOT)
    a("s_cmp_lt_u32 s%d, %d", S_T, N)
    a("s_cbranch_scc1 %s_ld_loop", name)
    if tail: tail()
    else:
        for t in range(N - S + 1, N):
            a("s_waitcnt vmcnt(%d)", (N - 1 - t) * n)
            a("s_barrier")
    if events or special:
        a("s_branch %s_ld_end", name)
        for T, c in special.items():
            a.label(name + "_ld_s%d" % T)
            a("s_waitcnt vmcnt(%d)", c)
            a("s_branch %s_ld_bar", name)
        for k, (at, extra, fn) in enumerate(events):
            if extra:
                a.label(name + "_ld_w%d" % k)
                a("s_waitcnt vmcnt(%d)", (S - 2) * n + extra)
                a("s_branch %s_ld_bar", name)
            a.label(name + "_ld_h%d" % k)
            fn()
            a("s_branch %s_ld_c%d", name, k)
        a.label(name + "_ld_end")

def kidx_offsets(a, W, advA, advB, wrap=0):
    wm = ("s%d" % S_WM) if W == "s" else str(W - 1)
    a("s_add_u32 s%d, s%d, s%d", S_TMP, S_T, S_J)
    a("s_and_b32 s%d, s%d, %s", S_TMP, S_TMP, wm)
    a("s_andn2_b32 s%d, s%d, %s", S_TMP + 1, S_T, wm)
    a("s_or_b32 s%d, s%d, s%d", S_TMP, S_TMP, S_TMP + 1)
    a("s_add_u32 s%d, s%d, s%d", S_TMP, S_TMP, S_KB)
    if wrap: a("s_and_b32 s%d, s%d, %d", S_TMP, S_TMP, wrap - 1)
    a("s_mul_i32 s%d, s%d, %d", S_OFA, S_TMP, advA)
    a("s_mul_i32 s%d, s%d, %d", S_OFB, S_TMP, advB)

def compute_loop_ctl_init(a, N, S, stage_bytes):
    a("s_mov_b32 s%d, %s", S_CNT, N)
    a("s_mov_b32 s%d, 0", S_SI)
    a("s_mov_b32 s%d, %d", S_DP, stage_bytes)
    a("s_mov_b32 s%d, 0x%x", S_DN, (-(S - 1) * stage_bytes) & 0xffffffff)

def addr_update(addr_regs, S, stage_bytes):
    L = ["s_add_u32 s%d, s%d, 1" % (S_SI, S_SI),
         "s_cmp_eq_u32 s%d, %d" % (S_SI, S),
         "s_cselect_b32 s%d, s%d, s%d" % (S_DELTA, S_DN, S_DP),
         "s_cselect_b32 s%d, 0, s%d" % (S_SI, S_SI)]
    L += ["v_add_u32 v%d, s%d, v%d" % (r, S_DELTA, r) for r in addr_regs]
    L += ["s_sub_u32 s%d, s%d, 1" % (S_CNT, S_CNT), "s_cmp_lg_u32 s%d, 0" % S_CNT]
    return L

def gelu_pairs(a, regs, tmp, cst):
    n = len(regs)
    pr = lambda r: "v[%d:%d]" % (r, r + 1)
    for k, r in enumerate(regs): a("v_pk_mul_f32 %s, %s, %s", pr(tmp + 2 * k), pr(r), pr(r))
    for k, r in enumerate(regs): a("v_pk_fma_f32 %s, %s, %s, %s", pr(tmp + 2 * k), pr(tmp + 2 * k), pr(cst), pr(cst + 2))
    for k, r in enumerate(regs): a("v_pk_mul_f32 %s, %s, %s", pr(tmp + 2 * k), pr(tmp + 2 * k), pr(r))
    for k in range(2 * n): a("v_exp_f32 v%d, v%d", tmp + k, tmp + k)
    for k, r in enumerate(regs): a("v_pk_add_f32 %s, %s, %s", pr(tmp + 2 * k), pr(tmp + 2 * k), pr(cst + 4))
    for k in range(2 * n): a("v_rcp_f32 v%d, v%d", tmp + k, tmp + k)
    for k, r in enumerate(regs): a("v_pk_mul_f32 %s, %s, %s", pr(r), pr(r), pr(tmp + 2 * k))

def cloop(a, name, mf, rd, addrs, S, stage, first=None, mid=None, final=None):
    stamp(a, 2)
    if OPT.get("stamp") or first:
        a("s_barrier")
        stamp(a, 3)
        if first: first()
        if OPT.get("stamp"): a("s_waitcnt lgkmcnt(0)")
        a("s_branch %s_cloop2", name)
    if mid:
        a.label(name + "_mid")
        a("s_waitcnt vmcnt(0)")
        a("s_nop 7")
        mid[1]()
        a("s_nop 1")
        a("s_branch %s_cloop2", name)
    a.raw(".p2align 3")
    a.label(name + "_cloop")
    a("s_barrier")
    if mid:
        a("s_cmp_eq_u32 s%d, %d", S_CNT, mid[0])
        a("s_cbranch_scc1 %s_mid", name)
    a.label(name + "_cloop2")
    interleave(a, mf(1), rd(0, 0))
    a("s_waitcnt lgkmcnt(0)")
    interleave(a, mf(0), rd(1, 1), addr_update(addrs, S, stage))
    a("s_waitcnt lgkmcnt(0)")
    a("s_cbranch_scc1 %s_cloop", name)
    stamp(a, 4)
    if final: final()
    else:
        for m in mf(1): a(m)

def overlap_final(a, units, lead=3, after_lead=None):
    for u in range(min(lead, len(units))):
        for m in units[u][0]: a(m)
    if after_lead: after_lead()
    for u, (_, work) in enumerate(units):
        ms = list(units[u + lead][0]) if u + lead < len(units) else []
        step = max(1, len(work) // max(1, len(ms)))
        if u + 1 == len(units) or u + lead >= len(units): pass
        for k, w in enumerate(work):
            if ms and k % step == 0: a(ms.pop(0))
            a(w)
        for m in ms: a(m)

GEMM_VTOP = {}
CNT_BYTES = 64 * 256
def count_in(a, label, area=0):
    srd(a, 84, 4, WS["CNT"] + area, CNT_BYTES)
    a("v_mov_b32 v3, s%d", S_TMP)
    a("v_mov_b32 v4, 1")
    a("s_waitcnt vmcnt(0)")
    a("s_barrier")
    a("s_cmp_lg_u32 s%d, 0", S_W)
    a("s_cbranch_scc1 %s", label)
    a("s_mov_b64 exec, 1")
    a("buffer_atomic_add v4, v3, s[84:87], 0 offen sc1")
    a("s_mov_b64 exec, -1")
    a.label(label)

LFLAG = 131072
def wait_counters(a, label, need0, need1):
    pid = PHASES.index(label[:2]) + 1
    a("s_lshl_b32 s%d, s%d, 2", S_TMP + 3, S_LAYER)
    a("s_add_u32 s%d, s%d, %d", S_TMP + 3, S_TMP + 3, pid)
    a("s_mov_b32 s%d, 0x80000", S_TMP + 1)
    a("v_mov_b32 v24, %d", LFLAG)
    if OPT.get("poll1", 1):
        a("s_cmp_lg_u32 s%d, 0", S_W)
        a("s_cbranch_scc1 %s_lds", label)
    a("s_mov_b32 s%d, 0x8000", S_TMP + 1)
    srd(a, 84, 4, WS["CNT"], CNT_BYTES)
    a("v_cmp_eq_u32 vcc, 1, v2")
    a("v_mov_b32 v21, s%d", S_TMP)
    a("v_mov_b32 v23, s%d", S_TMP + 2)
    a("v_cndmask_b32 v21, v21, v23, vcc")
    a("v_mov_b32 v22, %d", need0)
    a("v_mov_b32 v23, %d", need1)
    a("v_cndmask_b32 v22, v22, v23, vcc")
    a.label(label)
    a("buffer_load_dword v23, v21, s[84:87], 0 offen sc1")
    a("s_sub_u32 s%d, s%d, 1", S_TMP + 1, S_TMP + 1)
    a("s_waitcnt vmcnt(0)")
    a("v_cmp_lt_u32 vcc, v23, v22")
    a("s_cmp_eq_u32 s%d, 0", S_TMP + 1)
    a("s_cbranch_scc1 %s_seen", label)
    a("s_cbranch_vccz %s_seen", label)
    a("s_sleep %d", OPT.get("dslp", 2))
    a("s_branch %s", label)
    a.label(label + "_seen")
    a("v_mov_b32 v23, s%d", S_TMP + 3)
    a("ds_write_b32 v24, v23")
    a("s_branch %s_ok", label)
    a.label(label + "_lds")
    a("ds_read_b32 v23, v24")
    a("s_sub_u32 s%d, s%d, 1", S_TMP + 1, S_TMP + 1)
    a("s_waitcnt lgkmcnt(0)")
    a("v_readfirstlane_b32 s%d, v23", S_TMP)
    a("s_cmp_eq_u32 s%d, 0", S_TMP + 1)
    a("s_cbranch_scc1 %s_ok", label)
    a("s_cmp_eq_u32 s%d, s%d", S_TMP, S_TMP + 3)
    a("s_cbranch_scc1 %s_ok", label)
    a("s_sleep 1")
    a("s_branch %s_lds", label)
    a.label(label + "_ok")

PHASES = ["g1", "g2", "g3", "g4"]
def prev_cut(name):
    k = PHASES.index(name)
    return "%d%d" % ((k - 1) % 4 + 1, k + 1) in CUTS
def next_cut(name):
    k = PHASES.index(name)
    return "%d%d" % (k + 1, (k + 1) % 4 + 1) in CUTS

def entry(a, name, ntiles, spare=False):
    for layer, ab in enumerate("ab"):
        if prev_cut(name) or (name == "g1" and layer == 0):
            kernel_header(a, "%s%s_kernel" % (name, ab))
            a("s_mov_b32 s%d, %d", S_LAYER, layer)
            a("s_mov_b32 s%d, 0x%x", S_LOFF, layer * LOFF)
            a("v_mov_b32 v1, %d", LFLAG)
            a("v_mov_b32 v2, 0")
            a("ds_write_b32 v1, v2")
            dbg_stamp(a, 1, inv=True)
            a("s_branch %s_in", name)
            KERNELS.append("%s%s_kernel" % (name, ab))
    a.raw(".p2align 6")
    a.label(name + "_in")
    a("s_cmp_ge_u32 s2, %d", ntiles)
    a("s_cbranch_scc1 %s_%s", name, "spare" if spare else "done")
    stamp(a, 0)
KERNELS = []

def ws_adjust(a):
    a("s_add_u32 s4, s4, s%d", S_LOFF)
    a("s_addc_u32 s5, s5, 0")

def sel_ptr(a, d, which_layer, off):
    a("s_add_u32 s%d, s4, 0x%x", d, off)
    a("s_addc_u32 s%d, s5, 0", d + 1)
    a("s_cmp_eq_u32 s%d, %d", S_LAYER, which_layer)
    a("s_cselect_b32 s%d, s%d, s6", d, d)
    a("s_cselect_b32 s%d, s%d, s7", d + 1, d + 1)
    a("s_mov_b32 s%d, 0x%x", d + 2, ACT_BYTES)
    a("s_mov_b32 s%d, 0x20000", d + 3)

def late_y(name):
    return OPT.get("latey", 0) and name != "g1" and not next_cut(name)

def go_next(a, name):
    if name == "g4":
        a("s_mov_b32 s%d, 1", S_LAYER)
        a("s_mov_b32 s%d, 0x%x", S_LOFF, LOFF)
    a("s_branch %s_in", PHASES[(PHASES.index(name) + 1) % 4])

def dbg_stamp(a, slot_base, inv=False):
    if not OPT.get("dstamp"): return
    a("s_load_dwordx2 s[64:65], s[0:1], %d", ARG["dbg"])
    a("s_memrealtime s[66:67]")
    a("s_waitcnt vmcnt(0) lgkmcnt(0)")
    srd(a, 68, 64, 0, 256)
    if inv: a("s_not_b32 s66, s66")
    a("s_lshl_b32 s72, s%d, 4", S_LAYER)
    a("s_add_u32 s72, s72, %d", slot_base * 4)
    a("v_mov_b32 v3, s72")
    a("v_mov_b32 v4, s66")
    a("s_mov_b64 exec, 1")
    a("buffer_atomic_umax v4, v3, s[68:71], 0 offen sc1")
    a("s_mov_b64 exec, -1")

def finish(a, name, cnt, loader=False):
    if not loader: dbg_stamp(a, 2 + PHASES.index(name))
    if next_cut(name):
        a("s_endpgm")
        return
    if name == "g4":
        a("s_cmp_lg_u32 s%d, 0", S_LAYER)
        a("s_cbranch_scc1 %s_done", name)
    if loader:
        if not late_y(name): a("s_barrier")
    else:
        cnt(a)
        count_in(a, name + "_cin", LOFF if name == "g4" else 0)
    go_next(a, name)

def gen_gemm(a, name, ntiles, A, B, WA, WB, N, S, W, ptrs, decode, init, epi, ldc, cnt, dep, stats=False, spare=None, split=None, wop="A", lbase=0):
    na, nb = A.T // (16 * WA), B.T // (16 * WB)
    stage = A.bytes + B.bytes
    baseA, baseB = lbase, lbase + A.bytes
    entry(a, name, ntiles, spare is not None)
    ptrs(a, 0)
    a("v_lshrrev_b32 v1, 6, v0")
    a("v_and_b32 v2, 63, v0")
    decode(a)
    a("v_readfirstlane_b32 s%d, v1", S_W)
    a("s_nop 0")
    a("s_cmp_lt_u32 s%d, 4", S_W)
    a("s_cbranch_scc1 %s_compute", name)

    if OPT.get("ldprio"): a("s_setprio %d", OPT["ldprio"])
    a("s_sub_u32 s%d, s%d, 4", S_W, S_W)
    loader_voffs(a, A, S_TA, 10)
    loader_voffs(a, B, S_TB, 10 + A.npw)
    a("s_mul_i32 s%d, s%d, %d", S_LA, S_W, A.npw * 1024)
    if baseA: a("s_add_u32 s%d, s%d, %d", S_LA, S_LA, baseA)
    a("s_mul_i32 s%d, s%d, %d", S_LB, S_W, B.npw * 1024)
    a("s_add_u32 s%d, s%d, %d", S_LB, S_LB, baseB)
    a("s_waitcnt lgkmcnt(0)")
    ws_adjust(a)
    ptrs(a, "L")
    def issue(part):
        kidx_offsets(a, W, A.kadv, B.kadv)
        a("s_add_u32 s%d, s%d, s%d", S_M0A, S_SLOT, S_LA)
        a("s_add_u32 s%d, s%d, s%d", S_M0B, S_SLOT, S_LB)
        for (op, vb, sm, so, sr) in ((A, 10, S_M0A, S_OFA, 8), (B, 10 + A.npw, S_M0B, S_OFB, 12)):
            if part and (part == "W") != (op is Wop): continue
            for i in range(op.npw):
                a("s_add_u32 m0, s%d, %d", sm, i * 1024)
                a("s_nop 0")
                a("buffer_load_dwordx4 v%d, s[%d:%d], s%d offen%s lds", vb + i, sr, sr + 3, so, "" if op is Wop else ASC())
    Wop = B if wop == "B" else A
    def gdep():
        if late_y(PHASES[PHASES.index(name) - 1]): a("s_barrier")
        dep(a)
    loader_loop(a, name, issue, Wop.npw, A.npw + B.npw - Wop.npw, N, S, stage, dep=None if prev_cut(name) else gdep)
    if not next_cut(name): finish(a, name, cnt, loader=True)
    a.label(name + "_done")
    a("s_endpgm")

    a.label(name + "_compute")
    ACC = 28
    BV = 22
    nacc = na * nb * 4
    FR = ACC + nacc
    fset = (na + nb) * 4
    fA = lambda st, i: FR + st * fset + 4 * i
    fB = lambda st, j: FR + st * fset + 4 * na + 4 * j
    acc = lambda i, j: ACC + 4 * (i * nb + j)
    VTOP = FR + 2 * fset
    if epi == "ln2":
        EXV = VTOP
        VTOP += 16
    nk = nb // 2 if split else nb
    if split:
        SND, RCV = VTOP, VTOP + 16
        VTOP += 32
    lane_parts(a)
    SWA, SWB = S_TMP + 4, S_TMP + 5
    a("s_and_b32 s%d, s%d, %d", SWA, S_W, WA - 1)
    a("s_lshr_b32 s%d, s%d, %d", SWB, S_W, WA.bit_length() - 1)
    a("s_mul_i32 s%d, s%d, %d", S_TMP, S_TB, B.T)
    a("s_mul_i32 s%d, s%d, %d", S_TMP + 1, SWB, nb * 16)
    a("s_add_u32 s%d, s%d, s%d", S_TMP, S_TMP, S_TMP + 1)
    if split:
        a("s_lshl_b32 s%d, s%d, 5", S_TMP + 1, S_ROLE)
        a("s_add_u32 s%d, s%d, s%d", S_TMP, S_TMP, S_TMP + 1)
    a("v_add_u32 v20, s%d, v8", S_TMP)
    a("s_mov_b32 s%d, %d", S_TMP + 1, ldc)
    a("v_mul_lo_u32 v9, v20, s%d", S_TMP + 1)
    a("s_mul_i32 s%d, s%d, %d", S_TMP, S_TA, A.T * 2)
    a("s_mul_i32 s%d, s%d, %d", S_TMP + 1, SWA, na * 32)
    a("s_add_u32 s%d, s%d, s%d", S_TMP + 6, S_TMP, S_TMP + 1)
    a("v_and_b32 v3, 1, v5")
    a("v_lshlrev_b32 v3, 5, v3")
    a("v_lshrrev_b32 v4, 1, v5")
    a("v_lshl_add_u32 v3, v4, 4, v3")
    a("v_add3_u32 v9, v9, v3, s%d", S_TMP + 6)
    for j in range(nb):
        a("s_mov_b32 s%d, %d", S_ST + j, j * 16 * ldc)
    a("s_waitcnt lgkmcnt(0)")
    stamp(a, 1)
    ws_adjust(a)
    ptrs(a, "C")
    resid = init in ("resid", "resid+biasB")
    if resid:
        RES = VTOP
        VTOP += 24
    def resid_loads():
        for j in range(nk):
            for p in range(na // 2):
                d = RES + 4 * (j * (na // 2) + p)
                a("buffer_load_dwordx4 v[%d:%d], v9, s[20:23], s%d offen offset:%d%s", d, d + 3, S_ST + j, p * 64, ASC())
        if init == "resid+biasB":
            a("v_lshlrev_b32 v3, 1, v20")
            for j in range(nk):
                a("buffer_load_ushort v%d, v3, s[56:59], 0 offen offset:%d", BV + j, j * 32)
    def resid_add():
        T = RES + 16
        for q in range(nk * na // 2):
            a("v_permlane16_swap_b32 v%d, v%d", RES + 4 * q, RES + 4 * q + 2)
            a("v_permlane16_swap_b32 v%d, v%d", RES + 4 * q + 1, RES + 4 * q + 3)
        if init == "resid+biasB":
            for j in range(nk): a("v_lshlrev_b32 v%d, 16, v%d", BV + j, BV + j)
        for j in range(nk):
            for p in range(na // 2):
                d = RES + 4 * (j * (na // 2) + p)
                for q in range(4):
                    a("v_lshlrev_b32 v%d, 16, v%d", T + 2 * q, d + q)
                    a("v_and_b32 v%d, 0xffff0000, v%d", T + 2 * q + 1, d + q)
                if init == "resid+biasB":
                    for q in range(8): a("v_add_f32 v%d, v%d, v%d", T + q, T + q, BV + j)
                for q in range(4):
                    c = acc(2 * p + (q >> 1), j) + 2 * (q & 1)
                    a("v_pk_add_f32 v[%d:%d], v[%d:%d], v[%d:%d]", c, c + 1, c, c + 1, T + 2 * q, T + 2 * q + 1)
    if init == "biasA":
        a("v_lshl_add_u32 v3, v5, 3, s%d", S_TMP + 6)
        for i in range(na):
            a("buffer_load_dwordx2 v[%d:%d], v3, s[20:23], 0 offen offset:%d", FR + 2 * i, FR + 2 * i + 1, i * 32)
    AR = 10
    def mk_addrs(op, base, swave, n, vb, sxor=None):
        if op.kind == "kc":
            a("s_mul_i32 s%d, s%d, %d", S_TMP + 2, swave, n * 16)
            read_addrs_kc(a, base, S_TMP + 2, vb)
            return [vb, vb + 1]
        a("s_mul_i32 s%d, s%d, %d", S_TMP + 2, swave, n)
        a("s_mov_b32 s%d, %d", S_TMP + 3, base)
        for i in range(n):
            read_addr_km(a, op.T, S_TMP + 3, S_TMP + 2, i, vb + i, sxor)
        return [vb + i for i in range(n)]
    adA = mk_addrs(A, baseA, SWA, na, AR)
    if split: a("s_lshl_b32 s%d, s%d, 1", S_N, S_ROLE)
    adB = mk_addrs(B, baseB, SWB, nb, AR + len(adA), S_N if split else None)
    assert AR + len(adA) + len(adB) <= 20
    for r in range(fset): a("v_mov_b32 v%d, 0", FR + fset + r)
    compute_loop_ctl_init(a, N, S, stage)
    if split:
        a("s_lshl_b32 s%d, s%d, 12", S_TMP, S_W)
        a("v_lshl_add_u32 v21, v2, 4, s%d", S_TMP)
        a("s_lshl_b32 s%d, s%d, 1", S_OWN, S_PAIR)
        a("s_add_u32 s%d, s%d, s%d", S_OWN, S_OWN, S_ROLE)
        a("s_lshl_b32 s%d, s%d, 14", S_OWN, S_OWN)
        a("s_xor_b32 s%d, s%d, 0x4000", S_OTH, S_OWN)
    if init != "biasA":
        for r in range(nacc): a("v_mov_b32 v%d, 0", ACC + r)
    else:
        a("s_waitcnt vmcnt(0)")
        for i in range(na):
            for j in range(nb):
                c = acc(i, j)
                for q in range(2):
                    a("v_lshlrev_b32 v%d, 16, v%d", c + 2 * q, FR + 2 * i + q)
                    a("v_and_b32 v%d, 0xffff0000, v%d", c + 2 * q + 1, FR + 2 * i + q)
    if OPT.get("cprio"): a("s_setprio %d", OPT["cprio"])
    def mf(st):
        return ["v_mfma_f32_16x16x32_bf16 v[%d:%d], v[%d:%d], v[%d:%d], v[%d:%d]" %
                (acc(i, j), acc(i, j) + 3, fA(st, i), fA(st, i) + 3, fB(st, j), fB(st, j) + 3, acc(i, j), acc(i, j) + 3)
                for i in range(na) for j in range(nb)]
    def rd(st, ks):
        L = []
        L += frag_reads(A.kind, A.T, adA, 0, ks, fA(st, 0))
        for j in range(nb): L += frag_reads(B.kind, B.T, adB, j, ks, fB(st, j))
        for i in range(1, na): L += frag_reads(A.kind, A.T, adA, i, ks, fA(st, i))
        return L
    def rcv_loads():
        for u in range(4):
            a("buffer_load_dwordx4 v[%d:%d], v21, s[84:87], s%d offen offset:%d sc1", RCV + 4 * u, RCV + 4 * u + 3, S_OTH, u * 1024)
    TMPV = FR
    M = dict(zip([(i, j) for i in range(na) for j in range(nb)], mf(1)))
    def out_unit(k, j, p):
        b = Asm()
        c0_, c1_ = acc(2 * p, j), acc(2 * p + 1, j)
        if epi == "gelu":
            gelu_pairs(b, [c0_, c0_ + 2, c1_, c1_ + 2], TMPV + 16, GC)
        d = TMPV + 4 * (k & 3)
        b("v_cvt_pk_bf16_f32 v%d, v%d, v%d", d, c0_, c0_ + 1)
        b("v_cvt_pk_bf16_f32 v%d, v%d, v%d", d + 1, c0_ + 2, c0_ + 3)
        b("v_cvt_pk_bf16_f32 v%d, v%d, v%d", d + 2, c1_, c1_ + 1)
        b("v_cvt_pk_bf16_f32 v%d, v%d, v%d", d + 3, c1_ + 2, c1_ + 3)
        if epi == "ln2":
            for q, x in enumerate((c0_, c0_ + 2, c1_, c1_ + 2)):
                b("v_lshlrev_b32 v%d, 16, v%d", x, d + q)
                b("v_and_b32 v%d, 0xffff0000, v%d", x + 1, d + q)
        else:
            b("s_nop 1")
        b("v_permlane16_swap_b32 v%d, v%d", d, d + 2)
        b("v_permlane16_swap_b32 v%d, v%d", d + 1, d + 3)
        b("buffer_store_dwordx4 v[%d:%d], v9, s[16:19], s%d offen offset:%d%s", d, d + 3, S_ST + j, p * 64, STF())
        return [l.strip() for l in b.lines]
    JP = [(j, p) for j in range(nk) for p in range(na // 2)]
    tiles = lambda j0: [(i, j) for j in range(j0, j0 + nk) for i in range(na)]
    def final_gelu():
        overlap_final(a, [([M[(2 * p, j)], M[(2 * p + 1, j)]], out_unit(k, j, p)) for k, (j, p) in enumerate(JP)], lead=4,
                      after_lead=lambda: a("s_nop 1"))
    def final_split():
        for t in tiles(nk): a(M[t])
        keep = [M[t] for t in tiles(0)]
        for u, (i, j) in enumerate(tiles(nk)):
            c = acc(i, j)
            a(keep[u])
            if u == 7: a("s_nop 1")
            a("v_cvt_pk_bf16_f32 v%d, v%d, v%d", SND + 2 * u, c, c + 1)
            a("v_cvt_pk_bf16_f32 v%d, v%d, v%d", SND + 2 * u + 1, c + 2, c + 3)
            if u & 1:
                a("buffer_store_dwordx4 v[%d:%d], v21, s[84:87], s%d offen offset:%d sc1", SND + 2 * u - 2, SND + 2 * u + 1, S_OWN, (u >> 1) * 1024)
    if epi == "gelu":
        GC = VTOP
        VTOP += 6
        c1 = -2.0 * math.log2(math.e) * math.sqrt(2.0 / math.pi) * 0.044715
        c0 = -2.0 * math.log2(math.e) * math.sqrt(2.0 / math.pi)
        for k, v in enumerate((c1, c1, c0, c0, 1.0, 1.0)):
            a("v_mov_b32 v%d, 0x%x", GC + k, f32(v))
    cloop(a, name, mf, rd, adA + adB, S, stage, first=resid_loads if resid else None,
          mid=(N // 2, resid_add) if resid and not split else None,
          final=final_gelu if epi == "gelu" else final_split if split else None)
    if split:
        a("s_mov_b32 s%d, 0x2000", S_CNT)
        stamp(a, 5)
        rcv_loads()
        a("s_waitcnt vmcnt(8)")
        a("s_nop 3")
        resid_add()
        a("s_waitcnt vmcnt(0)")
        a.label(name + "_rcv")
        a("v_max3_u32 v4, v%d, v%d, v%d", RCV, RCV + 1, RCV + 2)
        for q in range(3, 15, 2): a("v_max3_u32 v4, v4, v%d, v%d", RCV + q, RCV + q + 1)
        a("v_max_u32 v4, v4, v%d", RCV + 15)
        a("v_cmp_eq_u32 vcc, -1, v4")
        a("s_sub_u32 s%d, s%d, 1", S_CNT, S_CNT)
        a("s_cmp_eq_u32 s%d, 0", S_CNT)
        a("s_cbranch_scc1 %s_rcvd", name)
        a("s_cbranch_vccz %s_rcvd", name)
        a("s_sleep %d", OPT.get("slp", 2))
        rcv_loads()
        a("s_waitcnt vmcnt(0)")
        a("s_branch %s_rcv", name)
        a.label(name + "_rcvd")
        stamp(a, 6)
        if OPT.get("stamp"): a("s_add_u32 s%d, s%d, 0x6000", 64 + 2 * 9, S_CNT)
        for u, (i, j) in enumerate(tiles(0)):
            c = acc(i, j); t = TMPV + 16 + 4 * (u & 3)
            for q in range(2):
                a("v_lshlrev_b32 v%d, 16, v%d", t + 2 * q, RCV + 2 * u + q)
                a("v_and_b32 v%d, 0xffff0000, v%d", t + 2 * q + 1, RCV + 2 * u + q)
            for q in range(2):
                a("v_pk_add_f32 v[%d:%d], v[%d:%d], v[%d:%d]", c + 2 * q, c + 2 * q + 1, c + 2 * q, c + 2 * q + 1, t + 2 * q, t + 2 * q + 1)
    def stats_block():
        assert nk in (2, 4) and na == 4
        pr = lambda r: "v[%d:%d]" % (r, r + 1)
        SV = TMPV + 16
        for j in range(nk):
            prs = [acc(i, j) + 2 * q for i in range(na) for q in range(2)]
            a("v_pk_add_f32 %s, %s, %s", pr(SV + 4 * j), pr(prs[0]), pr(prs[1]))
            a("v_pk_mul_f32 %s, %s, %s", pr(SV + 4 * j + 2), pr(prs[0]), pr(prs[0]))
            for x in prs[1:]:
                if x != prs[1]: a("v_pk_add_f32 %s, %s, %s", pr(SV + 4 * j), pr(SV + 4 * j), pr(x))
                a("v_pk_fma_f32 %s, %s, %s, %s", pr(SV + 4 * j + 2), pr(x), pr(x), pr(SV + 4 * j + 2))
        for j in range(nk):
            a("v_add_f32 v%d, v%d, v%d", SV + 4 * j, SV + 4 * j, SV + 4 * j + 1)
            a("v_add_f32 v%d, v%d, v%d", SV + 4 * j + 1, SV + 4 * j + 2, SV + 4 * j + 3)
        a("s_nop 1")
        for j in range(0, nk, 2):
            a("v_permlane16_swap_b32 v%d, v%d", SV + 4 * j, SV + 4 * j + 4)
            a("v_permlane16_swap_b32 v%d, v%d", SV + 4 * j + 1, SV + 4 * j + 5)
        for j in range(0, nk, 2):
            a("v_pk_add_f32 %s, %s, %s", pr(SV + 4 * j), pr(SV + 4 * j), pr(SV + 4 * j + 4))
        if nk == 2:
            a("v_mov_b32 v%d, v%d", SV + 8, SV)
            a("v_mov_b32 v%d, v%d", SV + 9, SV + 1)
        a("v_and_b32 v3, %d, v2", 16 if nk == 2 else 48)
        a("v_add_u32 v3, v3, v20")
        a("v_permlane32_swap_b32 v%d, v%d", SV, SV + 8)
        a("v_permlane32_swap_b32 v%d, v%d", SV + 1, SV + 9)
        a("v_pk_add_f32 %s, %s, %s", pr(SV), pr(SV), pr(SV + 8))
        a("v_lshlrev_b32 v3, 3, v3")
        a("s_mul_i32 s%d, s%d, %d", S_TMP, S_TA, WA)
        a("s_add_u32 s%d, s%d, s%d", S_TMP, S_TMP, SWA)
        a("s_lshl_b32 s%d, s%d, 14", S_TMP, S_TMP)
        if nk == 2: a("s_mov_b32 exec_hi, 0")
        a("buffer_store_dwordx2 %s, v3, s[60:63], s%d offen sc1", pr(SV), S_TMP)
        if nk == 2: a("s_mov_b32 exec_hi, -1")
    def ln2_start():
        stats_block()
        a("v_lshrrev_b32 v4, 5, v2")
        a("v_lshl_add_u32 v21, v4, 17, v3")
    def ex_loads():
        for q in range(8):
            a("s_mov_b32 s%d, %d", S_TMP + (q & 1), q * 16384)
            a("buffer_load_dwordx2 v[%d:%d], v21, s[60:63], s%d offen sc1", EXV + 2 * q, EXV + 2 * q + 1, S_TMP + (q & 1))
    def ln2_finish():
        pr = lambda r: "v[%d:%d]" % (r, r + 1)
        a("s_mov_b32 s%d, 0x2000", S_CNT)
        a("v_mul_u32_u24 v19, %d, v20", LDH - ldc)
        a("v_add_u32 v19, v19, v9")
        for j in range(nk): a("s_mov_b32 s%d, %d", S_ST + 2 + j, j * 16 * LDH)
        stamp(a, 5)
        ex_loads()
        a("s_waitcnt vmcnt(0)")
        a.label(name + "_ex")
        a("v_max3_u32 v4, v%d, v%d, v%d", EXV, EXV + 1, EXV + 2)
        for q in range(3, 15, 2): a("v_max3_u32 v4, v4, v%d, v%d", EXV + q, EXV + q + 1)
        a("v_max_u32 v4, v4, v%d", EXV + 15)
        a("v_cmp_eq_u32 vcc, -1, v4")
        a("s_sub_u32 s%d, s%d, 1", S_CNT, S_CNT)
        a("s_cmp_eq_u32 s%d, 0", S_CNT)
        a("s_cbranch_scc1 %s_exd", name)
        a("s_cbranch_vccz %s_exd", name)
        a("s_sleep %d", OPT.get("slp", 2))
        ex_loads()
        a("s_waitcnt vmcnt(0)")
        a("s_branch %s_ex", name)
        a.label(name + "_exd")
        stamp(a, 6)
        if OPT.get("stamp"): a("s_add_u32 s%d, s%d, 0x6000", 64 + 2 * 9, S_CNT)
        E = EXV
        for st in (4, 2, 1):
            for q in range(st): a("v_pk_add_f32 %s, %s, %s", pr(E + 2 * q), pr(E + 2 * q), pr(E + 2 * (q + st)))
        a("v_mov_b32 v%d, v%d", E + 2, E)
        a("v_mov_b32 v%d, v%d", E + 3, E + 1)
        a("s_nop 1")
        a("v_permlane32_swap_b32 v%d, v%d", E, E + 2)
        a("v_permlane32_swap_b32 v%d, v%d", E + 1, E + 3)
        a("v_pk_add_f32 %s, %s, %s", pr(E), pr(E), pr(E + 2))
        m, var, mb, r1, m2, v2 = E, E + 1, E + 2, E + 3, E + 4, E + 5
        a("v_mul_f32 v%d, 0x%x, v%d", m, f32(1.0 / 1024), m)
        a("v_mul_f32 v%d, 0x%x, v%d", var, f32(1.0 / 1024), var)
        a("v_fma_f32 v%d, -v%d, v%d, v%d", var, m, m, var)
        a("v_max_f32 v%d, 0, v%d", var, var)
        a("v_mov_b32 v%d, v%d", mb, m)
        a("v_mov_b32 v%d, v%d", r1, var)
        def rstd(x):
            round_bf16_scalar(a, x)
            a("v_add_f32 v%d, 0x%x, v%d", x, f32(1e-5), x)
            round_bf16_scalar(a, x)
            a("v_sqrt_f32 v%d, v%d", x, x)
            a("s_nop 0")
            round_bf16_scalar(a, x)
            a("v_rcp_f32 v%d, v%d", x, x)
        round_bf16_scalar(a, mb)
        rstd(r1)
        a("v_sub_f32 v%d, v%d, v%d", m2, m, mb)
        a("v_mul_f32 v%d, v%d, v%d", v2, var, r1)
        a("v_mul_f32 v%d, v%d, v%d", m2, m2, r1)
        a("v_mul_f32 v%d, v%d, v%d", v2, v2, r1)
        round_bf16_scalar(a, m2)
        rstd(v2)
        a("v_fma_f32 v%d, v%d, v%d, v%d", m2, mb, r1, m2)
        a("v_mul_f32 v%d, v%d, v%d", E + 6, r1, v2)
        a("v_mul_f32 v%d, -v%d, v%d", E + 7, m2, v2)
        a("v_mov_b32 v%d, v%d", E + 8, E + 6)
        a("v_mov_b32 v%d, v%d", E + 9, E + 7)
        a("s_nop 1")
        a("v_permlane16_swap_b32 v%d, v%d", E + 6, E + 8)
        a("v_permlane16_swap_b32 v%d, v%d", E + 7, E + 9)
        k = 0
        for j in range(nk):
            ab = pr(E + 6 + 2 * j)
            for p in range(na // 2):
                c0_, c1_ = acc(2 * p, j), acc(2 * p + 1, j)
                for x in (c0_, c0_ + 2, c1_, c1_ + 2):
                    a("v_pk_fma_f32 %s, %s, %s, %s op_sel:[0,0,1] op_sel_hi:[1,0,1]", pr(x), pr(x), ab, ab)
                d = TMPV + 4 * (k & 3); k += 1
                a("v_cvt_pk_bf16_f32 v%d, v%d, v%d", d, c0_, c0_ + 1)
                a("v_cvt_pk_bf16_f32 v%d, v%d, v%d", d + 1, c0_ + 2, c0_ + 3)
                a("v_cvt_pk_bf16_f32 v%d, v%d, v%d", d + 2, c1_, c1_ + 1)
                a("v_cvt_pk_bf16_f32 v%d, v%d, v%d", d + 3, c1_ + 2, c1_ + 3)
                a("s_nop 1")
                a("v_permlane16_swap_b32 v%d, v%d", d, d + 2)
                a("v_permlane16_swap_b32 v%d, v%d", d + 1, d + 3)
                a("buffer_store_dwordx4 v[%d:%d], v19, s[56:59], s%d offen offset:%d%s", d, d + 3, S_ST + 2 + j, p * 64, STF())
    if epi == "ln2":
        a("s_nop 7")
        ln2_start()
    if epi != "gelu":
        for k, (j, p) in enumerate(JP):
            for w in out_unit(k, j, p): a(w)
    if stats: stats_block()
    if epi == "ln2": ln2_finish()
    xs = bool(split) or epi == "ln2"
    stamp(a, 7 if xs else 5)
    stamp_flush(a, name, 8 if xs else 6, extra=xs)
    finish(a, name, cnt)
    if spare:
        a.label(name + "_spare")
        spare(a)
    GEMM_VTOP[name] = VTOP
    return lbase + stage * S

def gen_g1(a, name, W=2):
    N, S = 16, 3
    PW = Op("km", 64, 6144)
    XB = 3 * 8192
    stage = XB + 144 * 128
    E = stage
    REG = 144 * 128
    LST = S * stage
    LCS = LST + 1280
    S_SIG, S_DIST, S_H1, S_H2, S_H3, S_H4, S_H5 = 52, 53, 54, 55, 29, 50, 51
    KG = OPT.get("KG", 12)
    entry(a, name, 256)
    a("s_load_dwordx2 s[4:5], s[0:1], %d", ARG["ws"])
    a("s_load_dwordx2 s[6:7], s[0:1], %d", ARG["x"])
    a("s_xor_b32 s%d, s%d, 1", S_DIST, S_LAYER)
    a("s_load_dwordx2 s[30:31], s[0:1], %d", ARG["wqkv"])
    a("s_load_dwordx2 s[16:17], s[0:1], %d", ARG["dbg"])
    a("s_load_dwordx2 s[18:19], s[0:1], %d", ARG["wo"])
    a("v_lshrrev_b32 v1, 6, v0")
    a("v_and_b32 v2, 63, v0")
    a("s_and_b32 s%d, s2, 1", S_TMP)
    a("s_lshl_b32 s%d, s%d, 3", S_TMP, S_TMP)
    a("s_bfe_u32 s%d, s2, 0x30003", S_TMP + 1)
    a("s_add_u32 s%d, s%d, s%d", S_TB, S_TMP, S_TMP + 1)
    a("s_bfe_u32 s%d, s2, 0x20001", S_TMP)
    a("s_lshl_b32 s%d, s%d, 2", S_TMP, S_TMP)
    a("s_lshr_b32 s%d, s2, 6", S_TMP + 2)
    a("s_add_u32 s%d, s%d, s%d", S_TA, S_TMP, S_TMP + 2)
    a("s_add_u32 s%d, s%d, s%d", S_J, S_TMP + 1, S_TMP + 2)
    a("s_add_u32 s%d, s%d, s%d", S_SIG, S_TA, S_TB)
    a("s_and_b32 s%d, s%d, 15", S_SIG, S_SIG)
    a("s_and_b32 s%d, s%d, %d", S_KB, S_SIG, KG)
    a("s_mul_i32 s%d, s%d, s%d", S_KB, S_KB, S_DIST)
    a("v_readfirstlane_b32 s%d, v1", S_W)
    lane_parts(a)
    a("s_cmp_lt_u32 s%d, 4", S_W)
    a("s_cbranch_scc1 %s_compute", name)

    EA, AO, AQ, AV, AM, ED = 216, 225, 226, 227, 228, 232
    SHD, SSH = S_TMP + 4, S_TMP + 5
    def attn_setup():
        srd(a, 16, 4, WS["O"], ACT_BYTES)
        a("s_and_b32 s%d, s%d, 1", SHD, S_W)
        SU = S_TMP + 5
        a("s_lshr_b32 s%d, s%d, 1", SU, S_W)
        a("s_lshl_b32 s%d, s%d, 2", S_TMP, SHD)
        a("v_add_u32 v3, s%d, v5", S_TMP)
        a("v_and_b32 v4, 7, v8")
        a("v_xor_b32 v3, v3, v4")
        a("v_lshlrev_b32 v3, 4, v3")
        a("v_lshl_add_u32 v3, v8, 8, v3")
        a("s_mul_i32 s%d, s%d, %d", S_TMP + 1, SU, 32 * 128)
        a("s_add_u32 s%d, s%d, %d", S_TMP + 1, S_TMP + 1, E)
        a("v_add_u32 v%d, s%d, v3", AQ, S_TMP + 1)
        a("v_lshl_add_u32 v3, v5, 2, v6")
        a("v_and_b32 v4, 7, v3")
        a("v_add_u32 v%d, s%d, v7", AM, S_TMP)
        a("v_xor_b32 v4, v4, v%d", AM)
        a("v_lshlrev_b32 v4, 4, v4")
        a("v_lshl_add_u32 v3, v3, 8, v4")
        a("s_add_u32 s%d, s%d, %d", S_TMP + 1, S_TMP + 1, 2 * REG)
        a("v_add_u32 v%d, s%d, v3", AV, S_TMP + 1)
        a("v_and_b32 v3, 7, v8")
        a("v_add_u32 v4, 1, v3")
        a("s_or_b32 s%d, s%d, s%d", S_TMP, S_TB, SU)
        a("s_cmp_eq_u32 s%d, 0", S_TMP)
        a("s_cselect_b32 s%d, 8, 0", S_TMP)
        a("v_cmp_gt_u32 vcc, 8, v8")
        a("v_mov_b32 v21, s%d", S_TMP)
        a("s_mov_b64 s[56:57], vcc")
        a("v_cndmask_b32 v21, 0, v21, vcc")
        a("v_max_u32 v4, v4, v21")
        a("v_add_u32 v3, 8, v3")
        a("v_sub_u32 v3, v3, v4")
        a("v_lshlrev_b32 v21, 2, v5")
        a("v_sub_u32 v21, v21, v4")
        a("v_mov_b32 v22, 0xf149f2ca")
        for r in range(4):
            a("v_add_u32 v23, %d, v21", r)
            a("v_cmp_ge_u32 vcc, v3, v23")
            a("s_nop 1")
            a("v_cndmask_b32 v%d, v22, 0, vcc", AM + r)
        a("s_lshl_b32 s%d, s%d, 7", S_TMP, S_TB)
        a("s_lshl_b32 s%d, s%d, 5", S_TMP + 1, SU)
        a("s_add_u32 s%d, s%d, s%d", S_TMP, S_TMP, S_TMP + 1)
        a("s_lshl_b32 s%d, s%d, 11", S_TMP, S_TMP)
        a("s_lshl_b32 s%d, s%d, 7", S_TMP + 1, S_TA)
        a("s_add_u32 s%d, s%d, s%d", S_TMP, S_TMP, S_TMP + 1)
        a("s_lshl_b32 s%d, s%d, 6", S_TMP + 1, SHD)
        a("s_add_u32 s%d, s%d, s%d", S_TMP, S_TMP, S_TMP + 1)
        a("v_lshlrev_b32 v%d, 12, v8", AO)
        a("v_lshl_add_u32 v%d, v5, 4, v%d", AO, AO)
        a("v_add_u32 v%d, s%d, v%d", AO, S_TMP, AO)
        a("s_mov_b32 s58, 0x%x", f32(32 ** -0.5))
        a("s_mov_b32 s59, 0x%x", f32(math.log2(math.e)))

    if OPT.get("ldprio"): a("s_setprio %d", OPT["ldprio"])
    a("s_sub_u32 s%d, s%d, 4", S_W, S_W)
    XO = Op("kc", 128, 2048)
    loader_voffs(a, XO, S_TB, 16)
    for p in range(3):
        loader_voffs(a, PW, S_TA, 10 + 2 * p, extra_cols=1024 * p)
    a("v_lshrrev_b32 v3, 3, v2")
    a("s_lshl_b32 s%d, s%d, 2", S_TMP, S_W)
    a("v_add_u32 v3, s%d, v3", S_TMP)
    a("v_lshrrev_b32 v4, 1, v3")
    a("v_xor_b32 v4, v4, v2")
    a("v_and_b32 v4, 7, v4")
    a("s_lshl_b32 s%d, s%d, 7", S_TMP, S_TB)
    a("s_sub_u32 s%d, s%d, 16", S_TMP, S_TMP)
    a("v_add_u32 v3, s%d, v3", S_TMP)
    a("v_max_i32 v3, 0, v3")
    a("v_lshlrev_b32 v3, 11, v3")
    a("v_lshl_add_u32 v20, v4, 4, v3")
    a("s_mul_i32 s%d, s%d, 2048", S_LA, S_W)
    a("s_mul_i32 s%d, s%d, 4096", S_LB, S_W)
    a("s_add_u32 s%d, s%d, %d", S_LB, S_LB, XB + 2048)
    a("s_mul_i32 s%d, s%d, 512", S_TMP + 6, S_W)
    a("s_add_u32 s%d, s%d, %d", S_TMP + 6, S_TMP + 6, XB)
    a("s_waitcnt lgkmcnt(0)")
    srd(a, 8, 30, 0, 1024 * 3072 * 2)
    srd(a, 56, 4, WS["CS"], CS_BYTES)
    ws_adjust(a)
    sel_ptr(a, 12, 1, WS["X2"])
    def issue(part):
        kidx_offsets(a, W, PW.kadv, 128, wrap=16)
        a("s_add_u32 s%d, s%d, s%d", S_M0A, S_SLOT, S_LA)
        a("s_add_u32 s%d, s%d, s%d", S_M0B, S_SLOT, S_LB)
        for i in range(4 if part != "W" else 0):
            a("s_add_u32 m0, s%d, %d", S_M0B, i * 1024)
            a("s_nop 0")
            a("buffer_load_dwordx4 v%d, s[12:15], s%d offen%s lds", 16 + i, S_OFB, ASC())
        for p in range(3 if part != "A" else 0):
            for i in range(2):
                a("s_add_u32 m0, s%d, %d", S_M0A, p * 8192 + i * 1024)
                a("s_nop 0")
                a("buffer_load_dwordx4 v%d, s[8:11], s%d offen lds", 10 + 2 * p + i, S_OFA)
        if part == "W": return
        a("s_add_u32 m0, s%d, s%d", S_SLOT, S_TMP + 6)
        a("s_mov_b32 exec_hi, 0")
        a("buffer_load_dwordx4 v20, s[12:15], s%d offen%s lds", S_OFB, ASC())
        a("s_mov_b32 exec_hi, -1")
    srd(a, 20, 4, WS["ST"], ST_BYTES)
    srd(a, 60, 16, 0, 256)
    a("s_sub_u32 s%d, s%d, s%d", S_TMP, S_SIG, S_J)
    a("s_and_b32 s%d, s%d, %d", S_TMP, S_TMP, W - 1)
    a("s_and_b32 s%d, s%d, %d", S_TMP + 1, S_SIG, 15 & ~KG & ~(W - 1))
    a("s_or_b32 s%d, s%d, s%d", S_TMP, S_TMP, S_TMP + 1)
    a("s_add_u32 s%d, s%d, %d", S_H1, S_TMP, S - 1)
    a("s_cmp_eq_u32 s%d, 0", S_DIST)
    a("s_cselect_b32 s%d, 0x7fff, s%d", S_H1, S_H1)
    a("s_add_u32 s%d, s%d, %d", S_H2, S_H1, S)
    a("s_cmp_lg_u32 s%d, 0", S_W)
    a("s_cselect_b32 s%d, 0x7fff, s%d", S_H2, S_H2)
    a("s_cmp_lt_u32 s%d, 0x7fff", S_H2)
    a("s_cselect_b32 s%d, %d, 0x7fff", S_H3, N - 4)
    a("s_add_u32 s%d, s%d, 1", S_H4, S_H3)
    a("s_mov_b32 s%d, %d", S_H5, N - 2)
    def slice_stats():
        SL = S_TMP + 4
        a("s_add_u32 s%d, s%d, %d", SL, S_SLOT, stage)
        a("s_cmp_eq_u32 s%d, %d", SL, S * stage)
        a("s_cselect_b32 s%d, 0, s%d", SL, SL)
        for i in range(3):
            a("s_mul_i32 s%d, s%d, 3", S_TMP + 2, S_W)
            a("s_add_u32 s%d, s%d, %d", S_TMP + 2, S_TMP + 2, i)
            a("s_lshr_b32 s%d, s%d, 2", S_TMP + 3, S_TMP + 2)
            a("s_lshl_b32 s%d, s%d, 13", S_TMP + 3, S_TMP + 3)
            a("s_add_u32 s%d, s%d, s%d", S_TMP + 3, S_TMP + 3, SL)
            a("s_and_b32 s%d, s%d, 3", S_TMP + 2, S_TMP + 2)
            read_addr_km(a, 64, S_TMP + 3, S_TMP + 2, 0, 21)
            for ks in range(2):
                for r in frag_reads("km", 64, [21], 0, ks, 24 + 8 * i + 4 * ks): a(r)
        a("s_lshr_b32 s%d, s%d, 7", S_TMP + 2, SL)
        a("s_lshl_b32 s%d, s%d, 5", S_TMP + 3, S_W)
        a("s_add_u32 s%d, s%d, s%d", S_TMP + 2, S_TMP + 2, S_TMP + 3)
        a("s_add_u32 s%d, s%d, 16", S_TMP + 2, S_TMP + 2)
        read_addrs_kc(a, XB, S_TMP + 2, 22)
        for i in range(2):
            for ks in range(2):
                for r in frag_reads("kc", 0, [22, 23], i, ks, 48 + 8 * i + 4 * ks): a(r)
        for r in range(4): a("v_mov_b32 v%d, 0x3f803f80", 64 + r)
        a("s_mul_i32 s%d, s%d, 12288", S_TMP + 2, S_SIG)
        a("s_lshl_b32 s%d, s%d, 8", S_TMP + 3, S_TA)
        a("s_add_u32 s%d, s%d, s%d", S_TMP + 2, S_TMP + 2, S_TMP + 3)
        a("v_lshl_add_u32 v21, v5, 4, s%d", S_TMP + 2)
        a("s_lshl_b32 s%d, s%d, 14", S_TMP + 2, S_SIG)
        a("s_lshl_b32 s%d, s%d, 10", S_TMP + 3, S_TB)
        a("s_add_u32 s%d, s%d, s%d", S_TMP + 2, S_TMP + 2, S_TMP + 3)
        a("s_lshl_b32 s%d, s%d, 8", S_TMP + 3, S_W)
        a("s_add_u32 s%d, s%d, s%d", S_TMP + 2, S_TMP + 2, S_TMP + 3)
        a("v_lshl_add_u32 v22, v8, 3, s%d", S_TMP + 2)
        a("s_waitcnt lgkmcnt(0)")
        mm = lambda d, x, y, first: a("v_mfma_f32_16x16x32_bf16 v[%d:%d], v[%d:%d], v[%d:%d], %s", d, d + 3, x, x + 3, y, y + 3,
                                      "0" if first else "v[%d:%d]" % (d, d + 3))
        for ks in range(2):
            for i in range(3): mm(68 + 4 * i, 24 + 8 * i + 4 * ks, 64, ks == 0)
            for i in range(2):
                mm(80 + 8 * i, 64, 48 + 8 * i + 4 * ks, ks == 0)
                mm(84 + 8 * i, 48 + 8 * i + 4 * ks, 48 + 8 * i + 4 * ks, ks == 0)
        a("v_cmp_eq_u32 s[%d:%d], 1, v7", S_TMP, S_TMP + 1)
        a("v_cmp_eq_u32 s[%d:%d], 2, v7", S_TMP + 2, S_TMP + 3)
        a("v_cmp_eq_u32 vcc, 3, v7")
        a("s_nop 7")
        for i in range(2):
            a("v_cndmask_b32 v%d, v%d, v%d, s[%d:%d]", 81 + 8 * i, 84 + 8 * i, 85 + 8 * i, S_TMP, S_TMP + 1)
            a("v_cndmask_b32 v%d, v%d, v%d, s[%d:%d]", 81 + 8 * i, 81 + 8 * i, 86 + 8 * i, S_TMP + 2, S_TMP + 3)
            a("v_cndmask_b32 v%d, v%d, v%d, vcc", 81 + 8 * i, 81 + 8 * i, 87 + 8 * i)
        a("s_mov_b32 exec_lo, 0x00f0000f")
        a("s_mov_b32 exec_hi, 0xf0000f00")
        for i in range(2):
            a("buffer_store_dwordx2 v[%d:%d], v22, s[20:23], 0 offen offset:%d sc1", 80 + 8 * i, 81 + 8 * i, 128 * i)
        a("s_mov_b32 exec_lo, 0x00010001")
        a("s_mov_b32 exec_hi, 0x00010001")
        for i in range(3):
            a("s_mul_i32 s%d, s%d, 3", S_TMP + 2, S_W)
            a("s_add_u32 s%d, s%d, %d", S_TMP + 2, S_TMP + 2, i)
            a("s_lshr_b32 s%d, s%d, 2", S_TMP + 3, S_TMP + 2)
            a("s_lshl_b32 s%d, s%d, 12", S_TMP + 3, S_TMP + 3)
            a("s_and_b32 s%d, s%d, 3", S_TMP + 2, S_TMP + 2)
            a("s_lshl_b32 s%d, s%d, 6", S_TMP + 2, S_TMP + 2)
            a("s_add_u32 s%d, s%d, s%d", S_TMP + 2, S_TMP + 2, S_TMP + 3)
            a("buffer_store_dwordx4 v[%d:%d], v21, s[56:59], s%d offen sc1", 68 + 4 * i, 71 + 4 * i, S_TMP + 2)
        a("s_mov_b64 exec, -1")
        a("s_or_b32 s%d, s%d, s%d", S_TMP, S_TA, S_TB)
        a("s_or_b32 s%d, s%d, s%d", S_TMP, S_TMP, S_W)
        a("s_cmp_lg_u32 s%d, 0", S_TMP)
        a("s_cbranch_scc1 %s_nocr", name)
        a("v_lshlrev_b32 v21, 8, v2")
        a("v_mov_b32 v22, 0")
        for area in (0, LOFF):
            srd(a, 84, 4, WS["CNT"] + area, CNT_BYTES)
            a("buffer_store_dword v22, v21, s[84:87], 0 offen sc1")
        a.label(name + "_nocr")
    def arrive():
        a("v_mov_b32 v21, 0")
        a("v_mov_b32 v22, 1")
        a("s_mov_b64 exec, 1")
        a("buffer_atomic_add v22, v21, s[60:63], 0 offen sc1")
        a("s_mov_b64 exec, -1")
    def poll_issue():
        a("v_mov_b32 v21, 0")
        a("buffer_load_dword v23, v21, s[60:63], 0 offen sc1")
    def poll_check():
        a("s_mov_b32 s%d, 0x20000", S_TMP + 1)
        a("v_mov_b32 v21, 0")
        a("s_waitcnt vmcnt(11)")
        a.label(name + "_poll")
        a("v_readfirstlane_b32 s%d, v23", S_TMP)
        a("s_sub_u32 s%d, s%d, 1", S_TMP + 1, S_TMP + 1)
        a("s_cmp_eq_u32 s%d, 0", S_TMP + 1)
        a("s_cbranch_scc1 %s_polled", name)
        a("s_cmp_ge_u32 s%d, 256", S_TMP)
        a("s_cbranch_scc1 %s_polled", name)
        a("s_sleep 8")
        a("buffer_load_dword v23, v21, s[60:63], 0 offen sc1")
        a("s_waitcnt vmcnt(0)")
        a("s_branch %s_poll", name)
        a.label(name + "_polled")
    def st_loads():
        a("s_lshl_b32 s%d, s%d, 6", S_TMP, S_W)
        a("v_add_u32 v21, s%d, v2", S_TMP)
        a("s_lshl_b32 s%d, s%d, 7", S_TMP + 1, S_TB)
        a("s_sub_u32 s%d, s%d, 16", S_TMP + 1, S_TMP + 1)
        a("v_add_u32 v3, s%d, v21", S_TMP + 1)
        a("v_max_i32 v3, 0, v3")
        a("v_min_u32 v3, 2047, v3")
        a("v_lshlrev_b32 v3, 3, v3")
        a("s_min_u32 s%d, s%d, 2", S_TMP, S_W)
        a("s_lshl_b32 s%d, s%d, 12", S_TMP, S_TMP)
        a("s_lshl_b32 s%d, s%d, 8", S_TMP + 1, S_TA)
        a("s_add_u32 s%d, s%d, s%d", S_TMP, S_TMP, S_TMP + 1)
        a("v_lshl_add_u32 v4, v2, 2, s%d", S_TMP)
        for k in range(16):
            a("s_mov_b32 s%d, %d", S_TMP, k * 16384)
            a("buffer_load_dwordx2 v[%d:%d], v3, s[20:23], s%d offen sc1", 24 + 2 * k, 25 + 2 * k, S_TMP)
            a("s_mov_b32 s%d, %d", S_TMP + 1, k * 3072 * 4)
            a("buffer_load_dword v%d, v4, s[56:59], s%d offen sc1", 56 + k, S_TMP + 1)
    def st_use():
        for st in (8, 4, 2, 1):
            for k in range(st):
                a("v_pk_add_f32 v[%d:%d], v[%d:%d], v[%d:%d]", 24 + 2 * k, 25 + 2 * k, 24 + 2 * k, 25 + 2 * k, 24 + 2 * (k + st), 25 + 2 * (k + st))
                a("v_add_f32 v%d, v%d, v%d", 56 + k, 56 + k, 56 + k + st)
        a("v_mul_f32 v24, 0x%x, v24", f32(1.0 / 1024))
        a("v_mul_f32 v25, 0x%x, v25", f32(1.0 / 1024))
        a("v_fma_f32 v25, -v24, v24, v25")
        a("v_max_f32 v25, 0, v25")
        round_bf16_scalar(a, 24)
        round_bf16_scalar(a, 25)
        a("v_add_f32 v25, 0x%x, v25", f32(1e-5))
        round_bf16_scalar(a, 25)
        a("v_sqrt_f32 v25, v25")
        a("s_nop 0")
        round_bf16_scalar(a, 25)
        a("v_rcp_f32 v26, v25")
        a("v_lshlrev_b32 v3, 3, v21")
        a("v_lshlrev_b32 v4, 2, v21")
        a("v_mul_f32 v27, -v24, v26")
        a("v_cmp_gt_u32 vcc, 144, v21")
        a("s_and_saveexec_b64 s[%d:%d], vcc", S_TMP, S_TMP + 1)
        a("v_add_u32 v3, %d, v3", LST)
        a("ds_write_b64 v3, v[26:27]")
        a("s_mov_b64 exec, s[%d:%d]", S_TMP, S_TMP + 1)
        a("v_cmp_gt_u32 vcc, 192, v21")
        a("s_and_saveexec_b64 s[%d:%d], vcc", S_TMP, S_TMP + 1)
        a("v_add_u32 v4, %d, v4", LCS)
        a("ds_write_b32 v4, v56")
        a("s_mov_b64 exec, s[%d:%d]", S_TMP, S_TMP + 1)
        a("s_waitcnt lgkmcnt(0)")
    def tail():
        a("s_waitcnt vmcnt(43)")
        a("s_barrier")
        a("s_waitcnt vmcnt(0)")
        st_use()
        a("s_barrier")
        srd(a, 20, 4, WS["EX"], ST_BYTES)
        a("s_lshl_b32 s%d, s%d, 4", S_TMP, S_TA)
        a("s_add_u32 s%d, s%d, s%d", S_TMP, S_TMP, S_TB)
        a("s_lshl_b32 s%d, s%d, 10", S_TMP, S_TMP)
        a("s_lshl_b32 s%d, s%d, 8", S_TMP + 1, S_W)
        a("s_add_u32 s%d, s%d, s%d", S_TMP, S_TMP, S_TMP + 1)
        a("v_lshlrev_b32 v3, 2, v2")
        a("v_mov_b32 v4, -1")
        a("buffer_store_dword v4, v3, s[20:23], s%d offen sc1", S_TMP)
        a("s_cmp_eq_u32 s%d, 0", S_DIST)
        a("s_cbranch_scc1 %s_nopf", name)
        srd(a, 20, 18, 0, 1024 * 1024 * 2)
        a("s_lshl_b32 s%d, s2, 13", S_TMP)
        a("s_lshl_b32 s%d, s%d, 11", S_TMP + 1, S_W)
        a("s_add_u32 s%d, s%d, s%d", S_TMP, S_TMP, S_TMP + 1)
        a("v_lshlrev_b32 v3, 4, v2")
        a("buffer_load_dwordx4 v[120:123], v3, s[20:23], s%d offen", S_TMP)
        a("buffer_load_dwordx4 v[120:123], v3, s[20:23], s%d offen offset:1024", S_TMP)
        a.label(name + "_nopf")
    def dep():
        a("s_cmp_eq_u32 s%d, 0", S_LAYER)
        a("s_cbranch_scc1 %s_dep_ok", name)
        if late_y("g4"): a("s_barrier")
        a("s_add_u32 s%d, s%d, %d", S_TMP, S_TB, C41)
        a("s_lshl_b32 s%d, s%d, 8", S_TMP, S_TMP)
        a("s_sub_u32 s%d, s%d, 256", S_TMP + 2, S_TMP)
        a("s_max_u32 s%d, s%d, %d", S_TMP + 2, S_TMP + 2, C41 * 256)
        wait_counters(a, name + "_dep", 16, 16)
    loader_loop(a, name, issue, 6, 5, N, S, stage, tail=tail, dep=None if prev_cut(name) else dep,
                events=[(S_H1, 5, slice_stats), (S_H2, 1, arrive), (S_H3, 1, poll_issue), (S_H4, 0, poll_check), (S_H5, 32, st_loads)])
    a("s_add_u32 s%d, s%d, 4", S_W, S_W)
    attn_setup()
    a("s_branch %s_attn", name)

    a.label(name + "_compute")
    na, nb = 6, 5
    ACC = 24
    acc = lambda i, j: ACC + 4 * (i * 4 + j) if j < 4 else ACC + 96 + 4 * (i - 4)
    nacc = 104
    FR = ACC + nacc
    fset = (na + nb) * 4
    fA = lambda st, i: FR + st * fset + 4 * i
    fB = lambda st, j: FR + st * fset + 4 * na + 4 * j
    VTOP = FR + 2 * fset
    SHD, SSH = S_TMP + 4, S_TMP + 5
    a("s_and_b32 s%d, s%d, 1", SHD, S_W)
    a("s_lshr_b32 s%d, s%d, 1", SSH, S_W)
    AR = 10
    def part_of(c, unit):
        if c == 0:
            a("s_mov_b32 s%d, 0", S_TMP + 3)
        else:
            a("s_xor_b32 s%d, s%d, %d", S_TMP + 3, SSH, 1 if c == 1 else 0)
            a("s_add_u32 s%d, s%d, 1", S_TMP + 3, S_TMP + 3)
            a("s_mul_i32 s%d, s%d, %d", S_TMP + 3, S_TMP + 3, unit)
    a("s_lshl_b32 s%d, s%d, 1", S_TMP + 2, SHD)
    for c in range(3):
        part_of(c, 8192)
        for i in range(2):
            read_addr_km(a, 64, S_TMP + 3, S_TMP + 2, i, AR + 2 * c + i)
    adA = [AR + i for i in range(6)]
    a("s_mul_i32 s%d, s%d, 64", S_TMP + 2, SSH)
    a("s_add_u32 s%d, s%d, 16", S_TMP + 2, S_TMP + 2)
    read_addrs_kc(a, XB, S_TMP + 2, AR + 6)
    read_addrs_kc(a, XB, None, AR + 8)
    adB, adH = [AR + 6, AR + 7], [AR + 8, AR + 9]
    for r in range(nacc): a("v_mov_b32 v%d, 0", ACC + r)
    for r in range(fset): a("v_mov_b32 v%d, 0", FR + fset + r)
    compute_loop_ctl_init(a, N, S, stage)
    if OPT.get("cprio"): a("s_setprio %d", OPT["cprio"])
    a("s_waitcnt lgkmcnt(0)")
    stamp(a, 1)
    ws_adjust(a)
    a("v_lshlrev_b32 v3, 3, v8")
    a("v_add_u32 v%d, %d, v3", EA + 1, LST)
    a("s_mul_i32 s%d, s%d, 512", S_TMP, SSH)
    a("s_add_u32 s%d, s%d, %d", S_TMP, S_TMP, LST + 128)
    a("v_add_u32 v%d, s%d, v3", EA, S_TMP)
    a("s_lshl_b32 s%d, s%d, 7", S_TMP, SHD)
    a("s_add_u32 s%d, s%d, %d", S_TMP, S_TMP, LCS)
    a("v_lshl_add_u32 v3, v5, 4, s%d", S_TMP)
    for c in range(3):
        part_of(c, 256)
        a("v_add_u32 v%d, s%d, v3", EA + 2 + c, S_TMP + 3)
    a("v_and_b32 v3, 1, v5")
    a("v_lshlrev_b32 v3, 1, v3")
    a("v_lshrrev_b32 v4, 1, v5")
    a("v_add_u32 v3, v3, v4")
    a("s_lshl_b32 s%d, s%d, 2", S_TMP, SHD)
    a("v_add_u32 v3, s%d, v3", S_TMP)
    a("v_lshrrev_b32 v4, 1, v8")
    a("v_xor_b32 v3, v3, v4")
    a("v_lshlrev_b32 v3, 4, v3")
    a("v_lshl_add_u32 v3, v8, 7, v3")
    a("s_mul_i32 s%d, s%d, %d", S_TMP + 2, SSH, 64 * 128)
    a("s_add_u32 s%d, s%d, %d", S_TMP + 2, S_TMP + 2, E + 16 * 128)
    for c in range(3):
        part_of(c, REG)
        a("s_add_u32 s%d, s%d, s%d", S_TMP, S_TMP + 2, S_TMP + 3)
        a("v_add_u32 v%d, s%d, v3", EA + 5 + c, S_TMP)
    a("s_add_u32 s%d, s%d, %d", S_TMP, S_TMP + 3, E)
    a("v_add_u32 v%d, s%d, v3", EA + 8, S_TMP)
    attn_setup()
    def mf(st):
        L = [(i, j) for i in range(6) for j in range(4)] + [(4, 4), (5, 4)]
        return ["v_mfma_f32_16x16x32_bf16 v[%d:%d], v[%d:%d], v[%d:%d], v[%d:%d]" %
                (acc(i, j), acc(i, j) + 3, fA(st, i), fA(st, i) + 3, fB(st, j), fB(st, j) + 3, acc(i, j), acc(i, j) + 3)
                for (i, j) in L]
    def rd(st, ks):
        L = []
        L += frag_reads("km", 64, adA, 0, ks, fA(st, 0))
        for j in range(4): L += frag_reads("kc", 0, adB, j, ks, fB(st, j))
        for i in range(1, 6): L += frag_reads("km", 64, adA, i, ks, fA(st, i))
        L += frag_reads("kc", 0, adH, 0, ks, fB(st, 4))
        return L
    SB = FR
    TV = SB + 36
    pr = lambda r: "v[%d:%d]" % (r, r + 1)
    def g1_final():
        for j in range(4): a("ds_read_b64 v[%d:%d], v%d offset:%d", SB + 2 * j, SB + 2 * j + 1, EA, j * 128)
        a("ds_read_b64 v[%d:%d], v%d", SB + 8, SB + 9, EA + 1)
        for c in range(3):
            for i in range(2):
                a("ds_read_b128 v[%d:%d], v%d offset:%d", SB + 12 + 4 * (2 * c + i), SB + 15 + 4 * (2 * c + i), EA + 2 + c, i * 64)
        M = dict(zip([(i, j) for i in range(6) for j in range(4)] + [(4, 4), (5, 4)], mf(1)))
        units = []
        for c in range(3):
            for j in range(5 if c == 2 else 4):
                c0_, c1_ = acc(2 * c, j), acc(2 * c + 1, j)
                d = ED + 4 * (len(units) & 3)
                prs = [(c0_, SB + 12 + 8 * c), (c0_ + 2, SB + 14 + 8 * c), (c1_, SB + 16 + 8 * c), (c1_ + 2, SB + 18 + 8 * c)]
                w = ["v_pk_mul_f32 %s, %s, %s op_sel:[0,1] op_sel_hi:[1,1]" % (pr(TV + 2 * q), pr(cs), pr(SB + 2 * j)) for q, (x, cs) in enumerate(prs)]
                w += ["v_pk_fma_f32 %s, %s, %s, %s op_sel:[0,0,0] op_sel_hi:[1,0,1]" % (pr(x), pr(x), pr(SB + 2 * j), pr(TV + 2 * q)) for q, (x, cs) in enumerate(prs)]
                w += ["v_cvt_pk_bf16_f32 v%d, v%d, v%d" % (d + q, x, x + 1) for q, (x, cs) in enumerate(prs)]
                w += ["s_nop 1", "v_permlane16_swap_b32 v%d, v%d" % (d, d + 2), "v_permlane16_swap_b32 v%d, v%d" % (d + 1, d + 3)]
                w += ["ds_write_b128 v%d, v[%d:%d] offset:%d" % (EA + 5 + c, d, d + 3, j * 2048) if j < 4 else "ds_write_b128 v%d, v[%d:%d]" % (EA + 8, d, d + 3)]
                units.append(([M[(2 * c, j)], M[(2 * c + 1, j)]], w))
        overlap_final(a, units, after_lead=lambda: a("s_waitcnt lgkmcnt(0)"))
        a("s_waitcnt lgkmcnt(0)")
    cloop(a, name, mf, rd, adA + adB + adH, S, stage, final=g1_final)

    a.label(name + "_attn")
    a("s_barrier")
    stamp(a, 5)
    if OPT.get("stamp"): a("s_waitcnt lgkmcnt(0)")
    def blk(p): return 24 + 48 * p
    for p in range(2):
        b = blk(p)
        a("ds_read_b128 v[%d:%d], v226 offset:%d", b, b + 3, 2048 + 128 * p)
        a("ds_read_b128 v[%d:%d], v226 offset:%d", b + 4, b + 7, REG + 128 * p)
        a("ds_read_b128 v[%d:%d], v226 offset:%d", b + 8, b + 11, REG + 2048 + 128 * p)
    for p in range(2):
        b = blk(p)
        for dt in range(2):
            for bb in range(2):
                d = b + 12 + 4 * dt + 2 * bb
                a("ds_read_b64_tr_b16 v[%d:%d], v227 offset:%d", d, d + 1, 128 * p + 2048 * bb + 8 * dt)
    a("s_waitcnt lgkmcnt(8)")
    for p in range(2):
        b = blk(p)
        a("v_mfma_f32_16x16x32_bf16 v[%d:%d], v[%d:%d], v[%d:%d], 0", b + 20, b + 23, b + 4, b + 7, b, b + 3)
        a("v_mfma_f32_16x16x32_bf16 v[%d:%d], v[%d:%d], v[%d:%d], 0", b + 24, b + 27, b + 8, b + 11, b, b + 3)
    a("s_nop 7")
    both = lambda f: [f(blk(p)) for p in range(2)]
    for p in range(2):
        b = blk(p)
        for r in range(4):
            a("v_cndmask_b32 v%d, v%d, v%d, s[56:57]", b + 20 + r, b + 24 + r, b + 20 + r)
    for p in range(2):
        b = blk(p)
        a("v_cvt_pk_bf16_f32 v%d, v%d, v%d", b + 24, b + 20, b + 21)
        a("v_cvt_pk_bf16_f32 v%d, v%d, v%d", b + 25, b + 22, b + 23)
    for p in range(2):
        b = blk(p)
        for q in range(2):
            a("v_lshlrev_b32 v%d, 16, v%d", b + 20 + 2 * q, b + 24 + q)
            a("v_and_b32 v%d, 0xffff0000, v%d", b + 21 + 2 * q, b + 24 + q)
    for p in range(2):
        b = blk(p)
        for r in range(4): a("v_mul_f32 v%d, s58, v%d", b + 20 + r, b + 20 + r)
    for p in range(2):
        b = blk(p)
        a("v_cvt_pk_bf16_f32 v%d, v%d, v%d", b + 24, b + 20, b + 21)
        a("v_cvt_pk_bf16_f32 v%d, v%d, v%d", b + 25, b + 22, b + 23)
    for p in range(2):
        b = blk(p)
        for q in range(2):
            a("v_lshlrev_b32 v%d, 16, v%d", b + 20 + 2 * q, b + 24 + q)
            a("v_and_b32 v%d, 0xffff0000, v%d", b + 21 + 2 * q, b + 24 + q)
    for p in range(2):
        b = blk(p)
        for r in range(4): a("v_fma_f32 v%d, v%d, s59, v%d", b + 20 + r, b + 20 + r, AM + r)
    for p in range(2):
        b = blk(p)
        a("v_max3_f32 v%d, v%d, v%d, v%d", b + 24, b + 20, b + 21, b + 22)
    for p in range(2):
        b = blk(p)
        a("v_max_f32 v%d, v%d, v%d", b + 24, b + 24, b + 23)
    def xreduce(op, off):
        for sw in ("v_permlane16_swap_b32", "v_permlane32_swap_b32"):
            for p in range(2):
                b = blk(p)
                a("v_mov_b32 v%d, v%d", b + off + 1, b + off)
            a("s_nop 1")
            for p in range(2):
                b = blk(p)
                a("%s v%d, v%d", sw, b + off, b + off + 1)
            a("s_nop 0")
            for p in range(2):
                b = blk(p)
                a("%s v%d, v%d, v%d", op, b + off, b + off, b + off + 1)
    xreduce("v_max_f32", 24)
    for p in range(2):
        b = blk(p)
        for r in range(4): a("v_sub_f32 v%d, v%d, v%d", b + 20 + r, b + 20 + r, b + 24)
    for p in range(2):
        b = blk(p)
        for r in range(4): a("v_exp_f32 v%d, v%d", b + 20 + r, b + 20 + r)
    for p in range(2):
        b = blk(p)
        a("v_add_f32 v%d, v%d, v%d", b + 24, b + 20, b + 21)
        a("v_add_f32 v%d, v%d, v%d", b + 25, b + 22, b + 23)
    for p in range(2):
        b = blk(p)
        a("v_add_f32 v%d, v%d, v%d", b + 24, b + 24, b + 25)
    xreduce("v_add_f32", 24)
    for p in range(2):
        b = blk(p)
        a("v_rcp_f32 v%d, v%d", b + 24, b + 24)
    a("s_nop 0")
    for p in range(2):
        b = blk(p)
        for r in range(4): a("v_mul_f32 v%d, v%d, v%d", b + 20 + r, b + 20 + r, b + 24)
    for p in range(2):
        b = blk(p)
        a("v_cvt_pk_bf16_f32 v%d, v%d, v%d", b + 24, b + 20, b + 21)
        a("v_cvt_pk_bf16_f32 v%d, v%d, v%d", b + 25, b + 22, b + 23)
    for p in range(2):
        b = blk(p)
        a("v_cndmask_b32 v%d, 0, v%d, s[56:57]", b + 28, b + 24)
        a("v_cndmask_b32 v%d, 0, v%d, s[56:57]", b + 29, b + 25)
        a("v_cndmask_b32 v%d, v%d, 0, s[56:57]", b + 30, b + 24)
        a("v_cndmask_b32 v%d, v%d, 0, s[56:57]", b + 31, b + 25)
    a("s_waitcnt lgkmcnt(0)")
    a("s_nop 0")
    for p in range(2):
        b = blk(p)
        for dt in range(2):
            a("v_mfma_f32_16x16x32_bf16 v[%d:%d], v[%d:%d], v[%d:%d], 0", b + 32 + 4 * dt, b + 35 + 4 * dt,
              b + 12 + 4 * dt, b + 15 + 4 * dt, b + 28, b + 31)
    a("s_nop 7")
    for p in range(2):
        b = blk(p)
        for q in range(4):
            a("v_cvt_pk_bf16_f32 v%d, v%d, v%d", b + 40 + q, b + 32 + 2 * q, b + 33 + 2 * q)
        a("buffer_store_dwordx4 v[%d:%d], v225, s[16:19], 0 offen offset:%d%s", b + 40, b + 43, 2048 * p, STF())
    stamp(a, 6)
    stamp_flush(a, name, 7)
    if not next_cut(name):
        finish(a, name, lambda a: (a("s_add_u32 s%d, s%d, %d", S_TMP, S_TB, C12), a("s_lshl_b32 s%d, s%d, 8", S_TMP, S_TMP)))
    a.label(name + "_done")
    a("s_endpgm")
    assert VTOP == 216
    GEMM_VTOP[name] = ED + 16
    return LCS + 768

def build():
    body = Asm()
    for c in str(OPT.get("cuts", "")).split("_"):
        if c: CUTS.add(c)
    def wm(a, ka, da, kb, db):
        a("s_cmp_eq_u32 s%d, 0", S_LAYER)
        a("s_cselect_b32 s%d, %d, %d", S_WM, OPT.get(ka, da) - 1, OPT.get(kb, db) - 1)
    def slot(a, sreg, base, shift=0):
        a("s_lshr_b32 s%d, s%d, %d", S_TMP, sreg, shift)
        a("s_add_u32 s%d, s%d, %d", S_TMP, S_TMP, base)
        a("s_lshl_b32 s%d, s%d, 8", S_TMP, S_TMP)
        a("s_mov_b32 s%d, s%d", S_TMP + 2, S_TMP)
    lds = {}
    lds["g1"] = gen_g1(body, "g1", W=OPT.get("W1", 2))

    def g2_ptrs(a, ph):
        if ph == 0:
            a("s_load_dwordx2 s[4:5], s[0:1], %d", ARG["ws"])
            a("s_load_dwordx2 s[6:7], s[0:1], %d", ARG["x"])
            a("s_load_dwordx2 s[30:31], s[0:1], %d", ARG["wo"])
        elif ph == "L":
            srd(a, 8, 30, 0, 1024 * 1024 * 2)
            srd(a, 12, 4, WS["O"], ACT_BYTES)
        else:
            sel_ptr(a, 20, 1, WS["X2"])
            srd(a, 16, 4, WS["X1"], ACT_BYTES)
            srd(a, 56, 4, WS["H"], 2048 * LDH)
            srd(a, 60, 4, WS["EX"], ST_BYTES)
    def g2_decode(a):
        a("s_and_b32 s%d, s2, 3", S_TMP)
        a("s_lshl_b32 s%d, s%d, 2", S_TMP, S_TMP)
        a("s_bfe_u32 s%d, s2, 0x20003", S_TMP + 1)
        a("s_add_u32 s%d, s%d, s%d", S_TB, S_TMP, S_TMP + 1)
        a("s_bfe_u32 s%d, s2, 0x10002", S_TMP)
        a("s_lshl_b32 s%d, s%d, 3", S_TMP, S_TMP)
        a("s_lshr_b32 s%d, s2, 5", S_TMP + 2)
        a("s_add_u32 s%d, s%d, s%d", S_TA, S_TMP, S_TMP + 2)
        a("s_add_u32 s%d, s%d, s%d", S_J, S_TMP + 1, S_TMP + 2)
        a("s_mov_b32 s%d, 0", S_KB)
    lds["g2"] = gen_gemm(body, "g2", 256, Op("km", 64, 2048), Op("kc", 128, 2048), 1, 4, 16, 4, OPT.get("W2", 2), g2_ptrs, g2_decode,
                         "resid", "ln2", 2048, cnt=lambda a: slot(a, S_TA, C23, 1),
                         dep=lambda a: (slot(a, S_TB, C12), wait_counters(a, "g2_dep", 16, 16)), lbase=32768 if OPT.get("latey") else 0)

    def g3_ptrs(a, ph):
        if ph == 0:
            a("s_load_dwordx2 s[4:5], s[0:1], %d", ARG["ws"])
            a("s_load_dwordx2 s[30:31], s[0:1], %d", ARG["w1"])
            a("s_load_dwordx2 s[6:7], s[0:1], %d", ARG["b1"])
        elif ph == "L":
            srd(a, 8, 30, 0, 2048 * 3584 * 2)
            srd(a, 12, 4, WS["H"], 2048 * LDH)
        else:
            srd(a, 20, 6, 0, 3584 * 2)
            srd(a, 16, 4, WS["U"], 1024 * LDU)
    def g3_decode(a):
        a("s_and_b32 s%d, s2, 1", S_TMP)
        a("s_lshl_b32 s%d, s%d, 2", S_TMP, S_TMP)
        a("s_bfe_u32 s%d, s2, 0x20003", S_TMP + 1)
        a("s_add_u32 s%d, s%d, s%d", S_TB, S_TMP, S_TMP + 1)
        a("s_bfe_u32 s%d, s2, 0x20001", S_TMP)
        a("s_mul_i32 s%d, s%d, 7", S_TMP, S_TMP)
        a("s_lshr_b32 s%d, s2, 5", S_TMP + 2)
        a("s_add_u32 s%d, s%d, s%d", S_TA, S_TMP, S_TMP + 2)
        a("s_add_u32 s%d, s%d, s%d", S_J, S_TMP + 1, S_TMP + 2)
        a("s_mov_b32 s%d, 0", S_KB)
        wm(a, "W3a", 4, "W3b", 2)
    def g3_cnt(a):
        a("s_cmp_ge_u32 s%d, 14", S_TA)
        a("s_cselect_b32 s%d, %d, %d", S_TMP, C34 + 1, C34)
        a("s_lshl_b32 s%d, s%d, 1", S_TMP + 1, S_TB)
        a("s_add_u32 s%d, s%d, s%d", S_TMP, S_TMP, S_TMP + 1)
        a("s_lshl_b32 s%d, s%d, 8", S_TMP, S_TMP)
    def g3_spare(a):
        a("s_cmp_ge_u32 s2, 256")
        a("s_cbranch_scc1 g3_done")
        a("s_load_dwordx2 s[4:5], s[0:1], %d", ARG["ws"])
        a("s_load_dwordx2 s[6:7], s[0:1], %d", ARG["w2"])
        a("s_sub_u32 s3, s2, 224")
        a("v_lshrrev_b32 v2, 6, v0")
        a("v_lshlrev_b32 v1, 4, v0")
        for r in range(4): a("v_mov_b32 v%d, -1", 8 + r)
        a("v_readfirstlane_b32 s%d, v2", S_W)
        a("s_lshl_b32 s13, s3, 17")
        if late_y("g2"):
            a("s_cmp_lt_u32 s%d, 4", S_W)
            a("s_cbranch_scc1 g3_spare_y")
            a("s_barrier")
            a.label("g3_spare_y")
        a("s_waitcnt lgkmcnt(0)")
        ws_adjust(a)
        srd(a, 8, 4, WS["PART"], PART_BYTES)
        for k in range(16):
            a("buffer_store_dwordx4 v[8:11], v1, s[8:11], s13 offen sc1")
            a("s_add_u32 s13, s13, 8192")
        if not next_cut("g3"):
            a("s_mov_b32 s%d, %d", S_TMP, CR * 256)
            count_in(a, "g3_spare_cin")
        a("s_cmp_lg_u32 s%d, 0", S_LAYER)
        a("s_cbranch_scc1 g3_spare_end")
        if OPT.get("pf", 1):
            srd(a, 8, 6, 0, 3584 * 2048 * 2)
            a("s_cmp_ge_u32 s3, 16")
            a("s_cselect_b32 s12, %d, 0", (1792 - 1024) * 4096)
            a("s_lshl_b32 s3, s3, 18")
            a("s_add_u32 s3, s3, s12")
            a("s_mov_b32 s12, 4")
            a.label("g3_spare_loop")
            for k in range(8):
                a("buffer_load_dwordx4 v[4:7], v1, s[8:11], s3 offen")
                a("s_add_u32 s3, s3, 8192")
            a("s_waitcnt vmcnt(8)")
            a("s_sub_u32 s12, s12, 1")
            a("s_cmp_lg_u32 s12, 0")
            a("s_cbranch_scc1 g3_spare_loop")
            a("s_waitcnt vmcnt(0)")
        a.label("g3_spare_end")
        if next_cut("g3"): a("s_endpgm")
        else:
            if late_y("g3"):
                a("s_cmp_ge_u32 s%d, 4", S_W)
                a("s_cbranch_scc1 g4_in")
                a("s_barrier")
            go_next(a, "g3")
    lds["g3"] = gen_gemm(body, "g3", 224, Op("km", 128, 7168), Op("km", 128, LDH), 2, 2, 32, 4, "s", g3_ptrs, g3_decode,
                         "biasA", "gelu", LDU, spare=g3_spare, cnt=g3_cnt,
                         dep=lambda a: (slot(a, S_TB, C23), wait_counters(a, "g3_dep", 32, 32)))

    def g4_ptrs(a, ph):
        if ph == 0:
            a("s_load_dwordx2 s[4:5], s[0:1], %d", ARG["ws"])
            a("s_load_dwordx2 s[6:7], s[0:1], %d", ARG["out"])
            a("s_load_dwordx2 s[30:31], s[0:1], %d", ARG["w2"])
            a("s_load_dwordx2 s[34:35], s[0:1], %d", ARG["b2"])
        elif ph == "L":
            srd(a, 8, 4, WS["U"], 1024 * LDU)
            srd(a, 12, 30, 0, 3584 * 2048 * 2)
        else:
            srd(a, 20, 4, WS["X1"], ACT_BYTES)
            srd(a, 56, 34, 0, 4096)
            sel_ptr(a, 16, 0, LOFF + WS["X2"])
            srd(a, 60, 4, LOFF + WS["ST"], ST_BYTES)
            srd(a, 84, 4, WS["PART"], PART_BYTES)
    def g4_decode(a):
        a("s_bfe_u32 s%d, s2, 0x10001", S_TMP)
        a("s_lshl_b32 s%d, s%d, 2", S_TMP, S_TMP)
        a("s_bfe_u32 s%d, s2, 0x20003", S_TMP + 1)
        a("s_add_u32 s%d, s%d, s%d", S_TA, S_TMP, S_TMP + 1)
        a("s_bfe_u32 s%d, s2, 0x10002", S_TMP)
        a("s_lshl_b32 s%d, s%d, 3", S_TMP, S_TMP)
        a("s_lshr_b32 s%d, s2, 5", S_TMP + 2)
        a("s_add_u32 s%d, s%d, s%d", S_TB, S_TMP, S_TMP + 2)
        a("s_and_b32 s%d, s2, 1", S_ROLE)
        a("s_add_u32 s%d, s%d, s%d", S_J, S_TMP + 1, S_TMP + 2)
        a("s_lshl_b32 s%d, s%d, 4", S_PAIR, S_TA)
        a("s_add_u32 s%d, s%d, s%d", S_PAIR, S_PAIR, S_TB)
        a("s_mul_i32 s%d, s%d, 28", S_KB, S_ROLE)
        wm(a, "W4a", 4, "W4b", 2)
    def g4_dep(a):
        a("s_lshl_b32 s%d, s%d, 1", S_TMP, S_TA)
        a("s_add_u32 s%d, s%d, s%d", S_TMP, S_TMP, S_ROLE)
        a("s_add_u32 s%d, s%d, %d", S_TMP, S_TMP, C34)
        a("s_lshl_b32 s%d, s%d, 8", S_TMP, S_TMP)
        a("s_mov_b32 s%d, %d", S_TMP + 2, CR * 256)
        wait_counters(a, "g4_dep", 14, 32)
    lds["g4"] = gen_gemm(body, "g4", 256, Op("kc", 128, LDU), Op("km", 128, 4096), 2, 2, 28, 4, "s", g4_ptrs, g4_decode,
                         "resid+biasB", "plain", 2048, stats=True, split=True, cnt=lambda a: slot(a, S_TB, C41), dep=g4_dep, wop="B")

    seq = [(p, ab) for ab in "ab" for p in PHASES]
    launches = []
    for k, (p, ab) in enumerate(seq):
        if k == 0 or prev_cut(p): launches.append([p + ab + "_kernel", 0, 0])
        launches[-1][1] = max(launches[-1][1], GEMM_VTOP[p])
        launches[-1][2] = LFLAG + 256
    body.label("code_end")
    for kn, vt, l in launches: kernel_desc(body, kn, vt, NSGPR)
    head = open("/code/%s.s.ref" % NAME).read().split("; Override launch geometry")[0]
    lines = ["; @launch kernel=%s grid=(256,1,1) block=(512,1,1) lds=%d" % (kn, l) for kn, vt, l in launches]
    return head + "\n".join(lines) + "\n" + '.amdgcn_target "amdgcn-amd-amdhsa--gfx950"\n' + body.text()

if __name__ == "__main__":
    out = sys.argv[1] if len(sys.argv) > 1 else "/code/%s.s" % NAME
    for o in sys.argv[2:]:
        k, _, v = o.partition("=")
        OPT[k] = (int(v) if v.isdigit() and k != "cuts" else v) if v else 1
    text = build()
    open(out, "w").write(text)
    import json
    json.dump(KID, open(out + ".kid", "w"))
    hazard.check(text)
```

```python
import sys, struct, math
from asmlib import *
import hazard

NAME = "interleave_layers__sliding_local_dilated__mixer_token_mlp__prompt"
MB = 1 << 20
WS = dict(ST=0, CS=1 * MB, EX=2 * MB, CNT=3 * MB, O=4 * MB, X1=8 * MB, H=12 * MB, U=17 * MB, X2=25 * MB, PART=29 * MB)
LDH = 2304
LDU = 8192
ST_BYTES = 16 * 2048 * 8
CS_BYTES = 16 * 3072 * 4
PART_BYTES = 256 * 16384
ARG = dict(x=0, wqkv=8, wo=16, bx=24, w1=32, b1=40, w2=48, b2=56, out=64, dbg=72, ws=80)
ACT_BYTES = 2048 * 1024 * 2

OPT = {}
for _o in sys.argv[2:]:
    _k, _, _v = _o.partition('=')
    if _k == 'LDH': LDH = int(_v)
    if _k == 'LDU': LDU = int(_v)

def STF():
    return {0: "", 1: " sc1", 2: " nt", 3: " sc0 sc1", 4: " sc0 sc1 nt"}[OPT.get("stf", 1)]

def ASC():
    return " sc1" if OPT.get("asc", 1) else ""

def f32(x):
    return struct.unpack("<I", struct.pack("<f", x))[0]

LOFF = 40 * MB
STAMP_OFF = 34 * MB
KID = {}
def stamp(a, k):
    if OPT.get("stamp"):
        a("%s s[%d:%d]", "s_memtime" if OPT["stamp"] == 2 else "s_memrealtime", 64 + 2 * k, 65 + 2 * k)

def stamp_flush(a, name, n, wsreg=4, waitvm=True, extra=False):
    if not OPT.get("stamp"): return
    kid = KID.setdefault(name, len(KID))
    if waitvm: a("s_waitcnt vmcnt(0)")
    a("%s s[%d:%d]", "s_memtime" if OPT["stamp"] == 2 else "s_memrealtime", 64 + 2 * n, 65 + 2 * n)
    a("s_waitcnt lgkmcnt(0)")
    a("s_add_u32 s84, s%d, 0x%x", wsreg, STAMP_OFF + kid * 512 * 1024)
    a("s_addc_u32 s85, s%d, 0", wsreg + 1)
    a("s_mov_b32 s86, 0x80000")
    a("s_mov_b32 s87, 0x20000")
    a("v_lshrrev_b32 v1, 6, v0")
    a("v_lshlrev_b32 v1, 6, v1")
    a("s_lshl_b32 s88, s2, 9")
    a("v_add_u32 v1, s88, v1")
    for k in range(n + 1 + extra):
        a("v_mov_b32 v2, s%d", 64 + 2 * k)
        a("buffer_store_dword v2, v1, s[84:87], 0 offen offset:%d", 4 * k)
        a("s_nop 1")

def srd(a, d, p, off, nbytes):
    if off:
        a("s_add_u32 s%d, s%d, 0x%x", d, p, off)
        a("s_addc_u32 s%d, s%d, 0", d + 1, p + 1)
    else:
        a("s_mov_b32 s%d, s%d", d, p)
        a("s_mov_b32 s%d, s%d", d + 1, p + 1)
    a("s_mov_b32 s%d, 0x%x", d + 2, nbytes)
    a("s_mov_b32 s%d, 0x20000", d + 3)

def round_bf16_scalar(a, v):
    a("v_cvt_pk_bf16_f32 v%d, v%d, v%d", v, v, v)
    a("v_lshlrev_b32 v%d, 16, v%d", v, v)

class Op:
    def __init__(self, kind, T, ld):
        self.kind, self.T, self.ld = kind, T, ld
        self.bytes = T * 128
        self.n = self.bytes // 1024
        self.npw = self.n // 4
        self.kadv = 128 if kind == "kc" else 64 * ld

S_TA, S_TB, S_KB, S_J, S_W = 24, 25, 26, 27, 28
S_T, S_SLOT, S_OFA, S_OFB = 32, 33, 34, 35
S_LA, S_LB, S_M0A, S_M0B = 36, 37, 38, 39
S_TMP = 40
S_CNT, S_DELTA, S_SI = 48, 49, 50
S_ST = 52
S_DP, S_DN = 51, 29
S_N, S_ROLE, S_PAIR, S_OWN, S_OTH, S_WM = 90, 91, 92, 93, 94, 95
S_LAYER, S_LOFF = 96, 97
NSGPR = 100
C12, C23, C34, C41, CR = 0, 16, 24, 40, 56
CUTS = set()

def loader_voffs(a, op, stile, vb, extra_cols=0):
    ld = op.ld
    a("s_mov_b32 s%d, %d", S_TMP, ld)
    if op.kind == "kc":
        a("v_lshrrev_b32 v3, 3, v2")
        a("v_mul_lo_u32 v3, v3, s%d", S_TMP)
        a("v_lshrrev_b32 v4, 4, v2")
        a("v_xor_b32 v4, v4, v2")
        a("v_and_b32 v4, 7, v4")
        a("v_lshl_add_u32 v3, v4, 4, v3")
        a("s_mul_i32 s%d, s%d, %d", S_TMP + 1, stile, op.T * ld)
        a("s_mul_i32 s%d, s%d, %d", S_TMP + 2, S_W, 8 * op.npw * ld)
        a("s_add_u32 s%d, s%d, s%d", S_TMP + 1, S_TMP + 1, S_TMP + 2)
        a("v_xor_b32 v4, 64, v3")
        for i in range(op.npw):
            a("s_add_u32 s%d, s%d, %d", S_TMP + 2, S_TMP + 1, i * 8 * ld)
            a("v_add_u32 v%d, s%d, v%d", vb + i, S_TMP + 2, 3 + (i & 1))
    elif op.T == 128:
        a("v_lshrrev_b32 v4, 4, v2")
        a("v_mul_lo_u32 v3, v4, s%d", S_TMP)
        a("v_lshlrev_b32 v4, 1, v4")
        a("v_xor_b32 v4, v4, v2")
        a("v_and_b32 v4, 15, v4")
        a("v_lshl_add_u32 v3, v4, 4, v3")
        a("s_mul_i32 s%d, s%d, 256", S_TMP + 1, stile)
        a("s_mul_i32 s%d, s%d, %d", S_TMP + 2, S_W, 16 * ld)
        a("s_add_u32 s%d, s%d, s%d", S_TMP + 1, S_TMP + 1, S_TMP + 2)
        a("v_xor_b32 v4, 128, v3")
        for i in range(4):
            a("s_add_u32 s%d, s%d, %d", S_TMP + 2, S_TMP + 1, i * 4 * ld)
            a("v_add_u32 v%d, s%d, v%d", vb + i, S_TMP + 2, 3 + (i >> 1))
    elif op.T == 64:
        a("v_lshrrev_b32 v3, 3, v2")
        a("v_mul_lo_u32 v3, v3, s%d", S_TMP)
        a("v_bfe_u32 v4, v2, 4, 1")
        a("v_lshlrev_b32 v4, 1, v4")
        a("v_xor_b32 v4, v4, v2")
        a("v_and_b32 v4, 7, v4")
        a("v_lshl_add_u32 v3, v4, 4, v3")
        a("s_mul_i32 s%d, s%d, 128", S_TMP + 1, stile)
        a("s_mul_i32 s%d, s%d, %d", S_TMP + 2, S_W, 16 * ld)
        a("s_add_u32 s%d, s%d, s%d", S_TMP + 1, S_TMP + 1, S_TMP + 2)
        a("v_xor_b32 v4, 64, v3")
        for i in range(2):
            a("s_add_u32 s%d, s%d, %d", S_TMP + 2, S_TMP + 1, i * 8 * ld + extra_cols * 2)
            a("v_add_u32 v%d, s%d, v%d", vb + i, S_TMP + 2, 3 + i)
    else:
        raise ValueError

def lane_parts(a):
    a("v_lshrrev_b32 v5, 4, v2")
    a("v_bfe_u32 v6, v2, 2, 2")
    a("v_and_b32 v7, 3, v2")
    a("v_and_b32 v8, 15, v2")

def read_addrs_kc(a, opbase, srow, vb):
    a("v_lshrrev_b32 v3, 1, v8")
    a("v_xor_b32 v3, v3, v5")
    a("v_lshlrev_b32 v3, 4, v3")
    a("v_lshl_add_u32 v3, v8, 7, v3")
    if srow is not None:
        a("s_lshl_b32 s%d, s%d, 7", S_TMP, srow)
        a("s_add_u32 s%d, s%d, %d", S_TMP, S_TMP, opbase)
        a("v_add_u32 v%d, s%d, v3", vb, S_TMP)
    else:
        a("v_add_u32 v%d, %d, v3", vb, opbase)
    a("v_xor_b32 v%d, 64, v%d", vb + 1, vb)

def read_addr_km(a, T, sbase, stile, i, vd, sxor=None):
    rowb = T * 2
    if T == 128:
        a("v_and_b32 v3, 1, v5")
        a("v_lshl_or_b32 v3, v3, 2, v6")
    else:
        a("v_and_b32 v3, 1, v5")
        a("v_lshlrev_b32 v3, 1, v3")
        a("v_lshrrev_b32 v4, 1, v6")
        a("v_or_b32 v3, v3, v4")
    a("s_add_u32 s%d, s%d, %d", S_TMP, stile, i)
    if sxor is not None: a("s_xor_b32 s%d, s%d, s%d", S_TMP, S_TMP, sxor)
    a("v_xor_b32 v3, s%d, v3", S_TMP)
    a("v_lshlrev_b32 v3, 5, v3")
    a("v_lshl_add_u32 v3, v7, 3, v3")
    a("v_lshl_add_u32 v4, v5, 3, v6")
    a("v_lshl_add_u32 v3, v4, %d, v3", rowb.bit_length() - 1)
    a("v_add_u32 v%d, s%d, v3", vd, sbase)

def frag_reads(kind, T, addr_regs, idx, ks, dst):
    if kind == "kc":
        return ["ds_read_b128 v[%d:%d], v%d offset:%d" % (dst, dst + 3, addr_regs[ks], idx * 2048)]
    rowb = T * 2
    return ["ds_read_b64_tr_b16 v[%d:%d], v%d offset:%d" % (dst + 2 * h, dst + 2 * h + 1, addr_regs[idx], h * 4 * rowb + ks * 32 * rowb)
            for h in range(2)]

def interleave(a, mfmas, reads, tail=()):
    reads = list(reads); tail = list(tail)
    if OPT.get("noreads"): reads = []
    if OPT.get("nomfma"): mfmas = ["s_nop 0"] * 2
    for m in mfmas:
        a(m)
        budget = 2
        while reads and budget > 0:
            cost = 2 if "b128" in reads[0] else 1
            if cost > budget: break
            a(reads.pop(0)); budget -= cost
        if not reads:
            while tail and budget > 0:
                a(tail.pop(0)); budget -= 1
    for r in reads: a(r)
    for t in tail: a(t)

def loader_loop(a, name, issue, nW, nA, N, S, stage_bytes, dep=None, events=(), tail=None):
    n = nW + nA
    early = OPT.get("early", 1)
    def adv():
        a("s_add_u32 s%d, s%d, %d", S_SLOT, S_SLOT, stage_bytes)
        a("s_add_u32 s%d, s%d, 1", S_T, S_T)
    for part in (("W", "A") if early else (None,)):
        if part != "W" and dep: dep()
        a("s_mov_b32 s%d, 0", S_T)
        a("s_mov_b32 s%d, 0", S_SLOT)
        a.label("%s_ld_p%s" % (name, part))
        issue(part)
        adv()
        a("s_cmp_lt_u32 s%d, %d", S_T, S - 1)
        a("s_cbranch_scc1 %s_ld_p%s", name, part)
    special = {S - 1 + k: (S - 2 - k) * nA + k * n for k in range(S - 2)} if early else {}
    a("s_waitcnt vmcnt(%d)", special.pop(S - 1, (S - 2) * n))
    a("s_branch %s_ld_bar", name)
    a.label(name + "_ld_loop")
    for T in special:
        a("s_cmp_eq_u32 s%d, %d", S_T, T)
        a("s_cbranch_scc1 %s_ld_s%d", name, T)
    for k, (at, extra, fn) in enumerate(events):
        if extra:
            a("s_sub_u32 s%d, s%d, s%d", S_TMP, S_T, at)
            a("s_sub_u32 s%d, s%d, 1", S_TMP, S_TMP)
            a("s_cmp_lt_u32 s%d, %d", S_TMP, S - 1)
            a("s_cbranch_scc1 %s_ld_w%d", name, k)
    a("s_waitcnt vmcnt(%d)", (S - 2) * n)
    a.label(name + "_ld_bar")
    a("s_barrier")
    issue(None)
    for k, (at, extra, fn) in enumerate(events):
        a("s_cmp_eq_u32 s%d, s%d", S_T, at)
        a("s_cbranch_scc1 %s_ld_h%d", name, k)
        a.label(name + "_ld_c%d" % k)
    adv()
    a("s_cmp_eq_u32 s%d, %d", S_SLOT, S * stage_bytes)
    a("s_cselect_b32 s%d, 0, s%d", S_SLOT, S_SLOT)
    a("s_cmp_lt_u32 s%d, %d", S_T, N)
    a("s_cbranch_scc1 %s_ld_loop", name)
    if tail: tail()
    else:
        for t in range(N - S + 1, N):
            a("s_waitcnt vmcnt(%d)", (N - 1 - t) * n)
            a("s_barrier")
    if events or special:
        a("s_branch %s_ld_end", name)
        for T, c in special.items():
            a.label(name + "_ld_s%d" % T)
            a("s_waitcnt vmcnt(%d)", c)
            a("s_branch %s_ld_bar", name)
        for k, (at, extra, fn) in enumerate(events):
            if extra:
                a.label(name + "_ld_w%d" % k)
                a("s_waitcnt vmcnt(%d)", (S - 2) * n + extra)
                a("s_branch %s_ld_bar", name)
            a.label(name + "_ld_h%d" % k)
            fn()
            a("s_branch %s_ld_c%d", name, k)
        a.label(name + "_ld_end")

def kidx_offsets(a, W, advA, advB, wrap=0):
    wm = ("s%d" % S_WM) if W == "s" else str(W - 1)
    a("s_add_u32 s%d, s%d, s%d", S_TMP, S_T, S_J)
    a("s_and_b32 s%d, s%d, %s", S_TMP, S_TMP, wm)
    a("s_andn2_b32 s%d, s%d, %s", S_TMP + 1, S_T, wm)
    a("s_or_b32 s%d, s%d, s%d", S_TMP, S_TMP, S_TMP + 1)
    a("s_add_u32 s%d, s%d, s%d", S_TMP, S_TMP, S_KB)
    if wrap: a("s_and_b32 s%d, s%d, %d", S_TMP, S_TMP, wrap - 1)
    a("s_mul_i32 s%d, s%d, %d", S_OFA, S_TMP, advA)
    a("s_mul_i32 s%d, s%d, %d", S_OFB, S_TMP, advB)

def compute_loop_ctl_init(a, N, S, stage_bytes):
    a("s_mov_b32 s%d, %s", S_CNT, N)
    a("s_mov_b32 s%d, 0", S_SI)
    a("s_mov_b32 s%d, %d", S_DP, stage_bytes)
    a("s_mov_b32 s%d, 0x%x", S_DN, (-(S - 1) * stage_bytes) & 0xffffffff)

def addr_update(addr_regs, S, stage_bytes):
    L = ["s_add_u32 s%d, s%d, 1" % (S_SI, S_SI),
         "s_cmp_eq_u32 s%d, %d" % (S_SI, S),
         "s_cselect_b32 s%d, s%d, s%d" % (S_DELTA, S_DN, S_DP),
         "s_cselect_b32 s%d, 0, s%d" % (S_SI, S_SI)]
    L += ["v_add_u32 v%d, s%d, v%d" % (r, S_DELTA, r) for r in addr_regs]
    L += ["s_sub_u32 s%d, s%d, 1" % (S_CNT, S_CNT), "s_cmp_lg_u32 s%d, 0" % S_CNT]
    return L

def gelu_pairs(a, regs, tmp, cst):
    n = len(regs)
    pr = lambda r: "v[%d:%d]" % (r, r + 1)
    for k, r in enumerate(regs): a("v_pk_mul_f32 %s, %s, %s", pr(tmp + 2 * k), pr(r), pr(r))
    for k, r in enumerate(regs): a("v_pk_fma_f32 %s, %s, %s, %s", pr(tmp + 2 * k), pr(tmp + 2 * k), pr(cst), pr(cst + 2))
    for k, r in enumerate(regs): a("v_pk_mul_f32 %s, %s, %s", pr(tmp + 2 * k), pr(tmp + 2 * k), pr(r))
    for k in range(2 * n): a("v_exp_f32 v%d, v%d", tmp + k, tmp + k)
    for k, r in enumerate(regs): a("v_pk_add_f32 %s, %s, %s", pr(tmp + 2 * k), pr(tmp + 2 * k), pr(cst + 4))
    for k in range(2 * n): a("v_rcp_f32 v%d, v%d", tmp + k, tmp + k)
    for k, r in enumerate(regs): a("v_pk_mul_f32 %s, %s, %s", pr(r), pr(r), pr(tmp + 2 * k))

def cloop(a, name, mf, rd, addrs, S, stage, first=None, mid=None, final=None):
    stamp(a, 2)
    if OPT.get("stamp") or first:
        a("s_barrier")
        stamp(a, 3)
        if first: first()
        if OPT.get("stamp"): a("s_waitcnt lgkmcnt(0)")
        a("s_branch %s_cloop2", name)
    if mid:
        a.label(name + "_mid")
        a("s_waitcnt vmcnt(0)")
        a("s_nop 7")
        mid[1]()
        a("s_nop 1")
        a("s_branch %s_cloop2", name)
    a.raw(".p2align 3")
    a.label(name + "_cloop")
    a("s_barrier")
    if mid:
        a("s_cmp_eq_u32 s%d, %d", S_CNT, mid[0])
        a("s_cbranch_scc1 %s_mid", name)
    a.label(name + "_cloop2")
    interleave(a, mf(1), rd(0, 0))
    a("s_waitcnt lgkmcnt(0)")
    interleave(a, mf(0), rd(1, 1), addr_update(addrs, S, stage))
    a("s_waitcnt lgkmcnt(0)")
    a("s_cbranch_scc1 %s_cloop", name)
    stamp(a, 4)
    if final: final()
    else:
        for m in mf(1): a(m)

def overlap_final(a, units, lead=3, after_lead=None):
    for u in range(min(lead, len(units))):
        for m in units[u][0]: a(m)
    if after_lead: after_lead()
    for u, (_, work) in enumerate(units):
        ms = list(units[u + lead][0]) if u + lead < len(units) else []
        step = max(1, len(work) // max(1, len(ms)))
        if u + 1 == len(units) or u + lead >= len(units): pass
        for k, w in enumerate(work):
            if ms and k % step == 0: a(ms.pop(0))
            a(w)
        for m in ms: a(m)

GEMM_VTOP = {}
CNT_BYTES = 64 * 256
def count_in(a, label, area=0):
    srd(a, 84, 4, WS["CNT"] + area, CNT_BYTES)
    a("v_mov_b32 v3, s%d", S_TMP)
    a("v_mov_b32 v4, 1")
    a("s_waitcnt vmcnt(0)")
    a("s_barrier")
    a("s_cmp_lg_u32 s%d, 0", S_W)
    a("s_cbranch_scc1 %s", label)
    a("s_mov_b64 exec, 1")
    a("buffer_atomic_add v4, v3, s[84:87], 0 offen sc1")
    a("s_mov_b64 exec, -1")
    a.label(label)

LFLAG = 131072
def wait_counters(a, label, need0, need1):
    pid = PHASES.index(label[:2]) + 1
    a("s_lshl_b32 s%d, s%d, 2", S_TMP + 3, S_LAYER)
    a("s_add_u32 s%d, s%d, %d", S_TMP + 3, S_TMP + 3, pid)
    a("s_mov_b32 s%d, 0x80000", S_TMP + 1)
    a("v_mov_b32 v24, %d", LFLAG)
    if OPT.get("poll1", 1):
        a("s_cmp_lg_u32 s%d, 0", S_W)
        a("s_cbranch_scc1 %s_lds", label)
    a("s_mov_b32 s%d, 0x8000", S_TMP + 1)
    srd(a, 84, 4, WS["CNT"], CNT_BYTES)
    a("v_cmp_eq_u32 vcc, 1, v2")
    a("v_mov_b32 v21, s%d", S_TMP)
    a("v_mov_b32 v23, s%d", S_TMP + 2)
    a("v_cndmask_b32 v21, v21, v23, vcc")
    a("v_mov_b32 v22, %d", need0)
    a("v_mov_b32 v23, %d", need1)
    a("v_cndmask_b32 v22, v22, v23, vcc")
    a.label(label)
    a("buffer_load_dword v23, v21, s[84:87], 0 offen sc1")
    a("s_sub_u32 s%d, s%d, 1", S_TMP + 1, S_TMP + 1)
    a("s_waitcnt vmcnt(0)")
    a("v_cmp_lt_u32 vcc, v23, v22")
    a("s_cmp_eq_u32 s%d, 0", S_TMP + 1)
    a("s_cbranch_scc1 %s_seen", label)
    a("s_cbranch_vccz %s_seen", label)
    a("s_sleep %d", OPT.get("dslp", 2))
    a("s_branch %s", label)
    a.label(label + "_seen")
    a("v_mov_b32 v23, s%d", S_TMP + 3)
    a("ds_write_b32 v24, v23")
    a("s_branch %s_ok", label)
    a.label(label + "_lds")
    a("ds_read_b32 v23, v24")
    a("s_sub_u32 s%d, s%d, 1", S_TMP + 1, S_TMP + 1)
    a("s_waitcnt lgkmcnt(0)")
    a("v_readfirstlane_b32 s%d, v23", S_TMP)
    a("s_cmp_eq_u32 s%d, 0", S_TMP + 1)
    a("s_cbranch_scc1 %s_ok", label)
    a("s_cmp_eq_u32 s%d, s%d", S_TMP, S_TMP + 3)
    a("s_cbranch_scc1 %s_ok", label)
    a("s_sleep 1")
    a("s_branch %s_lds", label)
    a.label(label + "_ok")

PHASES = ["g1", "g2", "g3", "g4"]
def prev_cut(name):
    k = PHASES.index(name)
    return "%d%d" % ((k - 1) % 4 + 1, k + 1) in CUTS
def next_cut(name):
    k = PHASES.index(name)
    return "%d%d" % (k + 1, (k + 1) % 4 + 1) in CUTS

def entry(a, name, ntiles, spare=False):
    for layer, ab in enumerate("ab"):
        if prev_cut(name) or (name == "g1" and layer == 0):
            kernel_header(a, "%s%s_kernel" % (name, ab))
            a("s_mov_b32 s%d, %d", S_LAYER, layer)
            a("s_mov_b32 s%d, 0x%x", S_LOFF, layer * LOFF)
            a("v_mov_b32 v1, %d", LFLAG)
            a("v_mov_b32 v2, 0")
            a("ds_write_b32 v1, v2")
            dbg_stamp(a, 1, inv=True)
            a("s_branch %s_in", name)
            KERNELS.append("%s%s_kernel" % (name, ab))
    a.raw(".p2align 6")
    a.label(name + "_in")
    a("s_cmp_ge_u32 s2, %d", ntiles)
    a("s_cbranch_scc1 %s_%s", name, "spare" if spare else "done")
    stamp(a, 0)
KERNELS = []

def ws_adjust(a):
    a("s_add_u32 s4, s4, s%d", S_LOFF)
    a("s_addc_u32 s5, s5, 0")

def sel_ptr(a, d, which_layer, off):
    a("s_add_u32 s%d, s4, 0x%x", d, off)
    a("s_addc_u32 s%d, s5, 0", d + 1)
    a("s_cmp_eq_u32 s%d, %d", S_LAYER, which_layer)
    a("s_cselect_b32 s%d, s%d, s6", d, d)
    a("s_cselect_b32 s%d, s%d, s7", d + 1, d + 1)
    a("s_mov_b32 s%d, 0x%x", d + 2, ACT_BYTES)
    a("s_mov_b32 s%d, 0x20000", d + 3)

def late_y(name):
    return OPT.get("latey", 0) and name != "g1" and not next_cut(name)

def go_next(a, name):
    if name == "g4":
        a("s_mov_b32 s%d, 1", S_LAYER)
        a("s_mov_b32 s%d, 0x%x", S_LOFF, LOFF)
    a("s_branch %s_in", PHASES[(PHASES.index(name) + 1) % 4])

def dbg_stamp(a, slot_base, inv=False):
    if not OPT.get("dstamp"): return
    lab = a.newlabel("dst")
    a("v_readfirstlane_b32 s72, v0")
    a("s_and_b32 s73, s2, 31")
    a("s_or_b32 s72, s72, s73")
    a("s_cmp_lg_u32 s72, 0")
    a("s_cbranch_scc1 %s", lab)
    a("s_load_dwordx2 s[64:65], s[0:1], %d", ARG["dbg"])
    a("s_memrealtime s[66:67]")
    a("s_waitcnt vmcnt(0) lgkmcnt(0)")
    srd(a, 68, 64, 0, 256)
    if inv: a("s_not_b32 s66, s66")
    a("s_lshl_b32 s72, s%d, 4", S_LAYER)
    a("s_add_u32 s72, s72, %d", slot_base * 4)
    a("v_mov_b32 v3, s72")
    a("v_mov_b32 v4, s66")
    a("s_mov_b64 exec, 1")
    a("buffer_atomic_umax v4, v3, s[68:71], 0 offen sc1")
    a("s_mov_b64 exec, -1")
    a.label(lab)

def finish(a, name, cnt, loader=False):
    if not loader: dbg_stamp(a, 2 + PHASES.index(name))
    if next_cut(name):
        a("s_endpgm")
        return
    if name == "g4":
        a("s_cmp_lg_u32 s%d, 0", S_LAYER)
        a("s_cbranch_scc1 %s_done", name)
    if loader:
        if not late_y(name): a("s_barrier")
    else:
        cnt(a)
        count_in(a, name + "_cin", LOFF if name == "g4" else 0)
    go_next(a, name)

def gen_gemm(a, name, ntiles, A, B, WA, WB, N, S, W, ptrs, decode, init, epi, ldc, cnt, dep, stats=False, spare=None, split=None, wop="A", lbase=0):
    na, nb = A.T // (16 * WA), B.T // (16 * WB)
    stage = A.bytes + B.bytes
    baseA, baseB = lbase, lbase + A.bytes
    entry(a, name, ntiles, spare is not None)
    ptrs(a, 0)
    a("v_lshrrev_b32 v1, 6, v0")
    a("v_and_b32 v2, 63, v0")
    decode(a)
    a("v_readfirstlane_b32 s%d, v1", S_W)
    a("s_nop 0")
    a("s_cmp_lt_u32 s%d, 4", S_W)
    a("s_cbranch_scc1 %s_compute", name)

    if OPT.get("ldprio"): a("s_setprio %d", OPT["ldprio"])
    a("s_sub_u32 s%d, s%d, 4", S_W, S_W)
    loader_voffs(a, A, S_TA, 10)
    loader_voffs(a, B, S_TB, 10 + A.npw)
    a("s_mul_i32 s%d, s%d, %d", S_LA, S_W, A.npw * 1024)
    if baseA: a("s_add_u32 s%d, s%d, %d", S_LA, S_LA, baseA)
    a("s_mul_i32 s%d, s%d, %d", S_LB, S_W, B.npw * 1024)
    a("s_add_u32 s%d, s%d, %d", S_LB, S_LB, baseB)
    a("s_waitcnt lgkmcnt(0)")
    ws_adjust(a)
    ptrs(a, "L")
    def issue(part):
        kidx_offsets(a, W, A.kadv, B.kadv)
        a("s_add_u32 s%d, s%d, s%d", S_M0A, S_SLOT, S_LA)
        a("s_add_u32 s%d, s%d, s%d", S_M0B, S_SLOT, S_LB)
        for (op, vb, sm, so, sr) in ((A, 10, S_M0A, S_OFA, 8), (B, 10 + A.npw, S_M0B, S_OFB, 12)):
            if part and (part == "W") != (op is Wop): continue
            for i in range(op.npw):
                a("s_add_u32 m0, s%d, %d", sm, i * 1024)
                a("s_nop 0")
                a("buffer_load_dwordx4 v%d, s[%d:%d], s%d offen%s lds", vb + i, sr, sr + 3, so, "" if op is Wop else ASC())
    Wop = B if wop == "B" else A
    def gdep():
        if late_y(PHASES[PHASES.index(name) - 1]): a("s_barrier")
        dep(a)
    loader_loop(a, name, issue, Wop.npw, A.npw + B.npw - Wop.npw, N, S, stage, dep=None if prev_cut(name) else gdep)
    if not next_cut(name): finish(a, name, cnt, loader=True)
    a.label(name + "_done")
    a("s_endpgm")

    a.label(name + "_compute")
    ACC = 28
    BV = 22
    nacc = na * nb * 4
    FR = ACC + nacc
    fset = (na + nb) * 4
    fA = lambda st, i: FR + st * fset + 4 * i
    fB = lambda st, j: FR + st * fset + 4 * na + 4 * j
    acc = lambda i, j: ACC + 4 * (i * nb + j)
    VTOP = FR + 2 * fset
    if epi == "ln2":
        EXV = VTOP
        VTOP += 16
    nk = nb // 2 if split else nb
    if split:
        SND, RCV = VTOP, VTOP + 16
        VTOP += 32
    lane_parts(a)
    SWA, SWB = S_TMP + 4, S_TMP + 5
    a("s_and_b32 s%d, s%d, %d", SWA, S_W, WA - 1)
    a("s_lshr_b32 s%d, s%d, %d", SWB, S_W, WA.bit_length() - 1)
    a("s_mul_i32 s%d, s%d, %d", S_TMP, S_TB, B.T)
    a("s_mul_i32 s%d, s%d, %d", S_TMP + 1, SWB, nb * 16)
    a("s_add_u32 s%d, s%d, s%d", S_TMP, S_TMP, S_TMP + 1)
    if split:
        a("s_lshl_b32 s%d, s%d, 5", S_TMP + 1, S_ROLE)
        a("s_add_u32 s%d, s%d, s%d", S_TMP, S_TMP, S_TMP + 1)
    a("v_add_u32 v20, s%d, v8", S_TMP)
    a("s_mov_b32 s%d, %d", S_TMP + 1, ldc)
    a("v_mul_lo_u32 v9, v20, s%d", S_TMP + 1)
    a("s_mul_i32 s%d, s%d, %d", S_TMP, S_TA, A.T * 2)
    a("s_mul_i32 s%d, s%d, %d", S_TMP + 1, SWA, na * 32)
    a("s_add_u32 s%d, s%d, s%d", S_TMP + 6, S_TMP, S_TMP + 1)
    a("v_and_b32 v3, 1, v5")
    a("v_lshlrev_b32 v3, 5, v3")
    a("v_lshrrev_b32 v4, 1, v5")
    a("v_lshl_add_u32 v3, v4, 4, v3")
    a("v_add3_u32 v9, v9, v3, s%d", S_TMP + 6)
    for j in range(nb):
        a("s_mov_b32 s%d, %d", S_ST + j, j * 16 * ldc)
    a("s_waitcnt lgkmcnt(0)")
    stamp(a, 1)
    ws_adjust(a)
    ptrs(a, "C")
    resid = init in ("resid", "resid+biasB")
    if resid:
        RES = VTOP
        VTOP += 24
    def resid_loads():
        for j in range(nk):
            for p in range(na // 2):
                d = RES + 4 * (j * (na // 2) + p)
                a("buffer_load_dwordx4 v[%d:%d], v9, s[20:23], s%d offen offset:%d%s", d, d + 3, S_ST + j, p * 64, ASC())
        if init == "resid+biasB":
            a("v_lshlrev_b32 v3, 1, v20")
            for j in range(nk):
                a("buffer_load_ushort v%d, v3, s[56:59], 0 offen offset:%d", BV + j, j * 32)
    def resid_add():
        T = RES + 16
        for q in range(nk * na // 2):
            a("v_permlane16_swap_b32 v%d, v%d", RES + 4 * q, RES + 4 * q + 2)
            a("v_permlane16_swap_b32 v%d, v%d", RES + 4 * q + 1, RES + 4 * q + 3)
        if init == "resid+biasB":
            for j in range(nk): a("v_lshlrev_b32 v%d, 16, v%d", BV + j, BV + j)
        for j in range(nk):
            for p in range(na // 2):
                d = RES + 4 * (j * (na // 2) + p)
                for q in range(4):
                    a("v_lshlrev_b32 v%d, 16, v%d", T + 2 * q, d + q)
                    a("v_and_b32 v%d, 0xffff0000, v%d", T + 2 * q + 1, d + q)
                if init == "resid+biasB":
                    for q in range(8): a("v_add_f32 v%d, v%d, v%d", T + q, T + q, BV + j)
                for q in range(4):
                    c = acc(2 * p + (q >> 1), j) + 2 * (q & 1)
                    a("v_pk_add_f32 v[%d:%d], v[%d:%d], v[%d:%d]", c, c + 1, c, c + 1, T + 2 * q, T + 2 * q + 1)
    if init == "biasA":
        a("v_lshl_add_u32 v3, v5, 3, s%d", S_TMP + 6)
        for i in range(na):
            a("buffer_load_dwordx2 v[%d:%d], v3, s[20:23], 0 offen offset:%d", FR + 2 * i, FR + 2 * i + 1, i * 32)
    AR = 10
    def mk_addrs(op, base, swave, n, vb, sxor=None):
        if op.kind == "kc":
            a("s_mul_i32 s%d, s%d, %d", S_TMP + 2, swave, n * 16)
            read_addrs_kc(a, base, S_TMP + 2, vb)
            return [vb, vb + 1]
        a("s_mul_i32 s%d, s%d, %d", S_TMP + 2, swave, n)
        a("s_mov_b32 s%d, %d", S_TMP + 3, base)
        for i in range(n):
            read_addr_km(a, op.T, S_TMP + 3, S_TMP + 2, i, vb + i, sxor)
        return [vb + i for i in range(n)]
    adA = mk_addrs(A, baseA, SWA, na, AR)
    if split: a("s_lshl_b32 s%d, s%d, 1", S_N, S_ROLE)
    adB = mk_addrs(B, baseB, SWB, nb, AR + len(adA), S_N if split else None)
    assert AR + len(adA) + len(adB) <= 20
    for r in range(fset): a("v_mov_b32 v%d, 0", FR + fset + r)
    compute_loop_ctl_init(a, N, S, stage)
    if split:
        a("s_lshl_b32 s%d, s%d, 12", S_TMP, S_W)
        a("v_lshl_add_u32 v21, v2, 4, s%d", S_TMP)
        a("s_lshl_b32 s%d, s%d, 1", S_OWN, S_PAIR)
        a("s_add_u32 s%d, s%d, s%d", S_OWN, S_OWN, S_ROLE)
        a("s_lshl_b32 s%d, s%d, 14", S_OWN, S_OWN)
        a("s_xor_b32 s%d, s%d, 0x4000", S_OTH, S_OWN)
    if init != "biasA":
        for r in range(nacc): a("v_mov_b32 v%d, 0", ACC + r)
    else:
        a("s_waitcnt vmcnt(0)")
        for i in range(na):
            for j in range(nb):
                c = acc(i, j)
                for q in range(2):
                    a("v_lshlrev_b32 v%d, 16, v%d", c + 2 * q, FR + 2 * i + q)
                    a("v_and_b32 v%d, 0xffff0000, v%d", c + 2 * q + 1, FR + 2 * i + q)
    if OPT.get("cprio"): a("s_setprio %d", OPT["cprio"])
    def mf(st):
        return ["v_mfma_f32_16x16x32_bf16 v[%d:%d], v[%d:%d], v[%d:%d], v[%d:%d]" %
                (acc(i, j), acc(i, j) + 3, fA(st, i), fA(st, i) + 3, fB(st, j), fB(st, j) + 3, acc(i, j), acc(i, j) + 3)
                for i in range(na) for j in range(nb)]
    def rd(st, ks):
        L = []
        L += frag_reads(A.kind, A.T, adA, 0, ks, fA(st, 0))
        for j in range(nb): L += frag_reads(B.kind, B.T, adB, j, ks, fB(st, j))
        for i in range(1, na): L += frag_reads(A.kind, A.T, adA, i, ks, fA(st, i))
        return L
    def rcv_loads():
        for u in range(4):
            a("buffer_load_dwordx4 v[%d:%d], v21, s[84:87], s%d offen offset:%d sc1", RCV + 4 * u, RCV + 4 * u + 3, S_OTH, u * 1024)
    TMPV = FR
    M = dict(zip([(i, j) for i in range(na) for j in range(nb)], mf(1)))
    def out_unit(k, j, p):
        b = Asm()
        c0_, c1_ = acc(2 * p, j), acc(2 * p + 1, j)
        if epi == "gelu":
            gelu_pairs(b, [c0_, c0_ + 2, c1_, c1_ + 2], TMPV + 16, GC)
        d = TMPV + 4 * (k & 3)
        b("v_cvt_pk_bf16_f32 v%d, v%d, v%d", d, c0_, c0_ + 1)
        b("v_cvt_pk_bf16_f32 v%d, v%d, v%d", d + 1, c0_ + 2, c0_ + 3)
        b("v_cvt_pk_bf16_f32 v%d, v%d, v%d", d + 2, c1_, c1_ + 1)
        b("v_cvt_pk_bf16_f32 v%d, v%d, v%d", d + 3, c1_ + 2, c1_ + 3)
        if epi == "ln2":
            for q, x in enumerate((c0_, c0_ + 2, c1_, c1_ + 2)):
                b("v_lshlrev_b32 v%d, 16, v%d", x, d + q)
                b("v_and_b32 v%d, 0xffff0000, v%d", x + 1, d + q)
        else:
            b("s_nop 1")
        b("v_permlane16_swap_b32 v%d, v%d", d, d + 2)
        b("v_permlane16_swap_b32 v%d, v%d", d + 1, d + 3)
        b("buffer_store_dwordx4 v[%d:%d], v9, s[16:19], s%d offen offset:%d%s", d, d + 3, S_ST + j, p * 64, STF())
        return [l.strip() for l in b.lines]
    JP = [(j, p) for j in range(nk) for p in range(na // 2)]
    tiles = lambda j0: [(i, j) for j in range(j0, j0 + nk) for i in range(na)]
    def final_gelu():
        overlap_final(a, [([M[(2 * p, j)], M[(2 * p + 1, j)]], out_unit(k, j, p)) for k, (j, p) in enumerate(JP)], lead=4,
                      after_lead=lambda: a("s_nop 1"))
    def final_split():
        for t in tiles(nk): a(M[t])
        keep = [M[t] for t in tiles(0)]
        for u, (i, j) in enumerate(tiles(nk)):
            c = acc(i, j)
            a(keep[u])
            if u == 7: a("s_nop 1")
            a("v_cvt_pk_bf16_f32 v%d, v%d, v%d", SND + 2 * u, c, c + 1)
            a("v_cvt_pk_bf16_f32 v%d, v%d, v%d", SND + 2 * u + 1, c + 2, c + 3)
            if u & 1:
                a("buffer_store_dwordx4 v[%d:%d], v21, s[84:87], s%d offen offset:%d sc1", SND + 2 * u - 2, SND + 2 * u + 1, S_OWN, (u >> 1) * 1024)
    if epi == "gelu":
        GC = VTOP
        VTOP += 6
        c1 = -2.0 * math.log2(math.e) * math.sqrt(2.0 / math.pi) * 0.044715
        c0 = -2.0 * math.log2(math.e) * math.sqrt(2.0 / math.pi)
        for k, v in enumerate((c1, c1, c0, c0, 1.0, 1.0)):
            a("v_mov_b32 v%d, 0x%x", GC + k, f32(v))
    cloop(a, name, mf, rd, adA + adB, S, stage, first=resid_loads if resid else None,
          mid=(N // 2, resid_add) if resid and not split else None,
          final=final_gelu if epi == "gelu" else final_split if split else None)
    if split:
        a("s_mov_b32 s%d, 0x2000", S_CNT)
        stamp(a, 5)
        rcv_loads()
        a("s_waitcnt vmcnt(8)")
        a("s_nop 3")
        resid_add()
        a("s_waitcnt vmcnt(0)")
        a.label(name + "_rcv")
        a("v_max3_u32 v4, v%d, v%d, v%d", RCV, RCV + 1, RCV + 2)
        for q in range(3, 15, 2): a("v_max3_u32 v4, v4, v%d, v%d", RCV + q, RCV + q + 1)
        a("v_max_u32 v4, v4, v%d", RCV + 15)
        a("v_cmp_eq_u32 vcc, -1, v4")
        a("s_sub_u32 s%d, s%d, 1", S_CNT, S_CNT)
        a("s_cmp_eq_u32 s%d, 0", S_CNT)
        a("s_cbranch_scc1 %s_rcvd", name)
        a("s_cbranch_vccz %s_rcvd", name)
        a("s_sleep %d", OPT.get("slp", 2))
        rcv_loads()
        a("s_waitcnt vmcnt(0)")
        a("s_branch %s_rcv", name)
        a.label(name + "_rcvd")
        stamp(a, 6)
        if OPT.get("stamp"): a("s_add_u32 s%d, s%d, 0x6000", 64 + 2 * 9, S_CNT)
        for u, (i, j) in enumerate(tiles(0)):
            c = acc(i, j); t = TMPV + 16 + 4 * (u & 3)
            for q in range(2):
                a("v_lshlrev_b32 v%d, 16, v%d", t + 2 * q, RCV + 2 * u + q)
                a("v_and_b32 v%d, 0xffff0000, v%d", t + 2 * q + 1, RCV + 2 * u + q)
            for q in range(2):
                a("v_pk_add_f32 v[%d:%d], v[%d:%d], v[%d:%d]", c + 2 * q, c + 2 * q + 1, c + 2 * q, c + 2 * q + 1, t + 2 * q, t + 2 * q + 1)
    def stats_block():
        assert nk in (2, 4) and na == 4
        pr = lambda r: "v[%d:%d]" % (r, r + 1)
        SV = TMPV + 16
        for j in range(nk):
            prs = [acc(i, j) + 2 * q for i in range(na) for q in range(2)]
            a("v_pk_add_f32 %s, %s, %s", pr(SV + 4 * j), pr(prs[0]), pr(prs[1]))
            a("v_pk_mul_f32 %s, %s, %s", pr(SV + 4 * j + 2), pr(prs[0]), pr(prs[0]))
            for x in prs[1:]:
                if x != prs[1]: a("v_pk_add_f32 %s, %s, %s", pr(SV + 4 * j), pr(SV + 4 * j), pr(x))
                a("v_pk_fma_f32 %s, %s, %s, %s", pr(SV + 4 * j + 2), pr(x), pr(x), pr(SV + 4 * j + 2))
        for j in range(nk):
            a("v_add_f32 v%d, v%d, v%d", SV + 4 * j, SV + 4 * j, SV + 4 * j + 1)
            a("v_add_f32 v%d, v%d, v%d", SV + 4 * j + 1, SV + 4 * j + 2, SV + 4 * j + 3)
        a("s_nop 1")
        for j in range(0, nk, 2):
            a("v_permlane16_swap_b32 v%d, v%d", SV + 4 * j, SV + 4 * j + 4)
            a("v_permlane16_swap_b32 v%d, v%d", SV + 4 * j + 1, SV + 4 * j + 5)
        for j in range(0, nk, 2):
            a("v_pk_add_f32 %s, %s, %s", pr(SV + 4 * j), pr(SV + 4 * j), pr(SV + 4 * j + 4))
        if nk == 2:
            a("v_mov_b32 v%d, v%d", SV + 8, SV)
            a("v_mov_b32 v%d, v%d", SV + 9, SV + 1)
        a("v_and_b32 v3, %d, v2", 16 if nk == 2 else 48)
        a("v_add_u32 v3, v3, v20")
        a("v_permlane32_swap_b32 v%d, v%d", SV, SV + 8)
        a("v_permlane32_swap_b32 v%d, v%d", SV + 1, SV + 9)
        a("v_pk_add_f32 %s, %s, %s", pr(SV), pr(SV), pr(SV + 8))
        a("v_lshlrev_b32 v3, 3, v3")
        a("s_mul_i32 s%d, s%d, %d", S_TMP, S_TA, WA)
        a("s_add_u32 s%d, s%d, s%d", S_TMP, S_TMP, SWA)
        a("s_lshl_b32 s%d, s%d, 14", S_TMP, S_TMP)
        if nk == 2: a("s_mov_b32 exec_hi, 0")
        a("buffer_store_dwordx2 %s, v3, s[60:63], s%d offen sc1", pr(SV), S_TMP)
        if nk == 2: a("s_mov_b32 exec_hi, -1")
    def ln2_start():
        stats_block()
        a("v_lshrrev_b32 v4, 5, v2")
        a("v_lshl_add_u32 v21, v4, 17, v3")
    def ex_loads():
        for q in range(8):
            a("s_mov_b32 s%d, %d", S_TMP + (q & 1), q * 16384)
            a("buffer_load_dwordx2 v[%d:%d], v21, s[60:63], s%d offen sc1", EXV + 2 * q, EXV + 2 * q + 1, S_TMP + (q & 1))
    def ln2_finish():
        pr = lambda r: "v[%d:%d]" % (r, r + 1)
        a("s_mov_b32 s%d, 0x2000", S_CNT)
        a("v_mul_u32_u24 v19, %d, v20", LDH - ldc)
        a("v_add_u32 v19, v19, v9")
        for j in range(nk): a("s_mov_b32 s%d, %d", S_ST + 2 + j, j * 16 * LDH)
        stamp(a, 5)
        ex_loads()
        a("s_waitcnt vmcnt(0)")
        a.label(name + "_ex")
        a("v_max3_u32 v4, v%d, v%d, v%d", EXV, EXV + 1, EXV + 2)
        for q in range(3, 15, 2): a("v_max3_u32 v4, v4, v%d, v%d", EXV + q, EXV + q + 1)
        a("v_max_u32 v4, v4, v%d", EXV + 15)
        a("v_cmp_eq_u32 vcc, -1, v4")
        a("s_sub_u32 s%d, s%d, 1", S_CNT, S_CNT)
        a("s_cmp_eq_u32 s%d, 0", S_CNT)
        a("s_cbranch_scc1 %s_exd", name)
        a("s_cbranch_vccz %s_exd", name)
        a("s_sleep %d", OPT.get("slp", 2))
        ex_loads()
        a("s_waitcnt vmcnt(0)")
        a("s_branch %s_ex", name)
        a.label(name + "_exd")
        stamp(a, 6)
        if OPT.get("stamp"): a("s_add_u32 s%d, s%d, 0x6000", 64 + 2 * 9, S_CNT)
        E = EXV
        for st in (4, 2, 1):
            for q in range(st): a("v_pk_add_f32 %s, %s, %s", pr(E + 2 * q), pr(E + 2 * q), pr(E + 2 * (q + st)))
        a("v_mov_b32 v%d, v%d", E + 2, E)
        a("v_mov_b32 v%d, v%d", E + 3, E + 1)
        a("s_nop 1")
        a("v_permlane32_swap_b32 v%d, v%d", E, E + 2)
        a("v_permlane32_swap_b32 v%d, v%d", E + 1, E + 3)
        a("v_pk_add_f32 %s, %s, %s", pr(E), pr(E), pr(E + 2))
        m, var, mb, r1, m2, v2 = E, E + 1, E + 2, E + 3, E + 4, E + 5
        a("v_mul_f32 v%d, 0x%x, v%d", m, f32(1.0 / 1024), m)
        a("v_mul_f32 v%d, 0x%x, v%d", var, f32(1.0 / 1024), var)
        a("v_fma_f32 v%d, -v%d, v%d, v%d", var, m, m, var)
        a("v_max_f32 v%d, 0, v%d", var, var)
        a("v_mov_b32 v%d, v%d", mb, m)
        a("v_mov_b32 v%d, v%d", r1, var)
        def rstd(x):
            round_bf16_scalar(a, x)
            a("v_add_f32 v%d, 0x%x, v%d", x, f32(1e-5), x)
            round_bf16_scalar(a, x)
            a("v_sqrt_f32 v%d, v%d", x, x)
            a("s_nop 0")
            round_bf16_scalar(a, x)
            a("v_rcp_f32 v%d, v%d", x, x)
        round_bf16_scalar(a, mb)
        rstd(r1)
        a("v_sub_f32 v%d, v%d, v%d", m2, m, mb)
        a("v_mul_f32 v%d, v%d, v%d", v2, var, r1)
        a("v_mul_f32 v%d, v%d, v%d", m2, m2, r1)
        a("v_mul_f32 v%d, v%d, v%d", v2, v2, r1)
        round_bf16_scalar(a, m2)
        rstd(v2)
        a("v_fma_f32 v%d, v%d, v%d, v%d", m2, mb, r1, m2)
        a("v_mul_f32 v%d, v%d, v%d", E + 6, r1, v2)
        a("v_mul_f32 v%d, -v%d, v%d", E + 7, m2, v2)
        a("v_mov_b32 v%d, v%d", E + 8, E + 6)
        a("v_mov_b32 v%d, v%d", E + 9, E + 7)
        a("s_nop 1")
        a("v_permlane16_swap_b32 v%d, v%d", E + 6, E + 8)
        a("v_permlane16_swap_b32 v%d, v%d", E + 7, E + 9)
        k = 0
        for j in range(nk):
            ab = pr(E + 6 + 2 * j)
            for p in range(na // 2):
                c0_, c1_ = acc(2 * p, j), acc(2 * p + 1, j)
                for x in (c0_, c0_ + 2, c1_, c1_ + 2):
                    a("v_pk_fma_f32 %s, %s, %s, %s op_sel:[0,0,1] op_sel_hi:[1,0,1]", pr(x), pr(x), ab, ab)
                d = TMPV + 4 * (k & 3); k += 1
                a("v_cvt_pk_bf16_f32 v%d, v%d, v%d", d, c0_, c0_ + 1)
                a("v_cvt_pk_bf16_f32 v%d, v%d, v%d", d + 1, c0_ + 2, c0_ + 3)
                a("v_cvt_pk_bf16_f32 v%d, v%d, v%d", d + 2, c1_, c1_ + 1)
                a("v_cvt_pk_bf16_f32 v%d, v%d, v%d", d + 3, c1_ + 2, c1_ + 3)
                a("s_nop 1")
                a("v_permlane16_swap_b32 v%d, v%d", d, d + 2)
                a("v_permlane16_swap_b32 v%d, v%d", d + 1, d + 3)
                a("buffer_store_dwordx4 v[%d:%d], v19, s[56:59], s%d offen offset:%d%s", d, d + 3, S_ST + 2 + j, p * 64, STF())
    if epi == "ln2":
        a("s_nop 7")
        ln2_start()
    if epi != "gelu":
        for k, (j, p) in enumerate(JP):
            for w in out_unit(k, j, p): a(w)
    if stats: stats_block()
    if epi == "ln2": ln2_finish()
    xs = bool(split) or epi == "ln2"
    stamp(a, 7 if xs else 5)
    stamp_flush(a, name, 8 if xs else 6, extra=xs)
    finish(a, name, cnt)
    if spare:
        a.label(name + "_spare")
        spare(a)
    GEMM_VTOP[name] = VTOP
    return lbase + stage * S

def gen_g1(a, name, W=2):
    N, S = 16, 3
    PW = Op("km", 64, 6144)
    XB = 3 * 8192
    stage = XB + 144 * 128
    E = stage
    REG = 144 * 128
    LST = S * stage
    LCS = LST + 1280
    S_SIG, S_DIST, S_H1, S_H2, S_H3, S_H4, S_H5 = 52, 53, 54, 55, 29, 50, 51
    KG = OPT.get("KG", 12)
    entry(a, name, 256)
    a("s_load_dwordx2 s[4:5], s[0:1], %d", ARG["ws"])
    a("s_load_dwordx2 s[6:7], s[0:1], %d", ARG["x"])
    a("s_xor_b32 s%d, s%d, 1", S_DIST, S_LAYER)
    a("s_load_dwordx2 s[30:31], s[0:1], %d", ARG["wqkv"])
    a("s_load_dwordx2 s[16:17], s[0:1], %d", ARG["dbg"])
    a("s_load_dwordx2 s[18:19], s[0:1], %d", ARG["wo"])
    a("v_lshrrev_b32 v1, 6, v0")
    a("v_and_b32 v2, 63, v0")
    a("s_and_b32 s%d, s2, 1", S_TMP)
    a("s_lshl_b32 s%d, s%d, 3", S_TMP, S_TMP)
    a("s_bfe_u32 s%d, s2, 0x30003", S_TMP + 1)
    a("s_add_u32 s%d, s%d, s%d", S_TB, S_TMP, S_TMP + 1)
    a("s_bfe_u32 s%d, s2, 0x20001", S_TMP)
    a("s_lshl_b32 s%d, s%d, 2", S_TMP, S_TMP)
    a("s_lshr_b32 s%d, s2, 6", S_TMP + 2)
    a("s_add_u32 s%d, s%d, s%d", S_TA, S_TMP, S_TMP + 2)
    a("s_add_u32 s%d, s%d, s%d", S_J, S_TMP + 1, S_TMP + 2)
    a("s_add_u32 s%d, s%d, s%d", S_SIG, S_TA, S_TB)
    a("s_and_b32 s%d, s%d, 15", S_SIG, S_SIG)
    a("s_and_b32 s%d, s%d, %d", S_KB, S_SIG, KG)
    a("s_mul_i32 s%d, s%d, s%d", S_KB, S_KB, S_DIST)
    a("v_readfirstlane_b32 s%d, v1", S_W)
    lane_parts(a)
    a("s_cmp_lt_u32 s%d, 4", S_W)
    a("s_cbranch_scc1 %s_compute", name)

    EA, AO, AQ, AV, AM, ED = 216, 225, 226, 227, 228, 232
    SHD, SSH = S_TMP + 4, S_TMP + 5
    def attn_setup():
        srd(a, 16, 4, WS["O"], ACT_BYTES)
        a("s_and_b32 s%d, s%d, 1", SHD, S_W)
        SU = S_TMP + 5
        a("s_lshr_b32 s%d, s%d, 1", SU, S_W)
        a("s_lshl_b32 s%d, s%d, 2", S_TMP, SHD)
        a("v_add_u32 v3, s%d, v5", S_TMP)
        a("v_and_b32 v4, 7, v8")
        a("v_xor_b32 v3, v3, v4")
        a("v_lshlrev_b32 v3, 4, v3")
        a("v_lshl_add_u32 v3, v8, 8, v3")
        a("s_mul_i32 s%d, s%d, %d", S_TMP + 1, SU, 32 * 128)
        a("s_add_u32 s%d, s%d, %d", S_TMP + 1, S_TMP + 1, E)
        a("v_add_u32 v%d, s%d, v3", AQ, S_TMP + 1)
        a("v_lshl_add_u32 v3, v5, 2, v6")
        a("v_and_b32 v4, 7, v3")
        a("v_add_u32 v%d, s%d, v7", AM, S_TMP)
        a("v_xor_b32 v4, v4, v%d", AM)
        a("v_lshlrev_b32 v4, 4, v4")
        a("v_lshl_add_u32 v3, v3, 8, v4")
        a("s_add_u32 s%d, s%d, %d", S_TMP + 1, S_TMP + 1, 2 * REG)
        a("v_add_u32 v%d, s%d, v3", AV, S_TMP + 1)
        a("v_and_b32 v3, 7, v8")
        a("v_add_u32 v4, 1, v3")
        a("s_or_b32 s%d, s%d, s%d", S_TMP, S_TB, SU)
        a("s_cmp_eq_u32 s%d, 0", S_TMP)
        a("s_cselect_b32 s%d, 8, 0", S_TMP)
        a("v_cmp_gt_u32 vcc, 8, v8")
        a("v_mov_b32 v21, s%d", S_TMP)
        a("s_mov_b64 s[56:57], vcc")
        a("v_cndmask_b32 v21, 0, v21, vcc")
        a("v_max_u32 v4, v4, v21")
        a("v_add_u32 v3, 8, v3")
        a("v_sub_u32 v3, v3, v4")
        a("v_lshlrev_b32 v21, 2, v5")
        a("v_sub_u32 v21, v21, v4")
        a("v_mov_b32 v22, 0xf149f2ca")
        for r in range(4):
            a("v_add_u32 v23, %d, v21", r)
            a("v_cmp_ge_u32 vcc, v3, v23")
            a("s_nop 1")
            a("v_cndmask_b32 v%d, v22, 0, vcc", AM + r)
        a("s_lshl_b32 s%d, s%d, 7", S_TMP, S_TB)
        a("s_lshl_b32 s%d, s%d, 5", S_TMP + 1, SU)
        a("s_add_u32 s%d, s%d, s%d", S_TMP, S_TMP, S_TMP + 1)
        a("s_lshl_b32 s%d, s%d, 11", S_TMP, S_TMP)
        a("s_lshl_b32 s%d, s%d, 7", S_TMP + 1, S_TA)
        a("s_add_u32 s%d, s%d, s%d", S_TMP, S_TMP, S_TMP + 1)
        a("s_lshl_b32 s%d, s%d, 6", S_TMP + 1, SHD)
        a("s_add_u32 s%d, s%d, s%d", S_TMP, S_TMP, S_TMP + 1)
        a("v_lshlrev_b32 v%d, 12, v8", AO)
        a("v_lshl_add_u32 v%d, v5, 4, v%d", AO, AO)
        a("v_add_u32 v%d, s%d, v%d", AO, S_TMP, AO)
        a("s_mov_b32 s58, 0x%x", f32(32 ** -0.5))
        a("s_mov_b32 s59, 0x%x", f32(math.log2(math.e)))

    if OPT.get("ldprio"): a("s_setprio %d", OPT["ldprio"])
    a("s_sub_u32 s%d, s%d, 4", S_W, S_W)
    XO = Op("kc", 128, 2048)
    loader_voffs(a, XO, S_TB, 16)
    for p in range(3):
        loader_voffs(a, PW, S_TA, 10 + 2 * p, extra_cols=1024 * p)
    a("v_lshrrev_b32 v3, 3, v2")
    a("s_lshl_b32 s%d, s%d, 2", S_TMP, S_W)
    a("v_add_u32 v3, s%d, v3", S_TMP)
    a("v_lshrrev_b32 v4, 1, v3")
    a("v_xor_b32 v4, v4, v2")
    a("v_and_b32 v4, 7, v4")
    a("s_lshl_b32 s%d, s%d, 7", S_TMP, S_TB)
    a("s_sub_u32 s%d, s%d, 16", S_TMP, S_TMP)
    a("v_add_u32 v3, s%d, v3", S_TMP)
    a("v_max_i32 v3, 0, v3")
    a("v_lshlrev_b32 v3, 11, v3")
    a("v_lshl_add_u32 v20, v4, 4, v3")
    a("s_mul_i32 s%d, s%d, 2048", S_LA, S_W)
    a("s_mul_i32 s%d, s%d, 4096", S_LB, S_W)
    a("s_add_u32 s%d, s%d, %d", S_LB, S_LB, XB + 2048)
    a("s_mul_i32 s%d, s%d, 512", S_TMP + 6, S_W)
    a("s_add_u32 s%d, s%d, %d", S_TMP + 6, S_TMP + 6, XB)
    a("s_waitcnt lgkmcnt(0)")
    srd(a, 8, 30, 0, 1024 * 3072 * 2)
    srd(a, 56, 4, WS["CS"], CS_BYTES)
    ws_adjust(a)
    sel_ptr(a, 12, 1, WS["X2"])
    def issue(part):
        kidx_offsets(a, W, PW.kadv, 128, wrap=16)
        a("s_add_u32 s%d, s%d, s%d", S_M0A, S_SLOT, S_LA)
        a("s_add_u32 s%d, s%d, s%d", S_M0B, S_SLOT, S_LB)
        for i in range(4 if part != "W" else 0):
            a("s_add_u32 m0, s%d, %d", S_M0B, i * 1024)
            a("s_nop 0")
            a("buffer_load_dwordx4 v%d, s[12:15], s%d offen%s lds", 16 + i, S_OFB, ASC())
        for p in range(3 if part != "A" else 0):
            for i in range(2):
                a("s_add_u32 m0, s%d, %d", S_M0A, p * 8192 + i * 1024)
                a("s_nop 0")
                a("buffer_load_dwordx4 v%d, s[8:11], s%d offen lds", 10 + 2 * p + i, S_OFA)
        if part == "W": return
        a("s_add_u32 m0, s%d, s%d", S_SLOT, S_TMP + 6)
        a("s_mov_b32 exec_hi, 0")
        a("buffer_load_dwordx4 v20, s[12:15], s%d offen%s lds", S_OFB, ASC())
        a("s_mov_b32 exec_hi, -1")
    srd(a, 20, 4, WS["ST"], ST_BYTES)
    srd(a, 60, 16, 0, 256)
    a("s_sub_u32 s%d, s%d, s%d", S_TMP, S_SIG, S_J)
    a("s_and_b32 s%d, s%d, %d", S_TMP, S_TMP, W - 1)
    a("s_and_b32 s%d, s%d, %d", S_TMP + 1, S_SIG, 15 & ~KG & ~(W - 1))
    a("s_or_b32 s%d, s%d, s%d", S_TMP, S_TMP, S_TMP + 1)
    a("s_add_u32 s%d, s%d, %d", S_H1, S_TMP, S - 1)
    a("s_cmp_eq_u32 s%d, 0", S_DIST)
    a("s_cselect_b32 s%d, 0x7fff, s%d", S_H1, S_H1)
    a("s_add_u32 s%d, s%d, %d", S_H2, S_H1, S)
    a("s_cmp_lg_u32 s%d, 0", S_W)
    a("s_cselect_b32 s%d, 0x7fff, s%d", S_H2, S_H2)
    a("s_cmp_lt_u32 s%d, 0x7fff", S_H2)
    a("s_cselect_b32 s%d, %d, 0x7fff", S_H3, N - 4)
    a("s_add_u32 s%d, s%d, 1", S_H4, S_H3)
    a("s_mov_b32 s%d, %d", S_H5, N - 2)
    def slice_stats():
        SL = S_TMP + 4
        a("s_add_u32 s%d, s%d, %d", SL, S_SLOT, stage)
        a("s_cmp_eq_u32 s%d, %d", SL, S * stage)
        a("s_cselect_b32 s%d, 0, s%d", SL, SL)
        for i in range(3):
            a("s_mul_i32 s%d, s%d, 3", S_TMP + 2, S_W)
            a("s_add_u32 s%d, s%d, %d", S_TMP + 2, S_TMP + 2, i)
            a("s_lshr_b32 s%d, s%d, 2", S_TMP + 3, S_TMP + 2)
            a("s_lshl_b32 s%d, s%d, 13", S_TMP + 3, S_TMP + 3)
            a("s_add_u32 s%d, s%d, s%d", S_TMP + 3, S_TMP + 3, SL)
            a("s_and_b32 s%d, s%d, 3", S_TMP + 2, S_TMP + 2)
            read_addr_km(a, 64, S_TMP + 3, S_TMP + 2, 0, 21)
            for ks in range(2):
                for r in frag_reads("km", 64, [21], 0, ks, 24 + 8 * i + 4 * ks): a(r)
        a("s_lshr_b32 s%d, s%d, 7", S_TMP + 2, SL)
        a("s_lshl_b32 s%d, s%d, 5", S_TMP + 3, S_W)
        a("s_add_u32 s%d, s%d, s%d", S_TMP + 2, S_TMP + 2, S_TMP + 3)
        a("s_add_u32 s%d, s%d, 16", S_TMP + 2, S_TMP + 2)
        read_addrs_kc(a, XB, S_TMP + 2, 22)
        for i in range(2):
            for ks in range(2):
                for r in frag_reads("kc", 0, [22, 23], i, ks, 48 + 8 * i + 4 * ks): a(r)
        for r in range(4): a("v_mov_b32 v%d, 0x3f803f80", 64 + r)
        a("s_mul_i32 s%d, s%d, 12288", S_TMP + 2, S_SIG)
        a("s_lshl_b32 s%d, s%d, 8", S_TMP + 3, S_TA)
        a("s_add_u32 s%d, s%d, s%d", S_TMP + 2, S_TMP + 2, S_TMP + 3)
        a("v_lshl_add_u32 v21, v5, 4, s%d", S_TMP + 2)
        a("s_lshl_b32 s%d, s%d, 14", S_TMP + 2, S_SIG)
        a("s_lshl_b32 s%d, s%d, 10", S_TMP + 3, S_TB)
        a("s_add_u32 s%d, s%d, s%d", S_TMP + 2, S_TMP + 2, S_TMP + 3)
        a("s_lshl_b32 s%d, s%d, 8", S_TMP + 3, S_W)
        a("s_add_u32 s%d, s%d, s%d", S_TMP + 2, S_TMP + 2, S_TMP + 3)
        a("v_lshl_add_u32 v22, v8, 3, s%d", S_TMP + 2)
        a("s_waitcnt lgkmcnt(0)")
        mm = lambda d, x, y, first: a("v_mfma_f32_16x16x32_bf16 v[%d:%d], v[%d:%d], v[%d:%d], %s", d, d + 3, x, x + 3, y, y + 3,
                                      "0" if first else "v[%d:%d]" % (d, d + 3))
        for ks in range(2):
            for i in range(3): mm(68 + 4 * i, 24 + 8 * i + 4 * ks, 64, ks == 0)
            for i in range(2):
                mm(80 + 8 * i, 64, 48 + 8 * i + 4 * ks, ks == 0)
                mm(84 + 8 * i, 48 + 8 * i + 4 * ks, 48 + 8 * i + 4 * ks, ks == 0)
        a("v_cmp_eq_u32 s[%d:%d], 1, v7", S_TMP, S_TMP + 1)
        a("v_cmp_eq_u32 s[%d:%d], 2, v7", S_TMP + 2, S_TMP + 3)
        a("v_cmp_eq_u32 vcc, 3, v7")
        a("s_nop 7")
        for i in range(2):
            a("v_cndmask_b32 v%d, v%d, v%d, s[%d:%d]", 81 + 8 * i, 84 + 8 * i, 85 + 8 * i, S_TMP, S_TMP + 1)
            a("v_cndmask_b32 v%d, v%d, v%d, s[%d:%d]", 81 + 8 * i, 81 + 8 * i, 86 + 8 * i, S_TMP + 2, S_TMP + 3)
            a("v_cndmask_b32 v%d, v%d, v%d, vcc", 81 + 8 * i, 81 + 8 * i, 87 + 8 * i)
        a("s_mov_b32 exec_lo, 0x00f0000f")
        a("s_mov_b32 exec_hi, 0xf0000f00")
        for i in range(2):
            a("buffer_store_dwordx2 v[%d:%d], v22, s[20:23], 0 offen offset:%d sc1", 80 + 8 * i, 81 + 8 * i, 128 * i)
        a("s_mov_b32 exec_lo, 0x00010001")
        a("s_mov_b32 exec_hi, 0x00010001")
        for i in range(3):
            a("s_mul_i32 s%d, s%d, 3", S_TMP + 2, S_W)
            a("s_add_u32 s%d, s%d, %d", S_TMP + 2, S_TMP + 2, i)
            a("s_lshr_b32 s%d, s%d, 2", S_TMP + 3, S_TMP + 2)
            a("s_lshl_b32 s%d, s%d, 12", S_TMP + 3, S_TMP + 3)
            a("s_and_b32 s%d, s%d, 3", S_TMP + 2, S_TMP + 2)
            a("s_lshl_b32 s%d, s%d, 6", S_TMP + 2, S_TMP + 2)
            a("s_add_u32 s%d, s%d, s%d", S_TMP + 2, S_TMP + 2, S_TMP + 3)
            a("buffer_store_dwordx4 v[%d:%d], v21, s[56:59], s%d offen sc1", 68 + 4 * i, 71 + 4 * i, S_TMP + 2)
        a("s_mov_b64 exec, -1")
        a("s_or_b32 s%d, s%d, s%d", S_TMP, S_TA, S_TB)
        a("s_or_b32 s%d, s%d, s%d", S_TMP, S_TMP, S_W)
        a("s_cmp_lg_u32 s%d, 0", S_TMP)
        a("s_cbranch_scc1 %s_nocr", name)
        a("v_lshlrev_b32 v21, 8, v2")
        a("v_mov_b32 v22, 0")
        for area in (0, LOFF):
            srd(a, 84, 4, WS["CNT"] + area, CNT_BYTES)
            a("buffer_store_dword v22, v21, s[84:87], 0 offen sc1")
        a.label(name + "_nocr")
    def arrive():
        a("v_mov_b32 v21, 0")
        a("v_mov_b32 v22, 1")
        a("s_mov_b64 exec, 1")
        a("buffer_atomic_add v22, v21, s[60:63], 0 offen sc1")
        a("s_mov_b64 exec, -1")
    def poll_issue():
        a("v_mov_b32 v21, 0")
        a("buffer_load_dword v23, v21, s[60:63], 0 offen sc1")
    def poll_check():
        a("s_mov_b32 s%d, 0x20000", S_TMP + 1)
        a("v_mov_b32 v21, 0")
        a("s_waitcnt vmcnt(11)")
        a.label(name + "_poll")
        a("v_readfirstlane_b32 s%d, v23", S_TMP)
        a("s_sub_u32 s%d, s%d, 1", S_TMP + 1, S_TMP + 1)
        a("s_cmp_eq_u32 s%d, 0", S_TMP + 1)
        a("s_cbranch_scc1 %s_polled", name)
        a("s_cmp_ge_u32 s%d, 256", S_TMP)
        a("s_cbranch_scc1 %s_polled", name)
        a("s_sleep 8")
        a("buffer_load_dword v23, v21, s[60:63], 0 offen sc1")
        a("s_waitcnt vmcnt(0)")
        a("s_branch %s_poll", name)
        a.label(name + "_polled")
    def st_loads():
        a("s_lshl_b32 s%d, s%d, 6", S_TMP, S_W)
        a("v_add_u32 v21, s%d, v2", S_TMP)
        a("s_lshl_b32 s%d, s%d, 7", S_TMP + 1, S_TB)
        a("s_sub_u32 s%d, s%d, 16", S_TMP + 1, S_TMP + 1)
        a("v_add_u32 v3, s%d, v21", S_TMP + 1)
        a("v_max_i32 v3, 0, v3")
        a("v_min_u32 v3, 2047, v3")
        a("v_lshlrev_b32 v3, 3, v3")
        a("s_min_u32 s%d, s%d, 2", S_TMP, S_W)
        a("s_lshl_b32 s%d, s%d, 12", S_TMP, S_TMP)
        a("s_lshl_b32 s%d, s%d, 8", S_TMP + 1, S_TA)
        a("s_add_u32 s%d, s%d, s%d", S_TMP, S_TMP, S_TMP + 1)
        a("v_lshl_add_u32 v4, v2, 2, s%d", S_TMP)
        for k in range(16):
            a("s_mov_b32 s%d, %d", S_TMP, k * 16384)
            a("buffer_load_dwordx2 v[%d:%d], v3, s[20:23], s%d offen sc1", 24 + 2 * k, 25 + 2 * k, S_TMP)
            a("s_mov_b32 s%d, %d", S_TMP + 1, k * 3072 * 4)
            a("buffer_load_dword v%d, v4, s[56:59], s%d offen sc1", 56 + k, S_TMP + 1)
    def st_use():
        for st in (8, 4, 2, 1):
            for k in range(st):
                a("v_pk_add_f32 v[%d:%d], v[%d:%d], v[%d:%d]", 24 + 2 * k, 25 + 2 * k, 24 + 2 * k, 25 + 2 * k, 24 + 2 * (k + st), 25 + 2 * (k + st))
                a("v_add_f32 v%d, v%d, v%d", 56 + k, 56 + k, 56 + k + st)
        a("v_mul_f32 v24, 0x%x, v24", f32(1.0 / 1024))
        a("v_mul_f32 v25, 0x%x, v25", f32(1.0 / 1024))
        a("v_fma_f32 v25, -v24, v24, v25")
        a("v_max_f32 v25, 0, v25")
        round_bf16_scalar(a, 24)
        round_bf16_scalar(a, 25)
        a("v_add_f32 v25, 0x%x, v25", f32(1e-5))
        round_bf16_scalar(a, 25)
        a("v_sqrt_f32 v25, v25")
        a("s_nop 0")
        round_bf16_scalar(a, 25)
        a("v_rcp_f32 v26, v25")
        a("v_lshlrev_b32 v3, 3, v21")
        a("v_lshlrev_b32 v4, 2, v21")
        a("v_mul_f32 v27, -v24, v26")
        a("v_cmp_gt_u32 vcc, 144, v21")
        a("s_and_saveexec_b64 s[%d:%d], vcc", S_TMP, S_TMP + 1)
        a("v_add_u32 v3, %d, v3", LST)
        a("ds_write_b64 v3, v[26:27]")
        a("s_mov_b64 exec, s[%d:%d]", S_TMP, S_TMP + 1)
        a("v_cmp_gt_u32 vcc, 192, v21")
        a("s_and_saveexec_b64 s[%d:%d], vcc", S_TMP, S_TMP + 1)
        a("v_add_u32 v4, %d, v4", LCS)
        a("ds_write_b32 v4, v56")
        a("s_mov_b64 exec, s[%d:%d]", S_TMP, S_TMP + 1)
        a("s_waitcnt lgkmcnt(0)")
    def tail():
        a("s_waitcnt vmcnt(43)")
        a("s_barrier")
        a("s_waitcnt vmcnt(0)")
        st_use()
        a("s_barrier")
        srd(a, 20, 4, WS["EX"], ST_BYTES)
        a("s_lshl_b32 s%d, s%d, 4", S_TMP, S_TA)
        a("s_add_u32 s%d, s%d, s%d", S_TMP, S_TMP, S_TB)
        a("s_lshl_b32 s%d, s%d, 10", S_TMP, S_TMP)
        a("s_lshl_b32 s%d, s%d, 8", S_TMP + 1, S_W)
        a("s_add_u32 s%d, s%d, s%d", S_TMP, S_TMP, S_TMP + 1)
        a("v_lshlrev_b32 v3, 2, v2")
        a("v_mov_b32 v4, -1")
        a("buffer_store_dword v4, v3, s[20:23], s%d offen sc1", S_TMP)
        a("s_cmp_eq_u32 s%d, 0", S_DIST)
        a("s_cbranch_scc1 %s_nopf", name)
        srd(a, 20, 18, 0, 1024 * 1024 * 2)
        a("s_lshl_b32 s%d, s2, 13", S_TMP)
        a("s_lshl_b32 s%d, s%d, 11", S_TMP + 1, S_W)
        a("s_add_u32 s%d, s%d, s%d", S_TMP, S_TMP, S_TMP + 1)
        a("v_lshlrev_b32 v3, 4, v2")
        a("buffer_load_dwordx4 v[120:123], v3, s[20:23], s%d offen", S_TMP)
        a("buffer_load_dwordx4 v[120:123], v3, s[20:23], s%d offen offset:1024", S_TMP)
        a.label(name + "_nopf")
    def dep():
        a("s_cmp_eq_u32 s%d, 0", S_LAYER)
        a("s_cbranch_scc1 %s_dep_ok", name)
        if late_y("g4"): a("s_barrier")
        a("s_add_u32 s%d, s%d, %d", S_TMP, S_TB, C41)
        a("s_lshl_b32 s%d, s%d, 8", S_TMP, S_TMP)
        a("s_sub_u32 s%d, s%d, 256", S_TMP + 2, S_TMP)
        a("s_max_u32 s%d, s%d, %d", S_TMP + 2, S_TMP + 2, C41 * 256)
        wait_counters(a, name + "_dep", 16, 16)
    loader_loop(a, name, issue, 6, 5, N, S, stage, tail=tail, dep=None if prev_cut(name) else dep,
                events=[(S_H1, 5, slice_stats), (S_H2, 1, arrive), (S_H3, 1, poll_issue), (S_H4, 0, poll_check), (S_H5, 32, st_loads)])
    a("s_add_u32 s%d, s%d, 4", S_W, S_W)
    attn_setup()
    a("s_branch %s_attn", name)

    a.label(name + "_compute")
    na, nb = 6, 5
    ACC = 24
    acc = lambda i, j: ACC + 4 * (i * 4 + j) if j < 4 else ACC + 96 + 4 * (i - 4)
    nacc = 104
    FR = ACC + nacc
    fset = (na + nb) * 4
    fA = lambda st, i: FR + st * fset + 4 * i
    fB = lambda st, j: FR + st * fset + 4 * na + 4 * j
    VTOP = FR + 2 * fset
    SHD, SSH = S_TMP + 4, S_TMP + 5
    a("s_and_b32 s%d, s%d, 1", SHD, S_W)
    a("s_lshr_b32 s%d, s%d, 1", SSH, S_W)
    AR = 10
    def part_of(c, unit):
        if c == 0:
            a("s_mov_b32 s%d, 0", S_TMP + 3)
        else:
            a("s_xor_b32 s%d, s%d, %d", S_TMP + 3, SSH, 1 if c == 1 else 0)
            a("s_add_u32 s%d, s%d, 1", S_TMP + 3, S_TMP + 3)
            a("s_mul_i32 s%d, s%d, %d", S_TMP + 3, S_TMP + 3, unit)
    a("s_lshl_b32 s%d, s%d, 1", S_TMP + 2, SHD)
    for c in range(3):
        part_of(c, 8192)
        for i in range(2):
            read_addr_km(a, 64, S_TMP + 3, S_TMP + 2, i, AR + 2 * c + i)
    adA = [AR + i for i in range(6)]
    a("s_mul_i32 s%d, s%d, 64", S_TMP + 2, SSH)
    a("s_add_u32 s%d, s%d, 16", S_TMP + 2, S_TMP + 2)
    read_addrs_kc(a, XB, S_TMP + 2, AR + 6)
    read_addrs_kc(a, XB, None, AR + 8)
    adB, adH = [AR + 6, AR + 7], [AR + 8, AR + 9]
    for r in range(nacc): a("v_mov_b32 v%d, 0", ACC + r)
    for r in range(fset): a("v_mov_b32 v%d, 0", FR + fset + r)
    compute_loop_ctl_init(a, N, S, stage)
    if OPT.get("cprio"): a("s_setprio %d", OPT["cprio"])
    a("s_waitcnt lgkmcnt(0)")
    stamp(a, 1)
    ws_adjust(a)
    a("v_lshlrev_b32 v3, 3, v8")
    a("v_add_u32 v%d, %d, v3", EA + 1, LST)
    a("s_mul_i32 s%d, s%d, 512", S_TMP, SSH)
    a("s_add_u32 s%d, s%d, %d", S_TMP, S_TMP, LST + 128)
    a("v_add_u32 v%d, s%d, v3", EA, S_TMP)
    a("s_lshl_b32 s%d, s%d, 7", S_TMP, SHD)
    a("s_add_u32 s%d, s%d, %d", S_TMP, S_TMP, LCS)
    a("v_lshl_add_u32 v3, v5, 4, s%d", S_TMP)
    for c in range(3):
        part_of(c, 256)
        a("v_add_u32 v%d, s%d, v3", EA + 2 + c, S_TMP + 3)
    a("v_and_b32 v3, 1, v5")
    a("v_lshlrev_b32 v3, 1, v3")
    a("v_lshrrev_b32 v4, 1, v5")
    a("v_add_u32 v3, v3, v4")
    a("s_lshl_b32 s%d, s%d, 2", S_TMP, SHD)
    a("v_add_u32 v3, s%d, v3", S_TMP)
    a("v_lshrrev_b32 v4, 1, v8")
    a("v_xor_b32 v3, v3, v4")
    a("v_lshlrev_b32 v3, 4, v3")
    a("v_lshl_add_u32 v3, v8, 7, v3")
    a("s_mul_i32 s%d, s%d, %d", S_TMP + 2, SSH, 64 * 128)
    a("s_add_u32 s%d, s%d, %d", S_TMP + 2, S_TMP + 2, E + 16 * 128)
    for c in range(3):
        part_of(c, REG)
        a("s_add_u32 s%d, s%d, s%d", S_TMP, S_TMP + 2, S_TMP + 3)
        a("v_add_u32 v%d, s%d, v3", EA + 5 + c, S_TMP)
    a("s_add_u32 s%d, s%d, %d", S_TMP, S_TMP + 3, E)
    a("v_add_u32 v%d, s%d, v3", EA + 8, S_TMP)
    attn_setup()
    def mf(st):
        L = [(i, j) for i in range(6) for j in range(4)] + [(4, 4), (5, 4)]
        return ["v_mfma_f32_16x16x32_bf16 v[%d:%d], v[%d:%d], v[%d:%d], v[%d:%d]" %
                (acc(i, j), acc(i, j) + 3, fA(st, i), fA(st, i) + 3, fB(st, j), fB(st, j) + 3, acc(i, j), acc(i, j) + 3)
                for (i, j) in L]
    def rd(st, ks):
        L = []
        L += frag_reads("km", 64, adA, 0, ks, fA(st, 0))
        for j in range(4): L += frag_reads("kc", 0, adB, j, ks, fB(st, j))
        for i in range(1, 6): L += frag_reads("km", 64, adA, i, ks, fA(st, i))
        L += frag_reads("kc", 0, adH, 0, ks, fB(st, 4))
        return L
    SB = FR
    TV = SB + 36
    pr = lambda r: "v[%d:%d]" % (r, r + 1)
    def g1_final():
        for j in range(4): a("ds_read_b64 v[%d:%d], v%d offset:%d", SB + 2 * j, SB + 2 * j + 1, EA, j * 128)
        a("ds_read_b64 v[%d:%d], v%d", SB + 8, SB + 9, EA + 1)
        for c in range(3):
            for i in range(2):
                a("ds_read_b128 v[%d:%d], v%d offset:%d", SB + 12 + 4 * (2 * c + i), SB + 15 + 4 * (2 * c + i), EA + 2 + c, i * 64)
        M = dict(zip([(i, j) for i in range(6) for j in range(4)] + [(4, 4), (5, 4)], mf(1)))
        units = []
        for c in range(3):
            for j in range(5 if c == 2 else 4):
                c0_, c1_ = acc(2 * c, j), acc(2 * c + 1, j)
                d = ED + 4 * (len(units) & 3)
                prs = [(c0_, SB + 12 + 8 * c), (c0_ + 2, SB + 14 + 8 * c), (c1_, SB + 16 + 8 * c), (c1_ + 2, SB + 18 + 8 * c)]
                w = ["v_pk_mul_f32 %s, %s, %s op_sel:[0,1] op_sel_hi:[1,1]" % (pr(TV + 2 * q), pr(cs), pr(SB + 2 * j)) for q, (x, cs) in enumerate(prs)]
                w += ["v_pk_fma_f32 %s, %s, %s, %s op_sel:[0,0,0] op_sel_hi:[1,0,1]" % (pr(x), pr(x), pr(SB + 2 * j), pr(TV + 2 * q)) for q, (x, cs) in enumerate(prs)]
                w += ["v_cvt_pk_bf16_f32 v%d, v%d, v%d" % (d + q, x, x + 1) for q, (x, cs) in enumerate(prs)]
                w += ["s_nop 1", "v_permlane16_swap_b32 v%d, v%d" % (d, d + 2), "v_permlane16_swap_b32 v%d, v%d" % (d + 1, d + 3)]
                w += ["ds_write_b128 v%d, v[%d:%d] offset:%d" % (EA + 5 + c, d, d + 3, j * 2048) if j < 4 else "ds_write_b128 v%d, v[%d:%d]" % (EA + 8, d, d + 3)]
                units.append(([M[(2 * c, j)], M[(2 * c + 1, j)]], w))
        overlap_final(a, units, after_lead=lambda: a("s_waitcnt lgkmcnt(0)"))
        a("s_waitcnt lgkmcnt(0)")
    cloop(a, name, mf, rd, adA + adB + adH, S, stage, final=g1_final)

    a.label(name + "_attn")
    a("s_barrier")
    stamp(a, 5)
    if OPT.get("stamp"): a("s_waitcnt lgkmcnt(0)")
    def blk(p): return 24 + 48 * p
    for p in range(2):
        b = blk(p)
        a("ds_read_b128 v[%d:%d], v226 offset:%d", b, b + 3, 2048 + 128 * p)
        a("ds_read_b128 v[%d:%d], v226 offset:%d", b + 4, b + 7, REG + 128 * p)
        a("ds_read_b128 v[%d:%d], v226 offset:%d", b + 8, b + 11, REG + 2048 + 128 * p)
    for p in range(2):
        b = blk(p)
        for dt in range(2):
            for bb in range(2):
                d = b + 12 + 4 * dt + 2 * bb
                a("ds_read_b64_tr_b16 v[%d:%d], v227 offset:%d", d, d + 1, 128 * p + 2048 * bb + 8 * dt)
    a("s_waitcnt lgkmcnt(8)")
    for p in range(2):
        b = blk(p)
        a("v_mfma_f32_16x16x32_bf16 v[%d:%d], v[%d:%d], v[%d:%d], 0", b + 20, b + 23, b + 4, b + 7, b, b + 3)
        a("v_mfma_f32_16x16x32_bf16 v[%d:%d], v[%d:%d], v[%d:%d], 0", b + 24, b + 27, b + 8, b + 11, b, b + 3)
    a("s_nop 7")
    both = lambda f: [f(blk(p)) for p in range(2)]
    for p in range(2):
        b = blk(p)
        for r in range(4):
            a("v_cndmask_b32 v%d, v%d, v%d, s[56:57]", b + 20 + r, b + 24 + r, b + 20 + r)
    for p in range(2):
        b = blk(p)
        a("v_cvt_pk_bf16_f32 v%d, v%d, v%d", b + 24, b + 20, b + 21)
        a("v_cvt_pk_bf16_f32 v%d, v%d, v%d", b + 25, b + 22, b + 23)
    for p in range(2):
        b = blk(p)
        for q in range(2):
            a("v_lshlrev_b32 v%d, 16, v%d", b + 20 + 2 * q, b + 24 + q)
            a("v_and_b32 v%d, 0xffff0000, v%d", b + 21 + 2 * q, b + 24 + q)
    for p in range(2):
        b = blk(p)
        for r in range(4): a("v_mul_f32 v%d, s58, v%d", b + 20 + r, b + 20 + r)
    for p in range(2):
        b = blk(p)
        a("v_cvt_pk_bf16_f32 v%d, v%d, v%d", b + 24, b + 20, b + 21)
        a("v_cvt_pk_bf16_f32 v%d, v%d, v%d", b + 25, b + 22, b + 23)
    for p in range(2):
        b = blk(p)
        for q in range(2):
            a("v_lshlrev_b32 v%d, 16, v%d", b + 20 + 2 * q, b + 24 + q)
            a("v_and_b32 v%d, 0xffff0000, v%d", b + 21 + 2 * q, b + 24 + q)
    for p in range(2):
        b = blk(p)
        for r in range(4): a("v_fma_f32 v%d, v%d, s59, v%d", b + 20 + r, b + 20 + r, AM + r)
    for p in range(2):
        b = blk(p)
        a("v_max3_f32 v%d, v%d, v%d, v%d", b + 24, b + 20, b + 21, b + 22)
    for p in range(2):
        b = blk(p)
        a("v_max_f32 v%d, v%d, v%d", b + 24, b + 24, b + 23)
    def xreduce(op, off):
        for sw in ("v_permlane16_swap_b32", "v_permlane32_swap_b32"):
            for p in range(2):
                b = blk(p)
                a("v_mov_b32 v%d, v%d", b + off + 1, b + off)
            a("s_nop 1")
            for p in range(2):
                b = blk(p)
                a("%s v%d, v%d", sw, b + off, b + off + 1)
            a("s_nop 0")
            for p in range(2):
                b = blk(p)
                a("%s v%d, v%d, v%d", op, b + off, b + off, b + off + 1)
    xreduce("v_max_f32", 24)
    for p in range(2):
        b = blk(p)
        for r in range(4): a("v_sub_f32 v%d, v%d, v%d", b + 20 + r, b + 20 + r, b + 24)
    for p in range(2):
        b = blk(p)
        for r in range(4): a("v_exp_f32 v%d, v%d", b + 20 + r, b + 20 + r)
    for p in range(2):
        b = blk(p)
        a("v_add_f32 v%d, v%d, v%d", b + 24, b + 20, b + 21)
        a("v_add_f32 v%d, v%d, v%d", b + 25, b + 22, b + 23)
    for p in range(2):
        b = blk(p)
        a("v_add_f32 v%d, v%d, v%d", b + 24, b + 24, b + 25)
    xreduce("v_add_f32", 24)
    for p in range(2):
        b = blk(p)
        a("v_rcp_f32 v%d, v%d", b + 24, b + 24)
    a("s_nop 0")
    for p in range(2):
        b = blk(p)
        for r in range(4): a("v_mul_f32 v%d, v%d, v%d", b + 20 + r, b + 20 + r, b + 24)
    for p in range(2):
        b = blk(p)
        a("v_cvt_pk_bf16_f32 v%d, v%d, v%d", b + 24, b + 20, b + 21)
        a("v_cvt_pk_bf16_f32 v%d, v%d, v%d", b + 25, b + 22, b + 23)
    for p in range(2):
        b = blk(p)
        a("v_cndmask_b32 v%d, 0, v%d, s[56:57]", b + 28, b + 24)
        a("v_cndmask_b32 v%d, 0, v%d, s[56:57]", b + 29, b + 25)
        a("v_cndmask_b32 v%d, v%d, 0, s[56:57]", b + 30, b + 24)
        a("v_cndmask_b32 v%d, v%d, 0, s[56:57]", b + 31, b + 25)
    a("s_waitcnt lgkmcnt(0)")
    a("s_nop 0")
    for p in range(2):
        b = blk(p)
        for dt in range(2):
            a("v_mfma_f32_16x16x32_bf16 v[%d:%d], v[%d:%d], v[%d:%d], 0", b + 32 + 4 * dt, b + 35 + 4 * dt,
              b + 12 + 4 * dt, b + 15 + 4 * dt, b + 28, b + 31)
    a("s_nop 7")
    for p in range(2):
        b = blk(p)
        for q in range(4):
            a("v_cvt_pk_bf16_f32 v%d, v%d, v%d", b + 40 + q, b + 32 + 2 * q, b + 33 + 2 * q)
        a("buffer_store_dwordx4 v[%d:%d], v225, s[16:19], 0 offen offset:%d%s", b + 40, b + 43, 2048 * p, STF())
    stamp(a, 6)
    stamp_flush(a, name, 7)
    if not next_cut(name):
        finish(a, name, lambda a: (a("s_add_u32 s%d, s%d, %d", S_TMP, S_TB, C12), a("s_lshl_b32 s%d, s%d, 8", S_TMP, S_TMP)))
    a.label(name + "_done")
    a("s_endpgm")
    assert VTOP == 216
    GEMM_VTOP[name] = ED + 16
    return LCS + 768

def build():
    body = Asm()
    for c in str(OPT.get("cuts", "")).split("_"):
        if c: CUTS.add(c)
    def wm(a, ka, da, kb, db):
        a("s_cmp_eq_u32 s%d, 0", S_LAYER)
        a("s_cselect_b32 s%d, %d, %d", S_WM, OPT.get(ka, da) - 1, OPT.get(kb, db) - 1)
    def slot(a, sreg, base, shift=0):
        a("s_lshr_b32 s%d, s%d, %d", S_TMP, sreg, shift)
        a("s_add_u32 s%d, s%d, %d", S_TMP, S_TMP, base)
        a("s_lshl_b32 s%d, s%d, 8", S_TMP, S_TMP)
        a("s_mov_b32 s%d, s%d", S_TMP + 2, S_TMP)
    lds = {}
    lds["g1"] = gen_g1(body, "g1", W=OPT.get("W1", 2))

    def g2_ptrs(a, ph):
        if ph == 0:
            a("s_load_dwordx2 s[4:5], s[0:1], %d", ARG["ws"])
            a("s_load_dwordx2 s[6:7], s[0:1], %d", ARG["x"])
            a("s_load_dwordx2 s[30:31], s[0:1], %d", ARG["wo"])
        elif ph == "L":
            srd(a, 8, 30, 0, 1024 * 1024 * 2)
            srd(a, 12, 4, WS["O"], ACT_BYTES)
        else:
            sel_ptr(a, 20, 1, WS["X2"])
            srd(a, 16, 4, WS["X1"], ACT_BYTES)
            srd(a, 56, 4, WS["H"], 2048 * LDH)
            srd(a, 60, 4, WS["EX"], ST_BYTES)
    def g2_decode(a):
        a("s_and_b32 s%d, s2, 3", S_TMP)
        a("s_lshl_b32 s%d, s%d, 2", S_TMP, S_TMP)
        a("s_bfe_u32 s%d, s2, 0x20003", S_TMP + 1)
        a("s_add_u32 s%d, s%d, s%d", S_TB, S_TMP, S_TMP + 1)
        a("s_bfe_u32 s%d, s2, 0x10002", S_TMP)
        a("s_lshl_b32 s%d, s%d, 3", S_TMP, S_TMP)
        a("s_lshr_b32 s%d, s2, 5", S_TMP + 2)
        a("s_add_u32 s%d, s%d, s%d", S_TA, S_TMP, S_TMP + 2)
        a("s_add_u32 s%d, s%d, s%d", S_J, S_TMP + 1, S_TMP + 2)
        a("s_mov_b32 s%d, 0", S_KB)
    lds["g2"] = gen_gemm(body, "g2", 256, Op("km", 64, 2048), Op("kc", 128, 2048), 1, 4, 16, 4, OPT.get("W2", 2), g2_ptrs, g2_decode,
                         "resid", "ln2", 2048, cnt=lambda a: slot(a, S_TA, C23, 1),
                         dep=lambda a: (slot(a, S_TB, C12), wait_counters(a, "g2_dep", 16, 16)), lbase=32768 if OPT.get("latey") else 0)

    def g3_ptrs(a, ph):
        if ph == 0:
            a("s_load_dwordx2 s[4:5], s[0:1], %d", ARG["ws"])
            a("s_load_dwordx2 s[30:31], s[0:1], %d", ARG["w1"])
            a("s_load_dwordx2 s[6:7], s[0:1], %d", ARG["b1"])
        elif ph == "L":
            srd(a, 8, 30, 0, 2048 * 3584 * 2)
            srd(a, 12, 4, WS["H"], 2048 * LDH)
        else:
            srd(a, 20, 6, 0, 3584 * 2)
            srd(a, 16, 4, WS["U"], 1024 * LDU)
    def g3_decode(a):
        a("s_and_b32 s%d, s2, 1", S_TMP)
        a("s_lshl_b32 s%d, s%d, 2", S_TMP, S_TMP)
        a("s_bfe_u32 s%d, s2, 0x20003", S_TMP + 1)
        a("s_add_u32 s%d, s%d, s%d", S_TB, S_TMP, S_TMP + 1)
        a("s_bfe_u32 s%d, s2, 0x20001", S_TMP)
        a("s_mul_i32 s%d, s%d, 7", S_TMP, S_TMP)
        a("s_lshr_b32 s%d, s2, 5", S_TMP + 2)
        a("s_add_u32 s%d, s%d, s%d", S_TA, S_TMP, S_TMP + 2)
        a("s_add_u32 s%d, s%d, s%d", S_J, S_TMP + 1, S_TMP + 2)
        a("s_mov_b32 s%d, 0", S_KB)
        wm(a, "W3a", 4, "W3b", 2)
    def g3_cnt(a):
        a("s_cmp_ge_u32 s%d, 14", S_TA)
        a("s_cselect_b32 s%d, %d, %d", S_TMP, C34 + 1, C34)
        a("s_lshl_b32 s%d, s%d, 1", S_TMP + 1, S_TB)
        a("s_add_u32 s%d, s%d, s%d", S_TMP, S_TMP, S_TMP + 1)
        a("s_lshl_b32 s%d, s%d, 8", S_TMP, S_TMP)
    def g3_spare(a):
        a("s_cmp_ge_u32 s2, 256")
        a("s_cbranch_scc1 g3_done")
        a("s_load_dwordx2 s[4:5], s[0:1], %d", ARG["ws"])
        a("s_load_dwordx2 s[6:7], s[0:1], %d", ARG["w2"])
        a("s_sub_u32 s3, s2, 224")
        a("v_lshrrev_b32 v2, 6, v0")
        a("v_lshlrev_b32 v1, 4, v0")
        for r in range(4): a("v_mov_b32 v%d, -1", 8 + r)
        a("v_readfirstlane_b32 s%d, v2", S_W)
        a("s_lshl_b32 s13, s3, 17")
        if late_y("g2"):
            a("s_cmp_lt_u32 s%d, 4", S_W)
            a("s_cbranch_scc1 g3_spare_y")
            a("s_barrier")
            a.label("g3_spare_y")
        a("s_waitcnt lgkmcnt(0)")
        ws_adjust(a)
        srd(a, 8, 4, WS["PART"], PART_BYTES)
        for k in range(16):
            a("buffer_store_dwordx4 v[8:11], v1, s[8:11], s13 offen sc1")
            a("s_add_u32 s13, s13, 8192")
        if not next_cut("g3"):
            a("s_mov_b32 s%d, %d", S_TMP, CR * 256)
            count_in(a, "g3_spare_cin")
        a("s_cmp_lg_u32 s%d, 0", S_LAYER)
        a("s_cbranch_scc1 g3_spare_end")
        if OPT.get("pf", 1):
            srd(a, 8, 6, 0, 3584 * 2048 * 2)
            a("s_cmp_ge_u32 s3, 16")
            a("s_cselect_b32 s12, %d, 0", (1792 - 1024) * 4096)
            a("s_lshl_b32 s3, s3, 18")
            a("s_add_u32 s3, s3, s12")
            a("s_mov_b32 s12, 4")
            a.label("g3_spare_loop")
            for k in range(8):
                a("buffer_load_dwordx4 v[4:7], v1, s[8:11], s3 offen")
                a("s_add_u32 s3, s3, 8192")
            a("s_waitcnt vmcnt(8)")
            a("s_sub_u32 s12, s12, 1")
            a("s_cmp_lg_u32 s12, 0")
            a("s_cbranch_scc1 g3_spare_loop")
            a("s_waitcnt vmcnt(0)")
        a.label("g3_spare_end")
        if next_cut("g3"): a("s_endpgm")
        else:
            if late_y("g3"):
                a("s_cmp_ge_u32 s%d, 4", S_W)
                a("s_cbranch_scc1 g4_in")
                a("s_barrier")
            go_next(a, "g3")
    lds["g3"] = gen_gemm(body, "g3", 224, Op("km", 128, 7168), Op("km", 128, LDH), 2, 2, 32, 4, "s", g3_ptrs, g3_decode,
                         "biasA", "gelu", LDU, spare=g3_spare, cnt=g3_cnt,
                         dep=lambda a: (slot(a, S_TB, C23), wait_counters(a, "g3_dep", 32, 32)))

    def g4_ptrs(a, ph):
        if ph == 0:
            a("s_load_dwordx2 s[4:5], s[0:1], %d", ARG["ws"])
            a("s_load_dwordx2 s[6:7], s[0:1], %d", ARG["out"])
            a("s_load_dwordx2 s[30:31], s[0:1], %d", ARG["w2"])
            a("s_load_dwordx2 s[34:35], s[0:1], %d", ARG["b2"])
        elif ph == "L":
            srd(a, 8, 4, WS["U"], 1024 * LDU)
            srd(a, 12, 30, 0, 3584 * 2048 * 2)
        else:
            srd(a, 20, 4, WS["X1"], ACT_BYTES)
            srd(a, 56, 34, 0, 4096)
            sel_ptr(a, 16, 0, LOFF + WS["X2"])
            srd(a, 60, 4, LOFF + WS["ST"], ST_BYTES)
            srd(a, 84, 4, WS["PART"], PART_BYTES)
    def g4_decode(a):
        a("s_bfe_u32 s%d, s2, 0x10001", S_TMP)
        a("s_lshl_b32 s%d, s%d, 2", S_TMP, S_TMP)
        a("s_bfe_u32 s%d, s2, 0x20003", S_TMP + 1)
        a("s_add_u32 s%d, s%d, s%d", S_TA, S_TMP, S_TMP + 1)
        a("s_bfe_u32 s%d, s2, 0x10002", S_TMP)
        a("s_lshl_b32 s%d, s%d, 3", S_TMP, S_TMP)
        a("s_lshr_b32 s%d, s2, 5", S_TMP + 2)
        a("s_add_u32 s%d, s%d, s%d", S_TB, S_TMP, S_TMP + 2)
        a("s_and_b32 s%d, s2, 1", S_ROLE)
        a("s_add_u32 s%d, s%d, s%d", S_J, S_TMP + 1, S_TMP + 2)
        a("s_lshl_b32 s%d, s%d, 4", S_PAIR, S_TA)
        a("s_add_u32 s%d, s%d, s%d", S_PAIR, S_PAIR, S_TB)
        a("s_mul_i32 s%d, s%d, 28", S_KB, S_ROLE)
        wm(a, "W4a", 4, "W4b", 2)
    def g4_dep(a):
        a("s_lshl_b32 s%d, s%d, 1", S_TMP, S_TA)
        a("s_add_u32 s%d, s%d, s%d", S_TMP, S_TMP, S_ROLE)
        a("s_add_u32 s%d, s%d, %d", S_TMP, S_TMP, C34)
        a("s_lshl_b32 s%d, s%d, 8", S_TMP, S_TMP)
        a("s_mov_b32 s%d, %d", S_TMP + 2, CR * 256)
        wait_counters(a, "g4_dep", 14, 32)
    lds["g4"] = gen_gemm(body, "g4", 256, Op("kc", 128, LDU), Op("km", 128, 4096), 2, 2, 28, 4, "s", g4_ptrs, g4_decode,
                         "resid+biasB", "plain", 2048, stats=True, split=True, cnt=lambda a: slot(a, S_TB, C41), dep=g4_dep, wop="B")

    seq = [(p, ab) for ab in "ab" for p in PHASES]
    launches = []
    for k, (p, ab) in enumerate(seq):
        if k == 0 or prev_cut(p): launches.append([p + ab + "_kernel", 0, 0])
        launches[-1][1] = max(launches[-1][1], GEMM_VTOP[p])
        launches[-1][2] = LFLAG + 256
    body.label("code_end")
    for kn, vt, l in launches: kernel_desc(body, kn, vt, NSGPR)
    head = open("/code/%s.s.ref" % NAME).read().split("; Override launch geometry")[0]
    lines = ["; @launch kernel=%s grid=(256,1,1) block=(512,1,1) lds=%d" % (kn, l) for kn, vt, l in launches]
    return head + "\n".join(lines) + "\n" + '.amdgcn_target "amdgcn-amd-amdhsa--gfx950"\n' + body.text()

if __name__ == "__main__":
    out = sys.argv[1] if len(sys.argv) > 1 else "/code/%s.s" % NAME
    for o in sys.argv[2:]:
        k, _, v = o.partition("=")
        OPT[k] = (int(v) if v.isdigit() and k != "cuts" else v) if v else 1
    text = build()
    open(out, "w").write(text)
    import json
    json.dump(KID, open(out + ".kid", "w"))
    hazard.check(text)
```

```python
import sys, struct, math
from asmlib import *
import hazard

NAME = "interleave_layers__sliding_local_dilated__mixer_token_mlp__prompt"
MB = 1 << 20
WS = dict(ST=0, CS=1 * MB, EX=2 * MB, CNT=3 * MB, O=4 * MB, X1=8 * MB, H=12 * MB, U=17 * MB, X2=25 * MB, PART=29 * MB)
LDH = 2304
LDU = 8192
ST_BYTES = 16 * 2048 * 8
CS_BYTES = 16 * 3072 * 4
PART_BYTES = 256 * 16384
ARG = dict(x=0, wqkv=8, wo=16, bx=24, w1=32, b1=40, w2=48, b2=56, out=64, dbg=72, ws=80)
ACT_BYTES = 2048 * 1024 * 2

OPT = {}
for _o in sys.argv[2:]:
    _k, _, _v = _o.partition('=')
    if _k == 'LDH': LDH = int(_v)
    if _k == 'LDU': LDU = int(_v)

def STF():
    return {0: "", 1: " sc1", 2: " nt", 3: " sc0 sc1", 4: " sc0 sc1 nt"}[OPT.get("stf", 1)]

def ASC():
    return " sc1" if OPT.get("asc", 1) else ""

def f32(x):
    return struct.unpack("<I", struct.pack("<f", x))[0]

LOFF = 40 * MB
STAMP_OFF = 34 * MB
KID = {}
def stamp(a, k):
    if OPT.get("stamp"):
        a("%s s[%d:%d]", "s_memtime" if OPT["stamp"] == 2 else "s_memrealtime", 64 + 2 * k, 65 + 2 * k)

def stamp_flush(a, name, n, wsreg=4, waitvm=True, extra=False):
    if not OPT.get("stamp"): return
    kid = KID.setdefault(name, len(KID))
    if waitvm: a("s_waitcnt vmcnt(0)")
    a("%s s[%d:%d]", "s_memtime" if OPT["stamp"] == 2 else "s_memrealtime", 64 + 2 * n, 65 + 2 * n)
    a("s_waitcnt lgkmcnt(0)")
    a("s_add_u32 s84, s%d, 0x%x", wsreg, STAMP_OFF + kid * 512 * 1024)
    a("s_addc_u32 s85, s%d, 0", wsreg + 1)
    a("s_mov_b32 s86, 0x80000")
    a("s_mov_b32 s87, 0x20000")
    a("v_lshrrev_b32 v1, 6, v0")
    a("v_lshlrev_b32 v1, 6, v1")
    a("s_lshl_b32 s88, s2, 9")
    a("v_add_u32 v1, s88, v1")
    for k in range(n + 1 + extra):
        a("v_mov_b32 v2, s%d", 64 + 2 * k)
        a("buffer_store_dword v2, v1, s[84:87], 0 offen offset:%d", 4 * k)
        a("s_nop 1")

def srd(a, d, p, off, nbytes):
    if off:
        a("s_add_u32 s%d, s%d, 0x%x", d, p, off)
        a("s_addc_u32 s%d, s%d, 0", d + 1, p + 1)
    else:
        a("s_mov_b32 s%d, s%d", d, p)
        a("s_mov_b32 s%d, s%d", d + 1, p + 1)
    a("s_mov_b32 s%d, 0x%x", d + 2, nbytes)
    a("s_mov_b32 s%d, 0x20000", d + 3)

def round_bf16_scalar(a, v):
    a("v_cvt_pk_bf16_f32 v%d, v%d, v%d", v, v, v)
    a("v_lshlrev_b32 v%d, 16, v%d", v, v)

class Op:
    def __init__(self, kind, T, ld):
        self.kind, self.T, self.ld = kind, T, ld
        self.bytes = T * 128
        self.n = self.bytes // 1024
        self.npw = self.n // 4
        self.kadv = 128 if kind == "kc" else 64 * ld

S_TA, S_TB, S_KB, S_J, S_W = 24, 25, 26, 27, 28
S_T, S_SLOT, S_OFA, S_OFB = 32, 33, 34, 35
S_LA, S_LB, S_M0A, S_M0B = 36, 37, 38, 39
S_TMP = 40
S_CNT, S_DELTA, S_SI = 48, 49, 50
S_ST = 52
S_DP, S_DN = 51, 29
S_N, S_ROLE, S_PAIR, S_OWN, S_OTH, S_WM = 90, 91, 92, 93, 94, 95
S_LAYER, S_LOFF = 96, 97
NSGPR = 100
C12, C23, C34, C41, CR = 0, 16, 24, 40, 56
CUTS = set()

def loader_voffs(a, op, stile, vb, extra_cols=0):
    ld = op.ld
    a("s_mov_b32 s%d, %d", S_TMP, ld)
    if op.kind == "kc":
        a("v_lshrrev_b32 v3, 3, v2")
        a("v_mul_lo_u32 v3, v3, s%d", S_TMP)
        a("v_lshrrev_b32 v4, 4, v2")
        a("v_xor_b32 v4, v4, v2")
        a("v_and_b32 v4, 7, v4")
        a("v_lshl_add_u32 v3, v4, 4, v3")
        a("s_mul_i32 s%d, s%d, %d", S_TMP + 1, stile, op.T * ld)
        a("s_mul_i32 s%d, s%d, %d", S_TMP + 2, S_W, 8 * op.npw * ld)
        a("s_add_u32 s%d, s%d, s%d", S_TMP + 1, S_TMP + 1, S_TMP + 2)
        a("v_xor_b32 v4, 64, v3")
        for i in range(op.npw):
            a("s_add_u32 s%d, s%d, %d", S_TMP + 2, S_TMP + 1, i * 8 * ld)
            a("v_add_u32 v%d, s%d, v%d", vb + i, S_TMP + 2, 3 + (i & 1))
    elif op.T == 128:
        a("v_lshrrev_b32 v4, 4, v2")
        a("v_mul_lo_u32 v3, v4, s%d", S_TMP)
        a("v_lshlrev_b32 v4, 1, v4")
        a("v_xor_b32 v4, v4, v2")
        a("v_and_b32 v4, 15, v4")
        a("v_lshl_add_u32 v3, v4, 4, v3")
        a("s_mul_i32 s%d, s%d, 256", S_TMP + 1, stile)
        a("s_mul_i32 s%d, s%d, %d", S_TMP + 2, S_W, 16 * ld)
        a("s_add_u32 s%d, s%d, s%d", S_TMP + 1, S_TMP + 1, S_TMP + 2)
        a("v_xor_b32 v4, 128, v3")
        for i in range(4):
            a("s_add_u32 s%d, s%d, %d", S_TMP + 2, S_TMP + 1, i * 4 * ld)
            a("v_add_u32 v%d, s%d, v%d", vb + i, S_TMP + 2, 3 + (i >> 1))
    elif op.T == 64:
        a("v_lshrrev_b32 v3, 3, v2")
        a("v_mul_lo_u32 v3, v3, s%d", S_TMP)
        a("v_bfe_u32 v4, v2, 4, 1")
        a("v_lshlrev_b32 v4, 1, v4")
        a("v_xor_b32 v4, v4, v2")
        a("v_and_b32 v4, 7, v4")
        a("v_lshl_add_u32 v3, v4, 4, v3")
        a("s_mul_i32 s%d, s%d, 128", S_TMP + 1, stile)
        a("s_mul_i32 s%d, s%d, %d", S_TMP + 2, S_W, 16 * ld)
        a("s_add_u32 s%d, s%d, s%d", S_TMP + 1, S_TMP + 1, S_TMP + 2)
        a("v_xor_b32 v4, 64, v3")
        for i in range(2):
            a("s_add_u32 s%d, s%d, %d", S_TMP + 2, S_TMP + 1, i * 8 * ld + extra_cols * 2)
            a("v_add_u32 v%d, s%d, v%d", vb + i, S_TMP + 2, 3 + i)
    else:
        raise ValueError

def lane_parts(a):
    a("v_lshrrev_b32 v5, 4, v2")
    a("v_bfe_u32 v6, v2, 2, 2")
    a("v_and_b32 v7, 3, v2")
    a("v_and_b32 v8, 15, v2")

def read_addrs_kc(a, opbase, srow, vb):
    a("v_lshrrev_b32 v3, 1, v8")
    a("v_xor_b32 v3, v3, v5")
    a("v_lshlrev_b32 v3, 4, v3")
    a("v_lshl_add_u32 v3, v8, 7, v3")
    if srow is not None:
        a("s_lshl_b32 s%d, s%d, 7", S_TMP, srow)
        a("s_add_u32 s%d, s%d, %d", S_TMP, S_TMP, opbase)
        a("v_add_u32 v%d, s%d, v3", vb, S_TMP)
    else:
        a("v_add_u32 v%d, %d, v3", vb, opbase)
    a("v_xor_b32 v%d, 64, v%d", vb + 1, vb)

def read_addr_km(a, T, sbase, stile, i, vd, sxor=None):
    rowb = T * 2
    if T == 128:
        a("v_and_b32 v3, 1, v5")
        a("v_lshl_or_b32 v3, v3, 2, v6")
    else:
        a("v_and_b32 v3, 1, v5")
        a("v_lshlrev_b32 v3, 1, v3")
        a("v_lshrrev_b32 v4, 1, v6")
        a("v_or_b32 v3, v3, v4")
    a("s_add_u32 s%d, s%d, %d", S_TMP, stile, i)
    if sxor is not None: a("s_xor_b32 s%d, s%d, s%d", S_TMP, S_TMP, sxor)
    a("v_xor_b32 v3, s%d, v3", S_TMP)
    a("v_lshlrev_b32 v3, 5, v3")
    a("v_lshl_add_u32 v3, v7, 3, v3")
    a("v_lshl_add_u32 v4, v5, 3, v6")
    a("v_lshl_add_u32 v3, v4, %d, v3", rowb.bit_length() - 1)
    a("v_add_u32 v%d, s%d, v3", vd, sbase)

def frag_reads(kind, T, addr_regs, idx, ks, dst):
    if kind == "kc":
        return ["ds_read_b128 v[%d:%d], v%d offset:%d" % (dst, dst + 3, addr_regs[ks], idx * 2048)]
    rowb = T * 2
    return ["ds_read_b64_tr_b16 v[%d:%d], v%d offset:%d" % (dst + 2 * h, dst + 2 * h + 1, addr_regs[idx], h * 4 * rowb + ks * 32 * rowb)
            for h in range(2)]

def interleave(a, mfmas, reads, tail=()):
    reads = list(reads); tail = list(tail)
    if OPT.get("noreads"): reads = []
    if OPT.get("nomfma"): mfmas = ["s_nop 0"] * 2
    for m in mfmas:
        a(m)
        budget = 2
        while reads and budget > 0:
            cost = 2 if "b128" in reads[0] else 1
            if cost > budget: break
            a(reads.pop(0)); budget -= cost
        if not reads:
            while tail and budget > 0:
                a(tail.pop(0)); budget -= 1
    for r in reads: a(r)
    for t in tail: a(t)

def loader_loop(a, name, issue, nW, nA, N, S, stage_bytes, dep=None, events=(), tail=None):
    n = nW + nA
    early = OPT.get("early", 1)
    def adv():
        a("s_add_u32 s%d, s%d, %d", S_SLOT, S_SLOT, stage_bytes)
        a("s_add_u32 s%d, s%d, 1", S_T, S_T)
    for part in (("W", "A") if early else (None,)):
        if part != "W" and dep: dep()
        a("s_mov_b32 s%d, 0", S_T)
        a("s_mov_b32 s%d, 0", S_SLOT)
        a.label("%s_ld_p%s" % (name, part))
        issue(part)
        adv()
        a("s_cmp_lt_u32 s%d, %d", S_T, S - 1)
        a("s_cbranch_scc1 %s_ld_p%s", name, part)
    special = {S - 1 + k: (S - 2 - k) * nA + k * n for k in range(S - 2)} if early else {}
    a("s_waitcnt vmcnt(%d)", special.pop(S - 1, (S - 2) * n))
    a("s_branch %s_ld_bar", name)
    a.label(name + "_ld_loop")
    for T in special:
        a("s_cmp_eq_u32 s%d, %d", S_T, T)
        a("s_cbranch_scc1 %s_ld_s%d", name, T)
    for k, (at, extra, fn) in enumerate(events):
        if extra:
            a("s_sub_u32 s%d, s%d, s%d", S_TMP, S_T, at)
            a("s_sub_u32 s%d, s%d, 1", S_TMP, S_TMP)
            a("s_cmp_lt_u32 s%d, %d", S_TMP, S - 1)
            a("s_cbranch_scc1 %s_ld_w%d", name, k)
    a("s_waitcnt vmcnt(%d)", (S - 2) * n)
    a.label(name + "_ld_bar")
    a("s_barrier")
    issue(None)
    for k, (at, extra, fn) in enumerate(events):
        a("s_cmp_eq_u32 s%d, s%d", S_T, at)
        a("s_cbranch_scc1 %s_ld_h%d", name, k)
        a.label(name + "_ld_c%d" % k)
    adv()
    a("s_cmp_eq_u32 s%d, %d", S_SLOT, S * stage_bytes)
    a("s_cselect_b32 s%d, 0, s%d", S_SLOT, S_SLOT)
    a("s_cmp_lt_u32 s%d, %d", S_T, N)
    a("s_cbranch_scc1 %s_ld_loop", name)
    if tail: tail()
    else:
        for t in range(N - S + 1, N):
            a("s_waitcnt vmcnt(%d)", (N - 1 - t) * n)
            a("s_barrier")
    if events or special:
        a("s_branch %s_ld_end", name)
        for T, c in special.items():
            a.label(name + "_ld_s%d" % T)
            a("s_waitcnt vmcnt(%d)", c)
            a("s_branch %s_ld_bar", name)
        for k, (at, extra, fn) in enumerate(events):
            if extra:
                a.label(name + "_ld_w%d" % k)
                a("s_waitcnt vmcnt(%d)", (S - 2) * n + extra)
                a("s_branch %s_ld_bar", name)
            a.label(name + "_ld_h%d" % k)
            fn()
            a("s_branch %s_ld_c%d", name, k)
        a.label(name + "_ld_end")

def kidx_offsets(a, W, advA, advB, wrap=0):
    wm = ("s%d" % S_WM) if W == "s" else str(W - 1)
    a("s_add_u32 s%d, s%d, s%d", S_TMP, S_T, S_J)
    a("s_and_b32 s%d, s%d, %s", S_TMP, S_TMP, wm)
    a("s_andn2_b32 s%d, s%d, %s", S_TMP + 1, S_T, wm)
    a("s_or_b32 s%d, s%d, s%d", S_TMP, S_TMP, S_TMP + 1)
    a("s_add_u32 s%d, s%d, s%d", S_TMP, S_TMP, S_KB)
    if wrap: a("s_and_b32 s%d, s%d, %d", S_TMP, S_TMP, wrap - 1)
    a("s_mul_i32 s%d, s%d, %d", S_OFA, S_TMP, advA)
    a("s_mul_i32 s%d, s%d, %d", S_OFB, S_TMP, advB)

def compute_loop_ctl_init(a, N, S, stage_bytes):
    a("s_mov_b32 s%d, %s", S_CNT, N)
    a("s_mov_b32 s%d, 0", S_SI)
    a("s_mov_b32 s%d, %d", S_DP, stage_bytes)
    a("s_mov_b32 s%d, 0x%x", S_DN, (-(S - 1) * stage_bytes) & 0xffffffff)

def addr_update(addr_regs, S, stage_bytes):
    L = ["s_add_u32 s%d, s%d, 1" % (S_SI, S_SI),
         "s_cmp_eq_u32 s%d, %d" % (S_SI, S),
         "s_cselect_b32 s%d, s%d, s%d" % (S_DELTA, S_DN, S_DP),
         "s_cselect_b32 s%d, 0, s%d" % (S_SI, S_SI)]
    L += ["v_add_u32 v%d, s%d, v%d" % (r, S_DELTA, r) for r in addr_regs]
    L += ["s_sub_u32 s%d, s%d, 1" % (S_CNT, S_CNT), "s_cmp_lg_u32 s%d, 0" % S_CNT]
    return L

def gelu_pairs(a, regs, tmp, cst):
    n = len(regs)
    pr = lambda r: "v[%d:%d]" % (r, r + 1)
    for k, r in enumerate(regs): a("v_pk_mul_f32 %s, %s, %s", pr(tmp + 2 * k), pr(r), pr(r))
    for k, r in enumerate(regs): a("v_pk_fma_f32 %s, %s, %s, %s", pr(tmp + 2 * k), pr(tmp + 2 * k), pr(cst), pr(cst + 2))
    for k, r in enumerate(regs): a("v_pk_mul_f32 %s, %s, %s", pr(tmp + 2 * k), pr(tmp + 2 * k), pr(r))
    for k in range(2 * n): a("v_exp_f32 v%d, v%d", tmp + k, tmp + k)
    for k, r in enumerate(regs): a("v_pk_add_f32 %s, %s, %s", pr(tmp + 2 * k), pr(tmp + 2 * k), pr(cst + 4))
    for k in range(2 * n): a("v_rcp_f32 v%d, v%d", tmp + k, tmp + k)
    for k, r in enumerate(regs): a("v_pk_mul_f32 %s, %s, %s", pr(r), pr(r), pr(tmp + 2 * k))

def cloop(a, name, mf, rd, addrs, S, stage, first=None, mid=None, final=None):
    stamp(a, 2)
    if OPT.get("stamp") or first:
        a("s_barrier")
        stamp(a, 3)
        if first: first()
        if OPT.get("stamp"): a("s_waitcnt lgkmcnt(0)")
        a("s_branch %s_cloop2", name)
    if mid:
        a.label(name + "_mid")
        a("s_waitcnt vmcnt(0)")
        a("s_nop 7")
        mid[1]()
        a("s_nop 1")
        a("s_branch %s_cloop2", name)
    a.raw(".p2align 3")
    a.label(name + "_cloop")
    a("s_barrier")
    if mid:
        a("s_cmp_eq_u32 s%d, %d", S_CNT, mid[0])
        a("s_cbranch_scc1 %s_mid", name)
    a.label(name + "_cloop2")
    interleave(a, mf(1), rd(0, 0))
    a("s_waitcnt lgkmcnt(0)")
    interleave(a, mf(0), rd(1, 1), addr_update(addrs, S, stage))
    a("s_waitcnt lgkmcnt(0)")
    a("s_cbranch_scc1 %s_cloop", name)
    stamp(a, 4)
    if final: final()
    else:
        for m in mf(1): a(m)

def overlap_final(a, units, lead=3, after_lead=None):
    for u in range(min(lead, len(units))):
        for m in units[u][0]: a(m)
    if after_lead: after_lead()
    for u, (_, work) in enumerate(units):
        ms = list(units[u + lead][0]) if u + lead < len(units) else []
        step = max(1, len(work) // max(1, len(ms)))
        if u + 1 == len(units) or u + lead >= len(units): pass
        for k, w in enumerate(work):
            if ms and k % step == 0: a(ms.pop(0))
            a(w)
        for m in ms: a(m)

GEMM_VTOP = {}
CNT_BYTES = 64 * 256
def count_in(a, label, area=0):
    srd(a, 84, 4, WS["CNT"] + area, CNT_BYTES)
    a("v_mov_b32 v3, s%d", S_TMP)
    a("v_mov_b32 v4, 1")
    a("s_waitcnt vmcnt(0)")
    a("s_barrier")
    a("s_cmp_lg_u32 s%d, 0", S_W)
    a("s_cbranch_scc1 %s", label)
    a("s_mov_b64 exec, 1")
    a("buffer_atomic_add v4, v3, s[84:87], 0 offen sc1")
    a("s_mov_b64 exec, -1")
    a.label(label)

LFLAG = 131072
def wait_counters(a, label, need0, need1):
    pid = PHASES.index(label[:2]) + 1
    a("s_lshl_b32 s%d, s%d, 2", S_TMP + 3, S_LAYER)
    a("s_add_u32 s%d, s%d, %d", S_TMP + 3, S_TMP + 3, pid)
    a("s_mov_b32 s%d, 0x80000", S_TMP + 1)
    a("v_mov_b32 v24, %d", LFLAG)
    if OPT.get("poll1", 1):
        a("s_cmp_lg_u32 s%d, 0", S_W)
        a("s_cbranch_scc1 %s_lds", label)
    a("s_mov_b32 s%d, 0x8000", S_TMP + 1)
    srd(a, 84, 4, WS["CNT"], CNT_BYTES)
    a("v_cmp_eq_u32 vcc, 1, v2")
    a("v_mov_b32 v21, s%d", S_TMP)
    a("v_mov_b32 v23, s%d", S_TMP + 2)
    a("v_cndmask_b32 v21, v21, v23, vcc")
    a("v_mov_b32 v22, %d", need0)
    a("v_mov_b32 v23, %d", need1)
    a("v_cndmask_b32 v22, v22, v23, vcc")
    a.label(label)
    a("buffer_load_dword v23, v21, s[84:87], 0 offen sc1")
    a("s_sub_u32 s%d, s%d, 1", S_TMP + 1, S_TMP + 1)
    a("s_waitcnt vmcnt(0)")
    a("v_cmp_lt_u32 vcc, v23, v22")
    a("s_cmp_eq_u32 s%d, 0", S_TMP + 1)
    a("s_cbranch_scc1 %s_seen", label)
    a("s_cbranch_vccz %s_seen", label)
    a("s_sleep %d", OPT.get("dslp", 2))
    a("s_branch %s", label)
    a.label(label + "_seen")
    a("v_mov_b32 v23, s%d", S_TMP + 3)
    a("ds_write_b32 v24, v23")
    a("s_branch %s_ok", label)
    a.label(label + "_lds")
    a("ds_read_b32 v23, v24")
    a("s_sub_u32 s%d, s%d, 1", S_TMP + 1, S_TMP + 1)
    a("s_waitcnt lgkmcnt(0)")
    a("v_readfirstlane_b32 s%d, v23", S_TMP)
    a("s_cmp_eq_u32 s%d, 0", S_TMP + 1)
    a("s_cbranch_scc1 %s_ok", label)
    a("s_cmp_eq_u32 s%d, s%d", S_TMP, S_TMP + 3)
    a("s_cbranch_scc1 %s_ok", label)
    a("s_sleep 1")
    a("s_branch %s_lds", label)
    a.label(label + "_ok")

PHASES = ["g1", "g2", "g3", "g4"]
def prev_cut(name):
    k = PHASES.index(name)
    return "%d%d" % ((k - 1) % 4 + 1, k + 1) in CUTS
def next_cut(name):
    k = PHASES.index(name)
    return "%d%d" % (k + 1, (k + 1) % 4 + 1) in CUTS

def entry(a, name, ntiles, spare=False):
    for layer, ab in enumerate("ab"):
        if prev_cut(name) or (name == "g1" and layer == 0):
            kernel_header(a, "%s%s_kernel" % (name, ab))
            a("s_mov_b32 s%d, %d", S_LAYER, layer)
            a("s_mov_b32 s%d, 0x%x", S_LOFF, layer * LOFF)
            a("v_mov_b32 v1, %d", LFLAG)
            a("v_mov_b32 v2, 0")
            a("ds_write_b32 v1, v2")
            a("s_branch %s_in", name)
            KERNELS.append("%s%s_kernel" % (name, ab))
    a.raw(".p2align 6")
    a.label(name + "_in")
    a("s_cmp_ge_u32 s2, %d", ntiles)
    a("s_cbranch_scc1 %s_%s", name, "spare" if spare else "done")
    stamp(a, 0)
KERNELS = []

def ws_adjust(a):
    a("s_add_u32 s4, s4, s%d", S_LOFF)
    a("s_addc_u32 s5, s5, 0")

def sel_ptr(a, d, which_layer, off):
    a("s_add_u32 s%d, s4, 0x%x", d, off)
    a("s_addc_u32 s%d, s5, 0", d + 1)
    a("s_cmp_eq_u32 s%d, %d", S_LAYER, which_layer)
    a("s_cselect_b32 s%d, s%d, s6", d, d)
    a("s_cselect_b32 s%d, s%d, s7", d + 1, d + 1)
    a("s_mov_b32 s%d, 0x%x", d + 2, ACT_BYTES)
    a("s_mov_b32 s%d, 0x20000", d + 3)

def late_y(name):
    return OPT.get("latey", 0) and name != "g1" and not next_cut(name)

def go_next(a, name):
    if name == "g4":
        a("s_mov_b32 s%d, 1", S_LAYER)
        a("s_mov_b32 s%d, 0x%x", S_LOFF, LOFF)
    a("s_branch %s_in", PHASES[(PHASES.index(name) + 1) % 4])

def finish(a, name, cnt, loader=False):
    if next_cut(name):
        a("s_endpgm")
        return
    if name == "g4":
        a("s_cmp_lg_u32 s%d, 0", S_LAYER)
        a("s_cbranch_scc1 %s_done", name)
    if loader:
        if not late_y(name): a("s_barrier")
    else:
        cnt(a)
        count_in(a, name + "_cin", LOFF if name == "g4" else 0)
    go_next(a, name)

def gen_gemm(a, name, ntiles, A, B, WA, WB, N, S, W, ptrs, decode, init, epi, ldc, cnt, dep, stats=False, spare=None, split=None, wop="A", lbase=0):
    na, nb = A.T // (16 * WA), B.T // (16 * WB)
    stage = A.bytes + B.bytes
    baseA, baseB = lbase, lbase + A.bytes
    entry(a, name, ntiles, spare is not None)
    ptrs(a, 0)
    a("v_lshrrev_b32 v1, 6, v0")
    a("v_and_b32 v2, 63, v0")
    decode(a)
    a("v_readfirstlane_b32 s%d, v1", S_W)
    a("s_nop 0")
    a("s_cmp_lt_u32 s%d, 4", S_W)
    a("s_cbranch_scc1 %s_compute", name)

    if OPT.get("ldprio"): a("s_setprio %d", OPT["ldprio"])
    a("s_sub_u32 s%d, s%d, 4", S_W, S_W)
    loader_voffs(a, A, S_TA, 10)
    loader_voffs(a, B, S_TB, 10 + A.npw)
    a("s_mul_i32 s%d, s%d, %d", S_LA, S_W, A.npw * 1024)
    if baseA: a("s_add_u32 s%d, s%d, %d", S_LA, S_LA, baseA)
    a("s_mul_i32 s%d, s%d, %d", S_LB, S_W, B.npw * 1024)
    a("s_add_u32 s%d, s%d, %d", S_LB, S_LB, baseB)
    a("s_waitcnt lgkmcnt(0)")
    ws_adjust(a)
    ptrs(a, "L")
    def issue(part):
        kidx_offsets(a, W, A.kadv, B.kadv)
        a("s_add_u32 s%d, s%d, s%d", S_M0A, S_SLOT, S_LA)
        a("s_add_u32 s%d, s%d, s%d", S_M0B, S_SLOT, S_LB)
        for (op, vb, sm, so, sr) in ((A, 10, S_M0A, S_OFA, 8), (B, 10 + A.npw, S_M0B, S_OFB, 12)):
            if part and (part == "W") != (op is Wop): continue
            for i in range(op.npw):
                a("s_add_u32 m0, s%d, %d", sm, i * 1024)
                a("s_nop 0")
                a("buffer_load_dwordx4 v%d, s[%d:%d], s%d offen%s lds", vb + i, sr, sr + 3, so, "" if op is Wop else ASC())
    Wop = B if wop == "B" else A
    def gdep():
        if late_y(PHASES[PHASES.index(name) - 1]): a("s_barrier")
        dep(a)
    loader_loop(a, name, issue, Wop.npw, A.npw + B.npw - Wop.npw, N, S, stage, dep=None if prev_cut(name) else gdep)
    if not next_cut(name): finish(a, name, cnt, loader=True)
    a.label(name + "_done")
    a("s_endpgm")

    a.label(name + "_compute")
    ACC = 28
    BV = 22
    nacc = na * nb * 4
    FR = ACC + nacc
    fset = (na + nb) * 4
    fA = lambda st, i: FR + st * fset + 4 * i
    fB = lambda st, j: FR + st * fset + 4 * na + 4 * j
    acc = lambda i, j: ACC + 4 * (i * nb + j)
    VTOP = FR + 2 * fset
    if epi == "ln2":
        EXV = VTOP
        VTOP += 16
    nk = nb // 2 if split else nb
    if split:
        SND, RCV = VTOP, VTOP + 16
        VTOP += 32
    lane_parts(a)
    SWA, SWB = S_TMP + 4, S_TMP + 5
    a("s_and_b32 s%d, s%d, %d", SWA, S_W, WA - 1)
    a("s_lshr_b32 s%d, s%d, %d", SWB, S_W, WA.bit_length() - 1)
    a("s_mul_i32 s%d, s%d, %d", S_TMP, S_TB, B.T)
    a("s_mul_i32 s%d, s%d, %d", S_TMP + 1, SWB, nb * 16)
    a("s_add_u32 s%d, s%d, s%d", S_TMP, S_TMP, S_TMP + 1)
    if split:
        a("s_lshl_b32 s%d, s%d, 5", S_TMP + 1, S_ROLE)
        a("s_add_u32 s%d, s%d, s%d", S_TMP, S_TMP, S_TMP + 1)
    a("v_add_u32 v20, s%d, v8", S_TMP)
    a("s_mov_b32 s%d, %d", S_TMP + 1, ldc)
    a("v_mul_lo_u32 v9, v20, s%d", S_TMP + 1)
    a("s_mul_i32 s%d, s%d, %d", S_TMP, S_TA, A.T * 2)
    a("s_mul_i32 s%d, s%d, %d", S_TMP + 1, SWA, na * 32)
    a("s_add_u32 s%d, s%d, s%d", S_TMP + 6, S_TMP, S_TMP + 1)
    a("v_and_b32 v3, 1, v5")
    a("v_lshlrev_b32 v3, 5, v3")
    a("v_lshrrev_b32 v4, 1, v5")
    a("v_lshl_add_u32 v3, v4, 4, v3")
    a("v_add3_u32 v9, v9, v3, s%d", S_TMP + 6)
    for j in range(nb):
        a("s_mov_b32 s%d, %d", S_ST + j, j * 16 * ldc)
    a("s_waitcnt lgkmcnt(0)")
    stamp(a, 1)
    ws_adjust(a)
    ptrs(a, "C")
    resid = init in ("resid", "resid+biasB")
    if resid:
        RES = VTOP
        VTOP += 24
    def resid_loads():
        for j in range(nk):
            for p in range(na // 2):
                d = RES + 4 * (j * (na // 2) + p)
                a("buffer_load_dwordx4 v[%d:%d], v9, s[20:23], s%d offen offset:%d%s", d, d + 3, S_ST + j, p * 64, ASC())
        if init == "resid+biasB":
            a("v_lshlrev_b32 v3, 1, v20")
            for j in range(nk):
                a("buffer_load_ushort v%d, v3, s[56:59], 0 offen offset:%d", BV + j, j * 32)
    def resid_add():
        T = RES + 16
        for q in range(nk * na // 2):
            a("v_permlane16_swap_b32 v%d, v%d", RES + 4 * q, RES + 4 * q + 2)
            a("v_permlane16_swap_b32 v%d, v%d", RES + 4 * q + 1, RES + 4 * q + 3)
        if init == "resid+biasB":
            for j in range(nk): a("v_lshlrev_b32 v%d, 16, v%d", BV + j, BV + j)
        for j in range(nk):
            for p in range(na // 2):
                d = RES + 4 * (j * (na // 2) + p)
                for q in range(4):
                    a("v_lshlrev_b32 v%d, 16, v%d", T + 2 * q, d + q)
                    a("v_and_b32 v%d, 0xffff0000, v%d", T + 2 * q + 1, d + q)
                if init == "resid+biasB":
                    for q in range(8): a("v_add_f32 v%d, v%d, v%d", T + q, T + q, BV + j)
                for q in range(4):
                    c = acc(2 * p + (q >> 1), j) + 2 * (q & 1)
                    a("v_pk_add_f32 v[%d:%d], v[%d:%d], v[%d:%d]", c, c + 1, c, c + 1, T + 2 * q, T + 2 * q + 1)
    if init == "biasA":
        a("v_lshl_add_u32 v3, v5, 3, s%d", S_TMP + 6)
        for i in range(na):
            a("buffer_load_dwordx2 v[%d:%d], v3, s[20:23], 0 offen offset:%d", FR + 2 * i, FR + 2 * i + 1, i * 32)
    AR = 10
    def mk_addrs(op, base, swave, n, vb, sxor=None):
        if op.kind == "kc":
            a("s_mul_i32 s%d, s%d, %d", S_TMP + 2, swave, n * 16)
            read_addrs_kc(a, base, S_TMP + 2, vb)
            return [vb, vb + 1]
        a("s_mul_i32 s%d, s%d, %d", S_TMP + 2, swave, n)
        a("s_mov_b32 s%d, %d", S_TMP + 3, base)
        for i in range(n):
            read_addr_km(a, op.T, S_TMP + 3, S_TMP + 2, i, vb + i, sxor)
        return [vb + i for i in range(n)]
    adA = mk_addrs(A, baseA, SWA, na, AR)
    if split: a("s_lshl_b32 s%d, s%d, 1", S_N, S_ROLE)
    adB = mk_addrs(B, baseB, SWB, nb, AR + len(adA), S_N if split else None)
    assert AR + len(adA) + len(adB) <= 20
    for r in range(fset): a("v_mov_b32 v%d, 0", FR + fset + r)
    compute_loop_ctl_init(a, N, S, stage)
    if split:
        a("s_lshl_b32 s%d, s%d, 12", S_TMP, S_W)
        a("v_lshl_add_u32 v21, v2, 4, s%d", S_TMP)
        a("s_lshl_b32 s%d, s%d, 1", S_OWN, S_PAIR)
        a("s_add_u32 s%d, s%d, s%d", S_OWN, S_OWN, S_ROLE)
        a("s_lshl_b32 s%d, s%d, 14", S_OWN, S_OWN)
        a("s_xor_b32 s%d, s%d, 0x4000", S_OTH, S_OWN)
    if init != "biasA":
        for r in range(nacc): a("v_mov_b32 v%d, 0", ACC + r)
    else:
        a("s_waitcnt vmcnt(0)")
        for i in range(na):
            for j in range(nb):
                c = acc(i, j)
                for q in range(2):
                    a("v_lshlrev_b32 v%d, 16, v%d", c + 2 * q, FR + 2 * i + q)
                    a("v_and_b32 v%d, 0xffff0000, v%d", c + 2 * q + 1, FR + 2 * i + q)
    if OPT.get("cprio"): a("s_setprio %d", OPT["cprio"])
    def mf(st):
        return ["v_mfma_f32_16x16x32_bf16 v[%d:%d], v[%d:%d], v[%d:%d], v[%d:%d]" %
                (acc(i, j), acc(i, j) + 3, fA(st, i), fA(st, i) + 3, fB(st, j), fB(st, j) + 3, acc(i, j), acc(i, j) + 3)
                for i in range(na) for j in range(nb)]
    def rd(st, ks):
        L = []
        L += frag_reads(A.kind, A.T, adA, 0, ks, fA(st, 0))
        for j in range(nb): L += frag_reads(B.kind, B.T, adB, j, ks, fB(st, j))
        for i in range(1, na): L += frag_reads(A.kind, A.T, adA, i, ks, fA(st, i))
        return L
    def rcv_loads():
        for u in range(4):
            a("buffer_load_dwordx4 v[%d:%d], v21, s[84:87], s%d offen offset:%d sc1", RCV + 4 * u, RCV + 4 * u + 3, S_OTH, u * 1024)
    TMPV = FR
    M = dict(zip([(i, j) for i in range(na) for j in range(nb)], mf(1)))
    def out_unit(k, j, p):
        b = Asm()
        c0_, c1_ = acc(2 * p, j), acc(2 * p + 1, j)
        if epi == "gelu":
            gelu_pairs(b, [c0_, c0_ + 2, c1_, c1_ + 2], TMPV + 16, GC)
        d = TMPV + 4 * (k & 3)
        b("v_cvt_pk_bf16_f32 v%d, v%d, v%d", d, c0_, c0_ + 1)
        b("v_cvt_pk_bf16_f32 v%d, v%d, v%d", d + 1, c0_ + 2, c0_ + 3)
        b("v_cvt_pk_bf16_f32 v%d, v%d, v%d", d + 2, c1_, c1_ + 1)
        b("v_cvt_pk_bf16_f32 v%d, v%d, v%d", d + 3, c1_ + 2, c1_ + 3)
        if epi == "ln2":
            for q, x in enumerate((c0_, c0_ + 2, c1_, c1_ + 2)):
                b("v_lshlrev_b32 v%d, 16, v%d", x, d + q)
                b("v_and_b32 v%d, 0xffff0000, v%d", x + 1, d + q)
        else:
            b("s_nop 1")
        b("v_permlane16_swap_b32 v%d, v%d", d, d + 2)
        b("v_permlane16_swap_b32 v%d, v%d", d + 1, d + 3)
        b("buffer_store_dwordx4 v[%d:%d], v9, s[16:19], s%d offen offset:%d%s", d, d + 3, S_ST + j, p * 64, STF())
        return [l.strip() for l in b.lines]
    JP = [(j, p) for j in range(nk) for p in range(na // 2)]
    tiles = lambda j0: [(i, j) for j in range(j0, j0 + nk) for i in range(na)]
    def final_gelu():
        overlap_final(a, [([M[(2 * p, j)], M[(2 * p + 1, j)]], out_unit(k, j, p)) for k, (j, p) in enumerate(JP)], lead=4,
                      after_lead=lambda: a("s_nop 1"))
    def final_split():
        for t in tiles(nk): a(M[t])
        keep = [M[t] for t in tiles(0)]
        for u, (i, j) in enumerate(tiles(nk)):
            c = acc(i, j)
            a(keep[u])
            if u == 7: a("s_nop 1")
            a("v_cvt_pk_bf16_f32 v%d, v%d, v%d", SND + 2 * u, c, c + 1)
            a("v_cvt_pk_bf16_f32 v%d, v%d, v%d", SND + 2 * u + 1, c + 2, c + 3)
            if u & 1:
                a("buffer_store_dwordx4 v[%d:%d], v21, s[84:87], s%d offen offset:%d sc1", SND + 2 * u - 2, SND + 2 * u + 1, S_OWN, (u >> 1) * 1024)
    if epi == "gelu":
        GC = VTOP
        VTOP += 6
        c1 = -2.0 * math.log2(math.e) * math.sqrt(2.0 / math.pi) * 0.044715
        c0 = -2.0 * math.log2(math.e) * math.sqrt(2.0 / math.pi)
        for k, v in enumerate((c1, c1, c0, c0, 1.0, 1.0)):
            a("v_mov_b32 v%d, 0x%x", GC + k, f32(v))
    cloop(a, name, mf, rd, adA + adB, S, stage, first=resid_loads if resid else None,
          mid=(N // 2, resid_add) if resid and not split else None,
          final=final_gelu if epi == "gelu" else final_split if split else None)
    if split:
        a("s_mov_b32 s%d, 0x2000", S_CNT)
        stamp(a, 5)
        rcv_loads()
        a("s_waitcnt vmcnt(8)")
        a("s_nop 3")
        resid_add()
        a("s_waitcnt vmcnt(0)")
        a.label(name + "_rcv")
        a("v_max3_u32 v4, v%d, v%d, v%d", RCV, RCV + 1, RCV + 2)
        for q in range(3, 15, 2): a("v_max3_u32 v4, v4, v%d, v%d", RCV + q, RCV + q + 1)
        a("v_max_u32 v4, v4, v%d", RCV + 15)
        a("v_cmp_eq_u32 vcc, -1, v4")
        a("s_sub_u32 s%d, s%d, 1", S_CNT, S_CNT)
        a("s_cmp_eq_u32 s%d, 0", S_CNT)
        a("s_cbranch_scc1 %s_rcvd", name)
        a("s_cbranch_vccz %s_rcvd", name)
        a("s_sleep %d", OPT.get("slp", 2))
        rcv_loads()
        a("s_waitcnt vmcnt(0)")
        a("s_branch %s_rcv", name)
        a.label(name + "_rcvd")
        stamp(a, 6)
        if OPT.get("stamp"): a("s_add_u32 s%d, s%d, 0x6000", 64 + 2 * 9, S_CNT)
        for u, (i, j) in enumerate(tiles(0)):
            c = acc(i, j); t = TMPV + 16 + 4 * (u & 3)
            for q in range(2):
                a("v_lshlrev_b32 v%d, 16, v%d", t + 2 * q, RCV + 2 * u + q)
                a("v_and_b32 v%d, 0xffff0000, v%d", t + 2 * q + 1, RCV + 2 * u + q)
            for q in range(2):
                a("v_pk_add_f32 v[%d:%d], v[%d:%d], v[%d:%d]", c + 2 * q, c + 2 * q + 1, c + 2 * q, c + 2 * q + 1, t + 2 * q, t + 2 * q + 1)
    def stats_block():
        assert nk in (2, 4) and na == 4
        pr = lambda r: "v[%d:%d]" % (r, r + 1)
        SV = TMPV + 16
        for j in range(nk):
            prs = [acc(i, j) + 2 * q for i in range(na) for q in range(2)]
            a("v_pk_add_f32 %s, %s, %s", pr(SV + 4 * j), pr(prs[0]), pr(prs[1]))
            a("v_pk_mul_f32 %s, %s, %s", pr(SV + 4 * j + 2), pr(prs[0]), pr(prs[0]))
            for x in prs[1:]:
                if x != prs[1]: a("v_pk_add_f32 %s, %s, %s", pr(SV + 4 * j), pr(SV + 4 * j), pr(x))
                a("v_pk_fma_f32 %s, %s, %s, %s", pr(SV + 4 * j + 2), pr(x), pr(x), pr(SV + 4 * j + 2))
        for j in range(nk):
            a("v_add_f32 v%d, v%d, v%d", SV + 4 * j, SV + 4 * j, SV + 4 * j + 1)
            a("v_add_f32 v%d, v%d, v%d", SV + 4 * j + 1, SV + 4 * j + 2, SV + 4 * j + 3)
        a("s_nop 1")
        for j in range(0, nk, 2):
            a("v_permlane16_swap_b32 v%d, v%d", SV + 4 * j, SV + 4 * j + 4)
            a("v_permlane16_swap_b32 v%d, v%d", SV + 4 * j + 1, SV + 4 * j + 5)
        for j in range(0, nk, 2):
            a("v_pk_add_f32 %s, %s, %s", pr(SV + 4 * j), pr(SV + 4 * j), pr(SV + 4 * j + 4))
        if nk == 2:
            a("v_mov_b32 v%d, v%d", SV + 8, SV)
            a("v_mov_b32 v%d, v%d", SV + 9, SV + 1)
        a("v_and_b32 v3, %d, v2", 16 if nk == 2 else 48)
        a("v_add_u32 v3, v3, v20")
        a("v_permlane32_swap_b32 v%d, v%d", SV, SV + 8)
        a("v_permlane32_swap_b32 v%d, v%d", SV + 1, SV + 9)
        a("v_pk_add_f32 %s, %s, %s", pr(SV), pr(SV), pr(SV + 8))
        a("v_lshlrev_b32 v3, 3, v3")
        a("s_mul_i32 s%d, s%d, %d", S_TMP, S_TA, WA)
        a("s_add_u32 s%d, s%d, s%d", S_TMP, S_TMP, SWA)
        a("s_lshl_b32 s%d, s%d, 14", S_TMP, S_TMP)
        if nk == 2: a("s_mov_b32 exec_hi, 0")
        a("buffer_store_dwordx2 %s, v3, s[60:63], s%d offen sc1", pr(SV), S_TMP)
        if nk == 2: a("s_mov_b32 exec_hi, -1")
    def ln2_start():
        stats_block()
        a("v_lshrrev_b32 v4, 5, v2")
        a("v_lshl_add_u32 v21, v4, 17, v3")
    def ex_loads():
        for q in range(8):
            a("s_mov_b32 s%d, %d", S_TMP + (q & 1), q * 16384)
            a("buffer_load_dwordx2 v[%d:%d], v21, s[60:63], s%d offen sc1", EXV + 2 * q, EXV + 2 * q + 1, S_TMP + (q & 1))
    def ln2_finish():
        pr = lambda r: "v[%d:%d]" % (r, r + 1)
        a("s_mov_b32 s%d, 0x2000", S_CNT)
        a("v_mul_u32_u24 v19, %d, v20", LDH - ldc)
        a("v_add_u32 v19, v19, v9")
        for j in range(nk): a("s_mov_b32 s%d, %d", S_ST + 2 + j, j * 16 * LDH)
        stamp(a, 5)
        ex_loads()
        a("s_waitcnt vmcnt(0)")
        a.label(name + "_ex")
        a("v_max3_u32 v4, v%d, v%d, v%d", EXV, EXV + 1, EXV + 2)
        for q in range(3, 15, 2): a("v_max3_u32 v4, v4, v%d, v%d", EXV + q, EXV + q + 1)
        a("v_max_u32 v4, v4, v%d", EXV + 15)
        a("v_cmp_eq_u32 vcc, -1, v4")
        a("s_sub_u32 s%d, s%d, 1", S_CNT, S_CNT)
        a("s_cmp_eq_u32 s%d, 0", S_CNT)
        a("s_cbranch_scc1 %s_exd", name)
        a("s_cbranch_vccz %s_exd", name)
        a("s_sleep %d", OPT.get("slp", 2))
        ex_loads()
        a("s_waitcnt vmcnt(0)")
        a("s_branch %s_ex", name)
        a.label(name + "_exd")
        stamp(a, 6)
        if OPT.get("stamp"): a("s_add_u32 s%d, s%d, 0x6000", 64 + 2 * 9, S_CNT)
        E = EXV
        for st in (4, 2, 1):
            for q in range(st): a("v_pk_add_f32 %s, %s, %s", pr(E + 2 * q), pr(E + 2 * q), pr(E + 2 * (q + st)))
        a("v_mov_b32 v%d, v%d", E + 2, E)
        a("v_mov_b32 v%d, v%d", E + 3, E + 1)
        a("s_nop 1")
        a("v_permlane32_swap_b32 v%d, v%d", E, E + 2)
        a("v_permlane32_swap_b32 v%d, v%d", E + 1, E + 3)
        a("v_pk_add_f32 %s, %s, %s", pr(E), pr(E), pr(E + 2))
        m, var, mb, r1, m2, v2 = E, E + 1, E + 2, E + 3, E + 4, E + 5
        a("v_mul_f32 v%d, 0x%x, v%d", m, f32(1.0 / 1024), m)
        a("v_mul_f32 v%d, 0x%x, v%d", var, f32(1.0 / 1024), var)
        a("v_fma_f32 v%d, -v%d, v%d, v%d", var, m, m, var)
        a("v_max_f32 v%d, 0, v%d", var, var)
        a("v_mov_b32 v%d, v%d", mb, m)
        a("v_mov_b32 v%d, v%d", r1, var)
        def rstd(x):
            round_bf16_scalar(a, x)
            a("v_add_f32 v%d, 0x%x, v%d", x, f32(1e-5), x)
            round_bf16_scalar(a, x)
            a("v_sqrt_f32 v%d, v%d", x, x)
            a("s_nop 0")
            round_bf16_scalar(a, x)
            a("v_rcp_f32 v%d, v%d", x, x)
        round_bf16_scalar(a, mb)
        rstd(r1)
        a("v_sub_f32 v%d, v%d, v%d", m2, m, mb)
        a("v_mul_f32 v%d, v%d, v%d", v2, var, r1)
        a("v_mul_f32 v%d, v%d, v%d", m2, m2, r1)
        a("v_mul_f32 v%d, v%d, v%d", v2, v2, r1)
        round_bf16_scalar(a, m2)
        rstd(v2)
        a("v_fma_f32 v%d, v%d, v%d, v%d", m2, mb, r1, m2)
        a("v_mul_f32 v%d, v%d, v%d", E + 6, r1, v2)
        a("v_mul_f32 v%d, -v%d, v%d", E + 7, m2, v2)
        a("v_mov_b32 v%d, v%d", E + 8, E + 6)
        a("v_mov_b32 v%d, v%d", E + 9, E + 7)
        a("s_nop 1")
        a("v_permlane16_swap_b32 v%d, v%d", E + 6, E + 8)
        a("v_permlane16_swap_b32 v%d, v%d", E + 7, E + 9)
        k = 0
        for j in range(nk):
            ab = pr(E + 6 + 2 * j)
            for p in range(na // 2):
                c0_, c1_ = acc(2 * p, j), acc(2 * p + 1, j)
                for x in (c0_, c0_ + 2, c1_, c1_ + 2):
                    a("v_pk_fma_f32 %s, %s, %s, %s op_sel:[0,0,1] op_sel_hi:[1,0,1]", pr(x), pr(x), ab, ab)
                d = TMPV + 4 * (k & 3); k += 1
                a("v_cvt_pk_bf16_f32 v%d, v%d, v%d", d, c0_, c0_ + 1)
                a("v_cvt_pk_bf16_f32 v%d, v%d, v%d", d + 1, c0_ + 2, c0_ + 3)
                a("v_cvt_pk_bf16_f32 v%d, v%d, v%d", d + 2, c1_, c1_ + 1)
                a("v_cvt_pk_bf16_f32 v%d, v%d, v%d", d + 3, c1_ + 2, c1_ + 3)
                a("s_nop 1")
                a("v_permlane16_swap_b32 v%d, v%d", d, d + 2)
                a("v_permlane16_swap_b32 v%d, v%d", d + 1, d + 3)
                a("buffer_store_dwordx4 v[%d:%d], v19, s[56:59], s%d offen offset:%d%s", d, d + 3, S_ST + 2 + j, p * 64, STF())
    if epi == "ln2":
        a("s_nop 7")
        ln2_start()
    if epi != "gelu":
        for k, (j, p) in enumerate(JP):
            for w in out_unit(k, j, p): a(w)
    if stats: stats_block()
    if epi == "ln2": ln2_finish()
    xs = bool(split) or epi == "ln2"
    stamp(a, 7 if xs else 5)
    stamp_flush(a, name, 8 if xs else 6, extra=xs)
    finish(a, name, cnt)
    if spare:
        a.label(name + "_spare")
        spare(a)
    GEMM_VTOP[name] = VTOP
    return lbase + stage * S

def gen_g1(a, name, W=2):
    N, S = 16, 3
    PW = Op("km", 64, 6144)
    XB = 3 * 8192
    stage = XB + 144 * 128
    E = stage
    REG = 144 * 128
    LST = S * stage
    LCS = LST + 1280
    S_SIG, S_DIST, S_H1, S_H2, S_H3, S_H4, S_H5 = 52, 53, 54, 55, 29, 50, 51
    KG = OPT.get("KG", 12)
    entry(a, name, 256)
    a("s_load_dwordx2 s[4:5], s[0:1], %d", ARG["ws"])
    a("s_load_dwordx2 s[6:7], s[0:1], %d", ARG["x"])
    a("s_xor_b32 s%d, s%d, 1", S_DIST, S_LAYER)
    a("s_load_dwordx2 s[30:31], s[0:1], %d", ARG["wqkv"])
    a("s_load_dwordx2 s[16:17], s[0:1], %d", ARG["dbg"])
    a("s_load_dwordx2 s[18:19], s[0:1], %d", ARG["wo"])
    a("v_lshrrev_b32 v1, 6, v0")
    a("v_and_b32 v2, 63, v0")
    a("s_and_b32 s%d, s2, 1", S_TMP)
    a("s_lshl_b32 s%d, s%d, 3", S_TMP, S_TMP)
    a("s_bfe_u32 s%d, s2, 0x30003", S_TMP + 1)
    a("s_add_u32 s%d, s%d, s%d", S_TB, S_TMP, S_TMP + 1)
    a("s_bfe_u32 s%d, s2, 0x20001", S_TMP)
    a("s_lshl_b32 s%d, s%d, 2", S_TMP, S_TMP)
    a("s_lshr_b32 s%d, s2, 6", S_TMP + 2)
    a("s_add_u32 s%d, s%d, s%d", S_TA, S_TMP, S_TMP + 2)
    a("s_add_u32 s%d, s%d, s%d", S_J, S_TMP + 1, S_TMP + 2)
    a("s_add_u32 s%d, s%d, s%d", S_SIG, S_TA, S_TB)
    a("s_and_b32 s%d, s%d, 15", S_SIG, S_SIG)
    a("s_and_b32 s%d, s%d, %d", S_KB, S_SIG, KG)
    a("s_mul_i32 s%d, s%d, s%d", S_KB, S_KB, S_DIST)
    a("v_readfirstlane_b32 s%d, v1", S_W)
    lane_parts(a)
    a("s_cmp_lt_u32 s%d, 4", S_W)
    a("s_cbranch_scc1 %s_compute", name)

    EA, AO, AQ, AV, AM, ED = 216, 225, 226, 227, 228, 232
    SHD, SSH = S_TMP + 4, S_TMP + 5
    def attn_setup():
        srd(a, 16, 4, WS["O"], ACT_BYTES)
        a("s_and_b32 s%d, s%d, 1", SHD, S_W)
        SU = S_TMP + 5
        a("s_lshr_b32 s%d, s%d, 1", SU, S_W)
        a("s_lshl_b32 s%d, s%d, 2", S_TMP, SHD)
        a("v_add_u32 v3, s%d, v5", S_TMP)
        a("v_and_b32 v4, 7, v8")
        a("v_xor_b32 v3, v3, v4")
        a("v_lshlrev_b32 v3, 4, v3")
        a("v_lshl_add_u32 v3, v8, 8, v3")
        a("s_mul_i32 s%d, s%d, %d", S_TMP + 1, SU, 32 * 128)
        a("s_add_u32 s%d, s%d, %d", S_TMP + 1, S_TMP + 1, E)
        a("v_add_u32 v%d, s%d, v3", AQ, S_TMP + 1)
        a("v_lshl_add_u32 v3, v5, 2, v6")
        a("v_and_b32 v4, 7, v3")
        a("v_add_u32 v%d, s%d, v7", AM, S_TMP)
        a("v_xor_b32 v4, v4, v%d", AM)
        a("v_lshlrev_b32 v4, 4, v4")
        a("v_lshl_add_u32 v3, v3, 8, v4")
        a("s_add_u32 s%d, s%d, %d", S_TMP + 1, S_TMP + 1, 2 * REG)
        a("v_add_u32 v%d, s%d, v3", AV, S_TMP + 1)
        a("v_and_b32 v3, 7, v8")
        a("v_add_u32 v4, 1, v3")
        a("s_or_b32 s%d, s%d, s%d", S_TMP, S_TB, SU)
        a("s_cmp_eq_u32 s%d, 0", S_TMP)
        a("s_cselect_b32 s%d, 8, 0", S_TMP)
        a("v_cmp_gt_u32 vcc, 8, v8")
        a("v_mov_b32 v21, s%d", S_TMP)
        a("s_mov_b64 s[56:57], vcc")
        a("v_cndmask_b32 v21, 0, v21, vcc")
        a("v_max_u32 v4, v4, v21")
        a("v_add_u32 v3, 8, v3")
        a("v_sub_u32 v3, v3, v4")
        a("v_lshlrev_b32 v21, 2, v5")
        a("v_sub_u32 v21, v21, v4")
        a("v_mov_b32 v22, 0xf149f2ca")
        for r in range(4):
            a("v_add_u32 v23, %d, v21", r)
            a("v_cmp_ge_u32 vcc, v3, v23")
            a("s_nop 1")
            a("v_cndmask_b32 v%d, v22, 0, vcc", AM + r)
        a("s_lshl_b32 s%d, s%d, 7", S_TMP, S_TB)
        a("s_lshl_b32 s%d, s%d, 5", S_TMP + 1, SU)
        a("s_add_u32 s%d, s%d, s%d", S_TMP, S_TMP, S_TMP + 1)
        a("s_lshl_b32 s%d, s%d, 11", S_TMP, S_TMP)
        a("s_lshl_b32 s%d, s%d, 7", S_TMP + 1, S_TA)
        a("s_add_u32 s%d, s%d, s%d", S_TMP, S_TMP, S_TMP + 1)
        a("s_lshl_b32 s%d, s%d, 6", S_TMP + 1, SHD)
        a("s_add_u32 s%d, s%d, s%d", S_TMP, S_TMP, S_TMP + 1)
        a("v_lshlrev_b32 v%d, 12, v8", AO)
        a("v_lshl_add_u32 v%d, v5, 4, v%d", AO, AO)
        a("v_add_u32 v%d, s%d, v%d", AO, S_TMP, AO)
        a("s_mov_b32 s58, 0x%x", f32(32 ** -0.5))
        a("s_mov_b32 s59, 0x%x", f32(math.log2(math.e)))

    if OPT.get("ldprio"): a("s_setprio %d", OPT["ldprio"])
    a("s_sub_u32 s%d, s%d, 4", S_W, S_W)
    XO = Op("kc", 128, 2048)
    loader_voffs(a, XO, S_TB, 16)
    for p in range(3):
        loader_voffs(a, PW, S_TA, 10 + 2 * p, extra_cols=1024 * p)
    a("v_lshrrev_b32 v3, 3, v2")
    a("s_lshl_b32 s%d, s%d, 2", S_TMP, S_W)
    a("v_add_u32 v3, s%d, v3", S_TMP)
    a("v_lshrrev_b32 v4, 1, v3")
    a("v_xor_b32 v4, v4, v2")
    a("v_and_b32 v4, 7, v4")
    a("s_lshl_b32 s%d, s%d, 7", S_TMP, S_TB)
    a("s_sub_u32 s%d, s%d, 16", S_TMP, S_TMP)
    a("v_add_u32 v3, s%d, v3", S_TMP)
    a("v_max_i32 v3, 0, v3")
    a("v_lshlrev_b32 v3, 11, v3")
    a("v_lshl_add_u32 v20, v4, 4, v3")
    a("s_mul_i32 s%d, s%d, 2048", S_LA, S_W)
    a("s_mul_i32 s%d, s%d, 4096", S_LB, S_W)
    a("s_add_u32 s%d, s%d, %d", S_LB, S_LB, XB + 2048)
    a("s_mul_i32 s%d, s%d, 512", S_TMP + 6, S_W)
    a("s_add_u32 s%d, s%d, %d", S_TMP + 6, S_TMP + 6, XB)
    a("s_waitcnt lgkmcnt(0)")
    srd(a, 8, 30, 0, 1024 * 3072 * 2)
    srd(a, 56, 4, WS["CS"], CS_BYTES)
    ws_adjust(a)
    sel_ptr(a, 12, 1, WS["X2"])
    def issue(part):
        kidx_offsets(a, W, PW.kadv, 128, wrap=16)
        a("s_add_u32 s%d, s%d, s%d", S_M0A, S_SLOT, S_LA)
        a("s_add_u32 s%d, s%d, s%d", S_M0B, S_SLOT, S_LB)
        for i in range(4 if part != "W" else 0):
            a("s_add_u32 m0, s%d, %d", S_M0B, i * 1024)
            a("s_nop 0")
            a("buffer_load_dwordx4 v%d, s[12:15], s%d offen%s lds", 16 + i, S_OFB, ASC())
        for p in range(3 if part != "A" else 0):
            for i in range(2):
                a("s_add_u32 m0, s%d, %d", S_M0A, p * 8192 + i * 1024)
                a("s_nop 0")
                a("buffer_load_dwordx4 v%d, s[8:11], s%d offen lds", 10 + 2 * p + i, S_OFA)
        if part == "W": return
        a("s_add_u32 m0, s%d, s%d", S_SLOT, S_TMP + 6)
        a("s_mov_b32 exec_hi, 0")
        a("buffer_load_dwordx4 v20, s[12:15], s%d offen%s lds", S_OFB, ASC())
        a("s_mov_b32 exec_hi, -1")
    srd(a, 20, 4, WS["ST"], ST_BYTES)
    srd(a, 60, 16, 0, 256)
    a("s_sub_u32 s%d, s%d, s%d", S_TMP, S_SIG, S_J)
    a("s_and_b32 s%d, s%d, %d", S_TMP, S_TMP, W - 1)
    a("s_and_b32 s%d, s%d, %d", S_TMP + 1, S_SIG, 15 & ~KG & ~(W - 1))
    a("s_or_b32 s%d, s%d, s%d", S_TMP, S_TMP, S_TMP + 1)
    a("s_add_u32 s%d, s%d, %d", S_H1, S_TMP, S - 1)
    a("s_cmp_eq_u32 s%d, 0", S_DIST)
    a("s_cselect_b32 s%d, 0x7fff, s%d", S_H1, S_H1)
    a("s_add_u32 s%d, s%d, %d", S_H2, S_H1, S)
    a("s_cmp_lg_u32 s%d, 0", S_W)
    a("s_cselect_b32 s%d, 0x7fff, s%d", S_H2, S_H2)
    a("s_cmp_lt_u32 s%d, 0x7fff", S_H2)
    a("s_cselect_b32 s%d, %d, 0x7fff", S_H3, N - 4)
    a("s_add_u32 s%d, s%d, 1", S_H4, S_H3)
    a("s_mov_b32 s%d, %d", S_H5, N - 2)
    def slice_stats():
        SL = S_TMP + 4
        a("s_add_u32 s%d, s%d, %d", SL, S_SLOT, stage)
        a("s_cmp_eq_u32 s%d, %d", SL, S * stage)
        a("s_cselect_b32 s%d, 0, s%d", SL, SL)
        for i in range(3):
            a("s_mul_i32 s%d, s%d, 3", S_TMP + 2, S_W)
            a("s_add_u32 s%d, s%d, %d", S_TMP + 2, S_TMP + 2, i)
            a("s_lshr_b32 s%d, s%d, 2", S_TMP + 3, S_TMP + 2)
            a("s_lshl_b32 s%d, s%d, 13", S_TMP + 3, S_TMP + 3)
            a("s_add_u32 s%d, s%d, s%d", S_TMP + 3, S_TMP + 3, SL)
            a("s_and_b32 s%d, s%d, 3", S_TMP + 2, S_TMP + 2)
            read_addr_km(a, 64, S_TMP + 3, S_TMP + 2, 0, 21)
            for ks in range(2):
                for r in frag_reads("km", 64, [21], 0, ks, 24 + 8 * i + 4 * ks): a(r)
        a("s_lshr_b32 s%d, s%d, 7", S_TMP + 2, SL)
        a("s_lshl_b32 s%d, s%d, 5", S_TMP + 3, S_W)
        a("s_add_u32 s%d, s%d, s%d", S_TMP + 2, S_TMP + 2, S_TMP + 3)
        a("s_add_u32 s%d, s%d, 16", S_TMP + 2, S_TMP + 2)
        read_addrs_kc(a, XB, S_TMP + 2, 22)
        for i in range(2):
            for ks in range(2):
                for r in frag_reads("kc", 0, [22, 23], i, ks, 48 + 8 * i + 4 * ks): a(r)
        for r in range(4): a("v_mov_b32 v%d, 0x3f803f80", 64 + r)
        a("s_mul_i32 s%d, s%d, 12288", S_TMP + 2, S_SIG)
        a("s_lshl_b32 s%d, s%d, 8", S_TMP + 3, S_TA)
        a("s_add_u32 s%d, s%d, s%d", S_TMP + 2, S_TMP + 2, S_TMP + 3)
        a("v_lshl_add_u32 v21, v5, 4, s%d", S_TMP + 2)
        a("s_lshl_b32 s%d, s%d, 14", S_TMP + 2, S_SIG)
        a("s_lshl_b32 s%d, s%d, 10", S_TMP + 3, S_TB)
        a("s_add_u32 s%d, s%d, s%d", S_TMP + 2, S_TMP + 2, S_TMP + 3)
        a("s_lshl_b32 s%d, s%d, 8", S_TMP + 3, S_W)
        a("s_add_u32 s%d, s%d, s%d", S_TMP + 2, S_TMP + 2, S_TMP + 3)
        a("v_lshl_add_u32 v22, v8, 3, s%d", S_TMP + 2)
        a("s_waitcnt lgkmcnt(0)")
        mm = lambda d, x, y, first: a("v_mfma_f32_16x16x32_bf16 v[%d:%d], v[%d:%d], v[%d:%d], %s", d, d + 3, x, x + 3, y, y + 3,
                                      "0" if first else "v[%d:%d]" % (d, d + 3))
        for ks in range(2):
            for i in range(3): mm(68 + 4 * i, 24 + 8 * i + 4 * ks, 64, ks == 0)
            for i in range(2):
                mm(80 + 8 * i, 64, 48 + 8 * i + 4 * ks, ks == 0)
                mm(84 + 8 * i, 48 + 8 * i + 4 * ks, 48 + 8 * i + 4 * ks, ks == 0)
        a("v_cmp_eq_u32 s[%d:%d], 1, v7", S_TMP, S_TMP + 1)
        a("v_cmp_eq_u32 s[%d:%d], 2, v7", S_TMP + 2, S_TMP + 3)
        a("v_cmp_eq_u32 vcc, 3, v7")
        a("s_nop 7")
        for i in range(2):
            a("v_cndmask_b32 v%d, v%d, v%d, s[%d:%d]", 81 + 8 * i, 84 + 8 * i, 85 + 8 * i, S_TMP, S_TMP + 1)
            a("v_cndmask_b32 v%d, v%d, v%d, s[%d:%d]", 81 + 8 * i, 81 + 8 * i, 86 + 8 * i, S_TMP + 2, S_TMP + 3)
            a("v_cndmask_b32 v%d, v%d, v%d, vcc", 81 + 8 * i, 81 + 8 * i, 87 + 8 * i)
        a("s_mov_b32 exec_lo, 0x00f0000f")
        a("s_mov_b32 exec_hi, 0xf0000f00")
        for i in range(2):
            a("buffer_store_dwordx2 v[%d:%d], v22, s[20:23], 0 offen offset:%d sc1", 80 + 8 * i, 81 + 8 * i, 128 * i)
        a("s_mov_b32 exec_lo, 0x00010001")
        a("s_mov_b32 exec_hi, 0x00010001")
        for i in range(3):
            a("s_mul_i32 s%d, s%d, 3", S_TMP + 2, S_W)
            a("s_add_u32 s%d, s%d, %d", S_TMP + 2, S_TMP + 2, i)
            a("s_lshr_b32 s%d, s%d, 2", S_TMP + 3, S_TMP + 2)
            a("s_lshl_b32 s%d, s%d, 12", S_TMP + 3, S_TMP + 3)
            a("s_and_b32 s%d, s%d, 3", S_TMP + 2, S_TMP + 2)
            a("s_lshl_b32 s%d, s%d, 6", S_TMP + 2, S_TMP + 2)
            a("s_add_u32 s%d, s%d, s%d", S_TMP + 2, S_TMP + 2, S_TMP + 3)
            a("buffer_store_dwordx4 v[%d:%d], v21, s[56:59], s%d offen sc1", 68 + 4 * i, 71 + 4 * i, S_TMP + 2)
        a("s_mov_b64 exec, -1")
        a("s_or_b32 s%d, s%d, s%d", S_TMP, S_TA, S_TB)
        a("s_or_b32 s%d, s%d, s%d", S_TMP, S_TMP, S_W)
        a("s_cmp_lg_u32 s%d, 0", S_TMP)
        a("s_cbranch_scc1 %s_nocr", name)
        a("v_lshlrev_b32 v21, 8, v2")
        a("v_mov_b32 v22, 0")
        for area in (0, LOFF):
            srd(a, 84, 4, WS["CNT"] + area, CNT_BYTES)
            a("buffer_store_dword v22, v21, s[84:87], 0 offen sc1")
        a.label(name + "_nocr")
    def arrive():
        a("v_mov_b32 v21, 0")
        a("v_mov_b32 v22, 1")
        a("s_mov_b64 exec, 1")
        a("buffer_atomic_add v22, v21, s[60:63], 0 offen sc1")
        a("s_mov_b64 exec, -1")
    def poll_issue():
        a("v_mov_b32 v21, 0")
        a("buffer_load_dword v23, v21, s[60:63], 0 offen sc1")
    def poll_check():
        a("s_mov_b32 s%d, 0x20000", S_TMP + 1)
        a("v_mov_b32 v21, 0")
        a("s_waitcnt vmcnt(11)")
        a.label(name + "_poll")
        a("v_readfirstlane_b32 s%d, v23", S_TMP)
        a("s_sub_u32 s%d, s%d, 1", S_TMP + 1, S_TMP + 1)
        a("s_cmp_eq_u32 s%d, 0", S_TMP + 1)
        a("s_cbranch_scc1 %s_polled", name)
        a("s_cmp_ge_u32 s%d, 256", S_TMP)
        a("s_cbranch_scc1 %s_polled", name)
        a("s_sleep 8")
        a("buffer_load_dword v23, v21, s[60:63], 0 offen sc1")
        a("s_waitcnt vmcnt(0)")
        a("s_branch %s_poll", name)
        a.label(name + "_polled")
    def st_loads():
        a("s_lshl_b32 s%d, s%d, 6", S_TMP, S_W)
        a("v_add_u32 v21, s%d, v2", S_TMP)
        a("s_lshl_b32 s%d, s%d, 7", S_TMP + 1, S_TB)
        a("s_sub_u32 s%d, s%d, 16", S_TMP + 1, S_TMP + 1)
        a("v_add_u32 v3, s%d, v21", S_TMP + 1)
        a("v_max_i32 v3, 0, v3")
        a("v_min_u32 v3, 2047, v3")
        a("v_lshlrev_b32 v3, 3, v3")
        a("s_min_u32 s%d, s%d, 2", S_TMP, S_W)
        a("s_lshl_b32 s%d, s%d, 12", S_TMP, S_TMP)
        a("s_lshl_b32 s%d, s%d, 8", S_TMP + 1, S_TA)
        a("s_add_u32 s%d, s%d, s%d", S_TMP, S_TMP, S_TMP + 1)
        a("v_lshl_add_u32 v4, v2, 2, s%d", S_TMP)
        for k in range(16):
            a("s_mov_b32 s%d, %d", S_TMP, k * 16384)
            a("buffer_load_dwordx2 v[%d:%d], v3, s[20:23], s%d offen sc1", 24 + 2 * k, 25 + 2 * k, S_TMP)
            a("s_mov_b32 s%d, %d", S_TMP + 1, k * 3072 * 4)
            a("buffer_load_dword v%d, v4, s[56:59], s%d offen sc1", 56 + k, S_TMP + 1)
    def st_use():
        for st in (8, 4, 2, 1):
            for k in range(st):
                a("v_pk_add_f32 v[%d:%d], v[%d:%d], v[%d:%d]", 24 + 2 * k, 25 + 2 * k, 24 + 2 * k, 25 + 2 * k, 24 + 2 * (k + st), 25 + 2 * (k + st))
                a("v_add_f32 v%d, v%d, v%d", 56 + k, 56 + k, 56 + k + st)
        a("v_mul_f32 v24, 0x%x, v24", f32(1.0 / 1024))
        a("v_mul_f32 v25, 0x%x, v25", f32(1.0 / 1024))
        a("v_fma_f32 v25, -v24, v24, v25")
        a("v_max_f32 v25, 0, v25")
        round_bf16_scalar(a, 24)
        round_bf16_scalar(a, 25)
        a("v_add_f32 v25, 0x%x, v25", f32(1e-5))
        round_bf16_scalar(a, 25)
        a("v_sqrt_f32 v25, v25")
        a("s_nop 0")
        round_bf16_scalar(a, 25)
        a("v_rcp_f32 v26, v25")
        a("v_lshlrev_b32 v3, 3, v21")
        a("v_lshlrev_b32 v4, 2, v21")
        a("v_mul_f32 v27, -v24, v26")
        a("v_cmp_gt_u32 vcc, 144, v21")
        a("s_and_saveexec_b64 s[%d:%d], vcc", S_TMP, S_TMP + 1)
        a("v_add_u32 v3, %d, v3", LST)
        a("ds_write_b64 v3, v[26:27]")
        a("s_mov_b64 exec, s[%d:%d]", S_TMP, S_TMP + 1)
        a("v_cmp_gt_u32 vcc, 192, v21")
        a("s_and_saveexec_b64 s[%d:%d], vcc", S_TMP, S_TMP + 1)
        a("v_add_u32 v4, %d, v4", LCS)
        a("ds_write_b32 v4, v56")
        a("s_mov_b64 exec, s[%d:%d]", S_TMP, S_TMP + 1)
        a("s_waitcnt lgkmcnt(0)")
    def tail():
        a("s_waitcnt vmcnt(43)")
        a("s_barrier")
        a("s_waitcnt vmcnt(0)")
        st_use()
        a("s_barrier")
        srd(a, 20, 4, WS["EX"], ST_BYTES)
        a("s_lshl_b32 s%d, s%d, 4", S_TMP, S_TA)
        a("s_add_u32 s%d, s%d, s%d", S_TMP, S_TMP, S_TB)
        a("s_lshl_b32 s%d, s%d, 10", S_TMP, S_TMP)
        a("s_lshl_b32 s%d, s%d, 8", S_TMP + 1, S_W)
        a("s_add_u32 s%d, s%d, s%d", S_TMP, S_TMP, S_TMP + 1)
        a("v_lshlrev_b32 v3, 2, v2")
        a("v_mov_b32 v4, -1")
        a("buffer_store_dword v4, v3, s[20:23], s%d offen sc1", S_TMP)
        a("s_cmp_eq_u32 s%d, 0", S_DIST)
        a("s_cbranch_scc1 %s_nopf", name)
        srd(a, 20, 18, 0, 1024 * 1024 * 2)
        a("s_lshl_b32 s%d, s2, 13", S_TMP)
        a("s_lshl_b32 s%d, s%d, 11", S_TMP + 1, S_W)
        a("s_add_u32 s%d, s%d, s%d", S_TMP, S_TMP, S_TMP + 1)
        a("v_lshlrev_b32 v3, 4, v2")
        a("buffer_load_dwordx4 v[120:123], v3, s[20:23], s%d offen", S_TMP)
        a("buffer_load_dwordx4 v[120:123], v3, s[20:23], s%d offen offset:1024", S_TMP)
        a.label(name + "_nopf")
    def dep():
        a("s_cmp_eq_u32 s%d, 0", S_LAYER)
        a("s_cbranch_scc1 %s_dep_ok", name)
        if late_y("g4"): a("s_barrier")
        a("s_add_u32 s%d, s%d, %d", S_TMP, S_TB, C41)
        a("s_lshl_b32 s%d, s%d, 8", S_TMP, S_TMP)
        a("s_sub_u32 s%d, s%d, 256", S_TMP + 2, S_TMP)
        a("s_max_u32 s%d, s%d, %d", S_TMP + 2, S_TMP + 2, C41 * 256)
        wait_counters(a, name + "_dep", 16, 16)
    loader_loop(a, name, issue, 6, 5, N, S, stage, tail=tail, dep=None if prev_cut(name) else dep,
                events=[(S_H1, 5, slice_stats), (S_H2, 1, arrive), (S_H3, 1, poll_issue), (S_H4, 0, poll_check), (S_H5, 32, st_loads)])
    a("s_add_u32 s%d, s%d, 4", S_W, S_W)
    attn_setup()
    a("s_branch %s_attn", name)

    a.label(name + "_compute")
    na, nb = 6, 5
    ACC = 24
    acc = lambda i, j: ACC + 4 * (i * 4 + j) if j < 4 else ACC + 96 + 4 * (i - 4)
    nacc = 104
    FR = ACC + nacc
    fset = (na + nb) * 4
    fA = lambda st, i: FR + st * fset + 4 * i
    fB = lambda st, j: FR + st * fset + 4 * na + 4 * j
    VTOP = FR + 2 * fset
    SHD, SSH = S_TMP + 4, S_TMP + 5
    a("s_and_b32 s%d, s%d, 1", SHD, S_W)
    a("s_lshr_b32 s%d, s%d, 1", SSH, S_W)
    AR = 10
    def part_of(c, unit):
        if c == 0:
            a("s_mov_b32 s%d, 0", S_TMP + 3)
        else:
            a("s_xor_b32 s%d, s%d, %d", S_TMP + 3, SSH, 1 if c == 1 else 0)
            a("s_add_u32 s%d, s%d, 1", S_TMP + 3, S_TMP + 3)
            a("s_mul_i32 s%d, s%d, %d", S_TMP + 3, S_TMP + 3, unit)
    a("s_lshl_b32 s%d, s%d, 1", S_TMP + 2, SHD)
    for c in range(3):
        part_of(c, 8192)
        for i in range(2):
            read_addr_km(a, 64, S_TMP + 3, S_TMP + 2, i, AR + 2 * c + i)
    adA = [AR + i for i in range(6)]
    a("s_mul_i32 s%d, s%d, 64", S_TMP + 2, SSH)
    a("s_add_u32 s%d, s%d, 16", S_TMP + 2, S_TMP + 2)
    read_addrs_kc(a, XB, S_TMP + 2, AR + 6)
    read_addrs_kc(a, XB, None, AR + 8)
    adB, adH = [AR + 6, AR + 7], [AR + 8, AR + 9]
    for r in range(nacc): a("v_mov_b32 v%d, 0", ACC + r)
    for r in range(fset): a("v_mov_b32 v%d, 0", FR + fset + r)
    compute_loop_ctl_init(a, N, S, stage)
    if OPT.get("cprio"): a("s_setprio %d", OPT["cprio"])
    a("s_waitcnt lgkmcnt(0)")
    stamp(a, 1)
    ws_adjust(a)
    a("v_lshlrev_b32 v3, 3, v8")
    a("v_add_u32 v%d, %d, v3", EA + 1, LST)
    a("s_mul_i32 s%d, s%d, 512", S_TMP, SSH)
    a("s_add_u32 s%d, s%d, %d", S_TMP, S_TMP, LST + 128)
    a("v_add_u32 v%d, s%d, v3", EA, S_TMP)
    a("s_lshl_b32 s%d, s%d, 7", S_TMP, SHD)
    a("s_add_u32 s%d, s%d, %d", S_TMP, S_TMP, LCS)
    a("v_lshl_add_u32 v3, v5, 4, s%d", S_TMP)
    for c in range(3):
        part_of(c, 256)
        a("v_add_u32 v%d, s%d, v3", EA + 2 + c, S_TMP + 3)
    a("v_and_b32 v3, 1, v5")
    a("v_lshlrev_b32 v3, 1, v3")
    a("v_lshrrev_b32 v4, 1, v5")
    a("v_add_u32 v3, v3, v4")
    a("s_lshl_b32 s%d, s%d, 2", S_TMP, SHD)
    a("v_add_u32 v3, s%d, v3", S_TMP)
    a("v_lshrrev_b32 v4, 1, v8")
    a("v_xor_b32 v3, v3, v4")
    a("v_lshlrev_b32 v3, 4, v3")
    a("v_lshl_add_u32 v3, v8, 7, v3")
    a("s_mul_i32 s%d, s%d, %d", S_TMP + 2, SSH, 64 * 128)
    a("s_add_u32 s%d, s%d, %d", S_TMP + 2, S_TMP + 2, E + 16 * 128)
    for c in range(3):
        part_of(c, REG)
        a("s_add_u32 s%d, s%d, s%d", S_TMP, S_TMP + 2, S_TMP + 3)
        a("v_add_u32 v%d, s%d, v3", EA + 5 + c, S_TMP)
    a("s_add_u32 s%d, s%d, %d", S_TMP, S_TMP + 3, E)
    a("v_add_u32 v%d, s%d, v3", EA + 8, S_TMP)
    attn_setup()
    def mf(st):
        L = [(i, j) for i in range(6) for j in range(4)] + [(4, 4), (5, 4)]
        return ["v_mfma_f32_16x16x32_bf16 v[%d:%d], v[%d:%d], v[%d:%d], v[%d:%d]" %
                (acc(i, j), acc(i, j) + 3, fA(st, i), fA(st, i) + 3, fB(st, j), fB(st, j) + 3, acc(i, j), acc(i, j) + 3)
                for (i, j) in L]
    def rd(st, ks):
        L = []
        L += frag_reads("km", 64, adA, 0, ks, fA(st, 0))
        for j in range(4): L += frag_reads("kc", 0, adB, j, ks, fB(st, j))
        for i in range(1, 6): L += frag_reads("km", 64, adA, i, ks, fA(st, i))
        L += frag_reads("kc", 0, adH, 0, ks, fB(st, 4))
        return L
    SB = FR
    TV = SB + 36
    pr = lambda r: "v[%d:%d]" % (r, r + 1)
    def g1_final():
        for j in range(4): a("ds_read_b64 v[%d:%d], v%d offset:%d", SB + 2 * j, SB + 2 * j + 1, EA, j * 128)
        a("ds_read_b64 v[%d:%d], v%d", SB + 8, SB + 9, EA + 1)
        for c in range(3):
            for i in range(2):
                a("ds_read_b128 v[%d:%d], v%d offset:%d", SB + 12 + 4 * (2 * c + i), SB + 15 + 4 * (2 * c + i), EA + 2 + c, i * 64)
        M = dict(zip([(i, j) for i in range(6) for j in range(4)] + [(4, 4), (5, 4)], mf(1)))
        units = []
        for c in range(3):
            for j in range(5 if c == 2 else 4):
                c0_, c1_ = acc(2 * c, j), acc(2 * c + 1, j)
                d = ED + 4 * (len(units) & 3)
                prs = [(c0_, SB + 12 + 8 * c), (c0_ + 2, SB + 14 + 8 * c), (c1_, SB + 16 + 8 * c), (c1_ + 2, SB + 18 + 8 * c)]
                w = ["v_pk_mul_f32 %s, %s, %s op_sel:[0,1] op_sel_hi:[1,1]" % (pr(TV + 2 * q), pr(cs), pr(SB + 2 * j)) for q, (x, cs) in enumerate(prs)]
                w += ["v_pk_fma_f32 %s, %s, %s, %s op_sel:[0,0,0] op_sel_hi:[1,0,1]" % (pr(x), pr(x), pr(SB + 2 * j), pr(TV + 2 * q)) for q, (x, cs) in enumerate(prs)]
                w += ["v_cvt_pk_bf16_f32 v%d, v%d, v%d" % (d + q, x, x + 1) for q, (x, cs) in enumerate(prs)]
                w += ["s_nop 1", "v_permlane16_swap_b32 v%d, v%d" % (d, d + 2), "v_permlane16_swap_b32 v%d, v%d" % (d + 1, d + 3)]
                w += ["ds_write_b128 v%d, v[%d:%d] offset:%d" % (EA + 5 + c, d, d + 3, j * 2048) if j < 4 else "ds_write_b128 v%d, v[%d:%d]" % (EA + 8, d, d + 3)]
                units.append(([M[(2 * c, j)], M[(2 * c + 1, j)]], w))
        overlap_final(a, units, after_lead=lambda: a("s_waitcnt lgkmcnt(0)"))
        a("s_waitcnt lgkmcnt(0)")
    cloop(a, name, mf, rd, adA + adB + adH, S, stage, final=g1_final)

    a.label(name + "_attn")
    a("s_barrier")
    stamp(a, 5)
    if OPT.get("stamp"): a("s_waitcnt lgkmcnt(0)")
    def blk(p): return 24 + 48 * p
    for p in range(2):
        b = blk(p)
        a("ds_read_b128 v[%d:%d], v226 offset:%d", b, b + 3, 2048 + 128 * p)
        a("ds_read_b128 v[%d:%d], v226 offset:%d", b + 4, b + 7, REG + 128 * p)
        a("ds_read_b128 v[%d:%d], v226 offset:%d", b + 8, b + 11, REG + 2048 + 128 * p)
    for p in range(2):
        b = blk(p)
        for dt in range(2):
            for bb in range(2):
                d = b + 12 + 4 * dt + 2 * bb
                a("ds_read_b64_tr_b16 v[%d:%d], v227 offset:%d", d, d + 1, 128 * p + 2048 * bb + 8 * dt)
    a("s_waitcnt lgkmcnt(8)")
    for p in range(2):
        b = blk(p)
        a("v_mfma_f32_16x16x32_bf16 v[%d:%d], v[%d:%d], v[%d:%d], 0", b + 20, b + 23, b + 4, b + 7, b, b + 3)
        a("v_mfma_f32_16x16x32_bf16 v[%d:%d], v[%d:%d], v[%d:%d], 0", b + 24, b + 27, b + 8, b + 11, b, b + 3)
    a("s_nop 7")
    both = lambda f: [f(blk(p)) for p in range(2)]
    for p in range(2):
        b = blk(p)
        for r in range(4):
            a("v_cndmask_b32 v%d, v%d, v%d, s[56:57]", b + 20 + r, b + 24 + r, b + 20 + r)
    for p in range(2):
        b = blk(p)
        a("v_cvt_pk_bf16_f32 v%d, v%d, v%d", b + 24, b + 20, b + 21)
        a("v_cvt_pk_bf16_f32 v%d, v%d, v%d", b + 25, b + 22, b + 23)
    for p in range(2):
        b = blk(p)
        for q in range(2):
            a("v_lshlrev_b32 v%d, 16, v%d", b + 20 + 2 * q, b + 24 + q)
            a("v_and_b32 v%d, 0xffff0000, v%d", b + 21 + 2 * q, b + 24 + q)
    for p in range(2):
        b = blk(p)
        for r in range(4): a("v_mul_f32 v%d, s58, v%d", b + 20 + r, b + 20 + r)
    for p in range(2):
        b = blk(p)
        a("v_cvt_pk_bf16_f32 v%d, v%d, v%d", b + 24, b + 20, b + 21)
        a("v_cvt_pk_bf16_f32 v%d, v%d, v%d", b + 25, b + 22, b + 23)
    for p in range(2):
        b = blk(p)
        for q in range(2):
            a("v_lshlrev_b32 v%d, 16, v%d", b + 20 + 2 * q, b + 24 + q)
            a("v_and_b32 v%d, 0xffff0000, v%d", b + 21 + 2 * q, b + 24 + q)
    for p in range(2):
        b = blk(p)
        for r in range(4): a("v_fma_f32 v%d, v%d, s59, v%d", b + 20 + r, b + 20 + r, AM + r)
    for p in range(2):
        b = blk(p)
        a("v_max3_f32 v%d, v%d, v%d, v%d", b + 24, b + 20, b + 21, b + 22)
    for p in range(2):
        b = blk(p)
        a("v_max_f32 v%d, v%d, v%d", b + 24, b + 24, b + 23)
    def xreduce(op, off):
        for sw in ("v_permlane16_swap_b32", "v_permlane32_swap_b32"):
            for p in range(2):
                b = blk(p)
                a("v_mov_b32 v%d, v%d", b + off + 1, b + off)
            a("s_nop 1")
            for p in range(2):
                b = blk(p)
                a("%s v%d, v%d", sw, b + off, b + off + 1)
            a("s_nop 0")
            for p in range(2):
                b = blk(p)
                a("%s v%d, v%d, v%d", op, b + off, b + off, b + off + 1)
    xreduce("v_max_f32", 24)
    for p in range(2):
        b = blk(p)
        for r in range(4): a("v_sub_f32 v%d, v%d, v%d", b + 20 + r, b + 20 + r, b + 24)
    for p in range(2):
        b = blk(p)
        for r in range(4): a("v_exp_f32 v%d, v%d", b + 20 + r, b + 20 + r)
    for p in range(2):
        b = blk(p)
        a("v_add_f32 v%d, v%d, v%d", b + 24, b + 20, b + 21)
        a("v_add_f32 v%d, v%d, v%d", b + 25, b + 22, b + 23)
    for p in range(2):
        b = blk(p)
        a("v_add_f32 v%d, v%d, v%d", b + 24, b + 24, b + 25)
    xreduce("v_add_f32", 24)
    for p in range(2):
        b = blk(p)
        a("v_rcp_f32 v%d, v%d", b + 24, b + 24)
    a("s_nop 0")
    for p in range(2):
        b = blk(p)
        for r in range(4): a("v_mul_f32 v%d, v%d, v%d", b + 20 + r, b + 20 + r, b + 24)
    for p in range(2):
        b = blk(p)
        a("v_cvt_pk_bf16_f32 v%d, v%d, v%d", b + 24, b + 20, b + 21)
        a("v_cvt_pk_bf16_f32 v%d, v%d, v%d", b + 25, b + 22, b + 23)
    for p in range(2):
        b = blk(p)
        a("v_cndmask_b32 v%d, 0, v%d, s[56:57]", b + 28, b + 24)
        a("v_cndmask_b32 v%d, 0, v%d, s[56:57]", b + 29, b + 25)
        a("v_cndmask_b32 v%d, v%d, 0, s[56:57]", b + 30, b + 24)
        a("v_cndmask_b32 v%d, v%d, 0, s[56:57]", b + 31, b + 25)
    a("s_waitcnt lgkmcnt(0)")
    a("s_nop 0")
    for p in range(2):
        b = blk(p)
        for dt in range(2):
            a("v_mfma_f32_16x16x32_bf16 v[%d:%d], v[%d:%d], v[%d:%d], 0", b + 32 + 4 * dt, b + 35 + 4 * dt,
              b + 12 + 4 * dt, b + 15 + 4 * dt, b + 28, b + 31)
    a("s_nop 7")
    for p in range(2):
        b = blk(p)
        for q in range(4):
            a("v_cvt_pk_bf16_f32 v%d, v%d, v%d", b + 40 + q, b + 32 + 2 * q, b + 33 + 2 * q)
        a("buffer_store_dwordx4 v[%d:%d], v225, s[16:19], 0 offen offset:%d%s", b + 40, b + 43, 2048 * p, STF())
    stamp(a, 6)
    stamp_flush(a, name, 7)
    if not next_cut(name):
        finish(a, name, lambda a: (a("s_add_u32 s%d, s%d, %d", S_TMP, S_TB, C12), a("s_lshl_b32 s%d, s%d, 8", S_TMP, S_TMP)))
    a.label(name + "_done")
    a("s_endpgm")
    assert VTOP == 216
    GEMM_VTOP[name] = ED + 16
    return LCS + 768

def build():
    body = Asm()
    for c in str(OPT.get("cuts", "")).split("_"):
        if c: CUTS.add(c)
    def wm(a, ka, da, kb, db):
        a("s_cmp_eq_u32 s%d, 0", S_LAYER)
        a("s_cselect_b32 s%d, %d, %d", S_WM, OPT.get(ka, da) - 1, OPT.get(kb, db) - 1)
    def slot(a, sreg, base, shift=0):
        a("s_lshr_b32 s%d, s%d, %d", S_TMP, sreg, shift)
        a("s_add_u32 s%d, s%d, %d", S_TMP, S_TMP, base)
        a("s_lshl_b32 s%d, s%d, 8", S_TMP, S_TMP)
        a("s_mov_b32 s%d, s%d", S_TMP + 2, S_TMP)
    lds = {}
    lds["g1"] = gen_g1(body, "g1", W=OPT.get("W1", 2))

    def g2_ptrs(a, ph):
        if ph == 0:
            a("s_load_dwordx2 s[4:5], s[0:1], %d", ARG["ws"])
            a("s_load_dwordx2 s[6:7], s[0:1], %d", ARG["x"])
            a("s_load_dwordx2 s[30:31], s[0:1], %d", ARG["wo"])
        elif ph == "L":
            srd(a, 8, 30, 0, 1024 * 1024 * 2)
            srd(a, 12, 4, WS["O"], ACT_BYTES)
        else:
            sel_ptr(a, 20, 1, WS["X2"])
            srd(a, 16, 4, WS["X1"], ACT_BYTES)
            srd(a, 56, 4, WS["H"], 2048 * LDH)
            srd(a, 60, 4, WS["EX"], ST_BYTES)
    def g2_decode(a):
        a("s_and_b32 s%d, s2, 3", S_TMP)
        a("s_lshl_b32 s%d, s%d, 2", S_TMP, S_TMP)
        a("s_bfe_u32 s%d, s2, 0x20003", S_TMP + 1)
        a("s_add_u32 s%d, s%d, s%d", S_TB, S_TMP, S_TMP + 1)
        a("s_bfe_u32 s%d, s2, 0x10002", S_TMP)
        a("s_lshl_b32 s%d, s%d, 3", S_TMP, S_TMP)
        a("s_lshr_b32 s%d, s2, 5", S_TMP + 2)
        a("s_add_u32 s%d, s%d, s%d", S_TA, S_TMP, S_TMP + 2)
        a("s_add_u32 s%d, s%d, s%d", S_J, S_TMP + 1, S_TMP + 2)
        a("s_mov_b32 s%d, 0", S_KB)
    lds["g2"] = gen_gemm(body, "g2", 256, Op("km", 64, 2048), Op("kc", 128, 2048), 1, 4, 16, 4, OPT.get("W2", 2), g2_ptrs, g2_decode,
                         "resid", "ln2", 2048, cnt=lambda a: slot(a, S_TA, C23, 1),
                         dep=lambda a: (slot(a, S_TB, C12), wait_counters(a, "g2_dep", 16, 16)), lbase=32768 if OPT.get("latey") else 0)

    def g3_ptrs(a, ph):
        if ph == 0:
            a("s_load_dwordx2 s[4:5], s[0:1], %d", ARG["ws"])
            a("s_load_dwordx2 s[30:31], s[0:1], %d", ARG["w1"])
            a("s_load_dwordx2 s[6:7], s[0:1], %d", ARG["b1"])
        elif ph == "L":
            srd(a, 8, 30, 0, 2048 * 3584 * 2)
            srd(a, 12, 4, WS["H"], 2048 * LDH)
        else:
            srd(a, 20, 6, 0, 3584 * 2)
            srd(a, 16, 4, WS["U"], 1024 * LDU)
    def g3_decode(a):
        a("s_and_b32 s%d, s2, 1", S_TMP)
        a("s_lshl_b32 s%d, s%d, 2", S_TMP, S_TMP)
        a("s_bfe_u32 s%d, s2, 0x20003", S_TMP + 1)
        a("s_add_u32 s%d, s%d, s%d", S_TB, S_TMP, S_TMP + 1)
        a("s_bfe_u32 s%d, s2, 0x20001", S_TMP)
        a("s_mul_i32 s%d, s%d, 7", S_TMP, S_TMP)
        a("s_lshr_b32 s%d, s2, 5", S_TMP + 2)
        a("s_add_u32 s%d, s%d, s%d", S_TA, S_TMP, S_TMP + 2)
        a("s_add_u32 s%d, s%d, s%d", S_J, S_TMP + 1, S_TMP + 2)
        a("s_mov_b32 s%d, 0", S_KB)
        wm(a, "W3a", 4, "W3b", 2)
    def g3_cnt(a):
        a("s_cmp_ge_u32 s%d, 14", S_TA)
        a("s_cselect_b32 s%d, %d, %d", S_TMP, C34 + 1, C34)
        a("s_lshl_b32 s%d, s%d, 1", S_TMP + 1, S_TB)
        a("s_add_u32 s%d, s%d, s%d", S_TMP, S_TMP, S_TMP + 1)
        a("s_lshl_b32 s%d, s%d, 8", S_TMP, S_TMP)
    def g3_spare(a):
        a("s_cmp_ge_u32 s2, 256")
        a("s_cbranch_scc1 g3_done")
        a("s_load_dwordx2 s[4:5], s[0:1], %d", ARG["ws"])
        a("s_load_dwordx2 s[6:7], s[0:1], %d", ARG["w2"])
        a("s_sub_u32 s3, s2, 224")
        a("v_lshrrev_b32 v2, 6, v0")
        a("v_lshlrev_b32 v1, 4, v0")
        for r in range(4): a("v_mov_b32 v%d, -1", 8 + r)
        a("v_readfirstlane_b32 s%d, v2", S_W)
        a("s_lshl_b32 s13, s3, 17")
        if late_y("g2"):
            a("s_cmp_lt_u32 s%d, 4", S_W)
            a("s_cbranch_scc1 g3_spare_y")
            a("s_barrier")
            a.label("g3_spare_y")
        a("s_waitcnt lgkmcnt(0)")
        ws_adjust(a)
        srd(a, 8, 4, WS["PART"], PART_BYTES)
        for k in range(16):
            a("buffer_store_dwordx4 v[8:11], v1, s[8:11], s13 offen sc1")
            a("s_add_u32 s13, s13, 8192")
        if not next_cut("g3"):
            a("s_mov_b32 s%d, %d", S_TMP, CR * 256)
            count_in(a, "g3_spare_cin")
        a("s_cmp_lg_u32 s%d, 0", S_LAYER)
        a("s_cbranch_scc1 g3_spare_end")
        if OPT.get("pf", 1):
            srd(a, 8, 6, 0, 3584 * 2048 * 2)
            a("s_cmp_ge_u32 s3, 16")
            a("s_cselect_b32 s12, %d, 0", (1792 - 1024) * 4096)
            a("s_lshl_b32 s3, s3, 18")
            a("s_add_u32 s3, s3, s12")
            a("s_mov_b32 s12, 4")
            a.label("g3_spare_loop")
            for k in range(8):
                a("buffer_load_dwordx4 v[4:7], v1, s[8:11], s3 offen")
                a("s_add_u32 s3, s3, 8192")
            a("s_waitcnt vmcnt(8)")
            a("s_sub_u32 s12, s12, 1")
            a("s_cmp_lg_u32 s12, 0")
            a("s_cbranch_scc1 g3_spare_loop")
            a("s_waitcnt vmcnt(0)")
        a.label("g3_spare_end")
        if next_cut("g3"): a("s_endpgm")
        else:
            if late_y("g3"):
                a("s_cmp_ge_u32 s%d, 4", S_W)
                a("s_cbranch_scc1 g4_in")
                a("s_barrier")
            go_next(a, "g3")
    lds["g3"] = gen_gemm(body, "g3", 224, Op("km", 128, 7168), Op("km", 128, LDH), 2, 2, 32, 4, "s", g3_ptrs, g3_decode,
                         "biasA", "gelu", LDU, spare=g3_spare, cnt=g3_cnt,
                         dep=lambda a: (slot(a, S_TB, C23), wait_counters(a, "g3_dep", 32, 32)))

    def g4_ptrs(a, ph):
        if ph == 0:
            a("s_load_dwordx2 s[4:5], s[0:1], %d", ARG["ws"])
            a("s_load_dwordx2 s[6:7], s[0:1], %d", ARG["out"])
            a("s_load_dwordx2 s[30:31], s[0:1], %d", ARG["w2"])
            a("s_load_dwordx2 s[34:35], s[0:1], %d", ARG["b2"])
        elif ph == "L":
            srd(a, 8, 4, WS["U"], 1024 * LDU)
            srd(a, 12, 30, 0, 3584 * 2048 * 2)
        else:
            srd(a, 20, 4, WS["X1"], ACT_BYTES)
            srd(a, 56, 34, 0, 4096)
            sel_ptr(a, 16, 0, LOFF + WS["X2"])
            srd(a, 60, 4, LOFF + WS["ST"], ST_BYTES)
            srd(a, 84, 4, WS["PART"], PART_BYTES)
    def g4_decode(a):
        a("s_bfe_u32 s%d, s2, 0x10001", S_TMP)
        a("s_lshl_b32 s%d, s%d, 2", S_TMP, S_TMP)
        a("s_bfe_u32 s%d, s2, 0x20003", S_TMP + 1)
        a("s_add_u32 s%d, s%d, s%d", S_TA, S_TMP, S_TMP + 1)
        a("s_bfe_u32 s%d, s2, 0x10002", S_TMP)
        a("s_lshl_b32 s%d, s%d, 3", S_TMP, S_TMP)
        a("s_lshr_b32 s%d, s2, 5", S_TMP + 2)
        a("s_add_u32 s%d, s%d, s%d", S_TB, S_TMP, S_TMP + 2)
        a("s_and_b32 s%d, s2, 1", S_ROLE)
        a("s_add_u32 s%d, s%d, s%d", S_J, S_TMP + 1, S_TMP + 2)
        a("s_lshl_b32 s%d, s%d, 4", S_PAIR, S_TA)
        a("s_add_u32 s%d, s%d, s%d", S_PAIR, S_PAIR, S_TB)
        a("s_mul_i32 s%d, s%d, 28", S_KB, S_ROLE)
        wm(a, "W4a", 4, "W4b", 2)
    def g4_dep(a):
        a("s_lshl_b32 s%d, s%d, 1", S_TMP, S_TA)
        a("s_add_u32 s%d, s%d, s%d", S_TMP, S_TMP, S_ROLE)
        a("s_add_u32 s%d, s%d, %d", S_TMP, S_TMP, C34)
        a("s_lshl_b32 s%d, s%d, 8", S_TMP, S_TMP)
        a("s_mov_b32 s%d, %d", S_TMP + 2, CR * 256)
        wait_counters(a, "g4_dep", 14, 32)
    lds["g4"] = gen_gemm(body, "g4", 256, Op("kc", 128, LDU), Op("km", 128, 4096), 2, 2, 28, 4, "s", g4_ptrs, g4_decode,
                         "resid+biasB", "plain", 2048, stats=True, split=True, cnt=lambda a: slot(a, S_TB, C41), dep=g4_dep, wop="B")

    seq = [(p, ab) for ab in "ab" for p in PHASES]
    launches = []
    for k, (p, ab) in enumerate(seq):
        if k == 0 or prev_cut(p): launches.append([p + ab + "_kernel", 0, 0])
        launches[-1][1] = max(launches[-1][1], GEMM_VTOP[p])
        launches[-1][2] = LFLAG + 256
    body.label("code_end")
    for kn, vt, l in launches: kernel_desc(body, kn, vt, NSGPR)
    head = open("/code/%s.s.ref" % NAME).read().split("; Override launch geometry")[0]
    lines = ["; @launch kernel=%s grid=(256,1,1) block=(512,1,1) lds=%d" % (kn, l) for kn, vt, l in launches]
    return head + "\n".join(lines) + "\n" + '.amdgcn_target "amdgcn-amd-amdhsa--gfx950"\n' + body.text()

if __name__ == "__main__":
    out = sys.argv[1] if len(sys.argv) > 1 else "/code/%s.s" % NAME
    for o in sys.argv[2:]:
        k, _, v = o.partition("=")
        OPT[k] = (int(v) if v.isdigit() and k != "cuts" else v) if v else 1
    text = build()
    open(out, "w").write(text)
    import json
    json.dump(KID, open(out + ".kid", "w"))
    hazard.check(text)
```

```python
import sys, struct, math
from asmlib import *
import hazard

NAME = "interleave_layers__sliding_local_dilated__mixer_token_mlp__prompt"
MB = 1 << 20
WS = dict(ST=0, CS=1 * MB, EX=2 * MB, CNT=3 * MB, O=4 * MB, X1=8 * MB, H=12 * MB, U=17 * MB, X2=25 * MB, PART=29 * MB)
LDH = 2304
LDU = 8192
ST_BYTES = 16 * 2048 * 8
CS_BYTES = 16 * 3072 * 4
PART_BYTES = 256 * 16384
ARG = dict(x=0, wqkv=8, wo=16, bx=24, w1=32, b1=40, w2=48, b2=56, out=64, dbg=72, ws=80)
ACT_BYTES = 2048 * 1024 * 2

OPT = {}
for _o in sys.argv[2:]:
    _k, _, _v = _o.partition('=')
    if _k == 'LDH': LDH = int(_v)
    if _k == 'LDU': LDU = int(_v)

def STF():
    return {0: "", 1: " sc1", 2: " nt", 3: " sc0 sc1", 4: " sc0 sc1 nt"}[OPT.get("stf", 1)]

def ASC():
    return " sc1" if OPT.get("asc", 1) else ""

def f32(x):
    return struct.unpack("<I", struct.pack("<f", x))[0]

LOFF = 40 * MB
STAMP_OFF = 34 * MB
KID = {}
def stamp(a, k):
    if OPT.get("stamp"):
        a("%s s[%d:%d]", "s_memtime" if OPT["stamp"] == 2 else "s_memrealtime", 64 + 2 * k, 65 + 2 * k)

def stamp_flush(a, name, n, wsreg=4, waitvm=True, extra=False):
    if not OPT.get("stamp"): return
    kid = KID.setdefault(name, len(KID))
    if waitvm: a("s_waitcnt vmcnt(0)")
    a("%s s[%d:%d]", "s_memtime" if OPT["stamp"] == 2 else "s_memrealtime", 64 + 2 * n, 65 + 2 * n)
    a("s_waitcnt lgkmcnt(0)")
    a("s_add_u32 s84, s%d, 0x%x", wsreg, STAMP_OFF + kid * 512 * 1024)
    a("s_addc_u32 s85, s%d, 0", wsreg + 1)
    a("s_mov_b32 s86, 0x80000")
    a("s_mov_b32 s87, 0x20000")
    a("v_lshrrev_b32 v1, 6, v0")
    a("v_lshlrev_b32 v1, 6, v1")
    a("s_lshl_b32 s88, s2, 9")
    a("v_add_u32 v1, s88, v1")
    for k in range(n + 1 + extra):
        a("v_mov_b32 v2, s%d", 64 + 2 * k)
        a("buffer_store_dword v2, v1, s[84:87], 0 offen offset:%d", 4 * k)
        a("s_nop 1")

def srd(a, d, p, off, nbytes):
    if off:
        a("s_add_u32 s%d, s%d, 0x%x", d, p, off)
        a("s_addc_u32 s%d, s%d, 0", d + 1, p + 1)
    else:
        a("s_mov_b32 s%d, s%d", d, p)
        a("s_mov_b32 s%d, s%d", d + 1, p + 1)
    a("s_mov_b32 s%d, 0x%x", d + 2, nbytes)
    a("s_mov_b32 s%d, 0x20000", d + 3)

def round_bf16_scalar(a, v):
    a("v_cvt_pk_bf16_f32 v%d, v%d, v%d", v, v, v)
    a("v_lshlrev_b32 v%d, 16, v%d", v, v)

class Op:
    def __init__(self, kind, T, ld):
        self.kind, self.T, self.ld = kind, T, ld
        self.bytes = T * 128
        self.n = self.bytes // 1024
        self.npw = self.n // 4
        self.kadv = 128 if kind == "kc" else 64 * ld

S_TA, S_TB, S_KB, S_J, S_W = 24, 25, 26, 27, 28
S_T, S_SLOT, S_OFA, S_OFB = 32, 33, 34, 35
S_LA, S_LB, S_M0A, S_M0B = 36, 37, 38, 39
S_TMP = 40
S_CNT, S_DELTA, S_SI = 48, 49, 50
S_ST = 52
S_DP, S_DN = 51, 29
S_N, S_ROLE, S_PAIR, S_OWN, S_OTH, S_WM = 90, 91, 92, 93, 94, 95
S_LAYER, S_LOFF = 96, 97
NSGPR = 100
C12, C23, C34, C41, CR = 0, 16, 24, 40, 56
CUTS = set()

def loader_voffs(a, op, stile, vb, extra_cols=0):
    ld = op.ld
    a("s_mov_b32 s%d, %d", S_TMP, ld)
    if op.kind == "kc":
        a("v_lshrrev_b32 v3, 3, v2")
        a("v_mul_lo_u32 v3, v3, s%d", S_TMP)
        a("v_lshrrev_b32 v4, 4, v2")
        a("v_xor_b32 v4, v4, v2")
        a("v_and_b32 v4, 7, v4")
        a("v_lshl_add_u32 v3, v4, 4, v3")
        a("s_mul_i32 s%d, s%d, %d", S_TMP + 1, stile, op.T * ld)
        a("s_mul_i32 s%d, s%d, %d", S_TMP + 2, S_W, 8 * op.npw * ld)
        a("s_add_u32 s%d, s%d, s%d", S_TMP + 1, S_TMP + 1, S_TMP + 2)
        a("v_xor_b32 v4, 64, v3")
        for i in range(op.npw):
            a("s_add_u32 s%d, s%d, %d", S_TMP + 2, S_TMP + 1, i * 8 * ld)
            a("v_add_u32 v%d, s%d, v%d", vb + i, S_TMP + 2, 3 + (i & 1))
    elif op.T == 128:
        a("v_lshrrev_b32 v4, 4, v2")
        a("v_mul_lo_u32 v3, v4, s%d", S_TMP)
        a("v_lshlrev_b32 v4, 1, v4")
        a("v_xor_b32 v4, v4, v2")
        a("v_and_b32 v4, 15, v4")
        a("v_lshl_add_u32 v3, v4, 4, v3")
        a("s_mul_i32 s%d, s%d, 256", S_TMP + 1, stile)
        a("s_mul_i32 s%d, s%d, %d", S_TMP + 2, S_W, 16 * ld)
        a("s_add_u32 s%d, s%d, s%d", S_TMP + 1, S_TMP + 1, S_TMP + 2)
        a("v_xor_b32 v4, 128, v3")
        for i in range(4):
            a("s_add_u32 s%d, s%d, %d", S_TMP + 2, S_TMP + 1, i * 4 * ld)
            a("v_add_u32 v%d, s%d, v%d", vb + i, S_TMP + 2, 3 + (i >> 1))
    elif op.T == 64:
        a("v_lshrrev_b32 v3, 3, v2")
        a("v_mul_lo_u32 v3, v3, s%d", S_TMP)
        a("v_bfe_u32 v4, v2, 4, 1")
        a("v_lshlrev_b32 v4, 1, v4")
        a("v_xor_b32 v4, v4, v2")
        a("v_and_b32 v4, 7, v4")
        a("v_lshl_add_u32 v3, v4, 4, v3")
        a("s_mul_i32 s%d, s%d, 128", S_TMP + 1, stile)
        a("s_mul_i32 s%d, s%d, %d", S_TMP + 2, S_W, 16 * ld)
        a("s_add_u32 s%d, s%d, s%d", S_TMP + 1, S_TMP + 1, S_TMP + 2)
        a("v_xor_b32 v4, 64, v3")
        for i in range(2):
            a("s_add_u32 s%d, s%d, %d", S_TMP + 2, S_TMP + 1, i * 8 * ld + extra_cols * 2)
            a("v_add_u32 v%d, s%d, v%d", vb + i, S_TMP + 2, 3 + i)
    else:
        raise ValueError

def lane_parts(a):
    a("v_lshrrev_b32 v5, 4, v2")
    a("v_bfe_u32 v6, v2, 2, 2")
    a("v_and_b32 v7, 3, v2")
    a("v_and_b32 v8, 15, v2")

def read_addrs_kc(a, opbase, srow, vb):
    a("v_lshrrev_b32 v3, 1, v8")
    a("v_xor_b32 v3, v3, v5")
    a("v_lshlrev_b32 v3, 4, v3")
    a("v_lshl_add_u32 v3, v8, 7, v3")
    if srow is not None:
        a("s_lshl_b32 s%d, s%d, 7", S_TMP, srow)
        a("s_add_u32 s%d, s%d, %d", S_TMP, S_TMP, opbase)
        a("v_add_u32 v%d, s%d, v3", vb, S_TMP)
    else:
        a("v_add_u32 v%d, %d, v3", vb, opbase)
    a("v_xor_b32 v%d, 64, v%d", vb + 1, vb)

def read_addr_km(a, T, sbase, stile, i, vd, sxor=None):
    rowb = T * 2
    if T == 128:
        a("v_and_b32 v3, 1, v5")
        a("v_lshl_or_b32 v3, v3, 2, v6")
    else:
        a("v_and_b32 v3, 1, v5")
        a("v_lshlrev_b32 v3, 1, v3")
        a("v_lshrrev_b32 v4, 1, v6")
        a("v_or_b32 v3, v3, v4")
    a("s_add_u32 s%d, s%d, %d", S_TMP, stile, i)
    if sxor is not None: a("s_xor_b32 s%d, s%d, s%d", S_TMP, S_TMP, sxor)
    a("v_xor_b32 v3, s%d, v3", S_TMP)
    a("v_lshlrev_b32 v3, 5, v3")
    a("v_lshl_add_u32 v3, v7, 3, v3")
    a("v_lshl_add_u32 v4, v5, 3, v6")
    a("v_lshl_add_u32 v3, v4, %d, v3", rowb.bit_length() - 1)
    a("v_add_u32 v%d, s%d, v3", vd, sbase)

def frag_reads(kind, T, addr_regs, idx, ks, dst):
    if kind == "kc":
        return ["ds_read_b128 v[%d:%d], v%d offset:%d" % (dst, dst + 3, addr_regs[ks], idx * 2048)]
    rowb = T * 2
    return ["ds_read_b64_tr_b16 v[%d:%d], v%d offset:%d" % (dst + 2 * h, dst + 2 * h + 1, addr_regs[idx], h * 4 * rowb + ks * 32 * rowb)
            for h in range(2)]

def interleave(a, mfmas, reads, tail=()):
    reads = list(reads); tail = list(tail)
    if OPT.get("noreads"): reads = []
    if OPT.get("nomfma"): mfmas = ["s_nop 0"] * 2
    for m in mfmas:
        a(m)
        budget = 2
        while reads and budget > 0:
            cost = 2 if "b128" in reads[0] else 1
            if cost > budget: break
            a(reads.pop(0)); budget -= cost
        if not reads:
            while tail and budget > 0:
                a(tail.pop(0)); budget -= 1
    for r in reads: a(r)
    for t in tail: a(t)

def loader_loop(a, name, issue, nW, nA, N, S, stage_bytes, dep=None, events=(), tail=None):
    n = nW + nA
    early = OPT.get("early", 1)
    def adv():
        a("s_add_u32 s%d, s%d, %d", S_SLOT, S_SLOT, stage_bytes)
        a("s_add_u32 s%d, s%d, 1", S_T, S_T)
    for part in (("W", "A") if early else (None,)):
        if part != "W" and dep: dep()
        a("s_mov_b32 s%d, 0", S_T)
        a("s_mov_b32 s%d, 0", S_SLOT)
        a.label("%s_ld_p%s" % (name, part))
        issue(part)
        adv()
        a("s_cmp_lt_u32 s%d, %d", S_T, S - 1)
        a("s_cbranch_scc1 %s_ld_p%s", name, part)
    special = {S - 1 + k: (S - 2 - k) * nA + k * n for k in range(S - 2)} if early else {}
    a("s_waitcnt vmcnt(%d)", special.pop(S - 1, (S - 2) * n))
    a("s_branch %s_ld_bar", name)
    a.label(name + "_ld_loop")
    for T in special:
        a("s_cmp_eq_u32 s%d, %d", S_T, T)
        a("s_cbranch_scc1 %s_ld_s%d", name, T)
    for k, (at, extra, fn) in enumerate(events):
        if extra:
            a("s_sub_u32 s%d, s%d, s%d", S_TMP, S_T, at)
            a("s_sub_u32 s%d, s%d, 1", S_TMP, S_TMP)
            a("s_cmp_lt_u32 s%d, %d", S_TMP, S - 1)
            a("s_cbranch_scc1 %s_ld_w%d", name, k)
    a("s_waitcnt vmcnt(%d)", (S - 2) * n)
    a.label(name + "_ld_bar")
    a("s_barrier")
    issue(None)
    for k, (at, extra, fn) in enumerate(events):
        a("s_cmp_eq_u32 s%d, s%d", S_T, at)
        a("s_cbranch_scc1 %s_ld_h%d", name, k)
        a.label(name + "_ld_c%d" % k)
    adv()
    a("s_cmp_eq_u32 s%d, %d", S_SLOT, S * stage_bytes)
    a("s_cselect_b32 s%d, 0, s%d", S_SLOT, S_SLOT)
    a("s_cmp_lt_u32 s%d, %d", S_T, N)
    a("s_cbranch_scc1 %s_ld_loop", name)
    if tail: tail()
    else:
        for t in range(N - S + 1, N):
            a("s_waitcnt vmcnt(%d)", (N - 1 - t) * n)
            a("s_barrier")
    if events or special:
        a("s_branch %s_ld_end", name)
        for T, c in special.items():
            a.label(name + "_ld_s%d" % T)
            a("s_waitcnt vmcnt(%d)", c)
            a("s_branch %s_ld_bar", name)
        for k, (at, extra, fn) in enumerate(events):
            if extra:
                a.label(name + "_ld_w%d" % k)
                a("s_waitcnt vmcnt(%d)", (S - 2) * n + extra)
                a("s_branch %s_ld_bar", name)
            a.label(name + "_ld_h%d" % k)
            fn()
            a("s_branch %s_ld_c%d", name, k)
        a.label(name + "_ld_end")

def kidx_offsets(a, W, advA, advB, wrap=0):
    wm = ("s%d" % S_WM) if W == "s" else str(W - 1)
    a("s_add_u32 s%d, s%d, s%d", S_TMP, S_T, S_J)
    a("s_and_b32 s%d, s%d, %s", S_TMP, S_TMP, wm)
    a("s_andn2_b32 s%d, s%d, %s", S_TMP + 1, S_T, wm)
    a("s_or_b32 s%d, s%d, s%d", S_TMP, S_TMP, S_TMP + 1)
    a("s_add_u32 s%d, s%d, s%d", S_TMP, S_TMP, S_KB)
    if wrap: a("s_and_b32 s%d, s%d, %d", S_TMP, S_TMP, wrap - 1)
    a("s_mul_i32 s%d, s%d, %d", S_OFA, S_TMP, advA)
    a("s_mul_i32 s%d, s%d, %d", S_OFB, S_TMP, advB)

def compute_loop_ctl_init(a, N, S, stage_bytes):
    a("s_mov_b32 s%d, %s", S_CNT, N)
    a("s_mov_b32 s%d, 0", S_SI)
    a("s_mov_b32 s%d, %d", S_DP, stage_bytes)
    a("s_mov_b32 s%d, 0x%x", S_DN, (-(S - 1) * stage_bytes) & 0xffffffff)

def addr_update(addr_regs, S, stage_bytes):
    L = ["s_add_u32 s%d, s%d, 1" % (S_SI, S_SI),
         "s_cmp_eq_u32 s%d, %d" % (S_SI, S),
         "s_cselect_b32 s%d, s%d, s%d" % (S_DELTA, S_DN, S_DP),
         "s_cselect_b32 s%d, 0, s%d" % (S_SI, S_SI)]
    L += ["v_add_u32 v%d, s%d, v%d" % (r, S_DELTA, r) for r in addr_regs]
    L += ["s_sub_u32 s%d, s%d, 1" % (S_CNT, S_CNT), "s_cmp_lg_u32 s%d, 0" % S_CNT]
    return L

def gelu_pairs(a, regs, tmp, cst):
    n = len(regs)
    pr = lambda r: "v[%d:%d]" % (r, r + 1)
    for k, r in enumerate(regs): a("v_pk_mul_f32 %s, %s, %s", pr(tmp + 2 * k), pr(r), pr(r))
    for k, r in enumerate(regs): a("v_pk_fma_f32 %s, %s, %s, %s", pr(tmp + 2 * k), pr(tmp + 2 * k), pr(cst), pr(cst + 2))
    for k, r in enumerate(regs): a("v_pk_mul_f32 %s, %s, %s", pr(tmp + 2 * k), pr(tmp + 2 * k), pr(r))
    for k in range(2 * n): a("v_exp_f32 v%d, v%d", tmp + k, tmp + k)
    for k, r in enumerate(regs): a("v_pk_add_f32 %s, %s, %s", pr(tmp + 2 * k), pr(tmp + 2 * k), pr(cst + 4))
    for k in range(2 * n): a("v_rcp_f32 v%d, v%d", tmp + k, tmp + k)
    for k, r in enumerate(regs): a("v_pk_mul_f32 %s, %s, %s", pr(r), pr(r), pr(tmp + 2 * k))

def sorted_like(order, L): return L

def cloop(a, name, mf, rd, addrs, S, stage, first=None, mid=None, final=None):
    stamp(a, 2)
    if OPT.get("stamp") or first:
        a("s_barrier")
        stamp(a, 3)
        if first: first()
        if OPT.get("stamp"): a("s_waitcnt lgkmcnt(0)")
        a("s_branch %s_cloop2", name)
    if mid:
        a.label(name + "_mid")
        a("s_waitcnt vmcnt(0)")
        a("s_nop 7")
        mid[1]()
        a("s_nop 1")
        a("s_branch %s_cloop2", name)
    a.raw(".p2align 3")
    a.label(name + "_cloop")
    a("s_barrier")
    if mid:
        a("s_cmp_eq_u32 s%d, %d", S_CNT, mid[0])
        a("s_cbranch_scc1 %s_mid", name)
    a.label(name + "_cloop2")
    interleave(a, mf(1), rd(0, 0))
    a("s_waitcnt lgkmcnt(0)")
    interleave(a, mf(0), rd(1, 1), addr_update(addrs, S, stage))
    a("s_waitcnt lgkmcnt(0)")
    a("s_cbranch_scc1 %s_cloop", name)
    stamp(a, 4)
    if final: final()
    else:
        for m in mf(1): a(m)

def overlap_final(a, units, lead=3, after_lead=None):
    for u in range(min(lead, len(units))):
        for m in units[u][0]: a(m)
    if after_lead: after_lead()
    for u, (_, work) in enumerate(units):
        ms = list(units[u + lead][0]) if u + lead < len(units) else []
        step = max(1, len(work) // max(1, len(ms)))
        if u + 1 == len(units) or u + lead >= len(units): pass
        for k, w in enumerate(work):
            if ms and k % step == 0: a(ms.pop(0))
            a(w)
        for m in ms: a(m)

GEMM_VTOP = {}
CNT_BYTES = 64 * 256
def count_in(a, label, area=0):
    srd(a, 84, 4, WS["CNT"] + area, CNT_BYTES)
    a("v_mov_b32 v3, s%d", S_TMP)
    a("v_mov_b32 v4, 1")
    a("s_waitcnt vmcnt(0)")
    a("s_barrier")
    a("s_cmp_lg_u32 s%d, 0", S_W)
    a("s_cbranch_scc1 %s", label)
    a("s_mov_b64 exec, 1")
    a("buffer_atomic_add v4, v3, s[84:87], 0 offen sc1")
    a("s_mov_b64 exec, -1")
    a.label(label)

LFLAG = 131072
def wait_counters(a, label, need0, need1):
    pid = PHASES.index(label[:2]) + 1
    a("s_lshl_b32 s%d, s%d, 2", S_TMP + 3, S_LAYER)
    a("s_add_u32 s%d, s%d, %d", S_TMP + 3, S_TMP + 3, pid)
    a("s_mov_b32 s%d, 0x80000", S_TMP + 1)
    a("v_mov_b32 v24, %d", LFLAG)
    if OPT.get("poll1", 1):
        a("s_cmp_lg_u32 s%d, 0", S_W)
        a("s_cbranch_scc1 %s_lds", label)
    a("s_mov_b32 s%d, 0x8000", S_TMP + 1)
    srd(a, 84, 4, WS["CNT"], CNT_BYTES)
    a("v_cmp_eq_u32 vcc, 1, v2")
    a("v_mov_b32 v21, s%d", S_TMP)
    a("v_mov_b32 v23, s%d", S_TMP + 2)
    a("v_cndmask_b32 v21, v21, v23, vcc")
    a("v_mov_b32 v22, %d", need0)
    a("v_mov_b32 v23, %d", need1)
    a("v_cndmask_b32 v22, v22, v23, vcc")
    a.label(label)
    a("buffer_load_dword v23, v21, s[84:87], 0 offen sc1")
    a("s_sub_u32 s%d, s%d, 1", S_TMP + 1, S_TMP + 1)
    a("s_waitcnt vmcnt(0)")
    a("v_cmp_lt_u32 vcc, v23, v22")
    a("s_cmp_eq_u32 s%d, 0", S_TMP + 1)
    a("s_cbranch_scc1 %s_seen", label)
    a("s_cbranch_vccz %s_seen", label)
    a("s_sleep %d", OPT.get("dslp", 2))
    a("s_branch %s", label)
    a.label(label + "_seen")
    a("v_mov_b32 v23, s%d", S_TMP + 3)
    a("ds_write_b32 v24, v23")
    a("s_branch %s_ok", label)
    a.label(label + "_lds")
    a("ds_read_b32 v23, v24")
    a("s_sub_u32 s%d, s%d, 1", S_TMP + 1, S_TMP + 1)
    a("s_waitcnt lgkmcnt(0)")
    a("v_readfirstlane_b32 s%d, v23", S_TMP)
    a("s_cmp_eq_u32 s%d, 0", S_TMP + 1)
    a("s_cbranch_scc1 %s_ok", label)
    a("s_cmp_eq_u32 s%d, s%d", S_TMP, S_TMP + 3)
    a("s_cbranch_scc1 %s_ok", label)
    a("s_sleep 1")
    a("s_branch %s_lds", label)
    a.label(label + "_ok")

PHASES = ["g1", "g2", "g3", "g4"]
def prev_cut(name):
    k = PHASES.index(name)
    return "%d%d" % ((k - 1) % 4 + 1, k + 1) in CUTS
def next_cut(name):
    k = PHASES.index(name)
    return "%d%d" % (k + 1, (k + 1) % 4 + 1) in CUTS

def entry(a, name, ntiles, spare=False):
    for layer, ab in enumerate("ab"):
        if prev_cut(name) or (name == "g1" and layer == 0):
            kernel_header(a, "%s%s_kernel" % (name, ab))
            a("s_mov_b32 s%d, %d", S_LAYER, layer)
            a("s_mov_b32 s%d, 0x%x", S_LOFF, layer * LOFF)
            a("v_mov_b32 v1, %d", LFLAG)
            a("v_mov_b32 v2, 0")
            a("ds_write_b32 v1, v2")
            a("s_branch %s_in", name)
            KERNELS.append("%s%s_kernel" % (name, ab))
    a.raw(".p2align 6")
    a.label(name + "_in")
    a("s_cmp_ge_u32 s2, %d", ntiles)
    a("s_cbranch_scc1 %s_%s", name, "spare" if spare else "done")
    stamp(a, 0)
KERNELS = []

def ws_adjust(a):
    a("s_add_u32 s4, s4, s%d", S_LOFF)
    a("s_addc_u32 s5, s5, 0")

def sel_ptr(a, d, which_layer, off):
    a("s_add_u32 s%d, s4, 0x%x", d, off)
    a("s_addc_u32 s%d, s5, 0", d + 1)
    a("s_cmp_eq_u32 s%d, %d", S_LAYER, which_layer)
    a("s_cselect_b32 s%d, s%d, s6", d, d)
    a("s_cselect_b32 s%d, s%d, s7", d + 1, d + 1)
    a("s_mov_b32 s%d, 0x%x", d + 2, ACT_BYTES)
    a("s_mov_b32 s%d, 0x20000", d + 3)

def late_y(name):
    return OPT.get("latey", 0) and name != "g1" and not next_cut(name)

def go_next(a, name):
    if name == "g4":
        a("s_mov_b32 s%d, 1", S_LAYER)
        a("s_mov_b32 s%d, 0x%x", S_LOFF, LOFF)
    a("s_branch %s_in", PHASES[(PHASES.index(name) + 1) % 4])

def finish(a, name, cnt, loader=False):
    if next_cut(name):
        a("s_endpgm")
        return
    if name == "g4":
        a("s_cmp_lg_u32 s%d, 0", S_LAYER)
        a("s_cbranch_scc1 %s_done", name)
    if loader:
        if not late_y(name): a("s_barrier")
    else:
        cnt(a)
        count_in(a, name + "_cin", LOFF if name == "g4" else 0)
    go_next(a, name)

def gen_gemm(a, name, ntiles, A, B, WA, WB, N, S, W, ptrs, decode, init, epi, ldc, cnt, dep, stats=False, spare=None, split=None, wop="A", lbase=0):
    na, nb = A.T // (16 * WA), B.T // (16 * WB)
    stage = A.bytes + B.bytes
    baseA, baseB = lbase, lbase + A.bytes
    entry(a, name, ntiles, spare is not None)
    ptrs(a, 0)
    a("v_lshrrev_b32 v1, 6, v0")
    a("v_and_b32 v2, 63, v0")
    decode(a)
    a("v_readfirstlane_b32 s%d, v1", S_W)
    a("s_nop 0")
    a("s_cmp_lt_u32 s%d, 4", S_W)
    a("s_cbranch_scc1 %s_compute", name)

    if OPT.get("ldprio"): a("s_setprio %d", OPT["ldprio"])
    a("s_sub_u32 s%d, s%d, 4", S_W, S_W)
    loader_voffs(a, A, S_TA, 10)
    loader_voffs(a, B, S_TB, 10 + A.npw)
    a("s_mul_i32 s%d, s%d, %d", S_LA, S_W, A.npw * 1024)
    if baseA: a("s_add_u32 s%d, s%d, %d", S_LA, S_LA, baseA)
    a("s_mul_i32 s%d, s%d, %d", S_LB, S_W, B.npw * 1024)
    a("s_add_u32 s%d, s%d, %d", S_LB, S_LB, baseB)
    a("s_waitcnt lgkmcnt(0)")
    ws_adjust(a)
    ptrs(a, "L")
    def issue(part):
        kidx_offsets(a, W, A.kadv, B.kadv)
        a("s_add_u32 s%d, s%d, s%d", S_M0A, S_SLOT, S_LA)
        a("s_add_u32 s%d, s%d, s%d", S_M0B, S_SLOT, S_LB)
        for (op, vb, sm, so, sr) in ((A, 10, S_M0A, S_OFA, 8), (B, 10 + A.npw, S_M0B, S_OFB, 12)):
            if part and (part == "W") != (op is Wop): continue
            for i in range(op.npw):
                a("s_add_u32 m0, s%d, %d", sm, i * 1024)
                a("s_nop 0")
                a("buffer_load_dwordx4 v%d, s[%d:%d], s%d offen%s lds", vb + i, sr, sr + 3, so, "" if op is Wop else ASC())
    Wop = B if wop == "B" else A
    def gdep():
        if late_y(PHASES[PHASES.index(name) - 1]): a("s_barrier")
        dep(a)
    loader_loop(a, name, issue, Wop.npw, A.npw + B.npw - Wop.npw, N, S, stage, dep=None if prev_cut(name) else gdep)
    if not next_cut(name): finish(a, name, cnt, loader=True)
    a.label(name + "_done")
    a("s_endpgm")

    a.label(name + "_compute")
    ACC = 28
    BV = 22
    nacc = na * nb * 4
    FR = ACC + nacc
    fset = (na + nb) * 4
    fA = lambda st, i: FR + st * fset + 4 * i
    fB = lambda st, j: FR + st * fset + 4 * na + 4 * j
    acc = lambda i, j: ACC + 4 * (i * nb + j)
    VTOP = FR + 2 * fset
    if epi == "ln2":
        EXV = VTOP
        VTOP += 16
    nk = nb // 2 if split else nb
    if split:
        SND, RCV = VTOP, VTOP + 16
        VTOP += 32
    lane_parts(a)
    SWA, SWB = S_TMP + 4, S_TMP + 5
    a("s_and_b32 s%d, s%d, %d", SWA, S_W, WA - 1)
    a("s_lshr_b32 s%d, s%d, %d", SWB, S_W, WA.bit_length() - 1)
    a("s_mul_i32 s%d, s%d, %d", S_TMP, S_TB, B.T)
    a("s_mul_i32 s%d, s%d, %d", S_TMP + 1, SWB, nb * 16)
    a("s_add_u32 s%d, s%d, s%d", S_TMP, S_TMP, S_TMP + 1)
    if split:
        a("s_lshl_b32 s%d, s%d, 5", S_TMP + 1, S_ROLE)
        a("s_add_u32 s%d, s%d, s%d", S_TMP, S_TMP, S_TMP + 1)
    a("v_add_u32 v20, s%d, v8", S_TMP)
    a("s_mov_b32 s%d, %d", S_TMP + 1, ldc)
    a("v_mul_lo_u32 v9, v20, s%d", S_TMP + 1)
    a("s_mul_i32 s%d, s%d, %d", S_TMP, S_TA, A.T * 2)
    a("s_mul_i32 s%d, s%d, %d", S_TMP + 1, SWA, na * 32)
    a("s_add_u32 s%d, s%d, s%d", S_TMP + 6, S_TMP, S_TMP + 1)
    a("v_and_b32 v3, 1, v5")
    a("v_lshlrev_b32 v3, 5, v3")
    a("v_lshrrev_b32 v4, 1, v5")
    a("v_lshl_add_u32 v3, v4, 4, v3")
    a("v_add3_u32 v9, v9, v3, s%d", S_TMP + 6)
    for j in range(nb):
        a("s_mov_b32 s%d, %d", S_ST + j, j * 16 * ldc)
    a("s_waitcnt lgkmcnt(0)")
    stamp(a, 1)
    ws_adjust(a)
    ptrs(a, "C")
    resid = init in ("resid", "resid+biasB")
    if resid:
        RES = VTOP
        VTOP += 24
    def resid_loads():
        for j in range(nk):
            for p in range(na // 2):
                d = RES + 4 * (j * (na // 2) + p)
                a("buffer_load_dwordx4 v[%d:%d], v9, s[20:23], s%d offen offset:%d%s", d, d + 3, S_ST + j, p * 64, ASC())
        if init == "resid+biasB":
            a("v_lshlrev_b32 v3, 1, v20")
            for j in range(nk):
                a("buffer_load_ushort v%d, v3, s[56:59], 0 offen offset:%d", BV + j, j * 32)
    def resid_add():
        T = RES + 16
        for q in range(nk * na // 2):
            a("v_permlane16_swap_b32 v%d, v%d", RES + 4 * q, RES + 4 * q + 2)
            a("v_permlane16_swap_b32 v%d, v%d", RES + 4 * q + 1, RES + 4 * q + 3)
        if init == "resid+biasB":
            for j in range(nk): a("v_lshlrev_b32 v%d, 16, v%d", BV + j, BV + j)
        for j in range(nk):
            for p in range(na // 2):
                d = RES + 4 * (j * (na // 2) + p)
                for q in range(4):
                    a("v_lshlrev_b32 v%d, 16, v%d", T + 2 * q, d + q)
                    a("v_and_b32 v%d, 0xffff0000, v%d", T + 2 * q + 1, d + q)
                if init == "resid+biasB":
                    for q in range(8): a("v_add_f32 v%d, v%d, v%d", T + q, T + q, BV + j)
                for q in range(4):
                    c = acc(2 * p + (q >> 1), j) + 2 * (q & 1)
                    a("v_pk_add_f32 v[%d:%d], v[%d:%d], v[%d:%d]", c, c + 1, c, c + 1, T + 2 * q, T + 2 * q + 1)
    if init == "biasA":
        a("v_lshl_add_u32 v3, v5, 3, s%d", S_TMP + 6)
        for i in range(na):
            a("buffer_load_dwordx2 v[%d:%d], v3, s[20:23], 0 offen offset:%d", FR + 2 * i, FR + 2 * i + 1, i * 32)
    AR = 10
    def mk_addrs(op, base, swave, n, vb, sxor=None):
        if op.kind == "kc":
            a("s_mul_i32 s%d, s%d, %d", S_TMP + 2, swave, n * 16)
            read_addrs_kc(a, base, S_TMP + 2, vb)
            return [vb, vb + 1]
        a("s_mul_i32 s%d, s%d, %d", S_TMP + 2, swave, n)
        a("s_mov_b32 s%d, %d", S_TMP + 3, base)
        for i in range(n):
            read_addr_km(a, op.T, S_TMP + 3, S_TMP + 2, i, vb + i, sxor)
        return [vb + i for i in range(n)]
    adA = mk_addrs(A, baseA, SWA, na, AR)
    if split: a("s_lshl_b32 s%d, s%d, 1", S_N, S_ROLE)
    adB = mk_addrs(B, baseB, SWB, nb, AR + len(adA), S_N if split else None)
    assert AR + len(adA) + len(adB) <= 20
    for r in range(fset): a("v_mov_b32 v%d, 0", FR + fset + r)
    compute_loop_ctl_init(a, N, S, stage)
    if split:
        a("s_lshl_b32 s%d, s%d, 12", S_TMP, S_W)
        a("v_lshl_add_u32 v21, v2, 4, s%d", S_TMP)
        a("s_lshl_b32 s%d, s%d, 1", S_OWN, S_PAIR)
        a("s_add_u32 s%d, s%d, s%d", S_OWN, S_OWN, S_ROLE)
        a("s_lshl_b32 s%d, s%d, 14", S_OWN, S_OWN)
        a("s_xor_b32 s%d, s%d, 0x4000", S_OTH, S_OWN)
    if init != "biasA":
        for r in range(nacc): a("v_mov_b32 v%d, 0", ACC + r)
    else:
        a("s_waitcnt vmcnt(0)")
        for i in range(na):
            for j in range(nb):
                c = acc(i, j)
                for q in range(2):
                    a("v_lshlrev_b32 v%d, 16, v%d", c + 2 * q, FR + 2 * i + q)
                    a("v_and_b32 v%d, 0xffff0000, v%d", c + 2 * q + 1, FR + 2 * i + q)
    if OPT.get("cprio"): a("s_setprio %d", OPT["cprio"])
    ORD = [(i, j if i % 2 == 0 else nb - 1 - j) for i in range(na) for j in range(nb)]
    if OPT.get("snake", 1) == 2: ORD = [(i if j % 2 == 0 else na - 1 - i, j) for j in range(nb) for i in range(na)]
    if OPT.get("snake", 1) == 0: ORD = [(i, j) for i in range(na) for j in range(nb)]
    def mf(st):
        if OPT.get("agpr") and name == "g3":
            return ["v_mfma_f32_16x16x32_bf16 a[%d:%d], v[%d:%d], v[%d:%d], a[%d:%d]" %
                    (acc(i, j) - ACC, acc(i, j) + 3 - ACC, fA(st, i), fA(st, i) + 3, fB(st, j), fB(st, j) + 3, acc(i, j) - ACC, acc(i, j) + 3 - ACC)
                    for i in range(na) for j in range(nb)]
        order = ORD
        if OPT.get("chain") and name == "g3":
            L = []
            for (i, j) in ORD:
                if (i >> 1) != st: continue
                for (x, y) in ((i, j), (i ^ 2, j ^ 1)):
                    L.append("v_mfma_f32_16x16x32_bf16 v[%d:%d], v[%d:%d], v[%d:%d], v[%d:%d]" %
                             (acc(i, j), acc(i, j) + 3, fA(st, x), fA(st, x) + 3, fB(st, y), fB(st, y) + 3, acc(i, j), acc(i, j) + 3))
            return L
        return sorted_like(order, ["v_mfma_f32_16x16x32_bf16 v[%d:%d], v[%d:%d], v[%d:%d], v[%d:%d]" %
                (acc(i, j), acc(i, j) + 3, fA(st, i), fA(st, i) + 3, fB(st, j), fB(st, j) + 3, acc(i, j), acc(i, j) + 3)
                for (i, j) in order])
    def rd(st, ks):
        L = []
        L += frag_reads(A.kind, A.T, adA, 0, ks, fA(st, 0))
        for j in range(nb): L += frag_reads(B.kind, B.T, adB, j, ks, fB(st, j))
        for i in range(1, na): L += frag_reads(A.kind, A.T, adA, i, ks, fA(st, i))
        return L
    def rcv_loads():
        for u in range(4):
            a("buffer_load_dwordx4 v[%d:%d], v21, s[84:87], s%d offen offset:%d sc1", RCV + 4 * u, RCV + 4 * u + 3, S_OTH, u * 1024)
    TMPV = FR
    M = dict(zip(ORD, mf(1)))
    def out_unit(k, j, p):
        b = Asm()
        c0_, c1_ = acc(2 * p, j), acc(2 * p + 1, j)
        if epi == "gelu":
            gelu_pairs(b, [c0_, c0_ + 2, c1_, c1_ + 2], TMPV + 16, GC)
        d = TMPV + 4 * (k & 3)
        b("v_cvt_pk_bf16_f32 v%d, v%d, v%d", d, c0_, c0_ + 1)
        b("v_cvt_pk_bf16_f32 v%d, v%d, v%d", d + 1, c0_ + 2, c0_ + 3)
        b("v_cvt_pk_bf16_f32 v%d, v%d, v%d", d + 2, c1_, c1_ + 1)
        b("v_cvt_pk_bf16_f32 v%d, v%d, v%d", d + 3, c1_ + 2, c1_ + 3)
        if epi == "ln2":
            for q, x in enumerate((c0_, c0_ + 2, c1_, c1_ + 2)):
                b("v_lshlrev_b32 v%d, 16, v%d", x, d + q)
                b("v_and_b32 v%d, 0xffff0000, v%d", x + 1, d + q)
        else:
            b("s_nop 1")
        b("v_permlane16_swap_b32 v%d, v%d", d, d + 2)
        b("v_permlane16_swap_b32 v%d, v%d", d + 1, d + 3)
        b("buffer_store_dwordx4 v[%d:%d], v9, s[16:19], s%d offen offset:%d%s", d, d + 3, S_ST + j, p * 64, STF())
        return [l.strip() for l in b.lines]
    JP = [(j, p) for j in range(nk) for p in range(na // 2)]
    tiles = lambda j0: [(i, j) for j in range(j0, j0 + nk) for i in range(na)]
    def final_gelu():
        overlap_final(a, [([M[(2 * p, j)], M[(2 * p + 1, j)]], out_unit(k, j, p)) for k, (j, p) in enumerate(JP)], lead=4,
                      after_lead=lambda: a("s_nop 1"))
    def final_split():
        for t in tiles(nk): a(M[t])
        keep = [M[t] for t in tiles(0)]
        for u, (i, j) in enumerate(tiles(nk)):
            c = acc(i, j)
            a(keep[u])
            if u == 7: a("s_nop 1")
            a("v_cvt_pk_bf16_f32 v%d, v%d, v%d", SND + 2 * u, c, c + 1)
            a("v_cvt_pk_bf16_f32 v%d, v%d, v%d", SND + 2 * u + 1, c + 2, c + 3)
            if u & 1:
                a("buffer_store_dwordx4 v[%d:%d], v21, s[84:87], s%d offen offset:%d sc1", SND + 2 * u - 2, SND + 2 * u + 1, S_OWN, (u >> 1) * 1024)
    if epi == "gelu":
        GC = VTOP
        VTOP += 6
        c1 = -2.0 * math.log2(math.e) * math.sqrt(2.0 / math.pi) * 0.044715
        c0 = -2.0 * math.log2(math.e) * math.sqrt(2.0 / math.pi)
        for k, v in enumerate((c1, c1, c0, c0, 1.0, 1.0)):
            a("v_mov_b32 v%d, 0x%x", GC + k, f32(v))
    cloop(a, name, mf, rd, adA + adB, S, stage, first=resid_loads if resid else None,
          mid=(N // 2, resid_add) if resid and not split else None,
          final=final_gelu if epi == "gelu" else final_split if split else None)
    if split:
        a("s_mov_b32 s%d, 0x2000", S_CNT)
        stamp(a, 5)
        rcv_loads()
        a("s_waitcnt vmcnt(8)")
        a("s_nop 3")
        resid_add()
        a("s_waitcnt vmcnt(0)")
        a.label(name + "_rcv")
        a("v_max3_u32 v4, v%d, v%d, v%d", RCV, RCV + 1, RCV + 2)
        for q in range(3, 15, 2): a("v_max3_u32 v4, v4, v%d, v%d", RCV + q, RCV + q + 1)
        a("v_max_u32 v4, v4, v%d", RCV + 15)
        a("v_cmp_eq_u32 vcc, -1, v4")
        a("s_sub_u32 s%d, s%d, 1", S_CNT, S_CNT)
        a("s_cmp_eq_u32 s%d, 0", S_CNT)
        a("s_cbranch_scc1 %s_rcvd", name)
        a("s_cbranch_vccz %s_rcvd", name)
        a("s_sleep %d", OPT.get("slp", 2))
        rcv_loads()
        a("s_waitcnt vmcnt(0)")
        a("s_branch %s_rcv", name)
        a.label(name + "_rcvd")
        stamp(a, 6)
        if OPT.get("stamp"): a("s_add_u32 s%d, s%d, 0x6000", 64 + 2 * 9, S_CNT)
        for u, (i, j) in enumerate(tiles(0)):
            c = acc(i, j); t = TMPV + 16 + 4 * (u & 3)
            for q in range(2):
                a("v_lshlrev_b32 v%d, 16, v%d", t + 2 * q, RCV + 2 * u + q)
                a("v_and_b32 v%d, 0xffff0000, v%d", t + 2 * q + 1, RCV + 2 * u + q)
            for q in range(2):
                a("v_pk_add_f32 v[%d:%d], v[%d:%d], v[%d:%d]", c + 2 * q, c + 2 * q + 1, c + 2 * q, c + 2 * q + 1, t + 2 * q, t + 2 * q + 1)
    def stats_block():
        assert nk in (2, 4) and na == 4
        pr = lambda r: "v[%d:%d]" % (r, r + 1)
        SV = TMPV + 16
        for j in range(nk):
            prs = [acc(i, j) + 2 * q for i in range(na) for q in range(2)]
            a("v_pk_add_f32 %s, %s, %s", pr(SV + 4 * j), pr(prs[0]), pr(prs[1]))
            a("v_pk_mul_f32 %s, %s, %s", pr(SV + 4 * j + 2), pr(prs[0]), pr(prs[0]))
            for x in prs[1:]:
                if x != prs[1]: a("v_pk_add_f32 %s, %s, %s", pr(SV + 4 * j), pr(SV + 4 * j), pr(x))
                a("v_pk_fma_f32 %s, %s, %s, %s", pr(SV + 4 * j + 2), pr(x), pr(x), pr(SV + 4 * j + 2))
        for j in range(nk):
            a("v_add_f32 v%d, v%d, v%d", SV + 4 * j, SV + 4 * j, SV + 4 * j + 1)
            a("v_add_f32 v%d, v%d, v%d", SV + 4 * j + 1, SV + 4 * j + 2, SV + 4 * j + 3)
        a("s_nop 1")
        for j in range(0, nk, 2):
            a("v_permlane16_swap_b32 v%d, v%d", SV + 4 * j, SV + 4 * j + 4)
            a("v_permlane16_swap_b32 v%d, v%d", SV + 4 * j + 1, SV + 4 * j + 5)
        for j in range(0, nk, 2):
            a("v_pk_add_f32 %s, %s, %s", pr(SV + 4 * j), pr(SV + 4 * j), pr(SV + 4 * j + 4))
        if nk == 2:
            a("v_mov_b32 v%d, v%d", SV + 8, SV)
            a("v_mov_b32 v%d, v%d", SV + 9, SV + 1)
        a("v_and_b32 v3, %d, v2", 16 if nk == 2 else 48)
        a("v_add_u32 v3, v3, v20")
        a("v_permlane32_swap_b32 v%d, v%d", SV, SV + 8)
        a("v_permlane32_swap_b32 v%d, v%d", SV + 1, SV + 9)
        a("v_pk_add_f32 %s, %s, %s", pr(SV), pr(SV), pr(SV + 8))
        a("v_lshlrev_b32 v3, 3, v3")
        a("s_mul_i32 s%d, s%d, %d", S_TMP, S_TA, WA)
        a("s_add_u32 s%d, s%d, s%d", S_TMP, S_TMP, SWA)
        a("s_lshl_b32 s%d, s%d, 14", S_TMP, S_TMP)
        if nk == 2: a("s_mov_b32 exec_hi, 0")
        a("buffer_store_dwordx2 %s, v3, s[60:63], s%d offen sc1", pr(SV), S_TMP)
        if nk == 2: a("s_mov_b32 exec_hi, -1")
    def ln2_start():
        stats_block()
        a("v_lshrrev_b32 v4, 5, v2")
        a("v_lshl_add_u32 v21, v4, 17, v3")
    def ex_loads():
        for q in range(8):
            a("s_mov_b32 s%d, %d", S_TMP + (q & 1), q * 16384)
            a("buffer_load_dwordx2 v[%d:%d], v21, s[60:63], s%d offen sc1", EXV + 2 * q, EXV + 2 * q + 1, S_TMP + (q & 1))
    def ln2_finish():
        pr = lambda r: "v[%d:%d]" % (r, r + 1)
        a("s_mov_b32 s%d, 0x2000", S_CNT)
        a("v_mul_u32_u24 v19, %d, v20", LDH - ldc)
        a("v_add_u32 v19, v19, v9")
        for j in range(nk): a("s_mov_b32 s%d, %d", S_ST + 2 + j, j * 16 * LDH)
        stamp(a, 5)
        ex_loads()
        if OPT.get("x1late") == 2:
            for w in held: a(w)
            a("s_waitcnt vmcnt(4)")
        else:
            a("s_waitcnt vmcnt(0)")
        a.label(name + "_ex")
        a("v_max3_u32 v4, v%d, v%d, v%d", EXV, EXV + 1, EXV + 2)
        for q in range(3, 15, 2): a("v_max3_u32 v4, v4, v%d, v%d", EXV + q, EXV + q + 1)
        a("v_max_u32 v4, v4, v%d", EXV + 15)
        a("v_cmp_eq_u32 vcc, -1, v4")
        a("s_sub_u32 s%d, s%d, 1", S_CNT, S_CNT)
        a("s_cmp_eq_u32 s%d, 0", S_CNT)
        a("s_cbranch_scc1 %s_exd", name)
        a("s_cbranch_vccz %s_exd", name)
        a("s_sleep %d", OPT.get("slp", 2))
        ex_loads()
        a("s_waitcnt vmcnt(0)")
        a("s_branch %s_ex", name)
        a.label(name + "_exd")
        stamp(a, 6)
        if OPT.get("stamp"): a("s_add_u32 s%d, s%d, 0x6000", 64 + 2 * 9, S_CNT)
        if OPT.get("x1late") == 1:
            for w in held: a(w)
        E = EXV
        for st in (4, 2, 1):
            for q in range(st): a("v_pk_add_f32 %s, %s, %s", pr(E + 2 * q), pr(E + 2 * q), pr(E + 2 * (q + st)))
        a("v_mov_b32 v%d, v%d", E + 2, E)
        a("v_mov_b32 v%d, v%d", E + 3, E + 1)
        a("s_nop 1")
        a("v_permlane32_swap_b32 v%d, v%d", E, E + 2)
        a("v_permlane32_swap_b32 v%d, v%d", E + 1, E + 3)
        a("v_pk_add_f32 %s, %s, %s", pr(E), pr(E), pr(E + 2))
        m, var, mb, r1, m2, v2 = E, E + 1, E + 2, E + 3, E + 4, E + 5
        a("v_mul_f32 v%d, 0x%x, v%d", m, f32(1.0 / 1024), m)
        a("v_mul_f32 v%d, 0x%x, v%d", var, f32(1.0 / 1024), var)
        a("v_fma_f32 v%d, -v%d, v%d, v%d", var, m, m, var)
        a("v_max_f32 v%d, 0, v%d", var, var)
        a("v_mov_b32 v%d, v%d", mb, m)
        a("v_mov_b32 v%d, v%d", r1, var)
        def rstd(x):
            round_bf16_scalar(a, x)
            a("v_add_f32 v%d, 0x%x, v%d", x, f32(1e-5), x)
            round_bf16_scalar(a, x)
            a("v_sqrt_f32 v%d, v%d", x, x)
            a("s_nop 0")
            round_bf16_scalar(a, x)
            a("v_rcp_f32 v%d, v%d", x, x)
        round_bf16_scalar(a, mb)
        rstd(r1)
        a("v_sub_f32 v%d, v%d, v%d", m2, m, mb)
        a("v_mul_f32 v%d, v%d, v%d", v2, var, r1)
        a("v_mul_f32 v%d, v%d, v%d", m2, m2, r1)
        a("v_mul_f32 v%d, v%d, v%d", v2, v2, r1)
        round_bf16_scalar(a, m2)
        rstd(v2)
        a("v_fma_f32 v%d, v%d, v%d, v%d", m2, mb, r1, m2)
        a("v_mul_f32 v%d, v%d, v%d", E + 6, r1, v2)
        a("v_mul_f32 v%d, -v%d, v%d", E + 7, m2, v2)
        a("v_mov_b32 v%d, v%d", E + 8, E + 6)
        a("v_mov_b32 v%d, v%d", E + 9, E + 7)
        a("s_nop 1")
        a("v_permlane16_swap_b32 v%d, v%d", E + 6, E + 8)
        a("v_permlane16_swap_b32 v%d, v%d", E + 7, E + 9)
        k = 0
        for j in range(nk):
            ab = pr(E + 6 + 2 * j)
            for p in range(na // 2):
                c0_, c1_ = acc(2 * p, j), acc(2 * p + 1, j)
                for x in (c0_, c0_ + 2, c1_, c1_ + 2):
                    a("v_pk_fma_f32 %s, %s, %s, %s op_sel:[0,0,1] op_sel_hi:[1,0,1]", pr(x), pr(x), ab, ab)
                d = RES + 4 * (k & 3); k += 1
                a("v_cvt_pk_bf16_f32 v%d, v%d, v%d", d, c0_, c0_ + 1)
                a("v_cvt_pk_bf16_f32 v%d, v%d, v%d", d + 1, c0_ + 2, c0_ + 3)
                a("v_cvt_pk_bf16_f32 v%d, v%d, v%d", d + 2, c1_, c1_ + 1)
                a("v_cvt_pk_bf16_f32 v%d, v%d, v%d", d + 3, c1_ + 2, c1_ + 3)
                a("s_nop 1")
                a("v_permlane16_swap_b32 v%d, v%d", d, d + 2)
                a("v_permlane16_swap_b32 v%d, v%d", d + 1, d + 3)
                a("buffer_store_dwordx4 v[%d:%d], v19, s[56:59], s%d offen offset:%d%s", d, d + 3, S_ST + 2 + j, p * 64, STF())
    if epi == "ln2":
        a("s_nop 7")
        ln2_start()
    held = []
    if epi != "gelu":
        for k, (j, p) in enumerate(JP):
            u = out_unit(k, j, p)
            if epi == "ln2" and OPT.get("x1late"): held.append(u.pop())
            for w in u: a(w)
    if stats: stats_block()
    if epi == "ln2": ln2_finish()
    xs = bool(split) or epi == "ln2"
    stamp(a, 7 if xs else 5)
    stamp_flush(a, name, 8 if xs else 6, extra=xs)
    finish(a, name, cnt)
    if spare:
        a.label(name + "_spare")
        spare(a)
    GEMM_VTOP[name] = VTOP
    return lbase + stage * S

def gen_g1(a, name, W=2):
    N, S = 16, 3
    PW = Op("km", 64, 6144)
    XB = 3 * 8192
    stage = XB + 144 * 128
    E = stage
    REG = 144 * 128
    LST = S * stage
    LCS = LST + 1280
    S_SIG, S_DIST, S_H1, S_H2, S_H3, S_H4, S_H5 = 52, 53, 54, 55, 29, 50, 51
    KG = OPT.get("KG", 12)
    entry(a, name, 256)
    a("s_load_dwordx2 s[4:5], s[0:1], %d", ARG["ws"])
    a("s_load_dwordx2 s[6:7], s[0:1], %d", ARG["x"])
    a("s_xor_b32 s%d, s%d, 1", S_DIST, S_LAYER)
    a("s_load_dwordx2 s[30:31], s[0:1], %d", ARG["wqkv"])
    a("s_load_dwordx2 s[16:17], s[0:1], %d", ARG["dbg"])
    a("s_load_dwordx2 s[18:19], s[0:1], %d", ARG["wo"])
    a("v_lshrrev_b32 v1, 6, v0")
    a("v_and_b32 v2, 63, v0")
    a("s_and_b32 s%d, s2, 1", S_TMP)
    a("s_lshl_b32 s%d, s%d, 3", S_TMP, S_TMP)
    a("s_bfe_u32 s%d, s2, 0x30003", S_TMP + 1)
    a("s_add_u32 s%d, s%d, s%d", S_TB, S_TMP, S_TMP + 1)
    a("s_bfe_u32 s%d, s2, 0x20001", S_TMP)
    a("s_lshl_b32 s%d, s%d, 2", S_TMP, S_TMP)
    a("s_lshr_b32 s%d, s2, 6", S_TMP + 2)
    a("s_add_u32 s%d, s%d, s%d", S_TA, S_TMP, S_TMP + 2)
    a("s_add_u32 s%d, s%d, s%d", S_J, S_TMP + 1, S_TMP + 2)
    a("s_add_u32 s%d, s%d, s%d", S_SIG, S_TA, S_TB)
    a("s_and_b32 s%d, s%d, 15", S_SIG, S_SIG)
    a("s_and_b32 s%d, s%d, %d", S_KB, S_SIG, KG)
    a("s_mul_i32 s%d, s%d, s%d", S_KB, S_KB, S_DIST)
    a("v_readfirstlane_b32 s%d, v1", S_W)
    lane_parts(a)
    a("s_cmp_lt_u32 s%d, 4", S_W)
    a("s_cbranch_scc1 %s_compute", name)

    EA, AO, AQ, AV, AM, ED = 216, 225, 226, 227, 228, 232
    SHD, SSH = S_TMP + 4, S_TMP + 5
    def attn_setup():
        srd(a, 16, 4, WS["O"], ACT_BYTES)
        a("s_and_b32 s%d, s%d, 1", SHD, S_W)
        SU = S_TMP + 5
        a("s_lshr_b32 s%d, s%d, 1", SU, S_W)
        a("s_lshl_b32 s%d, s%d, 2", S_TMP, SHD)
        a("v_add_u32 v3, s%d, v5", S_TMP)
        a("v_and_b32 v4, 7, v8")
        a("v_xor_b32 v3, v3, v4")
        a("v_lshlrev_b32 v3, 4, v3")
        a("v_lshl_add_u32 v3, v8, 8, v3")
        a("s_mul_i32 s%d, s%d, %d", S_TMP + 1, SU, 32 * 128)
        a("s_add_u32 s%d, s%d, %d", S_TMP + 1, S_TMP + 1, E)
        a("v_add_u32 v%d, s%d, v3", AQ, S_TMP + 1)
        a("v_lshl_add_u32 v3, v5, 2, v6")
        a("v_and_b32 v4, 7, v3")
        a("v_add_u32 v%d, s%d, v7", AM, S_TMP)
        a("v_xor_b32 v4, v4, v%d", AM)
        a("v_lshlrev_b32 v4, 4, v4")
        a("v_lshl_add_u32 v3, v3, 8, v4")
        a("s_add_u32 s%d, s%d, %d", S_TMP + 1, S_TMP + 1, 2 * REG)
        a("v_add_u32 v%d, s%d, v3", AV, S_TMP + 1)
        a("v_and_b32 v3, 7, v8")
        a("v_add_u32 v4, 1, v3")
        a("s_or_b32 s%d, s%d, s%d", S_TMP, S_TB, SU)
        a("s_cmp_eq_u32 s%d, 0", S_TMP)
        a("s_cselect_b32 s%d, 8, 0", S_TMP)
        a("v_cmp_gt_u32 vcc, 8, v8")
        a("v_mov_b32 v21, s%d", S_TMP)
        a("s_mov_b64 s[56:57], vcc")
        a("v_cndmask_b32 v21, 0, v21, vcc")
        a("v_max_u32 v4, v4, v21")
        a("v_add_u32 v3, 8, v3")
        a("v_sub_u32 v3, v3, v4")
        a("v_lshlrev_b32 v21, 2, v5")
        a("v_sub_u32 v21, v21, v4")
        a("v_mov_b32 v22, 0xf149f2ca")
        for r in range(4):
            a("v_add_u32 v23, %d, v21", r)
            a("v_cmp_ge_u32 vcc, v3, v23")
            a("s_nop 1")
            a("v_cndmask_b32 v%d, v22, 0, vcc", AM + r)
        a("s_lshl_b32 s%d, s%d, 7", S_TMP, S_TB)
        a("s_lshl_b32 s%d, s%d, 5", S_TMP + 1, SU)
        a("s_add_u32 s%d, s%d, s%d", S_TMP, S_TMP, S_TMP + 1)
        a("s_lshl_b32 s%d, s%d, 11", S_TMP, S_TMP)
        a("s_lshl_b32 s%d, s%d, 7", S_TMP + 1, S_TA)
        a("s_add_u32 s%d, s%d, s%d", S_TMP, S_TMP, S_TMP + 1)
        a("s_lshl_b32 s%d, s%d, 6", S_TMP + 1, SHD)
        a("s_add_u32 s%d, s%d, s%d", S_TMP, S_TMP, S_TMP + 1)
        a("v_lshlrev_b32 v%d, 12, v8", AO)
        a("v_lshl_add_u32 v%d, v5, 4, v%d", AO, AO)
        a("v_add_u32 v%d, s%d, v%d", AO, S_TMP, AO)
        a("s_mov_b32 s58, 0x%x", f32(32 ** -0.5))
        a("s_mov_b32 s59, 0x%x", f32(math.log2(math.e)))

    if OPT.get("ldprio"): a("s_setprio %d", OPT["ldprio"])
    a("s_sub_u32 s%d, s%d, 4", S_W, S_W)
    XO = Op("kc", 128, 2048)
    loader_voffs(a, XO, S_TB, 16)
    for p in range(3):
        loader_voffs(a, PW, S_TA, 10 + 2 * p, extra_cols=1024 * p)
    a("v_lshrrev_b32 v3, 3, v2")
    a("s_lshl_b32 s%d, s%d, 2", S_TMP, S_W)
    a("v_add_u32 v3, s%d, v3", S_TMP)
    a("v_lshrrev_b32 v4, 1, v3")
    a("v_xor_b32 v4, v4, v2")
    a("v_and_b32 v4, 7, v4")
    a("s_lshl_b32 s%d, s%d, 7", S_TMP, S_TB)
    a("s_sub_u32 s%d, s%d, 16", S_TMP, S_TMP)
    a("v_add_u32 v3, s%d, v3", S_TMP)
    a("v_max_i32 v3, 0, v3")
    a("v_lshlrev_b32 v3, 11, v3")
    a("v_lshl_add_u32 v20, v4, 4, v3")
    a("s_mul_i32 s%d, s%d, 2048", S_LA, S_W)
    a("s_mul_i32 s%d, s%d, 4096", S_LB, S_W)
    a("s_add_u32 s%d, s%d, %d", S_LB, S_LB, XB + 2048)
    a("s_mul_i32 s%d, s%d, 512", S_TMP + 6, S_W)
    a("s_add_u32 s%d, s%d, %d", S_TMP + 6, S_TMP + 6, XB)
    a("s_waitcnt lgkmcnt(0)")
    srd(a, 8, 30, 0, 1024 * 3072 * 2)
    srd(a, 56, 4, WS["CS"], CS_BYTES)
    ws_adjust(a)
    sel_ptr(a, 12, 1, WS["X2"])
    def issue(part):
        kidx_offsets(a, W, PW.kadv, 128, wrap=16)
        a("s_add_u32 s%d, s%d, s%d", S_M0A, S_SLOT, S_LA)
        a("s_add_u32 s%d, s%d, s%d", S_M0B, S_SLOT, S_LB)
        for i in range(4 if part != "W" else 0):
            a("s_add_u32 m0, s%d, %d", S_M0B, i * 1024)
            a("s_nop 0")
            a("buffer_load_dwordx4 v%d, s[12:15], s%d offen%s lds", 16 + i, S_OFB, ASC())
        for p in range(3 if part != "A" else 0):
            for i in range(2):
                a("s_add_u32 m0, s%d, %d", S_M0A, p * 8192 + i * 1024)
                a("s_nop 0")
                a("buffer_load_dwordx4 v%d, s[8:11], s%d offen lds", 10 + 2 * p + i, S_OFA)
        if part == "W": return
        a("s_add_u32 m0, s%d, s%d", S_SLOT, S_TMP + 6)
        a("s_mov_b32 exec_hi, 0")
        a("buffer_load_dwordx4 v20, s[12:15], s%d offen%s lds", S_OFB, ASC())
        a("s_mov_b32 exec_hi, -1")
    srd(a, 20, 4, WS["ST"], ST_BYTES)
    srd(a, 60, 16, 0, 256)
    a("s_sub_u32 s%d, s%d, s%d", S_TMP, S_SIG, S_J)
    a("s_and_b32 s%d, s%d, %d", S_TMP, S_TMP, W - 1)
    a("s_and_b32 s%d, s%d, %d", S_TMP + 1, S_SIG, 15 & ~KG & ~(W - 1))
    a("s_or_b32 s%d, s%d, s%d", S_TMP, S_TMP, S_TMP + 1)
    a("s_add_u32 s%d, s%d, %d", S_H1, S_TMP, S - 1)
    a("s_cmp_eq_u32 s%d, 0", S_DIST)
    a("s_cselect_b32 s%d, 0x7fff, s%d", S_H1, S_H1)
    a("s_add_u32 s%d, s%d, %d", S_H2, S_H1, S)
    a("s_cmp_lg_u32 s%d, 0", S_W)
    a("s_cselect_b32 s%d, 0x7fff, s%d", S_H2, S_H2)
    a("s_cmp_lt_u32 s%d, 0x7fff", S_H2)
    a("s_cselect_b32 s%d, %d, 0x7fff", S_H3, N - 4)
    a("s_add_u32 s%d, s%d, 1", S_H4, S_H3)
    a("s_mov_b32 s%d, %d", S_H5, N - 2)
    def slice_stats():
        SL = S_TMP + 4
        a("s_add_u32 s%d, s%d, %d", SL, S_SLOT, stage)
        a("s_cmp_eq_u32 s%d, %d", SL, S * stage)
        a("s_cselect_b32 s%d, 0, s%d", SL, SL)
        for i in range(3):
            a("s_mul_i32 s%d, s%d, 3", S_TMP + 2, S_W)
            a("s_add_u32 s%d, s%d, %d", S_TMP + 2, S_TMP + 2, i)
            a("s_lshr_b32 s%d, s%d, 2", S_TMP + 3, S_TMP + 2)
            a("s_lshl_b32 s%d, s%d, 13", S_TMP + 3, S_TMP + 3)
            a("s_add_u32 s%d, s%d, s%d", S_TMP + 3, S_TMP + 3, SL)
            a("s_and_b32 s%d, s%d, 3", S_TMP + 2, S_TMP + 2)
            read_addr_km(a, 64, S_TMP + 3, S_TMP + 2, 0, 21)
            for ks in range(2):
                for r in frag_reads("km", 64, [21], 0, ks, 24 + 8 * i + 4 * ks): a(r)
        a("s_lshr_b32 s%d, s%d, 7", S_TMP + 2, SL)
        a("s_lshl_b32 s%d, s%d, 5", S_TMP + 3, S_W)
        a("s_add_u32 s%d, s%d, s%d", S_TMP + 2, S_TMP + 2, S_TMP + 3)
        a("s_add_u32 s%d, s%d, 16", S_TMP + 2, S_TMP + 2)
        read_addrs_kc(a, XB, S_TMP + 2, 22)
        for i in range(2):
            for ks in range(2):
                for r in frag_reads("kc", 0, [22, 23], i, ks, 48 + 8 * i + 4 * ks): a(r)
        for r in range(4): a("v_mov_b32 v%d, 0x3f803f80", 64 + r)
        a("s_mul_i32 s%d, s%d, 12288", S_TMP + 2, S_SIG)
        a("s_lshl_b32 s%d, s%d, 8", S_TMP + 3, S_TA)
        a("s_add_u32 s%d, s%d, s%d", S_TMP + 2, S_TMP + 2, S_TMP + 3)
        a("v_lshl_add_u32 v21, v5, 4, s%d", S_TMP + 2)
        a("s_lshl_b32 s%d, s%d, 14", S_TMP + 2, S_SIG)
        a("s_lshl_b32 s%d, s%d, 10", S_TMP + 3, S_TB)
        a("s_add_u32 s%d, s%d, s%d", S_TMP + 2, S_TMP + 2, S_TMP + 3)
        a("s_lshl_b32 s%d, s%d, 8", S_TMP + 3, S_W)
        a("s_add_u32 s%d, s%d, s%d", S_TMP + 2, S_TMP + 2, S_TMP + 3)
        a("v_lshl_add_u32 v22, v8, 3, s%d", S_TMP + 2)
        a("s_waitcnt lgkmcnt(0)")
        mm = lambda d, x, y, first: a("v_mfma_f32_16x16x32_bf16 v[%d:%d], v[%d:%d], v[%d:%d], %s", d, d + 3, x, x + 3, y, y + 3,
                                      "0" if first else "v[%d:%d]" % (d, d + 3))
        for ks in range(2):
            for i in range(3): mm(68 + 4 * i, 24 + 8 * i + 4 * ks, 64, ks == 0)
            for i in range(2):
                mm(80 + 8 * i, 64, 48 + 8 * i + 4 * ks, ks == 0)
                mm(84 + 8 * i, 48 + 8 * i + 4 * ks, 48 + 8 * i + 4 * ks, ks == 0)
        a("v_cmp_eq_u32 s[%d:%d], 1, v7", S_TMP, S_TMP + 1)
        a("v_cmp_eq_u32 s[%d:%d], 2, v7", S_TMP + 2, S_TMP + 3)
        a("v_cmp_eq_u32 vcc, 3, v7")
        a("s_nop 7")
        for i in range(2):
            a("v_cndmask_b32 v%d, v%d, v%d, s[%d:%d]", 81 + 8 * i, 84 + 8 * i, 85 + 8 * i, S_TMP, S_TMP + 1)
            a("v_cndmask_b32 v%d, v%d, v%d, s[%d:%d]", 81 + 8 * i, 81 + 8 * i, 86 + 8 * i, S_TMP + 2, S_TMP + 3)
            a("v_cndmask_b32 v%d, v%d, v%d, vcc", 81 + 8 * i, 81 + 8 * i, 87 + 8 * i)
        a("s_mov_b32 exec_lo, 0x00f0000f")
        a("s_mov_b32 exec_hi, 0xf0000f00")
        for i in range(2):
            a("buffer_store_dwordx2 v[%d:%d], v22, s[20:23], 0 offen offset:%d sc1", 80 + 8 * i, 81 + 8 * i, 128 * i)
        a("s_mov_b32 exec_lo, 0x00010001")
        a("s_mov_b32 exec_hi, 0x00010001")
        for i in range(3):
            a("s_mul_i32 s%d, s%d, 3", S_TMP + 2, S_W)
            a("s_add_u32 s%d, s%d, %d", S_TMP + 2, S_TMP + 2, i)
            a("s_lshr_b32 s%d, s%d, 2", S_TMP + 3, S_TMP + 2)
            a("s_lshl_b32 s%d, s%d, 12", S_TMP + 3, S_TMP + 3)
            a("s_and_b32 s%d, s%d, 3", S_TMP + 2, S_TMP + 2)
            a("s_lshl_b32 s%d, s%d, 6", S_TMP + 2, S_TMP + 2)
            a("s_add_u32 s%d, s%d, s%d", S_TMP + 2, S_TMP + 2, S_TMP + 3)
            a("buffer_store_dwordx4 v[%d:%d], v21, s[56:59], s%d offen sc1", 68 + 4 * i, 71 + 4 * i, S_TMP + 2)
        a("s_mov_b64 exec, -1")
        a("s_or_b32 s%d, s%d, s%d", S_TMP, S_TA, S_TB)
        a("s_or_b32 s%d, s%d, s%d", S_TMP, S_TMP, S_W)
        a("s_cmp_lg_u32 s%d, 0", S_TMP)
        a("s_cbranch_scc1 %s_nocr", name)
        a("v_lshlrev_b32 v21, 8, v2")
        a("v_mov_b32 v22, 0")
        for area in (0, LOFF):
            srd(a, 84, 4, WS["CNT"] + area, CNT_BYTES)
            a("buffer_store_dword v22, v21, s[84:87], 0 offen sc1")
        a.label(name + "_nocr")
    def arrive():
        a("v_mov_b32 v21, 0")
        a("v_mov_b32 v22, 1")
        a("s_mov_b64 exec, 1")
        a("buffer_atomic_add v22, v21, s[60:63], 0 offen sc1")
        a("s_mov_b64 exec, -1")
    def poll_issue():
        a("v_mov_b32 v21, 0")
        a("buffer_load_dword v23, v21, s[60:63], 0 offen sc1")
    def poll_check():
        a("s_mov_b32 s%d, 0x20000", S_TMP + 1)
        a("v_mov_b32 v21, 0")
        a("s_waitcnt vmcnt(11)")
        a.label(name + "_poll")
        a("v_readfirstlane_b32 s%d, v23", S_TMP)
        a("s_sub_u32 s%d, s%d, 1", S_TMP + 1, S_TMP + 1)
        a("s_cmp_eq_u32 s%d, 0", S_TMP + 1)
        a("s_cbranch_scc1 %s_polled", name)
        a("s_cmp_ge_u32 s%d, 256", S_TMP)
        a("s_cbranch_scc1 %s_polled", name)
        a("s_sleep 8")
        a("buffer_load_dword v23, v21, s[60:63], 0 offen sc1")
        a("s_waitcnt vmcnt(0)")
        a("s_branch %s_poll", name)
        a.label(name + "_polled")
    def st_loads():
        a("s_lshl_b32 s%d, s%d, 6", S_TMP, S_W)
        a("v_add_u32 v21, s%d, v2", S_TMP)
        a("s_lshl_b32 s%d, s%d, 7", S_TMP + 1, S_TB)
        a("s_sub_u32 s%d, s%d, 16", S_TMP + 1, S_TMP + 1)
        a("v_add_u32 v3, s%d, v21", S_TMP + 1)
        a("v_max_i32 v3, 0, v3")
        a("v_min_u32 v3, 2047, v3")
        a("v_lshlrev_b32 v3, 3, v3")
        a("s_min_u32 s%d, s%d, 2", S_TMP, S_W)
        a("s_lshl_b32 s%d, s%d, 12", S_TMP, S_TMP)
        a("s_lshl_b32 s%d, s%d, 8", S_TMP + 1, S_TA)
        a("s_add_u32 s%d, s%d, s%d", S_TMP, S_TMP, S_TMP + 1)
        a("v_lshl_add_u32 v4, v2, 2, s%d", S_TMP)
        for k in range(16):
            a("s_mov_b32 s%d, %d", S_TMP, k * 16384)
            a("buffer_load_dwordx2 v[%d:%d], v3, s[20:23], s%d offen sc1", 24 + 2 * k, 25 + 2 * k, S_TMP)
            a("s_mov_b32 s%d, %d", S_TMP + 1, k * 3072 * 4)
            a("buffer_load_dword v%d, v4, s[56:59], s%d offen sc1", 56 + k, S_TMP + 1)
    def st_use():
        for st in (8, 4, 2, 1):
            for k in range(st):
                a("v_pk_add_f32 v[%d:%d], v[%d:%d], v[%d:%d]", 24 + 2 * k, 25 + 2 * k, 24 + 2 * k, 25 + 2 * k, 24 + 2 * (k + st), 25 + 2 * (k + st))
                a("v_add_f32 v%d, v%d, v%d", 56 + k, 56 + k, 56 + k + st)
        a("v_mul_f32 v24, 0x%x, v24", f32(1.0 / 1024))
        a("v_mul_f32 v25, 0x%x, v25", f32(1.0 / 1024))
        a("v_fma_f32 v25, -v24, v24, v25")
        a("v_max_f32 v25, 0, v25")
        round_bf16_scalar(a, 24)
        round_bf16_scalar(a, 25)
        a("v_add_f32 v25, 0x%x, v25", f32(1e-5))
        round_bf16_scalar(a, 25)
        a("v_sqrt_f32 v25, v25")
        a("s_nop 0")
        round_bf16_scalar(a, 25)
        a("v_rcp_f32 v26, v25")
        a("v_lshlrev_b32 v3, 3, v21")
        a("v_lshlrev_b32 v4, 2, v21")
        a("v_mul_f32 v27, -v24, v26")
        a("v_cmp_gt_u32 vcc, 144, v21")
        a("s_and_saveexec_b64 s[%d:%d], vcc", S_TMP, S_TMP + 1)
        a("v_add_u32 v3, %d, v3", LST)
        a("ds_write_b64 v3, v[26:27]")
        a("s_mov_b64 exec, s[%d:%d]", S_TMP, S_TMP + 1)
        a("v_cmp_gt_u32 vcc, 192, v21")
        a("s_and_saveexec_b64 s[%d:%d], vcc", S_TMP, S_TMP + 1)
        a("v_add_u32 v4, %d, v4", LCS)
        a("ds_write_b32 v4, v56")
        a("s_mov_b64 exec, s[%d:%d]", S_TMP, S_TMP + 1)
        a("s_waitcnt lgkmcnt(0)")
    def tail():
        a("s_waitcnt vmcnt(43)")
        a("s_barrier")
        a("s_waitcnt vmcnt(0)")
        st_use()
        a("s_barrier")
        srd(a, 20, 4, WS["EX"], ST_BYTES)
        a("s_lshl_b32 s%d, s%d, 4", S_TMP, S_TA)
        a("s_add_u32 s%d, s%d, s%d", S_TMP, S_TMP, S_TB)
        a("s_lshl_b32 s%d, s%d, 10", S_TMP, S_TMP)
        a("s_lshl_b32 s%d, s%d, 8", S_TMP + 1, S_W)
        a("s_add_u32 s%d, s%d, s%d", S_TMP, S_TMP, S_TMP + 1)
        a("v_lshlrev_b32 v3, 2, v2")
        a("v_mov_b32 v4, -1")
        a("buffer_store_dword v4, v3, s[20:23], s%d offen sc1", S_TMP)
        a("s_cmp_eq_u32 s%d, 0", S_DIST)
        a("s_cbranch_scc1 %s_nopf", name)
        srd(a, 20, 18, 0, 1024 * 1024 * 2)
        a("s_lshl_b32 s%d, s2, 13", S_TMP)
        a("s_lshl_b32 s%d, s%d, 11", S_TMP + 1, S_W)
        a("s_add_u32 s%d, s%d, s%d", S_TMP, S_TMP, S_TMP + 1)
        a("v_lshlrev_b32 v3, 4, v2")
        a("buffer_load_dwordx4 v[120:123], v3, s[20:23], s%d offen", S_TMP)
        a("buffer_load_dwordx4 v[120:123], v3, s[20:23], s%d offen offset:1024", S_TMP)
        a.label(name + "_nopf")
    def dep():
        a("s_cmp_eq_u32 s%d, 0", S_LAYER)
        a("s_cbranch_scc1 %s_dep_ok", name)
        if late_y("g4"): a("s_barrier")
        a("s_add_u32 s%d, s%d, %d", S_TMP, S_TB, C41)
        a("s_lshl_b32 s%d, s%d, 8", S_TMP, S_TMP)
        a("s_sub_u32 s%d, s%d, 256", S_TMP + 2, S_TMP)
        a("s_max_u32 s%d, s%d, %d", S_TMP + 2, S_TMP + 2, C41 * 256)
        wait_counters(a, name + "_dep", 16, 16)
    loader_loop(a, name, issue, 6, 5, N, S, stage, tail=tail, dep=None if prev_cut(name) else dep,
                events=[(S_H1, 5, slice_stats), (S_H2, 1, arrive), (S_H3, 1, poll_issue), (S_H4, 0, poll_check), (S_H5, 32, st_loads)])
    a("s_add_u32 s%d, s%d, 4", S_W, S_W)
    attn_setup()
    a("s_branch %s_attn", name)

    a.label(name + "_compute")
    na, nb = 6, 5
    ACC = 24
    acc = lambda i, j: ACC + 4 * (i * 4 + j) if j < 4 else ACC + 96 + 4 * (i - 4)
    nacc = 104
    FR = ACC + nacc
    fset = (na + nb) * 4
    fA = lambda st, i: FR + st * fset + 4 * i
    fB = lambda st, j: FR + st * fset + 4 * na + 4 * j
    VTOP = FR + 2 * fset
    SHD, SSH = S_TMP + 4, S_TMP + 5
    a("s_and_b32 s%d, s%d, 1", SHD, S_W)
    a("s_lshr_b32 s%d, s%d, 1", SSH, S_W)
    AR = 10
    def part_of(c, unit):
        if c == 0:
            a("s_mov_b32 s%d, 0", S_TMP + 3)
        else:
            a("s_xor_b32 s%d, s%d, %d", S_TMP + 3, SSH, 1 if c == 1 else 0)
            a("s_add_u32 s%d, s%d, 1", S_TMP + 3, S_TMP + 3)
            a("s_mul_i32 s%d, s%d, %d", S_TMP + 3, S_TMP + 3, unit)
    a("s_lshl_b32 s%d, s%d, 1", S_TMP + 2, SHD)
    for c in range(3):
        part_of(c, 8192)
        for i in range(2):
            read_addr_km(a, 64, S_TMP + 3, S_TMP + 2, i, AR + 2 * c + i)
    adA = [AR + i for i in range(6)]
    a("s_mul_i32 s%d, s%d, 64", S_TMP + 2, SSH)
    a("s_add_u32 s%d, s%d, 16", S_TMP + 2, S_TMP + 2)
    read_addrs_kc(a, XB, S_TMP + 2, AR + 6)
    read_addrs_kc(a, XB, None, AR + 8)
    adB, adH = [AR + 6, AR + 7], [AR + 8, AR + 9]
    for r in range(nacc): a("v_mov_b32 v%d, 0", ACC + r)
    for r in range(fset): a("v_mov_b32 v%d, 0", FR + fset + r)
    compute_loop_ctl_init(a, N, S, stage)
    if OPT.get("cprio"): a("s_setprio %d", OPT["cprio"])
    a("s_waitcnt lgkmcnt(0)")
    stamp(a, 1)
    ws_adjust(a)
    a("v_lshlrev_b32 v3, 3, v8")
    a("v_add_u32 v%d, %d, v3", EA + 1, LST)
    a("s_mul_i32 s%d, s%d, 512", S_TMP, SSH)
    a("s_add_u32 s%d, s%d, %d", S_TMP, S_TMP, LST + 128)
    a("v_add_u32 v%d, s%d, v3", EA, S_TMP)
    a("s_lshl_b32 s%d, s%d, 7", S_TMP, SHD)
    a("s_add_u32 s%d, s%d, %d", S_TMP, S_TMP, LCS)
    a("v_lshl_add_u32 v3, v5, 4, s%d", S_TMP)
    for c in range(3):
        part_of(c, 256)
        a("v_add_u32 v%d, s%d, v3", EA + 2 + c, S_TMP + 3)
    a("v_and_b32 v3, 1, v5")
    a("v_lshlrev_b32 v3, 1, v3")
    a("v_lshrrev_b32 v4, 1, v5")
    a("v_add_u32 v3, v3, v4")
    a("s_lshl_b32 s%d, s%d, 2", S_TMP, SHD)
    a("v_add_u32 v3, s%d, v3", S_TMP)
    a("v_lshrrev_b32 v4, 1, v8")
    a("v_xor_b32 v3, v3, v4")
    a("v_lshlrev_b32 v3, 4, v3")
    a("v_lshl_add_u32 v3, v8, 7, v3")
    a("s_mul_i32 s%d, s%d, %d", S_TMP + 2, SSH, 64 * 128)
    a("s_add_u32 s%d, s%d, %d", S_TMP + 2, S_TMP + 2, E + 16 * 128)
    for c in range(3):
        part_of(c, REG)
        a("s_add_u32 s%d, s%d, s%d", S_TMP, S_TMP + 2, S_TMP + 3)
        a("v_add_u32 v%d, s%d, v3", EA + 5 + c, S_TMP)
    a("s_add_u32 s%d, s%d, %d", S_TMP, S_TMP + 3, E)
    a("v_add_u32 v%d, s%d, v3", EA + 8, S_TMP)
    attn_setup()
    G1ORD = [(i, j if i % 2 == 0 else 3 - j) for i in range(4) for j in range(4)] + [(4, j) for j in range(5)] + [(5, 4 - j) for j in range(5)]
    if OPT.get("snake", 1) == 2:
        G1ORD = [(4, 4), (5, 4)] + [(5 - i if j % 2 == 0 else i, j) for j in range(4) for i in range(6)]
    if not OPT.get("snake", 1): G1ORD = [(i, j) for i in range(6) for j in range(4)] + [(4, 4), (5, 4)]
    def mf(st):
        L = G1ORD
        return ["v_mfma_f32_16x16x32_bf16 v[%d:%d], v[%d:%d], v[%d:%d], v[%d:%d]" %
                (acc(i, j), acc(i, j) + 3, fA(st, i), fA(st, i) + 3, fB(st, j), fB(st, j) + 3, acc(i, j), acc(i, j) + 3)
                for (i, j) in L]
    def rd(st, ks):
        L = []
        L += frag_reads("km", 64, adA, 0, ks, fA(st, 0))
        for j in range(4): L += frag_reads("kc", 0, adB, j, ks, fB(st, j))
        for i in range(1, 6): L += frag_reads("km", 64, adA, i, ks, fA(st, i))
        L += frag_reads("kc", 0, adH, 0, ks, fB(st, 4))
        return L
    SB = FR
    TV = SB + 36
    pr = lambda r: "v[%d:%d]" % (r, r + 1)
    def g1_final():
        for j in range(4): a("ds_read_b64 v[%d:%d], v%d offset:%d", SB + 2 * j, SB + 2 * j + 1, EA, j * 128)
        a("ds_read_b64 v[%d:%d], v%d", SB + 8, SB + 9, EA + 1)
        for c in range(3):
            for i in range(2):
                a("ds_read_b128 v[%d:%d], v%d offset:%d", SB + 12 + 4 * (2 * c + i), SB + 15 + 4 * (2 * c + i), EA + 2 + c, i * 64)
        M = dict(zip(G1ORD, mf(1)))
        units = []
        for c in range(3):
            for j in range(5 if c == 2 else 4):
                c0_, c1_ = acc(2 * c, j), acc(2 * c + 1, j)
                d = ED + 4 * (len(units) & 3)
                prs = [(c0_, SB + 12 + 8 * c), (c0_ + 2, SB + 14 + 8 * c), (c1_, SB + 16 + 8 * c), (c1_ + 2, SB + 18 + 8 * c)]
                w = ["v_pk_mul_f32 %s, %s, %s op_sel:[0,1] op_sel_hi:[1,1]" % (pr(TV + 2 * q), pr(cs), pr(SB + 2 * j)) for q, (x, cs) in enumerate(prs)]
                w += ["v_pk_fma_f32 %s, %s, %s, %s op_sel:[0,0,0] op_sel_hi:[1,0,1]" % (pr(x), pr(x), pr(SB + 2 * j), pr(TV + 2 * q)) for q, (x, cs) in enumerate(prs)]
                w += ["v_cvt_pk_bf16_f32 v%d, v%d, v%d" % (d + q, x, x + 1) for q, (x, cs) in enumerate(prs)]
                w += ["s_nop 1", "v_permlane16_swap_b32 v%d, v%d" % (d, d + 2), "v_permlane16_swap_b32 v%d, v%d" % (d + 1, d + 3)]
                w += ["ds_write_b128 v%d, v[%d:%d] offset:%d" % (EA + 5 + c, d, d + 3, j * 2048) if j < 4 else "ds_write_b128 v%d, v[%d:%d]" % (EA + 8, d, d + 3)]
                units.append(([M[(2 * c, j)], M[(2 * c + 1, j)]], w))
        overlap_final(a, units, after_lead=lambda: a("s_waitcnt lgkmcnt(0)"))
        a("s_waitcnt lgkmcnt(0)")
    cloop(a, name, mf, rd, adA + adB + adH, S, stage, final=g1_final)

    a.label(name + "_attn")
    a("s_barrier")
    stamp(a, 5)
    if OPT.get("stamp"): a("s_waitcnt lgkmcnt(0)")
    def blk(p): return 24 + 48 * p
    for p in range(2):
        b = blk(p)
        a("ds_read_b128 v[%d:%d], v226 offset:%d", b, b + 3, 2048 + 128 * p)
        a("ds_read_b128 v[%d:%d], v226 offset:%d", b + 4, b + 7, REG + 128 * p)
        a("ds_read_b128 v[%d:%d], v226 offset:%d", b + 8, b + 11, REG + 2048 + 128 * p)
    for p in range(2):
        b = blk(p)
        for dt in range(2):
            for bb in range(2):
                d = b + 12 + 4 * dt + 2 * bb
                a("ds_read_b64_tr_b16 v[%d:%d], v227 offset:%d", d, d + 1, 128 * p + 2048 * bb + 8 * dt)
    a("s_waitcnt lgkmcnt(8)")
    for p in range(2):
        b = blk(p)
        a("v_mfma_f32_16x16x32_bf16 v[%d:%d], v[%d:%d], v[%d:%d], 0", b + 20, b + 23, b + 4, b + 7, b, b + 3)
        a("v_mfma_f32_16x16x32_bf16 v[%d:%d], v[%d:%d], v[%d:%d], 0", b + 24, b + 27, b + 8, b + 11, b, b + 3)
    a("s_nop 7")
    both = lambda f: [f(blk(p)) for p in range(2)]
    for p in range(2):
        b = blk(p)
        for r in range(4):
            a("v_cndmask_b32 v%d, v%d, v%d, s[56:57]", b + 20 + r, b + 24 + r, b + 20 + r)
    for p in range(2):
        b = blk(p)
        a("v_cvt_pk_bf16_f32 v%d, v%d, v%d", b + 24, b + 20, b + 21)
        a("v_cvt_pk_bf16_f32 v%d, v%d, v%d", b + 25, b + 22, b + 23)
    for p in range(2):
        b = blk(p)
        for q in range(2):
            a("v_lshlrev_b32 v%d, 16, v%d", b + 20 + 2 * q, b + 24 + q)
            a("v_and_b32 v%d, 0xffff0000, v%d", b + 21 + 2 * q, b + 24 + q)
    for p in range(2):
        b = blk(p)
        for r in range(4): a("v_mul_f32 v%d, s58, v%d", b + 20 + r, b + 20 + r)
    for p in range(2):
        b = blk(p)
        a("v_cvt_pk_bf16_f32 v%d, v%d, v%d", b + 24, b + 20, b + 21)
        a("v_cvt_pk_bf16_f32 v%d, v%d, v%d", b + 25, b + 22, b + 23)
    for p in range(2):
        b = blk(p)
        for q in range(2):
            a("v_lshlrev_b32 v%d, 16, v%d", b + 20 + 2 * q, b + 24 + q)
            a("v_and_b32 v%d, 0xffff0000, v%d", b + 21 + 2 * q, b + 24 + q)
    for p in range(2):
        b = blk(p)
        for r in range(4): a("v_fma_f32 v%d, v%d, s59, v%d", b + 20 + r, b + 20 + r, AM + r)
    for p in range(2):
        b = blk(p)
        a("v_max3_f32 v%d, v%d, v%d, v%d", b + 24, b + 20, b + 21, b + 22)
    for p in range(2):
        b = blk(p)
        a("v_max_f32 v%d, v%d, v%d", b + 24, b + 24, b + 23)
    def xreduce(op, off):
        for sw in ("v_permlane16_swap_b32", "v_permlane32_swap_b32"):
            for p in range(2):
                b = blk(p)
                a("v_mov_b32 v%d, v%d", b + off + 1, b + off)
            a("s_nop 1")
            for p in range(2):
                b = blk(p)
                a("%s v%d, v%d", sw, b + off, b + off + 1)
            a("s_nop 0")
            for p in range(2):
                b = blk(p)
                a("%s v%d, v%d, v%d", op, b + off, b + off, b + off + 1)
    xreduce("v_max_f32", 24)
    for p in range(2):
        b = blk(p)
        for r in range(4): a("v_sub_f32 v%d, v%d, v%d", b + 20 + r, b + 20 + r, b + 24)
    for p in range(2):
        b = blk(p)
        for r in range(4): a("v_exp_f32 v%d, v%d", b + 20 + r, b + 20 + r)
    for p in range(2):
        b = blk(p)
        a("v_add_f32 v%d, v%d, v%d", b + 24, b + 20, b + 21)
        a("v_add_f32 v%d, v%d, v%d", b + 25, b + 22, b + 23)
    for p in range(2):
        b = blk(p)
        a("v_add_f32 v%d, v%d, v%d", b + 24, b + 24, b + 25)
    xreduce("v_add_f32", 24)
    for p in range(2):
        b = blk(p)
        a("v_rcp_f32 v%d, v%d", b + 24, b + 24)
    a("s_nop 0")
    for p in range(2):
        b = blk(p)
        for r in range(4): a("v_mul_f32 v%d, v%d, v%d", b + 20 + r, b + 20 + r, b + 24)
    for p in range(2):
        b = blk(p)
        a("v_cvt_pk_bf16_f32 v%d, v%d, v%d", b + 24, b + 20, b + 21)
        a("v_cvt_pk_bf16_f32 v%d, v%d, v%d", b + 25, b + 22, b + 23)
    for p in range(2):
        b = blk(p)
        a("v_cndmask_b32 v%d, 0, v%d, s[56:57]", b + 28, b + 24)
        a("v_cndmask_b32 v%d, 0, v%d, s[56:57]", b + 29, b + 25)
        a("v_cndmask_b32 v%d, v%d, 0, s[56:57]", b + 30, b + 24)
        a("v_cndmask_b32 v%d, v%d, 0, s[56:57]", b + 31, b + 25)
    a("s_waitcnt lgkmcnt(0)")
    a("s_nop 0")
    for p in range(2):
        b = blk(p)
        for dt in range(2):
            a("v_mfma_f32_16x16x32_bf16 v[%d:%d], v[%d:%d], v[%d:%d], 0", b + 32 + 4 * dt, b + 35 + 4 * dt,
              b + 12 + 4 * dt, b + 15 + 4 * dt, b + 28, b + 31)
    a("s_nop 7")
    for p in range(2):
        b = blk(p)
        for q in range(4):
            a("v_cvt_pk_bf16_f32 v%d, v%d, v%d", b + 40 + q, b + 32 + 2 * q, b + 33 + 2 * q)
        a("buffer_store_dwordx4 v[%d:%d], v225, s[16:19], 0 offen offset:%d%s", b + 40, b + 43, 2048 * p, STF())
    stamp(a, 6)
    stamp_flush(a, name, 7)
    if not next_cut(name):
        finish(a, name, lambda a: (a("s_add_u32 s%d, s%d, %d", S_TMP, S_TB, C12), a("s_lshl_b32 s%d, s%d, 8", S_TMP, S_TMP)))
    a.label(name + "_done")
    a("s_endpgm")
    assert VTOP == 216
    GEMM_VTOP[name] = ED + 16
    return LCS + 768

def build():
    body = Asm()
    for c in str(OPT.get("cuts", "")).split("_"):
        if c: CUTS.add(c)
    def wm(a, ka, da, kb, db):
        a("s_cmp_eq_u32 s%d, 0", S_LAYER)
        a("s_cselect_b32 s%d, %d, %d", S_WM, OPT.get(ka, da) - 1, OPT.get(kb, db) - 1)
    def slot(a, sreg, base, shift=0):
        a("s_lshr_b32 s%d, s%d, %d", S_TMP, sreg, shift)
        a("s_add_u32 s%d, s%d, %d", S_TMP, S_TMP, base)
        a("s_lshl_b32 s%d, s%d, 8", S_TMP, S_TMP)
        a("s_mov_b32 s%d, s%d", S_TMP + 2, S_TMP)
    lds = {}
    lds["g1"] = gen_g1(body, "g1", W=OPT.get("W1", 2))

    def g2_ptrs(a, ph):
        if ph == 0:
            a("s_load_dwordx2 s[4:5], s[0:1], %d", ARG["ws"])
            a("s_load_dwordx2 s[6:7], s[0:1], %d", ARG["x"])
            a("s_load_dwordx2 s[30:31], s[0:1], %d", ARG["wo"])
        elif ph == "L":
            srd(a, 8, 30, 0, 1024 * 1024 * 2)
            srd(a, 12, 4, WS["O"], ACT_BYTES)
        else:
            sel_ptr(a, 20, 1, WS["X2"])
            srd(a, 16, 4, WS["X1"], ACT_BYTES)
            srd(a, 56, 4, WS["H"], 2048 * LDH)
            srd(a, 60, 4, WS["EX"], ST_BYTES)
    def g2_decode(a):
        a("s_and_b32 s%d, s2, 3", S_TMP)
        a("s_lshl_b32 s%d, s%d, 2", S_TMP, S_TMP)
        a("s_bfe_u32 s%d, s2, 0x20003", S_TMP + 1)
        a("s_add_u32 s%d, s%d, s%d", S_TB, S_TMP, S_TMP + 1)
        a("s_bfe_u32 s%d, s2, 0x10002", S_TMP)
        a("s_lshl_b32 s%d, s%d, 3", S_TMP, S_TMP)
        a("s_lshr_b32 s%d, s2, 5", S_TMP + 2)
        a("s_add_u32 s%d, s%d, s%d", S_TA, S_TMP, S_TMP + 2)
        a("s_add_u32 s%d, s%d, s%d", S_J, S_TMP + 1, S_TMP + 2)
        a("s_mov_b32 s%d, 0", S_KB)
    lds["g2"] = gen_gemm(body, "g2", 256, Op("km", 64, 2048), Op("kc", 128, 2048), 1, 4, 16, 4, OPT.get("W2", 2), g2_ptrs, g2_decode,
                         "resid", "ln2", 2048, cnt=lambda a: slot(a, S_TA, C23, 1),
                         dep=lambda a: (slot(a, S_TB, C12), wait_counters(a, "g2_dep", 16, 16)), lbase=32768 if OPT.get("latey") else 0)

    def g3_ptrs(a, ph):
        if ph == 0:
            a("s_load_dwordx2 s[4:5], s[0:1], %d", ARG["ws"])
            a("s_load_dwordx2 s[30:31], s[0:1], %d", ARG["w1"])
            a("s_load_dwordx2 s[6:7], s[0:1], %d", ARG["b1"])
        elif ph == "L":
            srd(a, 8, 30, 0, 2048 * 3584 * 2)
            srd(a, 12, 4, WS["H"], 2048 * LDH)
        else:
            srd(a, 20, 6, 0, 3584 * 2)
            srd(a, 16, 4, WS["U"], 1024 * LDU)
    def g3_decode(a):
        a("s_and_b32 s%d, s2, 1", S_TMP)
        a("s_lshl_b32 s%d, s%d, 2", S_TMP, S_TMP)
        a("s_bfe_u32 s%d, s2, 0x20003", S_TMP + 1)
        a("s_add_u32 s%d, s%d, s%d", S_TB, S_TMP, S_TMP + 1)
        a("s_bfe_u32 s%d, s2, 0x20001", S_TMP)
        a("s_mul_i32 s%d, s%d, 7", S_TMP, S_TMP)
        a("s_lshr_b32 s%d, s2, 5", S_TMP + 2)
        a("s_add_u32 s%d, s%d, s%d", S_TA, S_TMP, S_TMP + 2)
        a("s_add_u32 s%d, s%d, s%d", S_J, S_TMP + 1, S_TMP + 2)
        a("s_mov_b32 s%d, 0", S_KB)
        wm(a, "W3a", 4, "W3b", 2)
    def g3_cnt(a):
        a("s_cmp_ge_u32 s%d, 14", S_TA)
        a("s_cselect_b32 s%d, %d, %d", S_TMP, C34 + 1, C34)
        a("s_lshl_b32 s%d, s%d, 1", S_TMP + 1, S_TB)
        a("s_add_u32 s%d, s%d, s%d", S_TMP, S_TMP, S_TMP + 1)
        a("s_lshl_b32 s%d, s%d, 8", S_TMP, S_TMP)
    def g3_spare(a):
        a("s_cmp_ge_u32 s2, 256")
        a("s_cbranch_scc1 g3_done")
        a("s_load_dwordx2 s[4:5], s[0:1], %d", ARG["ws"])
        a("s_load_dwordx2 s[6:7], s[0:1], %d", ARG["w1" if OPT.get("pf") == 2 else "w2"])
        a("s_sub_u32 s3, s2, 224")
        a("v_lshrrev_b32 v2, 6, v0")
        a("v_lshlrev_b32 v1, 4, v0")
        for r in range(4): a("v_mov_b32 v%d, -1", 8 + r)
        a("v_readfirstlane_b32 s%d, v2", S_W)
        a("s_lshl_b32 s13, s3, 17")
        if late_y("g2"):
            a("s_cmp_lt_u32 s%d, 4", S_W)
            a("s_cbranch_scc1 g3_spare_y")
            a("s_barrier")
            a.label("g3_spare_y")
        a("s_waitcnt lgkmcnt(0)")
        ws_adjust(a)
        srd(a, 8, 4, WS["PART"], PART_BYTES)
        for k in range(16):
            a("buffer_store_dwordx4 v[8:11], v1, s[8:11], s13 offen sc1")
            a("s_add_u32 s13, s13, 8192")
        if not next_cut("g3"):
            a("s_mov_b32 s%d, %d", S_TMP, CR * 256)
            count_in(a, "g3_spare_cin")
        a("s_cmp_lg_u32 s%d, 0", S_LAYER)
        a("s_cbranch_scc1 g3_spare_end")
        if OPT.get("pf", 0) == 2:
            srd(a, 8, 6, 0, 2048 * 3584 * 2)
            a("s_lshl_b32 s3, s3, 16")
            a("s_add_u32 s3, s3, %d", OPT.get("pfrow", 768) * 7168)
            a("s_mov_b32 s12, %d", -(-(2048 - OPT.get("pfrow", 768)) * 7168 // (2 * MB)))
            a.label("g3_spare_loop")
            for k in range(8):
                a("buffer_load_dwordx4 v[4:7], v1, s[8:11], s3 offen")
                a("s_add_u32 s3, s3, 8192")
            a("s_add_u32 s3, s3, %d", 2 * MB - 65536)
            a("s_waitcnt vmcnt(8)")
            a("s_sub_u32 s12, s12, 1")
            a("s_cmp_lg_u32 s12, 0")
            a("s_cbranch_scc1 g3_spare_loop")
            a("s_waitcnt vmcnt(0)")
        elif OPT.get("pf", 0):
            srd(a, 8, 6, 0, 3584 * 2048 * 2)
            a("s_cmp_ge_u32 s3, 16")
            a("s_cselect_b32 s12, %d, 0", (1792 - 1024) * 4096)
            a("s_lshl_b32 s3, s3, 18")
            a("s_add_u32 s3, s3, s12")
            a("s_mov_b32 s12, 4")
            a.label("g3_spare_loop")
            for k in range(8):
                a("buffer_load_dwordx4 v[4:7], v1, s[8:11], s3 offen")
                a("s_add_u32 s3, s3, 8192")
            a("s_waitcnt vmcnt(8)")
            a("s_sub_u32 s12, s12, 1")
            a("s_cmp_lg_u32 s12, 0")
            a("s_cbranch_scc1 g3_spare_loop")
            a("s_waitcnt vmcnt(0)")
        a.label("g3_spare_end")
        if next_cut("g3"): a("s_endpgm")
        else:
            if late_y("g3"):
                a("s_cmp_ge_u32 s%d, 4", S_W)
                a("s_cbranch_scc1 g4_in")
                a("s_barrier")
            go_next(a, "g3")
    lds["g3"] = gen_gemm(body, "g3", 224, Op("km", 128, 7168), Op("km", 128, LDH), 2, 2, 32, 4, "s", g3_ptrs, g3_decode,
                         "biasA", "gelu", LDU, spare=g3_spare, cnt=g3_cnt,
                         dep=lambda a: (slot(a, S_TB, C23), wait_counters(a, "g3_dep", 32, 32)))

    def g4_ptrs(a, ph):
        if ph == 0:
            a("s_load_dwordx2 s[4:5], s[0:1], %d", ARG["ws"])
            a("s_load_dwordx2 s[6:7], s[0:1], %d", ARG["out"])
            a("s_load_dwordx2 s[30:31], s[0:1], %d", ARG["w2"])
            a("s_load_dwordx2 s[34:35], s[0:1], %d", ARG["b2"])
        elif ph == "L":
            srd(a, 8, 4, WS["U"], 1024 * LDU)
            srd(a, 12, 30, 0, 3584 * 2048 * 2)
        else:
            srd(a, 20, 4, WS["X1"], ACT_BYTES)
            srd(a, 56, 34, 0, 4096)
            sel_ptr(a, 16, 0, LOFF + WS["X2"])
            srd(a, 60, 4, LOFF + WS["ST"], ST_BYTES)
            srd(a, 84, 4, WS["PART"], PART_BYTES)
    def g4_decode(a):
        a("s_bfe_u32 s%d, s2, 0x10001", S_TMP)
        a("s_lshl_b32 s%d, s%d, 2", S_TMP, S_TMP)
        a("s_bfe_u32 s%d, s2, 0x20003", S_TMP + 1)
        a("s_add_u32 s%d, s%d, s%d", S_TA, S_TMP, S_TMP + 1)
        a("s_bfe_u32 s%d, s2, 0x10002", S_TMP)
        a("s_lshl_b32 s%d, s%d, 3", S_TMP, S_TMP)
        a("s_lshr_b32 s%d, s2, 5", S_TMP + 2)
        a("s_add_u32 s%d, s%d, s%d", S_TB, S_TMP, S_TMP + 2)
        a("s_and_b32 s%d, s2, 1", S_ROLE)
        a("s_add_u32 s%d, s%d, s%d", S_J, S_TMP + 1, S_TMP + 2)
        a("s_lshl_b32 s%d, s%d, 4", S_PAIR, S_TA)
        a("s_add_u32 s%d, s%d, s%d", S_PAIR, S_PAIR, S_TB)
        a("s_mul_i32 s%d, s%d, 28", S_KB, S_ROLE)
        wm(a, "W4a", 4, "W4b", 2)
    def g4_dep(a):
        a("s_lshl_b32 s%d, s%d, 1", S_TMP, S_TA)
        a("s_add_u32 s%d, s%d, s%d", S_TMP, S_TMP, S_ROLE)
        a("s_add_u32 s%d, s%d, %d", S_TMP, S_TMP, C34)
        a("s_lshl_b32 s%d, s%d, 8", S_TMP, S_TMP)
        a("s_mov_b32 s%d, %d", S_TMP + 2, CR * 256)
        wait_counters(a, "g4_dep", 14, 32)
    lds["g4"] = gen_gemm(body, "g4", 256, Op("kc", 128, LDU), Op("km", 128, 4096), 2, 2, 28, 4, "s", g4_ptrs, g4_decode,
                         "resid+biasB", "plain", 2048, stats=True, split=True, cnt=lambda a: slot(a, S_TB, C41), dep=g4_dep, wop="B")

    seq = [(p, ab) for ab in "ab" for p in PHASES]
    launches = []
    for k, (p, ab) in enumerate(seq):
        if k == 0 or prev_cut(p): launches.append([p + ab + "_kernel", 0, 0])
        launches[-1][1] = max(launches[-1][1], GEMM_VTOP[p])
        launches[-1][2] = LFLAG + 256
    body.label("code_end")
    for kn, vt, l in launches:
        if OPT.get("agpr") and kn.startswith("g3"): kernel_desc(body, kn, 192, NSGPR, accum=192, agpr=64)
        else: kernel_desc(body, kn, vt, NSGPR)
    head = open("/code/%s.s.ref" % NAME).read().split("; Override launch geometry")[0]
    lines = ["; @launch kernel=%s grid=(256,1,1) block=(512,1,1) lds=%d" % (kn, l) for kn, vt, l in launches]
    return head + "\n".join(lines) + "\n" + '.amdgcn_target "amdgcn-amd-amdhsa--gfx950"\n' + body.text()

if __name__ == "__main__":
    out = sys.argv[1] if len(sys.argv) > 1 else "/code/%s.s" % NAME
    for o in sys.argv[2:]:
        k, _, v = o.partition("=")
        OPT[k] = (int(v) if v.isdigit() and k != "cuts" else v) if v else 1
    text = build()
    open(out, "w").write(text)
    import json
    json.dump(KID, open(out + ".kid", "w"))
    hazard.check(text)
```

```python
import sys, struct, math
from asmlib import *
import hazard

NAME = "interleave_layers__sliding_local_dilated__mixer_token_mlp__prompt"
MB = 1 << 20
WS = dict(ST=0, CS=1 * MB, EX=2 * MB, CNT=3 * MB, O=4 * MB, X1=8 * MB, H=12 * MB, U=17 * MB, X2=25 * MB, PART=29 * MB)
LDH = 2304
LDU = 8192
ST_BYTES = 16 * 2048 * 8
CS_BYTES = 16 * 3072 * 4
PART_BYTES = 256 * 16384
ARG = dict(x=0, wqkv=8, wo=16, bx=24, w1=32, b1=40, w2=48, b2=56, out=64, dbg=72, ws=80)
ACT_BYTES = 2048 * 1024 * 2

OPT = {}
for _o in sys.argv[2:]:
    _k, _, _v = _o.partition('=')
    if _k == 'LDH': LDH = int(_v)
    if _k == 'LDU': LDU = int(_v)

def STF():
    return {0: "", 1: " sc1", 2: " nt", 3: " sc0 sc1", 4: " sc0 sc1 nt"}[OPT.get("stf", 1)]

def ASC():
    return " sc1" if OPT.get("asc", 1) else ""

def f32(x):
    return struct.unpack("<I", struct.pack("<f", x))[0]

LOFF = 40 * MB
STAMP_OFF = 34 * MB
KID = {}
def stamp(a, k):
    if OPT.get("stamp"):
        a("%s s[%d:%d]", "s_memtime" if OPT["stamp"] == 2 else "s_memrealtime", 64 + 2 * k, 65 + 2 * k)

def stamp_flush(a, name, n, wsreg=4, waitvm=True, extra=False):
    if not OPT.get("stamp"): return
    kid = KID.setdefault(name, len(KID))
    if waitvm: a("s_waitcnt vmcnt(0)")
    a("%s s[%d:%d]", "s_memtime" if OPT["stamp"] == 2 else "s_memrealtime", 64 + 2 * n, 65 + 2 * n)
    a("s_waitcnt lgkmcnt(0)")
    a("s_add_u32 s84, s%d, 0x%x", wsreg, STAMP_OFF + kid * 512 * 1024)
    a("s_addc_u32 s85, s%d, 0", wsreg + 1)
    a("s_mov_b32 s86, 0x80000")
    a("s_mov_b32 s87, 0x20000")
    a("v_lshrrev_b32 v1, 6, v0")
    a("v_lshlrev_b32 v1, 6, v1")
    a("s_lshl_b32 s88, s2, 9")
    a("v_add_u32 v1, s88, v1")
    for k in range(n + 1 + extra):
        a("v_mov_b32 v2, s%d", 64 + 2 * k)
        a("buffer_store_dword v2, v1, s[84:87], 0 offen offset:%d", 4 * k)
        a("s_nop 1")

def srd(a, d, p, off, nbytes):
    if off:
        a("s_add_u32 s%d, s%d, 0x%x", d, p, off)
        a("s_addc_u32 s%d, s%d, 0", d + 1, p + 1)
    else:
        a("s_mov_b32 s%d, s%d", d, p)
        a("s_mov_b32 s%d, s%d", d + 1, p + 1)
    a("s_mov_b32 s%d, 0x%x", d + 2, nbytes)
    a("s_mov_b32 s%d, 0x20000", d + 3)

def round_bf16_scalar(a, v):
    a("v_cvt_pk_bf16_f32 v%d, v%d, v%d", v, v, v)
    a("v_lshlrev_b32 v%d, 16, v%d", v, v)

class Op:
    def __init__(self, kind, T, ld):
        self.kind, self.T, self.ld = kind, T, ld
        self.bytes = T * 128
        self.n = self.bytes // 1024
        self.npw = self.n // 4
        self.kadv = 128 if kind == "kc" else 64 * ld

S_TA, S_TB, S_KB, S_J, S_W = 24, 25, 26, 27, 28
S_T, S_SLOT, S_OFA, S_OFB = 32, 33, 34, 35
S_LA, S_LB, S_M0A, S_M0B = 36, 37, 38, 39
S_TMP = 40
S_CNT, S_DELTA, S_SI = 48, 49, 50
S_ST = 52
S_DP, S_DN = 51, 29
S_N, S_ROLE, S_PAIR, S_OWN, S_OTH, S_WM = 90, 91, 92, 93, 94, 95
S_LAYER, S_LOFF = 96, 97
NSGPR = 100
C12, C23, C34, C41, CR = 0, 16, 24, 40, 56
CUTS = set()

def loader_voffs(a, op, stile, vb, extra_cols=0):
    ld = op.ld
    a("s_mov_b32 s%d, %d", S_TMP, ld)
    if op.kind == "kc":
        a("v_lshrrev_b32 v3, 3, v2")
        a("v_mul_lo_u32 v3, v3, s%d", S_TMP)
        a("v_lshrrev_b32 v4, 4, v2")
        a("v_xor_b32 v4, v4, v2")
        a("v_and_b32 v4, 7, v4")
        a("v_lshl_add_u32 v3, v4, 4, v3")
        a("s_mul_i32 s%d, s%d, %d", S_TMP + 1, stile, op.T * ld)
        a("s_mul_i32 s%d, s%d, %d", S_TMP + 2, S_W, 8 * op.npw * ld)
        a("s_add_u32 s%d, s%d, s%d", S_TMP + 1, S_TMP + 1, S_TMP + 2)
        a("v_xor_b32 v4, 64, v3")
        for i in range(op.npw):
            a("s_add_u32 s%d, s%d, %d", S_TMP + 2, S_TMP + 1, i * 8 * ld)
            a("v_add_u32 v%d, s%d, v%d", vb + i, S_TMP + 2, 3 + (i & 1))
    elif op.T == 128:
        a("v_lshrrev_b32 v4, 4, v2")
        a("v_mul_lo_u32 v3, v4, s%d", S_TMP)
        a("v_lshlrev_b32 v4, 1, v4")
        a("v_xor_b32 v4, v4, v2")
        a("v_and_b32 v4, 15, v4")
        a("v_lshl_add_u32 v3, v4, 4, v3")
        a("s_mul_i32 s%d, s%d, 256", S_TMP + 1, stile)
        a("s_mul_i32 s%d, s%d, %d", S_TMP + 2, S_W, 16 * ld)
        a("s_add_u32 s%d, s%d, s%d", S_TMP + 1, S_TMP + 1, S_TMP + 2)
        a("v_xor_b32 v4, 128, v3")
        for i in range(4):
            a("s_add_u32 s%d, s%d, %d", S_TMP + 2, S_TMP + 1, i * 4 * ld)
            a("v_add_u32 v%d, s%d, v%d", vb + i, S_TMP + 2, 3 + (i >> 1))
    elif op.T == 64:
        a("v_lshrrev_b32 v3, 3, v2")
        a("v_mul_lo_u32 v3, v3, s%d", S_TMP)
        a("v_bfe_u32 v4, v2, 4, 1")
        a("v_lshlrev_b32 v4, 1, v4")
        a("v_xor_b32 v4, v4, v2")
        a("v_and_b32 v4, 7, v4")
        a("v_lshl_add_u32 v3, v4, 4, v3")
        a("s_mul_i32 s%d, s%d, 128", S_TMP + 1, stile)
        a("s_mul_i32 s%d, s%d, %d", S_TMP + 2, S_W, 16 * ld)
        a("s_add_u32 s%d, s%d, s%d", S_TMP + 1, S_TMP + 1, S_TMP + 2)
        a("v_xor_b32 v4, 64, v3")
        for i in range(2):
            a("s_add_u32 s%d, s%d, %d", S_TMP + 2, S_TMP + 1, i * 8 * ld + extra_cols * 2)
            a("v_add_u32 v%d, s%d, v%d", vb + i, S_TMP + 2, 3 + i)
    else:
        raise ValueError

def lane_parts(a):
    a("v_lshrrev_b32 v5, 4, v2")
    a("v_bfe_u32 v6, v2, 2, 2")
    a("v_and_b32 v7, 3, v2")
    a("v_and_b32 v8, 15, v2")

def read_addrs_kc(a, opbase, srow, vb):
    a("v_lshrrev_b32 v3, 1, v8")
    a("v_xor_b32 v3, v3, v5")
    a("v_lshlrev_b32 v3, 4, v3")
    a("v_lshl_add_u32 v3, v8, 7, v3")
    if srow is not None:
        a("s_lshl_b32 s%d, s%d, 7", S_TMP, srow)
        a("s_add_u32 s%d, s%d, %d", S_TMP, S_TMP, opbase)
        a("v_add_u32 v%d, s%d, v3", vb, S_TMP)
    else:
        a("v_add_u32 v%d, %d, v3", vb, opbase)
    a("v_xor_b32 v%d, 64, v%d", vb + 1, vb)

def read_addr_km(a, T, sbase, stile, i, vd, sxor=None):
    rowb = T * 2
    if T == 128:
        a("v_and_b32 v3, 1, v5")
        a("v_lshl_or_b32 v3, v3, 2, v6")
    else:
        a("v_and_b32 v3, 1, v5")
        a("v_lshlrev_b32 v3, 1, v3")
        a("v_lshrrev_b32 v4, 1, v6")
        a("v_or_b32 v3, v3, v4")
    a("s_add_u32 s%d, s%d, %d", S_TMP, stile, i)
    if sxor is not None: a("s_xor_b32 s%d, s%d, s%d", S_TMP, S_TMP, sxor)
    a("v_xor_b32 v3, s%d, v3", S_TMP)
    a("v_lshlrev_b32 v3, 5, v3")
    a("v_lshl_add_u32 v3, v7, 3, v3")
    a("v_lshl_add_u32 v4, v5, 3, v6")
    a("v_lshl_add_u32 v3, v4, %d, v3", rowb.bit_length() - 1)
    a("v_add_u32 v%d, s%d, v3", vd, sbase)

def frag_reads(kind, T, addr_regs, idx, ks, dst):
    if kind == "kc":
        return ["ds_read_b128 v[%d:%d], v%d offset:%d" % (dst, dst + 3, addr_regs[ks], idx * 2048)]
    rowb = T * 2
    return ["ds_read_b64_tr_b16 v[%d:%d], v%d offset:%d" % (dst + 2 * h, dst + 2 * h + 1, addr_regs[idx], h * 4 * rowb + ks * 32 * rowb)
            for h in range(2)]

def interleave(a, mfmas, reads, tail=()):
    reads = list(reads); tail = list(tail)
    if OPT.get("noreads"): reads = []
    if OPT.get("nomfma"): mfmas = ["s_nop 0"] * 2
    for m in mfmas:
        a(m)
        budget = 2
        while reads and budget > 0:
            cost = 2 if "b128" in reads[0] else 1
            if cost > budget: break
            a(reads.pop(0)); budget -= cost
        if not reads:
            while tail and budget > 0:
                a(tail.pop(0)); budget -= 1
    for r in reads: a(r)
    for t in tail: a(t)

def loader_loop(a, name, issue, nW, nA, N, S, stage_bytes, dep=None, events=(), tail=None):
    n = nW + nA
    early = OPT.get("early", 2)
    def adv():
        a("s_add_u32 s%d, s%d, %d", S_SLOT, S_SLOT, stage_bytes)
        a("s_add_u32 s%d, s%d, 1", S_T, S_T)
    full = early == 2 and not events
    for part in (("W", "A") if early else (None,)):
        if dep and OPT.get("prepoll", 0) and not OPT.get("latey"):
            dep(True if part == "W" else ((S if full else S - 1) * nW if early else None))
        elif part != "W" and dep: dep(None)
        a("s_mov_b32 s%d, 0", S_T)
        a("s_mov_b32 s%d, 0", S_SLOT)
        a.label("%s_ld_p%s" % (name, part))
        issue(part)
        adv()
        a("s_cmp_lt_u32 s%d, %d", S_T, S if (full and part == "W") else S - 1)
        a("s_cbranch_scc1 %s_ld_p%s", name, part)
    if full:
        special = {S + k: (S - 2 - k) * nA + k * n for k in range(S - 2)}
        a("s_waitcnt vmcnt(%d)", (S - 2) * nA)
        a("s_barrier")
        issue("A")
        a("s_mov_b32 s%d, 0", S_SLOT)
        a("s_add_u32 s%d, s%d, 1", S_T, S_T)
    else:
        special = {S - 1 + k: (S - 2 - k) * nA + k * n for k in range(S - 2)} if early else {}
        a("s_waitcnt vmcnt(%d)", special.pop(S - 1, (S - 2) * n))
        a("s_branch %s_ld_bar", name)
    a.label(name + "_ld_loop")
    for T in special:
        a("s_cmp_eq_u32 s%d, %d", S_T, T)
        a("s_cbranch_scc1 %s_ld_s%d", name, T)
    for k, (at, extra, fn) in enumerate(events):
        if extra:
            a("s_sub_u32 s%d, s%d, s%d", S_TMP, S_T, at)
            a("s_sub_u32 s%d, s%d, 1", S_TMP, S_TMP)
            a("s_cmp_lt_u32 s%d, %d", S_TMP, S - 1)
            a("s_cbranch_scc1 %s_ld_w%d", name, k)
    a("s_waitcnt vmcnt(%d)", (S - 2) * n)
    a.label(name + "_ld_bar")
    a("s_barrier")
    issue(None)
    for k, (at, extra, fn) in enumerate(events):
        a("s_cmp_eq_u32 s%d, s%d", S_T, at)
        a("s_cbranch_scc1 %s_ld_h%d", name, k)
        a.label(name + "_ld_c%d" % k)
    adv()
    a("s_cmp_eq_u32 s%d, %d", S_SLOT, S * stage_bytes)
    a("s_cselect_b32 s%d, 0, s%d", S_SLOT, S_SLOT)
    a("s_cmp_lt_u32 s%d, %d", S_T, N)
    a("s_cbranch_scc1 %s_ld_loop", name)
    if tail: tail()
    else:
        for t in range(N - S + 1, N):
            a("s_waitcnt vmcnt(%d)", (N - 1 - t) * n)
            a("s_barrier")
    if events or special:
        a("s_branch %s_ld_end", name)
        for T, c in special.items():
            a.label(name + "_ld_s%d" % T)
            a("s_waitcnt vmcnt(%d)", c)
            a("s_branch %s_ld_bar", name)
        for k, (at, extra, fn) in enumerate(events):
            if extra:
                a.label(name + "_ld_w%d" % k)
                a("s_waitcnt vmcnt(%d)", (S - 2) * n + extra)
                a("s_branch %s_ld_bar", name)
            a.label(name + "_ld_h%d" % k)
            fn()
            a("s_branch %s_ld_c%d", name, k)
        a.label(name + "_ld_end")

def kidx_offsets(a, W, advA, advB, wrap=0):
    wm = ("s%d" % S_WM) if W == "s" else str(W - 1)
    a("s_add_u32 s%d, s%d, s%d", S_TMP, S_T, S_J)
    a("s_and_b32 s%d, s%d, %s", S_TMP, S_TMP, wm)
    a("s_andn2_b32 s%d, s%d, %s", S_TMP + 1, S_T, wm)
    a("s_or_b32 s%d, s%d, s%d", S_TMP, S_TMP, S_TMP + 1)
    a("s_add_u32 s%d, s%d, s%d", S_TMP, S_TMP, S_KB)
    if wrap: a("s_and_b32 s%d, s%d, %d", S_TMP, S_TMP, wrap - 1)
    a("s_mul_i32 s%d, s%d, %d", S_OFA, S_TMP, advA)
    a("s_mul_i32 s%d, s%d, %d", S_OFB, S_TMP, advB)

def compute_loop_ctl_init(a, N, S, stage_bytes):
    a("s_mov_b32 s%d, %s", S_CNT, N)
    a("s_mov_b32 s%d, 0", S_SI)
    a("s_mov_b32 s%d, %d", S_DP, stage_bytes)
    a("s_mov_b32 s%d, 0x%x", S_DN, (-(S - 1) * stage_bytes) & 0xffffffff)

def addr_update(addr_regs, S, stage_bytes):
    L = ["s_add_u32 s%d, s%d, 1" % (S_SI, S_SI),
         "s_cmp_eq_u32 s%d, %d" % (S_SI, S),
         "s_cselect_b32 s%d, s%d, s%d" % (S_DELTA, S_DN, S_DP),
         "s_cselect_b32 s%d, 0, s%d" % (S_SI, S_SI)]
    L += ["v_add_u32 v%d, s%d, v%d" % (r, S_DELTA, r) for r in addr_regs]
    L += ["s_sub_u32 s%d, s%d, 1" % (S_CNT, S_CNT), "s_cmp_lg_u32 s%d, 0" % S_CNT]
    return L

def gelu_pairs(a, regs, tmp, cst):
    n = len(regs)
    pr = lambda r: "v[%d:%d]" % (r, r + 1)
    for k, r in enumerate(regs): a("v_pk_mul_f32 %s, %s, %s", pr(tmp + 2 * k), pr(r), pr(r))
    for k, r in enumerate(regs): a("v_pk_fma_f32 %s, %s, %s, %s", pr(tmp + 2 * k), pr(tmp + 2 * k), pr(cst), pr(cst + 2))
    for k, r in enumerate(regs): a("v_pk_mul_f32 %s, %s, %s", pr(tmp + 2 * k), pr(tmp + 2 * k), pr(r))
    for k in range(2 * n): a("v_exp_f32 v%d, v%d", tmp + k, tmp + k)
    for k, r in enumerate(regs): a("v_pk_add_f32 %s, %s, %s", pr(tmp + 2 * k), pr(tmp + 2 * k), pr(cst + 4))
    for k in range(2 * n): a("v_rcp_f32 v%d, v%d", tmp + k, tmp + k)
    for k, r in enumerate(regs): a("v_pk_mul_f32 %s, %s, %s", pr(r), pr(r), pr(tmp + 2 * k))

def cloop(a, name, mf, rd, addrs, S, stage, first=None, mid=None, final=None):
    stamp(a, 2)
    if OPT.get("stamp") or first:
        a("s_barrier")
        stamp(a, 3)
        if first: first()
        if OPT.get("stamp"): a("s_waitcnt lgkmcnt(0)")
        a("s_branch %s_cloop2", name)
    if mid:
        a.label(name + "_mid")
        a("s_waitcnt vmcnt(0)")
        a("s_nop 7")
        mid[1]()
        a("s_nop 1")
        a("s_branch %s_cloop2", name)
    a.raw(".p2align 3")
    a.label(name + "_cloop")
    a("s_barrier")
    if mid:
        a("s_cmp_eq_u32 s%d, %d", S_CNT, mid[0])
        a("s_cbranch_scc1 %s_mid", name)
    a.label(name + "_cloop2")
    interleave(a, mf(1), rd(0, 0))
    a("s_waitcnt lgkmcnt(0)")
    interleave(a, mf(0), rd(1, 1), addr_update(addrs, S, stage))
    a("s_waitcnt lgkmcnt(0)")
    a("s_cbranch_scc1 %s_cloop", name)
    stamp(a, 4)
    if final: final()
    else:
        for m in mf(1): a(m)

def overlap_final(a, units, lead=3, after_lead=None):
    for u in range(min(lead, len(units))):
        for m in units[u][0]: a(m)
    if after_lead: after_lead()
    for u, (_, work) in enumerate(units):
        ms = list(units[u + lead][0]) if u + lead < len(units) else []
        step = max(1, len(work) // max(1, len(ms)))
        if u + 1 == len(units) or u + lead >= len(units): pass
        for k, w in enumerate(work):
            if ms and k % step == 0: a(ms.pop(0))
            a(w)
        for m in ms: a(m)

GEMM_VTOP = {}
CNT_BYTES = 64 * 256
def count_in(a, label, area=0):
    srd(a, 84, 4, WS["CNT"] + area, CNT_BYTES)
    a("v_mov_b32 v3, s%d", S_TMP)
    a("v_mov_b32 v4, 1")
    a("s_waitcnt vmcnt(0)")
    a("s_barrier")
    a("s_cmp_lg_u32 s%d, 0", S_W)
    a("s_cbranch_scc1 %s", label)
    a("s_mov_b64 exec, 1")
    a("buffer_atomic_add v4, v3, s[84:87], 0 offen sc1")
    a("s_mov_b64 exec, -1")
    a.label(label)

LFLAG = 131072
def wait_counters(a, label, need0, need1, pre=None):
    pid = PHASES.index(label[:2]) + 1
    if pre is None or pre is True:
        a("s_cmp_lg_u32 s%d, 0", S_W)
        a("s_cbranch_scc1 %s_set", label)
        srd(a, 84, 4, WS["CNT"], CNT_BYTES)
        a("v_cmp_eq_u32 vcc, 1, v2")
        a("v_mov_b32 v21, s%d", S_TMP)
        a("v_mov_b32 v23, s%d", S_TMP + 2)
        a("v_cndmask_b32 v21, v21, v23, vcc")
        a("v_mov_b32 v22, %d", need0)
        a("v_mov_b32 v23, %d", need1)
        a("v_cndmask_b32 v22, v22, v23, vcc")
        a("buffer_load_dword v23, v21, s[84:87], 0 offen sc1")
        a.label(label + "_set")
        if pre is True: return
    a("s_lshl_b32 s%d, s%d, 2", S_TMP + 3, S_LAYER)
    a("s_add_u32 s%d, s%d, %d", S_TMP + 3, S_TMP + 3, pid)
    a("s_mov_b32 s%d, 0x80000", S_TMP + 1)
    a("v_mov_b32 v24, %d", LFLAG)
    a("s_cmp_lg_u32 s%d, 0", S_W)
    a("s_cbranch_scc1 %s_lds", label)
    a("s_mov_b32 s%d, 0x8000", S_TMP + 1)
    a("s_waitcnt vmcnt(%d)", pre or 0)
    a.label(label)
    a("v_cmp_lt_u32 vcc, v23, v22")
    a("s_sub_u32 s%d, s%d, 1", S_TMP + 1, S_TMP + 1)
    a("s_cmp_eq_u32 s%d, 0", S_TMP + 1)
    a("s_cbranch_scc1 %s_seen", label)
    a("s_cbranch_vccz %s_seen", label)
    a("s_sleep %d", OPT.get("dslp", 2))
    a("buffer_load_dword v23, v21, s[84:87], 0 offen sc1")
    a("s_waitcnt vmcnt(0)")
    a("s_branch %s", label)
    a.label(label + "_seen")
    a("v_mov_b32 v23, s%d", S_TMP + 3)
    a("ds_write_b32 v24, v23")
    a("s_branch %s_ok", label)
    a.label(label + "_lds")
    a("ds_read_b32 v23, v24")
    a("s_sub_u32 s%d, s%d, 1", S_TMP + 1, S_TMP + 1)
    a("s_waitcnt lgkmcnt(0)")
    a("v_readfirstlane_b32 s%d, v23", S_TMP)
    a("s_cmp_eq_u32 s%d, 0", S_TMP + 1)
    a("s_cbranch_scc1 %s_ok", label)
    a("s_cmp_eq_u32 s%d, s%d", S_TMP, S_TMP + 3)
    a("s_cbranch_scc1 %s_ok", label)
    a("s_sleep 1")
    a("s_branch %s_lds", label)
    a.label(label + "_ok")

PHASES = ["g1", "g2", "g3", "g4"]
def prev_cut(name):
    k = PHASES.index(name)
    return "%d%d" % ((k - 1) % 4 + 1, k + 1) in CUTS
def next_cut(name):
    k = PHASES.index(name)
    return "%d%d" % (k + 1, (k + 1) % 4 + 1) in CUTS

def entry(a, name, ntiles, spare=False):
    for layer, ab in enumerate("ab"):
        if prev_cut(name) or (name == "g1" and layer == 0):
            kernel_header(a, "%s%s_kernel" % (name, ab))
            a("s_mov_b32 s%d, %d", S_LAYER, layer)
            a("s_mov_b32 s%d, 0x%x", S_LOFF, layer * LOFF)
            a("v_mov_b32 v1, %d", LFLAG)
            a("v_mov_b32 v2, 0")
            a("ds_write_b32 v1, v2")
            a("s_branch %s_in", name)
            KERNELS.append("%s%s_kernel" % (name, ab))
    a.raw(".p2align 6")
    a.label(name + "_in")
    a("s_cmp_ge_u32 s2, %d", ntiles)
    a("s_cbranch_scc1 %s_%s", name, "spare" if spare else "done")
    stamp(a, 0)
KERNELS = []

def ws_adjust(a):
    a("s_add_u32 s4, s4, s%d", S_LOFF)
    a("s_addc_u32 s5, s5, 0")

def sel_ptr(a, d, which_layer, off):
    a("s_add_u32 s%d, s4, 0x%x", d, off)
    a("s_addc_u32 s%d, s5, 0", d + 1)
    a("s_cmp_eq_u32 s%d, %d", S_LAYER, which_layer)
    a("s_cselect_b32 s%d, s%d, s6", d, d)
    a("s_cselect_b32 s%d, s%d, s7", d + 1, d + 1)
    a("s_mov_b32 s%d, 0x%x", d + 2, ACT_BYTES)
    a("s_mov_b32 s%d, 0x20000", d + 3)

def late_y(name):
    return OPT.get("latey", 0) and name != "g1" and not next_cut(name)

def go_next(a, name):
    if name == "g4":
        a("s_mov_b32 s%d, 1", S_LAYER)
        a("s_mov_b32 s%d, 0x%x", S_LOFF, LOFF)
    a("s_branch %s_in", PHASES[(PHASES.index(name) + 1) % 4])

def finish(a, name, cnt, loader=False):
    if next_cut(name):
        a("s_endpgm")
        return
    if name == "g4":
        a("s_cmp_lg_u32 s%d, 0", S_LAYER)
        a("s_cbranch_scc1 %s_done", name)
    if loader:
        if not late_y(name): a("s_barrier")
    else:
        cnt(a)
        count_in(a, name + "_cin", LOFF if name == "g4" else 0)
    go_next(a, name)

def gen_gemm(a, name, ntiles, A, B, WA, WB, N, S, W, ptrs, decode, init, epi, ldc, cnt, dep, stats=False, spare=None, split=None, wop="A", lbase=0):
    na, nb = A.T // (16 * WA), B.T // (16 * WB)
    stage = A.bytes + B.bytes
    baseA, baseB = lbase, lbase + A.bytes
    entry(a, name, ntiles, spare is not None)
    ptrs(a, 0)
    a("v_lshrrev_b32 v1, 6, v0")
    a("v_and_b32 v2, 63, v0")
    decode(a)
    a("v_readfirstlane_b32 s%d, v1", S_W)
    a("s_nop 0")
    a("s_cmp_lt_u32 s%d, 4", S_W)
    a("s_cbranch_scc1 %s_compute", name)

    if OPT.get("ldprio"): a("s_setprio %d", OPT["ldprio"])
    a("s_sub_u32 s%d, s%d, 4", S_W, S_W)
    loader_voffs(a, A, S_TA, 10)
    loader_voffs(a, B, S_TB, 10 + A.npw)
    a("s_mul_i32 s%d, s%d, %d", S_LA, S_W, A.npw * 1024)
    if baseA: a("s_add_u32 s%d, s%d, %d", S_LA, S_LA, baseA)
    a("s_mul_i32 s%d, s%d, %d", S_LB, S_W, B.npw * 1024)
    a("s_add_u32 s%d, s%d, %d", S_LB, S_LB, baseB)
    a("s_waitcnt lgkmcnt(0)")
    ws_adjust(a)
    ptrs(a, "L")
    def issue(part):
        kidx_offsets(a, W, A.kadv, B.kadv)
        a("s_add_u32 s%d, s%d, s%d", S_M0A, S_SLOT, S_LA)
        a("s_add_u32 s%d, s%d, s%d", S_M0B, S_SLOT, S_LB)
        for (op, vb, sm, so, sr) in ((A, 10, S_M0A, S_OFA, 8), (B, 10 + A.npw, S_M0B, S_OFB, 12)):
            if part and (part == "W") != (op is Wop): continue
            for i in range(op.npw):
                a("s_add_u32 m0, s%d, %d", sm, i * 1024)
                a("s_nop 0")
                a("buffer_load_dwordx4 v%d, s[%d:%d], s%d offen%s lds", vb + i, sr, sr + 3, so, "" if op is Wop else ASC())
    Wop = B if wop == "B" else A
    def gdep(pre):
        if late_y(PHASES[PHASES.index(name) - 1]): a("s_barrier")
        dep(a, pre)
    loader_loop(a, name, issue, Wop.npw, A.npw + B.npw - Wop.npw, N, S, stage, dep=None if prev_cut(name) else gdep)
    if not next_cut(name): finish(a, name, cnt, loader=True)
    a.label(name + "_done")
    a("s_endpgm")

    a.label(name + "_compute")
    ACC = 28
    BV = 22
    nacc = na * nb * 4
    FR = ACC + nacc
    fset = (na + nb) * 4
    fA = lambda st, i: FR + st * fset + 4 * i
    fB = lambda st, j: FR + st * fset + 4 * na + 4 * j
    acc = lambda i, j: ACC + 4 * (i * nb + j)
    VTOP = FR + 2 * fset
    if epi == "ln2":
        EXV = VTOP
        VTOP += 16
    nk = nb // 2 if split else nb
    if split:
        SND, RCV = VTOP, VTOP + 16
        VTOP += 32
    lane_parts(a)
    SWA, SWB = S_TMP + 4, S_TMP + 5
    a("s_and_b32 s%d, s%d, %d", SWA, S_W, WA - 1)
    a("s_lshr_b32 s%d, s%d, %d", SWB, S_W, WA.bit_length() - 1)
    a("s_mul_i32 s%d, s%d, %d", S_TMP, S_TB, B.T)
    a("s_mul_i32 s%d, s%d, %d", S_TMP + 1, SWB, nb * 16)
    a("s_add_u32 s%d, s%d, s%d", S_TMP, S_TMP, S_TMP + 1)
    if split:
        a("s_lshl_b32 s%d, s%d, 5", S_TMP + 1, S_ROLE)
        a("s_add_u32 s%d, s%d, s%d", S_TMP, S_TMP, S_TMP + 1)
    a("v_add_u32 v20, s%d, v8", S_TMP)
    a("s_mov_b32 s%d, %d", S_TMP + 1, ldc)
    a("v_mul_lo_u32 v9, v20, s%d", S_TMP + 1)
    a("s_mul_i32 s%d, s%d, %d", S_TMP, S_TA, A.T * 2)
    a("s_mul_i32 s%d, s%d, %d", S_TMP + 1, SWA, na * 32)
    a("s_add_u32 s%d, s%d, s%d", S_TMP + 6, S_TMP, S_TMP + 1)
    a("v_and_b32 v3, 1, v5")
    a("v_lshlrev_b32 v3, 5, v3")
    a("v_lshrrev_b32 v4, 1, v5")
    a("v_lshl_add_u32 v3, v4, 4, v3")
    a("v_add3_u32 v9, v9, v3, s%d", S_TMP + 6)
    for j in range(nb):
        a("s_mov_b32 s%d, %d", S_ST + j, j * 16 * ldc)
    a("s_waitcnt lgkmcnt(0)")
    stamp(a, 1)
    ws_adjust(a)
    ptrs(a, "C")
    resid = init in ("resid", "resid+biasB")
    if resid:
        RES = VTOP
        VTOP += 24
    def resid_loads():
        for j in range(nk):
            for p in range(na // 2):
                d = RES + 4 * (j * (na // 2) + p)
                a("buffer_load_dwordx4 v[%d:%d], v9, s[20:23], s%d offen offset:%d%s", d, d + 3, S_ST + j, p * 64, ASC())
        if init == "resid+biasB":
            a("v_lshlrev_b32 v3, 1, v20")
            for j in range(nk):
                a("buffer_load_ushort v%d, v3, s[56:59], 0 offen offset:%d", BV + j, j * 32)
    def resid_add():
        T = RES + 16
        for q in range(nk * na // 2):
            a("v_permlane16_swap_b32 v%d, v%d", RES + 4 * q, RES + 4 * q + 2)
            a("v_permlane16_swap_b32 v%d, v%d", RES + 4 * q + 1, RES + 4 * q + 3)
        if init == "resid+biasB":
            for j in range(nk): a("v_lshlrev_b32 v%d, 16, v%d", BV + j, BV + j)
        for j in range(nk):
            for p in range(na // 2):
                d = RES + 4 * (j * (na // 2) + p)
                for q in range(4):
                    a("v_lshlrev_b32 v%d, 16, v%d", T + 2 * q, d + q)
                    a("v_and_b32 v%d, 0xffff0000, v%d", T + 2 * q + 1, d + q)
                if init == "resid+biasB":
                    for q in range(8): a("v_add_f32 v%d, v%d, v%d", T + q, T + q, BV + j)
                for q in range(4):
                    c = acc(2 * p + (q >> 1), j) + 2 * (q & 1)
                    a("v_pk_add_f32 v[%d:%d], v[%d:%d], v[%d:%d]", c, c + 1, c, c + 1, T + 2 * q, T + 2 * q + 1)
    if init == "biasA":
        a("v_lshl_add_u32 v3, v5, 3, s%d", S_TMP + 6)
        for i in range(na):
            a("buffer_load_dwordx2 v[%d:%d], v3, s[20:23], 0 offen offset:%d", FR + 2 * i, FR + 2 * i + 1, i * 32)
    AR = 10
    def mk_addrs(op, base, swave, n, vb, sxor=None):
        if op.kind == "kc":
            a("s_mul_i32 s%d, s%d, %d", S_TMP + 2, swave, n * 16)
            read_addrs_kc(a, base, S_TMP + 2, vb)
            return [vb, vb + 1]
        a("s_mul_i32 s%d, s%d, %d", S_TMP + 2, swave, n)
        a("s_mov_b32 s%d, %d", S_TMP + 3, base)
        for i in range(n):
            read_addr_km(a, op.T, S_TMP + 3, S_TMP + 2, i, vb + i, sxor)
        return [vb + i for i in range(n)]
    adA = mk_addrs(A, baseA, SWA, na, AR)
    if split: a("s_lshl_b32 s%d, s%d, 1", S_N, S_ROLE)
    adB = mk_addrs(B, baseB, SWB, nb, AR + len(adA), S_N if split else None)
    assert AR + len(adA) + len(adB) <= 20
    for r in range(fset): a("v_mov_b32 v%d, 0", FR + fset + r)
    compute_loop_ctl_init(a, N, S, stage)
    if split:
        a("s_lshl_b32 s%d, s%d, 12", S_TMP, S_W)
        a("v_lshl_add_u32 v21, v2, 4, s%d", S_TMP)
        a("s_lshl_b32 s%d, s%d, 1", S_OWN, S_PAIR)
        a("s_add_u32 s%d, s%d, s%d", S_OWN, S_OWN, S_ROLE)
        a("s_lshl_b32 s%d, s%d, 14", S_OWN, S_OWN)
        a("s_xor_b32 s%d, s%d, 0x4000", S_OTH, S_OWN)
    if init != "biasA":
        for r in range(nacc): a("v_mov_b32 v%d, 0", ACC + r)
    else:
        a("s_waitcnt vmcnt(0)")
        for i in range(na):
            for j in range(nb):
                c = acc(i, j)
                for q in range(2):
                    a("v_lshlrev_b32 v%d, 16, v%d", c + 2 * q, FR + 2 * i + q)
                    a("v_and_b32 v%d, 0xffff0000, v%d", c + 2 * q + 1, FR + 2 * i + q)
    if OPT.get("cprio"): a("s_setprio %d", OPT["cprio"])
    ORD = [(i, j if i % 2 == 0 else nb - 1 - j) for i in range(na) for j in range(nb)]
    if OPT.get("snake", 1) == 2: ORD = [(i if j % 2 == 0 else na - 1 - i, j) for j in range(nb) for i in range(na)]
    if OPT.get("snake", 1) == 0: ORD = [(i, j) for i in range(na) for j in range(nb)]
    def mf(st):
        order = ORD
        return (["v_mfma_f32_16x16x32_bf16 v[%d:%d], v[%d:%d], v[%d:%d], v[%d:%d]" %
                (acc(i, j), acc(i, j) + 3, fA(st, i), fA(st, i) + 3, fB(st, j), fB(st, j) + 3, acc(i, j), acc(i, j) + 3)
                for (i, j) in order])
    def rd(st, ks):
        L = []
        L += frag_reads(A.kind, A.T, adA, 0, ks, fA(st, 0))
        for j in range(nb): L += frag_reads(B.kind, B.T, adB, j, ks, fB(st, j))
        for i in range(1, na): L += frag_reads(A.kind, A.T, adA, i, ks, fA(st, i))
        return L
    def rcv_loads():
        for u in range(4):
            a("buffer_load_dwordx4 v[%d:%d], v21, s[84:87], s%d offen offset:%d sc1", RCV + 4 * u, RCV + 4 * u + 3, S_OTH, u * 1024)
    TMPV = FR
    M = dict(zip(ORD, mf(1)))
    def out_unit(k, j, p):
        b = Asm()
        c0_, c1_ = acc(2 * p, j), acc(2 * p + 1, j)
        if epi == "gelu":
            gelu_pairs(b, [c0_, c0_ + 2, c1_, c1_ + 2], TMPV + 16, GC)
        d = TMPV + 4 * (k & 3)
        b("v_cvt_pk_bf16_f32 v%d, v%d, v%d", d, c0_, c0_ + 1)
        b("v_cvt_pk_bf16_f32 v%d, v%d, v%d", d + 1, c0_ + 2, c0_ + 3)
        b("v_cvt_pk_bf16_f32 v%d, v%d, v%d", d + 2, c1_, c1_ + 1)
        b("v_cvt_pk_bf16_f32 v%d, v%d, v%d", d + 3, c1_ + 2, c1_ + 3)
        if epi == "ln2":
            for q, x in enumerate((c0_, c0_ + 2, c1_, c1_ + 2)):
                b("v_lshlrev_b32 v%d, 16, v%d", x, d + q)
                b("v_and_b32 v%d, 0xffff0000, v%d", x + 1, d + q)
        else:
            b("s_nop 1")
        b("v_permlane16_swap_b32 v%d, v%d", d, d + 2)
        b("v_permlane16_swap_b32 v%d, v%d", d + 1, d + 3)
        b("buffer_store_dwordx4 v[%d:%d], v9, s[16:19], s%d offen offset:%d%s", d, d + 3, S_ST + j, p * 64, STF())
        return [l.strip() for l in b.lines]
    JP = [(j, p) for j in range(nk) for p in range(na // 2)]
    tiles = lambda j0: [(i, j) for j in range(j0, j0 + nk) for i in range(na)]
    def final_gelu():
        overlap_final(a, [([M[(2 * p, j)], M[(2 * p + 1, j)]], out_unit(k, j, p)) for k, (j, p) in enumerate(JP)], lead=4,
                      after_lead=lambda: a("s_nop 1"))
    def final_split():
        for t in tiles(nk): a(M[t])
        keep = [M[t] for t in tiles(0)]
        for u, (i, j) in enumerate(tiles(nk)):
            c = acc(i, j)
            a(keep[u])
            if u == 7: a("s_nop 1")
            a("v_cvt_pk_bf16_f32 v%d, v%d, v%d", SND + 2 * u, c, c + 1)
            a("v_cvt_pk_bf16_f32 v%d, v%d, v%d", SND + 2 * u + 1, c + 2, c + 3)
            if u & 1:
                a("buffer_store_dwordx4 v[%d:%d], v21, s[84:87], s%d offen offset:%d sc1", SND + 2 * u - 2, SND + 2 * u + 1, S_OWN, (u >> 1) * 1024)
    if epi == "gelu":
        GC = VTOP
        VTOP += 6
        c1 = -2.0 * math.log2(math.e) * math.sqrt(2.0 / math.pi) * 0.044715
        c0 = -2.0 * math.log2(math.e) * math.sqrt(2.0 / math.pi)
        for k, v in enumerate((c1, c1, c0, c0, 1.0, 1.0)):
            a("v_mov_b32 v%d, 0x%x", GC + k, f32(v))
    cloop(a, name, mf, rd, adA + adB, S, stage, first=resid_loads if resid else None,
          mid=(N // 2, resid_add) if resid and not split else None,
          final=final_gelu if epi == "gelu" else final_split if split else None)
    if split:
        a("s_mov_b32 s%d, 0x2000", S_CNT)
        stamp(a, 5)
        rcv_loads()
        a("s_waitcnt vmcnt(8)")
        a("s_nop 3")
        resid_add()
        a("s_waitcnt vmcnt(0)")
        a.label(name + "_rcv")
        a("v_max3_u32 v4, v%d, v%d, v%d", RCV, RCV + 1, RCV + 2)
        for q in range(3, 15, 2): a("v_max3_u32 v4, v4, v%d, v%d", RCV + q, RCV + q + 1)
        a("v_max_u32 v4, v4, v%d", RCV + 15)
        a("v_cmp_eq_u32 vcc, -1, v4")
        a("s_sub_u32 s%d, s%d, 1", S_CNT, S_CNT)
        a("s_cmp_eq_u32 s%d, 0", S_CNT)
        a("s_cbranch_scc1 %s_rcvd", name)
        a("s_cbranch_vccz %s_rcvd", name)
        a("s_sleep %d", OPT.get("slp", 2))
        rcv_loads()
        a("s_waitcnt vmcnt(0)")
        a("s_branch %s_rcv", name)
        a.label(name + "_rcvd")
        stamp(a, 6)
        if OPT.get("stamp"): a("s_add_u32 s%d, s%d, 0x6000", 64 + 2 * 9, S_CNT)
        for u, (i, j) in enumerate(tiles(0)):
            c = acc(i, j); t = TMPV + 16 + 4 * (u & 3)
            for q in range(2):
                a("v_lshlrev_b32 v%d, 16, v%d", t + 2 * q, RCV + 2 * u + q)
                a("v_and_b32 v%d, 0xffff0000, v%d", t + 2 * q + 1, RCV + 2 * u + q)
            for q in range(2):
                a("v_pk_add_f32 v[%d:%d], v[%d:%d], v[%d:%d]", c + 2 * q, c + 2 * q + 1, c + 2 * q, c + 2 * q + 1, t + 2 * q, t + 2 * q + 1)
    def stats_block():
        assert nk in (2, 4) and na == 4
        pr = lambda r: "v[%d:%d]" % (r, r + 1)
        SV = TMPV + 16
        for j in range(nk):
            prs = [acc(i, j) + 2 * q for i in range(na) for q in range(2)]
            a("v_pk_add_f32 %s, %s, %s", pr(SV + 4 * j), pr(prs[0]), pr(prs[1]))
            a("v_pk_mul_f32 %s, %s, %s", pr(SV + 4 * j + 2), pr(prs[0]), pr(prs[0]))
            for x in prs[1:]:
                if x != prs[1]: a("v_pk_add_f32 %s, %s, %s", pr(SV + 4 * j), pr(SV + 4 * j), pr(x))
                a("v_pk_fma_f32 %s, %s, %s, %s", pr(SV + 4 * j + 2), pr(x), pr(x), pr(SV + 4 * j + 2))
        for j in range(nk):
            a("v_add_f32 v%d, v%d, v%d", SV + 4 * j, SV + 4 * j, SV + 4 * j + 1)
            a("v_add_f32 v%d, v%d, v%d", SV + 4 * j + 1, SV + 4 * j + 2, SV + 4 * j + 3)
        a("s_nop 1")
        for j in range(0, nk, 2):
            a("v_permlane16_swap_b32 v%d, v%d", SV + 4 * j, SV + 4 * j + 4)
            a("v_permlane16_swap_b32 v%d, v%d", SV + 4 * j + 1, SV + 4 * j + 5)
        for j in range(0, nk, 2):
            a("v_pk_add_f32 %s, %s, %s", pr(SV + 4 * j), pr(SV + 4 * j), pr(SV + 4 * j + 4))
        if nk == 2:
            a("v_mov_b32 v%d, v%d", SV + 8, SV)
            a("v_mov_b32 v%d, v%d", SV + 9, SV + 1)
        a("v_and_b32 v3, %d, v2", 16 if nk == 2 else 48)
        a("v_add_u32 v3, v3, v20")
        a("v_permlane32_swap_b32 v%d, v%d", SV, SV + 8)
        a("v_permlane32_swap_b32 v%d, v%d", SV + 1, SV + 9)
        a("v_pk_add_f32 %s, %s, %s", pr(SV), pr(SV), pr(SV + 8))
        a("v_lshlrev_b32 v3, 3, v3")
        a("s_mul_i32 s%d, s%d, %d", S_TMP, S_TA, WA)
        a("s_add_u32 s%d, s%d, s%d", S_TMP, S_TMP, SWA)
        a("s_lshl_b32 s%d, s%d, 14", S_TMP, S_TMP)
        if nk == 2: a("s_mov_b32 exec_hi, 0")
        a("buffer_store_dwordx2 %s, v3, s[60:63], s%d offen sc1", pr(SV), S_TMP)
        if nk == 2: a("s_mov_b32 exec_hi, -1")
    def ln2_start():
        stats_block()
        a("v_lshrrev_b32 v4, 5, v2")
        a("v_lshl_add_u32 v21, v4, 17, v3")
    def ex_loads():
        for q in range(8):
            a("s_mov_b32 s%d, %d", S_TMP + (q & 1), q * 16384)
            a("buffer_load_dwordx2 v[%d:%d], v21, s[60:63], s%d offen sc1", EXV + 2 * q, EXV + 2 * q + 1, S_TMP + (q & 1))
    def ln2_finish():
        pr = lambda r: "v[%d:%d]" % (r, r + 1)
        a("s_mov_b32 s%d, 0x2000", S_CNT)
        a("v_mul_u32_u24 v19, %d, v20", LDH - ldc)
        a("v_add_u32 v19, v19, v9")
        for j in range(nk): a("s_mov_b32 s%d, %d", S_ST + 2 + j, j * 16 * LDH)
        stamp(a, 5)
        ex_loads()
        if OPT.get("x1late") == 2:
            for w in held: a(w)
            a("s_waitcnt vmcnt(4)")
        else:
            a("s_waitcnt vmcnt(0)")
        a.label(name + "_ex")
        a("v_max3_u32 v4, v%d, v%d, v%d", EXV, EXV + 1, EXV + 2)
        for q in range(3, 15, 2): a("v_max3_u32 v4, v4, v%d, v%d", EXV + q, EXV + q + 1)
        a("v_max_u32 v4, v4, v%d", EXV + 15)
        a("v_cmp_eq_u32 vcc, -1, v4")
        a("s_sub_u32 s%d, s%d, 1", S_CNT, S_CNT)
        a("s_cmp_eq_u32 s%d, 0", S_CNT)
        a("s_cbranch_scc1 %s_exd", name)
        a("s_cbranch_vccz %s_exd", name)
        a("s_sleep %d", OPT.get("slp", 2))
        ex_loads()
        a("s_waitcnt vmcnt(0)")
        a("s_branch %s_ex", name)
        a.label(name + "_exd")
        stamp(a, 6)
        if OPT.get("stamp"): a("s_add_u32 s%d, s%d, 0x6000", 64 + 2 * 9, S_CNT)
        if OPT.get("x1late") == 1:
            for w in held: a(w)
        E = EXV
        for st in (4, 2, 1):
            for q in range(st): a("v_pk_add_f32 %s, %s, %s", pr(E + 2 * q), pr(E + 2 * q), pr(E + 2 * (q + st)))
        a("v_mov_b32 v%d, v%d", E + 2, E)
        a("v_mov_b32 v%d, v%d", E + 3, E + 1)
        a("s_nop 1")
        a("v_permlane32_swap_b32 v%d, v%d", E, E + 2)
        a("v_permlane32_swap_b32 v%d, v%d", E + 1, E + 3)
        a("v_pk_add_f32 %s, %s, %s", pr(E), pr(E), pr(E + 2))
        m, var, mb, r1, m2, v2 = E, E + 1, E + 2, E + 3, E + 4, E + 5
        a("v_mul_f32 v%d, 0x%x, v%d", m, f32(1.0 / 1024), m)
        a("v_mul_f32 v%d, 0x%x, v%d", var, f32(1.0 / 1024), var)
        a("v_fma_f32 v%d, -v%d, v%d, v%d", var, m, m, var)
        a("v_max_f32 v%d, 0, v%d", var, var)
        a("v_mov_b32 v%d, v%d", mb, m)
        a("v_mov_b32 v%d, v%d", r1, var)
        def rstd(x):
            round_bf16_scalar(a, x)
            a("v_add_f32 v%d, 0x%x, v%d", x, f32(1e-5), x)
            round_bf16_scalar(a, x)
            a("v_sqrt_f32 v%d, v%d", x, x)
            a("s_nop 0")
            round_bf16_scalar(a, x)
            a("v_rcp_f32 v%d, v%d", x, x)
        round_bf16_scalar(a, mb)
        rstd(r1)
        a("v_sub_f32 v%d, v%d, v%d", m2, m, mb)
        a("v_mul_f32 v%d, v%d, v%d", v2, var, r1)
        a("v_mul_f32 v%d, v%d, v%d", m2, m2, r1)
        a("v_mul_f32 v%d, v%d, v%d", v2, v2, r1)
        round_bf16_scalar(a, m2)
        rstd(v2)
        a("v_fma_f32 v%d, v%d, v%d, v%d", m2, mb, r1, m2)
        a("v_mul_f32 v%d, v%d, v%d", E + 6, r1, v2)
        a("v_mul_f32 v%d, -v%d, v%d", E + 7, m2, v2)
        a("v_mov_b32 v%d, v%d", E + 8, E + 6)
        a("v_mov_b32 v%d, v%d", E + 9, E + 7)
        a("s_nop 1")
        a("v_permlane16_swap_b32 v%d, v%d", E + 6, E + 8)
        a("v_permlane16_swap_b32 v%d, v%d", E + 7, E + 9)
        k = 0
        for j in range(nk):
            ab = pr(E + 6 + 2 * j)
            for p in range(na // 2):
                c0_, c1_ = acc(2 * p, j), acc(2 * p + 1, j)
                for x in (c0_, c0_ + 2, c1_, c1_ + 2):
                    a("v_pk_fma_f32 %s, %s, %s, %s op_sel:[0,0,1] op_sel_hi:[1,0,1]", pr(x), pr(x), ab, ab)
                d = RES + 4 * (k & 3); k += 1
                a("v_cvt_pk_bf16_f32 v%d, v%d, v%d", d, c0_, c0_ + 1)
                a("v_cvt_pk_bf16_f32 v%d, v%d, v%d", d + 1, c0_ + 2, c0_ + 3)
                a("v_cvt_pk_bf16_f32 v%d, v%d, v%d", d + 2, c1_, c1_ + 1)
                a("v_cvt_pk_bf16_f32 v%d, v%d, v%d", d + 3, c1_ + 2, c1_ + 3)
                a("s_nop 1")
                a("v_permlane16_swap_b32 v%d, v%d", d, d + 2)
                a("v_permlane16_swap_b32 v%d, v%d", d + 1, d + 3)
                a("buffer_store_dwordx4 v[%d:%d], v19, s[56:59], s%d offen offset:%d%s", d, d + 3, S_ST + 2 + j, p * 64, STF())
    if epi == "ln2":
        a("s_nop 7")
        ln2_start()
    held = []
    if epi != "gelu":
        for k, (j, p) in enumerate(JP):
            u = out_unit(k, j, p)
            if epi == "ln2" and OPT.get("x1late"): held.append(u.pop())
            for w in u: a(w)
    if stats: stats_block()
    if epi == "ln2": ln2_finish()
    xs = bool(split) or epi == "ln2"
    stamp(a, 7 if xs else 5)
    stamp_flush(a, name, 8 if xs else 6, extra=xs)
    finish(a, name, cnt)
    if spare:
        a.label(name + "_spare")
        spare(a)
    GEMM_VTOP[name] = VTOP
    return lbase + stage * S

def gen_g1(a, name, W=2):
    N, S = 16, 3
    PW = Op("km", 64, 6144)
    XB = 3 * 8192
    stage = XB + 144 * 128
    E = stage
    REG = 144 * 128
    LST = S * stage
    LCS = LST + 1280
    S_SIG, S_DIST, S_H1, S_H2, S_H3, S_H4, S_H5 = 52, 53, 54, 55, 29, 50, 51
    KG = OPT.get("KG", 12)
    entry(a, name, 256)
    a("s_load_dwordx2 s[4:5], s[0:1], %d", ARG["ws"])
    a("s_load_dwordx2 s[6:7], s[0:1], %d", ARG["x"])
    a("s_xor_b32 s%d, s%d, 1", S_DIST, S_LAYER)
    a("s_load_dwordx2 s[30:31], s[0:1], %d", ARG["wqkv"])
    a("s_load_dwordx2 s[16:17], s[0:1], %d", ARG["dbg"])
    a("s_load_dwordx2 s[18:19], s[0:1], %d", ARG["wo"])
    a("v_lshrrev_b32 v1, 6, v0")
    a("v_and_b32 v2, 63, v0")
    a("s_and_b32 s%d, s2, 1", S_TMP)
    a("s_lshl_b32 s%d, s%d, 3", S_TMP, S_TMP)
    a("s_bfe_u32 s%d, s2, 0x30003", S_TMP + 1)
    a("s_add_u32 s%d, s%d, s%d", S_TB, S_TMP, S_TMP + 1)
    a("s_bfe_u32 s%d, s2, 0x20001", S_TMP)
    a("s_lshl_b32 s%d, s%d, 2", S_TMP, S_TMP)
    a("s_lshr_b32 s%d, s2, 6", S_TMP + 2)
    a("s_add_u32 s%d, s%d, s%d", S_TA, S_TMP, S_TMP + 2)
    a("s_add_u32 s%d, s%d, s%d", S_J, S_TMP + 1, S_TMP + 2)
    a("s_add_u32 s%d, s%d, s%d", S_SIG, S_TA, S_TB)
    a("s_and_b32 s%d, s%d, 15", S_SIG, S_SIG)
    a("s_and_b32 s%d, s%d, %d", S_KB, S_SIG, KG)
    a("s_mul_i32 s%d, s%d, s%d", S_KB, S_KB, S_DIST)
    a("v_readfirstlane_b32 s%d, v1", S_W)
    lane_parts(a)
    a("s_cmp_lt_u32 s%d, 4", S_W)
    a("s_cbranch_scc1 %s_compute", name)

    EA, AO, AQ, AV, AM, ED = 216, 225, 226, 227, 228, 232
    SHD, SSH = S_TMP + 4, S_TMP + 5
    def attn_setup():
        srd(a, 16, 4, WS["O"], ACT_BYTES)
        a("s_and_b32 s%d, s%d, 1", SHD, S_W)
        SU = S_TMP + 5
        a("s_lshr_b32 s%d, s%d, 1", SU, S_W)
        a("s_lshl_b32 s%d, s%d, 2", S_TMP, SHD)
        a("v_add_u32 v3, s%d, v5", S_TMP)
        a("v_and_b32 v4, 7, v8")
        a("v_xor_b32 v3, v3, v4")
        a("v_lshlrev_b32 v3, 4, v3")
        a("v_lshl_add_u32 v3, v8, 8, v3")
        a("s_mul_i32 s%d, s%d, %d", S_TMP + 1, SU, 32 * 128)
        a("s_add_u32 s%d, s%d, %d", S_TMP + 1, S_TMP + 1, E)
        a("v_add_u32 v%d, s%d, v3", AQ, S_TMP + 1)
        a("v_lshl_add_u32 v3, v5, 2, v6")
        a("v_and_b32 v4, 7, v3")
        a("v_add_u32 v%d, s%d, v7", AM, S_TMP)
        a("v_xor_b32 v4, v4, v%d", AM)
        a("v_lshlrev_b32 v4, 4, v4")
        a("v_lshl_add_u32 v3, v3, 8, v4")
        a("s_add_u32 s%d, s%d, %d", S_TMP + 1, S_TMP + 1, 2 * REG)
        a("v_add_u32 v%d, s%d, v3", AV, S_TMP + 1)
        a("v_and_b32 v3, 7, v8")
        a("v_add_u32 v4, 1, v3")
        a("s_or_b32 s%d, s%d, s%d", S_TMP, S_TB, SU)
        a("s_cmp_eq_u32 s%d, 0", S_TMP)
        a("s_cselect_b32 s%d, 8, 0", S_TMP)
        a("v_cmp_gt_u32 vcc, 8, v8")
        a("v_mov_b32 v21, s%d", S_TMP)
        a("s_mov_b64 s[56:57], vcc")
        a("v_cndmask_b32 v21, 0, v21, vcc")
        a("v_max_u32 v4, v4, v21")
        a("v_add_u32 v3, 8, v3")
        a("v_sub_u32 v3, v3, v4")
        a("v_lshlrev_b32 v21, 2, v5")
        a("v_sub_u32 v21, v21, v4")
        a("v_mov_b32 v22, 0xf149f2ca")
        for r in range(4):
            a("v_add_u32 v23, %d, v21", r)
            a("v_cmp_ge_u32 vcc, v3, v23")
            a("s_nop 1")
            a("v_cndmask_b32 v%d, v22, 0, vcc", AM + r)
        a("s_lshl_b32 s%d, s%d, 7", S_TMP, S_TB)
        a("s_lshl_b32 s%d, s%d, 5", S_TMP + 1, SU)
        a("s_add_u32 s%d, s%d, s%d", S_TMP, S_TMP, S_TMP + 1)
        a("s_lshl_b32 s%d, s%d, 11", S_TMP, S_TMP)
        a("s_lshl_b32 s%d, s%d, 7", S_TMP + 1, S_TA)
        a("s_add_u32 s%d, s%d, s%d", S_TMP, S_TMP, S_TMP + 1)
        a("s_lshl_b32 s%d, s%d, 6", S_TMP + 1, SHD)
        a("s_add_u32 s%d, s%d, s%d", S_TMP, S_TMP, S_TMP + 1)
        a("v_lshlrev_b32 v%d, 12, v8", AO)
        a("v_lshl_add_u32 v%d, v5, 4, v%d", AO, AO)
        a("v_add_u32 v%d, s%d, v%d", AO, S_TMP, AO)
        a("s_mov_b32 s58, 0x%x", f32(32 ** -0.5))
        a("s_mov_b32 s59, 0x%x", f32(math.log2(math.e)))

    if OPT.get("ldprio"): a("s_setprio %d", OPT["ldprio"])
    a("s_sub_u32 s%d, s%d, 4", S_W, S_W)
    XO = Op("kc", 128, 2048)
    loader_voffs(a, XO, S_TB, 16)
    for p in range(3):
        loader_voffs(a, PW, S_TA, 10 + 2 * p, extra_cols=1024 * p)
    a("v_lshrrev_b32 v3, 3, v2")
    a("s_lshl_b32 s%d, s%d, 2", S_TMP, S_W)
    a("v_add_u32 v3, s%d, v3", S_TMP)
    a("v_lshrrev_b32 v4, 1, v3")
    a("v_xor_b32 v4, v4, v2")
    a("v_and_b32 v4, 7, v4")
    a("s_lshl_b32 s%d, s%d, 7", S_TMP, S_TB)
    a("s_sub_u32 s%d, s%d, 16", S_TMP, S_TMP)
    a("v_add_u32 v3, s%d, v3", S_TMP)
    a("v_max_i32 v3, 0, v3")
    a("v_lshlrev_b32 v3, 11, v3")
    a("v_lshl_add_u32 v20, v4, 4, v3")
    a("s_mul_i32 s%d, s%d, 2048", S_LA, S_W)
    a("s_mul_i32 s%d, s%d, 4096", S_LB, S_W)
    a("s_add_u32 s%d, s%d, %d", S_LB, S_LB, XB + 2048)
    a("s_mul_i32 s%d, s%d, 512", S_TMP + 6, S_W)
    a("s_add_u32 s%d, s%d, %d", S_TMP + 6, S_TMP + 6, XB)
    a("s_waitcnt lgkmcnt(0)")
    srd(a, 8, 30, 0, 1024 * 3072 * 2)
    srd(a, 56, 4, WS["CS"], CS_BYTES)
    ws_adjust(a)
    sel_ptr(a, 12, 1, WS["X2"])
    def issue(part):
        kidx_offsets(a, W, PW.kadv, 128, wrap=16)
        a("s_add_u32 s%d, s%d, s%d", S_M0A, S_SLOT, S_LA)
        a("s_add_u32 s%d, s%d, s%d", S_M0B, S_SLOT, S_LB)
        for i in range(4 if part != "W" else 0):
            a("s_add_u32 m0, s%d, %d", S_M0B, i * 1024)
            a("s_nop 0")
            a("buffer_load_dwordx4 v%d, s[12:15], s%d offen%s lds", 16 + i, S_OFB, ASC())
        for p in range(3 if part != "A" else 0):
            for i in range(2):
                a("s_add_u32 m0, s%d, %d", S_M0A, p * 8192 + i * 1024)
                a("s_nop 0")
                a("buffer_load_dwordx4 v%d, s[8:11], s%d offen lds", 10 + 2 * p + i, S_OFA)
        if part == "W": return
        a("s_add_u32 m0, s%d, s%d", S_SLOT, S_TMP + 6)
        a("s_mov_b32 exec_hi, 0")
        a("buffer_load_dwordx4 v20, s[12:15], s%d offen%s lds", S_OFB, ASC())
        a("s_mov_b32 exec_hi, -1")
    srd(a, 20, 4, WS["ST"], ST_BYTES)
    srd(a, 60, 16, 0, 256)
    a("s_sub_u32 s%d, s%d, s%d", S_TMP, S_SIG, S_J)
    a("s_and_b32 s%d, s%d, %d", S_TMP, S_TMP, W - 1)
    a("s_and_b32 s%d, s%d, %d", S_TMP + 1, S_SIG, 15 & ~KG & ~(W - 1))
    a("s_or_b32 s%d, s%d, s%d", S_TMP, S_TMP, S_TMP + 1)
    a("s_add_u32 s%d, s%d, %d", S_H1, S_TMP, S - 1)
    a("s_cmp_eq_u32 s%d, 0", S_DIST)
    a("s_cselect_b32 s%d, 0x7fff, s%d", S_H1, S_H1)
    a("s_add_u32 s%d, s%d, %d", S_H2, S_H1, S)
    a("s_cmp_lg_u32 s%d, 0", S_W)
    a("s_cselect_b32 s%d, 0x7fff, s%d", S_H2, S_H2)
    a("s_cmp_lt_u32 s%d, 0x7fff", S_H2)
    a("s_cselect_b32 s%d, %d, 0x7fff", S_H3, N - 4)
    a("s_add_u32 s%d, s%d, 1", S_H4, S_H3)
    a("s_mov_b32 s%d, %d", S_H5, N - 2)
    def slice_stats():
        SL = S_TMP + 4
        a("s_add_u32 s%d, s%d, %d", SL, S_SLOT, stage)
        a("s_cmp_eq_u32 s%d, %d", SL, S * stage)
        a("s_cselect_b32 s%d, 0, s%d", SL, SL)
        for i in range(3):
            a("s_mul_i32 s%d, s%d, 3", S_TMP + 2, S_W)
            a("s_add_u32 s%d, s%d, %d", S_TMP + 2, S_TMP + 2, i)
            a("s_lshr_b32 s%d, s%d, 2", S_TMP + 3, S_TMP + 2)
            a("s_lshl_b32 s%d, s%d, 13", S_TMP + 3, S_TMP + 3)
            a("s_add_u32 s%d, s%d, s%d", S_TMP + 3, S_TMP + 3, SL)
            a("s_and_b32 s%d, s%d, 3", S_TMP + 2, S_TMP + 2)
            read_addr_km(a, 64, S_TMP + 3, S_TMP + 2, 0, 21)
            for ks in range(2):
                for r in frag_reads("km", 64, [21], 0, ks, 24 + 8 * i + 4 * ks): a(r)
        a("s_lshr_b32 s%d, s%d, 7", S_TMP + 2, SL)
        a("s_lshl_b32 s%d, s%d, 5", S_TMP + 3, S_W)
        a("s_add_u32 s%d, s%d, s%d", S_TMP + 2, S_TMP + 2, S_TMP + 3)
        a("s_add_u32 s%d, s%d, 16", S_TMP + 2, S_TMP + 2)
        read_addrs_kc(a, XB, S_TMP + 2, 22)
        for i in range(2):
            for ks in range(2):
                for r in frag_reads("kc", 0, [22, 23], i, ks, 48 + 8 * i + 4 * ks): a(r)
        for r in range(4): a("v_mov_b32 v%d, 0x3f803f80", 64 + r)
        a("s_mul_i32 s%d, s%d, 12288", S_TMP + 2, S_SIG)
        a("s_lshl_b32 s%d, s%d, 8", S_TMP + 3, S_TA)
        a("s_add_u32 s%d, s%d, s%d", S_TMP + 2, S_TMP + 2, S_TMP + 3)
        a("v_lshl_add_u32 v21, v5, 4, s%d", S_TMP + 2)
        a("s_lshl_b32 s%d, s%d, 14", S_TMP + 2, S_SIG)
        a("s_lshl_b32 s%d, s%d, 10", S_TMP + 3, S_TB)
        a("s_add_u32 s%d, s%d, s%d", S_TMP + 2, S_TMP + 2, S_TMP + 3)
        a("s_lshl_b32 s%d, s%d, 8", S_TMP + 3, S_W)
        a("s_add_u32 s%d, s%d, s%d", S_TMP + 2, S_TMP + 2, S_TMP + 3)
        a("v_lshl_add_u32 v22, v8, 3, s%d", S_TMP + 2)
        a("s_waitcnt lgkmcnt(0)")
        mm = lambda d, x, y, first: a("v_mfma_f32_16x16x32_bf16 v[%d:%d], v[%d:%d], v[%d:%d], %s", d, d + 3, x, x + 3, y, y + 3,
                                      "0" if first else "v[%d:%d]" % (d, d + 3))
        for ks in range(2):
            for i in range(3): mm(68 + 4 * i, 24 + 8 * i + 4 * ks, 64, ks == 0)
            for i in range(2):
                mm(80 + 8 * i, 64, 48 + 8 * i + 4 * ks, ks == 0)
                mm(84 + 8 * i, 48 + 8 * i + 4 * ks, 48 + 8 * i + 4 * ks, ks == 0)
        a("v_cmp_eq_u32 s[%d:%d], 1, v7", S_TMP, S_TMP + 1)
        a("v_cmp_eq_u32 s[%d:%d], 2, v7", S_TMP + 2, S_TMP + 3)
        a("v_cmp_eq_u32 vcc, 3, v7")
        a("s_nop 7")
        for i in range(2):
            a("v_cndmask_b32 v%d, v%d, v%d, s[%d:%d]", 81 + 8 * i, 84 + 8 * i, 85 + 8 * i, S_TMP, S_TMP + 1)
            a("v_cndmask_b32 v%d, v%d, v%d, s[%d:%d]", 81 + 8 * i, 81 + 8 * i, 86 + 8 * i, S_TMP + 2, S_TMP + 3)
            a("v_cndmask_b32 v%d, v%d, v%d, vcc", 81 + 8 * i, 81 + 8 * i, 87 + 8 * i)
        a("s_mov_b32 exec_lo, 0x00f0000f")
        a("s_mov_b32 exec_hi, 0xf0000f00")
        for i in range(2):
            a("buffer_store_dwordx2 v[%d:%d], v22, s[20:23], 0 offen offset:%d sc1", 80 + 8 * i, 81 + 8 * i, 128 * i)
        a("s_mov_b32 exec_lo, 0x00010001")
        a("s_mov_b32 exec_hi, 0x00010001")
        for i in range(3):
            a("s_mul_i32 s%d, s%d, 3", S_TMP + 2, S_W)
            a("s_add_u32 s%d, s%d, %d", S_TMP + 2, S_TMP + 2, i)
            a("s_lshr_b32 s%d, s%d, 2", S_TMP + 3, S_TMP + 2)
            a("s_lshl_b32 s%d, s%d, 12", S_TMP + 3, S_TMP + 3)
            a("s_and_b32 s%d, s%d, 3", S_TMP + 2, S_TMP + 2)
            a("s_lshl_b32 s%d, s%d, 6", S_TMP + 2, S_TMP + 2)
            a("s_add_u32 s%d, s%d, s%d", S_TMP + 2, S_TMP + 2, S_TMP + 3)
            a("buffer_store_dwordx4 v[%d:%d], v21, s[56:59], s%d offen sc1", 68 + 4 * i, 71 + 4 * i, S_TMP + 2)
        a("s_mov_b64 exec, -1")
        a("s_or_b32 s%d, s%d, s%d", S_TMP, S_TA, S_TB)
        a("s_or_b32 s%d, s%d, s%d", S_TMP, S_TMP, S_W)
        a("s_cmp_lg_u32 s%d, 0", S_TMP)
        a("s_cbranch_scc1 %s_nocr", name)
        a("v_lshlrev_b32 v21, 8, v2")
        a("v_mov_b32 v22, 0")
        for area in (0, LOFF):
            srd(a, 84, 4, WS["CNT"] + area, CNT_BYTES)
            a("buffer_store_dword v22, v21, s[84:87], 0 offen sc1")
        a.label(name + "_nocr")
    def arrive():
        a("v_mov_b32 v21, 0")
        a("v_mov_b32 v22, 1")
        a("s_mov_b64 exec, 1")
        a("buffer_atomic_add v22, v21, s[60:63], 0 offen sc1")
        a("s_mov_b64 exec, -1")
    def poll_issue():
        a("v_mov_b32 v21, 0")
        a("buffer_load_dword v23, v21, s[60:63], 0 offen sc1")
    def poll_check():
        a("s_mov_b32 s%d, 0x20000", S_TMP + 1)
        a("v_mov_b32 v21, 0")
        a("s_waitcnt vmcnt(11)")
        a.label(name + "_poll")
        a("v_readfirstlane_b32 s%d, v23", S_TMP)
        a("s_sub_u32 s%d, s%d, 1", S_TMP + 1, S_TMP + 1)
        a("s_cmp_eq_u32 s%d, 0", S_TMP + 1)
        a("s_cbranch_scc1 %s_polled", name)
        a("s_cmp_ge_u32 s%d, 256", S_TMP)
        a("s_cbranch_scc1 %s_polled", name)
        a("s_sleep 8")
        a("buffer_load_dword v23, v21, s[60:63], 0 offen sc1")
        a("s_waitcnt vmcnt(0)")
        a("s_branch %s_poll", name)
        a.label(name + "_polled")
    def st_loads():
        a("s_lshl_b32 s%d, s%d, 6", S_TMP, S_W)
        a("v_add_u32 v21, s%d, v2", S_TMP)
        a("s_lshl_b32 s%d, s%d, 7", S_TMP + 1, S_TB)
        a("s_sub_u32 s%d, s%d, 16", S_TMP + 1, S_TMP + 1)
        a("v_add_u32 v3, s%d, v21", S_TMP + 1)
        a("v_max_i32 v3, 0, v3")
        a("v_min_u32 v3, 2047, v3")
        a("v_lshlrev_b32 v3, 3, v3")
        a("s_min_u32 s%d, s%d, 2", S_TMP, S_W)
        a("s_lshl_b32 s%d, s%d, 12", S_TMP, S_TMP)
        a("s_lshl_b32 s%d, s%d, 8", S_TMP + 1, S_TA)
        a("s_add_u32 s%d, s%d, s%d", S_TMP, S_TMP, S_TMP + 1)
        a("v_lshl_add_u32 v4, v2, 2, s%d", S_TMP)
        for k in range(16):
            a("s_mov_b32 s%d, %d", S_TMP, k * 16384)
            a("buffer_load_dwordx2 v[%d:%d], v3, s[20:23], s%d offen sc1", 24 + 2 * k, 25 + 2 * k, S_TMP)
            a("s_mov_b32 s%d, %d", S_TMP + 1, k * 3072 * 4)
            a("buffer_load_dword v%d, v4, s[56:59], s%d offen sc1", 56 + k, S_TMP + 1)
    def st_use():
        for st in (8, 4, 2, 1):
            for k in range(st):
                a("v_pk_add_f32 v[%d:%d], v[%d:%d], v[%d:%d]", 24 + 2 * k, 25 + 2 * k, 24 + 2 * k, 25 + 2 * k, 24 + 2 * (k + st), 25 + 2 * (k + st))
                a("v_add_f32 v%d, v%d, v%d", 56 + k, 56 + k, 56 + k + st)
        a("v_mul_f32 v24, 0x%x, v24", f32(1.0 / 1024))
        a("v_mul_f32 v25, 0x%x, v25", f32(1.0 / 1024))
        a("v_fma_f32 v25, -v24, v24, v25")
        a("v_max_f32 v25, 0, v25")
        round_bf16_scalar(a, 24)
        round_bf16_scalar(a, 25)
        a("v_add_f32 v25, 0x%x, v25", f32(1e-5))
        round_bf16_scalar(a, 25)
        a("v_sqrt_f32 v25, v25")
        a("s_nop 0")
        round_bf16_scalar(a, 25)
        a("v_rcp_f32 v26, v25")
        a("v_lshlrev_b32 v3, 3, v21")
        a("v_lshlrev_b32 v4, 2, v21")
        a("v_mul_f32 v27, -v24, v26")
        a("v_cmp_gt_u32 vcc, 144, v21")
        a("s_and_saveexec_b64 s[%d:%d], vcc", S_TMP, S_TMP + 1)
        a("v_add_u32 v3, %d, v3", LST)
        a("ds_write_b64 v3, v[26:27]")
        a("s_mov_b64 exec, s[%d:%d]", S_TMP, S_TMP + 1)
        a("v_cmp_gt_u32 vcc, 192, v21")
        a("s_and_saveexec_b64 s[%d:%d], vcc", S_TMP, S_TMP + 1)
        a("v_add_u32 v4, %d, v4", LCS)
        a("ds_write_b32 v4, v56")
        a("s_mov_b64 exec, s[%d:%d]", S_TMP, S_TMP + 1)
        a("s_waitcnt lgkmcnt(0)")
    def tail():
        a("s_waitcnt vmcnt(43)")
        a("s_barrier")
        a("s_waitcnt vmcnt(0)")
        st_use()
        a("s_barrier")
        srd(a, 20, 4, WS["EX"], ST_BYTES)
        a("s_lshl_b32 s%d, s%d, 4", S_TMP, S_TA)
        a("s_add_u32 s%d, s%d, s%d", S_TMP, S_TMP, S_TB)
        a("s_lshl_b32 s%d, s%d, 10", S_TMP, S_TMP)
        a("s_lshl_b32 s%d, s%d, 8", S_TMP + 1, S_W)
        a("s_add_u32 s%d, s%d, s%d", S_TMP, S_TMP, S_TMP + 1)
        a("v_lshlrev_b32 v3, 2, v2")
        a("v_mov_b32 v4, -1")
        a("buffer_store_dword v4, v3, s[20:23], s%d offen sc1", S_TMP)
        a("s_cmp_eq_u32 s%d, 0", S_DIST)
        a("s_cbranch_scc1 %s_nopf", name)
        srd(a, 20, 18, 0, 1024 * 1024 * 2)
        a("s_lshl_b32 s%d, s2, 13", S_TMP)
        a("s_lshl_b32 s%d, s%d, 11", S_TMP + 1, S_W)
        a("s_add_u32 s%d, s%d, s%d", S_TMP, S_TMP, S_TMP + 1)
        a("v_lshlrev_b32 v3, 4, v2")
        a("buffer_load_dwordx4 v[120:123], v3, s[20:23], s%d offen", S_TMP)
        a("buffer_load_dwordx4 v[120:123], v3, s[20:23], s%d offen offset:1024", S_TMP)
        a.label(name + "_nopf")
    def dep(pre):
        a("s_cmp_eq_u32 s%d, 0", S_LAYER)
        a("s_cbranch_scc1 %s_dep_%s", name, "set" if pre is True else "ok")
        if late_y("g4"): a("s_barrier")
        a("s_add_u32 s%d, s%d, %d", S_TMP, S_TB, C41)
        a("s_lshl_b32 s%d, s%d, 8", S_TMP, S_TMP)
        a("s_sub_u32 s%d, s%d, 256", S_TMP + 2, S_TMP)
        a("s_max_u32 s%d, s%d, %d", S_TMP + 2, S_TMP + 2, C41 * 256)
        wait_counters(a, name + "_dep", 16, 16, pre)
    loader_loop(a, name, issue, 6, 5, N, S, stage, tail=tail, dep=None if prev_cut(name) else dep,
                events=[(S_H1, 5, slice_stats), (S_H2, 1, arrive), (S_H3, 1, poll_issue), (S_H4, 0, poll_check), (S_H5, 32, st_loads)])
    a("s_add_u32 s%d, s%d, 4", S_W, S_W)
    attn_setup()
    a("s_branch %s_attn", name)

    a.label(name + "_compute")
    na, nb = 6, 5
    ACC = 24
    acc = lambda i, j: ACC + 4 * (i * 4 + j) if j < 4 else ACC + 96 + 4 * (i - 4)
    nacc = 104
    FR = ACC + nacc
    fset = (na + nb) * 4
    fA = lambda st, i: FR + st * fset + 4 * i
    fB = lambda st, j: FR + st * fset + 4 * na + 4 * j
    VTOP = FR + 2 * fset
    SHD, SSH = S_TMP + 4, S_TMP + 5
    a("s_and_b32 s%d, s%d, 1", SHD, S_W)
    a("s_lshr_b32 s%d, s%d, 1", SSH, S_W)
    AR = 10
    def part_of(c, unit):
        if c == 0:
            a("s_mov_b32 s%d, 0", S_TMP + 3)
        else:
            a("s_xor_b32 s%d, s%d, %d", S_TMP + 3, SSH, 1 if c == 1 else 0)
            a("s_add_u32 s%d, s%d, 1", S_TMP + 3, S_TMP + 3)
            a("s_mul_i32 s%d, s%d, %d", S_TMP + 3, S_TMP + 3, unit)
    a("s_lshl_b32 s%d, s%d, 1", S_TMP + 2, SHD)
    for c in range(3):
        part_of(c, 8192)
        for i in range(2):
            read_addr_km(a, 64, S_TMP + 3, S_TMP + 2, i, AR + 2 * c + i)
    adA = [AR + i for i in range(6)]
    a("s_mul_i32 s%d, s%d, 64", S_TMP + 2, SSH)
    a("s_add_u32 s%d, s%d, 16", S_TMP + 2, S_TMP + 2)
    read_addrs_kc(a, XB, S_TMP + 2, AR + 6)
    read_addrs_kc(a, XB, None, AR + 8)
    adB, adH = [AR + 6, AR + 7], [AR + 8, AR + 9]
    for r in range(nacc): a("v_mov_b32 v%d, 0", ACC + r)
    for r in range(fset): a("v_mov_b32 v%d, 0", FR + fset + r)
    compute_loop_ctl_init(a, N, S, stage)
    if OPT.get("cprio"): a("s_setprio %d", OPT["cprio"])
    a("s_waitcnt lgkmcnt(0)")
    stamp(a, 1)
    ws_adjust(a)
    a("v_lshlrev_b32 v3, 3, v8")
    a("v_add_u32 v%d, %d, v3", EA + 1, LST)
    a("s_mul_i32 s%d, s%d, 512", S_TMP, SSH)
    a("s_add_u32 s%d, s%d, %d", S_TMP, S_TMP, LST + 128)
    a("v_add_u32 v%d, s%d, v3", EA, S_TMP)
    a("s_lshl_b32 s%d, s%d, 7", S_TMP, SHD)
    a("s_add_u32 s%d, s%d, %d", S_TMP, S_TMP, LCS)
    a("v_lshl_add_u32 v3, v5, 4, s%d", S_TMP)
    for c in range(3):
        part_of(c, 256)
        a("v_add_u32 v%d, s%d, v3", EA + 2 + c, S_TMP + 3)
    a("v_and_b32 v3, 1, v5")
    a("v_lshlrev_b32 v3, 1, v3")
    a("v_lshrrev_b32 v4, 1, v5")
    a("v_add_u32 v3, v3, v4")
    a("s_lshl_b32 s%d, s%d, 2", S_TMP, SHD)
    a("v_add_u32 v3, s%d, v3", S_TMP)
    a("v_lshrrev_b32 v4, 1, v8")
    a("v_xor_b32 v3, v3, v4")
    a("v_lshlrev_b32 v3, 4, v3")
    a("v_lshl_add_u32 v3, v8, 7, v3")
    a("s_mul_i32 s%d, s%d, %d", S_TMP + 2, SSH, 64 * 128)
    a("s_add_u32 s%d, s%d, %d", S_TMP + 2, S_TMP + 2, E + 16 * 128)
    for c in range(3):
        part_of(c, REG)
        a("s_add_u32 s%d, s%d, s%d", S_TMP, S_TMP + 2, S_TMP + 3)
        a("v_add_u32 v%d, s%d, v3", EA + 5 + c, S_TMP)
    a("s_add_u32 s%d, s%d, %d", S_TMP, S_TMP + 3, E)
    a("v_add_u32 v%d, s%d, v3", EA + 8, S_TMP)
    attn_setup()
    G1ORD = [(i, j if i % 2 == 0 else 3 - j) for i in range(4) for j in range(4)] + [(4, j) for j in range(5)] + [(5, 4 - j) for j in range(5)]
    if OPT.get("snake", 1) == 2:
        G1ORD = [(4, 4), (5, 4)] + [(5 - i if j % 2 == 0 else i, j) for j in range(4) for i in range(6)]
    if not OPT.get("snake", 1): G1ORD = [(i, j) for i in range(6) for j in range(4)] + [(4, 4), (5, 4)]
    def mf(st):
        L = G1ORD
        return ["v_mfma_f32_16x16x32_bf16 v[%d:%d], v[%d:%d], v[%d:%d], v[%d:%d]" %
                (acc(i, j), acc(i, j) + 3, fA(st, i), fA(st, i) + 3, fB(st, j), fB(st, j) + 3, acc(i, j), acc(i, j) + 3)
                for (i, j) in L]
    def rd(st, ks):
        L = []
        L += frag_reads("km", 64, adA, 0, ks, fA(st, 0))
        for j in range(4): L += frag_reads("kc", 0, adB, j, ks, fB(st, j))
        for i in range(1, 6): L += frag_reads("km", 64, adA, i, ks, fA(st, i))
        L += frag_reads("kc", 0, adH, 0, ks, fB(st, 4))
        return L
    SB = FR
    TV = SB + 36
    pr = lambda r: "v[%d:%d]" % (r, r + 1)
    def g1_final():
        for j in range(4): a("ds_read_b64 v[%d:%d], v%d offset:%d", SB + 2 * j, SB + 2 * j + 1, EA, j * 128)
        a("ds_read_b64 v[%d:%d], v%d", SB + 8, SB + 9, EA + 1)
        for c in range(3):
            for i in range(2):
                a("ds_read_b128 v[%d:%d], v%d offset:%d", SB + 12 + 4 * (2 * c + i), SB + 15 + 4 * (2 * c + i), EA + 2 + c, i * 64)
        M = dict(zip(G1ORD, mf(1)))
        units = []
        for c in range(3):
            for j in range(5 if c == 2 else 4):
                c0_, c1_ = acc(2 * c, j), acc(2 * c + 1, j)
                d = ED + 4 * (len(units) & 3)
                prs = [(c0_, SB + 12 + 8 * c), (c0_ + 2, SB + 14 + 8 * c), (c1_, SB + 16 + 8 * c), (c1_ + 2, SB + 18 + 8 * c)]
                w = ["v_pk_mul_f32 %s, %s, %s op_sel:[0,1] op_sel_hi:[1,1]" % (pr(TV + 2 * q), pr(cs), pr(SB + 2 * j)) for q, (x, cs) in enumerate(prs)]
                w += ["v_pk_fma_f32 %s, %s, %s, %s op_sel:[0,0,0] op_sel_hi:[1,0,1]" % (pr(x), pr(x), pr(SB + 2 * j), pr(TV + 2 * q)) for q, (x, cs) in enumerate(prs)]
                w += ["v_cvt_pk_bf16_f32 v%d, v%d, v%d" % (d + q, x, x + 1) for q, (x, cs) in enumerate(prs)]
                w += ["s_nop 1", "v_permlane16_swap_b32 v%d, v%d" % (d, d + 2), "v_permlane16_swap_b32 v%d, v%d" % (d + 1, d + 3)]
                w += ["ds_write_b128 v%d, v[%d:%d] offset:%d" % (EA + 5 + c, d, d + 3, j * 2048) if j < 4 else "ds_write_b128 v%d, v[%d:%d]" % (EA + 8, d, d + 3)]
                units.append(([M[(2 * c, j)], M[(2 * c + 1, j)]], w))
        overlap_final(a, units, after_lead=lambda: a("s_waitcnt lgkmcnt(0)"))
        a("s_waitcnt lgkmcnt(0)")
    cloop(a, name, mf, rd, adA + adB + adH, S, stage, final=g1_final)

    a.label(name + "_attn")
    a("s_barrier")
    stamp(a, 5)
    if OPT.get("stamp"): a("s_waitcnt lgkmcnt(0)")
    def blk(p): return 24 + 48 * p
    for p in range(2):
        b = blk(p)
        a("ds_read_b128 v[%d:%d], v226 offset:%d", b, b + 3, 2048 + 128 * p)
        a("ds_read_b128 v[%d:%d], v226 offset:%d", b + 4, b + 7, REG + 128 * p)
        a("ds_read_b128 v[%d:%d], v226 offset:%d", b + 8, b + 11, REG + 2048 + 128 * p)
    for p in range(2):
        b = blk(p)
        for dt in range(2):
            for bb in range(2):
                d = b + 12 + 4 * dt + 2 * bb
                a("ds_read_b64_tr_b16 v[%d:%d], v227 offset:%d", d, d + 1, 128 * p + 2048 * bb + 8 * dt)
    a("s_waitcnt lgkmcnt(8)")
    for p in range(2):
        b = blk(p)
        a("v_mfma_f32_16x16x32_bf16 v[%d:%d], v[%d:%d], v[%d:%d], 0", b + 20, b + 23, b + 4, b + 7, b, b + 3)
        a("v_mfma_f32_16x16x32_bf16 v[%d:%d], v[%d:%d], v[%d:%d], 0", b + 24, b + 27, b + 8, b + 11, b, b + 3)
    a("s_nop 7")
    both = lambda f: [f(blk(p)) for p in range(2)]
    for p in range(2):
        b = blk(p)
        for r in range(4):
            a("v_cndmask_b32 v%d, v%d, v%d, s[56:57]", b + 20 + r, b + 24 + r, b + 20 + r)
    for p in range(2):
        b = blk(p)
        a("v_cvt_pk_bf16_f32 v%d, v%d, v%d", b + 24, b + 20, b + 21)
        a("v_cvt_pk_bf16_f32 v%d, v%d, v%d", b + 25, b + 22, b + 23)
    for p in range(2):
        b = blk(p)
        for q in range(2):
            a("v_lshlrev_b32 v%d, 16, v%d", b + 20 + 2 * q, b + 24 + q)
            a("v_and_b32 v%d, 0xffff0000, v%d", b + 21 + 2 * q, b + 24 + q)
    for p in range(2):
        b = blk(p)
        for r in range(4): a("v_mul_f32 v%d, s58, v%d", b + 20 + r, b + 20 + r)
    for p in range(2):
        b = blk(p)
        a("v_cvt_pk_bf16_f32 v%d, v%d, v%d", b + 24, b + 20, b + 21)
        a("v_cvt_pk_bf16_f32 v%d, v%d, v%d", b + 25, b + 22, b + 23)
    for p in range(2):
        b = blk(p)
        for q in range(2):
            a("v_lshlrev_b32 v%d, 16, v%d", b + 20 + 2 * q, b + 24 + q)
            a("v_and_b32 v%d, 0xffff0000, v%d", b + 21 + 2 * q, b + 24 + q)
    for p in range(2):
        b = blk(p)
        for r in range(4): a("v_fma_f32 v%d, v%d, s59, v%d", b + 20 + r, b + 20 + r, AM + r)
    for p in range(2):
        b = blk(p)
        a("v_max3_f32 v%d, v%d, v%d, v%d", b + 24, b + 20, b + 21, b + 22)
    for p in range(2):
        b = blk(p)
        a("v_max_f32 v%d, v%d, v%d", b + 24, b + 24, b + 23)
    def xreduce(op, off):
        for sw in ("v_permlane16_swap_b32", "v_permlane32_swap_b32"):
            for p in range(2):
                b = blk(p)
                a("v_mov_b32 v%d, v%d", b + off + 1, b + off)
            a("s_nop 1")
            for p in range(2):
                b = blk(p)
                a("%s v%d, v%d", sw, b + off, b + off + 1)
            a("s_nop 0")
            for p in range(2):
                b = blk(p)
                a("%s v%d, v%d, v%d", op, b + off, b + off, b + off + 1)
    xreduce("v_max_f32", 24)
    for p in range(2):
        b = blk(p)
        for r in range(4): a("v_sub_f32 v%d, v%d, v%d", b + 20 + r, b + 20 + r, b + 24)
    for p in range(2):
        b = blk(p)
        for r in range(4): a("v_exp_f32 v%d, v%d", b + 20 + r, b + 20 + r)
    for p in range(2):
        b = blk(p)
        a("v_add_f32 v%d, v%d, v%d", b + 24, b + 20, b + 21)
        a("v_add_f32 v%d, v%d, v%d", b + 25, b + 22, b + 23)
    for p in range(2):
        b = blk(p)
        a("v_add_f32 v%d, v%d, v%d", b + 24, b + 24, b + 25)
    xreduce("v_add_f32", 24)
    for p in range(2):
        b = blk(p)
        a("v_rcp_f32 v%d, v%d", b + 24, b + 24)
    a("s_nop 0")
    for p in range(2):
        b = blk(p)
        for r in range(4): a("v_mul_f32 v%d, v%d, v%d", b + 20 + r, b + 20 + r, b + 24)
    for p in range(2):
        b = blk(p)
        a("v_cvt_pk_bf16_f32 v%d, v%d, v%d", b + 24, b + 20, b + 21)
        a("v_cvt_pk_bf16_f32 v%d, v%d, v%d", b + 25, b + 22, b + 23)
    for p in range(2):
        b = blk(p)
        a("v_cndmask_b32 v%d, 0, v%d, s[56:57]", b + 28, b + 24)
        a("v_cndmask_b32 v%d, 0, v%d, s[56:57]", b + 29, b + 25)
        a("v_cndmask_b32 v%d, v%d, 0, s[56:57]", b + 30, b + 24)
        a("v_cndmask_b32 v%d, v%d, 0, s[56:57]", b + 31, b + 25)
    a("s_waitcnt lgkmcnt(0)")
    a("s_nop 0")
    for p in range(2):
        b = blk(p)
        for dt in range(2):
            a("v_mfma_f32_16x16x32_bf16 v[%d:%d], v[%d:%d], v[%d:%d], 0", b + 32 + 4 * dt, b + 35 + 4 * dt,
              b + 12 + 4 * dt, b + 15 + 4 * dt, b + 28, b + 31)
    a("s_nop 7")
    for p in range(2):
        b = blk(p)
        for q in range(4):
            a("v_cvt_pk_bf16_f32 v%d, v%d, v%d", b + 40 + q, b + 32 + 2 * q, b + 33 + 2 * q)
        a("buffer_store_dwordx4 v[%d:%d], v225, s[16:19], 0 offen offset:%d%s", b + 40, b + 43, 2048 * p, STF())
    stamp(a, 6)
    stamp_flush(a, name, 7)
    if not next_cut(name):
        finish(a, name, lambda a: (a("s_add_u32 s%d, s%d, %d", S_TMP, S_TB, C12), a("s_lshl_b32 s%d, s%d, 8", S_TMP, S_TMP)))
    a.label(name + "_done")
    a("s_endpgm")
    assert VTOP == 216
    GEMM_VTOP[name] = ED + 16
    return LCS + 768

def build():
    body = Asm()
    for c in str(OPT.get("cuts", "")).split("_"):
        if c: CUTS.add(c)
    def wm(a, ka, da, kb, db):
        a("s_cmp_eq_u32 s%d, 0", S_LAYER)
        a("s_cselect_b32 s%d, %d, %d", S_WM, OPT.get(ka, da) - 1, OPT.get(kb, db) - 1)
    def slot(a, sreg, base, shift=0):
        a("s_lshr_b32 s%d, s%d, %d", S_TMP, sreg, shift)
        a("s_add_u32 s%d, s%d, %d", S_TMP, S_TMP, base)
        a("s_lshl_b32 s%d, s%d, 8", S_TMP, S_TMP)
        a("s_mov_b32 s%d, s%d", S_TMP + 2, S_TMP)
    lds = {}
    lds["g1"] = gen_g1(body, "g1", W=OPT.get("W1", 2))

    def g2_ptrs(a, ph):
        if ph == 0:
            a("s_load_dwordx2 s[4:5], s[0:1], %d", ARG["ws"])
            a("s_load_dwordx2 s[6:7], s[0:1], %d", ARG["x"])
            a("s_load_dwordx2 s[30:31], s[0:1], %d", ARG["wo"])
        elif ph == "L":
            srd(a, 8, 30, 0, 1024 * 1024 * 2)
            srd(a, 12, 4, WS["O"], ACT_BYTES)
        else:
            sel_ptr(a, 20, 1, WS["X2"])
            srd(a, 16, 4, WS["X1"], ACT_BYTES)
            srd(a, 56, 4, WS["H"], 2048 * LDH)
            srd(a, 60, 4, WS["EX"], ST_BYTES)
    def g2_decode(a):
        a("s_and_b32 s%d, s2, 3", S_TMP)
        a("s_lshl_b32 s%d, s%d, 2", S_TMP, S_TMP)
        a("s_bfe_u32 s%d, s2, 0x20003", S_TMP + 1)
        a("s_add_u32 s%d, s%d, s%d", S_TB, S_TMP, S_TMP + 1)
        a("s_bfe_u32 s%d, s2, 0x10002", S_TMP)
        a("s_lshl_b32 s%d, s%d, 3", S_TMP, S_TMP)
        a("s_lshr_b32 s%d, s2, 5", S_TMP + 2)
        a("s_add_u32 s%d, s%d, s%d", S_TA, S_TMP, S_TMP + 2)
        a("s_add_u32 s%d, s%d, s%d", S_J, S_TMP + 1, S_TMP + 2)
        a("s_mov_b32 s%d, 0", S_KB)
    lds["g2"] = gen_gemm(body, "g2", 256, Op("km", 64, 2048), Op("kc", 128, 2048), 1, 4, 16, 4, OPT.get("W2", 2), g2_ptrs, g2_decode,
                         "resid", "ln2", 2048, cnt=lambda a: slot(a, S_TA, C23, 1),
                         dep=lambda a, pre: (slot(a, S_TB, C12), wait_counters(a, "g2_dep", 16, 16, pre)), lbase=32768 if OPT.get("latey") else 0)

    def g3_ptrs(a, ph):
        if ph == 0:
            a("s_load_dwordx2 s[4:5], s[0:1], %d", ARG["ws"])
            a("s_load_dwordx2 s[30:31], s[0:1], %d", ARG["w1"])
            a("s_load_dwordx2 s[6:7], s[0:1], %d", ARG["b1"])
        elif ph == "L":
            srd(a, 8, 30, 0, 2048 * 3584 * 2)
            srd(a, 12, 4, WS["H"], 2048 * LDH)
        else:
            srd(a, 20, 6, 0, 3584 * 2)
            srd(a, 16, 4, WS["U"], 1024 * LDU)
    def g3_decode(a):
        a("s_and_b32 s%d, s2, 1", S_TMP)
        a("s_lshl_b32 s%d, s%d, 2", S_TMP, S_TMP)
        a("s_bfe_u32 s%d, s2, 0x20003", S_TMP + 1)
        a("s_add_u32 s%d, s%d, s%d", S_TB, S_TMP, S_TMP + 1)
        a("s_bfe_u32 s%d, s2, 0x20001", S_TMP)
        a("s_mul_i32 s%d, s%d, 7", S_TMP, S_TMP)
        a("s_lshr_b32 s%d, s2, 5", S_TMP + 2)
        a("s_add_u32 s%d, s%d, s%d", S_TA, S_TMP, S_TMP + 2)
        a("s_add_u32 s%d, s%d, s%d", S_J, S_TMP + 1, S_TMP + 2)
        a("s_mov_b32 s%d, 0", S_KB)
        wm(a, "W3a", 4, "W3b", 2)
    def g3_cnt(a):
        a("s_cmp_ge_u32 s%d, 14", S_TA)
        a("s_cselect_b32 s%d, %d, %d", S_TMP, C34 + 1, C34)
        a("s_lshl_b32 s%d, s%d, 1", S_TMP + 1, S_TB)
        a("s_add_u32 s%d, s%d, s%d", S_TMP, S_TMP, S_TMP + 1)
        a("s_lshl_b32 s%d, s%d, 8", S_TMP, S_TMP)
    def g3_spare(a):
        a("s_cmp_ge_u32 s2, 256")
        a("s_cbranch_scc1 g3_done")
        a("s_load_dwordx2 s[4:5], s[0:1], %d", ARG["ws"])
        a("s_load_dwordx2 s[6:7], s[0:1], %d", ARG["w1" if OPT.get("pf") == 2 else "w2"])
        a("s_sub_u32 s3, s2, 224")
        a("v_lshrrev_b32 v2, 6, v0")
        a("v_lshlrev_b32 v1, 4, v0")
        for r in range(4): a("v_mov_b32 v%d, -1", 8 + r)
        a("v_readfirstlane_b32 s%d, v2", S_W)
        a("s_lshl_b32 s13, s3, 17")
        if late_y("g2"):
            a("s_cmp_lt_u32 s%d, 4", S_W)
            a("s_cbranch_scc1 g3_spare_y")
            a("s_barrier")
            a.label("g3_spare_y")
        a("s_waitcnt lgkmcnt(0)")
        ws_adjust(a)
        srd(a, 8, 4, WS["PART"], PART_BYTES)
        for k in range(16):
            a("buffer_store_dwordx4 v[8:11], v1, s[8:11], s13 offen sc1")
            a("s_add_u32 s13, s13, 8192")
        if not next_cut("g3"):
            a("s_mov_b32 s%d, %d", S_TMP, CR * 256)
            count_in(a, "g3_spare_cin")
        a("s_cmp_lg_u32 s%d, 0", S_LAYER)
        a("s_cbranch_scc1 g3_spare_end")
        if OPT.get("pf", 0) == 2:
            srd(a, 8, 6, 0, 2048 * 3584 * 2)
            a("s_lshl_b32 s3, s3, 16")
            a("s_add_u32 s3, s3, %d", OPT.get("pfrow", 768) * 7168)
            a("s_mov_b32 s12, %d", -(-(2048 - OPT.get("pfrow", 768)) * 7168 // (2 * MB)))
            a.label("g3_spare_loop")
            for k in range(8):
                a("buffer_load_dwordx4 v[4:7], v1, s[8:11], s3 offen")
                a("s_add_u32 s3, s3, 8192")
            a("s_add_u32 s3, s3, %d", 2 * MB - 65536)
            a("s_waitcnt vmcnt(8)")
            a("s_sub_u32 s12, s12, 1")
            a("s_cmp_lg_u32 s12, 0")
            a("s_cbranch_scc1 g3_spare_loop")
            a("s_waitcnt vmcnt(0)")
        elif OPT.get("pf", 0):
            srd(a, 8, 6, 0, 3584 * 2048 * 2)
            a("s_cmp_ge_u32 s3, 16")
            a("s_cselect_b32 s12, %d, 0", (1792 - 1024) * 4096)
            a("s_lshl_b32 s3, s3, 18")
            a("s_add_u32 s3, s3, s12")
            a("s_mov_b32 s12, 4")
            a.label("g3_spare_loop")
            for k in range(8):
                a("buffer_load_dwordx4 v[4:7], v1, s[8:11], s3 offen")
                a("s_add_u32 s3, s3, 8192")
            a("s_waitcnt vmcnt(8)")
            a("s_sub_u32 s12, s12, 1")
            a("s_cmp_lg_u32 s12, 0")
            a("s_cbranch_scc1 g3_spare_loop")
            a("s_waitcnt vmcnt(0)")
        a.label("g3_spare_end")
        if next_cut("g3"): a("s_endpgm")
        else:
            if late_y("g3"):
                a("s_cmp_ge_u32 s%d, 4", S_W)
                a("s_cbranch_scc1 g4_in")
                a("s_barrier")
            go_next(a, "g3")
    lds["g3"] = gen_gemm(body, "g3", 224, Op("km", 128, 7168), Op("km", 128, LDH), 2, 2, 32, 4, "s", g3_ptrs, g3_decode,
                         "biasA", "gelu", LDU, spare=g3_spare, cnt=g3_cnt,
                         dep=lambda a, pre: (slot(a, S_TB, C23), wait_counters(a, "g3_dep", 32, 32, pre)))

    def g4_ptrs(a, ph):
        if ph == 0:
            a("s_load_dwordx2 s[4:5], s[0:1], %d", ARG["ws"])
            a("s_load_dwordx2 s[6:7], s[0:1], %d", ARG["out"])
            a("s_load_dwordx2 s[30:31], s[0:1], %d", ARG["w2"])
            a("s_load_dwordx2 s[34:35], s[0:1], %d", ARG["b2"])
        elif ph == "L":
            srd(a, 8, 4, WS["U"], 1024 * LDU)
            srd(a, 12, 30, 0, 3584 * 2048 * 2)
        else:
            srd(a, 20, 4, WS["X1"], ACT_BYTES)
            srd(a, 56, 34, 0, 4096)
            sel_ptr(a, 16, 0, LOFF + WS["X2"])
            srd(a, 60, 4, LOFF + WS["ST"], ST_BYTES)
            srd(a, 84, 4, WS["PART"], PART_BYTES)
    def g4_decode(a):
        a("s_bfe_u32 s%d, s2, 0x10001", S_TMP)
        a("s_lshl_b32 s%d, s%d, 2", S_TMP, S_TMP)
        a("s_bfe_u32 s%d, s2, 0x20003", S_TMP + 1)
        a("s_add_u32 s%d, s%d, s%d", S_TA, S_TMP, S_TMP + 1)
        a("s_bfe_u32 s%d, s2, 0x10002", S_TMP)
        a("s_lshl_b32 s%d, s%d, 3", S_TMP, S_TMP)
        a("s_lshr_b32 s%d, s2, 5", S_TMP + 2)
        a("s_add_u32 s%d, s%d, s%d", S_TB, S_TMP, S_TMP + 2)
        a("s_and_b32 s%d, s2, 1", S_ROLE)
        a("s_add_u32 s%d, s%d, s%d", S_J, S_TMP + 1, S_TMP + 2)
        a("s_lshl_b32 s%d, s%d, 4", S_PAIR, S_TA)
        a("s_add_u32 s%d, s%d, s%d", S_PAIR, S_PAIR, S_TB)
        a("s_mul_i32 s%d, s%d, 28", S_KB, S_ROLE)
        wm(a, "W4a", 4, "W4b", 2)
    def g4_dep(a, pre):
        a("s_lshl_b32 s%d, s%d, 1", S_TMP, S_TA)
        a("s_add_u32 s%d, s%d, s%d", S_TMP, S_TMP, S_ROLE)
        a("s_add_u32 s%d, s%d, %d", S_TMP, S_TMP, C34)
        a("s_lshl_b32 s%d, s%d, 8", S_TMP, S_TMP)
        a("s_mov_b32 s%d, %d", S_TMP + 2, CR * 256)
        wait_counters(a, "g4_dep", 14, 32, pre)
    lds["g4"] = gen_gemm(body, "g4", 256, Op("kc", 128, LDU), Op("km", 128, 4096), 2, 2, 28, 4, "s", g4_ptrs, g4_decode,
                         "resid+biasB", "plain", 2048, stats=True, split=True, cnt=lambda a: slot(a, S_TB, C41), dep=g4_dep, wop="B")

    seq = [(p, ab) for ab in "ab" for p in PHASES]
    launches = []
    for k, (p, ab) in enumerate(seq):
        if k == 0 or prev_cut(p): launches.append([p + ab + "_kernel", 0, 0])
        launches[-1][1] = max(launches[-1][1], GEMM_VTOP[p])
        launches[-1][2] = LFLAG + 256
    body.label("code_end")
    for kn, vt, l in launches: kernel_desc(body, kn, vt, NSGPR)
    head = open("/code/%s.s.ref" % NAME).read().split("; Override launch geometry")[0]
    lines = ["; @launch kernel=%s grid=(256,1,1) block=(512,1,1) lds=%d" % (kn, l) for kn, vt, l in launches]
    return head + "\n".join(lines) + "\n" + '.amdgcn_target "amdgcn-amd-amdhsa--gfx950"\n' + body.text()

if __name__ == "__main__":
    out = sys.argv[1] if len(sys.argv) > 1 else "/code/%s.s" % NAME
    for o in sys.argv[2:]:
        k, _, v = o.partition("=")
        OPT[k] = (int(v) if v.isdigit() and k != "cuts" else v) if v else 1
    text = build()
    open(out, "w").write(text)
    import json
    json.dump(KID, open(out + ".kid", "w"))
    hazard.check(text)
```

```python
import sys, struct, math
from asmlib import *
import hazard

NAME = "interleave_layers__sliding_local_dilated__mixer_token_mlp__prompt"
MB = 1 << 20
WS = dict(ST=0, CS=1 * MB, EX=2 * MB, CNT=3 * MB, O=4 * MB, X1=8 * MB, H=12 * MB, U=17 * MB, X2=25 * MB, PART=29 * MB)
LDH = 2304
LDU = 8192
ST_BYTES = 16 * 2048 * 8
CS_BYTES = 16 * 3072 * 4
PART_BYTES = 256 * 16384
ARG = dict(x=0, wqkv=8, wo=16, bx=24, w1=32, b1=40, w2=48, b2=56, out=64, dbg=72, ws=80)
ACT_BYTES = 2048 * 1024 * 2

OPT = {}
for _o in sys.argv[2:]:
    _k, _, _v = _o.partition('=')
    if _k == 'LDH': LDH = int(_v)
    if _k == 'LDU': LDU = int(_v)

def STF():
    return {0: "", 1: " sc1", 2: " nt", 3: " sc0 sc1", 4: " sc0 sc1 nt"}[OPT.get("stf", 1)]

def ASC():
    return " sc1" if OPT.get("asc", 1) else ""

def f32(x):
    return struct.unpack("<I", struct.pack("<f", x))[0]

LOFF = 40 * MB
STAMP_OFF = 34 * MB
KID = {}
def stamp(a, k):
    if OPT.get("stamp"):
        a("%s s[%d:%d]", "s_memtime" if OPT["stamp"] == 2 else "s_memrealtime", 64 + 2 * k, 65 + 2 * k)

def stamp_flush(a, name, n, wsreg=4, waitvm=True, extra=False):
    if not OPT.get("stamp"): return
    kid = KID.setdefault(name, len(KID))
    if waitvm: a("s_waitcnt vmcnt(0)")
    a("%s s[%d:%d]", "s_memtime" if OPT["stamp"] == 2 else "s_memrealtime", 64 + 2 * n, 65 + 2 * n)
    a("s_waitcnt lgkmcnt(0)")
    a("s_add_u32 s84, s%d, 0x%x", wsreg, STAMP_OFF + kid * 512 * 1024)
    a("s_addc_u32 s85, s%d, 0", wsreg + 1)
    a("s_mov_b32 s86, 0x80000")
    a("s_mov_b32 s87, 0x20000")
    a("v_lshrrev_b32 v1, 6, v0")
    a("v_lshlrev_b32 v1, 6, v1")
    a("s_lshl_b32 s88, s2, 9")
    a("v_add_u32 v1, s88, v1")
    for k in range(n + 1 + extra):
        a("v_mov_b32 v2, s%d", 64 + 2 * k)
        a("buffer_store_dword v2, v1, s[84:87], 0 offen offset:%d", 4 * k)
        a("s_nop 1")

def srd(a, d, p, off, nbytes):
    if off:
        a("s_add_u32 s%d, s%d, 0x%x", d, p, off)
        a("s_addc_u32 s%d, s%d, 0", d + 1, p + 1)
    else:
        a("s_mov_b32 s%d, s%d", d, p)
        a("s_mov_b32 s%d, s%d", d + 1, p + 1)
    a("s_mov_b32 s%d, 0x%x", d + 2, nbytes)
    a("s_mov_b32 s%d, 0x20000", d + 3)

def round_bf16_scalar(a, v):
    a("v_cvt_pk_bf16_f32 v%d, v%d, v%d", v, v, v)
    a("v_lshlrev_b32 v%d, 16, v%d", v, v)

class Op:
    def __init__(self, kind, T, ld):
        self.kind, self.T, self.ld = kind, T, ld
        self.bytes = T * 128
        self.n = self.bytes // 1024
        self.npw = self.n // 4
        self.kadv = 128 if kind == "kc" else 64 * ld

S_TA, S_TB, S_KB, S_J, S_W = 24, 25, 26, 27, 28
S_T, S_SLOT, S_OFA, S_OFB = 32, 33, 34, 35
S_LA, S_LB, S_M0A, S_M0B = 36, 37, 38, 39
S_TMP = 40
S_CNT, S_DELTA, S_SI = 48, 49, 50
S_ST = 52
S_DP, S_DN = 51, 29
S_N, S_ROLE, S_PAIR, S_OWN, S_OTH, S_WM = 90, 91, 92, 93, 94, 95
S_LAYER, S_LOFF = 96, 97
NSGPR = 100
C12, C23, C34, C41, CR = 0, 16, 24, 40, 56
CUTS = set()

def loader_voffs(a, op, stile, vb, extra_cols=0):
    ld = op.ld
    a("s_mov_b32 s%d, %d", S_TMP, ld)
    if op.kind == "kc":
        a("v_lshrrev_b32 v3, 3, v2")
        a("v_mul_lo_u32 v3, v3, s%d", S_TMP)
        a("v_lshrrev_b32 v4, 4, v2")
        a("v_xor_b32 v4, v4, v2")
        a("v_and_b32 v4, 7, v4")
        a("v_lshl_add_u32 v3, v4, 4, v3")
        a("s_mul_i32 s%d, s%d, %d", S_TMP + 1, stile, op.T * ld)
        a("s_mul_i32 s%d, s%d, %d", S_TMP + 2, S_W, 8 * op.npw * ld)
        a("s_add_u32 s%d, s%d, s%d", S_TMP + 1, S_TMP + 1, S_TMP + 2)
        a("v_xor_b32 v4, 64, v3")
        for i in range(op.npw):
            a("s_add_u32 s%d, s%d, %d", S_TMP + 2, S_TMP + 1, i * 8 * ld)
            a("v_add_u32 v%d, s%d, v%d", vb + i, S_TMP + 2, 3 + (i & 1))
    elif op.T == 128:
        a("v_lshrrev_b32 v4, 4, v2")
        a("v_mul_lo_u32 v3, v4, s%d", S_TMP)
        a("v_lshlrev_b32 v4, 1, v4")
        a("v_xor_b32 v4, v4, v2")
        a("v_and_b32 v4, 15, v4")
        a("v_lshl_add_u32 v3, v4, 4, v3")
        a("s_mul_i32 s%d, s%d, 256", S_TMP + 1, stile)
        a("s_mul_i32 s%d, s%d, %d", S_TMP + 2, S_W, 16 * ld)
        a("s_add_u32 s%d, s%d, s%d", S_TMP + 1, S_TMP + 1, S_TMP + 2)
        a("v_xor_b32 v4, 128, v3")
        for i in range(4):
            a("s_add_u32 s%d, s%d, %d", S_TMP + 2, S_TMP + 1, i * 4 * ld)
            a("v_add_u32 v%d, s%d, v%d", vb + i, S_TMP + 2, 3 + (i >> 1))
    elif op.T == 64:
        a("v_lshrrev_b32 v3, 3, v2")
        a("v_mul_lo_u32 v3, v3, s%d", S_TMP)
        a("v_bfe_u32 v4, v2, 4, 1")
        a("v_lshlrev_b32 v4, 1, v4")
        a("v_xor_b32 v4, v4, v2")
        a("v_and_b32 v4, 7, v4")
        a("v_lshl_add_u32 v3, v4, 4, v3")
        a("s_mul_i32 s%d, s%d, 128", S_TMP + 1, stile)
        a("s_mul_i32 s%d, s%d, %d", S_TMP + 2, S_W, 16 * ld)
        a("s_add_u32 s%d, s%d, s%d", S_TMP + 1, S_TMP + 1, S_TMP + 2)
        a("v_xor_b32 v4, 64, v3")
        for i in range(2):
            a("s_add_u32 s%d, s%d, %d", S_TMP + 2, S_TMP + 1, i * 8 * ld + extra_cols * 2)
            a("v_add_u32 v%d, s%d, v%d", vb + i, S_TMP + 2, 3 + i)
    else:
        raise ValueError

def lane_parts(a):
    a("v_lshrrev_b32 v5, 4, v2")
    a("v_bfe_u32 v6, v2, 2, 2")
    a("v_and_b32 v7, 3, v2")
    a("v_and_b32 v8, 15, v2")

def read_addrs_kc(a, opbase, srow, vb):
    a("v_lshrrev_b32 v3, 1, v8")
    a("v_xor_b32 v3, v3, v5")
    a("v_lshlrev_b32 v3, 4, v3")
    a("v_lshl_add_u32 v3, v8, 7, v3")
    if srow is not None:
        a("s_lshl_b32 s%d, s%d, 7", S_TMP, srow)
        a("s_add_u32 s%d, s%d, %d", S_TMP, S_TMP, opbase)
        a("v_add_u32 v%d, s%d, v3", vb, S_TMP)
    else:
        a("v_add_u32 v%d, %d, v3", vb, opbase)
    a("v_xor_b32 v%d, 64, v%d", vb + 1, vb)

def read_addr_km(a, T, sbase, stile, i, vd, sxor=None):
    rowb = T * 2
    if T == 128:
        a("v_and_b32 v3, 1, v5")
        a("v_lshl_or_b32 v3, v3, 2, v6")
    else:
        a("v_and_b32 v3, 1, v5")
        a("v_lshlrev_b32 v3, 1, v3")
        a("v_lshrrev_b32 v4, 1, v6")
        a("v_or_b32 v3, v3, v4")
    a("s_add_u32 s%d, s%d, %d", S_TMP, stile, i)
    if sxor is not None: a("s_xor_b32 s%d, s%d, s%d", S_TMP, S_TMP, sxor)
    a("v_xor_b32 v3, s%d, v3", S_TMP)
    a("v_lshlrev_b32 v3, 5, v3")
    a("v_lshl_add_u32 v3, v7, 3, v3")
    a("v_lshl_add_u32 v4, v5, 3, v6")
    a("v_lshl_add_u32 v3, v4, %d, v3", rowb.bit_length() - 1)
    a("v_add_u32 v%d, s%d, v3", vd, sbase)

def frag_reads(kind, T, addr_regs, idx, ks, dst):
    if kind == "kc":
        return ["ds_read_b128 v[%d:%d], v%d offset:%d" % (dst, dst + 3, addr_regs[ks], idx * 2048)]
    rowb = T * 2
    return ["ds_read_b64_tr_b16 v[%d:%d], v%d offset:%d" % (dst + 2 * h, dst + 2 * h + 1, addr_regs[idx], h * 4 * rowb + ks * 32 * rowb)
            for h in range(2)]

BUD = [2]
def interleave(a, mfmas, reads, tail=()):
    reads = list(reads); tail = list(tail)
    if OPT.get("noreads"): reads = []
    if OPT.get("nomfma"): mfmas = ["s_nop 0"] * 2
    for m in mfmas:
        a(m)
        budget = BUD[0]
        while reads and budget > 0:
            cost = 2 if "b128" in reads[0] else 1
            if cost > budget: break
            a(reads.pop(0)); budget -= cost
        if not reads:
            while tail and budget > 0:
                a(tail.pop(0)); budget -= 1
    for r in reads: a(r)
    for t in tail: a(t)

def loader_loop(a, name, issue, nW, nA, N, S, stage_bytes, dep=None, events=(), tail=None):
    n = nW + nA
    early = OPT.get("early", 2)
    def adv():
        a("s_add_u32 s%d, s%d, %d", S_SLOT, S_SLOT, stage_bytes)
        a("s_add_u32 s%d, s%d, 1", S_T, S_T)
    full = early == 2 and not events
    for part in (("W", "A") if early else (None,)):
        if dep and OPT.get("prepoll", 0) and not OPT.get("latey"):
            dep(True if part == "W" else ((S if full else S - 1) * nW if early else None))
        elif part != "W" and dep: dep(None)
        a("s_mov_b32 s%d, 0", S_T)
        a("s_mov_b32 s%d, 0", S_SLOT)
        a.label("%s_ld_p%s" % (name, part))
        issue(part)
        adv()
        a("s_cmp_lt_u32 s%d, %d", S_T, S if (full and part == "W") else S - 1)
        a("s_cbranch_scc1 %s_ld_p%s", name, part)
    if full:
        special = {S + k: (S - 2 - k) * nA + k * n for k in range(S - 2)}
        a("s_waitcnt vmcnt(%d)", (S - 2) * nA)
        a("s_barrier")
        issue("A")
        a("s_mov_b32 s%d, 0", S_SLOT)
        a("s_add_u32 s%d, s%d, 1", S_T, S_T)
    else:
        special = {S - 1 + k: (S - 2 - k) * nA + k * n for k in range(S - 2)} if early else {}
        a("s_waitcnt vmcnt(%d)", special.pop(S - 1, (S - 2) * n))
        a("s_branch %s_ld_bar", name)
    a.label(name + "_ld_loop")
    for T in special:
        a("s_cmp_eq_u32 s%d, %d", S_T, T)
        a("s_cbranch_scc1 %s_ld_s%d", name, T)
    for k, (at, extra, fn) in enumerate(events):
        if extra:
            a("s_sub_u32 s%d, s%d, s%d", S_TMP, S_T, at)
            a("s_sub_u32 s%d, s%d, 1", S_TMP, S_TMP)
            a("s_cmp_lt_u32 s%d, %d", S_TMP, S - 1)
            a("s_cbranch_scc1 %s_ld_w%d", name, k)
    a("s_waitcnt vmcnt(%d)", (S - 2) * n)
    a.label(name + "_ld_bar")
    a("s_barrier")
    issue(None)
    for k, (at, extra, fn) in enumerate(events):
        a("s_cmp_eq_u32 s%d, s%d", S_T, at)
        a("s_cbranch_scc1 %s_ld_h%d", name, k)
        a.label(name + "_ld_c%d" % k)
    adv()
    a("s_cmp_eq_u32 s%d, %d", S_SLOT, S * stage_bytes)
    a("s_cselect_b32 s%d, 0, s%d", S_SLOT, S_SLOT)
    a("s_cmp_lt_u32 s%d, %d", S_T, N)
    a("s_cbranch_scc1 %s_ld_loop", name)
    if tail: tail()
    else:
        for t in range(N - S + 1, N):
            a("s_waitcnt vmcnt(%d)", (N - 1 - t) * n)
            a("s_barrier")
    if events or special:
        a("s_branch %s_ld_end", name)
        for T, c in special.items():
            a.label(name + "_ld_s%d" % T)
            a("s_waitcnt vmcnt(%d)", c)
            a("s_branch %s_ld_bar", name)
        for k, (at, extra, fn) in enumerate(events):
            if extra:
                a.label(name + "_ld_w%d" % k)
                a("s_waitcnt vmcnt(%d)", (S - 2) * n + extra)
                a("s_branch %s_ld_bar", name)
            a.label(name + "_ld_h%d" % k)
            fn()
            a("s_branch %s_ld_c%d", name, k)
        a.label(name + "_ld_end")

def kidx_offsets(a, W, advA, advB, wrap=0):
    wm = ("s%d" % S_WM) if W == "s" else str(W - 1)
    a("s_add_u32 s%d, s%d, s%d", S_TMP, S_T, S_J)
    a("s_and_b32 s%d, s%d, %s", S_TMP, S_TMP, wm)
    a("s_andn2_b32 s%d, s%d, %s", S_TMP + 1, S_T, wm)
    a("s_or_b32 s%d, s%d, s%d", S_TMP, S_TMP, S_TMP + 1)
    a("s_add_u32 s%d, s%d, s%d", S_TMP, S_TMP, S_KB)
    if wrap: a("s_and_b32 s%d, s%d, %d", S_TMP, S_TMP, wrap - 1)
    a("s_mul_i32 s%d, s%d, %d", S_OFA, S_TMP, advA)
    a("s_mul_i32 s%d, s%d, %d", S_OFB, S_TMP, advB)

def compute_loop_ctl_init(a, N, S, stage_bytes):
    a("s_mov_b32 s%d, %s", S_CNT, N)
    a("s_mov_b32 s%d, 0", S_SI)
    a("s_mov_b32 s%d, %d", S_DP, stage_bytes)
    a("s_mov_b32 s%d, 0x%x", S_DN, (-(S - 1) * stage_bytes) & 0xffffffff)

def addr_update(addr_regs, S, stage_bytes):
    L = ["s_add_u32 s%d, s%d, 1" % (S_SI, S_SI),
         "s_cmp_eq_u32 s%d, %d" % (S_SI, S),
         "s_cselect_b32 s%d, s%d, s%d" % (S_DELTA, S_DN, S_DP),
         "s_cselect_b32 s%d, 0, s%d" % (S_SI, S_SI)]
    L += ["v_add_u32 v%d, s%d, v%d" % (r, S_DELTA, r) for r in addr_regs]
    L += ["s_sub_u32 s%d, s%d, 1" % (S_CNT, S_CNT), "s_cmp_lg_u32 s%d, 0" % S_CNT]
    return L

def gelu_pairs(a, regs, tmp, cst):
    n = len(regs)
    pr = lambda r: "v[%d:%d]" % (r, r + 1)
    for k, r in enumerate(regs): a("v_pk_mul_f32 %s, %s, %s", pr(tmp + 2 * k), pr(r), pr(r))
    for k, r in enumerate(regs): a("v_pk_fma_f32 %s, %s, %s, %s", pr(tmp + 2 * k), pr(tmp + 2 * k), pr(cst), pr(cst + 2))
    for k, r in enumerate(regs): a("v_pk_mul_f32 %s, %s, %s", pr(tmp + 2 * k), pr(tmp + 2 * k), pr(r))
    for k in range(2 * n): a("v_exp_f32 v%d, v%d", tmp + k, tmp + k)
    for k, r in enumerate(regs): a("v_pk_add_f32 %s, %s, %s", pr(tmp + 2 * k), pr(tmp + 2 * k), pr(cst + 4))
    for k in range(2 * n): a("v_rcp_f32 v%d, v%d", tmp + k, tmp + k)
    for k, r in enumerate(regs): a("v_pk_mul_f32 %s, %s, %s", pr(r), pr(r), pr(tmp + 2 * k))

def cloop(a, name, mf, rd, addrs, S, stage, first=None, mid=None, final=None):
    stamp(a, 2)
    if OPT.get("stamp") or first:
        a("s_barrier")
        stamp(a, 3)
        if first: first()
        if OPT.get("stamp"): a("s_waitcnt lgkmcnt(0)")
        a("s_branch %s_cloop2", name)
    if mid:
        a.label(name + "_mid")
        a("s_waitcnt vmcnt(0)")
        a("s_nop 7")
        mid[1]()
        a("s_nop 1")
        a("s_branch %s_cloop2", name)
    a.raw(".p2align 3")
    a.label(name + "_cloop")
    a("s_barrier")
    if mid:
        a("s_cmp_eq_u32 s%d, %d", S_CNT, mid[0])
        a("s_cbranch_scc1 %s_mid", name)
    a.label(name + "_cloop2")
    BUD[0] = OPT.get("bud_" + name, 2)
    interleave(a, mf(1), rd(0, 0))
    a("s_waitcnt lgkmcnt(0)")
    interleave(a, mf(0), rd(1, 1), addr_update(addrs, S, stage))
    a("s_waitcnt lgkmcnt(0)")
    a("s_cbranch_scc1 %s_cloop", name)
    stamp(a, 4)
    if final: final()
    else:
        for m in mf(1): a(m)

def overlap_final(a, units, lead=3, after_lead=None):
    for u in range(min(lead, len(units))):
        for m in units[u][0]: a(m)
    if after_lead: after_lead()
    for u, (_, work) in enumerate(units):
        ms = list(units[u + lead][0]) if u + lead < len(units) else []
        step = max(1, len(work) // max(1, len(ms)))
        if u + 1 == len(units) or u + lead >= len(units): pass
        for k, w in enumerate(work):
            if ms and k % step == 0: a(ms.pop(0))
            a(w)
        for m in ms: a(m)

GEMM_VTOP = {}
CNT_BYTES = 64 * 256
def count_in(a, label, area=0):
    srd(a, 84, 4, WS["CNT"] + area, CNT_BYTES)
    a("v_mov_b32 v3, s%d", S_TMP)
    a("v_mov_b32 v4, 1")
    a("s_waitcnt vmcnt(0)")
    a("s_barrier")
    a("s_cmp_lg_u32 s%d, 0", S_W)
    a("s_cbranch_scc1 %s", label)
    a("s_mov_b64 exec, 1")
    a("buffer_atomic_add v4, v3, s[84:87], 0 offen sc1")
    a("s_mov_b64 exec, -1")
    a.label(label)

LFLAG = 131072
def wait_counters(a, label, need0, need1, pre=None):
    pid = PHASES.index(label[:2]) + 1
    if pre is None or pre is True:
        a("s_cmp_lg_u32 s%d, 0", S_W)
        a("s_cbranch_scc1 %s_set", label)
        srd(a, 84, 4, WS["CNT"], CNT_BYTES)
        a("v_cmp_eq_u32 vcc, 1, v2")
        a("v_mov_b32 v21, s%d", S_TMP)
        a("v_mov_b32 v23, s%d", S_TMP + 2)
        a("v_cndmask_b32 v21, v21, v23, vcc")
        a("v_mov_b32 v22, %d", need0)
        a("v_mov_b32 v23, %d", need1)
        a("v_cndmask_b32 v22, v22, v23, vcc")
        a("buffer_load_dword v23, v21, s[84:87], 0 offen sc1")
        a.label(label + "_set")
        if pre is True: return
    a("s_lshl_b32 s%d, s%d, 2", S_TMP + 3, S_LAYER)
    a("s_add_u32 s%d, s%d, %d", S_TMP + 3, S_TMP + 3, pid)
    a("s_mov_b32 s%d, 0x800000", S_TMP + 1)
    a("v_mov_b32 v24, %d", LFLAG)
    a("s_cmp_lg_u32 s%d, 0", S_W)
    a("s_cbranch_scc1 %s_lds", label)
    a("s_mov_b32 s%d, 0x40000", S_TMP + 1)
    a("s_waitcnt vmcnt(%d)", pre or 0)
    a.label(label)
    a("v_cmp_lt_u32 vcc, v23, v22")
    a("s_sub_u32 s%d, s%d, 1", S_TMP + 1, S_TMP + 1)
    a("s_cmp_eq_u32 s%d, 0", S_TMP + 1)
    a("s_cbranch_scc1 %s_seen", label)
    a("s_cbranch_vccz %s_seen", label)
    a("s_sleep %d", OPT.get("dslp", 2))
    a("buffer_load_dword v23, v21, s[84:87], 0 offen sc1")
    a("s_waitcnt vmcnt(0)")
    a("s_branch %s", label)
    a.label(label + "_seen")
    a("v_mov_b32 v23, s%d", S_TMP + 3)
    a("ds_write_b32 v24, v23")
    a("s_branch %s_ok", label)
    a.label(label + "_lds")
    a("ds_read_b32 v23, v24")
    a("s_sub_u32 s%d, s%d, 1", S_TMP + 1, S_TMP + 1)
    a("s_waitcnt lgkmcnt(0)")
    a("v_readfirstlane_b32 s%d, v23", S_TMP)
    a("s_cmp_eq_u32 s%d, 0", S_TMP + 1)
    a("s_cbranch_scc1 %s_ok", label)
    a("s_cmp_eq_u32 s%d, s%d", S_TMP, S_TMP + 3)
    a("s_cbranch_scc1 %s_ok", label)
    a("s_sleep 1")
    a("s_branch %s_lds", label)
    a.label(label + "_ok")

PHASES = ["g1", "g2", "g3", "g4"]
def prev_cut(name):
    k = PHASES.index(name)
    return "%d%d" % ((k - 1) % 4 + 1, k + 1) in CUTS
def next_cut(name):
    k = PHASES.index(name)
    return "%d%d" % (k + 1, (k + 1) % 4 + 1) in CUTS

def entry(a, name, ntiles, spare=False):
    for layer, ab in enumerate("ab"):
        if prev_cut(name) or (name == "g1" and layer == 0):
            kernel_header(a, "%s%s_kernel" % (name, ab))
            a("s_mov_b32 s%d, %d", S_LAYER, layer)
            a("s_mov_b32 s%d, 0x%x", S_LOFF, layer * LOFF)
            a("v_mov_b32 v1, %d", LFLAG)
            a("v_mov_b32 v2, 0")
            a("ds_write_b32 v1, v2")
            a("s_branch %s_in", name)
            KERNELS.append("%s%s_kernel" % (name, ab))
    a.raw(".p2align 6")
    a.label(name + "_in")
    a("s_cmp_ge_u32 s2, %d", ntiles)
    a("s_cbranch_scc1 %s_%s", name, "spare" if spare else "done")
    stamp(a, 0)
KERNELS = []

def ws_adjust(a):
    a("s_add_u32 s4, s4, s%d", S_LOFF)
    a("s_addc_u32 s5, s5, 0")

def sel_ptr(a, d, which_layer, off):
    a("s_add_u32 s%d, s4, 0x%x", d, off)
    a("s_addc_u32 s%d, s5, 0", d + 1)
    a("s_cmp_eq_u32 s%d, %d", S_LAYER, which_layer)
    a("s_cselect_b32 s%d, s%d, s6", d, d)
    a("s_cselect_b32 s%d, s%d, s7", d + 1, d + 1)
    a("s_mov_b32 s%d, 0x%x", d + 2, ACT_BYTES)
    a("s_mov_b32 s%d, 0x20000", d + 3)

def late_y(name):
    return OPT.get("latey", 0) and name != "g1" and not next_cut(name)

def go_next(a, name):
    if name == "g4":
        a("s_mov_b32 s%d, 1", S_LAYER)
        a("s_mov_b32 s%d, 0x%x", S_LOFF, LOFF)
    a("s_branch %s_in", PHASES[(PHASES.index(name) + 1) % 4])

def finish(a, name, cnt, loader=False):
    if next_cut(name):
        a("s_endpgm")
        return
    if name == "g4":
        a("s_cmp_lg_u32 s%d, 0", S_LAYER)
        a("s_cbranch_scc1 %s_done", name)
    if loader:
        if not late_y(name): a("s_barrier")
    else:
        cnt(a)
        count_in(a, name + "_cin", LOFF if name == "g4" else 0)
    go_next(a, name)

def gen_gemm(a, name, ntiles, A, B, WA, WB, N, S, W, ptrs, decode, init, epi, ldc, cnt, dep, stats=False, spare=None, split=None, wop="A", lbase=0):
    na, nb = A.T // (16 * WA), B.T // (16 * WB)
    stage = A.bytes + B.bytes
    baseA, baseB = lbase, lbase + A.bytes
    entry(a, name, ntiles, spare is not None)
    ptrs(a, 0)
    a("v_lshrrev_b32 v1, 6, v0")
    a("v_and_b32 v2, 63, v0")
    decode(a)
    a("v_readfirstlane_b32 s%d, v1", S_W)
    a("s_nop 0")
    a("s_cmp_lt_u32 s%d, 4", S_W)
    a("s_cbranch_scc1 %s_compute", name)

    if OPT.get("ldprio"): a("s_setprio %d", OPT["ldprio"])
    a("s_sub_u32 s%d, s%d, 4", S_W, S_W)
    loader_voffs(a, A, S_TA, 10)
    loader_voffs(a, B, S_TB, 10 + A.npw)
    a("s_mul_i32 s%d, s%d, %d", S_LA, S_W, A.npw * 1024)
    if baseA: a("s_add_u32 s%d, s%d, %d", S_LA, S_LA, baseA)
    a("s_mul_i32 s%d, s%d, %d", S_LB, S_W, B.npw * 1024)
    a("s_add_u32 s%d, s%d, %d", S_LB, S_LB, baseB)
    a("s_waitcnt lgkmcnt(0)")
    ws_adjust(a)
    ptrs(a, "L")
    def issue(part):
        kidx_offsets(a, W, A.kadv, B.kadv)
        a("s_add_u32 s%d, s%d, s%d", S_M0A, S_SLOT, S_LA)
        a("s_add_u32 s%d, s%d, s%d", S_M0B, S_SLOT, S_LB)
        for (op, vb, sm, so, sr) in ((A, 10, S_M0A, S_OFA, 8), (B, 10 + A.npw, S_M0B, S_OFB, 12)):
            if part and (part == "W") != (op is Wop): continue
            for i in range(op.npw):
                a("s_add_u32 m0, s%d, %d", sm, i * 1024)
                a("s_nop 0")
                a("buffer_load_dwordx4 v%d, s[%d:%d], s%d offen%s lds", vb + i, sr, sr + 3, so, "" if op is Wop else ASC())
    Wop = B if wop == "B" else A
    def gdep(pre):
        if late_y(PHASES[PHASES.index(name) - 1]): a("s_barrier")
        dep(a, pre)
    loader_loop(a, name, issue, Wop.npw, A.npw + B.npw - Wop.npw, N, S, stage, dep=None if prev_cut(name) else gdep)
    if not next_cut(name): finish(a, name, cnt, loader=True)
    a.label(name + "_done")
    a("s_endpgm")

    a.label(name + "_compute")
    ACC = 28
    BV = 22
    nacc = na * nb * 4
    FR = ACC + nacc
    fset = (na + nb) * 4
    fA = lambda st, i: FR + st * fset + 4 * i
    fB = lambda st, j: FR + st * fset + 4 * na + 4 * j
    acc = lambda i, j: ACC + 4 * (i * nb + j)
    VTOP = FR + 2 * fset
    if epi == "ln2":
        EXV = VTOP
        VTOP += 16
    nk = nb // 2 if split else nb
    if split:
        SND, RCV = VTOP, VTOP + 16
        VTOP += 32
    lane_parts(a)
    SWA, SWB = S_TMP + 4, S_TMP + 5
    a("s_and_b32 s%d, s%d, %d", SWA, S_W, WA - 1)
    a("s_lshr_b32 s%d, s%d, %d", SWB, S_W, WA.bit_length() - 1)
    a("s_mul_i32 s%d, s%d, %d", S_TMP, S_TB, B.T)
    a("s_mul_i32 s%d, s%d, %d", S_TMP + 1, SWB, nb * 16)
    a("s_add_u32 s%d, s%d, s%d", S_TMP, S_TMP, S_TMP + 1)
    if split:
        a("s_lshl_b32 s%d, s%d, 5", S_TMP + 1, S_ROLE)
        a("s_add_u32 s%d, s%d, s%d", S_TMP, S_TMP, S_TMP + 1)
    a("v_add_u32 v20, s%d, v8", S_TMP)
    a("s_mov_b32 s%d, %d", S_TMP + 1, ldc)
    a("v_mul_lo_u32 v9, v20, s%d", S_TMP + 1)
    a("s_mul_i32 s%d, s%d, %d", S_TMP, S_TA, A.T * 2)
    a("s_mul_i32 s%d, s%d, %d", S_TMP + 1, SWA, na * 32)
    a("s_add_u32 s%d, s%d, s%d", S_TMP + 6, S_TMP, S_TMP + 1)
    a("v_and_b32 v3, 1, v5")
    a("v_lshlrev_b32 v3, 5, v3")
    a("v_lshrrev_b32 v4, 1, v5")
    a("v_lshl_add_u32 v3, v4, 4, v3")
    a("v_add3_u32 v9, v9, v3, s%d", S_TMP + 6)
    for j in range(nb):
        a("s_mov_b32 s%d, %d", S_ST + j, j * 16 * ldc)
    a("s_waitcnt lgkmcnt(0)")
    stamp(a, 1)
    ws_adjust(a)
    ptrs(a, "C")
    resid = init in ("resid", "resid+biasB")
    if resid:
        RES = VTOP
        VTOP += 24
    def resid_loads():
        for j in range(nk):
            for p in range(na // 2):
                d = RES + 4 * (j * (na // 2) + p)
                a("buffer_load_dwordx4 v[%d:%d], v9, s[20:23], s%d offen offset:%d%s", d, d + 3, S_ST + j, p * 64, ASC())
        if init == "resid+biasB":
            a("v_lshlrev_b32 v3, 1, v20")
            for j in range(nk):
                a("buffer_load_ushort v%d, v3, s[56:59], 0 offen offset:%d", BV + j, j * 32)
    def resid_add():
        T = RES + 16
        for q in range(nk * na // 2):
            a("v_permlane16_swap_b32 v%d, v%d", RES + 4 * q, RES + 4 * q + 2)
            a("v_permlane16_swap_b32 v%d, v%d", RES + 4 * q + 1, RES + 4 * q + 3)
        if init == "resid+biasB":
            for j in range(nk): a("v_lshlrev_b32 v%d, 16, v%d", BV + j, BV + j)
        for j in range(nk):
            for p in range(na // 2):
                d = RES + 4 * (j * (na // 2) + p)
                for q in range(4):
                    a("v_lshlrev_b32 v%d, 16, v%d", T + 2 * q, d + q)
                    a("v_and_b32 v%d, 0xffff0000, v%d", T + 2 * q + 1, d + q)
                if init == "resid+biasB":
                    for q in range(8): a("v_add_f32 v%d, v%d, v%d", T + q, T + q, BV + j)
                for q in range(4):
                    c = acc(2 * p + (q >> 1), j) + 2 * (q & 1)
                    a("v_pk_add_f32 v[%d:%d], v[%d:%d], v[%d:%d]", c, c + 1, c, c + 1, T + 2 * q, T + 2 * q + 1)
    if init == "biasA":
        a("v_lshl_add_u32 v3, v5, 3, s%d", S_TMP + 6)
        for i in range(na):
            a("buffer_load_dwordx2 v[%d:%d], v3, s[20:23], 0 offen offset:%d", FR + 2 * i, FR + 2 * i + 1, i * 32)
    AR = 10
    def mk_addrs(op, base, swave, n, vb, sxor=None):
        if op.kind == "kc":
            a("s_mul_i32 s%d, s%d, %d", S_TMP + 2, swave, n * 16)
            read_addrs_kc(a, base, S_TMP + 2, vb)
            return [vb, vb + 1]
        a("s_mul_i32 s%d, s%d, %d", S_TMP + 2, swave, n)
        a("s_mov_b32 s%d, %d", S_TMP + 3, base)
        for i in range(n):
            read_addr_km(a, op.T, S_TMP + 3, S_TMP + 2, i, vb + i, sxor)
        return [vb + i for i in range(n)]
    adA = mk_addrs(A, baseA, SWA, na, AR)
    if split: a("s_lshl_b32 s%d, s%d, 1", S_N, S_ROLE)
    adB = mk_addrs(B, baseB, SWB, nb, AR + len(adA), S_N if split else None)
    assert AR + len(adA) + len(adB) <= 20
    for r in range(fset): a("v_mov_b32 v%d, 0", FR + fset + r)
    compute_loop_ctl_init(a, N, S, stage)
    if split:
        a("s_lshl_b32 s%d, s%d, 12", S_TMP, S_W)
        a("v_lshl_add_u32 v21, v2, 4, s%d", S_TMP)
        a("s_lshl_b32 s%d, s%d, 1", S_OWN, S_PAIR)
        a("s_add_u32 s%d, s%d, s%d", S_OWN, S_OWN, S_ROLE)
        a("s_lshl_b32 s%d, s%d, 14", S_OWN, S_OWN)
        a("s_xor_b32 s%d, s%d, 0x4000", S_OTH, S_OWN)
    if init != "biasA":
        for r in range(nacc): a("v_mov_b32 v%d, 0", ACC + r)
    else:
        a("s_waitcnt vmcnt(0)")
        for i in range(na):
            for j in range(nb):
                c = acc(i, j)
                for q in range(2):
                    a("v_lshlrev_b32 v%d, 16, v%d", c + 2 * q, FR + 2 * i + q)
                    a("v_and_b32 v%d, 0xffff0000, v%d", c + 2 * q + 1, FR + 2 * i + q)
    if OPT.get("cprio"): a("s_setprio %d", OPT["cprio"])
    ORD = [(i, j if i % 2 == 0 else nb - 1 - j) for i in range(na) for j in range(nb)]
    if OPT.get("snake", 1) == 2: ORD = [(i if j % 2 == 0 else na - 1 - i, j) for j in range(nb) for i in range(na)]
    if OPT.get("snake", 1) == 0: ORD = [(i, j) for i in range(na) for j in range(nb)]
    def mf(st):
        order = ORD
        return (["v_mfma_f32_16x16x32_bf16 v[%d:%d], v[%d:%d], v[%d:%d], v[%d:%d]" %
                (acc(i, j), acc(i, j) + 3, fA(st, i), fA(st, i) + 3, fB(st, j), fB(st, j) + 3, acc(i, j), acc(i, j) + 3)
                for (i, j) in order])
    def rd(st, ks):
        L = []
        L += frag_reads(A.kind, A.T, adA, 0, ks, fA(st, 0))
        for j in range(nb): L += frag_reads(B.kind, B.T, adB, j, ks, fB(st, j))
        for i in range(1, na): L += frag_reads(A.kind, A.T, adA, i, ks, fA(st, i))
        return L
    def rcv_loads():
        for u in range(4):
            a("buffer_load_dwordx4 v[%d:%d], v21, s[84:87], s%d offen offset:%d sc1", RCV + 4 * u, RCV + 4 * u + 3, S_OTH, u * 1024)
    TMPV = FR
    M = dict(zip(ORD, mf(1)))
    def out_unit(k, j, p):
        b = Asm()
        c0_, c1_ = acc(2 * p, j), acc(2 * p + 1, j)
        if epi == "gelu":
            gelu_pairs(b, [c0_, c0_ + 2, c1_, c1_ + 2], TMPV + 16, GC)
        d = TMPV + 4 * (k & 3)
        b("v_cvt_pk_bf16_f32 v%d, v%d, v%d", d, c0_, c0_ + 1)
        b("v_cvt_pk_bf16_f32 v%d, v%d, v%d", d + 1, c0_ + 2, c0_ + 3)
        b("v_cvt_pk_bf16_f32 v%d, v%d, v%d", d + 2, c1_, c1_ + 1)
        b("v_cvt_pk_bf16_f32 v%d, v%d, v%d", d + 3, c1_ + 2, c1_ + 3)
        if epi == "ln2":
            for q, x in enumerate((c0_, c0_ + 2, c1_, c1_ + 2)):
                b("v_lshlrev_b32 v%d, 16, v%d", x, d + q)
                b("v_and_b32 v%d, 0xffff0000, v%d", x + 1, d + q)
        else:
            b("s_nop 1")
        b("v_permlane16_swap_b32 v%d, v%d", d, d + 2)
        b("v_permlane16_swap_b32 v%d, v%d", d + 1, d + 3)
        b("buffer_store_dwordx4 v[%d:%d], v9, s[16:19], s%d offen offset:%d%s", d, d + 3, S_ST + j, p * 64, STF())
        return [l.strip() for l in b.lines]
    JP = [(j, p) for j in range(nk) for p in range(na // 2)]
    tiles = lambda j0: [(i, j) for j in range(j0, j0 + nk) for i in range(na)]
    def final_gelu():
        overlap_final(a, [([M[(2 * p, j)], M[(2 * p + 1, j)]], out_unit(k, j, p)) for k, (j, p) in enumerate(JP)], lead=4,
                      after_lead=lambda: a("s_nop 1"))
    def final_split():
        for t in tiles(nk): a(M[t])
        keep = [M[t] for t in tiles(0)]
        for u, (i, j) in enumerate(tiles(nk)):
            c = acc(i, j)
            a(keep[u])
            if u == 7: a("s_nop 1")
            a("v_cvt_pk_bf16_f32 v%d, v%d, v%d", SND + 2 * u, c, c + 1)
            a("v_cvt_pk_bf16_f32 v%d, v%d, v%d", SND + 2 * u + 1, c + 2, c + 3)
            if u & 1:
                a("buffer_store_dwordx4 v[%d:%d], v21, s[84:87], s%d offen offset:%d sc1", SND + 2 * u - 2, SND + 2 * u + 1, S_OWN, (u >> 1) * 1024)
    if epi == "gelu":
        GC = VTOP
        VTOP += 6
        c1 = -2.0 * math.log2(math.e) * math.sqrt(2.0 / math.pi) * 0.044715
        c0 = -2.0 * math.log2(math.e) * math.sqrt(2.0 / math.pi)
        for k, v in enumerate((c1, c1, c0, c0, 1.0, 1.0)):
            a("v_mov_b32 v%d, 0x%x", GC + k, f32(v))
    cloop(a, name, mf, rd, adA + adB, S, stage, first=resid_loads if resid else None,
          mid=(N // 2, resid_add) if resid and not split else None,
          final=final_gelu if epi == "gelu" else final_split if split else None)
    if split:
        a("s_mov_b32 s%d, 0x40000", S_CNT)
        stamp(a, 5)
        rcv_loads()
        a("s_waitcnt vmcnt(8)")
        a("s_nop 3")
        resid_add()
        a("s_waitcnt vmcnt(0)")
        a.label(name + "_rcv")
        a("v_max3_u32 v4, v%d, v%d, v%d", RCV, RCV + 1, RCV + 2)
        for q in range(3, 15, 2): a("v_max3_u32 v4, v4, v%d, v%d", RCV + q, RCV + q + 1)
        a("v_max_u32 v4, v4, v%d", RCV + 15)
        a("v_cmp_eq_u32 vcc, -1, v4")
        a("s_sub_u32 s%d, s%d, 1", S_CNT, S_CNT)
        a("s_cmp_eq_u32 s%d, 0", S_CNT)
        a("s_cbranch_scc1 %s_rcvd", name)
        a("s_cbranch_vccz %s_rcvd", name)
        a("s_sleep %d", OPT.get("slp", 2))
        rcv_loads()
        a("s_waitcnt vmcnt(0)")
        a("s_branch %s_rcv", name)
        a.label(name + "_rcvd")
        stamp(a, 6)
        if OPT.get("stamp"): a("s_add_u32 s%d, s%d, 0x6000", 64 + 2 * 9, S_CNT)
        for u, (i, j) in enumerate(tiles(0)):
            c = acc(i, j); t = TMPV + 16 + 4 * (u & 3)
            for q in range(2):
                a("v_lshlrev_b32 v%d, 16, v%d", t + 2 * q, RCV + 2 * u + q)
                a("v_and_b32 v%d, 0xffff0000, v%d", t + 2 * q + 1, RCV + 2 * u + q)
            for q in range(2):
                a("v_pk_add_f32 v[%d:%d], v[%d:%d], v[%d:%d]", c + 2 * q, c + 2 * q + 1, c + 2 * q, c + 2 * q + 1, t + 2 * q, t + 2 * q + 1)
    def stats_block():
        assert nk in (2, 4) and na == 4
        pr = lambda r: "v[%d:%d]" % (r, r + 1)
        SV = TMPV + 16
        for j in range(nk):
            prs = [acc(i, j) + 2 * q for i in range(na) for q in range(2)]
            a("v_pk_add_f32 %s, %s, %s", pr(SV + 4 * j), pr(prs[0]), pr(prs[1]))
            a("v_pk_mul_f32 %s, %s, %s", pr(SV + 4 * j + 2), pr(prs[0]), pr(prs[0]))
            for x in prs[1:]:
                if x != prs[1]: a("v_pk_add_f32 %s, %s, %s", pr(SV + 4 * j), pr(SV + 4 * j), pr(x))
                a("v_pk_fma_f32 %s, %s, %s, %s", pr(SV + 4 * j + 2), pr(x), pr(x), pr(SV + 4 * j + 2))
        for j in range(nk):
            a("v_add_f32 v%d, v%d, v%d", SV + 4 * j, SV + 4 * j, SV + 4 * j + 1)
            a("v_add_f32 v%d, v%d, v%d", SV + 4 * j + 1, SV + 4 * j + 2, SV + 4 * j + 3)
        a("s_nop 1")
        for j in range(0, nk, 2):
            a("v_permlane16_swap_b32 v%d, v%d", SV + 4 * j, SV + 4 * j + 4)
            a("v_permlane16_swap_b32 v%d, v%d", SV + 4 * j + 1, SV + 4 * j + 5)
        for j in range(0, nk, 2):
            a("v_pk_add_f32 %s, %s, %s", pr(SV + 4 * j), pr(SV + 4 * j), pr(SV + 4 * j + 4))
        if nk == 2:
            a("v_mov_b32 v%d, v%d", SV + 8, SV)
            a("v_mov_b32 v%d, v%d", SV + 9, SV + 1)
        a("v_and_b32 v3, %d, v2", 16 if nk == 2 else 48)
        a("v_add_u32 v3, v3, v20")
        a("v_permlane32_swap_b32 v%d, v%d", SV, SV + 8)
        a("v_permlane32_swap_b32 v%d, v%d", SV + 1, SV + 9)
        a("v_pk_add_f32 %s, %s, %s", pr(SV), pr(SV), pr(SV + 8))
        a("v_lshlrev_b32 v3, 3, v3")
        a("s_mul_i32 s%d, s%d, %d", S_TMP, S_TA, WA)
        a("s_add_u32 s%d, s%d, s%d", S_TMP, S_TMP, SWA)
        a("s_lshl_b32 s%d, s%d, 14", S_TMP, S_TMP)
        if nk == 2: a("s_mov_b32 exec_hi, 0")
        a("buffer_store_dwordx2 %s, v3, s[60:63], s%d offen sc1", pr(SV), S_TMP)
        if nk == 2: a("s_mov_b32 exec_hi, -1")
    def ln2_start():
        stats_block()
        a("v_lshrrev_b32 v4, 5, v2")
        a("v_lshl_add_u32 v21, v4, 17, v3")
    def ex_loads():
        for q in range(8):
            a("s_mov_b32 s%d, %d", S_TMP + (q & 1), q * 16384)
            a("buffer_load_dwordx2 v[%d:%d], v21, s[60:63], s%d offen sc1", EXV + 2 * q, EXV + 2 * q + 1, S_TMP + (q & 1))
    def ln2_finish():
        pr = lambda r: "v[%d:%d]" % (r, r + 1)
        a("s_mov_b32 s%d, 0x40000", S_CNT)
        a("v_mul_u32_u24 v19, %d, v20", LDH - ldc)
        a("v_add_u32 v19, v19, v9")
        for j in range(nk): a("s_mov_b32 s%d, %d", S_ST + 2 + j, j * 16 * LDH)
        stamp(a, 5)
        ex_loads()
        if OPT.get("x1late") == 2:
            for w in held: a(w)
            a("s_waitcnt vmcnt(4)")
        else:
            a("s_waitcnt vmcnt(0)")
        a.label(name + "_ex")
        a("v_max3_u32 v4, v%d, v%d, v%d", EXV, EXV + 1, EXV + 2)
        for q in range(3, 15, 2): a("v_max3_u32 v4, v4, v%d, v%d", EXV + q, EXV + q + 1)
        a("v_max_u32 v4, v4, v%d", EXV + 15)
        a("v_cmp_eq_u32 vcc, -1, v4")
        a("s_sub_u32 s%d, s%d, 1", S_CNT, S_CNT)
        a("s_cmp_eq_u32 s%d, 0", S_CNT)
        a("s_cbranch_scc1 %s_exd", name)
        a("s_cbranch_vccz %s_exd", name)
        a("s_sleep %d", OPT.get("slp", 2))
        ex_loads()
        a("s_waitcnt vmcnt(0)")
        a("s_branch %s_ex", name)
        a.label(name + "_exd")
        stamp(a, 6)
        if OPT.get("stamp"): a("s_add_u32 s%d, s%d, 0x6000", 64 + 2 * 9, S_CNT)
        if OPT.get("x1late") == 1:
            for w in held: a(w)
        E = EXV
        for st in (4, 2, 1):
            for q in range(st): a("v_pk_add_f32 %s, %s, %s", pr(E + 2 * q), pr(E + 2 * q), pr(E + 2 * (q + st)))
        a("v_mov_b32 v%d, v%d", E + 2, E)
        a("v_mov_b32 v%d, v%d", E + 3, E + 1)
        a("s_nop 1")
        a("v_permlane32_swap_b32 v%d, v%d", E, E + 2)
        a("v_permlane32_swap_b32 v%d, v%d", E + 1, E + 3)
        a("v_pk_add_f32 %s, %s, %s", pr(E), pr(E), pr(E + 2))
        m, var, mb, r1, m2, v2 = E, E + 1, E + 2, E + 3, E + 4, E + 5
        a("v_mul_f32 v%d, 0x%x, v%d", m, f32(1.0 / 1024), m)
        a("v_mul_f32 v%d, 0x%x, v%d", var, f32(1.0 / 1024), var)
        a("v_fma_f32 v%d, -v%d, v%d, v%d", var, m, m, var)
        a("v_max_f32 v%d, 0, v%d", var, var)
        a("v_mov_b32 v%d, v%d", mb, m)
        a("v_mov_b32 v%d, v%d", r1, var)
        def rstd(x):
            round_bf16_scalar(a, x)
            a("v_add_f32 v%d, 0x%x, v%d", x, f32(1e-5), x)
            round_bf16_scalar(a, x)
            a("v_sqrt_f32 v%d, v%d", x, x)
            a("s_nop 0")
            round_bf16_scalar(a, x)
            a("v_rcp_f32 v%d, v%d", x, x)
        round_bf16_scalar(a, mb)
        rstd(r1)
        a("v_sub_f32 v%d, v%d, v%d", m2, m, mb)
        a("v_mul_f32 v%d, v%d, v%d", v2, var, r1)
        a("v_mul_f32 v%d, v%d, v%d", m2, m2, r1)
        a("v_mul_f32 v%d, v%d, v%d", v2, v2, r1)
        round_bf16_scalar(a, m2)
        rstd(v2)
        a("v_fma_f32 v%d, v%d, v%d, v%d", m2, mb, r1, m2)
        a("v_mul_f32 v%d, v%d, v%d", E + 6, r1, v2)
        a("v_mul_f32 v%d, -v%d, v%d", E + 7, m2, v2)
        a("v_mov_b32 v%d, v%d", E + 8, E + 6)
        a("v_mov_b32 v%d, v%d", E + 9, E + 7)
        a("s_nop 1")
        a("v_permlane16_swap_b32 v%d, v%d", E + 6, E + 8)
        a("v_permlane16_swap_b32 v%d, v%d", E + 7, E + 9)
        k = 0
        for j in range(nk):
            ab = pr(E + 6 + 2 * j)
            for p in range(na // 2):
                c0_, c1_ = acc(2 * p, j), acc(2 * p + 1, j)
                for x in (c0_, c0_ + 2, c1_, c1_ + 2):
                    a("v_pk_fma_f32 %s, %s, %s, %s op_sel:[0,0,1] op_sel_hi:[1,0,1]", pr(x), pr(x), ab, ab)
                d = RES + 4 * (k & 3); k += 1
                a("v_cvt_pk_bf16_f32 v%d, v%d, v%d", d, c0_, c0_ + 1)
                a("v_cvt_pk_bf16_f32 v%d, v%d, v%d", d + 1, c0_ + 2, c0_ + 3)
                a("v_cvt_pk_bf16_f32 v%d, v%d, v%d", d + 2, c1_, c1_ + 1)
                a("v_cvt_pk_bf16_f32 v%d, v%d, v%d", d + 3, c1_ + 2, c1_ + 3)
                a("s_nop 1")
                a("v_permlane16_swap_b32 v%d, v%d", d, d + 2)
                a("v_permlane16_swap_b32 v%d, v%d", d + 1, d + 3)
                a("buffer_store_dwordx4 v[%d:%d], v19, s[56:59], s%d offen offset:%d%s", d, d + 3, S_ST + 2 + j, p * 64, STF())
    if epi == "ln2":
        a("s_nop 7")
        ln2_start()
    held = []
    if epi != "gelu":
        for k, (j, p) in enumerate(JP):
            u = out_unit(k, j, p)
            if epi == "ln2" and OPT.get("x1late"): held.append(u.pop())
            for w in u: a(w)
    if stats: stats_block()
    if epi == "ln2": ln2_finish()
    xs = bool(split) or epi == "ln2"
    stamp(a, 7 if xs else 5)
    stamp_flush(a, name, 8 if xs else 6, extra=xs)
    finish(a, name, cnt)
    if spare:
        a.label(name + "_spare")
        spare(a)
    GEMM_VTOP[name] = VTOP
    return lbase + stage * S

def gen_g1(a, name, W=2):
    N, S = 16, 3
    PW = Op("km", 64, 6144)
    XB = 3 * 8192
    stage = XB + 144 * 128
    E = stage
    REG = 144 * 128
    LST = S * stage
    LCS = LST + 1280
    S_SIG, S_DIST, S_H1, S_H2, S_H3, S_H4, S_H5 = 52, 53, 54, 55, 29, 50, 51
    KG = OPT.get("KG", 12)
    entry(a, name, 256)
    a("s_load_dwordx2 s[4:5], s[0:1], %d", ARG["ws"])
    a("s_load_dwordx2 s[6:7], s[0:1], %d", ARG["x"])
    a("s_xor_b32 s%d, s%d, 1", S_DIST, S_LAYER)
    a("s_load_dwordx2 s[30:31], s[0:1], %d", ARG["wqkv"])
    a("s_load_dwordx2 s[16:17], s[0:1], %d", ARG["dbg"])
    a("s_load_dwordx2 s[18:19], s[0:1], %d", ARG["wo"])
    a("v_lshrrev_b32 v1, 6, v0")
    a("v_and_b32 v2, 63, v0")
    a("s_and_b32 s%d, s2, 1", S_TMP)
    a("s_lshl_b32 s%d, s%d, 3", S_TMP, S_TMP)
    a("s_bfe_u32 s%d, s2, 0x30003", S_TMP + 1)
    a("s_add_u32 s%d, s%d, s%d", S_TB, S_TMP, S_TMP + 1)
    a("s_bfe_u32 s%d, s2, 0x20001", S_TMP)
    a("s_lshl_b32 s%d, s%d, 2", S_TMP, S_TMP)
    a("s_lshr_b32 s%d, s2, 6", S_TMP + 2)
    a("s_add_u32 s%d, s%d, s%d", S_TA, S_TMP, S_TMP + 2)
    a("s_add_u32 s%d, s%d, s%d", S_J, S_TMP + 1, S_TMP + 2)
    a("s_add_u32 s%d, s%d, s%d", S_SIG, S_TA, S_TB)
    a("s_and_b32 s%d, s%d, 15", S_SIG, S_SIG)
    a("s_and_b32 s%d, s%d, %d", S_KB, S_SIG, KG)
    a("s_mul_i32 s%d, s%d, s%d", S_KB, S_KB, S_DIST)
    a("v_readfirstlane_b32 s%d, v1", S_W)
    lane_parts(a)
    a("s_cmp_lt_u32 s%d, 4", S_W)
    a("s_cbranch_scc1 %s_compute", name)

    EA, AO, AQ, AV, AM, ED = 216, 225, 226, 227, 228, 232
    SHD, SSH = S_TMP + 4, S_TMP + 5
    def attn_setup():
        srd(a, 16, 4, WS["O"], ACT_BYTES)
        a("s_and_b32 s%d, s%d, 1", SHD, S_W)
        SU = S_TMP + 5
        a("s_lshr_b32 s%d, s%d, 1", SU, S_W)
        a("s_lshl_b32 s%d, s%d, 2", S_TMP, SHD)
        a("v_add_u32 v3, s%d, v5", S_TMP)
        a("v_and_b32 v4, 7, v8")
        a("v_xor_b32 v3, v3, v4")
        a("v_lshlrev_b32 v3, 4, v3")
        a("v_lshl_add_u32 v3, v8, 8, v3")
        a("s_mul_i32 s%d, s%d, %d", S_TMP + 1, SU, 32 * 128)
        a("s_add_u32 s%d, s%d, %d", S_TMP + 1, S_TMP + 1, E)
        a("v_add_u32 v%d, s%d, v3", AQ, S_TMP + 1)
        a("v_lshl_add_u32 v3, v5, 2, v6")
        a("v_and_b32 v4, 7, v3")
        a("v_add_u32 v%d, s%d, v7", AM, S_TMP)
        a("v_xor_b32 v4, v4, v%d", AM)
        a("v_lshlrev_b32 v4, 4, v4")
        a("v_lshl_add_u32 v3, v3, 8, v4")
        a("s_add_u32 s%d, s%d, %d", S_TMP + 1, S_TMP + 1, 2 * REG)
        a("v_add_u32 v%d, s%d, v3", AV, S_TMP + 1)
        a("v_and_b32 v3, 7, v8")
        a("v_add_u32 v4, 1, v3")
        a("s_or_b32 s%d, s%d, s%d", S_TMP, S_TB, SU)
        a("s_cmp_eq_u32 s%d, 0", S_TMP)
        a("s_cselect_b32 s%d, 8, 0", S_TMP)
        a("v_cmp_gt_u32 vcc, 8, v8")
        a("v_mov_b32 v21, s%d", S_TMP)
        a("s_mov_b64 s[56:57], vcc")
        a("v_cndmask_b32 v21, 0, v21, vcc")
        a("v_max_u32 v4, v4, v21")
        a("v_add_u32 v3, 8, v3")
        a("v_sub_u32 v3, v3, v4")
        a("v_lshlrev_b32 v21, 2, v5")
        a("v_sub_u32 v21, v21, v4")
        a("v_mov_b32 v22, 0xf149f2ca")
        for r in range(4):
            a("v_add_u32 v23, %d, v21", r)
            a("v_cmp_ge_u32 vcc, v3, v23")
            a("s_nop 1")
            a("v_cndmask_b32 v%d, v22, 0, vcc", AM + r)
        a("s_lshl_b32 s%d, s%d, 7", S_TMP, S_TB)
        a("s_lshl_b32 s%d, s%d, 5", S_TMP + 1, SU)
        a("s_add_u32 s%d, s%d, s%d", S_TMP, S_TMP, S_TMP + 1)
        a("s_lshl_b32 s%d, s%d, 11", S_TMP, S_TMP)
        a("s_lshl_b32 s%d, s%d, 7", S_TMP + 1, S_TA)
        a("s_add_u32 s%d, s%d, s%d", S_TMP, S_TMP, S_TMP + 1)
        a("s_lshl_b32 s%d, s%d, 6", S_TMP + 1, SHD)
        a("s_add_u32 s%d, s%d, s%d", S_TMP, S_TMP, S_TMP + 1)
        a("v_lshlrev_b32 v%d, 12, v8", AO)
        a("v_lshl_add_u32 v%d, v5, 4, v%d", AO, AO)
        a("v_add_u32 v%d, s%d, v%d", AO, S_TMP, AO)
        a("s_mov_b32 s58, 0x%x", f32(32 ** -0.5))
        a("s_mov_b32 s59, 0x%x", f32(math.log2(math.e)))

    if OPT.get("ldprio"): a("s_setprio %d", OPT["ldprio"])
    a("s_sub_u32 s%d, s%d, 4", S_W, S_W)
    XO = Op("kc", 128, 2048)
    loader_voffs(a, XO, S_TB, 16)
    for p in range(3):
        loader_voffs(a, PW, S_TA, 10 + 2 * p, extra_cols=1024 * p)
    a("v_lshrrev_b32 v3, 3, v2")
    a("s_lshl_b32 s%d, s%d, 2", S_TMP, S_W)
    a("v_add_u32 v3, s%d, v3", S_TMP)
    a("v_lshrrev_b32 v4, 1, v3")
    a("v_xor_b32 v4, v4, v2")
    a("v_and_b32 v4, 7, v4")
    a("s_lshl_b32 s%d, s%d, 7", S_TMP, S_TB)
    a("s_sub_u32 s%d, s%d, 16", S_TMP, S_TMP)
    a("v_add_u32 v3, s%d, v3", S_TMP)
    a("v_max_i32 v3, 0, v3")
    a("v_lshlrev_b32 v3, 11, v3")
    a("v_lshl_add_u32 v20, v4, 4, v3")
    a("s_mul_i32 s%d, s%d, 2048", S_LA, S_W)
    a("s_mul_i32 s%d, s%d, 4096", S_LB, S_W)
    a("s_add_u32 s%d, s%d, %d", S_LB, S_LB, XB + 2048)
    a("s_mul_i32 s%d, s%d, 512", S_TMP + 6, S_W)
    a("s_add_u32 s%d, s%d, %d", S_TMP + 6, S_TMP + 6, XB)
    a("s_waitcnt lgkmcnt(0)")
    srd(a, 8, 30, 0, 1024 * 3072 * 2)
    srd(a, 56, 4, WS["CS"], CS_BYTES)
    ws_adjust(a)
    sel_ptr(a, 12, 1, WS["X2"])
    def issue(part):
        kidx_offsets(a, W, PW.kadv, 128, wrap=16)
        a("s_add_u32 s%d, s%d, s%d", S_M0A, S_SLOT, S_LA)
        a("s_add_u32 s%d, s%d, s%d", S_M0B, S_SLOT, S_LB)
        for i in range(4 if part != "W" else 0):
            a("s_add_u32 m0, s%d, %d", S_M0B, i * 1024)
            a("s_nop 0")
            a("buffer_load_dwordx4 v%d, s[12:15], s%d offen%s lds", 16 + i, S_OFB, ASC())
        for p in range(3 if part != "A" else 0):
            for i in range(2):
                a("s_add_u32 m0, s%d, %d", S_M0A, p * 8192 + i * 1024)
                a("s_nop 0")
                a("buffer_load_dwordx4 v%d, s[8:11], s%d offen lds", 10 + 2 * p + i, S_OFA)
        if part == "W": return
        a("s_add_u32 m0, s%d, s%d", S_SLOT, S_TMP + 6)
        a("s_mov_b32 exec_hi, 0")
        a("buffer_load_dwordx4 v20, s[12:15], s%d offen%s lds", S_OFB, ASC())
        a("s_mov_b32 exec_hi, -1")
    srd(a, 20, 4, WS["ST"], ST_BYTES)
    srd(a, 60, 16, 0, 256)
    a("s_sub_u32 s%d, s%d, s%d", S_TMP, S_SIG, S_J)
    a("s_and_b32 s%d, s%d, %d", S_TMP, S_TMP, W - 1)
    a("s_and_b32 s%d, s%d, %d", S_TMP + 1, S_SIG, 15 & ~KG & ~(W - 1))
    a("s_or_b32 s%d, s%d, s%d", S_TMP, S_TMP, S_TMP + 1)
    a("s_add_u32 s%d, s%d, %d", S_H1, S_TMP, S - 1)
    a("s_cmp_eq_u32 s%d, 0", S_DIST)
    a("s_cselect_b32 s%d, 0x7fff, s%d", S_H1, S_H1)
    a("s_add_u32 s%d, s%d, %d", S_H2, S_H1, S)
    a("s_cmp_lg_u32 s%d, 0", S_W)
    a("s_cselect_b32 s%d, 0x7fff, s%d", S_H2, S_H2)
    a("s_cmp_lt_u32 s%d, 0x7fff", S_H2)
    a("s_cselect_b32 s%d, %d, 0x7fff", S_H3, N - 4)
    a("s_add_u32 s%d, s%d, 1", S_H4, S_H3)
    a("s_mov_b32 s%d, %d", S_H5, N - 2)
    def slice_stats():
        SL = S_TMP + 4
        a("s_add_u32 s%d, s%d, %d", SL, S_SLOT, stage)
        a("s_cmp_eq_u32 s%d, %d", SL, S * stage)
        a("s_cselect_b32 s%d, 0, s%d", SL, SL)
        for i in range(3):
            a("s_mul_i32 s%d, s%d, 3", S_TMP + 2, S_W)
            a("s_add_u32 s%d, s%d, %d", S_TMP + 2, S_TMP + 2, i)
            a("s_lshr_b32 s%d, s%d, 2", S_TMP + 3, S_TMP + 2)
            a("s_lshl_b32 s%d, s%d, 13", S_TMP + 3, S_TMP + 3)
            a("s_add_u32 s%d, s%d, s%d", S_TMP + 3, S_TMP + 3, SL)
            a("s_and_b32 s%d, s%d, 3", S_TMP + 2, S_TMP + 2)
            read_addr_km(a, 64, S_TMP + 3, S_TMP + 2, 0, 21)
            for ks in range(2):
                for r in frag_reads("km", 64, [21], 0, ks, 24 + 8 * i + 4 * ks): a(r)
        a("s_lshr_b32 s%d, s%d, 7", S_TMP + 2, SL)
        a("s_lshl_b32 s%d, s%d, 5", S_TMP + 3, S_W)
        a("s_add_u32 s%d, s%d, s%d", S_TMP + 2, S_TMP + 2, S_TMP + 3)
        a("s_add_u32 s%d, s%d, 16", S_TMP + 2, S_TMP + 2)
        read_addrs_kc(a, XB, S_TMP + 2, 22)
        for i in range(2):
            for ks in range(2):
                for r in frag_reads("kc", 0, [22, 23], i, ks, 48 + 8 * i + 4 * ks): a(r)
        for r in range(4): a("v_mov_b32 v%d, 0x3f803f80", 64 + r)
        a("s_mul_i32 s%d, s%d, 12288", S_TMP + 2, S_SIG)
        a("s_lshl_b32 s%d, s%d, 8", S_TMP + 3, S_TA)
        a("s_add_u32 s%d, s%d, s%d", S_TMP + 2, S_TMP + 2, S_TMP + 3)
        a("v_lshl_add_u32 v21, v5, 4, s%d", S_TMP + 2)
        a("s_lshl_b32 s%d, s%d, 14", S_TMP + 2, S_SIG)
        a("s_lshl_b32 s%d, s%d, 10", S_TMP + 3, S_TB)
        a("s_add_u32 s%d, s%d, s%d", S_TMP + 2, S_TMP + 2, S_TMP + 3)
        a("s_lshl_b32 s%d, s%d, 8", S_TMP + 3, S_W)
        a("s_add_u32 s%d, s%d, s%d", S_TMP + 2, S_TMP + 2, S_TMP + 3)
        a("v_lshl_add_u32 v22, v8, 3, s%d", S_TMP + 2)
        a("s_waitcnt lgkmcnt(0)")
        mm = lambda d, x, y, first: a("v_mfma_f32_16x16x32_bf16 v[%d:%d], v[%d:%d], v[%d:%d], %s", d, d + 3, x, x + 3, y, y + 3,
                                      "0" if first else "v[%d:%d]" % (d, d + 3))
        for ks in range(2):
            for i in range(3): mm(68 + 4 * i, 24 + 8 * i + 4 * ks, 64, ks == 0)
            for i in range(2):
                mm(80 + 8 * i, 64, 48 + 8 * i + 4 * ks, ks == 0)
                mm(84 + 8 * i, 48 + 8 * i + 4 * ks, 48 + 8 * i + 4 * ks, ks == 0)
        a("v_cmp_eq_u32 s[%d:%d], 1, v7", S_TMP, S_TMP + 1)
        a("v_cmp_eq_u32 s[%d:%d], 2, v7", S_TMP + 2, S_TMP + 3)
        a("v_cmp_eq_u32 vcc, 3, v7")
        a("s_nop 7")
        for i in range(2):
            a("v_cndmask_b32 v%d, v%d, v%d, s[%d:%d]", 81 + 8 * i, 84 + 8 * i, 85 + 8 * i, S_TMP, S_TMP + 1)
            a("v_cndmask_b32 v%d, v%d, v%d, s[%d:%d]", 81 + 8 * i, 81 + 8 * i, 86 + 8 * i, S_TMP + 2, S_TMP + 3)
            a("v_cndmask_b32 v%d, v%d, v%d, vcc", 81 + 8 * i, 81 + 8 * i, 87 + 8 * i)
        a("s_mov_b32 exec_lo, 0x00f0000f")
        a("s_mov_b32 exec_hi, 0xf0000f00")
        for i in range(2):
            a("buffer_store_dwordx2 v[%d:%d], v22, s[20:23], 0 offen offset:%d sc1", 80 + 8 * i, 81 + 8 * i, 128 * i)
        a("s_mov_b32 exec_lo, 0x00010001")
        a("s_mov_b32 exec_hi, 0x00010001")
        for i in range(3):
            a("s_mul_i32 s%d, s%d, 3", S_TMP + 2, S_W)
            a("s_add_u32 s%d, s%d, %d", S_TMP + 2, S_TMP + 2, i)
            a("s_lshr_b32 s%d, s%d, 2", S_TMP + 3, S_TMP + 2)
            a("s_lshl_b32 s%d, s%d, 12", S_TMP + 3, S_TMP + 3)
            a("s_and_b32 s%d, s%d, 3", S_TMP + 2, S_TMP + 2)
            a("s_lshl_b32 s%d, s%d, 6", S_TMP + 2, S_TMP + 2)
            a("s_add_u32 s%d, s%d, s%d", S_TMP + 2, S_TMP + 2, S_TMP + 3)
            a("buffer_store_dwordx4 v[%d:%d], v21, s[56:59], s%d offen sc1", 68 + 4 * i, 71 + 4 * i, S_TMP + 2)
        a("s_mov_b64 exec, -1")
        a("s_or_b32 s%d, s%d, s%d", S_TMP, S_TA, S_TB)
        a("s_or_b32 s%d, s%d, s%d", S_TMP, S_TMP, S_W)
        a("s_cmp_lg_u32 s%d, 0", S_TMP)
        a("s_cbranch_scc1 %s_nocr", name)
        a("v_lshlrev_b32 v21, 8, v2")
        a("v_mov_b32 v22, 0")
        for area in (0, LOFF):
            srd(a, 84, 4, WS["CNT"] + area, CNT_BYTES)
            a("buffer_store_dword v22, v21, s[84:87], 0 offen sc1")
        a.label(name + "_nocr")
    def arrive():
        a("v_mov_b32 v21, 0")
        a("v_mov_b32 v22, 1")
        a("s_mov_b64 exec, 1")
        a("buffer_atomic_add v22, v21, s[60:63], 0 offen sc1")
        a("s_mov_b64 exec, -1")
    def poll_issue():
        a("v_mov_b32 v21, 0")
        a("buffer_load_dword v23, v21, s[60:63], 0 offen sc1")
    def poll_check():
        a("s_mov_b32 s%d, 0x40000", S_TMP + 1)
        a("v_mov_b32 v21, 0")
        a("s_waitcnt vmcnt(11)")
        a.label(name + "_poll")
        a("v_readfirstlane_b32 s%d, v23", S_TMP)
        a("s_sub_u32 s%d, s%d, 1", S_TMP + 1, S_TMP + 1)
        a("s_cmp_eq_u32 s%d, 0", S_TMP + 1)
        a("s_cbranch_scc1 %s_polled", name)
        a("s_cmp_ge_u32 s%d, 256", S_TMP)
        a("s_cbranch_scc1 %s_polled", name)
        a("s_sleep 8")
        a("buffer_load_dword v23, v21, s[60:63], 0 offen sc1")
        a("s_waitcnt vmcnt(0)")
        a("s_branch %s_poll", name)
        a.label(name + "_polled")
    def st_loads():
        a("s_lshl_b32 s%d, s%d, 6", S_TMP, S_W)
        a("v_add_u32 v21, s%d, v2", S_TMP)
        a("s_lshl_b32 s%d, s%d, 7", S_TMP + 1, S_TB)
        a("s_sub_u32 s%d, s%d, 16", S_TMP + 1, S_TMP + 1)
        a("v_add_u32 v3, s%d, v21", S_TMP + 1)
        a("v_max_i32 v3, 0, v3")
        a("v_min_u32 v3, 2047, v3")
        a("v_lshlrev_b32 v3, 3, v3")
        a("s_min_u32 s%d, s%d, 2", S_TMP, S_W)
        a("s_lshl_b32 s%d, s%d, 12", S_TMP, S_TMP)
        a("s_lshl_b32 s%d, s%d, 8", S_TMP + 1, S_TA)
        a("s_add_u32 s%d, s%d, s%d", S_TMP, S_TMP, S_TMP + 1)
        a("v_lshl_add_u32 v4, v2, 2, s%d", S_TMP)
        for k in range(16):
            a("s_mov_b32 s%d, %d", S_TMP, k * 16384)
            a("buffer_load_dwordx2 v[%d:%d], v3, s[20:23], s%d offen sc1", 24 + 2 * k, 25 + 2 * k, S_TMP)
            a("s_mov_b32 s%d, %d", S_TMP + 1, k * 3072 * 4)
            a("buffer_load_dword v%d, v4, s[56:59], s%d offen sc1", 56 + k, S_TMP + 1)
    def st_use():
        for st in (8, 4, 2, 1):
            for k in range(st):
                a("v_pk_add_f32 v[%d:%d], v[%d:%d], v[%d:%d]", 24 + 2 * k, 25 + 2 * k, 24 + 2 * k, 25 + 2 * k, 24 + 2 * (k + st), 25 + 2 * (k + st))
                a("v_add_f32 v%d, v%d, v%d", 56 + k, 56 + k, 56 + k + st)
        a("v_mul_f32 v24, 0x%x, v24", f32(1.0 / 1024))
        a("v_mul_f32 v25, 0x%x, v25", f32(1.0 / 1024))
        a("v_fma_f32 v25, -v24, v24, v25")
        a("v_max_f32 v25, 0, v25")
        round_bf16_scalar(a, 24)
        round_bf16_scalar(a, 25)
        a("v_add_f32 v25, 0x%x, v25", f32(1e-5))
        round_bf16_scalar(a, 25)
        a("v_sqrt_f32 v25, v25")
        a("s_nop 0")
        round_bf16_scalar(a, 25)
        a("v_rcp_f32 v26, v25")
        a("v_lshlrev_b32 v3, 3, v21")
        a("v_lshlrev_b32 v4, 2, v21")
        a("v_mul_f32 v27, -v24, v26")
        a("v_cmp_gt_u32 vcc, 144, v21")
        a("s_and_saveexec_b64 s[%d:%d], vcc", S_TMP, S_TMP + 1)
        a("v_add_u32 v3, %d, v3", LST)
        a("ds_write_b64 v3, v[26:27]")
        a("s_mov_b64 exec, s[%d:%d]", S_TMP, S_TMP + 1)
        a("v_cmp_gt_u32 vcc, 192, v21")
        a("s_and_saveexec_b64 s[%d:%d], vcc", S_TMP, S_TMP + 1)
        a("v_add_u32 v4, %d, v4", LCS)
        a("ds_write_b32 v4, v56")
        a("s_mov_b64 exec, s[%d:%d]", S_TMP, S_TMP + 1)
        a("s_waitcnt lgkmcnt(0)")
    def tail():
        a("s_waitcnt vmcnt(43)")
        a("s_barrier")
        a("s_waitcnt vmcnt(0)")
        st_use()
        a("s_barrier")
        srd(a, 20, 4, WS["EX"], ST_BYTES)
        a("s_lshl_b32 s%d, s%d, 4", S_TMP, S_TA)
        a("s_add_u32 s%d, s%d, s%d", S_TMP, S_TMP, S_TB)
        a("s_lshl_b32 s%d, s%d, 10", S_TMP, S_TMP)
        a("s_lshl_b32 s%d, s%d, 8", S_TMP + 1, S_W)
        a("s_add_u32 s%d, s%d, s%d", S_TMP, S_TMP, S_TMP + 1)
        a("v_lshlrev_b32 v3, 2, v2")
        a("v_mov_b32 v4, -1")
        a("buffer_store_dword v4, v3, s[20:23], s%d offen sc1", S_TMP)
        a("s_cmp_eq_u32 s%d, 0", S_DIST)
        a("s_cbranch_scc1 %s_nopf", name)
        srd(a, 20, 18, 0, 1024 * 1024 * 2)
        a("s_lshl_b32 s%d, s2, 13", S_TMP)
        a("s_lshl_b32 s%d, s%d, 11", S_TMP + 1, S_W)
        a("s_add_u32 s%d, s%d, s%d", S_TMP, S_TMP, S_TMP + 1)
        a("v_lshlrev_b32 v3, 4, v2")
        a("buffer_load_dwordx4 v[120:123], v3, s[20:23], s%d offen", S_TMP)
        a("buffer_load_dwordx4 v[120:123], v3, s[20:23], s%d offen offset:1024", S_TMP)
        a.label(name + "_nopf")
    def dep(pre):
        a("s_cmp_eq_u32 s%d, 0", S_LAYER)
        a("s_cbranch_scc1 %s_dep_%s", name, "set" if pre is True else "ok")
        if late_y("g4"): a("s_barrier")
        a("s_add_u32 s%d, s%d, %d", S_TMP, S_TB, C41)
        a("s_lshl_b32 s%d, s%d, 8", S_TMP, S_TMP)
        a("s_sub_u32 s%d, s%d, 256", S_TMP + 2, S_TMP)
        a("s_max_u32 s%d, s%d, %d", S_TMP + 2, S_TMP + 2, C41 * 256)
        wait_counters(a, name + "_dep", 16, 16, pre)
    loader_loop(a, name, issue, 6, 5, N, S, stage, tail=tail, dep=None if prev_cut(name) else dep,
                events=[(S_H1, 5, slice_stats), (S_H2, 1, arrive), (S_H3, 1, poll_issue), (S_H4, 0, poll_check), (S_H5, 32, st_loads)])
    a("s_add_u32 s%d, s%d, 4", S_W, S_W)
    attn_setup()
    a("s_branch %s_attn", name)

    a.label(name + "_compute")
    na, nb = 6, 5
    ACC = 24
    acc = lambda i, j: ACC + 4 * (i * 4 + j) if j < 4 else ACC + 96 + 4 * (i - 4)
    nacc = 104
    FR = ACC + nacc
    fset = (na + nb) * 4
    fA = lambda st, i: FR + st * fset + 4 * i
    fB = lambda st, j: FR + st * fset + 4 * na + 4 * j
    VTOP = FR + 2 * fset
    SHD, SSH = S_TMP + 4, S_TMP + 5
    a("s_and_b32 s%d, s%d, 1", SHD, S_W)
    a("s_lshr_b32 s%d, s%d, 1", SSH, S_W)
    AR = 10
    def part_of(c, unit):
        if c == 0:
            a("s_mov_b32 s%d, 0", S_TMP + 3)
        else:
            a("s_xor_b32 s%d, s%d, %d", S_TMP + 3, SSH, 1 if c == 1 else 0)
            a("s_add_u32 s%d, s%d, 1", S_TMP + 3, S_TMP + 3)
            a("s_mul_i32 s%d, s%d, %d", S_TMP + 3, S_TMP + 3, unit)
    a("s_lshl_b32 s%d, s%d, 1", S_TMP + 2, SHD)
    for c in range(3):
        part_of(c, 8192)
        for i in range(2):
            read_addr_km(a, 64, S_TMP + 3, S_TMP + 2, i, AR + 2 * c + i)
    adA = [AR + i for i in range(6)]
    a("s_mul_i32 s%d, s%d, 64", S_TMP + 2, SSH)
    a("s_add_u32 s%d, s%d, 16", S_TMP + 2, S_TMP + 2)
    read_addrs_kc(a, XB, S_TMP + 2, AR + 6)
    read_addrs_kc(a, XB, None, AR + 8)
    adB, adH = [AR + 6, AR + 7], [AR + 8, AR + 9]
    for r in range(nacc): a("v_mov_b32 v%d, 0", ACC + r)
    for r in range(fset): a("v_mov_b32 v%d, 0", FR + fset + r)
    compute_loop_ctl_init(a, N, S, stage)
    if OPT.get("cprio"): a("s_setprio %d", OPT["cprio"])
    a("s_waitcnt lgkmcnt(0)")
    stamp(a, 1)
    ws_adjust(a)
    a("v_lshlrev_b32 v3, 3, v8")
    a("v_add_u32 v%d, %d, v3", EA + 1, LST)
    a("s_mul_i32 s%d, s%d, 512", S_TMP, SSH)
    a("s_add_u32 s%d, s%d, %d", S_TMP, S_TMP, LST + 128)
    a("v_add_u32 v%d, s%d, v3", EA, S_TMP)
    a("s_lshl_b32 s%d, s%d, 7", S_TMP, SHD)
    a("s_add_u32 s%d, s%d, %d", S_TMP, S_TMP, LCS)
    a("v_lshl_add_u32 v3, v5, 4, s%d", S_TMP)
    for c in range(3):
        part_of(c, 256)
        a("v_add_u32 v%d, s%d, v3", EA + 2 + c, S_TMP + 3)
    a("v_and_b32 v3, 1, v5")
    a("v_lshlrev_b32 v3, 1, v3")
    a("v_lshrrev_b32 v4, 1, v5")
    a("v_add_u32 v3, v3, v4")
    a("s_lshl_b32 s%d, s%d, 2", S_TMP, SHD)
    a("v_add_u32 v3, s%d, v3", S_TMP)
    a("v_lshrrev_b32 v4, 1, v8")
    a("v_xor_b32 v3, v3, v4")
    a("v_lshlrev_b32 v3, 4, v3")
    a("v_lshl_add_u32 v3, v8, 7, v3")
    a("s_mul_i32 s%d, s%d, %d", S_TMP + 2, SSH, 64 * 128)
    a("s_add_u32 s%d, s%d, %d", S_TMP + 2, S_TMP + 2, E + 16 * 128)
    for c in range(3):
        part_of(c, REG)
        a("s_add_u32 s%d, s%d, s%d", S_TMP, S_TMP + 2, S_TMP + 3)
        a("v_add_u32 v%d, s%d, v3", EA + 5 + c, S_TMP)
    a("s_add_u32 s%d, s%d, %d", S_TMP, S_TMP + 3, E)
    a("v_add_u32 v%d, s%d, v3", EA + 8, S_TMP)
    attn_setup()
    G1ORD = [(i, j if i % 2 == 0 else 3 - j) for i in range(4) for j in range(4)] + [(4, j) for j in range(5)] + [(5, 4 - j) for j in range(5)]
    if OPT.get("snake", 1) == 2:
        G1ORD = [(4, 4), (5, 4)] + [(5 - i if j % 2 == 0 else i, j) for j in range(4) for i in range(6)]
    if not OPT.get("snake", 1): G1ORD = [(i, j) for i in range(6) for j in range(4)] + [(4, 4), (5, 4)]
    def mf(st):
        L = G1ORD
        return ["v_mfma_f32_16x16x32_bf16 v[%d:%d], v[%d:%d], v[%d:%d], v[%d:%d]" %
                (acc(i, j), acc(i, j) + 3, fA(st, i), fA(st, i) + 3, fB(st, j), fB(st, j) + 3, acc(i, j), acc(i, j) + 3)
                for (i, j) in L]
    def rd(st, ks):
        L = []
        L += frag_reads("km", 64, adA, 0, ks, fA(st, 0))
        for j in range(4): L += frag_reads("kc", 0, adB, j, ks, fB(st, j))
        for i in range(1, 6): L += frag_reads("km", 64, adA, i, ks, fA(st, i))
        L += frag_reads("kc", 0, adH, 0, ks, fB(st, 4))
        return L
    SB = FR
    TV = SB + 36
    pr = lambda r: "v[%d:%d]" % (r, r + 1)
    def g1_final():
        for j in range(4): a("ds_read_b64 v[%d:%d], v%d offset:%d", SB + 2 * j, SB + 2 * j + 1, EA, j * 128)
        a("ds_read_b64 v[%d:%d], v%d", SB + 8, SB + 9, EA + 1)
        for c in range(3):
            for i in range(2):
                a("ds_read_b128 v[%d:%d], v%d offset:%d", SB + 12 + 4 * (2 * c + i), SB + 15 + 4 * (2 * c + i), EA + 2 + c, i * 64)
        M = dict(zip(G1ORD, mf(1)))
        units = []
        for c in range(3):
            for j in range(5 if c == 2 else 4):
                c0_, c1_ = acc(2 * c, j), acc(2 * c + 1, j)
                d = ED + 4 * (len(units) & 3)
                prs = [(c0_, SB + 12 + 8 * c), (c0_ + 2, SB + 14 + 8 * c), (c1_, SB + 16 + 8 * c), (c1_ + 2, SB + 18 + 8 * c)]
                w = ["v_pk_mul_f32 %s, %s, %s op_sel:[0,1] op_sel_hi:[1,1]" % (pr(TV + 2 * q), pr(cs), pr(SB + 2 * j)) for q, (x, cs) in enumerate(prs)]
                w += ["v_pk_fma_f32 %s, %s, %s, %s op_sel:[0,0,0] op_sel_hi:[1,0,1]" % (pr(x), pr(x), pr(SB + 2 * j), pr(TV + 2 * q)) for q, (x, cs) in enumerate(prs)]
                w += ["v_cvt_pk_bf16_f32 v%d, v%d, v%d" % (d + q, x, x + 1) for q, (x, cs) in enumerate(prs)]
                w += ["s_nop 1", "v_permlane16_swap_b32 v%d, v%d" % (d, d + 2), "v_permlane16_swap_b32 v%d, v%d" % (d + 1, d + 3)]
                w += ["ds_write_b128 v%d, v[%d:%d] offset:%d" % (EA + 5 + c, d, d + 3, j * 2048) if j < 4 else "ds_write_b128 v%d, v[%d:%d]" % (EA + 8, d, d + 3)]
                units.append(([M[(2 * c, j)], M[(2 * c + 1, j)]], w))
        overlap_final(a, units, after_lead=lambda: a("s_waitcnt lgkmcnt(0)"))
        a("s_waitcnt lgkmcnt(0)")
    cloop(a, name, mf, rd, adA + adB + adH, S, stage, final=g1_final)

    a.label(name + "_attn")
    a("s_barrier")
    stamp(a, 5)
    if OPT.get("stamp"): a("s_waitcnt lgkmcnt(0)")
    def blk(p): return 24 + 48 * p
    for p in range(2):
        b = blk(p)
        a("ds_read_b128 v[%d:%d], v226 offset:%d", b, b + 3, 2048 + 128 * p)
        a("ds_read_b128 v[%d:%d], v226 offset:%d", b + 4, b + 7, REG + 128 * p)
        a("ds_read_b128 v[%d:%d], v226 offset:%d", b + 8, b + 11, REG + 2048 + 128 * p)
    for p in range(2):
        b = blk(p)
        for dt in range(2):
            for bb in range(2):
                d = b + 12 + 4 * dt + 2 * bb
                a("ds_read_b64_tr_b16 v[%d:%d], v227 offset:%d", d, d + 1, 128 * p + 2048 * bb + 8 * dt)
    a("s_waitcnt lgkmcnt(8)")
    for p in range(2):
        b = blk(p)
        a("v_mfma_f32_16x16x32_bf16 v[%d:%d], v[%d:%d], v[%d:%d], 0", b + 20, b + 23, b + 4, b + 7, b, b + 3)
        a("v_mfma_f32_16x16x32_bf16 v[%d:%d], v[%d:%d], v[%d:%d], 0", b + 24, b + 27, b + 8, b + 11, b, b + 3)
    a("s_nop 7")
    both = lambda f: [f(blk(p)) for p in range(2)]
    for p in range(2):
        b = blk(p)
        for r in range(4):
            a("v_cndmask_b32 v%d, v%d, v%d, s[56:57]", b + 20 + r, b + 24 + r, b + 20 + r)
    for p in range(2):
        b = blk(p)
        a("v_cvt_pk_bf16_f32 v%d, v%d, v%d", b + 24, b + 20, b + 21)
        a("v_cvt_pk_bf16_f32 v%d, v%d, v%d", b + 25, b + 22, b + 23)
    for p in range(2):
        b = blk(p)
        for q in range(2):
            a("v_lshlrev_b32 v%d, 16, v%d", b + 20 + 2 * q, b + 24 + q)
            a("v_and_b32 v%d, 0xffff0000, v%d", b + 21 + 2 * q, b + 24 + q)
    for p in range(2):
        b = blk(p)
        for r in range(4): a("v_mul_f32 v%d, s58, v%d", b + 20 + r, b + 20 + r)
    for p in range(2):
        b = blk(p)
        a("v_cvt_pk_bf16_f32 v%d, v%d, v%d", b + 24, b + 20, b + 21)
        a("v_cvt_pk_bf16_f32 v%d, v%d, v%d", b + 25, b + 22, b + 23)
    for p in range(2):
        b = blk(p)
        for q in range(2):
            a("v_lshlrev_b32 v%d, 16, v%d", b + 20 + 2 * q, b + 24 + q)
            a("v_and_b32 v%d, 0xffff0000, v%d", b + 21 + 2 * q, b + 24 + q)
    for p in range(2):
        b = blk(p)
        for r in range(4): a("v_fma_f32 v%d, v%d, s59, v%d", b + 20 + r, b + 20 + r, AM + r)
    for p in range(2):
        b = blk(p)
        a("v_max3_f32 v%d, v%d, v%d, v%d", b + 24, b + 20, b + 21, b + 22)
    for p in range(2):
        b = blk(p)
        a("v_max_f32 v%d, v%d, v%d", b + 24, b + 24, b + 23)
    def xreduce(op, off):
        for sw in ("v_permlane16_swap_b32", "v_permlane32_swap_b32"):
            for p in range(2):
                b = blk(p)
                a("v_mov_b32 v%d, v%d", b + off + 1, b + off)
            a("s_nop 1")
            for p in range(2):
                b = blk(p)
                a("%s v%d, v%d", sw, b + off, b + off + 1)
            a("s_nop 0")
            for p in range(2):
                b = blk(p)
                a("%s v%d, v%d, v%d", op, b + off, b + off, b + off + 1)
    xreduce("v_max_f32", 24)
    for p in range(2):
        b = blk(p)
        for r in range(4): a("v_sub_f32 v%d, v%d, v%d", b + 20 + r, b + 20 + r, b + 24)
    for p in range(2):
        b = blk(p)
        for r in range(4): a("v_exp_f32 v%d, v%d", b + 20 + r, b + 20 + r)
    for p in range(2):
        b = blk(p)
        a("v_add_f32 v%d, v%d, v%d", b + 24, b + 20, b + 21)
        a("v_add_f32 v%d, v%d, v%d", b + 25, b + 22, b + 23)
    for p in range(2):
        b = blk(p)
        a("v_add_f32 v%d, v%d, v%d", b + 24, b + 24, b + 25)
    xreduce("v_add_f32", 24)
    for p in range(2):
        b = blk(p)
        a("v_rcp_f32 v%d, v%d", b + 24, b + 24)
    a("s_nop 0")
    for p in range(2):
        b = blk(p)
        for r in range(4): a("v_mul_f32 v%d, v%d, v%d", b + 20 + r, b + 20 + r, b + 24)
    for p in range(2):
        b = blk(p)
        a("v_cvt_pk_bf16_f32 v%d, v%d, v%d", b + 24, b + 20, b + 21)
        a("v_cvt_pk_bf16_f32 v%d, v%d, v%d", b + 25, b + 22, b + 23)
    for p in range(2):
        b = blk(p)
        a("v_cndmask_b32 v%d, 0, v%d, s[56:57]", b + 28, b + 24)
        a("v_cndmask_b32 v%d, 0, v%d, s[56:57]", b + 29, b + 25)
        a("v_cndmask_b32 v%d, v%d, 0, s[56:57]", b + 30, b + 24)
        a("v_cndmask_b32 v%d, v%d, 0, s[56:57]", b + 31, b + 25)
    a("s_waitcnt lgkmcnt(0)")
    a("s_nop 0")
    for p in range(2):
        b = blk(p)
        for dt in range(2):
            a("v_mfma_f32_16x16x32_bf16 v[%d:%d], v[%d:%d], v[%d:%d], 0", b + 32 + 4 * dt, b + 35 + 4 * dt,
              b + 12 + 4 * dt, b + 15 + 4 * dt, b + 28, b + 31)
    a("s_nop 7")
    for p in range(2):
        b = blk(p)
        for q in range(4):
            a("v_cvt_pk_bf16_f32 v%d, v%d, v%d", b + 40 + q, b + 32 + 2 * q, b + 33 + 2 * q)
        a("buffer_store_dwordx4 v[%d:%d], v225, s[16:19], 0 offen offset:%d%s", b + 40, b + 43, 2048 * p, STF())
    stamp(a, 6)
    stamp_flush(a, name, 7)
    if not next_cut(name):
        finish(a, name, lambda a: (a("s_add_u32 s%d, s%d, %d", S_TMP, S_TB, C12), a("s_lshl_b32 s%d, s%d, 8", S_TMP, S_TMP)))
    a.label(name + "_done")
    a("s_endpgm")
    assert VTOP == 216
    GEMM_VTOP[name] = ED + 16
    return LCS + 768

def build():
    body = Asm()
    for c in str(OPT.get("cuts", "")).split("_"):
        if c: CUTS.add(c)
    def wm(a, ka, da, kb, db):
        a("s_cmp_eq_u32 s%d, 0", S_LAYER)
        a("s_cselect_b32 s%d, %d, %d", S_WM, OPT.get(ka, da) - 1, OPT.get(kb, db) - 1)
    def slot(a, sreg, base, shift=0):
        a("s_lshr_b32 s%d, s%d, %d", S_TMP, sreg, shift)
        a("s_add_u32 s%d, s%d, %d", S_TMP, S_TMP, base)
        a("s_lshl_b32 s%d, s%d, 8", S_TMP, S_TMP)
        a("s_mov_b32 s%d, s%d", S_TMP + 2, S_TMP)
    lds = {}
    lds["g1"] = gen_g1(body, "g1", W=OPT.get("W1", 2))

    def g2_ptrs(a, ph):
        if ph == 0:
            a("s_load_dwordx2 s[4:5], s[0:1], %d", ARG["ws"])
            a("s_load_dwordx2 s[6:7], s[0:1], %d", ARG["x"])
            a("s_load_dwordx2 s[30:31], s[0:1], %d", ARG["wo"])
        elif ph == "L":
            srd(a, 8, 30, 0, 1024 * 1024 * 2)
            srd(a, 12, 4, WS["O"], ACT_BYTES)
        else:
            sel_ptr(a, 20, 1, WS["X2"])
            srd(a, 16, 4, WS["X1"], ACT_BYTES)
            srd(a, 56, 4, WS["H"], 2048 * LDH)
            srd(a, 60, 4, WS["EX"], ST_BYTES)
    def g2_decode(a):
        a("s_and_b32 s%d, s2, 3", S_TMP)
        a("s_lshl_b32 s%d, s%d, 2", S_TMP, S_TMP)
        a("s_bfe_u32 s%d, s2, 0x20003", S_TMP + 1)
        a("s_add_u32 s%d, s%d, s%d", S_TB, S_TMP, S_TMP + 1)
        a("s_bfe_u32 s%d, s2, 0x10002", S_TMP)
        a("s_lshl_b32 s%d, s%d, 3", S_TMP, S_TMP)
        a("s_lshr_b32 s%d, s2, 5", S_TMP + 2)
        a("s_add_u32 s%d, s%d, s%d", S_TA, S_TMP, S_TMP + 2)
        a("s_add_u32 s%d, s%d, s%d", S_J, S_TMP + 1, S_TMP + 2)
        a("s_mov_b32 s%d, 0", S_KB)
    lds["g2"] = gen_gemm(body, "g2", 256, Op("km", 64, 2048), Op("kc", 128, 2048), 1, 4, 16, OPT.get("S2", 4), OPT.get("W2", 2), g2_ptrs, g2_decode,
                         "resid", "ln2", 2048, cnt=lambda a: slot(a, S_TA, C23, 1),
                         dep=lambda a, pre: (slot(a, S_TB, C12), wait_counters(a, "g2_dep", 16, 16, pre)), lbase=32768 if OPT.get("latey") else 0)

    def g3_ptrs(a, ph):
        if ph == 0:
            a("s_load_dwordx2 s[4:5], s[0:1], %d", ARG["ws"])
            a("s_load_dwordx2 s[30:31], s[0:1], %d", ARG["w1"])
            a("s_load_dwordx2 s[6:7], s[0:1], %d", ARG["b1"])
        elif ph == "L":
            srd(a, 8, 30, 0, 2048 * 3584 * 2)
            srd(a, 12, 4, WS["H"], 2048 * LDH)
        else:
            srd(a, 20, 6, 0, 3584 * 2)
            srd(a, 16, 4, WS["U"], 1024 * LDU)
    def g3_decode(a):
        a("s_and_b32 s%d, s2, 1", S_TMP)
        a("s_lshl_b32 s%d, s%d, 2", S_TMP, S_TMP)
        a("s_bfe_u32 s%d, s2, 0x20003", S_TMP + 1)
        a("s_add_u32 s%d, s%d, s%d", S_TB, S_TMP, S_TMP + 1)
        a("s_bfe_u32 s%d, s2, 0x20001", S_TMP)
        a("s_mul_i32 s%d, s%d, 7", S_TMP, S_TMP)
        a("s_lshr_b32 s%d, s2, 5", S_TMP + 2)
        a("s_add_u32 s%d, s%d, s%d", S_TA, S_TMP, S_TMP + 2)
        a("s_add_u32 s%d, s%d, s%d", S_J, S_TMP + 1, S_TMP + 2)
        a("s_mov_b32 s%d, 0", S_KB)
        wm(a, "W3a", 4, "W3b", 2)
    def g3_cnt(a):
        a("s_cmp_ge_u32 s%d, 14", S_TA)
        a("s_cselect_b32 s%d, %d, %d", S_TMP, C34 + 1, C34)
        a("s_lshl_b32 s%d, s%d, 1", S_TMP + 1, S_TB)
        a("s_add_u32 s%d, s%d, s%d", S_TMP, S_TMP, S_TMP + 1)
        a("s_lshl_b32 s%d, s%d, 8", S_TMP, S_TMP)
    def g3_spare(a):
        a("s_cmp_ge_u32 s2, 256")
        a("s_cbranch_scc1 g3_done")
        a("s_load_dwordx2 s[4:5], s[0:1], %d", ARG["ws"])
        a("s_load_dwordx2 s[6:7], s[0:1], %d", ARG["w1" if OPT.get("pf") == 2 else "w2"])
        a("s_sub_u32 s3, s2, 224")
        a("v_lshrrev_b32 v2, 6, v0")
        a("v_lshlrev_b32 v1, 4, v0")
        for r in range(4): a("v_mov_b32 v%d, -1", 8 + r)
        a("v_readfirstlane_b32 s%d, v2", S_W)
        a("s_lshl_b32 s13, s3, 17")
        if late_y("g2"):
            a("s_cmp_lt_u32 s%d, 4", S_W)
            a("s_cbranch_scc1 g3_spare_y")
            a("s_barrier")
            a.label("g3_spare_y")
        a("s_waitcnt lgkmcnt(0)")
        ws_adjust(a)
        srd(a, 8, 4, WS["PART"], PART_BYTES)
        for k in range(16):
            a("buffer_store_dwordx4 v[8:11], v1, s[8:11], s13 offen sc1")
            a("s_add_u32 s13, s13, 8192")
        if not next_cut("g3"):
            a("s_mov_b32 s%d, %d", S_TMP, CR * 256)
            count_in(a, "g3_spare_cin")
        a("s_cmp_lg_u32 s%d, 0", S_LAYER)
        a("s_cbranch_scc1 g3_spare_end")
        if OPT.get("pf", 0) == 2:
            srd(a, 8, 6, 0, 2048 * 3584 * 2)
            a("s_lshl_b32 s3, s3, 16")
            a("s_add_u32 s3, s3, %d", OPT.get("pfrow", 768) * 7168)
            a("s_mov_b32 s12, %d", -(-(2048 - OPT.get("pfrow", 768)) * 7168 // (2 * MB)))
            a.label("g3_spare_loop")
            for k in range(8):
                a("buffer_load_dwordx4 v[4:7], v1, s[8:11], s3 offen")
                a("s_add_u32 s3, s3, 8192")
            a("s_add_u32 s3, s3, %d", 2 * MB - 65536)
            a("s_waitcnt vmcnt(8)")
            a("s_sub_u32 s12, s12, 1")
            a("s_cmp_lg_u32 s12, 0")
            a("s_cbranch_scc1 g3_spare_loop")
            a("s_waitcnt vmcnt(0)")
        elif OPT.get("pf", 0):
            srd(a, 8, 6, 0, 3584 * 2048 * 2)
            a("s_cmp_ge_u32 s3, 16")
            a("s_cselect_b32 s12, %d, 0", (1792 - 1024) * 4096)
            a("s_lshl_b32 s3, s3, 18")
            a("s_add_u32 s3, s3, s12")
            a("s_mov_b32 s12, 4")
            a.label("g3_spare_loop")
            for k in range(8):
                a("buffer_load_dwordx4 v[4:7], v1, s[8:11], s3 offen")
                a("s_add_u32 s3, s3, 8192")
            a("s_waitcnt vmcnt(8)")
            a("s_sub_u32 s12, s12, 1")
            a("s_cmp_lg_u32 s12, 0")
            a("s_cbranch_scc1 g3_spare_loop")
            a("s_waitcnt vmcnt(0)")
        a.label("g3_spare_end")
        if next_cut("g3"): a("s_endpgm")
        else:
            if late_y("g3"):
                a("s_cmp_ge_u32 s%d, 4", S_W)
                a("s_cbranch_scc1 g4_in")
                a("s_barrier")
            go_next(a, "g3")
    lds["g3"] = gen_gemm(body, "g3", 224, Op("km", 128, 7168), Op("km", 128, LDH), 2, 2, 32, 4, "s", g3_ptrs, g3_decode,
                         "biasA", "gelu", LDU, spare=g3_spare, cnt=g3_cnt,
                         dep=lambda a, pre: (slot(a, S_TB, C23), wait_counters(a, "g3_dep", 32, 32, pre)))

    def g4_ptrs(a, ph):
        if ph == 0:
            a("s_load_dwordx2 s[4:5], s[0:1], %d", ARG["ws"])
            a("s_load_dwordx2 s[6:7], s[0:1], %d", ARG["out"])
            a("s_load_dwordx2 s[30:31], s[0:1], %d", ARG["w2"])
            a("s_load_dwordx2 s[34:35], s[0:1], %d", ARG["b2"])
        elif ph == "L":
            srd(a, 8, 4, WS["U"], 1024 * LDU)
            srd(a, 12, 30, 0, 3584 * 2048 * 2)
        else:
            srd(a, 20, 4, WS["X1"], ACT_BYTES)
            srd(a, 56, 34, 0, 4096)
            sel_ptr(a, 16, 0, LOFF + WS["X2"])
            srd(a, 60, 4, LOFF + WS["ST"], ST_BYTES)
            srd(a, 84, 4, WS["PART"], PART_BYTES)
    def g4_decode(a):
        a("s_bfe_u32 s%d, s2, 0x10001", S_TMP)
        a("s_lshl_b32 s%d, s%d, 2", S_TMP, S_TMP)
        a("s_bfe_u32 s%d, s2, 0x20003", S_TMP + 1)
        a("s_add_u32 s%d, s%d, s%d", S_TA, S_TMP, S_TMP + 1)
        a("s_bfe_u32 s%d, s2, 0x10002", S_TMP)
        a("s_lshl_b32 s%d, s%d, 3", S_TMP, S_TMP)
        a("s_lshr_b32 s%d, s2, 5", S_TMP + 2)
        a("s_add_u32 s%d, s%d, s%d", S_TB, S_TMP, S_TMP + 2)
        a("s_and_b32 s%d, s2, 1", S_ROLE)
        a("s_add_u32 s%d, s%d, s%d", S_J, S_TMP + 1, S_TMP + 2)
        a("s_lshl_b32 s%d, s%d, 4", S_PAIR, S_TA)
        a("s_add_u32 s%d, s%d, s%d", S_PAIR, S_PAIR, S_TB)
        a("s_mul_i32 s%d, s%d, 28", S_KB, S_ROLE)
        wm(a, "W4a", 4, "W4b", 2)
    def g4_dep(a, pre):
        a("s_lshl_b32 s%d, s%d, 1", S_TMP, S_TA)
        a("s_add_u32 s%d, s%d, s%d", S_TMP, S_TMP, S_ROLE)
        a("s_add_u32 s%d, s%d, %d", S_TMP, S_TMP, C34)
        a("s_lshl_b32 s%d, s%d, 8", S_TMP, S_TMP)
        a("s_mov_b32 s%d, %d", S_TMP + 2, CR * 256)
        wait_counters(a, "g4_dep", 14, 32, pre)
    lds["g4"] = gen_gemm(body, "g4", 256, Op("kc", 128, LDU), Op("km", 128, 4096), 2, 2, 28, 4, "s", g4_ptrs, g4_decode,
                         "resid+biasB", "plain", 2048, stats=True, split=True, cnt=lambda a: slot(a, S_TB, C41), dep=g4_dep, wop="B")

    seq = [(p, ab) for ab in "ab" for p in PHASES]
    launches = []
    for k, (p, ab) in enumerate(seq):
        if k == 0 or prev_cut(p): launches.append([p + ab + "_kernel", 0, 0])
        launches[-1][1] = max(launches[-1][1], GEMM_VTOP[p])
        launches[-1][2] = LFLAG + 256
    body.label("code_end")
    for kn, vt, l in launches: kernel_desc(body, kn, vt, NSGPR)
    head = open("/code/%s.s.ref" % NAME).read().split("; Override launch geometry")[0]
    lines = ["; @launch kernel=%s grid=(256,1,1) block=(512,1,1) lds=%d" % (kn, l) for kn, vt, l in launches]
    return head + "\n".join(lines) + "\n" + '.amdgcn_target "amdgcn-amd-amdhsa--gfx950"\n' + body.text()

if __name__ == "__main__":
    out = sys.argv[1] if len(sys.argv) > 1 else "/code/%s.s" % NAME
    for o in sys.argv[2:]:
        k, _, v = o.partition("=")
        OPT[k] = (int(v) if v.isdigit() and k != "cuts" else v) if v else 1
    text = build()
    open(out, "w").write(text)
    import json
    json.dump(KID, open(out + ".kid", "w"))
    hazard.check(text)
```

```python
import sys, struct, math
from asmlib import *
import hazard

NAME = "interleave_layers__sliding_local_dilated__mixer_token_mlp__prompt"
MB = 1 << 20
WS = dict(ST=0, CS=1 * MB, EX=2 * MB, CNT=3 * MB, O=4 * MB, X1=8 * MB, H=12 * MB, U=17 * MB, X2=25 * MB, PART=29 * MB)
LDH = 2304
LDU = 8192
ST_BYTES = 16 * 2048 * 8
CS_BYTES = 16 * 3072 * 4
PART_BYTES = 256 * 16384
ARG = dict(x=0, wqkv=8, wo=16, bx=24, w1=32, b1=40, w2=48, b2=56, out=64, dbg=72, ws=80)
ACT_BYTES = 2048 * 1024 * 2

OPT = {}
for _o in sys.argv[2:]:
    _k, _, _v = _o.partition('=')
    if _k == 'LDH': LDH = int(_v)
    if _k == 'LDU': LDU = int(_v)

def STF():
    return {0: "", 1: " sc1", 2: " nt", 3: " sc0 sc1", 4: " sc0 sc1 nt"}[OPT.get("stf", 1)]

def WSC():
    return {0: "", 1: " sc1", 2: " sc0 sc1", 3: " sc0"}[OPT.get("wsc", 0)]

def ASC():
    return " sc1" if OPT.get("asc", 1) else ""

def f32(x):
    return struct.unpack("<I", struct.pack("<f", x))[0]

LOFF = 40 * MB
STAMP_OFF = 34 * MB
KID = {}
def stamp(a, k):
    if OPT.get("stamp"):
        a("%s s[%d:%d]", "s_memtime" if OPT["stamp"] == 2 else "s_memrealtime", 64 + 2 * k, 65 + 2 * k)

def stamp_flush(a, name, n, wsreg=4, waitvm=True, extra=False):
    if not OPT.get("stamp"): return
    kid = KID.setdefault(name, len(KID))
    if waitvm: a("s_waitcnt vmcnt(0)")
    a("%s s[%d:%d]", "s_memtime" if OPT["stamp"] == 2 else "s_memrealtime", 64 + 2 * n, 65 + 2 * n)
    a("s_waitcnt lgkmcnt(0)")
    a("s_add_u32 s84, s%d, 0x%x", wsreg, STAMP_OFF + kid * 512 * 1024)
    a("s_addc_u32 s85, s%d, 0", wsreg + 1)
    a("s_mov_b32 s86, 0x80000")
    a("s_mov_b32 s87, 0x20000")
    a("v_lshrrev_b32 v1, 6, v0")
    a("v_lshlrev_b32 v1, 6, v1")
    a("s_lshl_b32 s88, s2, 9")
    a("v_add_u32 v1, s88, v1")
    for k in range(n + 1 + extra):
        a("v_mov_b32 v2, s%d", 64 + 2 * k)
        a("buffer_store_dword v2, v1, s[84:87], 0 offen offset:%d", 4 * k)
        a("s_nop 1")

def srd(a, d, p, off, nbytes):
    if off:
        a("s_add_u32 s%d, s%d, 0x%x", d, p, off)
        a("s_addc_u32 s%d, s%d, 0", d + 1, p + 1)
    else:
        a("s_mov_b32 s%d, s%d", d, p)
        a("s_mov_b32 s%d, s%d", d + 1, p + 1)
    a("s_mov_b32 s%d, 0x%x", d + 2, nbytes)
    a("s_mov_b32 s%d, 0x20000", d + 3)

def round_bf16_scalar(a, v):
    a("v_cvt_pk_bf16_f32 v%d, v%d, v%d", v, v, v)
    a("v_lshlrev_b32 v%d, 16, v%d", v, v)

class Op:
    def __init__(self, kind, T, ld):
        self.kind, self.T, self.ld = kind, T, ld
        self.bytes = T * 128
        self.n = self.bytes // 1024
        self.npw = self.n // 4
        self.kadv = 128 if kind == "kc" else 64 * ld

S_TA, S_TB, S_KB, S_J, S_W = 24, 25, 26, 27, 28
S_T, S_SLOT, S_OFA, S_OFB = 32, 33, 34, 35
S_LA, S_LB, S_M0A, S_M0B = 36, 37, 38, 39
S_TMP = 40
S_CNT, S_DELTA, S_SI = 48, 49, 50
S_ST = 52
S_DP, S_DN = 51, 29
S_N, S_ROLE, S_PAIR, S_OWN, S_OTH, S_WM = 90, 91, 92, 93, 94, 95
S_LAYER, S_LOFF = 96, 97
NSGPR = 100
C12, C23, C34, C41, CR = 0, 16, 24, 40, 56
CUTS = set()

def loader_voffs(a, op, stile, vb, extra_cols=0):
    ld = op.ld
    a("s_mov_b32 s%d, %d", S_TMP, ld)
    if op.kind == "kc":
        a("v_lshrrev_b32 v3, 3, v2")
        a("v_mul_lo_u32 v3, v3, s%d", S_TMP)
        a("v_lshrrev_b32 v4, 4, v2")
        a("v_xor_b32 v4, v4, v2")
        a("v_and_b32 v4, 7, v4")
        a("v_lshl_add_u32 v3, v4, 4, v3")
        a("s_mul_i32 s%d, s%d, %d", S_TMP + 1, stile, op.T * ld)
        a("s_mul_i32 s%d, s%d, %d", S_TMP + 2, S_W, 8 * op.npw * ld)
        a("s_add_u32 s%d, s%d, s%d", S_TMP + 1, S_TMP + 1, S_TMP + 2)
        a("v_xor_b32 v4, 64, v3")
        for i in range(op.npw):
            a("s_add_u32 s%d, s%d, %d", S_TMP + 2, S_TMP + 1, i * 8 * ld)
            a("v_add_u32 v%d, s%d, v%d", vb + i, S_TMP + 2, 3 + (i & 1))
    elif op.T == 128:
        a("v_lshrrev_b32 v4, 4, v2")
        a("v_mul_lo_u32 v3, v4, s%d", S_TMP)
        a("v_lshlrev_b32 v4, 1, v4")
        a("v_xor_b32 v4, v4, v2")
        a("v_and_b32 v4, 15, v4")
        a("v_lshl_add_u32 v3, v4, 4, v3")
        a("s_mul_i32 s%d, s%d, 256", S_TMP + 1, stile)
        a("s_mul_i32 s%d, s%d, %d", S_TMP + 2, S_W, 16 * ld)
        a("s_add_u32 s%d, s%d, s%d", S_TMP + 1, S_TMP + 1, S_TMP + 2)
        a("v_xor_b32 v4, 128, v3")
        for i in range(4):
            a("s_add_u32 s%d, s%d, %d", S_TMP + 2, S_TMP + 1, i * 4 * ld)
            a("v_add_u32 v%d, s%d, v%d", vb + i, S_TMP + 2, 3 + (i >> 1))
    elif op.T == 64:
        a("v_lshrrev_b32 v3, 3, v2")
        a("v_mul_lo_u32 v3, v3, s%d", S_TMP)
        a("v_bfe_u32 v4, v2, 4, 1")
        a("v_lshlrev_b32 v4, 1, v4")
        a("v_xor_b32 v4, v4, v2")
        a("v_and_b32 v4, 7, v4")
        a("v_lshl_add_u32 v3, v4, 4, v3")
        a("s_mul_i32 s%d, s%d, 128", S_TMP + 1, stile)
        a("s_mul_i32 s%d, s%d, %d", S_TMP + 2, S_W, 16 * ld)
        a("s_add_u32 s%d, s%d, s%d", S_TMP + 1, S_TMP + 1, S_TMP + 2)
        a("v_xor_b32 v4, 64, v3")
        for i in range(2):
            a("s_add_u32 s%d, s%d, %d", S_TMP + 2, S_TMP + 1, i * 8 * ld + extra_cols * 2)
            a("v_add_u32 v%d, s%d, v%d", vb + i, S_TMP + 2, 3 + i)
    else:
        raise ValueError

def lane_parts(a):
    a("v_lshrrev_b32 v5, 4, v2")
    a("v_bfe_u32 v6, v2, 2, 2")
    a("v_and_b32 v7, 3, v2")
    a("v_and_b32 v8, 15, v2")

def read_addrs_kc(a, opbase, srow, vb):
    a("v_lshrrev_b32 v3, 1, v8")
    a("v_xor_b32 v3, v3, v5")
    a("v_lshlrev_b32 v3, 4, v3")
    a("v_lshl_add_u32 v3, v8, 7, v3")
    if srow is not None:
        a("s_lshl_b32 s%d, s%d, 7", S_TMP, srow)
        a("s_add_u32 s%d, s%d, %d", S_TMP, S_TMP, opbase)
        a("v_add_u32 v%d, s%d, v3", vb, S_TMP)
    else:
        a("v_add_u32 v%d, %d, v3", vb, opbase)
    a("v_xor_b32 v%d, 64, v%d", vb + 1, vb)

def read_addr_km(a, T, sbase, stile, i, vd, sxor=None):
    rowb = T * 2
    if T == 128:
        a("v_and_b32 v3, 1, v5")
        a("v_lshl_or_b32 v3, v3, 2, v6")
    else:
        a("v_and_b32 v3, 1, v5")
        a("v_lshlrev_b32 v3, 1, v3")
        a("v_lshrrev_b32 v4, 1, v6")
        a("v_or_b32 v3, v3, v4")
    a("s_add_u32 s%d, s%d, %d", S_TMP, stile, i)
    if sxor is not None: a("s_xor_b32 s%d, s%d, s%d", S_TMP, S_TMP, sxor)
    a("v_xor_b32 v3, s%d, v3", S_TMP)
    a("v_lshlrev_b32 v3, 5, v3")
    a("v_lshl_add_u32 v3, v7, 3, v3")
    a("v_lshl_add_u32 v4, v5, 3, v6")
    a("v_lshl_add_u32 v3, v4, %d, v3", rowb.bit_length() - 1)
    a("v_add_u32 v%d, s%d, v3", vd, sbase)

def frag_reads(kind, T, addr_regs, idx, ks, dst):
    if kind == "kc":
        return ["ds_read_b128 v[%d:%d], v%d offset:%d" % (dst, dst + 3, addr_regs[ks], idx * 2048)]
    rowb = T * 2
    return ["ds_read_b64_tr_b16 v[%d:%d], v%d offset:%d" % (dst + 2 * h, dst + 2 * h + 1, addr_regs[idx], h * 4 * rowb + ks * 32 * rowb)
            for h in range(2)]

BUD = [2]
def interleave(a, mfmas, reads, tail=()):
    reads = list(reads); tail = list(tail)
    if OPT.get("noreads"): reads = []
    if OPT.get("nomfma"): mfmas = ["s_nop 0"] * 2
    for m in mfmas:
        a(m)
        budget = BUD[0]
        while reads and budget > 0:
            cost = 2 if "b128" in reads[0] else 1
            if cost > budget: break
            a(reads.pop(0)); budget -= cost
        if not reads:
            while tail and budget > 0:
                a(tail.pop(0)); budget -= 1
    for r in reads: a(r)
    for t in tail: a(t)

def loader_loop(a, name, issue, nW, nA, N, S, stage_bytes, dep=None, events=(), tail=None):
    n = nW + nA
    early = OPT.get("early", 2)
    def adv():
        a("s_add_u32 s%d, s%d, %d", S_SLOT, S_SLOT, stage_bytes)
        a("s_add_u32 s%d, s%d, 1", S_T, S_T)
    full = early == 2 and not events
    for part in (("W", "A") if early else (None,)):
        if part != "W" and dep: dep(None)
        a("s_mov_b32 s%d, 0", S_T)
        a("s_mov_b32 s%d, 0", S_SLOT)
        a.label("%s_ld_p%s" % (name, part))
        issue(part)
        adv()
        a("s_cmp_lt_u32 s%d, %d", S_T, S if (full and part == "W") else S - 1)
        a("s_cbranch_scc1 %s_ld_p%s", name, part)
    if dep: dep("rest")
    if full:
        special = {S + k: (S - 2 - k) * nA + k * n for k in range(S - 2)}
        a("s_waitcnt vmcnt(%d)", (S - 2) * nA)
        a("s_barrier")
        issue("A")
        a("s_mov_b32 s%d, 0", S_SLOT)
        a("s_add_u32 s%d, s%d, 1", S_T, S_T)
    else:
        special = {S - 1 + k: (S - 2 - k) * nA + k * n for k in range(S - 2)} if early else {}
        a("s_waitcnt vmcnt(%d)", special.pop(S - 1, (S - 2) * n))
        a("s_branch %s_ld_bar", name)
    a.label(name + "_ld_loop")
    for T in special:
        a("s_cmp_eq_u32 s%d, %d", S_T, T)
        a("s_cbranch_scc1 %s_ld_s%d", name, T)
    for k, (at, extra, fn) in enumerate(events):
        if extra:
            a("s_sub_u32 s%d, s%d, s%d", S_TMP, S_T, at)
            a("s_sub_u32 s%d, s%d, 1", S_TMP, S_TMP)
            a("s_cmp_lt_u32 s%d, %d", S_TMP, S - 1)
            a("s_cbranch_scc1 %s_ld_w%d", name, k)
    a("s_waitcnt vmcnt(%d)", (S - 2) * n)
    a.label(name + "_ld_bar")
    a("s_barrier")
    issue(None)
    for k, (at, extra, fn) in enumerate(events):
        a("s_cmp_eq_u32 s%d, s%d", S_T, at)
        a("s_cbranch_scc1 %s_ld_h%d", name, k)
        a.label(name + "_ld_c%d" % k)
    adv()
    a("s_cmp_eq_u32 s%d, %d", S_SLOT, S * stage_bytes)
    a("s_cselect_b32 s%d, 0, s%d", S_SLOT, S_SLOT)
    a("s_cmp_lt_u32 s%d, %d", S_T, N)
    a("s_cbranch_scc1 %s_ld_loop", name)
    if tail: tail()
    else:
        for t in range(N - S + 1, N):
            a("s_waitcnt vmcnt(%d)", (N - 1 - t) * n)
            a("s_barrier")
    if events or special:
        a("s_branch %s_ld_end", name)
        for T, c in special.items():
            a.label(name + "_ld_s%d" % T)
            a("s_waitcnt vmcnt(%d)", c)
            a("s_branch %s_ld_bar", name)
        for k, (at, extra, fn) in enumerate(events):
            if extra:
                a.label(name + "_ld_w%d" % k)
                a("s_waitcnt vmcnt(%d)", (S - 2) * n + extra)
                a("s_branch %s_ld_bar", name)
            a.label(name + "_ld_h%d" % k)
            fn()
            a("s_branch %s_ld_c%d", name, k)
        a.label(name + "_ld_end")

def kidx_offsets(a, W, advA, advB, wrap=0):
    wm = ("s%d" % S_WM) if W == "s" else str(W - 1)
    a("s_add_u32 s%d, s%d, s%d", S_TMP, S_T, S_J)
    a("s_and_b32 s%d, s%d, %s", S_TMP, S_TMP, wm)
    a("s_andn2_b32 s%d, s%d, %s", S_TMP + 1, S_T, wm)
    a("s_or_b32 s%d, s%d, s%d", S_TMP, S_TMP, S_TMP + 1)
    a("s_add_u32 s%d, s%d, s%d", S_TMP, S_TMP, S_KB)
    if wrap: a("s_and_b32 s%d, s%d, %d", S_TMP, S_TMP, wrap - 1)
    a("s_mul_i32 s%d, s%d, %d", S_OFA, S_TMP, advA)
    a("s_mul_i32 s%d, s%d, %d", S_OFB, S_TMP, advB)

def compute_loop_ctl_init(a, N, S, stage_bytes):
    a("s_mov_b32 s%d, %s", S_CNT, N)
    a("s_mov_b32 s%d, 0", S_SI)
    a("s_mov_b32 s%d, %d", S_DP, stage_bytes)
    a("s_mov_b32 s%d, 0x%x", S_DN, (-(S - 1) * stage_bytes) & 0xffffffff)

def addr_update(addr_regs, S, stage_bytes):
    L = ["s_add_u32 s%d, s%d, 1" % (S_SI, S_SI),
         "s_cmp_eq_u32 s%d, %d" % (S_SI, S),
         "s_cselect_b32 s%d, s%d, s%d" % (S_DELTA, S_DN, S_DP),
         "s_cselect_b32 s%d, 0, s%d" % (S_SI, S_SI)]
    L += ["v_add_u32 v%d, s%d, v%d" % (r, S_DELTA, r) for r in addr_regs]
    L += ["s_sub_u32 s%d, s%d, 1" % (S_CNT, S_CNT), "s_cmp_lg_u32 s%d, 0" % S_CNT]
    return L

def gelu_pairs(a, regs, tmp, cst):
    n = len(regs)
    pr = lambda r: "v[%d:%d]" % (r, r + 1)
    for k, r in enumerate(regs): a("v_pk_mul_f32 %s, %s, %s", pr(tmp + 2 * k), pr(r), pr(r))
    for k, r in enumerate(regs): a("v_pk_fma_f32 %s, %s, %s, %s", pr(tmp + 2 * k), pr(tmp + 2 * k), pr(cst), pr(cst + 2))
    for k, r in enumerate(regs): a("v_pk_mul_f32 %s, %s, %s", pr(tmp + 2 * k), pr(tmp + 2 * k), pr(r))
    for k in range(2 * n): a("v_exp_f32 v%d, v%d", tmp + k, tmp + k)
    for k, r in enumerate(regs): a("v_pk_add_f32 %s, %s, %s", pr(tmp + 2 * k), pr(tmp + 2 * k), pr(cst + 4))
    for k in range(2 * n): a("v_rcp_f32 v%d, v%d", tmp + k, tmp + k)
    for k, r in enumerate(regs): a("v_pk_mul_f32 %s, %s, %s", pr(r), pr(r), pr(tmp + 2 * k))

def cloop(a, name, mf, rd, addrs, S, stage, first=None, mid=None, final=None):
    stamp(a, 2)
    a("s_barrier")
    stamp(a, 3)
    if OPT.get("stamp"): a("s_waitcnt lgkmcnt(0)")
    if OPT.get("skip0", 1):
        for r in rd(0, 0): a(r)
        if first: first()
        a("s_branch %s_cloop3", name)
    else:
        if first: first()
        a("s_branch %s_cloop2", name)
    if mid:
        a.label(name + "_mid")
        a("s_waitcnt vmcnt(0)")
        a("s_nop 7")
        mid[1]()
        a("s_nop 1")
        a("s_branch %s_cloop2", name)
    a.raw(".p2align 3")
    a.label(name + "_cloop")
    a("s_barrier")
    if mid:
        a("s_cmp_eq_u32 s%d, %d", S_CNT, mid[0])
        a("s_cbranch_scc1 %s_mid", name)
    a.label(name + "_cloop2")
    BUD[0] = OPT.get("bud_" + name, 2)
    interleave(a, mf(1), rd(0, 0))
    a.label(name + "_cloop3")
    a("s_waitcnt lgkmcnt(0)")
    interleave(a, mf(0), rd(1, 1), addr_update(addrs, S, stage))
    a("s_waitcnt lgkmcnt(0)")
    a("s_cbranch_scc1 %s_cloop", name)
    stamp(a, 4)
    if final: final()
    else:
        for m in mf(1): a(m)

def overlap_final(a, units, lead=3, after_lead=None):
    for u in range(min(lead, len(units))):
        for m in units[u][0]: a(m)
    if after_lead: after_lead()
    for u, (_, work) in enumerate(units):
        ms = list(units[u + lead][0]) if u + lead < len(units) else []
        step = max(1, len(work) // max(1, len(ms)))
        if u + 1 == len(units) or u + lead >= len(units): pass
        for k, w in enumerate(work):
            if ms and k % step == 0: a(ms.pop(0))
            a(w)
        for m in ms: a(m)

GEMM_VTOP = {}
CNT_BYTES = 64 * 256
def count_in(a, label, area=0, nxt=None):
    srd(a, 84, 4, WS["CNT"] + area, CNT_BYTES)
    a("s_lshl_b32 s%d, s%d, 2", S_TMP + 1, S_TMP + 1)
    a("s_add_u32 s%d, s%d, s%d", S_TMP, S_TMP, S_TMP + 1)
    a("v_mov_b32 v3, s%d", S_TMP)
    a("v_mov_b32 v4, 1")
    if nxt and OPT.get("look", 1):
        dec, slots, need0, need1 = DEPS[nxt]
        a("s_cmp_lg_u32 s%d, 0", S_W)
        a("s_cbranch_scc1 %s_nl", label)
        a("v_and_b32 v2, 63, v0")
        dec(a)
        slots(a)
        flag_lanes(a, 10, 11, 12, need0, need1)
        a("buffer_load_dword v11, v10, s[84:87], 0 offen sc1")
        a("v_cmp_ne_u32 s[%d:%d], v10, v3", S_TMP + 4, S_TMP + 5)
        a("s_lshl_b32 s%d, s%d, 2", S_TMP + 3, S_LAYER)
        a("s_add_u32 s%d, s%d, %d", S_TMP + 3, S_TMP + 3, PHASES.index(nxt) + 1 + (4 if nxt == "g1" else 0))
        a("v_mov_b32 v12, %d", LFLAG)
        a("v_mov_b32 v13, s%d", S_TMP + 3)
        a("s_waitcnt vmcnt(0)")
        a("v_cmp_eq_u32 vcc, 0, v11")
        a("s_nop 0")
        a("s_and_b64 vcc, vcc, s[%d:%d]", S_TMP + 4, S_TMP + 5)
        a("s_cbranch_scc1 %s_nl", label)
        a("ds_write_b32 v12, v13")
        a("s_waitcnt lgkmcnt(0)")
        a.label(label + "_nl")
    a("s_waitcnt vmcnt(0)")
    a("s_barrier")
    a("s_cmp_lg_u32 s%d, 0", S_W)
    a("s_cbranch_scc1 %s", label)
    a("s_mov_b64 exec, 1")
    a("buffer_store_dword v4, v3, s[84:87], 0 offen sc1")
    a("s_mov_b64 exec, -1")
    a.label(label)

def flag_lanes(a, vd, vt0, vt1, need0, need1):
    a("v_cmp_gt_u32 vcc, 32, v2")
    a("v_mov_b32 v%d, s%d", vd, S_TMP)
    a("v_mov_b32 v%d, s%d", vt1, S_TMP + 2)
    a("v_cndmask_b32 v%d, v%d, v%d, vcc", vd, vt1, vd)
    a("v_mov_b32 v%d, %d", vt0, need0 - 1)
    a("v_mov_b32 v%d, %d", vt1, need1 - 1)
    a("v_cndmask_b32 v%d, v%d, v%d, vcc", vt0, vt1, vt0)
    a("v_and_b32 v%d, 31, v2", vt1)
    a("v_min_u32 v%d, v%d, v%d", vt1, vt1, vt0)
    a("v_lshl_add_u32 v%d, v%d, 2, v%d", vd, vt1, vd)

DEPS = {}
LFLAG = 131072
def wait_counters(a, label, need0, need1, pre=None, first=None):
    pid = PHASES.index(label[:2]) + 1
    two = OPT.get("two", 1) and first is not None
    if pre == "rest":
        if not two: return
        a("s_cmp_lg_u32 s%d, 0", S_W)
        a("s_cbranch_scc1 %s_rok", label)
        a("s_mov_b32 s%d, 0x40000", S_TMP + 1)
        srd(a, 84, 4, WS["CNT"], CNT_BYTES)
        a.label(label + "_r")
        a("v_cmp_eq_u32 vcc, 0, v23")
        a("s_sub_u32 s%d, s%d, 1", S_TMP + 1, S_TMP + 1)
        a("s_cmp_eq_u32 s%d, 0", S_TMP + 1)
        a("s_cbranch_scc1 %s_rok", label)
        a("s_cbranch_vccz %s_rok", label)
        a("s_sleep %d", OPT.get("dslp", 2))
        a("buffer_load_dword v23, v21, s[84:87], 0 offen sc1")
        a("s_waitcnt vmcnt(0)")
        a("s_branch %s_r", label)
        a.label(label + "_rok")
        return
    a("s_lshl_b32 s%d, s%d, 2", S_TMP + 3, S_LAYER)
    a("s_add_u32 s%d, s%d, %d", S_TMP + 3, S_TMP + 3, pid)
    a("s_mov_b32 s%d, 0x800000", S_TMP + 1)
    a("v_mov_b32 v24, %d", LFLAG)
    a("s_cmp_lg_u32 s%d, 0", S_W)
    a("s_cbranch_scc1 %s_lds", label)
    if OPT.get("look", 1):
        a("ds_read_b32 v23, v24")
        a("s_waitcnt lgkmcnt(0)")
        a("v_readfirstlane_b32 s%d, v23", S_TMP + 4)
        a("v_mov_b32 v21, 0")
        a("s_cmp_eq_u32 s%d, s%d", S_TMP + 4, S_TMP + 3)
        a("s_cbranch_scc1 %s_ok", label)
    srd(a, 84, 4, WS["CNT"], CNT_BYTES)
    flag_lanes(a, 21, 22, 23, need0, need1)
    a("s_mov_b32 s%d, 0x40000", S_TMP + 1)
    f0, f1 = first if two else (32, 32)
    a("s_mov_b32 s%d, 0x%x", S_TMP + 4, (1 << f0) - 1)
    a("s_mov_b32 s%d, 0x%x", S_TMP + 5, (1 << f1) - 1)
    a.label(label)
    a("buffer_load_dword v23, v21, s[84:87], 0 offen sc1")
    a("s_sub_u32 s%d, s%d, 1", S_TMP + 1, S_TMP + 1)
    a("s_waitcnt vmcnt(0)")
    a("v_cmp_eq_u32 vcc, 0, v23")
    a("s_cmp_eq_u32 s%d, 0", S_TMP + 1)
    a("s_cbranch_scc1 %s_seen", label)
    a("s_and_b64 vcc, vcc, s[%d:%d]", S_TMP + 4, S_TMP + 5)
    a("s_cbranch_scc0 %s_seen", label)
    a("s_sleep %d", OPT.get("dslp", 2))
    a("s_branch %s", label)
    a.label(label + "_seen")
    a("v_mov_b32 v22, s%d", S_TMP + 3)
    a("ds_write_b32 v24, v22")
    a("s_branch %s_ok", label)
    a.label(label + "_lds")
    a("ds_read_b32 v23, v24")
    a("s_sub_u32 s%d, s%d, 1", S_TMP + 1, S_TMP + 1)
    a("s_waitcnt lgkmcnt(0)")
    a("v_readfirstlane_b32 s%d, v23", S_TMP)
    a("s_cmp_eq_u32 s%d, 0", S_TMP + 1)
    a("s_cbranch_scc1 %s_ok", label)
    a("s_cmp_eq_u32 s%d, s%d", S_TMP, S_TMP + 3)
    a("s_cbranch_scc1 %s_ok", label)
    a("s_sleep 1")
    a("s_branch %s_lds", label)
    a.label(label + "_ok")

PHASES = ["g1", "g2", "g3", "g4"]
def prev_cut(name):
    k = PHASES.index(name)
    return "%d%d" % ((k - 1) % 4 + 1, k + 1) in CUTS
def next_cut(name):
    k = PHASES.index(name)
    return "%d%d" % (k + 1, (k + 1) % 4 + 1) in CUTS

def entry(a, name, ntiles, spare=False):
    for layer, ab in enumerate("ab"):
        if prev_cut(name) or (name == "g1" and layer == 0):
            kernel_header(a, "%s%s_kernel" % (name, ab))
            a("s_mov_b32 s%d, %d", S_LAYER, layer)
            a("s_mov_b32 s%d, 0x%x", S_LOFF, layer * LOFF)
            a("v_mov_b32 v1, %d", LFLAG)
            a("v_mov_b32 v2, 0")
            a("ds_write_b32 v1, v2")
            a("s_branch %s_in", name)
            KERNELS.append("%s%s_kernel" % (name, ab))
    a.raw(".p2align 6")
    a.label(name + "_in")
    a("s_cmp_ge_u32 s2, %d", ntiles)
    a("s_cbranch_scc1 %s_%s", name, "spare" if spare else "done")
    stamp(a, 0)
KERNELS = []

def ws_adjust(a):
    a("s_add_u32 s4, s4, s%d", S_LOFF)
    a("s_addc_u32 s5, s5, 0")

def sel_ptr(a, d, which_layer, off):
    a("s_add_u32 s%d, s4, 0x%x", d, off)
    a("s_addc_u32 s%d, s5, 0", d + 1)
    a("s_cmp_eq_u32 s%d, %d", S_LAYER, which_layer)
    a("s_cselect_b32 s%d, s%d, s6", d, d)
    a("s_cselect_b32 s%d, s%d, s7", d + 1, d + 1)
    a("s_mov_b32 s%d, 0x%x", d + 2, ACT_BYTES)
    a("s_mov_b32 s%d, 0x20000", d + 3)

def late_y(name):
    return OPT.get("latey", 0) and name != "g1" and not next_cut(name)

def go_next(a, name):
    if name == "g4":
        a("s_mov_b32 s%d, 1", S_LAYER)
        a("s_mov_b32 s%d, 0x%x", S_LOFF, LOFF)
    a("s_branch %s_in", PHASES[(PHASES.index(name) + 1) % 4])

def finish(a, name, cnt, loader=False):
    if next_cut(name):
        a("s_endpgm")
        return
    if name == "g4":
        a("s_cmp_lg_u32 s%d, 0", S_LAYER)
        a("s_cbranch_scc1 %s_done", name)
    if loader:
        if not late_y(name): a("s_barrier")
    else:
        cnt(a)
        count_in(a, name + "_cin", LOFF if name == "g4" else 0, PHASES[(PHASES.index(name) + 1) % 4])
    go_next(a, name)

def gen_gemm(a, name, ntiles, A, B, WA, WB, N, S, W, ptrs, decode, init, epi, ldc, cnt, dep, stats=False, spare=None, split=None, wop="A", lbase=0):
    na, nb = A.T // (16 * WA), B.T // (16 * WB)
    stage = A.bytes + B.bytes
    baseA, baseB = lbase, lbase + A.bytes
    entry(a, name, ntiles, spare is not None)
    ptrs(a, 0)
    a("v_lshrrev_b32 v1, 6, v0")
    a("v_and_b32 v2, 63, v0")
    decode(a)
    a("v_readfirstlane_b32 s%d, v1", S_W)
    a("s_nop 0")
    a("s_cmp_lt_u32 s%d, 4", S_W)
    a("s_cbranch_scc1 %s_compute", name)

    if OPT.get("ldprio"): a("s_setprio %d", OPT["ldprio"])
    a("s_sub_u32 s%d, s%d, 4", S_W, S_W)
    loader_voffs(a, A, S_TA, 10)
    loader_voffs(a, B, S_TB, 10 + A.npw)
    a("s_mul_i32 s%d, s%d, %d", S_LA, S_W, A.npw * 1024)
    if baseA: a("s_add_u32 s%d, s%d, %d", S_LA, S_LA, baseA)
    a("s_mul_i32 s%d, s%d, %d", S_LB, S_W, B.npw * 1024)
    a("s_add_u32 s%d, s%d, %d", S_LB, S_LB, baseB)
    a("s_waitcnt lgkmcnt(0)")
    ws_adjust(a)
    ptrs(a, "L")
    def issue(part):
        kidx_offsets(a, W, A.kadv, B.kadv)
        a("s_add_u32 s%d, s%d, s%d", S_M0A, S_SLOT, S_LA)
        a("s_add_u32 s%d, s%d, s%d", S_M0B, S_SLOT, S_LB)
        for (op, vb, sm, so, sr) in ((A, 10, S_M0A, S_OFA, 8), (B, 10 + A.npw, S_M0B, S_OFB, 12)):
            if part and (part == "W") != (op is Wop): continue
            for i in range(op.npw):
                a("s_add_u32 m0, s%d, %d", sm, i * 1024)
                a("s_nop 0")
                a("buffer_load_dwordx4 v%d, s[%d:%d], s%d offen%s lds", vb + i, sr, sr + 3, so, WSC() if op is Wop else ASC())
    Wop = B if wop == "B" else A
    def gdep(pre):
        if late_y(PHASES[PHASES.index(name) - 1]) and pre is None: a("s_barrier")
        dep(a, pre)
    loader_loop(a, name, issue, Wop.npw, A.npw + B.npw - Wop.npw, N, S, stage, dep=None if prev_cut(name) else gdep)
    if not next_cut(name): finish(a, name, cnt, loader=True)
    a.label(name + "_done")
    a("s_endpgm")

    a.label(name + "_compute")
    ACC = 28
    BV = 22
    nacc = na * nb * 4
    FR = ACC + nacc
    fset = (na + nb) * 4
    fA = lambda st, i: FR + st * fset + 4 * i
    fB = lambda st, j: FR + st * fset + 4 * na + 4 * j
    acc = lambda i, j: ACC + 4 * (i * nb + j)
    VTOP = FR + 2 * fset
    if epi == "ln2":
        EXV = VTOP
        VTOP += 16
    nk = nb // 2 if split else nb
    if split:
        SND, RCV = VTOP, VTOP + 16
        VTOP += 32
    lane_parts(a)
    SWA, SWB = S_TMP + 4, S_TMP + 5
    a("s_and_b32 s%d, s%d, %d", SWA, S_W, WA - 1)
    a("s_lshr_b32 s%d, s%d, %d", SWB, S_W, WA.bit_length() - 1)
    a("s_mul_i32 s%d, s%d, %d", S_TMP, S_TB, B.T)
    a("s_mul_i32 s%d, s%d, %d", S_TMP + 1, SWB, nb * 16)
    a("s_add_u32 s%d, s%d, s%d", S_TMP, S_TMP, S_TMP + 1)
    if split:
        a("s_lshl_b32 s%d, s%d, 5", S_TMP + 1, S_ROLE)
        a("s_add_u32 s%d, s%d, s%d", S_TMP, S_TMP, S_TMP + 1)
    a("v_add_u32 v20, s%d, v8", S_TMP)
    a("s_mov_b32 s%d, %d", S_TMP + 1, ldc)
    a("v_mul_lo_u32 v9, v20, s%d", S_TMP + 1)
    a("s_mul_i32 s%d, s%d, %d", S_TMP, S_TA, A.T * 2)
    a("s_mul_i32 s%d, s%d, %d", S_TMP + 1, SWA, na * 32)
    a("s_add_u32 s%d, s%d, s%d", S_TMP + 6, S_TMP, S_TMP + 1)
    a("v_and_b32 v3, 1, v5")
    a("v_lshlrev_b32 v3, 5, v3")
    a("v_lshrrev_b32 v4, 1, v5")
    a("v_lshl_add_u32 v3, v4, 4, v3")
    a("v_add3_u32 v9, v9, v3, s%d", S_TMP + 6)
    for j in range(nb):
        a("s_mov_b32 s%d, %d", S_ST + j, j * 16 * ldc)
    a("s_waitcnt lgkmcnt(0)")
    stamp(a, 1)
    ws_adjust(a)
    ptrs(a, "C")
    resid = init in ("resid", "resid+biasB")
    if resid:
        RES = VTOP
        VTOP += 24
    def resid_loads():
        for j in range(nk):
            for p in range(na // 2):
                d = RES + 4 * (j * (na // 2) + p)
                a("buffer_load_dwordx4 v[%d:%d], v9, s[20:23], s%d offen offset:%d%s", d, d + 3, S_ST + j, p * 64, ASC())
        if init == "resid+biasB":
            a("v_lshlrev_b32 v3, 1, v20")
            for j in range(nk):
                a("buffer_load_ushort v%d, v3, s[56:59], 0 offen offset:%d", BV + j, j * 32)
    def resid_add():
        T = RES + 16
        for q in range(nk * na // 2):
            a("v_permlane16_swap_b32 v%d, v%d", RES + 4 * q, RES + 4 * q + 2)
            a("v_permlane16_swap_b32 v%d, v%d", RES + 4 * q + 1, RES + 4 * q + 3)
        if init == "resid+biasB":
            for j in range(nk): a("v_lshlrev_b32 v%d, 16, v%d", BV + j, BV + j)
        for j in range(nk):
            for p in range(na // 2):
                d = RES + 4 * (j * (na // 2) + p)
                for q in range(4):
                    a("v_lshlrev_b32 v%d, 16, v%d", T + 2 * q, d + q)
                    a("v_and_b32 v%d, 0xffff0000, v%d", T + 2 * q + 1, d + q)
                if init == "resid+biasB":
                    for q in range(8): a("v_add_f32 v%d, v%d, v%d", T + q, T + q, BV + j)
                for q in range(4):
                    c = acc(2 * p + (q >> 1), j) + 2 * (q & 1)
                    a("v_pk_add_f32 v[%d:%d], v[%d:%d], v[%d:%d]", c, c + 1, c, c + 1, T + 2 * q, T + 2 * q + 1)
    if init == "biasA":
        a("v_lshl_add_u32 v3, v5, 3, s%d", S_TMP + 6)
        for i in range(na):
            a("buffer_load_dwordx2 v[%d:%d], v3, s[20:23], 0 offen offset:%d", FR + 2 * i, FR + 2 * i + 1, i * 32)
    AR = 10
    def mk_addrs(op, base, swave, n, vb, sxor=None):
        if op.kind == "kc":
            a("s_mul_i32 s%d, s%d, %d", S_TMP + 2, swave, n * 16)
            read_addrs_kc(a, base, S_TMP + 2, vb)
            return [vb, vb + 1]
        a("s_mul_i32 s%d, s%d, %d", S_TMP + 2, swave, n)
        a("s_mov_b32 s%d, %d", S_TMP + 3, base)
        for i in range(n):
            read_addr_km(a, op.T, S_TMP + 3, S_TMP + 2, i, vb + i, sxor)
        return [vb + i for i in range(n)]
    adA = mk_addrs(A, baseA, SWA, na, AR)
    if split: a("s_lshl_b32 s%d, s%d, 1", S_N, S_ROLE)
    adB = mk_addrs(B, baseB, SWB, nb, AR + len(adA), S_N if split else None)
    assert AR + len(adA) + len(adB) <= 20
    for r in range(0 if OPT.get("skip0", 1) else fset): a("v_mov_b32 v%d, 0", FR + fset + r)
    compute_loop_ctl_init(a, N, S, stage)
    if split:
        a("s_lshl_b32 s%d, s%d, 12", S_TMP, S_W)
        a("v_lshl_add_u32 v21, v2, 4, s%d", S_TMP)
        a("s_lshl_b32 s%d, s%d, 1", S_OWN, S_PAIR)
        a("s_add_u32 s%d, s%d, s%d", S_OWN, S_OWN, S_ROLE)
        a("s_lshl_b32 s%d, s%d, 14", S_OWN, S_OWN)
        a("s_xor_b32 s%d, s%d, 0x4000", S_OTH, S_OWN)
    if init != "biasA":
        for r in range(nacc): a("v_mov_b32 v%d, 0", ACC + r)
    else:
        a("s_waitcnt vmcnt(0)")
        for i in range(na):
            for j in range(nb):
                c = acc(i, j)
                for q in range(2):
                    a("v_lshlrev_b32 v%d, 16, v%d", c + 2 * q, FR + 2 * i + q)
                    a("v_and_b32 v%d, 0xffff0000, v%d", c + 2 * q + 1, FR + 2 * i + q)
    if OPT.get("cprio"): a("s_setprio %d", OPT["cprio"])
    ORD = [(i, j if i % 2 == 0 else nb - 1 - j) for i in range(na) for j in range(nb)]
    if OPT.get("snake", 1) == 2: ORD = [(i if j % 2 == 0 else na - 1 - i, j) for j in range(nb) for i in range(na)]
    if OPT.get("snake", 1) == 0: ORD = [(i, j) for i in range(na) for j in range(nb)]
    def mf(st):
        order = ORD
        return (["v_mfma_f32_16x16x32_bf16 v[%d:%d], v[%d:%d], v[%d:%d], v[%d:%d]" %
                (acc(i, j), acc(i, j) + 3, fA(st, i), fA(st, i) + 3, fB(st, j), fB(st, j) + 3, acc(i, j), acc(i, j) + 3)
                for (i, j) in order])
    def rd(st, ks):
        L = []
        L += frag_reads(A.kind, A.T, adA, 0, ks, fA(st, 0))
        for j in range(nb): L += frag_reads(B.kind, B.T, adB, j, ks, fB(st, j))
        for i in range(1, na): L += frag_reads(A.kind, A.T, adA, i, ks, fA(st, i))
        return L
    def rcv_loads():
        for u in range(4):
            a("buffer_load_dwordx4 v[%d:%d], v21, s[84:87], s%d offen offset:%d sc1", RCV + 4 * u, RCV + 4 * u + 3, S_OTH, u * 1024)
    TMPV = FR
    M = dict(zip(ORD, mf(1)))
    def out_unit(k, j, p):
        b = Asm()
        c0_, c1_ = acc(2 * p, j), acc(2 * p + 1, j)
        if epi == "gelu":
            gelu_pairs(b, [c0_, c0_ + 2, c1_, c1_ + 2], TMPV + 16, GC)
        d = TMPV + 4 * (k & 3)
        b("v_cvt_pk_bf16_f32 v%d, v%d, v%d", d, c0_, c0_ + 1)
        b("v_cvt_pk_bf16_f32 v%d, v%d, v%d", d + 1, c0_ + 2, c0_ + 3)
        b("v_cvt_pk_bf16_f32 v%d, v%d, v%d", d + 2, c1_, c1_ + 1)
        b("v_cvt_pk_bf16_f32 v%d, v%d, v%d", d + 3, c1_ + 2, c1_ + 3)
        if epi == "ln2":
            for q, x in enumerate((c0_, c0_ + 2, c1_, c1_ + 2)):
                b("v_lshlrev_b32 v%d, 16, v%d", x, d + q)
                b("v_and_b32 v%d, 0xffff0000, v%d", x + 1, d + q)
        else:
            b("s_nop 1")
        b("v_permlane16_swap_b32 v%d, v%d", d, d + 2)
        b("v_permlane16_swap_b32 v%d, v%d", d + 1, d + 3)
        b("buffer_store_dwordx4 v[%d:%d], v9, s[16:19], s%d offen offset:%d%s", d, d + 3, S_ST + j, p * 64, STF())
        return [l.strip() for l in b.lines]
    JP = [(j, p) for j in range(nk) for p in range(na // 2)]
    tiles = lambda j0: [(i, j) for j in range(j0, j0 + nk) for i in range(na)]
    def final_gelu():
        overlap_final(a, [([M[(2 * p, j)], M[(2 * p + 1, j)]], out_unit(k, j, p)) for k, (j, p) in enumerate(JP)], lead=4,
                      after_lead=lambda: a("s_nop 1"))
    def final_split():
        for t in tiles(nk): a(M[t])
        keep = [M[t] for t in tiles(0)]
        for u, (i, j) in enumerate(tiles(nk)):
            c = acc(i, j)
            a(keep[u])
            if u == 7: a("s_nop 1")
            a("v_cvt_pk_bf16_f32 v%d, v%d, v%d", SND + 2 * u, c, c + 1)
            a("v_cvt_pk_bf16_f32 v%d, v%d, v%d", SND + 2 * u + 1, c + 2, c + 3)
            if u & 1:
                a("buffer_store_dwordx4 v[%d:%d], v21, s[84:87], s%d offen offset:%d sc1", SND + 2 * u - 2, SND + 2 * u + 1, S_OWN, (u >> 1) * 1024)
    if epi == "gelu":
        GC = VTOP
        VTOP += 6
        c1 = -2.0 * math.log2(math.e) * math.sqrt(2.0 / math.pi) * 0.044715
        c0 = -2.0 * math.log2(math.e) * math.sqrt(2.0 / math.pi)
        for k, v in enumerate((c1, c1, c0, c0, 1.0, 1.0)):
            a("v_mov_b32 v%d, 0x%x", GC + k, f32(v))
    cloop(a, name, mf, rd, adA + adB, S, stage, first=resid_loads if resid else None,
          mid=(N // 2, resid_add) if resid and not split else None,
          final=final_gelu if epi == "gelu" else final_split if split else None)
    if split:
        a("s_mov_b32 s%d, 0x40000", S_CNT)
        stamp(a, 5)
        rcv_loads()
        a("s_waitcnt vmcnt(8)")
        a("s_nop 3")
        resid_add()
        a("s_waitcnt vmcnt(0)")
        a.label(name + "_rcv")
        a("v_max3_u32 v4, v%d, v%d, v%d", RCV, RCV + 1, RCV + 2)
        for q in range(3, 15, 2): a("v_max3_u32 v4, v4, v%d, v%d", RCV + q, RCV + q + 1)
        a("v_max_u32 v4, v4, v%d", RCV + 15)
        a("v_cmp_eq_u32 vcc, -1, v4")
        a("s_sub_u32 s%d, s%d, 1", S_CNT, S_CNT)
        a("s_cmp_eq_u32 s%d, 0", S_CNT)
        a("s_cbranch_scc1 %s_rcvd", name)
        a("s_cbranch_vccz %s_rcvd", name)
        a("s_sleep %d", OPT.get("slp", 2))
        rcv_loads()
        a("s_waitcnt vmcnt(0)")
        a("s_branch %s_rcv", name)
        a.label(name + "_rcvd")
        stamp(a, 6)
        if OPT.get("stamp"): a("s_add_u32 s%d, s%d, 0x6000", 64 + 2 * 9, S_CNT)
        for u, (i, j) in enumerate(tiles(0)):
            c = acc(i, j); t = TMPV + 16 + 4 * (u & 3)
            for q in range(2):
                a("v_lshlrev_b32 v%d, 16, v%d", t + 2 * q, RCV + 2 * u + q)
                a("v_and_b32 v%d, 0xffff0000, v%d", t + 2 * q + 1, RCV + 2 * u + q)
            for q in range(2):
                a("v_pk_add_f32 v[%d:%d], v[%d:%d], v[%d:%d]", c + 2 * q, c + 2 * q + 1, c + 2 * q, c + 2 * q + 1, t + 2 * q, t + 2 * q + 1)
    def stats_block():
        assert nk in (2, 4) and na == 4
        pr = lambda r: "v[%d:%d]" % (r, r + 1)
        SV = TMPV + 16
        for j in range(nk):
            prs = [acc(i, j) + 2 * q for i in range(na) for q in range(2)]
            a("v_pk_add_f32 %s, %s, %s", pr(SV + 4 * j), pr(prs[0]), pr(prs[1]))
            a("v_pk_mul_f32 %s, %s, %s", pr(SV + 4 * j + 2), pr(prs[0]), pr(prs[0]))
            for x in prs[1:]:
                if x != prs[1]: a("v_pk_add_f32 %s, %s, %s", pr(SV + 4 * j), pr(SV + 4 * j), pr(x))
                a("v_pk_fma_f32 %s, %s, %s, %s", pr(SV + 4 * j + 2), pr(x), pr(x), pr(SV + 4 * j + 2))
        for j in range(nk):
            a("v_add_f32 v%d, v%d, v%d", SV + 4 * j, SV + 4 * j, SV + 4 * j + 1)
            a("v_add_f32 v%d, v%d, v%d", SV + 4 * j + 1, SV + 4 * j + 2, SV + 4 * j + 3)
        a("s_nop 1")
        for j in range(0, nk, 2):
            a("v_permlane16_swap_b32 v%d, v%d", SV + 4 * j, SV + 4 * j + 4)
            a("v_permlane16_swap_b32 v%d, v%d", SV + 4 * j + 1, SV + 4 * j + 5)
        for j in range(0, nk, 2):
            a("v_pk_add_f32 %s, %s, %s", pr(SV + 4 * j), pr(SV + 4 * j), pr(SV + 4 * j + 4))
        if nk == 2:
            a("v_mov_b32 v%d, v%d", SV + 8, SV)
            a("v_mov_b32 v%d, v%d", SV + 9, SV + 1)
        a("v_and_b32 v3, %d, v2", 16 if nk == 2 else 48)
        a("v_add_u32 v3, v3, v20")
        a("v_permlane32_swap_b32 v%d, v%d", SV, SV + 8)
        a("v_permlane32_swap_b32 v%d, v%d", SV + 1, SV + 9)
        a("v_pk_add_f32 %s, %s, %s", pr(SV), pr(SV), pr(SV + 8))
        a("v_lshlrev_b32 v3, 3, v3")
        a("s_mul_i32 s%d, s%d, %d", S_TMP, S_TA, WA)
        a("s_add_u32 s%d, s%d, s%d", S_TMP, S_TMP, SWA)
        a("s_lshl_b32 s%d, s%d, 14", S_TMP, S_TMP)
        if nk == 2: a("s_mov_b32 exec_hi, 0")
        a("buffer_store_dwordx2 %s, v3, s[60:63], s%d offen sc1", pr(SV), S_TMP)
        if nk == 2: a("s_mov_b32 exec_hi, -1")
    def ln2_start():
        stats_block()
        a("v_lshrrev_b32 v4, 5, v2")
        a("v_lshl_add_u32 v21, v4, 17, v3")
    def ex_loads():
        for q in range(8):
            a("s_mov_b32 s%d, %d", S_TMP + (q & 1), q * 16384)
            a("buffer_load_dwordx2 v[%d:%d], v21, s[60:63], s%d offen sc1", EXV + 2 * q, EXV + 2 * q + 1, S_TMP + (q & 1))
    def ln2_finish():
        pr = lambda r: "v[%d:%d]" % (r, r + 1)
        a("s_mov_b32 s%d, 0x40000", S_CNT)
        a("v_mul_u32_u24 v19, %d, v20", LDH - ldc)
        a("v_add_u32 v19, v19, v9")
        for j in range(nk): a("s_mov_b32 s%d, %d", S_ST + 2 + j, j * 16 * LDH)
        stamp(a, 5)
        ex_loads()
        if OPT.get("x1late") == 2:
            for w in held: a(w)
            a("s_waitcnt vmcnt(4)")
        else:
            a("s_waitcnt vmcnt(0)")
        a.label(name + "_ex")
        a("v_max3_u32 v4, v%d, v%d, v%d", EXV, EXV + 1, EXV + 2)
        for q in range(3, 15, 2): a("v_max3_u32 v4, v4, v%d, v%d", EXV + q, EXV + q + 1)
        a("v_max_u32 v4, v4, v%d", EXV + 15)
        a("v_cmp_eq_u32 vcc, -1, v4")
        a("s_sub_u32 s%d, s%d, 1", S_CNT, S_CNT)
        a("s_cmp_eq_u32 s%d, 0", S_CNT)
        a("s_cbranch_scc1 %s_exd", name)
        a("s_cbranch_vccz %s_exd", name)
        a("s_sleep %d", OPT.get("slp", 2))
        ex_loads()
        a("s_waitcnt vmcnt(0)")
        a("s_branch %s_ex", name)
        a.label(name + "_exd")
        stamp(a, 6)
        if OPT.get("stamp"): a("s_add_u32 s%d, s%d, 0x6000", 64 + 2 * 9, S_CNT)
        if OPT.get("x1late") == 1:
            for w in held: a(w)
        E = EXV
        for st in (4, 2, 1):
            for q in range(st): a("v_pk_add_f32 %s, %s, %s", pr(E + 2 * q), pr(E + 2 * q), pr(E + 2 * (q + st)))
        a("v_mov_b32 v%d, v%d", E + 2, E)
        a("v_mov_b32 v%d, v%d", E + 3, E + 1)
        a("s_nop 1")
        a("v_permlane32_swap_b32 v%d, v%d", E, E + 2)
        a("v_permlane32_swap_b32 v%d, v%d", E + 1, E + 3)
        a("v_pk_add_f32 %s, %s, %s", pr(E), pr(E), pr(E + 2))
        m, var, mb, r1, m2, v2 = E, E + 1, E + 2, E + 3, E + 4, E + 5
        a("v_mul_f32 v%d, 0x%x, v%d", m, f32(1.0 / 1024), m)
        a("v_mul_f32 v%d, 0x%x, v%d", var, f32(1.0 / 1024), var)
        a("v_fma_f32 v%d, -v%d, v%d, v%d", var, m, m, var)
        a("v_max_f32 v%d, 0, v%d", var, var)
        a("v_mov_b32 v%d, v%d", mb, m)
        a("v_mov_b32 v%d, v%d", r1, var)
        def rstd(x):
            round_bf16_scalar(a, x)
            a("v_add_f32 v%d, 0x%x, v%d", x, f32(1e-5), x)
            round_bf16_scalar(a, x)
            a("v_sqrt_f32 v%d, v%d", x, x)
            a("s_nop 0")
            round_bf16_scalar(a, x)
            a("v_rcp_f32 v%d, v%d", x, x)
        round_bf16_scalar(a, mb)
        rstd(r1)
        a("v_sub_f32 v%d, v%d, v%d", m2, m, mb)
        a("v_mul_f32 v%d, v%d, v%d", v2, var, r1)
        a("v_mul_f32 v%d, v%d, v%d", m2, m2, r1)
        a("v_mul_f32 v%d, v%d, v%d", v2, v2, r1)
        round_bf16_scalar(a, m2)
        rstd(v2)
        a("v_fma_f32 v%d, v%d, v%d, v%d", m2, mb, r1, m2)
        a("v_mul_f32 v%d, v%d, v%d", E + 6, r1, v2)
        a("v_mul_f32 v%d, -v%d, v%d", E + 7, m2, v2)
        a("v_mov_b32 v%d, v%d", E + 8, E + 6)
        a("v_mov_b32 v%d, v%d", E + 9, E + 7)
        a("s_nop 1")
        a("v_permlane16_swap_b32 v%d, v%d", E + 6, E + 8)
        a("v_permlane16_swap_b32 v%d, v%d", E + 7, E + 9)
        k = 0
        for j in range(nk):
            ab = pr(E + 6 + 2 * j)
            for p in range(na // 2):
                c0_, c1_ = acc(2 * p, j), acc(2 * p + 1, j)
                for x in (c0_, c0_ + 2, c1_, c1_ + 2):
                    a("v_pk_fma_f32 %s, %s, %s, %s op_sel:[0,0,1] op_sel_hi:[1,0,1]", pr(x), pr(x), ab, ab)
                d = RES + 4 * (k & 3); k += 1
                a("v_cvt_pk_bf16_f32 v%d, v%d, v%d", d, c0_, c0_ + 1)
                a("v_cvt_pk_bf16_f32 v%d, v%d, v%d", d + 1, c0_ + 2, c0_ + 3)
                a("v_cvt_pk_bf16_f32 v%d, v%d, v%d", d + 2, c1_, c1_ + 1)
                a("v_cvt_pk_bf16_f32 v%d, v%d, v%d", d + 3, c1_ + 2, c1_ + 3)
                a("s_nop 1")
                a("v_permlane16_swap_b32 v%d, v%d", d, d + 2)
                a("v_permlane16_swap_b32 v%d, v%d", d + 1, d + 3)
                a("buffer_store_dwordx4 v[%d:%d], v19, s[56:59], s%d offen offset:%d%s", d, d + 3, S_ST + 2 + j, p * 64, STF())
    if epi == "ln2":
        a("s_nop 7")
        ln2_start()
    held = []
    if epi != "gelu":
        for k, (j, p) in enumerate(JP):
            u = out_unit(k, j, p)
            if epi == "ln2" and OPT.get("x1late"): held.append(u.pop())
            for w in u: a(w)
    if stats: stats_block()
    if epi == "ln2": ln2_finish()
    xs = bool(split) or epi == "ln2"
    stamp(a, 7 if xs else 5)
    stamp_flush(a, name, 8 if xs else 6, extra=xs)
    finish(a, name, cnt)
    if spare:
        a.label(name + "_spare")
        spare(a)
    GEMM_VTOP[name] = VTOP
    return lbase + stage * S

def g1_decode(a):
    a("s_and_b32 s%d, s2, 1", S_TMP)
    a("s_lshl_b32 s%d, s%d, 3", S_TMP, S_TMP)
    a("s_bfe_u32 s%d, s2, 0x30003", S_TMP + 1)
    a("s_add_u32 s%d, s%d, s%d", S_TB, S_TMP, S_TMP + 1)
    a("s_bfe_u32 s%d, s2, 0x20001", S_TMP)
    a("s_lshl_b32 s%d, s%d, 2", S_TMP, S_TMP)
    a("s_lshr_b32 s%d, s2, 6", S_TMP + 2)
    a("s_add_u32 s%d, s%d, s%d", S_TA, S_TMP, S_TMP + 2)
    a("s_add_u32 s%d, s%d, s%d", S_J, S_TMP + 1, S_TMP + 2)

def g1_slots(a):
    a("s_add_u32 s%d, s%d, %d", S_TMP, S_TB, C41)
    a("s_lshl_b32 s%d, s%d, 8", S_TMP, S_TMP)
    a("s_sub_u32 s%d, s%d, 256", S_TMP + 2, S_TMP)
    a("s_max_u32 s%d, s%d, %d", S_TMP + 2, S_TMP + 2, C41 * 256)

def gen_g1(a, name, W=2):
    N, S = 16, 3
    PW = Op("km", 64, 6144)
    XB = 3 * 8192
    stage = XB + 144 * 128
    E = stage
    REG = 144 * 128
    LST = S * stage
    LCS = LST + 1280
    S_SIG, S_DIST, S_H1, S_H2, S_H3, S_H4, S_H5 = 52, 53, 54, 55, 29, 50, 51
    KG = OPT.get("KG", 12)
    entry(a, name, 256)
    a("s_load_dwordx2 s[4:5], s[0:1], %d", ARG["ws"])
    a("s_load_dwordx2 s[6:7], s[0:1], %d", ARG["x"])
    a("s_xor_b32 s%d, s%d, 1", S_DIST, S_LAYER)
    a("s_load_dwordx2 s[30:31], s[0:1], %d", ARG["wqkv"])
    a("s_load_dwordx2 s[16:17], s[0:1], %d", ARG["dbg"])
    a("s_load_dwordx2 s[18:19], s[0:1], %d", ARG["wo"])
    a("v_lshrrev_b32 v1, 6, v0")
    a("v_and_b32 v2, 63, v0")
    g1_decode(a)
    a("s_add_u32 s%d, s%d, s%d", S_SIG, S_TA, S_TB)
    a("s_and_b32 s%d, s%d, 15", S_SIG, S_SIG)
    a("s_and_b32 s%d, s%d, %d", S_KB, S_SIG, KG)
    a("s_mul_i32 s%d, s%d, s%d", S_KB, S_KB, S_DIST)
    a("v_readfirstlane_b32 s%d, v1", S_W)
    lane_parts(a)
    a("s_cmp_lt_u32 s%d, 4", S_W)
    a("s_cbranch_scc1 %s_compute", name)

    EA, AO, AQ, AV, AM, ED = 216, 225, 226, 227, 228, 232
    SHD, SSH = S_TMP + 4, S_TMP + 5
    def attn_setup():
        srd(a, 16, 4, WS["O"], ACT_BYTES)
        a("s_and_b32 s%d, s%d, 1", SHD, S_W)
        SU = S_TMP + 5
        a("s_lshr_b32 s%d, s%d, 1", SU, S_W)
        a("s_lshl_b32 s%d, s%d, 2", S_TMP, SHD)
        a("v_add_u32 v3, s%d, v5", S_TMP)
        a("v_and_b32 v4, 7, v8")
        a("v_xor_b32 v3, v3, v4")
        a("v_lshlrev_b32 v3, 4, v3")
        a("v_lshl_add_u32 v3, v8, 8, v3")
        a("s_mul_i32 s%d, s%d, %d", S_TMP + 1, SU, 32 * 128)
        a("s_add_u32 s%d, s%d, %d", S_TMP + 1, S_TMP + 1, E)
        a("v_add_u32 v%d, s%d, v3", AQ, S_TMP + 1)
        a("v_lshl_add_u32 v3, v5, 2, v6")
        a("v_and_b32 v4, 7, v3")
        a("v_add_u32 v%d, s%d, v7", AM, S_TMP)
        a("v_xor_b32 v4, v4, v%d", AM)
        a("v_lshlrev_b32 v4, 4, v4")
        a("v_lshl_add_u32 v3, v3, 8, v4")
        a("s_add_u32 s%d, s%d, %d", S_TMP + 1, S_TMP + 1, 2 * REG)
        a("v_add_u32 v%d, s%d, v3", AV, S_TMP + 1)
        a("v_and_b32 v3, 7, v8")
        a("v_add_u32 v4, 1, v3")
        a("s_or_b32 s%d, s%d, s%d", S_TMP, S_TB, SU)
        a("s_cmp_eq_u32 s%d, 0", S_TMP)
        a("s_cselect_b32 s%d, 8, 0", S_TMP)
        a("v_cmp_gt_u32 vcc, 8, v8")
        a("v_mov_b32 v21, s%d", S_TMP)
        a("s_mov_b64 s[56:57], vcc")
        a("v_cndmask_b32 v21, 0, v21, vcc")
        a("v_max_u32 v4, v4, v21")
        a("v_add_u32 v3, 8, v3")
        a("v_sub_u32 v3, v3, v4")
        a("v_lshlrev_b32 v21, 2, v5")
        a("v_sub_u32 v21, v21, v4")
        a("v_mov_b32 v22, 0xf149f2ca")
        for r in range(4):
            a("v_add_u32 v23, %d, v21", r)
            a("v_cmp_ge_u32 vcc, v3, v23")
            a("s_nop 1")
            a("v_cndmask_b32 v%d, v22, 0, vcc", AM + r)
        a("s_lshl_b32 s%d, s%d, 7", S_TMP, S_TB)
        a("s_lshl_b32 s%d, s%d, 5", S_TMP + 1, SU)
        a("s_add_u32 s%d, s%d, s%d", S_TMP, S_TMP, S_TMP + 1)
        a("s_lshl_b32 s%d, s%d, 11", S_TMP, S_TMP)
        a("s_lshl_b32 s%d, s%d, 7", S_TMP + 1, S_TA)
        a("s_add_u32 s%d, s%d, s%d", S_TMP, S_TMP, S_TMP + 1)
        a("s_lshl_b32 s%d, s%d, 6", S_TMP + 1, SHD)
        a("s_add_u32 s%d, s%d, s%d", S_TMP, S_TMP, S_TMP + 1)
        a("v_lshlrev_b32 v%d, 12, v8", AO)
        a("v_lshl_add_u32 v%d, v5, 4, v%d", AO, AO)
        a("v_add_u32 v%d, s%d, v%d", AO, S_TMP, AO)
        a("s_mov_b32 s58, 0x%x", f32(32 ** -0.5))
        a("s_mov_b32 s59, 0x%x", f32(math.log2(math.e)))

    if OPT.get("ldprio"): a("s_setprio %d", OPT["ldprio"])
    a("s_sub_u32 s%d, s%d, 4", S_W, S_W)
    XO = Op("kc", 128, 2048)
    loader_voffs(a, XO, S_TB, 16)
    for p in range(3):
        loader_voffs(a, PW, S_TA, 10 + 2 * p, extra_cols=1024 * p)
    a("v_lshrrev_b32 v3, 3, v2")
    a("s_lshl_b32 s%d, s%d, 2", S_TMP, S_W)
    a("v_add_u32 v3, s%d, v3", S_TMP)
    a("v_lshrrev_b32 v4, 1, v3")
    a("v_xor_b32 v4, v4, v2")
    a("v_and_b32 v4, 7, v4")
    a("s_lshl_b32 s%d, s%d, 7", S_TMP, S_TB)
    a("s_sub_u32 s%d, s%d, 16", S_TMP, S_TMP)
    a("v_add_u32 v3, s%d, v3", S_TMP)
    a("v_max_i32 v3, 0, v3")
    a("v_lshlrev_b32 v3, 11, v3")
    a("v_lshl_add_u32 v20, v4, 4, v3")
    a("s_mul_i32 s%d, s%d, 2048", S_LA, S_W)
    a("s_mul_i32 s%d, s%d, 4096", S_LB, S_W)
    a("s_add_u32 s%d, s%d, %d", S_LB, S_LB, XB + 2048)
    a("s_mul_i32 s%d, s%d, 512", S_TMP + 6, S_W)
    a("s_add_u32 s%d, s%d, %d", S_TMP + 6, S_TMP + 6, XB)
    a("s_waitcnt lgkmcnt(0)")
    srd(a, 8, 30, 0, 1024 * 3072 * 2)
    srd(a, 56, 4, WS["CS"], CS_BYTES)
    ws_adjust(a)
    sel_ptr(a, 12, 1, WS["X2"])
    def issue(part):
        kidx_offsets(a, W, PW.kadv, 128, wrap=16)
        a("s_add_u32 s%d, s%d, s%d", S_M0A, S_SLOT, S_LA)
        a("s_add_u32 s%d, s%d, s%d", S_M0B, S_SLOT, S_LB)
        for i in range(4 if part != "W" else 0):
            a("s_add_u32 m0, s%d, %d", S_M0B, i * 1024)
            a("s_nop 0")
            a("buffer_load_dwordx4 v%d, s[12:15], s%d offen%s lds", 16 + i, S_OFB, ASC())
        for p in range(3 if part != "A" else 0):
            for i in range(2):
                a("s_add_u32 m0, s%d, %d", S_M0A, p * 8192 + i * 1024)
                a("s_nop 0")
                a("buffer_load_dwordx4 v%d, s[8:11], s%d offen%s lds", 10 + 2 * p + i, S_OFA, WSC())
        if part == "W": return
        a("s_add_u32 m0, s%d, s%d", S_SLOT, S_TMP + 6)
        a("s_mov_b32 exec_hi, 0")
        a("buffer_load_dwordx4 v20, s[12:15], s%d offen%s lds", S_OFB, ASC())
        a("s_mov_b32 exec_hi, -1")
    srd(a, 20, 4, WS["ST"], ST_BYTES)
    srd(a, 60, 16, 0, 256)
    a("s_sub_u32 s%d, s%d, s%d", S_TMP, S_SIG, S_J)
    a("s_and_b32 s%d, s%d, %d", S_TMP, S_TMP, W - 1)
    a("s_and_b32 s%d, s%d, %d", S_TMP + 1, S_SIG, 15 & ~KG & ~(W - 1))
    a("s_or_b32 s%d, s%d, s%d", S_TMP, S_TMP, S_TMP + 1)
    a("s_add_u32 s%d, s%d, %d", S_H1, S_TMP, S - 1)
    a("s_cmp_eq_u32 s%d, 0", S_DIST)
    a("s_cselect_b32 s%d, 0x7fff, s%d", S_H1, S_H1)
    a("s_add_u32 s%d, s%d, %d", S_H2, S_H1, S)
    a("s_cmp_lg_u32 s%d, 0", S_W)
    a("s_cselect_b32 s%d, 0x7fff, s%d", S_H2, S_H2)
    a("s_cmp_lt_u32 s%d, 0x7fff", S_H2)
    a("s_cselect_b32 s%d, %d, 0x7fff", S_H3, N - 4)
    a("s_add_u32 s%d, s%d, 1", S_H4, S_H3)
    a("s_mov_b32 s%d, %d", S_H5, N - 2)
    def slice_stats():
        SL = S_TMP + 4
        a("s_add_u32 s%d, s%d, %d", SL, S_SLOT, stage)
        a("s_cmp_eq_u32 s%d, %d", SL, S * stage)
        a("s_cselect_b32 s%d, 0, s%d", SL, SL)
        for i in range(3):
            a("s_mul_i32 s%d, s%d, 3", S_TMP + 2, S_W)
            a("s_add_u32 s%d, s%d, %d", S_TMP + 2, S_TMP + 2, i)
            a("s_lshr_b32 s%d, s%d, 2", S_TMP + 3, S_TMP + 2)
            a("s_lshl_b32 s%d, s%d, 13", S_TMP + 3, S_TMP + 3)
            a("s_add_u32 s%d, s%d, s%d", S_TMP + 3, S_TMP + 3, SL)
            a("s_and_b32 s%d, s%d, 3", S_TMP + 2, S_TMP + 2)
            read_addr_km(a, 64, S_TMP + 3, S_TMP + 2, 0, 21)
            for ks in range(2):
                for r in frag_reads("km", 64, [21], 0, ks, 24 + 8 * i + 4 * ks): a(r)
        a("s_lshr_b32 s%d, s%d, 7", S_TMP + 2, SL)
        a("s_lshl_b32 s%d, s%d, 5", S_TMP + 3, S_W)
        a("s_add_u32 s%d, s%d, s%d", S_TMP + 2, S_TMP + 2, S_TMP + 3)
        a("s_add_u32 s%d, s%d, 16", S_TMP + 2, S_TMP + 2)
        read_addrs_kc(a, XB, S_TMP + 2, 22)
        for i in range(2):
            for ks in range(2):
                for r in frag_reads("kc", 0, [22, 23], i, ks, 48 + 8 * i + 4 * ks): a(r)
        for r in range(4): a("v_mov_b32 v%d, 0x3f803f80", 64 + r)
        a("s_mul_i32 s%d, s%d, 12288", S_TMP + 2, S_SIG)
        a("s_lshl_b32 s%d, s%d, 8", S_TMP + 3, S_TA)
        a("s_add_u32 s%d, s%d, s%d", S_TMP + 2, S_TMP + 2, S_TMP + 3)
        a("v_lshl_add_u32 v21, v5, 4, s%d", S_TMP + 2)
        a("s_lshl_b32 s%d, s%d, 14", S_TMP + 2, S_SIG)
        a("s_lshl_b32 s%d, s%d, 10", S_TMP + 3, S_TB)
        a("s_add_u32 s%d, s%d, s%d", S_TMP + 2, S_TMP + 2, S_TMP + 3)
        a("s_lshl_b32 s%d, s%d, 8", S_TMP + 3, S_W)
        a("s_add_u32 s%d, s%d, s%d", S_TMP + 2, S_TMP + 2, S_TMP + 3)
        a("v_lshl_add_u32 v22, v8, 3, s%d", S_TMP + 2)
        a("s_waitcnt lgkmcnt(0)")
        mm = lambda d, x, y, first: a("v_mfma_f32_16x16x32_bf16 v[%d:%d], v[%d:%d], v[%d:%d], %s", d, d + 3, x, x + 3, y, y + 3,
                                      "0" if first else "v[%d:%d]" % (d, d + 3))
        for ks in range(2):
            for i in range(3): mm(68 + 4 * i, 24 + 8 * i + 4 * ks, 64, ks == 0)
            for i in range(2):
                mm(80 + 8 * i, 64, 48 + 8 * i + 4 * ks, ks == 0)
                mm(84 + 8 * i, 48 + 8 * i + 4 * ks, 48 + 8 * i + 4 * ks, ks == 0)
        a("v_cmp_eq_u32 s[%d:%d], 1, v7", S_TMP, S_TMP + 1)
        a("v_cmp_eq_u32 s[%d:%d], 2, v7", S_TMP + 2, S_TMP + 3)
        a("v_cmp_eq_u32 vcc, 3, v7")
        a("s_nop 7")
        for i in range(2):
            a("v_cndmask_b32 v%d, v%d, v%d, s[%d:%d]", 81 + 8 * i, 84 + 8 * i, 85 + 8 * i, S_TMP, S_TMP + 1)
            a("v_cndmask_b32 v%d, v%d, v%d, s[%d:%d]", 81 + 8 * i, 81 + 8 * i, 86 + 8 * i, S_TMP + 2, S_TMP + 3)
            a("v_cndmask_b32 v%d, v%d, v%d, vcc", 81 + 8 * i, 81 + 8 * i, 87 + 8 * i)
        a("s_mov_b32 exec_lo, 0x00f0000f")
        a("s_mov_b32 exec_hi, 0xf0000f00")
        for i in range(2):
            a("buffer_store_dwordx2 v[%d:%d], v22, s[20:23], 0 offen offset:%d sc1", 80 + 8 * i, 81 + 8 * i, 128 * i)
        a("s_mov_b32 exec_lo, 0x00010001")
        a("s_mov_b32 exec_hi, 0x00010001")
        for i in range(3):
            a("s_mul_i32 s%d, s%d, 3", S_TMP + 2, S_W)
            a("s_add_u32 s%d, s%d, %d", S_TMP + 2, S_TMP + 2, i)
            a("s_lshr_b32 s%d, s%d, 2", S_TMP + 3, S_TMP + 2)
            a("s_lshl_b32 s%d, s%d, 12", S_TMP + 3, S_TMP + 3)
            a("s_and_b32 s%d, s%d, 3", S_TMP + 2, S_TMP + 2)
            a("s_lshl_b32 s%d, s%d, 6", S_TMP + 2, S_TMP + 2)
            a("s_add_u32 s%d, s%d, s%d", S_TMP + 2, S_TMP + 2, S_TMP + 3)
            a("buffer_store_dwordx4 v[%d:%d], v21, s[56:59], s%d offen sc1", 68 + 4 * i, 71 + 4 * i, S_TMP + 2)
        a("s_mov_b64 exec, -1")
        a("s_or_b32 s%d, s%d, s%d", S_TMP, S_TA, S_W)
        a("s_cmp_lg_u32 s%d, 0", S_TMP)
        a("s_cbranch_scc1 %s_nocr", name)
        a("s_lshl_b32 s%d, s%d, 10", S_TMP, S_TB)
        a("v_lshl_add_u32 v21, v2, 4, s%d", S_TMP)
        for r in range(4): a("v_mov_b32 v%d, 0", 24 + r)
        for area in (0, LOFF):
            srd(a, 84, 4, WS["CNT"] + area, CNT_BYTES)
            a("buffer_store_dwordx4 v[24:27], v21, s[84:87], 0 offen sc1")
        a.label(name + "_nocr")
    def arrive():
        a("v_mov_b32 v21, 0")
        a("v_mov_b32 v22, 1")
        a("s_mov_b64 exec, 1")
        a("buffer_atomic_add v22, v21, s[60:63], 0 offen sc1")
        a("s_mov_b64 exec, -1")
    def poll_issue():
        a("v_mov_b32 v21, 0")
        a("buffer_load_dword v23, v21, s[60:63], 0 offen sc1")
    def poll_check():
        a("s_mov_b32 s%d, 0x40000", S_TMP + 1)
        a("v_mov_b32 v21, 0")
        a("s_waitcnt vmcnt(11)")
        a.label(name + "_poll")
        a("v_readfirstlane_b32 s%d, v23", S_TMP)
        a("s_sub_u32 s%d, s%d, 1", S_TMP + 1, S_TMP + 1)
        a("s_cmp_eq_u32 s%d, 0", S_TMP + 1)
        a("s_cbranch_scc1 %s_polled", name)
        a("s_cmp_ge_u32 s%d, 256", S_TMP)
        a("s_cbranch_scc1 %s_polled", name)
        a("s_sleep 8")
        a("buffer_load_dword v23, v21, s[60:63], 0 offen sc1")
        a("s_waitcnt vmcnt(0)")
        a("s_branch %s_poll", name)
        a.label(name + "_polled")
    def st_loads():
        a("s_lshl_b32 s%d, s%d, 6", S_TMP, S_W)
        a("v_add_u32 v21, s%d, v2", S_TMP)
        a("s_lshl_b32 s%d, s%d, 7", S_TMP + 1, S_TB)
        a("s_sub_u32 s%d, s%d, 16", S_TMP + 1, S_TMP + 1)
        a("v_add_u32 v3, s%d, v21", S_TMP + 1)
        a("v_max_i32 v3, 0, v3")
        a("v_min_u32 v3, 2047, v3")
        a("v_lshlrev_b32 v3, 3, v3")
        a("s_min_u32 s%d, s%d, 2", S_TMP, S_W)
        a("s_lshl_b32 s%d, s%d, 12", S_TMP, S_TMP)
        a("s_lshl_b32 s%d, s%d, 8", S_TMP + 1, S_TA)
        a("s_add_u32 s%d, s%d, s%d", S_TMP, S_TMP, S_TMP + 1)
        a("v_lshl_add_u32 v4, v2, 2, s%d", S_TMP)
        for k in range(16):
            a("s_mov_b32 s%d, %d", S_TMP, k * 16384)
            a("buffer_load_dwordx2 v[%d:%d], v3, s[20:23], s%d offen sc1", 24 + 2 * k, 25 + 2 * k, S_TMP)
            a("s_mov_b32 s%d, %d", S_TMP + 1, k * 3072 * 4)
            a("buffer_load_dword v%d, v4, s[56:59], s%d offen sc1", 56 + k, S_TMP + 1)
    def st_use():
        for st in (8, 4, 2, 1):
            for k in range(st):
                a("v_pk_add_f32 v[%d:%d], v[%d:%d], v[%d:%d]", 24 + 2 * k, 25 + 2 * k, 24 + 2 * k, 25 + 2 * k, 24 + 2 * (k + st), 25 + 2 * (k + st))
                a("v_add_f32 v%d, v%d, v%d", 56 + k, 56 + k, 56 + k + st)
        a("v_mul_f32 v24, 0x%x, v24", f32(1.0 / 1024))
        a("v_mul_f32 v25, 0x%x, v25", f32(1.0 / 1024))
        a("v_fma_f32 v25, -v24, v24, v25")
        a("v_max_f32 v25, 0, v25")
        round_bf16_scalar(a, 24)
        round_bf16_scalar(a, 25)
        a("v_add_f32 v25, 0x%x, v25", f32(1e-5))
        round_bf16_scalar(a, 25)
        a("v_sqrt_f32 v25, v25")
        a("s_nop 0")
        round_bf16_scalar(a, 25)
        a("v_rcp_f32 v26, v25")
        a("v_lshlrev_b32 v3, 3, v21")
        a("v_lshlrev_b32 v4, 2, v21")
        a("v_mul_f32 v27, -v24, v26")
        a("v_cmp_gt_u32 vcc, 144, v21")
        a("s_and_saveexec_b64 s[%d:%d], vcc", S_TMP, S_TMP + 1)
        a("v_add_u32 v3, %d, v3", LST)
        a("ds_write_b64 v3, v[26:27]")
        a("s_mov_b64 exec, s[%d:%d]", S_TMP, S_TMP + 1)
        a("v_cmp_gt_u32 vcc, 192, v21")
        a("s_and_saveexec_b64 s[%d:%d], vcc", S_TMP, S_TMP + 1)
        a("v_add_u32 v4, %d, v4", LCS)
        a("ds_write_b32 v4, v56")
        a("s_mov_b64 exec, s[%d:%d]", S_TMP, S_TMP + 1)
        a("s_waitcnt lgkmcnt(0)")
    def tail():
        a("s_waitcnt vmcnt(43)")
        a("s_barrier")
        a("s_waitcnt vmcnt(0)")
        st_use()
        a("s_barrier")
        srd(a, 20, 4, WS["EX"], ST_BYTES)
        a("s_lshl_b32 s%d, s%d, 4", S_TMP, S_TA)
        a("s_add_u32 s%d, s%d, s%d", S_TMP, S_TMP, S_TB)
        a("s_lshl_b32 s%d, s%d, 10", S_TMP, S_TMP)
        a("s_lshl_b32 s%d, s%d, 8", S_TMP + 1, S_W)
        a("s_add_u32 s%d, s%d, s%d", S_TMP, S_TMP, S_TMP + 1)
        a("v_lshlrev_b32 v3, 2, v2")
        a("v_mov_b32 v4, -1")
        a("buffer_store_dword v4, v3, s[20:23], s%d offen sc1", S_TMP)
        a("s_cmp_eq_u32 s%d, 0", S_DIST)
        a("s_cbranch_scc1 %s_nopf", name)
        srd(a, 20, 18, 0, 1024 * 1024 * 2)
        a("s_lshl_b32 s%d, s2, 13", S_TMP)
        a("s_lshl_b32 s%d, s%d, 11", S_TMP + 1, S_W)
        a("s_add_u32 s%d, s%d, s%d", S_TMP, S_TMP, S_TMP + 1)
        a("v_lshlrev_b32 v3, 4, v2")
        a("buffer_load_dwordx4 v[120:123], v3, s[20:23], s%d offen", S_TMP)
        a("buffer_load_dwordx4 v[120:123], v3, s[20:23], s%d offen offset:1024", S_TMP)
        a.label(name + "_nopf")
    def dep(pre):
        a("s_cmp_eq_u32 s%d, 0", S_LAYER)
        if pre == "rest" and not OPT.get("two", 1): return
        a("s_cbranch_scc1 %s_dep_%s", name, "rok" if pre == "rest" else "ok")
        if late_y("g4") and pre is None: a("s_barrier")
        g1_slots(a)
        wait_counters(a, name + "_dep", 16, 16, pre, (2, 2))
    loader_loop(a, name, issue, 6, 5, N, S, stage, tail=tail, dep=None if prev_cut(name) else dep,
                events=[(S_H1, 5, slice_stats), (S_H2, 1, arrive), (S_H3, 1, poll_issue), (S_H4, 0, poll_check), (S_H5, 32, st_loads)])
    a("s_add_u32 s%d, s%d, 4", S_W, S_W)
    attn_setup()
    a("s_branch %s_attn", name)

    a.label(name + "_compute")
    na, nb = 6, 5
    ACC = 24
    acc = lambda i, j: ACC + 4 * (i * 4 + j) if j < 4 else ACC + 96 + 4 * (i - 4)
    nacc = 104
    FR = ACC + nacc
    fset = (na + nb) * 4
    fA = lambda st, i: FR + st * fset + 4 * i
    fB = lambda st, j: FR + st * fset + 4 * na + 4 * j
    VTOP = FR + 2 * fset
    SHD, SSH = S_TMP + 4, S_TMP + 5
    a("s_and_b32 s%d, s%d, 1", SHD, S_W)
    a("s_lshr_b32 s%d, s%d, 1", SSH, S_W)
    AR = 10
    def part_of(c, unit):
        if c == 0:
            a("s_mov_b32 s%d, 0", S_TMP + 3)
        else:
            a("s_xor_b32 s%d, s%d, %d", S_TMP + 3, SSH, 1 if c == 1 else 0)
            a("s_add_u32 s%d, s%d, 1", S_TMP + 3, S_TMP + 3)
            a("s_mul_i32 s%d, s%d, %d", S_TMP + 3, S_TMP + 3, unit)
    a("s_lshl_b32 s%d, s%d, 1", S_TMP + 2, SHD)
    for c in range(3):
        part_of(c, 8192)
        for i in range(2):
            read_addr_km(a, 64, S_TMP + 3, S_TMP + 2, i, AR + 2 * c + i)
    adA = [AR + i for i in range(6)]
    a("s_mul_i32 s%d, s%d, 64", S_TMP + 2, SSH)
    a("s_add_u32 s%d, s%d, 16", S_TMP + 2, S_TMP + 2)
    read_addrs_kc(a, XB, S_TMP + 2, AR + 6)
    read_addrs_kc(a, XB, None, AR + 8)
    adB, adH = [AR + 6, AR + 7], [AR + 8, AR + 9]
    for r in range(nacc): a("v_mov_b32 v%d, 0", ACC + r)
    for r in range(0 if OPT.get("skip0", 1) else fset): a("v_mov_b32 v%d, 0", FR + fset + r)
    compute_loop_ctl_init(a, N, S, stage)
    if OPT.get("cprio"): a("s_setprio %d", OPT["cprio"])
    a("s_waitcnt lgkmcnt(0)")
    stamp(a, 1)
    ws_adjust(a)
    a("v_lshlrev_b32 v3, 3, v8")
    a("v_add_u32 v%d, %d, v3", EA + 1, LST)
    a("s_mul_i32 s%d, s%d, 512", S_TMP, SSH)
    a("s_add_u32 s%d, s%d, %d", S_TMP, S_TMP, LST + 128)
    a("v_add_u32 v%d, s%d, v3", EA, S_TMP)
    a("s_lshl_b32 s%d, s%d, 7", S_TMP, SHD)
    a("s_add_u32 s%d, s%d, %d", S_TMP, S_TMP, LCS)
    a("v_lshl_add_u32 v3, v5, 4, s%d", S_TMP)
    for c in range(3):
        part_of(c, 256)
        a("v_add_u32 v%d, s%d, v3", EA + 2 + c, S_TMP + 3)
    a("v_and_b32 v3, 1, v5")
    a("v_lshlrev_b32 v3, 1, v3")
    a("v_lshrrev_b32 v4, 1, v5")
    a("v_add_u32 v3, v3, v4")
    a("s_lshl_b32 s%d, s%d, 2", S_TMP, SHD)
    a("v_add_u32 v3, s%d, v3", S_TMP)
    a("v_lshrrev_b32 v4, 1, v8")
    a("v_xor_b32 v3, v3, v4")
    a("v_lshlrev_b32 v3, 4, v3")
    a("v_lshl_add_u32 v3, v8, 7, v3")
    a("s_mul_i32 s%d, s%d, %d", S_TMP + 2, SSH, 64 * 128)
    a("s_add_u32 s%d, s%d, %d", S_TMP + 2, S_TMP + 2, E + 16 * 128)
    for c in range(3):
        part_of(c, REG)
        a("s_add_u32 s%d, s%d, s%d", S_TMP, S_TMP + 2, S_TMP + 3)
        a("v_add_u32 v%d, s%d, v3", EA + 5 + c, S_TMP)
    a("s_add_u32 s%d, s%d, %d", S_TMP, S_TMP + 3, E)
    a("v_add_u32 v%d, s%d, v3", EA + 8, S_TMP)
    attn_setup()
    G1ORD = [(i, j if i % 2 == 0 else 3 - j) for i in range(4) for j in range(4)] + [(4, j) for j in range(5)] + [(5, 4 - j) for j in range(5)]
    if OPT.get("snake", 1) == 2:
        G1ORD = [(4, 4), (5, 4)] + [(5 - i if j % 2 == 0 else i, j) for j in range(4) for i in range(6)]
    if not OPT.get("snake", 1): G1ORD = [(i, j) for i in range(6) for j in range(4)] + [(4, 4), (5, 4)]
    def mf(st):
        L = G1ORD
        return ["v_mfma_f32_16x16x32_bf16 v[%d:%d], v[%d:%d], v[%d:%d], v[%d:%d]" %
                (acc(i, j), acc(i, j) + 3, fA(st, i), fA(st, i) + 3, fB(st, j), fB(st, j) + 3, acc(i, j), acc(i, j) + 3)
                for (i, j) in L]
    def rd(st, ks):
        L = []
        L += frag_reads("km", 64, adA, 0, ks, fA(st, 0))
        for j in range(4): L += frag_reads("kc", 0, adB, j, ks, fB(st, j))
        for i in range(1, 6): L += frag_reads("km", 64, adA, i, ks, fA(st, i))
        L += frag_reads("kc", 0, adH, 0, ks, fB(st, 4))
        return L
    SB = FR
    TV = SB + 36
    pr = lambda r: "v[%d:%d]" % (r, r + 1)
    def g1_final():
        for j in range(4): a("ds_read_b64 v[%d:%d], v%d offset:%d", SB + 2 * j, SB + 2 * j + 1, EA, j * 128)
        a("ds_read_b64 v[%d:%d], v%d", SB + 8, SB + 9, EA + 1)
        for c in range(3):
            for i in range(2):
                a("ds_read_b128 v[%d:%d], v%d offset:%d", SB + 12 + 4 * (2 * c + i), SB + 15 + 4 * (2 * c + i), EA + 2 + c, i * 64)
        M = dict(zip(G1ORD, mf(1)))
        units = []
        for c in range(3):
            for j in range(5 if c == 2 else 4):
                c0_, c1_ = acc(2 * c, j), acc(2 * c + 1, j)
                d = ED + 4 * (len(units) & 3)
                prs = [(c0_, SB + 12 + 8 * c), (c0_ + 2, SB + 14 + 8 * c), (c1_, SB + 16 + 8 * c), (c1_ + 2, SB + 18 + 8 * c)]
                w = ["v_pk_mul_f32 %s, %s, %s op_sel:[0,1] op_sel_hi:[1,1]" % (pr(TV + 2 * q), pr(cs), pr(SB + 2 * j)) for q, (x, cs) in enumerate(prs)]
                w += ["v_pk_fma_f32 %s, %s, %s, %s op_sel:[0,0,0] op_sel_hi:[1,0,1]" % (pr(x), pr(x), pr(SB + 2 * j), pr(TV + 2 * q)) for q, (x, cs) in enumerate(prs)]
                w += ["v_cvt_pk_bf16_f32 v%d, v%d, v%d" % (d + q, x, x + 1) for q, (x, cs) in enumerate(prs)]
                w += ["s_nop 1", "v_permlane16_swap_b32 v%d, v%d" % (d, d + 2), "v_permlane16_swap_b32 v%d, v%d" % (d + 1, d + 3)]
                w += ["ds_write_b128 v%d, v[%d:%d] offset:%d" % (EA + 5 + c, d, d + 3, j * 2048) if j < 4 else "ds_write_b128 v%d, v[%d:%d]" % (EA + 8, d, d + 3)]
                units.append(([M[(2 * c, j)], M[(2 * c + 1, j)]], w))
        overlap_final(a, units, after_lead=lambda: a("s_waitcnt lgkmcnt(0)"))
        a("s_waitcnt lgkmcnt(0)")
    cloop(a, name, mf, rd, adA + adB + adH, S, stage, final=g1_final)

    a.label(name + "_attn")
    a("s_barrier")
    stamp(a, 5)
    if OPT.get("stamp"): a("s_waitcnt lgkmcnt(0)")
    def blk(p): return 24 + 48 * p
    for p in range(2):
        b = blk(p)
        a("ds_read_b128 v[%d:%d], v226 offset:%d", b, b + 3, 2048 + 128 * p)
        a("ds_read_b128 v[%d:%d], v226 offset:%d", b + 4, b + 7, REG + 128 * p)
        a("ds_read_b128 v[%d:%d], v226 offset:%d", b + 8, b + 11, REG + 2048 + 128 * p)
    for p in range(2):
        b = blk(p)
        for dt in range(2):
            for bb in range(2):
                d = b + 12 + 4 * dt + 2 * bb
                a("ds_read_b64_tr_b16 v[%d:%d], v227 offset:%d", d, d + 1, 128 * p + 2048 * bb + 8 * dt)
    a("s_waitcnt lgkmcnt(8)")
    for p in range(2):
        b = blk(p)
        a("v_mfma_f32_16x16x32_bf16 v[%d:%d], v[%d:%d], v[%d:%d], 0", b + 20, b + 23, b + 4, b + 7, b, b + 3)
        a("v_mfma_f32_16x16x32_bf16 v[%d:%d], v[%d:%d], v[%d:%d], 0", b + 24, b + 27, b + 8, b + 11, b, b + 3)
    a("s_nop 7")
    both = lambda f: [f(blk(p)) for p in range(2)]
    for p in range(2):
        b = blk(p)
        for r in range(4):
            a("v_cndmask_b32 v%d, v%d, v%d, s[56:57]", b + 20 + r, b + 24 + r, b + 20 + r)
    for p in range(2):
        b = blk(p)
        a("v_cvt_pk_bf16_f32 v%d, v%d, v%d", b + 24, b + 20, b + 21)
        a("v_cvt_pk_bf16_f32 v%d, v%d, v%d", b + 25, b + 22, b + 23)
    for p in range(2):
        b = blk(p)
        for q in range(2):
            a("v_lshlrev_b32 v%d, 16, v%d", b + 20 + 2 * q, b + 24 + q)
            a("v_and_b32 v%d, 0xffff0000, v%d", b + 21 + 2 * q, b + 24 + q)
    for p in range(2):
        b = blk(p)
        for r in range(4): a("v_mul_f32 v%d, s58, v%d", b + 20 + r, b + 20 + r)
    for p in range(2):
        b = blk(p)
        a("v_cvt_pk_bf16_f32 v%d, v%d, v%d", b + 24, b + 20, b + 21)
        a("v_cvt_pk_bf16_f32 v%d, v%d, v%d", b + 25, b + 22, b + 23)
    for p in range(2):
        b = blk(p)
        for q in range(2):
            a("v_lshlrev_b32 v%d, 16, v%d", b + 20 + 2 * q, b + 24 + q)
            a("v_and_b32 v%d, 0xffff0000, v%d", b + 21 + 2 * q, b + 24 + q)
    for p in range(2):
        b = blk(p)
        for r in range(4): a("v_fma_f32 v%d, v%d, s59, v%d", b + 20 + r, b + 20 + r, AM + r)
    for p in range(2):
        b = blk(p)
        a("v_max3_f32 v%d, v%d, v%d, v%d", b + 24, b + 20, b + 21, b + 22)
    for p in range(2):
        b = blk(p)
        a("v_max_f32 v%d, v%d, v%d", b + 24, b + 24, b + 23)
    def xreduce(op, off):
        for sw in ("v_permlane16_swap_b32", "v_permlane32_swap_b32"):
            for p in range(2):
                b = blk(p)
                a("v_mov_b32 v%d, v%d", b + off + 1, b + off)
            a("s_nop 1")
            for p in range(2):
                b = blk(p)
                a("%s v%d, v%d", sw, b + off, b + off + 1)
            a("s_nop 0")
            for p in range(2):
                b = blk(p)
                a("%s v%d, v%d, v%d", op, b + off, b + off, b + off + 1)
    xreduce("v_max_f32", 24)
    for p in range(2):
        b = blk(p)
        for r in range(4): a("v_sub_f32 v%d, v%d, v%d", b + 20 + r, b + 20 + r, b + 24)
    for p in range(2):
        b = blk(p)
        for r in range(4): a("v_exp_f32 v%d, v%d", b + 20 + r, b + 20 + r)
    for p in range(2):
        b = blk(p)
        a("v_add_f32 v%d, v%d, v%d", b + 24, b + 20, b + 21)
        a("v_add_f32 v%d, v%d, v%d", b + 25, b + 22, b + 23)
    for p in range(2):
        b = blk(p)
        a("v_add_f32 v%d, v%d, v%d", b + 24, b + 24, b + 25)
    xreduce("v_add_f32", 24)
    for p in range(2):
        b = blk(p)
        a("v_rcp_f32 v%d, v%d", b + 24, b + 24)
    a("s_nop 0")
    for p in range(2):
        b = blk(p)
        for r in range(4): a("v_mul_f32 v%d, v%d, v%d", b + 20 + r, b + 20 + r, b + 24)
    for p in range(2):
        b = blk(p)
        a("v_cvt_pk_bf16_f32 v%d, v%d, v%d", b + 24, b + 20, b + 21)
        a("v_cvt_pk_bf16_f32 v%d, v%d, v%d", b + 25, b + 22, b + 23)
    for p in range(2):
        b = blk(p)
        a("v_cndmask_b32 v%d, 0, v%d, s[56:57]", b + 28, b + 24)
        a("v_cndmask_b32 v%d, 0, v%d, s[56:57]", b + 29, b + 25)
        a("v_cndmask_b32 v%d, v%d, 0, s[56:57]", b + 30, b + 24)
        a("v_cndmask_b32 v%d, v%d, 0, s[56:57]", b + 31, b + 25)
    a("s_waitcnt lgkmcnt(0)")
    a("s_nop 0")
    for p in range(2):
        b = blk(p)
        for dt in range(2):
            a("v_mfma_f32_16x16x32_bf16 v[%d:%d], v[%d:%d], v[%d:%d], 0", b + 32 + 4 * dt, b + 35 + 4 * dt,
              b + 12 + 4 * dt, b + 15 + 4 * dt, b + 28, b + 31)
    a("s_nop 7")
    for p in range(2):
        b = blk(p)
        for q in range(4):
            a("v_cvt_pk_bf16_f32 v%d, v%d, v%d", b + 40 + q, b + 32 + 2 * q, b + 33 + 2 * q)
        a("buffer_store_dwordx4 v[%d:%d], v225, s[16:19], 0 offen offset:%d%s", b + 40, b + 43, 2048 * p, STF())
    stamp(a, 6)
    stamp_flush(a, name, 7)
    if not next_cut(name):
        finish(a, name, lambda a: (a("s_add_u32 s%d, s%d, %d", S_TMP, S_TB, C12), a("s_lshl_b32 s%d, s%d, 8", S_TMP, S_TMP),
                                   a("s_mov_b32 s%d, s%d", S_TMP + 1, S_TA)))
    a.label(name + "_done")
    a("s_endpgm")
    assert VTOP == 216
    GEMM_VTOP[name] = ED + 16
    return LCS + 768

def build():
    body = Asm()
    for c in str(OPT.get("cuts", "")).split("_"):
        if c: CUTS.add(c)
    def wm(a, ka, da, kb, db):
        a("s_cmp_eq_u32 s%d, 0", S_LAYER)
        a("s_cselect_b32 s%d, %d, %d", S_WM, OPT.get(ka, da) - 1, OPT.get(kb, db) - 1)
    def slot(a, sreg, base, shift=0):
        a("s_lshr_b32 s%d, s%d, %d", S_TMP, sreg, shift)
        a("s_add_u32 s%d, s%d, %d", S_TMP, S_TMP, base)
        a("s_lshl_b32 s%d, s%d, 8", S_TMP, S_TMP)
        a("s_mov_b32 s%d, s%d", S_TMP + 2, S_TMP)
    lds = {}
    later = []
    later.append(lambda: lds.__setitem__("g1", gen_g1(body, "g1", W=OPT.get("W1", 2))))

    def g2_ptrs(a, ph):
        if ph == 0:
            a("s_load_dwordx2 s[4:5], s[0:1], %d", ARG["ws"])
            a("s_load_dwordx2 s[6:7], s[0:1], %d", ARG["x"])
            a("s_load_dwordx2 s[30:31], s[0:1], %d", ARG["wo"])
        elif ph == "L":
            srd(a, 8, 30, 0, 1024 * 1024 * 2)
            srd(a, 12, 4, WS["O"], ACT_BYTES)
        else:
            sel_ptr(a, 20, 1, WS["X2"])
            srd(a, 16, 4, WS["X1"], ACT_BYTES)
            srd(a, 56, 4, WS["H"], 2048 * LDH)
            srd(a, 60, 4, WS["EX"], ST_BYTES)
    def g2_decode(a):
        a("s_and_b32 s%d, s2, 3", S_TMP)
        a("s_lshl_b32 s%d, s%d, 2", S_TMP, S_TMP)
        a("s_bfe_u32 s%d, s2, 0x20003", S_TMP + 1)
        a("s_add_u32 s%d, s%d, s%d", S_TB, S_TMP, S_TMP + 1)
        a("s_bfe_u32 s%d, s2, 0x10002", S_TMP)
        a("s_lshl_b32 s%d, s%d, 3", S_TMP, S_TMP)
        a("s_lshr_b32 s%d, s2, 5", S_TMP + 2)
        a("s_add_u32 s%d, s%d, s%d", S_TA, S_TMP, S_TMP + 2)
        a("s_add_u32 s%d, s%d, s%d", S_J, S_TMP + 1, S_TMP + 2)
        a("s_mov_b32 s%d, 0", S_KB)
    later.append(lambda: lds.__setitem__("g2", gen_gemm(body, "g2", 256, Op("km", 64, 2048), Op("kc", 128, 2048), 1, 4, 16, OPT.get("S2", 4), OPT.get("W2", 2), g2_ptrs, g2_decode,
                         "resid", "ln2", 2048, cnt=lambda a: (slot(a, S_TA, C23, 1), a("s_and_b32 s%d, s%d, 1", S_TMP + 1, S_TA),
                                                             a("s_lshl_b32 s%d, s%d, 1", S_TMP + 2, S_TB), a("s_add_u32 s%d, s%d, s%d", S_TMP + 1, S_TMP + 1, S_TMP + 2)),
                         dep=lambda a, pre: (slot(a, S_TB, C12), wait_counters(a, "g2_dep", 16, 16, pre, (4, 0))), lbase=32768 if OPT.get("latey") else 0)))

    def g3_ptrs(a, ph):
        if ph == 0:
            a("s_load_dwordx2 s[4:5], s[0:1], %d", ARG["ws"])
            a("s_load_dwordx2 s[30:31], s[0:1], %d", ARG["w1"])
            a("s_load_dwordx2 s[6:7], s[0:1], %d", ARG["b1"])
        elif ph == "L":
            srd(a, 8, 30, 0, 2048 * 3584 * 2)
            srd(a, 12, 4, WS["H"], 2048 * LDH)
        else:
            srd(a, 20, 6, 0, 3584 * 2)
            srd(a, 16, 4, WS["U"], 1024 * LDU)
    def g3_decode(a):
        a("s_and_b32 s%d, s2, 1", S_TMP)
        a("s_lshl_b32 s%d, s%d, 2", S_TMP, S_TMP)
        a("s_bfe_u32 s%d, s2, 0x20003", S_TMP + 1)
        a("s_add_u32 s%d, s%d, s%d", S_TB, S_TMP, S_TMP + 1)
        a("s_bfe_u32 s%d, s2, 0x20001", S_TMP)
        a("s_mul_i32 s%d, s%d, 7", S_TMP, S_TMP)
        a("s_lshr_b32 s%d, s2, 5", S_TMP + 2)
        a("s_add_u32 s%d, s%d, s%d", S_TA, S_TMP, S_TMP + 2)
        a("s_add_u32 s%d, s%d, s%d", S_J, S_TMP + 1, S_TMP + 2)
        a("s_mov_b32 s%d, 0", S_KB)
        wm(a, "W3a", 4, "W3b", 2)
    def g3_cnt(a):
        a("s_cmp_ge_u32 s%d, 14", S_TA)
        a("s_cselect_b32 s%d, %d, %d", S_TMP, C34 + 1, C34)
        a("s_lshl_b32 s%d, s%d, 1", S_TMP + 1, S_TB)
        a("s_add_u32 s%d, s%d, s%d", S_TMP, S_TMP, S_TMP + 1)
        a("s_lshl_b32 s%d, s%d, 8", S_TMP, S_TMP)
        a("s_sub_u32 s%d, s%d, 14", S_TMP + 1, S_TA)
        a("s_min_u32 s%d, s%d, s%d", S_TMP + 1, S_TMP + 1, S_TA)
    def g3_spare(a):
        a("s_cmp_ge_u32 s2, 256")
        a("s_cbranch_scc1 g3_done")
        a("s_load_dwordx2 s[4:5], s[0:1], %d", ARG["ws"])
        a("s_load_dwordx2 s[6:7], s[0:1], %d", ARG["w1" if OPT.get("pf") == 2 else "w2"])
        a("s_sub_u32 s3, s2, 224")
        a("v_lshrrev_b32 v2, 6, v0")
        a("v_lshlrev_b32 v1, 4, v0")
        for r in range(4): a("v_mov_b32 v%d, -1", 8 + r)
        a("v_readfirstlane_b32 s%d, v2", S_W)
        a("s_lshl_b32 s13, s3, 17")
        if late_y("g2"):
            a("s_cmp_lt_u32 s%d, 4", S_W)
            a("s_cbranch_scc1 g3_spare_y")
            a("s_barrier")
            a.label("g3_spare_y")
        a("s_waitcnt lgkmcnt(0)")
        ws_adjust(a)
        srd(a, 8, 4, WS["PART"], PART_BYTES)
        for k in range(16):
            a("buffer_store_dwordx4 v[8:11], v1, s[8:11], s13 offen sc1")
            a("s_add_u32 s13, s13, 8192")
        if not next_cut("g3"):
            a("s_mov_b32 s%d, %d", S_TMP, CR * 256)
            a("s_mov_b32 s%d, s3", S_TMP + 1)
            count_in(a, "g3_spare_cin")
        a("s_cmp_lg_u32 s%d, 0", S_LAYER)
        a("s_cbranch_scc1 g3_spare_end")
        if OPT.get("pf", 0) == 2:
            srd(a, 8, 6, 0, 2048 * 3584 * 2)
            a("s_lshl_b32 s3, s3, 16")
            a("s_add_u32 s3, s3, %d", OPT.get("pfrow", 768) * 7168)
            a("s_mov_b32 s12, %d", -(-(2048 - OPT.get("pfrow", 768)) * 7168 // (2 * MB)))
            a.label("g3_spare_loop")
            for k in range(8):
                a("buffer_load_dwordx4 v[4:7], v1, s[8:11], s3 offen")
                a("s_add_u32 s3, s3, 8192")
            a("s_add_u32 s3, s3, %d", 2 * MB - 65536)
            a("s_waitcnt vmcnt(8)")
            a("s_sub_u32 s12, s12, 1")
            a("s_cmp_lg_u32 s12, 0")
            a("s_cbranch_scc1 g3_spare_loop")
            a("s_waitcnt vmcnt(0)")
        elif OPT.get("pf", 0):
            srd(a, 8, 6, 0, 3584 * 2048 * 2)
            a("s_cmp_ge_u32 s3, 16")
            a("s_cselect_b32 s12, %d, 0", (1792 - 1024) * 4096)
            a("s_lshl_b32 s3, s3, 18")
            a("s_add_u32 s3, s3, s12")
            a("s_mov_b32 s12, 4")
            a.label("g3_spare_loop")
            for k in range(8):
                a("buffer_load_dwordx4 v[4:7], v1, s[8:11], s3 offen")
                a("s_add_u32 s3, s3, 8192")
            a("s_waitcnt vmcnt(8)")
            a("s_sub_u32 s12, s12, 1")
            a("s_cmp_lg_u32 s12, 0")
            a("s_cbranch_scc1 g3_spare_loop")
            a("s_waitcnt vmcnt(0)")
        a.label("g3_spare_end")
        if next_cut("g3"): a("s_endpgm")
        else:
            if late_y("g3"):
                a("s_cmp_ge_u32 s%d, 4", S_W)
                a("s_cbranch_scc1 g4_in")
                a("s_barrier")
            go_next(a, "g3")
    later.append(lambda: lds.__setitem__("g3", gen_gemm(body, "g3", 224, Op("km", 128, 7168), Op("km", 128, LDH), 2, 2, 32, 4, "s", g3_ptrs, g3_decode,
                         "biasA", "gelu", LDU, spare=g3_spare, cnt=g3_cnt,
                         dep=lambda a, pre: (slot(a, S_TB, C23), wait_counters(a, "g3_dep", 32, 32, pre, (4, 0))))))

    def g4_ptrs(a, ph):
        if ph == 0:
            a("s_load_dwordx2 s[4:5], s[0:1], %d", ARG["ws"])
            a("s_load_dwordx2 s[6:7], s[0:1], %d", ARG["out"])
            a("s_load_dwordx2 s[30:31], s[0:1], %d", ARG["w2"])
            a("s_load_dwordx2 s[34:35], s[0:1], %d", ARG["b2"])
        elif ph == "L":
            srd(a, 8, 4, WS["U"], 1024 * LDU)
            srd(a, 12, 30, 0, 3584 * 2048 * 2)
        else:
            srd(a, 20, 4, WS["X1"], ACT_BYTES)
            srd(a, 56, 34, 0, 4096)
            sel_ptr(a, 16, 0, LOFF + WS["X2"])
            srd(a, 60, 4, LOFF + WS["ST"], ST_BYTES)
            srd(a, 84, 4, WS["PART"], PART_BYTES)
    def g4_decode(a):
        a("s_bfe_u32 s%d, s2, 0x10001", S_TMP)
        a("s_lshl_b32 s%d, s%d, 2", S_TMP, S_TMP)
        a("s_bfe_u32 s%d, s2, 0x20003", S_TMP + 1)
        a("s_add_u32 s%d, s%d, s%d", S_TA, S_TMP, S_TMP + 1)
        a("s_bfe_u32 s%d, s2, 0x10002", S_TMP)
        a("s_lshl_b32 s%d, s%d, 3", S_TMP, S_TMP)
        a("s_lshr_b32 s%d, s2, 5", S_TMP + 2)
        a("s_add_u32 s%d, s%d, s%d", S_TB, S_TMP, S_TMP + 2)
        a("s_and_b32 s%d, s2, 1", S_ROLE)
        a("s_add_u32 s%d, s%d, s%d", S_J, S_TMP + 1, S_TMP + 2)
        a("s_lshl_b32 s%d, s%d, 4", S_PAIR, S_TA)
        a("s_add_u32 s%d, s%d, s%d", S_PAIR, S_PAIR, S_TB)
        a("s_mul_i32 s%d, s%d, 28", S_KB, S_ROLE)
        wm(a, "W4a", 4, "W4b", 2)
    def g4_slots(a):
        a("s_lshl_b32 s%d, s%d, 1", S_TMP, S_TA)
        a("s_add_u32 s%d, s%d, s%d", S_TMP, S_TMP, S_ROLE)
        a("s_add_u32 s%d, s%d, %d", S_TMP, S_TMP, C34)
        a("s_lshl_b32 s%d, s%d, 8", S_TMP, S_TMP)
        a("s_mov_b32 s%d, %d", S_TMP + 2, CR * 256)
    def g4_dep(a, pre):
        g4_slots(a)
        wait_counters(a, "g4_dep", 14, 32, pre, (2, 0))
    later.append(lambda: lds.__setitem__("g4", gen_gemm(body, "g4", 256, Op("kc", 128, LDU), Op("km", 128, 4096), 2, 2, 28, 4, "s", g4_ptrs, g4_decode,
                         "resid+biasB", "plain", 2048, stats=True, split=True, cnt=lambda a: (slot(a, S_TB, C41), a("s_lshl_b32 s%d, s%d, 1", S_TMP + 1, S_TA),
                                                                                             a("s_add_u32 s%d, s%d, s%d", S_TMP + 1, S_TMP + 1, S_ROLE)), dep=g4_dep, wop="B")))

    DEPS.update(g1=(g1_decode, g1_slots, 16, 16), g2=(g2_decode, lambda a: slot(a, S_TB, C12), 16, 16),
                g3=(g3_decode, lambda a: slot(a, S_TB, C23), 32, 32), g4=(g4_decode, g4_slots, 14, 32))
    for f in later: f()

    seq = [(p, ab) for ab in "ab" for p in PHASES]
    launches = []
    for k, (p, ab) in enumerate(seq):
        if k == 0 or prev_cut(p): launches.append([p + ab + "_kernel", 0, 0])
        launches[-1][1] = max(launches[-1][1], GEMM_VTOP[p])
        launches[-1][2] = LFLAG + 256
    body.label("code_end")
    for kn, vt, l in launches: kernel_desc(body, kn, vt, NSGPR)
    head = open("/code/%s.s.ref" % NAME).read().split("; Override launch geometry")[0]
    lines = ["; @launch kernel=%s grid=(256,1,1) block=(512,1,1) lds=%d" % (kn, l) for kn, vt, l in launches]
    return head + "\n".join(lines) + "\n" + '.amdgcn_target "amdgcn-amd-amdhsa--gfx950"\n' + body.text()

if __name__ == "__main__":
    out = sys.argv[1] if len(sys.argv) > 1 else "/code/%s.s" % NAME
    for o in sys.argv[2:]:
        k, _, v = o.partition("=")
        OPT[k] = (int(v) if v.isdigit() and k != "cuts" else v) if v else 1
    text = build()
    open(out, "w").write(text)
    import json
    json.dump(KID, open(out + ".kid", "w"))
    hazard.check(text)
```

```python
import sys, struct, math
from asmlib import *
import hazard

NAME = "interleave_layers__sliding_local_dilated__mixer_token_mlp__prompt"
MB = 1 << 20
WS = dict(ST=0, CS=1 * MB, EX=2 * MB, CNT=3 * MB, O=4 * MB, X1=8 * MB, H=12 * MB, U=17 * MB, X2=25 * MB, PART=29 * MB)
LDH = 2304
LDU = 8192
ST_BYTES = 16 * 2048 * 8
CS_BYTES = 16 * 3072 * 4
PART_BYTES = 256 * 16384
ARG = dict(x=0, wqkv=8, wo=16, bx=24, w1=32, b1=40, w2=48, b2=56, out=64, dbg=72, ws=80)
ACT_BYTES = 2048 * 1024 * 2

OPT = {}
for _o in sys.argv[2:]:
    _k, _, _v = _o.partition('=')
    if _k == 'LDH': LDH = int(_v)
    if _k == 'LDU': LDU = int(_v)

def STF():
    return {0: "", 1: " sc1", 2: " nt", 3: " sc0 sc1", 4: " sc0 sc1 nt"}[OPT.get("stf", 1)]

def WSC():
    return {0: "", 1: " sc1", 2: " sc0 sc1", 3: " sc0"}[OPT.get("wsc", 0)]

def ASC():
    return " sc1" if OPT.get("asc", 1) else ""

def f32(x):
    return struct.unpack("<I", struct.pack("<f", x))[0]

LOFF = 40 * MB
STAMP_OFF = 34 * MB
KID = {}
def stamp(a, k):
    if OPT.get("stamp"):
        a("%s s[%d:%d]", "s_memtime" if OPT["stamp"] == 2 else "s_memrealtime", 64 + 2 * k, 65 + 2 * k)

def stamp_flush(a, name, n, wsreg=4, waitvm=True, extra=False):
    if not OPT.get("stamp"): return
    kid = KID.setdefault(name, len(KID))
    if waitvm: a("s_waitcnt vmcnt(0)")
    a("%s s[%d:%d]", "s_memtime" if OPT["stamp"] == 2 else "s_memrealtime", 64 + 2 * n, 65 + 2 * n)
    a("s_waitcnt lgkmcnt(0)")
    a("s_add_u32 s84, s%d, 0x%x", wsreg, STAMP_OFF + kid * 512 * 1024)
    a("s_addc_u32 s85, s%d, 0", wsreg + 1)
    a("s_mov_b32 s86, 0x80000")
    a("s_mov_b32 s87, 0x20000")
    a("v_lshrrev_b32 v1, 6, v0")
    a("v_lshlrev_b32 v1, 6, v1")
    a("s_lshl_b32 s88, s2, 9")
    a("v_add_u32 v1, s88, v1")
    for k in range(n + 1 + extra):
        a("v_mov_b32 v2, s%d", 64 + 2 * k)
        a("buffer_store_dword v2, v1, s[84:87], 0 offen offset:%d", 4 * k)
        a("s_nop 1")

def srd(a, d, p, off, nbytes):
    if off:
        a("s_add_u32 s%d, s%d, 0x%x", d, p, off)
        a("s_addc_u32 s%d, s%d, 0", d + 1, p + 1)
    else:
        a("s_mov_b32 s%d, s%d", d, p)
        a("s_mov_b32 s%d, s%d", d + 1, p + 1)
    a("s_mov_b32 s%d, 0x%x", d + 2, nbytes)
    a("s_mov_b32 s%d, 0x20000", d + 3)

def round_bf16_scalar(a, v):
    a("v_cvt_pk_bf16_f32 v%d, v%d, v%d", v, v, v)
    a("v_lshlrev_b32 v%d, 16, v%d", v, v)

class Op:
    def __init__(self, kind, T, ld):
        self.kind, self.T, self.ld = kind, T, ld
        self.bytes = T * 128
        self.n = self.bytes // 1024
        self.npw = self.n // 4
        self.kadv = 128 if kind == "kc" else 64 * ld

S_TA, S_TB, S_KB, S_J, S_W = 24, 25, 26, 27, 28
S_T, S_SLOT, S_OFA, S_OFB = 32, 33, 34, 35
S_LA, S_LB, S_M0A, S_M0B = 36, 37, 38, 39
S_TMP = 40
S_CNT, S_DELTA, S_SI = 48, 49, 50
S_ST = 52
S_DP, S_DN = 51, 29
S_N, S_ROLE, S_PAIR, S_OWN, S_OTH, S_WM = 90, 91, 92, 93, 94, 95
S_LAYER, S_LOFF = 96, 97
NSGPR = 100
C12, C23, C34, C41, CR = 0, 16, 24, 40, 56
CUTS = set()

def loader_voffs(a, op, stile, vb, extra_cols=0):
    ld = op.ld
    a("s_mov_b32 s%d, %d", S_TMP, ld)
    if op.kind == "kc":
        a("v_lshrrev_b32 v3, 3, v2")
        a("v_mul_lo_u32 v3, v3, s%d", S_TMP)
        a("v_lshrrev_b32 v4, 4, v2")
        a("v_xor_b32 v4, v4, v2")
        a("v_and_b32 v4, 7, v4")
        a("v_lshl_add_u32 v3, v4, 4, v3")
        a("s_mul_i32 s%d, s%d, %d", S_TMP + 1, stile, op.T * ld)
        a("s_mul_i32 s%d, s%d, %d", S_TMP + 2, S_W, 8 * op.npw * ld)
        a("s_add_u32 s%d, s%d, s%d", S_TMP + 1, S_TMP + 1, S_TMP + 2)
        a("v_xor_b32 v4, 64, v3")
        for i in range(op.npw):
            a("s_add_u32 s%d, s%d, %d", S_TMP + 2, S_TMP + 1, i * 8 * ld)
            a("v_add_u32 v%d, s%d, v%d", vb + i, S_TMP + 2, 3 + (i & 1))
    elif op.T == 128:
        a("v_lshrrev_b32 v4, 4, v2")
        a("v_mul_lo_u32 v3, v4, s%d", S_TMP)
        a("v_lshlrev_b32 v4, 1, v4")
        a("v_xor_b32 v4, v4, v2")
        a("v_and_b32 v4, 15, v4")
        a("v_lshl_add_u32 v3, v4, 4, v3")
        a("s_mul_i32 s%d, s%d, 256", S_TMP + 1, stile)
        a("s_mul_i32 s%d, s%d, %d", S_TMP + 2, S_W, 16 * ld)
        a("s_add_u32 s%d, s%d, s%d", S_TMP + 1, S_TMP + 1, S_TMP + 2)
        a("v_xor_b32 v4, 128, v3")
        for i in range(4):
            a("s_add_u32 s%d, s%d, %d", S_TMP + 2, S_TMP + 1, i * 4 * ld)
            a("v_add_u32 v%d, s%d, v%d", vb + i, S_TMP + 2, 3 + (i >> 1))
    elif op.T == 64:
        a("v_lshrrev_b32 v3, 3, v2")
        a("v_mul_lo_u32 v3, v3, s%d", S_TMP)
        a("v_bfe_u32 v4, v2, 4, 1")
        a("v_lshlrev_b32 v4, 1, v4")
        a("v_xor_b32 v4, v4, v2")
        a("v_and_b32 v4, 7, v4")
        a("v_lshl_add_u32 v3, v4, 4, v3")
        a("s_mul_i32 s%d, s%d, 128", S_TMP + 1, stile)
        a("s_mul_i32 s%d, s%d, %d", S_TMP + 2, S_W, 16 * ld)
        a("s_add_u32 s%d, s%d, s%d", S_TMP + 1, S_TMP + 1, S_TMP + 2)
        a("v_xor_b32 v4, 64, v3")
        for i in range(2):
            a("s_add_u32 s%d, s%d, %d", S_TMP + 2, S_TMP + 1, i * 8 * ld + extra_cols * 2)
            a("v_add_u32 v%d, s%d, v%d", vb + i, S_TMP + 2, 3 + i)
    else:
        raise ValueError

def lane_parts(a):
    a("v_lshrrev_b32 v5, 4, v2")
    a("v_bfe_u32 v6, v2, 2, 2")
    a("v_and_b32 v7, 3, v2")
    a("v_and_b32 v8, 15, v2")

def read_addrs_kc(a, opbase, srow, vb):
    a("v_lshrrev_b32 v3, 1, v8")
    a("v_xor_b32 v3, v3, v5")
    a("v_lshlrev_b32 v3, 4, v3")
    a("v_lshl_add_u32 v3, v8, 7, v3")
    if srow is not None:
        a("s_lshl_b32 s%d, s%d, 7", S_TMP, srow)
        a("s_add_u32 s%d, s%d, %d", S_TMP, S_TMP, opbase)
        a("v_add_u32 v%d, s%d, v3", vb, S_TMP)
    else:
        a("v_add_u32 v%d, %d, v3", vb, opbase)
    a("v_xor_b32 v%d, 64, v%d", vb + 1, vb)

def read_addr_km(a, T, sbase, stile, i, vd, sxor=None):
    rowb = T * 2
    if T == 128:
        a("v_and_b32 v3, 1, v5")
        a("v_lshl_or_b32 v3, v3, 2, v6")
    else:
        a("v_and_b32 v3, 1, v5")
        a("v_lshlrev_b32 v3, 1, v3")
        a("v_lshrrev_b32 v4, 1, v6")
        a("v_or_b32 v3, v3, v4")
    a("s_add_u32 s%d, s%d, %d", S_TMP, stile, i)
    if sxor is not None: a("s_xor_b32 s%d, s%d, s%d", S_TMP, S_TMP, sxor)
    a("v_xor_b32 v3, s%d, v3", S_TMP)
    a("v_lshlrev_b32 v3, 5, v3")
    a("v_lshl_add_u32 v3, v7, 3, v3")
    a("v_lshl_add_u32 v4, v5, 3, v6")
    a("v_lshl_add_u32 v3, v4, %d, v3", rowb.bit_length() - 1)
    a("v_add_u32 v%d, s%d, v3", vd, sbase)

def frag_reads(kind, T, addr_regs, idx, ks, dst):
    if kind == "kc":
        return ["ds_read_b128 v[%d:%d], v%d offset:%d" % (dst, dst + 3, addr_regs[ks], idx * 2048)]
    rowb = T * 2
    return ["ds_read_b64_tr_b16 v[%d:%d], v%d offset:%d" % (dst + 2 * h, dst + 2 * h + 1, addr_regs[idx], h * 4 * rowb + ks * 32 * rowb)
            for h in range(2)]

BUD = [2]
def interleave(a, mfmas, reads, tail=()):
    reads = list(reads); tail = list(tail)
    if OPT.get("noreads"): reads = []
    if OPT.get("nomfma"): mfmas = ["s_nop 0"] * 2
    for m in mfmas:
        a(m)
        budget = BUD[0]
        while reads and budget > 0:
            cost = 2 if "b128" in reads[0] else 1
            if cost > budget: break
            a(reads.pop(0)); budget -= cost
        if not reads:
            while tail and budget > 0:
                a(tail.pop(0)); budget -= 1
    for r in reads: a(r)
    for t in tail: a(t)

def loader_loop(a, name, issue, nW, nA, N, S, stage_bytes, dep=None, events=(), tail=None):
    n = nW + nA
    early = OPT.get("early", 2)
    def adv():
        a("s_add_u32 s%d, s%d, %d", S_SLOT, S_SLOT, stage_bytes)
        a("s_add_u32 s%d, s%d, 1", S_T, S_T)
    full = early == 2 and not events
    for part in (("W", "A") if early else (None,)):
        if dep and OPT.get("prepoll", 0): dep("pre" if part == "W" else (S if full else S - 1) * nW)
        elif part != "W" and dep: dep(None)
        a("s_mov_b32 s%d, 0", S_T)
        a("s_mov_b32 s%d, 0", S_SLOT)
        a.label("%s_ld_p%s" % (name, part))
        issue(part)
        adv()
        a("s_cmp_lt_u32 s%d, %d", S_T, S if (full and part == "W") else S - 1)
        a("s_cbranch_scc1 %s_ld_p%s", name, part)
    if dep: dep("rest")
    if full:
        special = {S + k: (S - 2 - k) * nA + k * n for k in range(S - 2)}
        a("s_waitcnt vmcnt(%d)", (S - 2) * nA)
        a("s_barrier")
        issue("A")
        a("s_mov_b32 s%d, 0", S_SLOT)
        a("s_add_u32 s%d, s%d, 1", S_T, S_T)
    else:
        special = {S - 1 + k: (S - 2 - k) * nA + k * n for k in range(S - 2)} if early else {}
        a("s_waitcnt vmcnt(%d)", special.pop(S - 1, (S - 2) * n))
        a("s_branch %s_ld_bar", name)
    a.label(name + "_ld_loop")
    for T in special:
        a("s_cmp_eq_u32 s%d, %d", S_T, T)
        a("s_cbranch_scc1 %s_ld_s%d", name, T)
    for k, (at, extra, fn) in enumerate(events):
        if extra:
            a("s_sub_u32 s%d, s%d, s%d", S_TMP, S_T, at)
            a("s_sub_u32 s%d, s%d, 1", S_TMP, S_TMP)
            a("s_cmp_lt_u32 s%d, %d", S_TMP, S - 1)
            a("s_cbranch_scc1 %s_ld_w%d", name, k)
    a("s_waitcnt vmcnt(%d)", (S - 2) * n)
    a.label(name + "_ld_bar")
    a("s_barrier")
    issue(None)
    for k, (at, extra, fn) in enumerate(events):
        a("s_cmp_eq_u32 s%d, s%d", S_T, at)
        a("s_cbranch_scc1 %s_ld_h%d", name, k)
        a.label(name + "_ld_c%d" % k)
    adv()
    a("s_cmp_eq_u32 s%d, %d", S_SLOT, S * stage_bytes)
    a("s_cselect_b32 s%d, 0, s%d", S_SLOT, S_SLOT)
    a("s_cmp_lt_u32 s%d, %d", S_T, N)
    a("s_cbranch_scc1 %s_ld_loop", name)
    if tail: tail()
    else:
        for t in range(N - S + 1, N):
            a("s_waitcnt vmcnt(%d)", (N - 1 - t) * n)
            a("s_barrier")
    if events or special:
        a("s_branch %s_ld_end", name)
        for T, c in special.items():
            a.label(name + "_ld_s%d" % T)
            a("s_waitcnt vmcnt(%d)", c)
            a("s_branch %s_ld_bar", name)
        for k, (at, extra, fn) in enumerate(events):
            if extra:
                a.label(name + "_ld_w%d" % k)
                a("s_waitcnt vmcnt(%d)", (S - 2) * n + extra)
                a("s_branch %s_ld_bar", name)
            a.label(name + "_ld_h%d" % k)
            fn()
            a("s_branch %s_ld_c%d", name, k)
        a.label(name + "_ld_end")

def kidx_offsets(a, W, advA, advB, wrap=0):
    wm = ("s%d" % S_WM) if W == "s" else str(W - 1)
    a("s_add_u32 s%d, s%d, s%d", S_TMP, S_T, S_J)
    a("s_and_b32 s%d, s%d, %s", S_TMP, S_TMP, wm)
    a("s_andn2_b32 s%d, s%d, %s", S_TMP + 1, S_T, wm)
    a("s_or_b32 s%d, s%d, s%d", S_TMP, S_TMP, S_TMP + 1)
    a("s_add_u32 s%d, s%d, s%d", S_TMP, S_TMP, S_KB)
    if wrap: a("s_and_b32 s%d, s%d, %d", S_TMP, S_TMP, wrap - 1)
    a("s_mul_i32 s%d, s%d, %d", S_OFA, S_TMP, advA)
    a("s_mul_i32 s%d, s%d, %d", S_OFB, S_TMP, advB)

def compute_loop_ctl_init(a, N, S, stage_bytes):
    a("s_mov_b32 s%d, %s", S_CNT, N)
    a("s_mov_b32 s%d, 0", S_SI)
    a("s_mov_b32 s%d, %d", S_DP, stage_bytes)
    a("s_mov_b32 s%d, 0x%x", S_DN, (-(S - 1) * stage_bytes) & 0xffffffff)

def addr_update(addr_regs, S, stage_bytes):
    L = ["s_add_u32 s%d, s%d, 1" % (S_SI, S_SI),
         "s_cmp_eq_u32 s%d, %d" % (S_SI, S),
         "s_cselect_b32 s%d, s%d, s%d" % (S_DELTA, S_DN, S_DP),
         "s_cselect_b32 s%d, 0, s%d" % (S_SI, S_SI)]
    L += ["v_add_u32 v%d, s%d, v%d" % (r, S_DELTA, r) for r in addr_regs]
    L += ["s_sub_u32 s%d, s%d, 1" % (S_CNT, S_CNT), "s_cmp_lg_u32 s%d, 0" % S_CNT]
    return L

def gelu_pairs(a, regs, tmp, cst):
    n = len(regs)
    pr = lambda r: "v[%d:%d]" % (r, r + 1)
    for k, r in enumerate(regs): a("v_pk_mul_f32 %s, %s, %s", pr(tmp + 2 * k), pr(r), pr(r))
    for k, r in enumerate(regs): a("v_pk_fma_f32 %s, %s, %s, %s", pr(tmp + 2 * k), pr(tmp + 2 * k), pr(cst), pr(cst + 2))
    for k, r in enumerate(regs): a("v_pk_mul_f32 %s, %s, %s", pr(tmp + 2 * k), pr(tmp + 2 * k), pr(r))
    for k in range(2 * n): a("v_exp_f32 v%d, v%d", tmp + k, tmp + k)
    for k, r in enumerate(regs): a("v_pk_add_f32 %s, %s, %s", pr(tmp + 2 * k), pr(tmp + 2 * k), pr(cst + 4))
    for k in range(2 * n): a("v_rcp_f32 v%d, v%d", tmp + k, tmp + k)
    for k, r in enumerate(regs): a("v_pk_mul_f32 %s, %s, %s", pr(r), pr(r), pr(tmp + 2 * k))

def cloop(a, name, mf, rd, addrs, S, stage, first=None, mid=None, final=None):
    stamp(a, 2)
    a("s_barrier")
    stamp(a, 3)
    if OPT.get("stamp"): a("s_waitcnt lgkmcnt(0)")
    if OPT.get("skip0", 1):
        for r in rd(0, 0): a(r)
        if first: first()
        a("s_branch %s_cloop3", name)
    else:
        if first: first()
        a("s_branch %s_cloop2", name)
    if mid:
        a.label(name + "_mid")
        a("s_waitcnt vmcnt(0)")
        a("s_nop 7")
        mid[1]()
        a("s_nop 1")
        a("s_branch %s_cloop2", name)
    a.raw(".p2align 3")
    a.label(name + "_cloop")
    a("s_barrier")
    if mid:
        a("s_cmp_eq_u32 s%d, %d", S_CNT, mid[0])
        a("s_cbranch_scc1 %s_mid", name)
    a.label(name + "_cloop2")
    BUD[0] = OPT.get("bud_" + name, 2)
    interleave(a, mf(1), rd(0, 0))
    a.label(name + "_cloop3")
    a("s_waitcnt lgkmcnt(0)")
    interleave(a, mf(0), rd(1, 1), addr_update(addrs, S, stage))
    a("s_waitcnt lgkmcnt(0)")
    a("s_cbranch_scc1 %s_cloop", name)
    stamp(a, 4)
    if final: final()
    else:
        for m in mf(1): a(m)

def overlap_final(a, units, lead=3, after_lead=None):
    for u in range(min(lead, len(units))):
        for m in units[u][0]: a(m)
    if after_lead: after_lead()
    for u, (_, work) in enumerate(units):
        ms = list(units[u + lead][0]) if u + lead < len(units) else []
        step = max(1, len(work) // max(1, len(ms)))
        if u + 1 == len(units) or u + lead >= len(units): pass
        for k, w in enumerate(work):
            if ms and k % step == 0: a(ms.pop(0))
            a(w)
        for m in ms: a(m)

GEMM_VTOP = {}
CNT_BYTES = 64 * 4096
def count_in(a, label, area=0, nxt=None, nrep=32):
    srd(a, 84, 4, WS["CNT"] + area, CNT_BYTES)
    a("s_lshl_b32 s%d, s%d, 2", S_TMP + 1, S_TMP + 1)
    a("s_add_u32 s%d, s%d, s%d", S_TMP, S_TMP, S_TMP + 1)
    a("v_and_b32 v3, 31, v0")
    a("v_lshl_add_u32 v3, v3, 7, s%d", S_TMP)
    a("v_mov_b32 v4, 1")
    if nxt and OPT.get("look", 0):
        dec, slots, need0, need1 = DEPS[nxt]
        a("s_cmp_lg_u32 s%d, 0", S_W)
        a("s_cbranch_scc1 %s_nl", label)
        a("v_and_b32 v2, 63, v0")
        dec(a)
        slots(a)
        flag_lanes(a, 10, 11, 12, need0, need1)
        a("buffer_load_dword v11, v10, s[84:87], 0 offen sc1")
        a("v_cmp_ne_u32 s[%d:%d], v10, v3", S_TMP + 4, S_TMP + 5)
        a("s_lshl_b32 s%d, s%d, 2", S_TMP + 3, S_LAYER)
        a("s_add_u32 s%d, s%d, %d", S_TMP + 3, S_TMP + 3, PHASES.index(nxt) + 1 + (4 if nxt == "g1" else 0))
        a("v_mov_b32 v12, %d", LFLAG)
        a("v_mov_b32 v13, s%d", S_TMP + 3)
        a("s_waitcnt vmcnt(0)")
        a("v_cmp_eq_u32 vcc, 0, v11")
        a("s_nop 0")
        a("s_and_b64 vcc, vcc, s[%d:%d]", S_TMP + 4, S_TMP + 5)
        a("s_cbranch_scc1 %s_nl", label)
        a("ds_write_b32 v12, v13")
        a("s_waitcnt lgkmcnt(0)")
        a.label(label + "_nl")
    a("s_waitcnt vmcnt(0)")
    a("s_barrier")
    a("s_cmp_lg_u32 s%d, 0", S_W)
    a("s_cbranch_scc1 %s", label)
    a("s_mov_b32 exec_hi, 0")
    if nrep == 16: a("s_mov_b32 exec_lo, 0xffff")
    a("buffer_store_dword v4, v3, s[84:87], 0 offen sc1")
    a("s_mov_b64 exec, -1")
    a.label(label)

def flag_lanes(a, vd, vt0, vt1, need0, need1):
    a("v_cmp_gt_u32 vcc, 32, v2")
    a("v_mov_b32 v%d, s%d", vd, S_TMP)
    a("v_mov_b32 v%d, s%d", vt1, S_TMP + 2)
    a("v_cndmask_b32 v%d, v%d, v%d, vcc", vd, vt1, vd)
    a("v_mov_b32 v%d, %d", vt0, need0 - 1)
    a("v_mov_b32 v%d, %d", vt1, need1 - 1)
    a("v_cndmask_b32 v%d, v%d, v%d, vcc", vt0, vt1, vt0)
    a("v_and_b32 v%d, 31, v2", vt1)
    a("v_min_u32 v%d, v%d, v%d", vt1, vt1, vt0)
    a("v_lshl_add_u32 v%d, v%d, 2, v%d", vd, vt1, vd)

DEPS = {}
LFLAG = 131072
def wait_counters(a, label, need0, need1, pre=None, first=None):
    pid = PHASES.index(label[:2]) + 1
    two = OPT.get("two", 1) and first is not None
    if pre == "rest":
        if not two: return
        a("s_cmp_lg_u32 s%d, 0", S_W)
        a("s_cbranch_scc1 %s_rok", label)
        a("s_mov_b32 s%d, 0x40000", S_TMP + 1)
        srd(a, 84, 4, WS["CNT"], CNT_BYTES)
        a.label(label + "_r")
        a("v_cmp_eq_u32 vcc, 0, v23")
        a("s_sub_u32 s%d, s%d, 1", S_TMP + 1, S_TMP + 1)
        a("s_cmp_eq_u32 s%d, 0", S_TMP + 1)
        a("s_cbranch_scc1 %s_rok", label)
        a("s_cbranch_vccz %s_rok", label)
        a("s_sleep %d", OPT.get("dslp", 2))
        a("buffer_load_dword v23, v21, s[84:87], 0 offen sc1")
        a("s_waitcnt vmcnt(0)")
        a("s_branch %s_r", label)
        a.label(label + "_rok")
        return
    if pre == "pre":
        a("s_cmp_lg_u32 s%d, 0", S_W)
        a("s_cbranch_scc1 %s_pre", label)
        srd(a, 84, 4, WS["CNT"], CNT_BYTES)
        flag_lanes(a, 21, 22, 23, need0, need1)
        a("buffer_load_dword v23, v21, s[84:87], 0 offen sc1")
        a.label(label + "_pre")
        return
    a("s_lshl_b32 s%d, s%d, 2", S_TMP + 3, S_LAYER)
    a("s_add_u32 s%d, s%d, %d", S_TMP + 3, S_TMP + 3, pid)
    a("s_mov_b32 s%d, 0x800000", S_TMP + 1)
    a("v_mov_b32 v24, %d", LFLAG)
    a("s_cmp_lg_u32 s%d, 0", S_W)
    a("s_cbranch_scc1 %s_lds", label)
    if OPT.get("look", 0):
        a("ds_read_b32 v23, v24")
        a("s_waitcnt lgkmcnt(0)")
        a("v_readfirstlane_b32 s%d, v23", S_TMP + 4)
        a("v_mov_b32 v21, 0")
        a("s_cmp_eq_u32 s%d, s%d", S_TMP + 4, S_TMP + 3)
        a("s_cbranch_scc1 %s_ok", label)
    srd(a, 84, 4, WS["CNT"], CNT_BYTES)
    if not isinstance(pre, int): flag_lanes(a, 21, 22, 23, need0, need1)
    a("s_mov_b32 s%d, 0x40000", S_TMP + 1)
    f0, f1 = first if two else (32, 32)
    a("s_mov_b32 s%d, 0x%x", S_TMP + 4, (1 << f0) - 1)
    a("s_mov_b32 s%d, 0x%x", S_TMP + 5, (1 << f1) - 1)
    if isinstance(pre, int):
        a("s_waitcnt vmcnt(%d)", pre)
        a("s_branch %s_chk", label)
    a.label(label)
    a("buffer_load_dword v23, v21, s[84:87], 0 offen sc1")
    a("s_sub_u32 s%d, s%d, 1", S_TMP + 1, S_TMP + 1)
    a("s_waitcnt vmcnt(0)")
    a.label(label + "_chk")
    a("v_cmp_eq_u32 vcc, 0, v23")
    a("s_cmp_eq_u32 s%d, 0", S_TMP + 1)
    a("s_cbranch_scc1 %s_seen", label)
    a("s_and_b64 vcc, vcc, s[%d:%d]", S_TMP + 4, S_TMP + 5)
    a("s_cbranch_scc0 %s_seen", label)
    a("s_sleep %d", OPT.get("dslp", 2))
    a("s_branch %s", label)
    a.label(label + "_seen")
    a("v_mov_b32 v22, s%d", S_TMP + 3)
    a("ds_write_b32 v24, v22")
    a("s_branch %s_ok", label)
    a.label(label + "_lds")
    a("ds_read_b32 v23, v24")
    a("s_sub_u32 s%d, s%d, 1", S_TMP + 1, S_TMP + 1)
    a("s_waitcnt lgkmcnt(0)")
    a("v_readfirstlane_b32 s%d, v23", S_TMP)
    a("s_cmp_eq_u32 s%d, 0", S_TMP + 1)
    a("s_cbranch_scc1 %s_ok", label)
    a("s_cmp_eq_u32 s%d, s%d", S_TMP, S_TMP + 3)
    a("s_cbranch_scc1 %s_ok", label)
    a("s_sleep 1")
    a("s_branch %s_lds", label)
    a.label(label + "_ok")

PHASES = ["g1", "g2", "g3", "g4"]
def prev_cut(name):
    k = PHASES.index(name)
    return "%d%d" % ((k - 1) % 4 + 1, k + 1) in CUTS
def next_cut(name):
    k = PHASES.index(name)
    return "%d%d" % (k + 1, (k + 1) % 4 + 1) in CUTS

def entry(a, name, ntiles, spare=False):
    for layer, ab in enumerate("ab"):
        if prev_cut(name) or (name == "g1" and layer == 0):
            kernel_header(a, "%s%s_kernel" % (name, ab))
            a("s_mov_b32 s%d, %d", S_LAYER, layer)
            a("s_mov_b32 s%d, 0x%x", S_LOFF, layer * LOFF)
            a("v_mov_b32 v1, %d", LFLAG)
            a("v_mov_b32 v2, 0")
            a("ds_write_b32 v1, v2")
            a("s_branch %s_in", name)
            KERNELS.append("%s%s_kernel" % (name, ab))
    a.raw(".p2align 6")
    a.label(name + "_in")
    a("s_cmp_ge_u32 s2, %d", ntiles)
    a("s_cbranch_scc1 %s_%s", name, "spare" if spare else "done")
    stamp(a, 0)
KERNELS = []

def ws_adjust(a):
    a("s_add_u32 s4, s4, s%d", S_LOFF)
    a("s_addc_u32 s5, s5, 0")

def sel_ptr(a, d, which_layer, off):
    a("s_add_u32 s%d, s4, 0x%x", d, off)
    a("s_addc_u32 s%d, s5, 0", d + 1)
    a("s_cmp_eq_u32 s%d, %d", S_LAYER, which_layer)
    a("s_cselect_b32 s%d, s%d, s6", d, d)
    a("s_cselect_b32 s%d, s%d, s7", d + 1, d + 1)
    a("s_mov_b32 s%d, 0x%x", d + 2, ACT_BYTES)
    a("s_mov_b32 s%d, 0x20000", d + 3)

def late_y(name):
    return OPT.get("latey", 0) and name != "g1" and not next_cut(name)

def go_next(a, name):
    if name == "g4":
        a("s_mov_b32 s%d, 1", S_LAYER)
        a("s_mov_b32 s%d, 0x%x", S_LOFF, LOFF)
    a("s_branch %s_in", PHASES[(PHASES.index(name) + 1) % 4])

def finish(a, name, cnt, loader=False):
    if next_cut(name):
        a("s_endpgm")
        return
    if name == "g4":
        a("s_cmp_lg_u32 s%d, 0", S_LAYER)
        a("s_cbranch_scc1 %s_done", name)
    if loader:
        if not late_y(name): a("s_barrier")
    else:
        cnt(a)
        count_in(a, name + "_cin", LOFF if name == "g4" else 0, PHASES[(PHASES.index(name) + 1) % 4], 32 if name == "g2" else 16)
    go_next(a, name)

def gen_gemm(a, name, ntiles, A, B, WA, WB, N, S, W, ptrs, decode, init, epi, ldc, cnt, dep, stats=False, spare=None, split=None, wop="A", lbase=0):
    na, nb = A.T // (16 * WA), B.T // (16 * WB)
    stage = A.bytes + B.bytes
    baseA, baseB = lbase, lbase + A.bytes
    entry(a, name, ntiles, spare is not None)
    ptrs(a, 0)
    a("v_lshrrev_b32 v1, 6, v0")
    a("v_and_b32 v2, 63, v0")
    decode(a)
    a("v_readfirstlane_b32 s%d, v1", S_W)
    a("s_nop 0")
    a("s_cmp_lt_u32 s%d, 4", S_W)
    a("s_cbranch_scc1 %s_compute", name)

    if OPT.get("ldprio"): a("s_setprio %d", OPT["ldprio"])
    a("s_sub_u32 s%d, s%d, 4", S_W, S_W)
    loader_voffs(a, A, S_TA, 10)
    loader_voffs(a, B, S_TB, 10 + A.npw)
    a("s_mul_i32 s%d, s%d, %d", S_LA, S_W, A.npw * 1024)
    if baseA: a("s_add_u32 s%d, s%d, %d", S_LA, S_LA, baseA)
    a("s_mul_i32 s%d, s%d, %d", S_LB, S_W, B.npw * 1024)
    a("s_add_u32 s%d, s%d, %d", S_LB, S_LB, baseB)
    a("s_waitcnt lgkmcnt(0)")
    ws_adjust(a)
    ptrs(a, "L")
    def issue(part):
        kidx_offsets(a, W, A.kadv, B.kadv)
        a("s_add_u32 s%d, s%d, s%d", S_M0A, S_SLOT, S_LA)
        a("s_add_u32 s%d, s%d, s%d", S_M0B, S_SLOT, S_LB)
        for (op, vb, sm, so, sr) in ((A, 10, S_M0A, S_OFA, 8), (B, 10 + A.npw, S_M0B, S_OFB, 12)):
            if part and (part == "W") != (op is Wop): continue
            for i in range(op.npw):
                a("s_add_u32 m0, s%d, %d", sm, i * 1024)
                a("s_nop 0")
                a("buffer_load_dwordx4 v%d, s[%d:%d], s%d offen%s lds", vb + i, sr, sr + 3, so, WSC() if op is Wop else ASC())
    Wop = B if wop == "B" else A
    def gdep(pre):
        if late_y(PHASES[PHASES.index(name) - 1]) and pre is None: a("s_barrier")
        dep(a, pre)
    loader_loop(a, name, issue, Wop.npw, A.npw + B.npw - Wop.npw, N, S, stage, dep=None if prev_cut(name) else gdep)
    if not next_cut(name): finish(a, name, cnt, loader=True)
    a.label(name + "_done")
    a("s_endpgm")

    a.label(name + "_compute")
    ACC = 28
    BV = 22
    nacc = na * nb * 4
    FR = ACC + nacc
    fset = (na + nb) * 4
    fA = lambda st, i: FR + st * fset + 4 * i
    fB = lambda st, j: FR + st * fset + 4 * na + 4 * j
    acc = lambda i, j: ACC + 4 * (i * nb + j)
    VTOP = FR + 2 * fset
    if epi == "ln2":
        EXV = VTOP
        VTOP += 16
    nk = nb // 2 if split else nb
    if split:
        SND, RCV = VTOP, VTOP + 16
        VTOP += 32
    lane_parts(a)
    SWA, SWB = S_TMP + 4, S_TMP + 5
    a("s_and_b32 s%d, s%d, %d", SWA, S_W, WA - 1)
    a("s_lshr_b32 s%d, s%d, %d", SWB, S_W, WA.bit_length() - 1)
    a("s_mul_i32 s%d, s%d, %d", S_TMP, S_TB, B.T)
    a("s_mul_i32 s%d, s%d, %d", S_TMP + 1, SWB, nb * 16)
    a("s_add_u32 s%d, s%d, s%d", S_TMP, S_TMP, S_TMP + 1)
    if split:
        a("s_lshl_b32 s%d, s%d, 5", S_TMP + 1, S_ROLE)
        a("s_add_u32 s%d, s%d, s%d", S_TMP, S_TMP, S_TMP + 1)
    a("v_add_u32 v20, s%d, v8", S_TMP)
    a("s_mov_b32 s%d, %d", S_TMP + 1, ldc)
    a("v_mul_lo_u32 v9, v20, s%d", S_TMP + 1)
    a("s_mul_i32 s%d, s%d, %d", S_TMP, S_TA, A.T * 2)
    a("s_mul_i32 s%d, s%d, %d", S_TMP + 1, SWA, na * 32)
    a("s_add_u32 s%d, s%d, s%d", S_TMP + 6, S_TMP, S_TMP + 1)
    a("v_and_b32 v3, 1, v5")
    a("v_lshlrev_b32 v3, 5, v3")
    a("v_lshrrev_b32 v4, 1, v5")
    a("v_lshl_add_u32 v3, v4, 4, v3")
    a("v_add3_u32 v9, v9, v3, s%d", S_TMP + 6)
    for j in range(nb):
        a("s_mov_b32 s%d, %d", S_ST + j, j * 16 * ldc)
    a("s_waitcnt lgkmcnt(0)")
    stamp(a, 1)
    ws_adjust(a)
    ptrs(a, "C")
    resid = init in ("resid", "resid+biasB")
    if resid:
        RES = VTOP
        VTOP += 24
    def resid_loads():
        for j in range(nk):
            for p in range(na // 2):
                d = RES + 4 * (j * (na // 2) + p)
                a("buffer_load_dwordx4 v[%d:%d], v9, s[20:23], s%d offen offset:%d%s", d, d + 3, S_ST + j, p * 64, ASC())
        if init == "resid+biasB":
            a("v_lshlrev_b32 v3, 1, v20")
            for j in range(nk):
                a("buffer_load_ushort v%d, v3, s[56:59], 0 offen offset:%d", BV + j, j * 32)
    def resid_add():
        T = RES + 16
        for q in range(nk * na // 2):
            a("v_permlane16_swap_b32 v%d, v%d", RES + 4 * q, RES + 4 * q + 2)
            a("v_permlane16_swap_b32 v%d, v%d", RES + 4 * q + 1, RES + 4 * q + 3)
        if init == "resid+biasB":
            for j in range(nk): a("v_lshlrev_b32 v%d, 16, v%d", BV + j, BV + j)
        for j in range(nk):
            for p in range(na // 2):
                d = RES + 4 * (j * (na // 2) + p)
                for q in range(4):
                    a("v_lshlrev_b32 v%d, 16, v%d", T + 2 * q, d + q)
                    a("v_and_b32 v%d, 0xffff0000, v%d", T + 2 * q + 1, d + q)
                if init == "resid+biasB":
                    for q in range(8): a("v_add_f32 v%d, v%d, v%d", T + q, T + q, BV + j)
                for q in range(4):
                    c = acc(2 * p + (q >> 1), j) + 2 * (q & 1)
                    a("v_pk_add_f32 v[%d:%d], v[%d:%d], v[%d:%d]", c, c + 1, c, c + 1, T + 2 * q, T + 2 * q + 1)
    if init == "biasA":
        a("v_lshl_add_u32 v3, v5, 3, s%d", S_TMP + 6)
        for i in range(na):
            a("buffer_load_dwordx2 v[%d:%d], v3, s[20:23], 0 offen offset:%d", FR + 2 * i, FR + 2 * i + 1, i * 32)
    AR = 10
    def mk_addrs(op, base, swave, n, vb, sxor=None):
        if op.kind == "kc":
            a("s_mul_i32 s%d, s%d, %d", S_TMP + 2, swave, n * 16)
            read_addrs_kc(a, base, S_TMP + 2, vb)
            return [vb, vb + 1]
        a("s_mul_i32 s%d, s%d, %d", S_TMP + 2, swave, n)
        a("s_mov_b32 s%d, %d", S_TMP + 3, base)
        for i in range(n):
            read_addr_km(a, op.T, S_TMP + 3, S_TMP + 2, i, vb + i, sxor)
        return [vb + i for i in range(n)]
    adA = mk_addrs(A, baseA, SWA, na, AR)
    if split: a("s_lshl_b32 s%d, s%d, 1", S_N, S_ROLE)
    adB = mk_addrs(B, baseB, SWB, nb, AR + len(adA), S_N if split else None)
    assert AR + len(adA) + len(adB) <= 20
    for r in range(0 if OPT.get("skip0", 1) else fset): a("v_mov_b32 v%d, 0", FR + fset + r)
    compute_loop_ctl_init(a, N, S, stage)
    if split:
        a("s_lshl_b32 s%d, s%d, 12", S_TMP, S_W)
        a("v_lshl_add_u32 v21, v2, 4, s%d", S_TMP)
        a("s_lshl_b32 s%d, s%d, 1", S_OWN, S_PAIR)
        a("s_add_u32 s%d, s%d, s%d", S_OWN, S_OWN, S_ROLE)
        a("s_lshl_b32 s%d, s%d, 14", S_OWN, S_OWN)
        a("s_xor_b32 s%d, s%d, 0x4000", S_OTH, S_OWN)
    if init != "biasA":
        for r in range(nacc): a("v_mov_b32 v%d, 0", ACC + r)
    else:
        a("s_waitcnt vmcnt(0)")
        for i in range(na):
            for j in range(nb):
                c = acc(i, j)
                for q in range(2):
                    a("v_lshlrev_b32 v%d, 16, v%d", c + 2 * q, FR + 2 * i + q)
                    a("v_and_b32 v%d, 0xffff0000, v%d", c + 2 * q + 1, FR + 2 * i + q)
    if OPT.get("cprio"): a("s_setprio %d", OPT["cprio"])
    ORD = [(i, j if i % 2 == 0 else nb - 1 - j) for i in range(na) for j in range(nb)]
    if OPT.get("snake", 1) == 2: ORD = [(i if j % 2 == 0 else na - 1 - i, j) for j in range(nb) for i in range(na)]
    if OPT.get("snake", 1) == 0: ORD = [(i, j) for i in range(na) for j in range(nb)]
    def mf(st):
        order = ORD
        return (["v_mfma_f32_16x16x32_bf16 v[%d:%d], v[%d:%d], v[%d:%d], v[%d:%d]" %
                (acc(i, j), acc(i, j) + 3, fA(st, i), fA(st, i) + 3, fB(st, j), fB(st, j) + 3, acc(i, j), acc(i, j) + 3)
                for (i, j) in order])
    def rd(st, ks):
        L = []
        L += frag_reads(A.kind, A.T, adA, 0, ks, fA(st, 0))
        for j in range(nb): L += frag_reads(B.kind, B.T, adB, j, ks, fB(st, j))
        for i in range(1, na): L += frag_reads(A.kind, A.T, adA, i, ks, fA(st, i))
        return L
    def rcv_loads():
        for u in range(4):
            a("buffer_load_dwordx4 v[%d:%d], v21, s[84:87], s%d offen offset:%d sc1", RCV + 4 * u, RCV + 4 * u + 3, S_OTH, u * 1024)
    TMPV = FR
    M = dict(zip(ORD, mf(1)))
    def out_unit(k, j, p):
        b = Asm()
        c0_, c1_ = acc(2 * p, j), acc(2 * p + 1, j)
        if epi == "gelu":
            gelu_pairs(b, [c0_, c0_ + 2, c1_, c1_ + 2], TMPV + 16, GC)
        d = TMPV + 4 * (k & 3)
        b("v_cvt_pk_bf16_f32 v%d, v%d, v%d", d, c0_, c0_ + 1)
        b("v_cvt_pk_bf16_f32 v%d, v%d, v%d", d + 1, c0_ + 2, c0_ + 3)
        b("v_cvt_pk_bf16_f32 v%d, v%d, v%d", d + 2, c1_, c1_ + 1)
        b("v_cvt_pk_bf16_f32 v%d, v%d, v%d", d + 3, c1_ + 2, c1_ + 3)
        if epi == "ln2":
            for q, x in enumerate((c0_, c0_ + 2, c1_, c1_ + 2)):
                b("v_lshlrev_b32 v%d, 16, v%d", x, d + q)
                b("v_and_b32 v%d, 0xffff0000, v%d", x + 1, d + q)
        else:
            b("s_nop 1")
        b("v_permlane16_swap_b32 v%d, v%d", d, d + 2)
        b("v_permlane16_swap_b32 v%d, v%d", d + 1, d + 3)
        b("buffer_store_dwordx4 v[%d:%d], v9, s[16:19], s%d offen offset:%d%s", d, d + 3, S_ST + j, p * 64, STF())
        return [l.strip() for l in b.lines]
    JP = [(j, p) for j in range(nk) for p in range(na // 2)]
    tiles = lambda j0: [(i, j) for j in range(j0, j0 + nk) for i in range(na)]
    def final_gelu():
        overlap_final(a, [([M[(2 * p, j)], M[(2 * p + 1, j)]], out_unit(k, j, p)) for k, (j, p) in enumerate(JP)], lead=4,
                      after_lead=lambda: a("s_nop 1"))
    def final_split():
        for t in tiles(nk): a(M[t])
        keep = [M[t] for t in tiles(0)]
        for u, (i, j) in enumerate(tiles(nk)):
            c = acc(i, j)
            a(keep[u])
            if u == 7: a("s_nop 1")
            a("v_cvt_pk_bf16_f32 v%d, v%d, v%d", SND + 2 * u, c, c + 1)
            a("v_cvt_pk_bf16_f32 v%d, v%d, v%d", SND + 2 * u + 1, c + 2, c + 3)
            if u & 1:
                a("buffer_store_dwordx4 v[%d:%d], v21, s[84:87], s%d offen offset:%d sc1", SND + 2 * u - 2, SND + 2 * u + 1, S_OWN, (u >> 1) * 1024)
    if epi == "gelu":
        GC = VTOP
        VTOP += 6
        c1 = -2.0 * math.log2(math.e) * math.sqrt(2.0 / math.pi) * 0.044715
        c0 = -2.0 * math.log2(math.e) * math.sqrt(2.0 / math.pi)
        for k, v in enumerate((c1, c1, c0, c0, 1.0, 1.0)):
            a("v_mov_b32 v%d, 0x%x", GC + k, f32(v))
    cloop(a, name, mf, rd, adA + adB, S, stage, first=resid_loads if resid else None,
          mid=(N // 2, resid_add) if resid and not split else None,
          final=final_gelu if epi == "gelu" else final_split if split else None)
    if split:
        a("s_mov_b32 s%d, 0x40000", S_CNT)
        stamp(a, 5)
        rcv_loads()
        a("s_waitcnt vmcnt(8)")
        a("s_nop 3")
        resid_add()
        a("s_waitcnt vmcnt(0)")
        a.label(name + "_rcv")
        a("v_max3_u32 v4, v%d, v%d, v%d", RCV, RCV + 1, RCV + 2)
        for q in range(3, 15, 2): a("v_max3_u32 v4, v4, v%d, v%d", RCV + q, RCV + q + 1)
        a("v_max_u32 v4, v4, v%d", RCV + 15)
        a("v_cmp_eq_u32 vcc, -1, v4")
        a("s_sub_u32 s%d, s%d, 1", S_CNT, S_CNT)
        a("s_cmp_eq_u32 s%d, 0", S_CNT)
        a("s_cbranch_scc1 %s_rcvd", name)
        a("s_cbranch_vccz %s_rcvd", name)
        a("s_sleep %d", OPT.get("slp", 2))
        rcv_loads()
        a("s_waitcnt vmcnt(0)")
        a("s_branch %s_rcv", name)
        a.label(name + "_rcvd")
        stamp(a, 6)
        if OPT.get("stamp"): a("s_add_u32 s%d, s%d, 0x6000", 64 + 2 * 9, S_CNT)
        for u, (i, j) in enumerate(tiles(0)):
            c = acc(i, j); t = TMPV + 16 + 4 * (u & 3)
            for q in range(2):
                a("v_lshlrev_b32 v%d, 16, v%d", t + 2 * q, RCV + 2 * u + q)
                a("v_and_b32 v%d, 0xffff0000, v%d", t + 2 * q + 1, RCV + 2 * u + q)
            for q in range(2):
                a("v_pk_add_f32 v[%d:%d], v[%d:%d], v[%d:%d]", c + 2 * q, c + 2 * q + 1, c + 2 * q, c + 2 * q + 1, t + 2 * q, t + 2 * q + 1)
    def stats_block():
        assert nk in (2, 4) and na == 4
        pr = lambda r: "v[%d:%d]" % (r, r + 1)
        SV = TMPV + 16
        for j in range(nk):
            prs = [acc(i, j) + 2 * q for i in range(na) for q in range(2)]
            a("v_pk_add_f32 %s, %s, %s", pr(SV + 4 * j), pr(prs[0]), pr(prs[1]))
            a("v_pk_mul_f32 %s, %s, %s", pr(SV + 4 * j + 2), pr(prs[0]), pr(prs[0]))
            for x in prs[1:]:
                if x != prs[1]: a("v_pk_add_f32 %s, %s, %s", pr(SV + 4 * j), pr(SV + 4 * j), pr(x))
                a("v_pk_fma_f32 %s, %s, %s, %s", pr(SV + 4 * j + 2), pr(x), pr(x), pr(SV + 4 * j + 2))
        for j in range(nk):
            a("v_add_f32 v%d, v%d, v%d", SV + 4 * j, SV + 4 * j, SV + 4 * j + 1)
            a("v_add_f32 v%d, v%d, v%d", SV + 4 * j + 1, SV + 4 * j + 2, SV + 4 * j + 3)
        a("s_nop 1")
        for j in range(0, nk, 2):
            a("v_permlane16_swap_b32 v%d, v%d", SV + 4 * j, SV + 4 * j + 4)
            a("v_permlane16_swap_b32 v%d, v%d", SV + 4 * j + 1, SV + 4 * j + 5)
        for j in range(0, nk, 2):
            a("v_pk_add_f32 %s, %s, %s", pr(SV + 4 * j), pr(SV + 4 * j), pr(SV + 4 * j + 4))
        if nk == 2:
            a("v_mov_b32 v%d, v%d", SV + 8, SV)
            a("v_mov_b32 v%d, v%d", SV + 9, SV + 1)
        a("v_and_b32 v3, %d, v2", 16 if nk == 2 else 48)
        a("v_add_u32 v3, v3, v20")
        a("v_permlane32_swap_b32 v%d, v%d", SV, SV + 8)
        a("v_permlane32_swap_b32 v%d, v%d", SV + 1, SV + 9)
        a("v_pk_add_f32 %s, %s, %s", pr(SV), pr(SV), pr(SV + 8))
        a("v_lshlrev_b32 v3, 3, v3")
        a("s_mul_i32 s%d, s%d, %d", S_TMP, S_TA, WA)
        a("s_add_u32 s%d, s%d, s%d", S_TMP, S_TMP, SWA)
        a("s_lshl_b32 s%d, s%d, 14", S_TMP, S_TMP)
        if nk == 2: a("s_mov_b32 exec_hi, 0")
        a("buffer_store_dwordx2 %s, v3, s[60:63], s%d offen sc1", pr(SV), S_TMP)
        if nk == 2: a("s_mov_b32 exec_hi, -1")
    def ln2_start():
        stats_block()
        a("v_lshrrev_b32 v4, 5, v2")
        a("v_lshl_add_u32 v21, v4, 17, v3")
    def ex_loads():
        for q in range(8):
            a("s_mov_b32 s%d, %d", S_TMP + (q & 1), q * 16384)
            a("buffer_load_dwordx2 v[%d:%d], v21, s[60:63], s%d offen sc1", EXV + 2 * q, EXV + 2 * q + 1, S_TMP + (q & 1))
    def ln2_finish():
        pr = lambda r: "v[%d:%d]" % (r, r + 1)
        a("s_mov_b32 s%d, 0x40000", S_CNT)
        a("v_mul_u32_u24 v19, %d, v20", LDH - ldc)
        a("v_add_u32 v19, v19, v9")
        for j in range(nk): a("s_mov_b32 s%d, %d", S_ST + 2 + j, j * 16 * LDH)
        stamp(a, 5)
        ex_loads()
        if OPT.get("x1late") == 2:
            for w in held: a(w)
            a("s_waitcnt vmcnt(4)")
        else:
            a("s_waitcnt vmcnt(0)")
        a.label(name + "_ex")
        a("v_max3_u32 v4, v%d, v%d, v%d", EXV, EXV + 1, EXV + 2)
        for q in range(3, 15, 2): a("v_max3_u32 v4, v4, v%d, v%d", EXV + q, EXV + q + 1)
        a("v_max_u32 v4, v4, v%d", EXV + 15)
        a("v_cmp_eq_u32 vcc, -1, v4")
        a("s_sub_u32 s%d, s%d, 1", S_CNT, S_CNT)
        a("s_cmp_eq_u32 s%d, 0", S_CNT)
        a("s_cbranch_scc1 %s_exd", name)
        a("s_cbranch_vccz %s_exd", name)
        a("s_sleep %d", OPT.get("slp", 2))
        ex_loads()
        a("s_waitcnt vmcnt(0)")
        a("s_branch %s_ex", name)
        a.label(name + "_exd")
        stamp(a, 6)
        if OPT.get("stamp"): a("s_add_u32 s%d, s%d, 0x6000", 64 + 2 * 9, S_CNT)
        if OPT.get("x1late") == 1:
            for w in held: a(w)
        E = EXV
        for st in (4, 2, 1):
            for q in range(st): a("v_pk_add_f32 %s, %s, %s", pr(E + 2 * q), pr(E + 2 * q), pr(E + 2 * (q + st)))
        a("v_mov_b32 v%d, v%d", E + 2, E)
        a("v_mov_b32 v%d, v%d", E + 3, E + 1)
        a("s_nop 1")
        a("v_permlane32_swap_b32 v%d, v%d", E, E + 2)
        a("v_permlane32_swap_b32 v%d, v%d", E + 1, E + 3)
        a("v_pk_add_f32 %s, %s, %s", pr(E), pr(E), pr(E + 2))
        m, var, mb, r1, m2, v2 = E, E + 1, E + 2, E + 3, E + 4, E + 5
        a("v_mul_f32 v%d, 0x%x, v%d", m, f32(1.0 / 1024), m)
        a("v_mul_f32 v%d, 0x%x, v%d", var, f32(1.0 / 1024), var)
        a("v_fma_f32 v%d, -v%d, v%d, v%d", var, m, m, var)
        a("v_max_f32 v%d, 0, v%d", var, var)
        a("v_mov_b32 v%d, v%d", mb, m)
        a("v_mov_b32 v%d, v%d", r1, var)
        def rstd(x):
            round_bf16_scalar(a, x)
            a("v_add_f32 v%d, 0x%x, v%d", x, f32(1e-5), x)
            round_bf16_scalar(a, x)
            a("v_sqrt_f32 v%d, v%d", x, x)
            a("s_nop 0")
            round_bf16_scalar(a, x)
            a("v_rcp_f32 v%d, v%d", x, x)
        round_bf16_scalar(a, mb)
        rstd(r1)
        a("v_sub_f32 v%d, v%d, v%d", m2, m, mb)
        a("v_mul_f32 v%d, v%d, v%d", v2, var, r1)
        a("v_mul_f32 v%d, v%d, v%d", m2, m2, r1)
        a("v_mul_f32 v%d, v%d, v%d", v2, v2, r1)
        round_bf16_scalar(a, m2)
        rstd(v2)
        a("v_fma_f32 v%d, v%d, v%d, v%d", m2, mb, r1, m2)
        a("v_mul_f32 v%d, v%d, v%d", E + 6, r1, v2)
        a("v_mul_f32 v%d, -v%d, v%d", E + 7, m2, v2)
        a("v_mov_b32 v%d, v%d", E + 8, E + 6)
        a("v_mov_b32 v%d, v%d", E + 9, E + 7)
        a("s_nop 1")
        a("v_permlane16_swap_b32 v%d, v%d", E + 6, E + 8)
        a("v_permlane16_swap_b32 v%d, v%d", E + 7, E + 9)
        k = 0
        for j in range(nk):
            ab = pr(E + 6 + 2 * j)
            for p in range(na // 2):
                c0_, c1_ = acc(2 * p, j), acc(2 * p + 1, j)
                for x in (c0_, c0_ + 2, c1_, c1_ + 2):
                    a("v_pk_fma_f32 %s, %s, %s, %s op_sel:[0,0,1] op_sel_hi:[1,0,1]", pr(x), pr(x), ab, ab)
                d = RES + 4 * (k & 3); k += 1
                a("v_cvt_pk_bf16_f32 v%d, v%d, v%d", d, c0_, c0_ + 1)
                a("v_cvt_pk_bf16_f32 v%d, v%d, v%d", d + 1, c0_ + 2, c0_ + 3)
                a("v_cvt_pk_bf16_f32 v%d, v%d, v%d", d + 2, c1_, c1_ + 1)
                a("v_cvt_pk_bf16_f32 v%d, v%d, v%d", d + 3, c1_ + 2, c1_ + 3)
                a("s_nop 1")
                a("v_permlane16_swap_b32 v%d, v%d", d, d + 2)
                a("v_permlane16_swap_b32 v%d, v%d", d + 1, d + 3)
                a("buffer_store_dwordx4 v[%d:%d], v19, s[56:59], s%d offen offset:%d%s", d, d + 3, S_ST + 2 + j, p * 64, STF())
    if epi == "ln2":
        a("s_nop 7")
        ln2_start()
    held = []
    if epi != "gelu":
        for k, (j, p) in enumerate(JP):
            u = out_unit(k, j, p)
            if epi == "ln2" and OPT.get("x1late"): held.append(u.pop())
            for w in u: a(w)
    if stats: stats_block()
    if epi == "ln2": ln2_finish()
    xs = bool(split) or epi == "ln2"
    stamp(a, 7 if xs else 5)
    stamp_flush(a, name, 8 if xs else 6, extra=xs)
    finish(a, name, cnt)
    if spare:
        a.label(name + "_spare")
        spare(a)
    GEMM_VTOP[name] = VTOP
    return lbase + stage * S

def g1_decode(a):
    a("s_and_b32 s%d, s2, 1", S_TMP)
    a("s_lshl_b32 s%d, s%d, 3", S_TMP, S_TMP)
    a("s_bfe_u32 s%d, s2, 0x30003", S_TMP + 1)
    a("s_add_u32 s%d, s%d, s%d", S_TB, S_TMP, S_TMP + 1)
    a("s_bfe_u32 s%d, s2, 0x20001", S_TMP)
    a("s_lshl_b32 s%d, s%d, 2", S_TMP, S_TMP)
    a("s_lshr_b32 s%d, s2, 6", S_TMP + 2)
    a("s_add_u32 s%d, s%d, s%d", S_TA, S_TMP, S_TMP + 2)
    a("s_add_u32 s%d, s%d, s%d", S_J, S_TMP + 1, S_TMP + 2)

def g1_slots(a):
    a("s_add_u32 s%d, s%d, %d", S_TMP, S_TB, C41)
    a("s_lshl_b32 s%d, s%d, 12", S_TMP, S_TMP)
    a("s_sub_u32 s%d, s%d, 4096", S_TMP + 2, S_TMP)
    a("s_max_u32 s%d, s%d, %d", S_TMP + 2, S_TMP + 2, C41 * 4096)
    a("s_lshl_b32 s%d, s%d, 7", S_TMP + 1, S_TA)
    a("s_add_u32 s%d, s%d, s%d", S_TMP, S_TMP, S_TMP + 1)
    a("s_add_u32 s%d, s%d, s%d", S_TMP + 2, S_TMP + 2, S_TMP + 1)

def gen_g1(a, name, W=2):
    N, S = 16, 3
    PW = Op("km", 64, 6144)
    XB = 3 * 8192
    stage = XB + 144 * 128
    E = stage
    REG = 144 * 128
    LST = S * stage
    LCS = LST + 1280
    S_SIG, S_DIST, S_H1, S_H2, S_H3, S_H4, S_H5 = 52, 53, 54, 55, 29, 50, 51
    KG = OPT.get("KG", 12)
    entry(a, name, 256)
    a("s_load_dwordx2 s[4:5], s[0:1], %d", ARG["ws"])
    a("s_load_dwordx2 s[6:7], s[0:1], %d", ARG["x"])
    a("s_xor_b32 s%d, s%d, 1", S_DIST, S_LAYER)
    a("s_load_dwordx2 s[30:31], s[0:1], %d", ARG["wqkv"])
    a("s_load_dwordx2 s[16:17], s[0:1], %d", ARG["dbg"])
    a("s_load_dwordx2 s[18:19], s[0:1], %d", ARG["wo"])
    a("v_lshrrev_b32 v1, 6, v0")
    a("v_and_b32 v2, 63, v0")
    g1_decode(a)
    a("s_add_u32 s%d, s%d, s%d", S_SIG, S_TA, S_TB)
    a("s_and_b32 s%d, s%d, 15", S_SIG, S_SIG)
    a("s_and_b32 s%d, s%d, %d", S_KB, S_SIG, KG)
    a("s_mul_i32 s%d, s%d, s%d", S_KB, S_KB, S_DIST)
    a("v_readfirstlane_b32 s%d, v1", S_W)
    lane_parts(a)
    a("s_cmp_lt_u32 s%d, 4", S_W)
    a("s_cbranch_scc1 %s_compute", name)

    EA, AO, AQ, AV, AM, ED = 216, 225, 226, 227, 228, 232
    SHD, SSH = S_TMP + 4, S_TMP + 5
    def attn_setup():
        srd(a, 16, 4, WS["O"], ACT_BYTES)
        a("s_and_b32 s%d, s%d, 1", SHD, S_W)
        SU = S_TMP + 5
        a("s_lshr_b32 s%d, s%d, 1", SU, S_W)
        a("s_lshl_b32 s%d, s%d, 2", S_TMP, SHD)
        a("v_add_u32 v3, s%d, v5", S_TMP)
        a("v_and_b32 v4, 7, v8")
        a("v_xor_b32 v3, v3, v4")
        a("v_lshlrev_b32 v3, 4, v3")
        a("v_lshl_add_u32 v3, v8, 8, v3")
        a("s_mul_i32 s%d, s%d, %d", S_TMP + 1, SU, 32 * 128)
        a("s_add_u32 s%d, s%d, %d", S_TMP + 1, S_TMP + 1, E)
        a("v_add_u32 v%d, s%d, v3", AQ, S_TMP + 1)
        a("v_lshl_add_u32 v3, v5, 2, v6")
        a("v_and_b32 v4, 7, v3")
        a("v_add_u32 v%d, s%d, v7", AM, S_TMP)
        a("v_xor_b32 v4, v4, v%d", AM)
        a("v_lshlrev_b32 v4, 4, v4")
        a("v_lshl_add_u32 v3, v3, 8, v4")
        a("s_add_u32 s%d, s%d, %d", S_TMP + 1, S_TMP + 1, 2 * REG)
        a("v_add_u32 v%d, s%d, v3", AV, S_TMP + 1)
        a("v_and_b32 v3, 7, v8")
        a("v_add_u32 v4, 1, v3")
        a("s_or_b32 s%d, s%d, s%d", S_TMP, S_TB, SU)
        a("s_cmp_eq_u32 s%d, 0", S_TMP)
        a("s_cselect_b32 s%d, 8, 0", S_TMP)
        a("v_cmp_gt_u32 vcc, 8, v8")
        a("v_mov_b32 v21, s%d", S_TMP)
        a("s_mov_b64 s[56:57], vcc")
        a("v_cndmask_b32 v21, 0, v21, vcc")
        a("v_max_u32 v4, v4, v21")
        a("v_add_u32 v3, 8, v3")
        a("v_sub_u32 v3, v3, v4")
        a("v_lshlrev_b32 v21, 2, v5")
        a("v_sub_u32 v21, v21, v4")
        a("v_mov_b32 v22, 0xf149f2ca")
        for r in range(4):
            a("v_add_u32 v23, %d, v21", r)
            a("v_cmp_ge_u32 vcc, v3, v23")
            a("s_nop 1")
            a("v_cndmask_b32 v%d, v22, 0, vcc", AM + r)
        a("s_lshl_b32 s%d, s%d, 7", S_TMP, S_TB)
        a("s_lshl_b32 s%d, s%d, 5", S_TMP + 1, SU)
        a("s_add_u32 s%d, s%d, s%d", S_TMP, S_TMP, S_TMP + 1)
        a("s_lshl_b32 s%d, s%d, 11", S_TMP, S_TMP)
        a("s_lshl_b32 s%d, s%d, 7", S_TMP + 1, S_TA)
        a("s_add_u32 s%d, s%d, s%d", S_TMP, S_TMP, S_TMP + 1)
        a("s_lshl_b32 s%d, s%d, 6", S_TMP + 1, SHD)
        a("s_add_u32 s%d, s%d, s%d", S_TMP, S_TMP, S_TMP + 1)
        a("v_lshlrev_b32 v%d, 12, v8", AO)
        a("v_lshl_add_u32 v%d, v5, 4, v%d", AO, AO)
        a("v_add_u32 v%d, s%d, v%d", AO, S_TMP, AO)
        a("s_mov_b32 s58, 0x%x", f32(32 ** -0.5))
        a("s_mov_b32 s59, 0x%x", f32(math.log2(math.e)))

    if OPT.get("ldprio"): a("s_setprio %d", OPT["ldprio"])
    a("s_sub_u32 s%d, s%d, 4", S_W, S_W)
    XO = Op("kc", 128, 2048)
    loader_voffs(a, XO, S_TB, 16)
    for p in range(3):
        loader_voffs(a, PW, S_TA, 10 + 2 * p, extra_cols=1024 * p)
    a("v_lshrrev_b32 v3, 3, v2")
    a("s_lshl_b32 s%d, s%d, 2", S_TMP, S_W)
    a("v_add_u32 v3, s%d, v3", S_TMP)
    a("v_lshrrev_b32 v4, 1, v3")
    a("v_xor_b32 v4, v4, v2")
    a("v_and_b32 v4, 7, v4")
    a("s_lshl_b32 s%d, s%d, 7", S_TMP, S_TB)
    a("s_sub_u32 s%d, s%d, 16", S_TMP, S_TMP)
    a("v_add_u32 v3, s%d, v3", S_TMP)
    a("v_max_i32 v3, 0, v3")
    a("v_lshlrev_b32 v3, 11, v3")
    a("v_lshl_add_u32 v20, v4, 4, v3")
    a("s_mul_i32 s%d, s%d, 2048", S_LA, S_W)
    a("s_mul_i32 s%d, s%d, 4096", S_LB, S_W)
    a("s_add_u32 s%d, s%d, %d", S_LB, S_LB, XB + 2048)
    a("s_mul_i32 s%d, s%d, 512", S_TMP + 6, S_W)
    a("s_add_u32 s%d, s%d, %d", S_TMP + 6, S_TMP + 6, XB)
    a("s_waitcnt lgkmcnt(0)")
    srd(a, 8, 30, 0, 1024 * 3072 * 2)
    srd(a, 56, 4, WS["CS"], CS_BYTES)
    ws_adjust(a)
    sel_ptr(a, 12, 1, WS["X2"])
    def issue(part):
        kidx_offsets(a, W, PW.kadv, 128, wrap=16)
        a("s_add_u32 s%d, s%d, s%d", S_M0A, S_SLOT, S_LA)
        a("s_add_u32 s%d, s%d, s%d", S_M0B, S_SLOT, S_LB)
        for i in range(4 if part != "W" else 0):
            a("s_add_u32 m0, s%d, %d", S_M0B, i * 1024)
            a("s_nop 0")
            a("buffer_load_dwordx4 v%d, s[12:15], s%d offen%s lds", 16 + i, S_OFB, ASC())
        for p in range(3 if part != "A" else 0):
            for i in range(2):
                a("s_add_u32 m0, s%d, %d", S_M0A, p * 8192 + i * 1024)
                a("s_nop 0")
                a("buffer_load_dwordx4 v%d, s[8:11], s%d offen%s lds", 10 + 2 * p + i, S_OFA, WSC())
        if part == "W": return
        a("s_add_u32 m0, s%d, s%d", S_SLOT, S_TMP + 6)
        a("s_mov_b32 exec_hi, 0")
        a("buffer_load_dwordx4 v20, s[12:15], s%d offen%s lds", S_OFB, ASC())
        a("s_mov_b32 exec_hi, -1")
    srd(a, 20, 4, WS["ST"], ST_BYTES)
    srd(a, 60, 16, 0, 256)
    a("s_sub_u32 s%d, s%d, s%d", S_TMP, S_SIG, S_J)
    a("s_and_b32 s%d, s%d, %d", S_TMP, S_TMP, W - 1)
    a("s_and_b32 s%d, s%d, %d", S_TMP + 1, S_SIG, 15 & ~KG & ~(W - 1))
    a("s_or_b32 s%d, s%d, s%d", S_TMP, S_TMP, S_TMP + 1)
    a("s_add_u32 s%d, s%d, %d", S_H1, S_TMP, S - 1)
    a("s_cmp_eq_u32 s%d, 0", S_DIST)
    a("s_cselect_b32 s%d, 0x7fff, s%d", S_H1, S_H1)
    a("s_add_u32 s%d, s%d, %d", S_H2, S_H1, S)
    a("s_cmp_lg_u32 s%d, 0", S_W)
    a("s_cselect_b32 s%d, 0x7fff, s%d", S_H2, S_H2)
    a("s_cmp_lt_u32 s%d, 0x7fff", S_H2)
    a("s_cselect_b32 s%d, %d, 0x7fff", S_H3, N - 4)
    a("s_add_u32 s%d, s%d, 1", S_H4, S_H3)
    a("s_mov_b32 s%d, %d", S_H5, N - 2)
    def slice_stats():
        SL = S_TMP + 4
        a("s_add_u32 s%d, s%d, %d", SL, S_SLOT, stage)
        a("s_cmp_eq_u32 s%d, %d", SL, S * stage)
        a("s_cselect_b32 s%d, 0, s%d", SL, SL)
        for i in range(3):
            a("s_mul_i32 s%d, s%d, 3", S_TMP + 2, S_W)
            a("s_add_u32 s%d, s%d, %d", S_TMP + 2, S_TMP + 2, i)
            a("s_lshr_b32 s%d, s%d, 2", S_TMP + 3, S_TMP + 2)
            a("s_lshl_b32 s%d, s%d, 13", S_TMP + 3, S_TMP + 3)
            a("s_add_u32 s%d, s%d, s%d", S_TMP + 3, S_TMP + 3, SL)
            a("s_and_b32 s%d, s%d, 3", S_TMP + 2, S_TMP + 2)
            read_addr_km(a, 64, S_TMP + 3, S_TMP + 2, 0, 21)
            for ks in range(2):
                for r in frag_reads("km", 64, [21], 0, ks, 24 + 8 * i + 4 * ks): a(r)
        a("s_lshr_b32 s%d, s%d, 7", S_TMP + 2, SL)
        a("s_lshl_b32 s%d, s%d, 5", S_TMP + 3, S_W)
        a("s_add_u32 s%d, s%d, s%d", S_TMP + 2, S_TMP + 2, S_TMP + 3)
        a("s_add_u32 s%d, s%d, 16", S_TMP + 2, S_TMP + 2)
        read_addrs_kc(a, XB, S_TMP + 2, 22)
        for i in range(2):
            for ks in range(2):
                for r in frag_reads("kc", 0, [22, 23], i, ks, 48 + 8 * i + 4 * ks): a(r)
        for r in range(4): a("v_mov_b32 v%d, 0x3f803f80", 64 + r)
        a("s_mul_i32 s%d, s%d, 12288", S_TMP + 2, S_SIG)
        a("s_lshl_b32 s%d, s%d, 8", S_TMP + 3, S_TA)
        a("s_add_u32 s%d, s%d, s%d", S_TMP + 2, S_TMP + 2, S_TMP + 3)
        a("v_lshl_add_u32 v21, v5, 4, s%d", S_TMP + 2)
        a("s_lshl_b32 s%d, s%d, 14", S_TMP + 2, S_SIG)
        a("s_lshl_b32 s%d, s%d, 10", S_TMP + 3, S_TB)
        a("s_add_u32 s%d, s%d, s%d", S_TMP + 2, S_TMP + 2, S_TMP + 3)
        a("s_lshl_b32 s%d, s%d, 8", S_TMP + 3, S_W)
        a("s_add_u32 s%d, s%d, s%d", S_TMP + 2, S_TMP + 2, S_TMP + 3)
        a("v_lshl_add_u32 v22, v8, 3, s%d", S_TMP + 2)
        a("s_waitcnt lgkmcnt(0)")
        mm = lambda d, x, y, first: a("v_mfma_f32_16x16x32_bf16 v[%d:%d], v[%d:%d], v[%d:%d], %s", d, d + 3, x, x + 3, y, y + 3,
                                      "0" if first else "v[%d:%d]" % (d, d + 3))
        for ks in range(2):
            for i in range(3): mm(68 + 4 * i, 24 + 8 * i + 4 * ks, 64, ks == 0)
            for i in range(2):
                mm(80 + 8 * i, 64, 48 + 8 * i + 4 * ks, ks == 0)
                mm(84 + 8 * i, 48 + 8 * i + 4 * ks, 48 + 8 * i + 4 * ks, ks == 0)
        a("v_cmp_eq_u32 s[%d:%d], 1, v7", S_TMP, S_TMP + 1)
        a("v_cmp_eq_u32 s[%d:%d], 2, v7", S_TMP + 2, S_TMP + 3)
        a("v_cmp_eq_u32 vcc, 3, v7")
        a("s_nop 7")
        for i in range(2):
            a("v_cndmask_b32 v%d, v%d, v%d, s[%d:%d]", 81 + 8 * i, 84 + 8 * i, 85 + 8 * i, S_TMP, S_TMP + 1)
            a("v_cndmask_b32 v%d, v%d, v%d, s[%d:%d]", 81 + 8 * i, 81 + 8 * i, 86 + 8 * i, S_TMP + 2, S_TMP + 3)
            a("v_cndmask_b32 v%d, v%d, v%d, vcc", 81 + 8 * i, 81 + 8 * i, 87 + 8 * i)
        a("s_mov_b32 exec_lo, 0x00f0000f")
        a("s_mov_b32 exec_hi, 0xf0000f00")
        for i in range(2):
            a("buffer_store_dwordx2 v[%d:%d], v22, s[20:23], 0 offen offset:%d sc1", 80 + 8 * i, 81 + 8 * i, 128 * i)
        a("s_mov_b32 exec_lo, 0x00010001")
        a("s_mov_b32 exec_hi, 0x00010001")
        for i in range(3):
            a("s_mul_i32 s%d, s%d, 3", S_TMP + 2, S_W)
            a("s_add_u32 s%d, s%d, %d", S_TMP + 2, S_TMP + 2, i)
            a("s_lshr_b32 s%d, s%d, 2", S_TMP + 3, S_TMP + 2)
            a("s_lshl_b32 s%d, s%d, 12", S_TMP + 3, S_TMP + 3)
            a("s_and_b32 s%d, s%d, 3", S_TMP + 2, S_TMP + 2)
            a("s_lshl_b32 s%d, s%d, 6", S_TMP + 2, S_TMP + 2)
            a("s_add_u32 s%d, s%d, s%d", S_TMP + 2, S_TMP + 2, S_TMP + 3)
            a("buffer_store_dwordx4 v[%d:%d], v21, s[56:59], s%d offen sc1", 68 + 4 * i, 71 + 4 * i, S_TMP + 2)
        a("s_mov_b64 exec, -1")
        a("s_cmp_lg_u32 s%d, 0", S_W)
        a("s_cbranch_scc1 %s_nocr", name)
        a("s_lshl_b32 s%d, s2, 10", S_TMP)
        a("v_lshl_add_u32 v21, v2, 4, s%d", S_TMP)
        for r in range(4): a("v_mov_b32 v%d, 0", 24 + r)
        for area in (0, LOFF):
            srd(a, 84, 4, WS["CNT"] + area, CNT_BYTES)
            a("buffer_store_dwordx4 v[24:27], v21, s[84:87], 0 offen sc1")
        a.label(name + "_nocr")
    def arrive():
        a("v_mov_b32 v21, 0")
        a("v_mov_b32 v22, 1")
        a("s_mov_b64 exec, 1")
        a("buffer_atomic_add v22, v21, s[60:63], 0 offen sc1")
        a("s_mov_b64 exec, -1")
    def poll_issue():
        a("v_mov_b32 v21, 0")
        a("buffer_load_dword v23, v21, s[60:63], 0 offen sc1")
    def poll_check():
        a("s_mov_b32 s%d, 0x40000", S_TMP + 1)
        a("v_mov_b32 v21, 0")
        a("s_waitcnt vmcnt(11)")
        a.label(name + "_poll")
        a("v_readfirstlane_b32 s%d, v23", S_TMP)
        a("s_sub_u32 s%d, s%d, 1", S_TMP + 1, S_TMP + 1)
        a("s_cmp_eq_u32 s%d, 0", S_TMP + 1)
        a("s_cbranch_scc1 %s_polled", name)
        a("s_cmp_ge_u32 s%d, 256", S_TMP)
        a("s_cbranch_scc1 %s_polled", name)
        a("s_sleep 8")
        a("buffer_load_dword v23, v21, s[60:63], 0 offen sc1")
        a("s_waitcnt vmcnt(0)")
        a("s_branch %s_poll", name)
        a.label(name + "_polled")
    def st_loads():
        a("s_lshl_b32 s%d, s%d, 6", S_TMP, S_W)
        a("v_add_u32 v21, s%d, v2", S_TMP)
        a("s_lshl_b32 s%d, s%d, 7", S_TMP + 1, S_TB)
        a("s_sub_u32 s%d, s%d, 16", S_TMP + 1, S_TMP + 1)
        a("v_add_u32 v3, s%d, v21", S_TMP + 1)
        a("v_max_i32 v3, 0, v3")
        a("v_min_u32 v3, 2047, v3")
        a("v_lshlrev_b32 v3, 3, v3")
        a("s_min_u32 s%d, s%d, 2", S_TMP, S_W)
        a("s_lshl_b32 s%d, s%d, 12", S_TMP, S_TMP)
        a("s_lshl_b32 s%d, s%d, 8", S_TMP + 1, S_TA)
        a("s_add_u32 s%d, s%d, s%d", S_TMP, S_TMP, S_TMP + 1)
        a("v_lshl_add_u32 v4, v2, 2, s%d", S_TMP)
        for k in range(16):
            a("s_mov_b32 s%d, %d", S_TMP, k * 16384)
            a("buffer_load_dwordx2 v[%d:%d], v3, s[20:23], s%d offen sc1", 24 + 2 * k, 25 + 2 * k, S_TMP)
            a("s_mov_b32 s%d, %d", S_TMP + 1, k * 3072 * 4)
            a("buffer_load_dword v%d, v4, s[56:59], s%d offen sc1", 56 + k, S_TMP + 1)
    def st_use():
        for st in (8, 4, 2, 1):
            for k in range(st):
                a("v_pk_add_f32 v[%d:%d], v[%d:%d], v[%d:%d]", 24 + 2 * k, 25 + 2 * k, 24 + 2 * k, 25 + 2 * k, 24 + 2 * (k + st), 25 + 2 * (k + st))
                a("v_add_f32 v%d, v%d, v%d", 56 + k, 56 + k, 56 + k + st)
        a("v_mul_f32 v24, 0x%x, v24", f32(1.0 / 1024))
        a("v_mul_f32 v25, 0x%x, v25", f32(1.0 / 1024))
        a("v_fma_f32 v25, -v24, v24, v25")
        a("v_max_f32 v25, 0, v25")
        round_bf16_scalar(a, 24)
        round_bf16_scalar(a, 25)
        a("v_add_f32 v25, 0x%x, v25", f32(1e-5))
        round_bf16_scalar(a, 25)
        a("v_sqrt_f32 v25, v25")
        a("s_nop 0")
        round_bf16_scalar(a, 25)
        a("v_rcp_f32 v26, v25")
        a("v_lshlrev_b32 v3, 3, v21")
        a("v_lshlrev_b32 v4, 2, v21")
        a("v_mul_f32 v27, -v24, v26")
        a("v_cmp_gt_u32 vcc, 144, v21")
        a("s_and_saveexec_b64 s[%d:%d], vcc", S_TMP, S_TMP + 1)
        a("v_add_u32 v3, %d, v3", LST)
        a("ds_write_b64 v3, v[26:27]")
        a("s_mov_b64 exec, s[%d:%d]", S_TMP, S_TMP + 1)
        a("v_cmp_gt_u32 vcc, 192, v21")
        a("s_and_saveexec_b64 s[%d:%d], vcc", S_TMP, S_TMP + 1)
        a("v_add_u32 v4, %d, v4", LCS)
        a("ds_write_b32 v4, v56")
        a("s_mov_b64 exec, s[%d:%d]", S_TMP, S_TMP + 1)
        a("s_waitcnt lgkmcnt(0)")
    def tail():
        a("s_waitcnt vmcnt(43)")
        a("s_barrier")
        a("s_waitcnt vmcnt(0)")
        st_use()
        a("s_barrier")
        srd(a, 20, 4, WS["EX"], ST_BYTES)
        a("s_lshl_b32 s%d, s%d, 4", S_TMP, S_TA)
        a("s_add_u32 s%d, s%d, s%d", S_TMP, S_TMP, S_TB)
        a("s_lshl_b32 s%d, s%d, 10", S_TMP, S_TMP)
        a("s_lshl_b32 s%d, s%d, 8", S_TMP + 1, S_W)
        a("s_add_u32 s%d, s%d, s%d", S_TMP, S_TMP, S_TMP + 1)
        a("v_lshlrev_b32 v3, 2, v2")
        a("v_mov_b32 v4, -1")
        a("buffer_store_dword v4, v3, s[20:23], s%d offen sc1", S_TMP)
        a("s_cmp_eq_u32 s%d, 0", S_DIST)
        a("s_cbranch_scc1 %s_nopf", name)
        srd(a, 20, 18, 0, 1024 * 1024 * 2)
        a("s_lshl_b32 s%d, s2, 13", S_TMP)
        a("s_lshl_b32 s%d, s%d, 11", S_TMP + 1, S_W)
        a("s_add_u32 s%d, s%d, s%d", S_TMP, S_TMP, S_TMP + 1)
        a("v_lshlrev_b32 v3, 4, v2")
        a("buffer_load_dwordx4 v[120:123], v3, s[20:23], s%d offen", S_TMP)
        a("buffer_load_dwordx4 v[120:123], v3, s[20:23], s%d offen offset:1024", S_TMP)
        a.label(name + "_nopf")
    def dep(pre):
        a("s_cmp_eq_u32 s%d, 0", S_LAYER)
        if pre == "rest" and not OPT.get("two", 1): return
        a("s_cbranch_scc1 %s_dep_%s", name, "rok" if pre == "rest" else "pre" if pre == "pre" else "ok")
        if late_y("g4") and pre is None: a("s_barrier")
        g1_slots(a)
        wait_counters(a, name + "_dep", 16, 16, pre, (2, 2))
    loader_loop(a, name, issue, 6, 5, N, S, stage, tail=tail, dep=None if prev_cut(name) else dep,
                events=[(S_H1, 5, slice_stats), (S_H2, 1, arrive), (S_H3, 1, poll_issue), (S_H4, 0, poll_check), (S_H5, 32, st_loads)])
    a("s_add_u32 s%d, s%d, 4", S_W, S_W)
    attn_setup()
    a("s_branch %s_attn", name)

    a.label(name + "_compute")
    na, nb = 6, 5
    ACC = 24
    acc = lambda i, j: ACC + 4 * (i * 4 + j) if j < 4 else ACC + 96 + 4 * (i - 4)
    nacc = 104
    FR = ACC + nacc
    fset = (na + nb) * 4
    fA = lambda st, i: FR + st * fset + 4 * i
    fB = lambda st, j: FR + st * fset + 4 * na + 4 * j
    VTOP = FR + 2 * fset
    SHD, SSH = S_TMP + 4, S_TMP + 5
    a("s_and_b32 s%d, s%d, 1", SHD, S_W)
    a("s_lshr_b32 s%d, s%d, 1", SSH, S_W)
    AR = 10
    def part_of(c, unit):
        if c == 0:
            a("s_mov_b32 s%d, 0", S_TMP + 3)
        else:
            a("s_xor_b32 s%d, s%d, %d", S_TMP + 3, SSH, 1 if c == 1 else 0)
            a("s_add_u32 s%d, s%d, 1", S_TMP + 3, S_TMP + 3)
            a("s_mul_i32 s%d, s%d, %d", S_TMP + 3, S_TMP + 3, unit)
    a("s_lshl_b32 s%d, s%d, 1", S_TMP + 2, SHD)
    for c in range(3):
        part_of(c, 8192)
        for i in range(2):
            read_addr_km(a, 64, S_TMP + 3, S_TMP + 2, i, AR + 2 * c + i)
    adA = [AR + i for i in range(6)]
    a("s_mul_i32 s%d, s%d, 64", S_TMP + 2, SSH)
    a("s_add_u32 s%d, s%d, 16", S_TMP + 2, S_TMP + 2)
    read_addrs_kc(a, XB, S_TMP + 2, AR + 6)
    read_addrs_kc(a, XB, None, AR + 8)
    adB, adH = [AR + 6, AR + 7], [AR + 8, AR + 9]
    for r in range(nacc): a("v_mov_b32 v%d, 0", ACC + r)
    for r in range(0 if OPT.get("skip0", 1) else fset): a("v_mov_b32 v%d, 0", FR + fset + r)
    compute_loop_ctl_init(a, N, S, stage)
    if OPT.get("cprio"): a("s_setprio %d", OPT["cprio"])
    a("s_waitcnt lgkmcnt(0)")
    stamp(a, 1)
    ws_adjust(a)
    a("v_lshlrev_b32 v3, 3, v8")
    a("v_add_u32 v%d, %d, v3", EA + 1, LST)
    a("s_mul_i32 s%d, s%d, 512", S_TMP, SSH)
    a("s_add_u32 s%d, s%d, %d", S_TMP, S_TMP, LST + 128)
    a("v_add_u32 v%d, s%d, v3", EA, S_TMP)
    a("s_lshl_b32 s%d, s%d, 7", S_TMP, SHD)
    a("s_add_u32 s%d, s%d, %d", S_TMP, S_TMP, LCS)
    a("v_lshl_add_u32 v3, v5, 4, s%d", S_TMP)
    for c in range(3):
        part_of(c, 256)
        a("v_add_u32 v%d, s%d, v3", EA + 2 + c, S_TMP + 3)
    a("v_and_b32 v3, 1, v5")
    a("v_lshlrev_b32 v3, 1, v3")
    a("v_lshrrev_b32 v4, 1, v5")
    a("v_add_u32 v3, v3, v4")
    a("s_lshl_b32 s%d, s%d, 2", S_TMP, SHD)
    a("v_add_u32 v3, s%d, v3", S_TMP)
    a("v_lshrrev_b32 v4, 1, v8")
    a("v_xor_b32 v3, v3, v4")
    a("v_lshlrev_b32 v3, 4, v3")
    a("v_lshl_add_u32 v3, v8, 7, v3")
    a("s_mul_i32 s%d, s%d, %d", S_TMP + 2, SSH, 64 * 128)
    a("s_add_u32 s%d, s%d, %d", S_TMP + 2, S_TMP + 2, E + 16 * 128)
    for c in range(3):
        part_of(c, REG)
        a("s_add_u32 s%d, s%d, s%d", S_TMP, S_TMP + 2, S_TMP + 3)
        a("v_add_u32 v%d, s%d, v3", EA + 5 + c, S_TMP)
    a("s_add_u32 s%d, s%d, %d", S_TMP, S_TMP + 3, E)
    a("v_add_u32 v%d, s%d, v3", EA + 8, S_TMP)
    attn_setup()
    G1ORD = [(i, j if i % 2 == 0 else 3 - j) for i in range(4) for j in range(4)] + [(4, j) for j in range(5)] + [(5, 4 - j) for j in range(5)]
    if OPT.get("snake", 1) == 2:
        G1ORD = [(4, 4), (5, 4)] + [(5 - i if j % 2 == 0 else i, j) for j in range(4) for i in range(6)]
    if not OPT.get("snake", 1): G1ORD = [(i, j) for i in range(6) for j in range(4)] + [(4, 4), (5, 4)]
    def mf(st):
        L = G1ORD
        return ["v_mfma_f32_16x16x32_bf16 v[%d:%d], v[%d:%d], v[%d:%d], v[%d:%d]" %
                (acc(i, j), acc(i, j) + 3, fA(st, i), fA(st, i) + 3, fB(st, j), fB(st, j) + 3, acc(i, j), acc(i, j) + 3)
                for (i, j) in L]
    def rd(st, ks):
        L = []
        L += frag_reads("km", 64, adA, 0, ks, fA(st, 0))
        for j in range(4): L += frag_reads("kc", 0, adB, j, ks, fB(st, j))
        for i in range(1, 6): L += frag_reads("km", 64, adA, i, ks, fA(st, i))
        L += frag_reads("kc", 0, adH, 0, ks, fB(st, 4))
        return L
    SB = FR
    TV = SB + 36
    pr = lambda r: "v[%d:%d]" % (r, r + 1)
    def g1_final():
        for j in range(4): a("ds_read_b64 v[%d:%d], v%d offset:%d", SB + 2 * j, SB + 2 * j + 1, EA, j * 128)
        a("ds_read_b64 v[%d:%d], v%d", SB + 8, SB + 9, EA + 1)
        for c in range(3):
            for i in range(2):
                a("ds_read_b128 v[%d:%d], v%d offset:%d", SB + 12 + 4 * (2 * c + i), SB + 15 + 4 * (2 * c + i), EA + 2 + c, i * 64)
        M = dict(zip(G1ORD, mf(1)))
        units = []
        for c in range(3):
            for j in range(5 if c == 2 else 4):
                c0_, c1_ = acc(2 * c, j), acc(2 * c + 1, j)
                d = ED + 4 * (len(units) & 3)
                prs = [(c0_, SB + 12 + 8 * c), (c0_ + 2, SB + 14 + 8 * c), (c1_, SB + 16 + 8 * c), (c1_ + 2, SB + 18 + 8 * c)]
                w = ["v_pk_mul_f32 %s, %s, %s op_sel:[0,1] op_sel_hi:[1,1]" % (pr(TV + 2 * q), pr(cs), pr(SB + 2 * j)) for q, (x, cs) in enumerate(prs)]
                w += ["v_pk_fma_f32 %s, %s, %s, %s op_sel:[0,0,0] op_sel_hi:[1,0,1]" % (pr(x), pr(x), pr(SB + 2 * j), pr(TV + 2 * q)) for q, (x, cs) in enumerate(prs)]
                w += ["v_cvt_pk_bf16_f32 v%d, v%d, v%d" % (d + q, x, x + 1) for q, (x, cs) in enumerate(prs)]
                w += ["s_nop 1", "v_permlane16_swap_b32 v%d, v%d" % (d, d + 2), "v_permlane16_swap_b32 v%d, v%d" % (d + 1, d + 3)]
                w += ["ds_write_b128 v%d, v[%d:%d] offset:%d" % (EA + 5 + c, d, d + 3, j * 2048) if j < 4 else "ds_write_b128 v%d, v[%d:%d]" % (EA + 8, d, d + 3)]
                units.append(([M[(2 * c, j)], M[(2 * c + 1, j)]], w))
        overlap_final(a, units, after_lead=lambda: a("s_waitcnt lgkmcnt(0)"))
        a("s_waitcnt lgkmcnt(0)")
    cloop(a, name, mf, rd, adA + adB + adH, S, stage, final=g1_final)

    a.label(name + "_attn")
    a("s_barrier")
    stamp(a, 5)
    if OPT.get("stamp"): a("s_waitcnt lgkmcnt(0)")
    def blk(p): return 24 + 48 * p
    for p in range(2):
        b = blk(p)
        a("ds_read_b128 v[%d:%d], v226 offset:%d", b, b + 3, 2048 + 128 * p)
        a("ds_read_b128 v[%d:%d], v226 offset:%d", b + 4, b + 7, REG + 128 * p)
        a("ds_read_b128 v[%d:%d], v226 offset:%d", b + 8, b + 11, REG + 2048 + 128 * p)
    for p in range(2):
        b = blk(p)
        for dt in range(2):
            for bb in range(2):
                d = b + 12 + 4 * dt + 2 * bb
                a("ds_read_b64_tr_b16 v[%d:%d], v227 offset:%d", d, d + 1, 128 * p + 2048 * bb + 8 * dt)
    a("s_waitcnt lgkmcnt(8)")
    for p in range(2):
        b = blk(p)
        a("v_mfma_f32_16x16x32_bf16 v[%d:%d], v[%d:%d], v[%d:%d], 0", b + 20, b + 23, b + 4, b + 7, b, b + 3)
        a("v_mfma_f32_16x16x32_bf16 v[%d:%d], v[%d:%d], v[%d:%d], 0", b + 24, b + 27, b + 8, b + 11, b, b + 3)
    a("s_nop 7")
    both = lambda f: [f(blk(p)) for p in range(2)]
    for p in range(2):
        b = blk(p)
        for r in range(4):
            a("v_cndmask_b32 v%d, v%d, v%d, s[56:57]", b + 20 + r, b + 24 + r, b + 20 + r)
    for p in range(2):
        b = blk(p)
        a("v_cvt_pk_bf16_f32 v%d, v%d, v%d", b + 24, b + 20, b + 21)
        a("v_cvt_pk_bf16_f32 v%d, v%d, v%d", b + 25, b + 22, b + 23)
    for p in range(2):
        b = blk(p)
        for q in range(2):
            a("v_lshlrev_b32 v%d, 16, v%d", b + 20 + 2 * q, b + 24 + q)
            a("v_and_b32 v%d, 0xffff0000, v%d", b + 21 + 2 * q, b + 24 + q)
    for p in range(2):
        b = blk(p)
        for r in range(4): a("v_mul_f32 v%d, s58, v%d", b + 20 + r, b + 20 + r)
    for p in range(2):
        b = blk(p)
        a("v_cvt_pk_bf16_f32 v%d, v%d, v%d", b + 24, b + 20, b + 21)
        a("v_cvt_pk_bf16_f32 v%d, v%d, v%d", b + 25, b + 22, b + 23)
    for p in range(2):
        b = blk(p)
        for q in range(2):
            a("v_lshlrev_b32 v%d, 16, v%d", b + 20 + 2 * q, b + 24 + q)
            a("v_and_b32 v%d, 0xffff0000, v%d", b + 21 + 2 * q, b + 24 + q)
    for p in range(2):
        b = blk(p)
        for r in range(4): a("v_fma_f32 v%d, v%d, s59, v%d", b + 20 + r, b + 20 + r, AM + r)
    for p in range(2):
        b = blk(p)
        a("v_max3_f32 v%d, v%d, v%d, v%d", b + 24, b + 20, b + 21, b + 22)
    for p in range(2):
        b = blk(p)
        a("v_max_f32 v%d, v%d, v%d", b + 24, b + 24, b + 23)
    def xreduce(op, off):
        for sw in ("v_permlane16_swap_b32", "v_permlane32_swap_b32"):
            for p in range(2):
                b = blk(p)
                a("v_mov_b32 v%d, v%d", b + off + 1, b + off)
            a("s_nop 1")
            for p in range(2):
                b = blk(p)
                a("%s v%d, v%d", sw, b + off, b + off + 1)
            a("s_nop 0")
            for p in range(2):
                b = blk(p)
                a("%s v%d, v%d, v%d", op, b + off, b + off, b + off + 1)
    xreduce("v_max_f32", 24)
    for p in range(2):
        b = blk(p)
        for r in range(4): a("v_sub_f32 v%d, v%d, v%d", b + 20 + r, b + 20 + r, b + 24)
    for p in range(2):
        b = blk(p)
        for r in range(4): a("v_exp_f32 v%d, v%d", b + 20 + r, b + 20 + r)
    for p in range(2):
        b = blk(p)
        a("v_add_f32 v%d, v%d, v%d", b + 24, b + 20, b + 21)
        a("v_add_f32 v%d, v%d, v%d", b + 25, b + 22, b + 23)
    for p in range(2):
        b = blk(p)
        a("v_add_f32 v%d, v%d, v%d", b + 24, b + 24, b + 25)
    xreduce("v_add_f32", 24)
    for p in range(2):
        b = blk(p)
        a("v_rcp_f32 v%d, v%d", b + 24, b + 24)
    a("s_nop 0")
    for p in range(2):
        b = blk(p)
        for r in range(4): a("v_mul_f32 v%d, v%d, v%d", b + 20 + r, b + 20 + r, b + 24)
    for p in range(2):
        b = blk(p)
        a("v_cvt_pk_bf16_f32 v%d, v%d, v%d", b + 24, b + 20, b + 21)
        a("v_cvt_pk_bf16_f32 v%d, v%d, v%d", b + 25, b + 22, b + 23)
    for p in range(2):
        b = blk(p)
        a("v_cndmask_b32 v%d, 0, v%d, s[56:57]", b + 28, b + 24)
        a("v_cndmask_b32 v%d, 0, v%d, s[56:57]", b + 29, b + 25)
        a("v_cndmask_b32 v%d, v%d, 0, s[56:57]", b + 30, b + 24)
        a("v_cndmask_b32 v%d, v%d, 0, s[56:57]", b + 31, b + 25)
    a("s_waitcnt lgkmcnt(0)")
    a("s_nop 0")
    for p in range(2):
        b = blk(p)
        for dt in range(2):
            a("v_mfma_f32_16x16x32_bf16 v[%d:%d], v[%d:%d], v[%d:%d], 0", b + 32 + 4 * dt, b + 35 + 4 * dt,
              b + 12 + 4 * dt, b + 15 + 4 * dt, b + 28, b + 31)
    a("s_nop 7")
    for p in range(2):
        b = blk(p)
        for q in range(4):
            a("v_cvt_pk_bf16_f32 v%d, v%d, v%d", b + 40 + q, b + 32 + 2 * q, b + 33 + 2 * q)
        a("buffer_store_dwordx4 v[%d:%d], v225, s[16:19], 0 offen offset:%d%s", b + 40, b + 43, 2048 * p, STF())
    stamp(a, 6)
    stamp_flush(a, name, 7)
    if not next_cut(name):
        finish(a, name, lambda a: (a("s_add_u32 s%d, s%d, %d", S_TMP, S_TB, C12), a("s_lshl_b32 s%d, s%d, 12", S_TMP, S_TMP),
                                   a("s_mov_b32 s%d, s%d", S_TMP + 1, S_TA)))
    a.label(name + "_done")
    a("s_endpgm")
    assert VTOP == 216
    GEMM_VTOP[name] = ED + 16
    return LCS + 768

def build():
    body = Asm()
    for c in str(OPT.get("cuts", "")).split("_"):
        if c: CUTS.add(c)
    def wm(a, ka, da, kb, db):
        a("s_cmp_eq_u32 s%d, 0", S_LAYER)
        a("s_cselect_b32 s%d, %d, %d", S_WM, OPT.get(ka, da) - 1, OPT.get(kb, db) - 1)
    def rslot(a, sreg, base):
        slot(a, sreg, base)
        a("s_lshl_b32 s%d, s%d, 7", S_TMP + 1, S_TA)
        a("s_add_u32 s%d, s%d, s%d", S_TMP, S_TMP, S_TMP + 1)
        a("s_mov_b32 s%d, s%d", S_TMP + 2, S_TMP)
    def slot(a, sreg, base, shift=0):
        a("s_lshr_b32 s%d, s%d, %d", S_TMP, sreg, shift)
        a("s_add_u32 s%d, s%d, %d", S_TMP, S_TMP, base)
        a("s_lshl_b32 s%d, s%d, 12", S_TMP, S_TMP)
        a("s_mov_b32 s%d, s%d", S_TMP + 2, S_TMP)
    lds = {}
    later = []
    later.append(lambda: lds.__setitem__("g1", gen_g1(body, "g1", W=OPT.get("W1", 2))))

    def g2_ptrs(a, ph):
        if ph == 0:
            a("s_load_dwordx2 s[4:5], s[0:1], %d", ARG["ws"])
            a("s_load_dwordx2 s[6:7], s[0:1], %d", ARG["x"])
            a("s_load_dwordx2 s[30:31], s[0:1], %d", ARG["wo"])
        elif ph == "L":
            srd(a, 8, 30, 0, 1024 * 1024 * 2)
            srd(a, 12, 4, WS["O"], ACT_BYTES)
        else:
            sel_ptr(a, 20, 1, WS["X2"])
            srd(a, 16, 4, WS["X1"], ACT_BYTES)
            srd(a, 56, 4, WS["H"], 2048 * LDH)
            srd(a, 60, 4, WS["EX"], ST_BYTES)
    def g2_decode(a):
        a("s_and_b32 s%d, s2, 3", S_TMP)
        a("s_lshl_b32 s%d, s%d, 2", S_TMP, S_TMP)
        a("s_bfe_u32 s%d, s2, 0x20003", S_TMP + 1)
        a("s_add_u32 s%d, s%d, s%d", S_TB, S_TMP, S_TMP + 1)
        a("s_bfe_u32 s%d, s2, 0x10002", S_TMP)
        a("s_lshl_b32 s%d, s%d, 3", S_TMP, S_TMP)
        a("s_lshr_b32 s%d, s2, 5", S_TMP + 2)
        a("s_add_u32 s%d, s%d, s%d", S_TA, S_TMP, S_TMP + 2)
        a("s_add_u32 s%d, s%d, s%d", S_J, S_TMP + 1, S_TMP + 2)
        a("s_mov_b32 s%d, 0", S_KB)
    later.append(lambda: lds.__setitem__("g2", gen_gemm(body, "g2", 256, Op("km", 64, 2048), Op("kc", 128, 2048), 1, 4, 16, OPT.get("S2", 4), OPT.get("W2", 2), g2_ptrs, g2_decode,
                         "resid", "ln2", 2048, cnt=lambda a: (slot(a, S_TA, C23, 1), a("s_and_b32 s%d, s%d, 1", S_TMP + 1, S_TA),
                                                             a("s_lshl_b32 s%d, s%d, 1", S_TMP + 2, S_TB), a("s_add_u32 s%d, s%d, s%d", S_TMP + 1, S_TMP + 1, S_TMP + 2)),
                         dep=lambda a, pre: (rslot(a, S_TB, C12), wait_counters(a, "g2_dep", 16, 16, pre, (4, 0))), lbase=32768 if OPT.get("latey") else 0)))

    def g3_ptrs(a, ph):
        if ph == 0:
            a("s_load_dwordx2 s[4:5], s[0:1], %d", ARG["ws"])
            a("s_load_dwordx2 s[30:31], s[0:1], %d", ARG["w1"])
            a("s_load_dwordx2 s[6:7], s[0:1], %d", ARG["b1"])
        elif ph == "L":
            srd(a, 8, 30, 0, 2048 * 3584 * 2)
            srd(a, 12, 4, WS["H"], 2048 * LDH)
        else:
            srd(a, 20, 6, 0, 3584 * 2)
            srd(a, 16, 4, WS["U"], 1024 * LDU)
    def g3_decode(a):
        a("s_and_b32 s%d, s2, 1", S_TMP)
        a("s_lshl_b32 s%d, s%d, 2", S_TMP, S_TMP)
        a("s_bfe_u32 s%d, s2, 0x20003", S_TMP + 1)
        a("s_add_u32 s%d, s%d, s%d", S_TB, S_TMP, S_TMP + 1)
        a("s_bfe_u32 s%d, s2, 0x20001", S_TMP)
        a("s_mul_i32 s%d, s%d, 7", S_TMP, S_TMP)
        a("s_lshr_b32 s%d, s2, 5", S_TMP + 2)
        a("s_add_u32 s%d, s%d, s%d", S_TA, S_TMP, S_TMP + 2)
        a("s_add_u32 s%d, s%d, s%d", S_J, S_TMP + 1, S_TMP + 2)
        a("s_mov_b32 s%d, 0", S_KB)
        wm(a, "W3a", 4, "W3b", 2)
    def g3_cnt(a):
        a("s_cmp_ge_u32 s%d, 14", S_TA)
        a("s_cselect_b32 s%d, %d, %d", S_TMP, C34 + 1, C34)
        a("s_lshl_b32 s%d, s%d, 1", S_TMP + 1, S_TB)
        a("s_add_u32 s%d, s%d, s%d", S_TMP, S_TMP, S_TMP + 1)
        a("s_lshl_b32 s%d, s%d, 12", S_TMP, S_TMP)
        a("s_sub_u32 s%d, s%d, 14", S_TMP + 1, S_TA)
        a("s_min_u32 s%d, s%d, s%d", S_TMP + 1, S_TMP + 1, S_TA)
    def g3_spare(a):
        a("s_cmp_ge_u32 s2, 256")
        a("s_cbranch_scc1 g3_done")
        a("s_load_dwordx2 s[4:5], s[0:1], %d", ARG["ws"])
        a("s_load_dwordx2 s[6:7], s[0:1], %d", ARG["w1" if OPT.get("pf") == 2 else "w2"])
        a("s_sub_u32 s3, s2, 224")
        a("v_lshrrev_b32 v2, 6, v0")
        a("v_lshlrev_b32 v1, 4, v0")
        for r in range(4): a("v_mov_b32 v%d, -1", 8 + r)
        a("v_readfirstlane_b32 s%d, v2", S_W)
        a("s_lshl_b32 s13, s3, 17")
        if late_y("g2"):
            a("s_cmp_lt_u32 s%d, 4", S_W)
            a("s_cbranch_scc1 g3_spare_y")
            a("s_barrier")
            a.label("g3_spare_y")
        a("s_waitcnt lgkmcnt(0)")
        ws_adjust(a)
        srd(a, 8, 4, WS["PART"], PART_BYTES)
        for k in range(16):
            a("buffer_store_dwordx4 v[8:11], v1, s[8:11], s13 offen sc1")
            a("s_add_u32 s13, s13, 8192")
        if not next_cut("g3"):
            a("s_mov_b32 s%d, %d", S_TMP, CR * 4096)
            a("s_mov_b32 s%d, s3", S_TMP + 1)
            count_in(a, "g3_spare_cin")
        a("s_cmp_lg_u32 s%d, 0", S_LAYER)
        a("s_cbranch_scc1 g3_spare_end")
        if OPT.get("pf", 0) == 2:
            srd(a, 8, 6, 0, 2048 * 3584 * 2)
            a("s_lshl_b32 s3, s3, 16")
            a("s_add_u32 s3, s3, %d", OPT.get("pfrow", 768) * 7168)
            a("s_mov_b32 s12, %d", -(-(2048 - OPT.get("pfrow", 768)) * 7168 // (2 * MB)))
            a.label("g3_spare_loop")
            for k in range(8):
                a("buffer_load_dwordx4 v[4:7], v1, s[8:11], s3 offen")
                a("s_add_u32 s3, s3, 8192")
            a("s_add_u32 s3, s3, %d", 2 * MB - 65536)
            a("s_waitcnt vmcnt(8)")
            a("s_sub_u32 s12, s12, 1")
            a("s_cmp_lg_u32 s12, 0")
            a("s_cbranch_scc1 g3_spare_loop")
            a("s_waitcnt vmcnt(0)")
        elif OPT.get("pf", 0):
            srd(a, 8, 6, 0, 3584 * 2048 * 2)
            a("s_cmp_ge_u32 s3, 16")
            a("s_cselect_b32 s12, %d, 0", (1792 - 1024) * 4096)
            a("s_lshl_b32 s3, s3, 18")
            a("s_add_u32 s3, s3, s12")
            a("s_mov_b32 s12, 4")
            a.label("g3_spare_loop")
            for k in range(8):
                a("buffer_load_dwordx4 v[4:7], v1, s[8:11], s3 offen")
                a("s_add_u32 s3, s3, 8192")
            a("s_waitcnt vmcnt(8)")
            a("s_sub_u32 s12, s12, 1")
            a("s_cmp_lg_u32 s12, 0")
            a("s_cbranch_scc1 g3_spare_loop")
            a("s_waitcnt vmcnt(0)")
        a.label("g3_spare_end")
        if next_cut("g3"): a("s_endpgm")
        else:
            if late_y("g3"):
                a("s_cmp_ge_u32 s%d, 4", S_W)
                a("s_cbranch_scc1 g4_in")
                a("s_barrier")
            go_next(a, "g3")
    later.append(lambda: lds.__setitem__("g3", gen_gemm(body, "g3", 224, Op("km", 128, 7168), Op("km", 128, LDH), 2, 2, 32, 4, "s", g3_ptrs, g3_decode,
                         "biasA", "gelu", LDU, spare=g3_spare, cnt=g3_cnt,
                         dep=lambda a, pre: (rslot(a, S_TB, C23), wait_counters(a, "g3_dep", 32, 32, pre, (4, 0))))))

    def g4_ptrs(a, ph):
        if ph == 0:
            a("s_load_dwordx2 s[4:5], s[0:1], %d", ARG["ws"])
            a("s_load_dwordx2 s[6:7], s[0:1], %d", ARG["out"])
            a("s_load_dwordx2 s[30:31], s[0:1], %d", ARG["w2"])
            a("s_load_dwordx2 s[34:35], s[0:1], %d", ARG["b2"])
        elif ph == "L":
            srd(a, 8, 4, WS["U"], 1024 * LDU)
            srd(a, 12, 30, 0, 3584 * 2048 * 2)
        else:
            srd(a, 20, 4, WS["X1"], ACT_BYTES)
            srd(a, 56, 34, 0, 4096)
            sel_ptr(a, 16, 0, LOFF + WS["X2"])
            srd(a, 60, 4, LOFF + WS["ST"], ST_BYTES)
            srd(a, 84, 4, WS["PART"], PART_BYTES)
    def g4_decode(a):
        a("s_bfe_u32 s%d, s2, 0x10001", S_TMP)
        a("s_lshl_b32 s%d, s%d, 2", S_TMP, S_TMP)
        a("s_bfe_u32 s%d, s2, 0x20003", S_TMP + 1)
        a("s_add_u32 s%d, s%d, s%d", S_TA, S_TMP, S_TMP + 1)
        a("s_bfe_u32 s%d, s2, 0x10002", S_TMP)
        a("s_lshl_b32 s%d, s%d, 3", S_TMP, S_TMP)
        a("s_lshr_b32 s%d, s2, 5", S_TMP + 2)
        a("s_add_u32 s%d, s%d, s%d", S_TB, S_TMP, S_TMP + 2)
        a("s_and_b32 s%d, s2, 1", S_ROLE)
        a("s_add_u32 s%d, s%d, s%d", S_J, S_TMP + 1, S_TMP + 2)
        a("s_lshl_b32 s%d, s%d, 4", S_PAIR, S_TA)
        a("s_add_u32 s%d, s%d, s%d", S_PAIR, S_PAIR, S_TB)
        a("s_mul_i32 s%d, s%d, 28", S_KB, S_ROLE)
        wm(a, "W4a", 4, "W4b", 2)
    def g4_slots(a):
        a("s_lshl_b32 s%d, s%d, 1", S_TMP, S_TA)
        a("s_add_u32 s%d, s%d, s%d", S_TMP, S_TMP, S_ROLE)
        a("s_add_u32 s%d, s%d, %d", S_TMP, S_TMP, C34)
        a("s_lshl_b32 s%d, s%d, 12", S_TMP, S_TMP)
        a("s_lshl_b32 s%d, s%d, 7", S_TMP + 1, S_TB)
        a("s_add_u32 s%d, s%d, s%d", S_TMP, S_TMP, S_TMP + 1)
        a("s_lshl_b32 s%d, s%d, 11", S_TMP + 2, S_ROLE)
        a("s_add_u32 s%d, s%d, s%d", S_TMP + 2, S_TMP + 2, S_TMP + 1)
        a("s_add_u32 s%d, s%d, %d", S_TMP + 2, S_TMP + 2, CR * 4096)
    def g4_dep(a, pre):
        g4_slots(a)
        wait_counters(a, "g4_dep", 14, 32, pre, (2, 0))
    later.append(lambda: lds.__setitem__("g4", gen_gemm(body, "g4", 256, Op("kc", 128, LDU), Op("km", 128, 4096), 2, 2, 28, 4, "s", g4_ptrs, g4_decode,
                         "resid+biasB", "plain", 2048, stats=True, split=True, cnt=lambda a: (slot(a, S_TB, C41), a("s_lshl_b32 s%d, s%d, 1", S_TMP + 1, S_TA),
                                                                                             a("s_add_u32 s%d, s%d, s%d", S_TMP + 1, S_TMP + 1, S_ROLE)), dep=g4_dep, wop="B")))

    DEPS.update(g1=(g1_decode, g1_slots, 16, 16), g2=(g2_decode, lambda a: rslot(a, S_TB, C12), 16, 16),
                g3=(g3_decode, lambda a: rslot(a, S_TB, C23), 32, 32), g4=(g4_decode, g4_slots, 14, 32))
    for f in later: f()

    seq = [(p, ab) for ab in "ab" for p in PHASES]
    launches = []
    for k, (p, ab) in enumerate(seq):
        if k == 0 or prev_cut(p): launches.append([p + ab + "_kernel", 0, 0])
        launches[-1][1] = max(launches[-1][1], GEMM_VTOP[p])
        launches[-1][2] = LFLAG + 256
    body.label("code_end")
    for kn, vt, l in launches: kernel_desc(body, kn, vt, NSGPR)
    head = open("/code/%s.s.ref" % NAME).read().split("; Override launch geometry")[0]
    lines = ["; @launch kernel=%s grid=(256,1,1) block=(512,1,1) lds=%d" % (kn, l) for kn, vt, l in launches]
    return head + "\n".join(lines) + "\n" + '.amdgcn_target "amdgcn-amd-amdhsa--gfx950"\n' + body.text()

if __name__ == "__main__":
    out = sys.argv[1] if len(sys.argv) > 1 else "/code/%s.s" % NAME
    for o in sys.argv[2:]:
        k, _, v = o.partition("=")
        OPT[k] = (int(v) if v.isdigit() and k != "cuts" else v) if v else 1
    text = build()
    open(out, "w").write(text)
    import json
    json.dump(KID, open(out + ".kid", "w"))
    hazard.check(text)
```
